```python
import torch

def _softmax(x, axis=-1):
    return torch.softmax(x, dim=axis)
def _gelu(x):
    return torch.nn.functional.gelu(x, approximate="tanh")
def _silu(x):
    return torch.nn.functional.silu(x)
def _sigmoid(x):
    return torch.sigmoid(x)
def _layernorm(x, axis=-1, eps=1e-5):
    m = x.mean(dim=axis, keepdim=True)
    v = x.var(dim=axis, keepdim=True, unbiased=False)
    return (x - m) / torch.sqrt(v + eps)
def _scatter_add(tgt, idx, src, axis=0):
    return tgt.clone().index_add_(axis, idx, src)
def _segment_sum(src, seg, n):
    out = torch.zeros((n,) + src.shape[1:], dtype=src.dtype)
    return out.index_add_(0, seg, src)
def _pad(x, pw):
    flat = tuple(v for pair in reversed(pw) for v in pair)
    return torch.nn.functional.pad(x, flat)

kernel_name = 'recurrent_scan__gqa_block_cached__swiglu_ffn__decode'

def setup_inputs():

    _w = (lambda a: (lambda t: t.to(torch.bfloat16) if t.is_floating_point() else t)(torch.as_tensor(a)))
    def _A_setup():
        B, Sq, D = 1, 1, 1024
        Hq, Hkv, Sk, Dh = 32, 4, 32768, 128
        assert Hq % Hkv == 0, (Hq, Hkv)
        return {
            "x": _w((lambda *s: torch.randn(*s, dtype=torch.bfloat16) * 0.05)(B, Sq, D)),
            "k_cache": _w((lambda *s: torch.randn(*s, dtype=torch.bfloat16) * 1.6)(B, Hkv, Sk, Dh)),
            "v_cache": _w((lambda *s: torch.randn(*s, dtype=torch.bfloat16) * 0.2)(B, Hkv, Sk, Dh)),
            "wq": _w((lambda *s: torch.randn(*s, dtype=torch.bfloat16) * 1.6)(D, Hq * Dh) * (D ** -0.5)),
            "wo": _w((lambda *s: torch.randn(*s, dtype=torch.bfloat16) * 0.2)(Hq * Dh, D) * ((Hq * Dh) ** -0.5)),
        }
    _A_in = _A_setup()

    def _B_setup():
        B, S, D, F = 1, 1, 1024, 3584
        return {
            "x": _w((lambda *s: torch.randn(*s, dtype=torch.bfloat16) * 0.05)(B, S, D)),
            "w_gate": _w((lambda *s: torch.randn(*s, dtype=torch.bfloat16) * 0.1)(D, F)),
            "w_up": _w((lambda *s: torch.randn(*s, dtype=torch.bfloat16) * 0.1)(D, F)),
            "w_down": _w((lambda *s: torch.randn(*s, dtype=torch.bfloat16) * 0.1)(F, D)),
        }
    _B_in = _B_setup()

    return {
        "A_x": _A_in["x"],
        "A_k_cache": _A_in["k_cache"],
        "A_v_cache": _A_in["v_cache"],
        "A_wq": _A_in["wq"],
        "A_wo": _A_in["wo"],
        "B_x": _B_in["x"],
        "B_w_gate": _B_in["w_gate"],
        "B_w_up": _B_in["w_up"],
        "B_w_down": _B_in["w_down"],
    }

def reference(A_x, A_k_cache, A_v_cache, A_wq, A_wo, B_x, B_w_gate, B_w_up, B_w_down):
    def _A_ref(x, k_cache, v_cache, wq, wo):
        B, Sq, D = x.shape
        Hq, Dh = 32, 128
        Hkv = k_cache.shape[1]
        rep = Hq // Hkv
        q = (lambda x, *d: x.permute(*d))((x @ wq).reshape(B, Sq, Hq, Dh), 0, 2, 1, 3)
        k = (lambda x, n, axis: torch.repeat_interleave(x, n, dim=axis))(k_cache, rep, axis=1)
        v = (lambda x, n, axis: torch.repeat_interleave(x, n, dim=axis))(v_cache, rep, axis=1)
        scores = torch.einsum("bhqd,bhkd->bhqk", q, k) * (Dh ** -0.5)
        p = _softmax(scores, axis=-1)
        o = torch.einsum("bhqk,bhkd->bhqd", p, v)
        return (lambda x, *d: x.permute(*d))(o, 0, 2, 1, 3).reshape(B, Sq, Hq * Dh) @ wo

    def _B_ref(x, w_gate, w_up, w_down):
        g = _silu(x @ w_gate)
        u = x @ w_up
        return (g * u) @ w_down

    x = A_x
    xn = _layernorm(x, axis=-1)
    s = _A_ref(xn, A_k_cache, A_v_cache, A_wq, A_wo)
    g = _silu(_B_ref(xn, B_w_gate, B_w_up, B_w_down))
    return x + s * g
```

```python
import re
NAME = "recurrent_scan__gqa_block_cached__swiglu_ffn__decode"

def regs_of(op):
    op = op.strip()
    op = re.sub(r"^-", "", op)
    m = re.fullmatch(r"abs\((.*)\)", op) or re.fullmatch(r"\|(.*)\|", op)
    if m: op = m.group(1)
    m = re.fullmatch(r"([vsa])(\d+)", op)
    if m: return {(m.group(1), int(m.group(2)))}
    m = re.fullmatch(r"([vsa])\[(\d+):(\d+)\]", op)
    if m: return {(m.group(1), i) for i in range(int(m.group(2)), int(m.group(3)) + 1)}
    if op == "vcc": return {("s", 106), ("s", 107)}
    if op == "vcc_lo": return {("s", 106)}
    if op == "vcc_hi": return {("s", 107)}
    if op == "exec": return {("s", 126), ("s", 127)}
    if op == "exec_lo": return {("s", 126)}
    if op == "exec_hi": return {("s", 127)}
    if op == "m0": return {("s", 124)}
    return set()

VCC = {("s", 106), ("s", 107)}
EXEC = {("s", 126), ("s", 127)}
TRANS = ("v_exp_f32", "v_log_f32", "v_rcp_f32", "v_rsq_f32", "v_sqrt_f32", "v_sin_f32", "v_cos_f32", "v_rcp_iflag_f32")

class Ins:
    def __init__(self, text):
        self.text = text
        t = text.split(";")[0].strip()
        self.label = None
        self.op = ""
        self.w = set(); self.r = set()
        self.kind = "other"
        self.dpp = False
        if t.endswith(":"):
            self.label = t[:-1]; self.kind = "label"; return
        if not t or t.startswith("."):
            self.kind = "none"; return
        parts = t.split(None, 1)
        op = parts[0]; self.op = op
        rest = parts[1] if len(parts) > 1 else ""
        ops = [x.strip() for x in re.split(r",(?![^\[]*\])", rest)] if rest else []
        if ops:
            last = ops[-1].split()
            self.mods = last[1:]
            ops[-1] = last[0] if last else ""
        else:
            self.mods = []
        self.ops = ops
        R = [regs_of(o) for o in ops]
        allr = lambda l: set().union(*l) if l else set()
        if op.startswith("v_mfma"):
            self.kind = "mfma"; self.w = R[0]; self.a = R[1]; self.b = R[2]; self.c = R[3]; self.r = R[1] | R[2] | R[3]
            self.passes = 4 if "16x16x32" in op or "16x16x16" in op else 8
        elif op.startswith("v_"):
            self.kind = "valu"
            self.dpp = "_dpp" in op
            base = op.replace("_dpp", "").replace("_e32", "").replace("_e64", "").replace("_sdwa", "")
            self.base = base
            if base.startswith("v_permlane"):
                self.w = R[0] | R[1]; self.r = R[0] | R[1]
            elif base.startswith("v_cmpx"):
                self.w = R[0] | EXEC; self.r = allr(R[1:])
            elif base in ("v_add_co_u32", "v_sub_co_u32", "v_addc_co_u32", "v_subb_co_u32", "v_div_scale_f32", "v_mad_u64_u32"):
                self.w = R[0] | R[1]; self.r = allr(R[2:])
            elif base in ("v_nop",):
                pass
            else:
                self.w = R[0]; self.r = allr(R[1:])
                if base.startswith(("v_fmac", "v_pk_fmac", "v_dot2c", "v_writelane")) or self.dpp or "_sdwa" in op:
                    self.r |= R[0]
        elif op.startswith(("buffer_", "global_")):
            self.kind = "vmem"
            if "load" in op:
                if "lds" in self.mods or "_lds_" in op:
                    self.r = allr(R) | {("s", 124)}; self.ldsdma = True
                else:
                    self.w = R[0]; self.r = allr(R[1:])
            else:
                self.r = allr(R)
                if "atomic" in op and "sc0" in self.mods: self.w = R[0]
                if re.search(r"store_dwordx[34]", op):
                    self.wide = R[0] if op.startswith("buffer_") else R[1]
        elif op.startswith("ds_"):
            self.kind = "ds"
            if op.startswith(("ds_read", "ds_bpermute", "ds_permute", "ds_swizzle")) or "_rtn_" in op:
                self.w = R[0]; self.r = allr(R[1:])
            else:
                self.r = allr(R)
        elif op.startswith("s_"):
            self.kind = "salu"
            if op in ("s_nop",): self.kind = "nop"
            elif op.startswith(("s_cbranch", "s_branch")): self.kind = "branch"; self.target = ops[0]
            elif op == "s_endpgm": self.kind = "end"
            elif op.startswith(("s_cmp", "s_bitcmp", "s_waitcnt", "s_barrier", "s_sleep", "s_setprio")):
                self.r = allr(R)
            else:
                self.w = R[0] if R else set(); self.r = allr(R[1:])
                if "saveexec" in op: self.w |= EXEC
    def states(self):
        if self.kind in ("label", "none"): return 0
        if self.kind == "nop": return int(self.ops[0], 0) + 1
        return 1

def vonly(s): return {x for x in s if x[0] in "va"}
def sonly(s): return {x for x in s if x[0] == "s"}

def required(p, c):
    n = 0
    if p.kind == "valu":
        pv = vonly(p.w); ps = sonly(p.w)
        if c.kind == "mfma":
            if pv & c.r: n = max(n, 2)
            if ps & EXEC: n = max(n, 4)
        if c.kind == "valu":
            if c.dpp and (pv & c.r): n = max(n, 2)
            if c.dpp and (ps & EXEC): n = max(n, 5)
            if c.base.startswith("v_permlane") and (pv & c.r): n = max(n, 2)
            if c.base.startswith("v_permlane") and (ps & EXEC): n = max(n, 4)
            if c.base in ("v_readlane_b32", "v_readfirstlane_b32") and (pv & c.r): n = max(n, 1)
            if c.base in ("v_readlane_b32", "v_readfirstlane_b32", "v_writelane_b32"):
                if ps & EXEC: n = max(n, 4)
                if ps & c.r: n = max(n, 4)
            if ps & c.r: n = max(n, 2)
            if c.base == "v_div_fmas_f32" and (ps & VCC): n = max(n, 4)
            if p.base in TRANS and (pv & c.r): n = max(n, 1)
            if ("_sdwa" in p.op or "op_sel" in p.text) and (pv & (c.r | c.w)): n = max(n, 1)
        if c.kind == "vmem" and (ps & c.r): n = max(n, 5)
        if c.kind in ("vmem", "ds") and p.base in TRANS and (pv & c.r): n = max(n, 1)
        if c.kind in ("salu", "branch") and (ps & (c.r | (VCC if "vcc" in c.op else set()))): n = max(n, 1)
    if p.kind == "mfma":
        big = {4: 8, 8: 12}[p.passes]
        if c.kind == "mfma":
            if p.w & (c.a | c.b): n = max(n, big)
            if p.w & c.c:
                if not (p.w == c.c and p.passes == c.passes): n = max(n, big - 2)
            elif p.w & c.w: n = max(n, big)
        elif c.kind in ("valu", "vmem", "ds"):
            if p.w & (c.r | c.w): n = max(n, big)
            if c.kind == "valu" and (p.c & c.w): n = max(n, {4: 3, 8: 7}[p.passes])
    if p.kind == "vmem" and hasattr(p, "wide"):
        if c.kind in ("valu", "mfma") and (p.wide & c.w): n = max(n, 2)
        elif p.wide & c.w: n = max(n, 1)
    if p.kind == "salu" and ("s", 124) in p.w and getattr(c, "ldsdma", False): n = max(n, 1)
    return n

class Asm:
    def __init__(self):
        self.ins = []
        self.nlabel = 0
    def __call__(self, s=""):
        for l in s.split("\n"):
            l = l.strip()
            if l: self.ins.append(Ins(l))
    def label(self, base="L"):
        self.nlabel += 1
        return f"{base}_{self.nlabel}"
    def fix(self):
        added = 0
        i = 0
        while i < len(self.ins):
            ins = self.ins
            c = ins[i]
            if c.kind in ("label", "none", "nop", "end"):
                i += 1; continue
            branches = {}
            for k, x in enumerate(ins):
                if x.kind == "branch": branches.setdefault(x.target, []).append(k)
            need = 0
            stack = [(i - 1, 0, True)]
            seen = set()
            while stack:
                k, d, fall = stack.pop()
                if k < 0 or d >= 14 or (k, d) in seen: continue
                seen.add((k, d))
                p = ins[k]
                if fall and (p.kind == "end" or p.op == "s_branch"): continue
                if p.kind == "label":
                    for b in branches.get(p.label, []): stack.append((b, d, False))
                    stack.append((k - 1, d, True)); continue
                need = max(need, required(p, c) - d)
                stack.append((k - 1, d + p.states(), True))
            if need > 0:
                self.ins.insert(i, Ins(f"s_nop {need-1}"))
                added += 1
                i += 1
            i += 1
        return added
    def text(self):
        self.fix()
        out = []
        for x in self.ins:
            out.append(x.text if x.kind == "label" else "    " + x.text)
        return "\n".join(out) + "\n"

def header(launch_lines):
    return "".join(f"; {l}\n" for l in launch_lines) + '.amdgcn_target "amdgcn-amd-amdhsa--gfx950"\n.text\n'

def kernel_begin(name):
    return f".globl {name}\n.p2align 8\n.type {name},@function\n{name}:\n"

def kernel_desc(name, vgpr, sgpr, accum=None, extra=""):
    if accum is None:
        accum = min(256, (vgpr + 3) // 4 * 4)
    return f""".amdhsa_kernel {name}
  .amdhsa_next_free_vgpr {vgpr}
  .amdhsa_next_free_sgpr {sgpr}
  .amdhsa_accum_offset {accum}
  .amdhsa_group_segment_fixed_size 0
  .amdhsa_kernarg_size 96
  .amdhsa_user_sgpr_count 2
  .amdhsa_user_sgpr_kernarg_segment_ptr 1
  .amdhsa_system_sgpr_workgroup_id_x 1
{extra}.end_amdhsa_kernel
"""

def rodata():
    return '.section .rodata,"a"\n.p2align 6\n'
```

```python
import sys
from asmlib import *

QP, GP, ST, SP, FP, OP, STAMP = 0, 0x10000, 0x30000, 0x40000, 0x80000, 0x100000, 0x400000
L_CLEARED, L_XN, L_Q, L_AISS, L_ADONE = 0, 4, 8, 12, 16
XN, QF, ML, OB, RS, RF = 0x100, 0x1100, 0x1900, 0x2000, 0x6400, 0x7400
LDS_BYTES = 0x7C00
LOG2E = 0x3fb8aa3b
SCALE = 0x3db504f3
DPP = "row_mask:0xf bank_mask:0xf"

def gen(nt="nt", stamps=False, spin_limit=400000):
    a = Asm()
    NT = " " + nt if nt else ""
    nstamp = [0]
    def stamp(k):
        if stamps: a(f"s_memrealtime s[{64+2*k}:{65+2*k}]")
    def dump_stamps(vt, va):
        if not stamps: return
        a("s_waitcnt lgkmcnt(0)")
        a("s_mov_b64 exec, -1")
        a(f"v_mov_b32 v{vt}, 0")
        for k in range(16):
            a(f"v_writelane_b32 v{vt}, s{64+2*k}, {k}")
        a("s_lshl_b32 s4, s2, 3")
        a("s_add_u32 s4, s4, s3")
        a("s_lshl_b32 s4, s4, 6")
        a(f"s_add_u32 s4, s4, {STAMP}")
        a(f"v_lshlrev_b32 v{va}, 2, v0")
        a("s_mov_b64 exec, 0xffff")
        a(f"buffer_store_dword v{vt}, v{va}, s[48:51], s4 offen")
    def srd(d, p, n):
        a(f"s_mov_b32 s{d}, s{p}")
        a(f"s_mov_b32 s{d+1}, s{p+1}")
        a(f"s_mov_b32 s{d+2}, {n}")
        a(f"s_mov_b32 s{d+3}, 0x20000")
    def lds_spin(off, n, vt, sleep=1):
        L = a.label("L_spin"); D = a.label("L_spun")
        a(f"s_mov_b32 s60, {spin_limit}")
        a(f"{L}:")
        a(f"ds_read_b32 v{vt}, v1 offset:{off}")
        a("s_waitcnt lgkmcnt(0)")
        a(f"v_readfirstlane_b32 s61, v{vt}")
        a(f"s_cmp_ge_u32 s61, {n}")
        a(f"s_cbranch_scc1 {D}")
        if sleep: a(f"s_sleep {sleep}")
        a("s_sub_u32 s60, s60, 1")
        a(f"s_cbranch_scc0 {L}")
        a(f"{D}:")
    def lds_inc(off, vt):
        a(f"v_mov_b32 v{vt}, 1")
        a("s_mov_b64 exec, 1")
        a(f"ds_add_u32 v1, v{vt} offset:{off}")
        a("s_mov_b64 exec, -1")
    def row_allreduce(op, regs):
        for k in (1, 2, 4, 8):
            for r in regs:
                a(f"{op}_dpp v{r}, v{r}, v{r} row_ror:{k} {DPP}")
    def cross_allreduce(op, r, t):
        a(f"v_mov_b32 v{t}, v{r}")
        a(f"v_permlane16_swap_b32 v{r}, v{t}")
        a(f"{op} v{r}, v{r}, v{t}")
        a(f"v_mov_b32 v{t}, v{r}")
        a(f"v_permlane32_swap_b32 v{r}, v{t}")
        a(f"{op} v{r}, v{r}, v{t}")
    def bf16r(d, s):
        a(f"v_cvt_pk_bf16_f32 v{d}, v{s}, v{s}")
        a(f"v_and_b32 v{d}, 0xffff0000, v{d}")
    def sentinel_check(regs, t):
        regs = list(regs)
        a(f"v_max3_u32 v{t}, v{regs[0]}, v{regs[1 % len(regs)]}, v{regs[2 % len(regs)]}")
        rest = regs[3:]
        while rest:
            x = rest[:2]; rest = rest[2:]
            a(f"v_max3_u32 v{t}, v{t}, v{x[0]}, v{x[-1]}")
        a(f"v_cmp_eq_u32 vcc, -1, v{t}")
    def retry(L, D, sleep=1):
        a(f"s_cbranch_vccz {D}")
        if sleep: a(f"s_sleep {sleep}")
        a("s_sub_u32 s60, s60, 1")
        a(f"s_cbranch_scc0 {L}")
        a(f"{D}:")
    def silu_bf16(d, x, t):
        a(f"v_mul_f32 v{t}, 0xbfb8aa3b, v{x}")
        a(f"v_exp_f32 v{t}, v{t}")
        a(f"v_add_f32 v{t}, 1.0, v{t}")
        a(f"v_rcp_f32 v{t}, v{t}")
        a(f"v_mul_f32 v{t}, v{t}, v{x}")
        bf16r(d, t)

    a("s_cmp_ge_u32 s2, 256")
    a("s_cbranch_scc1 L_end")
    a("s_load_dwordx16 s[16:31], s[0:1], 0")
    a("s_load_dwordx8 s[32:39], s[0:1], 64")
    if stamps:
        for k in range(1, 16): a(f"s_mov_b32 s{64+2*k}, 0")
    stamp(0)
    a("v_lshrrev_b32 v1, 6, v0")
    a("v_and_b32 v0, 63, v0")
    a("v_readfirstlane_b32 s3, v1")
    a("v_mov_b32 v1, 0")
    a("v_lshrrev_b32 v2, 3, v0")
    a("v_and_b32 v3, 7, v0")
    a("v_lshrrev_b32 v4, 4, v0")
    a("v_and_b32 v5, 15, v0")
    a("v_lshlrev_b32 v6, 4, v0")
    a("s_cmp_ge_u32 s3, 4")
    a("s_cbranch_scc1 L_A")
    a("s_setprio 2")
    a("s_cmp_eq_u32 s3, 3")
    a("s_cbranch_scc1 L_W3")

    WB = 128
    XS = 16
    SL, SH = 32, 36
    T0 = 40
    ACC = 48
    a("s_and_b32 s4, s2, 3")
    a("s_lshr_b32 s5, s2, 2")
    a("s_lshl_b32 s6, s5, 7")
    a("s_movk_i32 s7, 7168")
    a("s_cmp_eq_u32 s3, 0")
    a("s_cselect_b32 s7, 8192, s7")
    a("s_lshl_b32 s8, s4, 8")
    a("s_mul_i32 s8, s8, s7")
    a("s_add_u32 s8, s8, s6")
    a("s_lshl_b32 s9, s7, 5")
    a("v_mul_lo_u32 v7, v2, s9")
    a("v_lshl_add_u32 v7, v3, 4, v7")
    a("s_waitcnt lgkmcnt(0)")
    srd(48, 38, 268435456)
    a("s_cmp_eq_u32 s3, 0")
    a("s_cbranch_scc0 L_W12")
    srd(52, 16, 2048)
    srd(40, 22, 8388608)
    a("v_lshlrev_b32 v8, 5, v0")
    a("v_lshlrev_b32 v9, 3, v0")
    a("s_lshl_b32 s10, s4, 9")
    a("buffer_load_dwordx4 v[56:59], v8, s[52:55], 0 offen")
    a("buffer_load_dwordx4 v[60:63], v8, s[52:55], 0 offen offset:16")
    a("buffer_load_dwordx2 v[64:65], v9, s[52:55], s10 offen")
    def issue_block():
        for i in range(32):
            a(f"buffer_load_dwordx4 v[{WB+4*i}:{WB+4*i+3}], v7, s[40:43], s8 offen{NT}")
            if i < 31: a("s_add_u32 s8, s8, s7")
    issue_block()
    a("s_barrier")
    stamp(1)
    a("s_waitcnt vmcnt(32)")
    stamp(2)
    for i in range(8):
        a(f"v_lshlrev_b32 v{72+2*i}, 16, v{56+i}")
        a(f"v_and_b32 v{73+2*i}, 0xffff0000, v{56+i}")
    a("v_add_f32 v10, v72, v73")
    a("v_add_f32 v11, v74, v75")
    for i in range(2, 8):
        a(f"v_add_f32 v10, v10, v{72+2*i}")
        a(f"v_add_f32 v11, v11, v{73+2*i}")
    a("v_add_f32 v10, v10, v11")
    row_allreduce("v_add_f32", [10])
    cross_allreduce("v_add_f32", 10, 11)
    a("v_mul_f32 v10, 0x3a800000, v10")
    for i in range(16):
        a(f"v_sub_f32 v{72+i}, v{72+i}, v10")
    a("v_mul_f32 v11, v72, v72")
    a("v_mul_f32 v12, v73, v73")
    for i in range(1, 8):
        a(f"v_fmac_f32 v11, v{72+2*i}, v{72+2*i}")
        a(f"v_fmac_f32 v12, v{73+2*i}, v{73+2*i}")
    a("v_add_f32 v11, v11, v12")
    row_allreduce("v_add_f32", [11])
    cross_allreduce("v_add_f32", 11, 12)
    a("v_mul_f32 v11, 0x3a800000, v11")
    bf16r(10, 10)
    bf16r(11, 11)
    a("v_add_f32 v11, 0x3727c5ac, v11")
    bf16r(11, 11)
    a("v_sqrt_f32 v11, v11")
    bf16r(11, 11)
    a("v_rcp_f32 v11, v11")
    for i in range(2):
        a(f"v_lshlrev_b32 v12, 16, v{64+i}")
        a(f"v_and_b32 v13, 0xffff0000, v{64+i}")
        a("v_sub_f32 v12, v12, v10")
        a("v_sub_f32 v13, v13, v10")
        a("v_cvt_pk_bf16_f32 v13, v12, v13")
        a("v_lshlrev_b32 v12, 16, v13")
        a("v_and_b32 v13, 0xffff0000, v13")
        a("v_mul_f32 v12, v12, v11")
        a("v_mul_f32 v13, v13, v11")
        a(f"v_cvt_pk_bf16_f32 v{64+i}, v12, v13")
    a(f"ds_write_b64 v9, v[64:65] offset:{XN}")
    a("s_waitcnt lgkmcnt(0)")
    lds_inc(L_XN, 12)
    a("s_branch L_gemv32")
    a("L_W12:")
    a("s_cmp_eq_u32 s3, 1")
    a("s_cselect_b32 s40, s28, s30")
    a("s_cselect_b32 s41, s29, s31")
    a("s_mov_b32 s42, 7340032")
    a("s_mov_b32 s43, 0x20000")
    a("s_barrier")
    a("s_cmp_ge_u32 s2, 224")
    a("s_cbranch_scc1 L_Wsel")
    issue_block()
    stamp(1)
    lds_spin(L_XN, 1, 12)
    a("L_gemv32:")
    a("v_lshlrev_b32 v12, 6, v2")
    for i in range(4):
        a(f"ds_read_b128 v[{XS+4*i}:{XS+4*i+3}], v12 offset:{XN+16*i}")
    def build_sel():
        a("v_and_b32 v12, 1, v0")
        a("v_cmp_eq_u32 vcc, 1, v12")
        a("v_mov_b32 v12, 0x0c0c0100")
        a("v_mov_b32 v13, 0x01000c0c")
        a("v_cndmask_b32 v12, v12, v13, vcc")
        a("v_mov_b32 v13, 0x0c0c0302")
        a("v_mov_b32 v14, 0x03020c0c")
        a("v_cndmask_b32 v13, v13, v14, vcc")
        a("v_lshrrev_b32 v14, 1, v3")
        a("v_mov_b32 v15, 0x0c0c0c0c")
        for j in range(4):
            a(f"v_cmp_eq_u32 vcc, {j}, v14")
            a(f"v_cndmask_b32 v{SL+j}, v15, v12, vcc")
            a(f"v_cndmask_b32 v{SH+j}, v15, v13, vcc")
    build_sel()
    a("s_waitcnt lgkmcnt(0)")
    stamp(3)
    for i in range(32):
        t = T0 + 4 * (i & 1); s = SH if i & 1 else SL
        for j in range(4):
            a(f"v_perm_b32 v{t+j}, v{XS+(i>>1)}, v{XS+(i>>1)}, v{s+j}")
        a(f"s_waitcnt vmcnt({31-i})")
        c = "0" if i == 0 else f"v[{ACC}:{ACC+3}]"
        a(f"v_mfma_f32_16x16x32_bf16 v[{ACC}:{ACC+3}], v[{t}:{t+3}], v[{WB+4*i}:{WB+4*i+3}], {c}")
    stamp(4)
    def vreduce(acc):
        a(f"v_permlane32_swap_b32 v{acc}, v{acc+2}")
        a(f"v_permlane32_swap_b32 v{acc+1}, v{acc+3}")
        a(f"v_add_f32_dpp v{acc}, v{acc+2}, v{acc} row_ror:8 {DPP}")
        a(f"v_add_f32_dpp v{acc+1}, v{acc+3}, v{acc+1} row_ror:8 {DPP}")
    def colofs64(d, t):
        a(f"v_and_b32 v{t}, 1, v4")
        a(f"v_lshlrev_b32 v{t}, 4, v{t}")
        a(f"v_lshl_add_u32 v{d}, v3, 5, v{t}")
        a(f"v_lshrrev_b32 v{t}, 5, v0")
        a(f"v_lshl_add_u32 v{d}, v{t}, 3, v{d}")
    colofs64(12, 13)
    a("s_lshl_b32 s8, s3, 16")
    a("s_lshl_b32 s9, s4, 14")
    a("s_add_u32 s8, s8, s9")
    a("s_lshl_b32 s9, s5, 8")
    a("s_add_u32 s8, s8, s9")
    lds_spin(L_CLEARED, 1, 13)
    vreduce(ACC)
    a(f"v_min_u32 v{ACC}, -2, v{ACC}")
    a(f"v_min_u32 v{ACC+1}, -2, v{ACC+1}")
    a("s_mov_b32 exec_lo, 0x00ff00ff")
    a("s_mov_b32 exec_hi, 0x00ff00ff")
    a(f"buffer_store_dwordx2 v[{ACC}:{ACC+1}], v12, s[48:51], s8 offen sc1")
    a("s_mov_b64 exec, -1")
    a("s_cmp_eq_u32 s3, 0")
    a("s_cbranch_scc0 L_Wmid")
    srd(56, 36, 256)
    a("v_mov_b32 v12, 1")
    a("v_mov_b32 v13, s2")
    a("s_waitcnt vmcnt(0)")
    stamp(5)
    a("s_mov_b64 exec, 1")
    a("buffer_store_byte v12, v13, s[56:59], 0 offen sc1")
    a("s_mov_b64 exec, -1")
    a("s_branch L_Wmid")

    a("L_W3:")
    a("v_lshlrev_b32 v7, 2, v0")
    a("ds_write_b32 v7, v1")
    a("v_mov_b32 v16, -1")
    a("v_mov_b32 v17, -1")
    a("v_mov_b32 v18, -1")
    a("v_mov_b32 v19, -1")
    a("s_waitcnt lgkmcnt(0)")
    srd(48, 38, 268435456)
    srd(56, 36, 256)
    a("s_barrier")
    a("s_lshl_b32 s4, s2, 12")
    a(f"s_add_u32 s4, s4, {OP}")
    for i in range(4):
        a(f"buffer_store_dwordx4 v[16:19], v6, s[48:51], s4 offen offset:{1024*i} sc1")
    def rr_cc(srr, scc):
        a(f"s_and_b32 s{srr}, s2, 7")
        a("s_lshr_b32 s62, s2, 5")
        a("s_lshl_b32 s62, s62, 3")
        a(f"s_or_b32 s{srr}, s{srr}, s62")
        a(f"s_lshr_b32 s{scc}, s2, 3")
        a(f"s_and_b32 s{scc}, s{scc}, 3")
    def sp_off(d):
        rr_cc(4, 5)
        a("s_lshl_b32 s4, s4, 12")
        a("s_lshl_b32 s5, s5, 10")
        a("s_add_u32 s4, s4, s5")
        a(f"s_add_u32 s{d}, s4, {SP}")
    def fp_off(d):
        a("s_lshr_b32 s4, s2, 4")
        a("s_lshl_b32 s4, s4, 12")
        a("s_and_b32 s5, s2, 15")
        a("s_lshl_b32 s5, s5, 8")
        a("s_add_u32 s4, s4, s5")
        a(f"s_add_u32 s{d}, s4, {FP}")
    sp_off(6)
    a("buffer_store_dwordx4 v[16:19], v6, s[48:51], s6 offen sc1")
    fp_off(6)
    a("buffer_store_dword v16, v7, s[48:51], s6 offen sc1")
    a("s_and_b32 s4, s2, 3")
    a("s_lshl_b32 s4, s4, 14")
    a("s_lshr_b32 s5, s2, 2")
    a("s_lshl_b32 s5, s5, 8")
    a("s_add_u32 s4, s4, s5")
    a(f"s_add_u32 s6, s4, {GP}")
    a("buffer_store_dword v16, v7, s[48:51], s6 offen sc1")
    a(f"s_add_u32 s6, s4, {GP+0x10000}")
    a("buffer_store_dword v16, v7, s[48:51], s6 offen sc1")
    def st_off(d):
        a("s_lshr_b32 s4, s2, 6")
        a("s_lshl_b32 s4, s4, 12")
        a("s_and_b32 s5, s2, 63")
        a("s_lshl_b32 s5, s5, 3")
        a("s_add_u32 s4, s4, s5")
        a(f"s_add_u32 s{d}, s4, {ST}")
    st_off(6)
    a("v_lshlrev_b32 v8, 9, v0")
    a("s_mov_b64 exec, 0xff")
    a("buffer_store_dwordx2 v[16:17], v8, s[48:51], s6 offen sc1")
    a("s_mov_b64 exec, -1")
    stamp(1)
    a("s_waitcnt vmcnt(0)")
    stamp(2)
    lds_inc(L_CLEARED, 12)
    a("v_lshlrev_b32 v8, 9, v3")
    a("v_lshl_add_u32 v8, v2, 5, v8")
    a("s_lshr_b32 s4, s2, 6")
    a("s_lshl_b32 s4, s4, 12")
    a("s_add_u32 s5, s4, 16384")
    a("s_add_u32 s6, s4, 32768")
    a("s_add_u32 s7, s4, 49152")
    a("s_mov_b32 s8, 0x01010101")
    L = a.label("L_fl"); D = a.label("L_fld")
    a(f"s_mov_b32 s60, {spin_limit}")
    a(f"{L}:")
    a("buffer_load_dword v12, v7, s[56:59], 0 offen sc1")
    a("s_waitcnt vmcnt(0)")
    a("v_cmp_ne_u32 vcc, s8, v12")
    retry(L, D, 2)
    stamp(3)
    for r in range(4):
        for hf in range(2):
            for k in range(2):
                d = 64 + r * 16 + hf * 8 + k * 4
                a(f"buffer_load_dwordx4 v[{d}:{d+3}], v8, s[48:51], s{4+r} offen offset:{hf*256+k*16} sc1")
    a("s_waitcnt vmcnt(8)")
    for i in range(16): a(f"v_add_f32 v{64+i}, v{64+i}, v{80+i}")
    a("s_waitcnt vmcnt(0)")
    for i in range(16): a(f"v_add_f32 v{96+i}, v{96+i}, v{112+i}")
    for i in range(16): a(f"v_add_f32 v{64+i}, v{64+i}, v{96+i}")
    for i in range(8): a(f"v_cvt_pk_bf16_f32 v{16+i}, v{64+2*i}, v{65+2*i}")
    a(f"ds_write_b128 v6, v[16:19] offset:{QF}")
    a(f"ds_write_b128 v6, v[20:23] offset:{QF+1024}")
    a("s_waitcnt lgkmcnt(0)")
    lds_inc(L_Q, 12)
    stamp(4)
    a("L_Wsel:")
    build_sel()

    a("L_Wmid:")
    HS = 64
    WD = 96
    WO = 128
    WP = 160
    CO = 192
    PD = 224
    PS = 240
    lds_spin(L_Q, 1, 12, 4)
    stamp(6)
    a("s_lshr_b32 s4, s2, 4")
    a("s_mul_i32 s4, s4, 224")
    a("s_mul_i32 s5, s3, 56")
    a("s_add_u32 s12, s4, s5")
    a("s_lshl_b32 s4, s12, 2")
    a(f"s_add_u32 s4, s4, {GP}")
    a("v_min_u32 v8, 55, v0")
    a("v_lshlrev_b32 v8, 2, v8")
    L = a.label("L_h"); D = a.label("L_hd")
    a(f"s_mov_b32 s60, {spin_limit}")
    a(f"{L}:")
    a("s_mov_b32 s5, s4")
    for i in range(8):
        a(f"buffer_load_dword v{16+i}, v8, s[48:51], s5 offen sc1")
        if i < 7: a("s_add_u32 s5, s5, 16384")
    a("s_waitcnt vmcnt(0)")
    sentinel_check(range(16, 24), 12)
    retry(L, D, 8)
    stamp(7)
    a("v_add_f32 v16, v16, v17")
    a("v_add_f32 v18, v18, v19")
    a("v_add_f32 v20, v20, v21")
    a("v_add_f32 v22, v22, v23")
    a("v_add_f32 v16, v16, v18")
    a("v_add_f32 v20, v20, v22")
    bf16r(16, 16)
    bf16r(20, 20)
    silu_bf16(16, 16, 12)
    a("v_mul_f32 v16, v16, v20")
    a("v_cvt_pk_bf16_f32 v16, v16, v16")
    a("v_mul_u32_u24 v12, 28, v2")
    for i in range(7):
        a(f"ds_bpermute_b32 v{17+i}, v12, v16 offset:{4*i}")
    a("s_waitcnt lgkmcnt(0)")
    for i in range(7):
        for j in range(4):
            a(f"v_perm_b32 v{HS+4*i+j}, v{17+i}, v{17+i}, v{SL+j}")
    srd(40, 32, 7340032)
    srd(44, 24, 8388608)
    a("s_lshl_b32 s12, s12, 11")
    a("s_and_b32 s4, s2, 15")
    a("s_lshl_b32 s4, s4, 7")
    a("s_add_u32 s12, s12, s4")
    a("v_mul_u32_u24 v8, 14336, v2")
    a("v_lshl_add_u32 v8, v3, 4, v8")
    rr_cc(4, 5)
    a("s_lshr_b32 s6, s4, 1")
    a("s_and_b32 s7, s4, 1")
    a("s_lshl_b32 s7, s7, 2")
    a("s_add_u32 s7, s7, s3")
    a("s_lshl_b32 s8, s6, 7")
    a("s_lshr_b32 s9, s7, 1")
    a("s_lshl_b32 s9, s9, 5")
    a("s_add_u32 s8, s8, s9")
    a("s_and_b32 s9, s7, 1")
    a("s_lshl_b32 s9, s9, 2")
    a("s_add_u32 s8, s8, s9")
    a("s_lshl_b32 s8, s8, 11")
    a("s_lshl_b32 s9, s5, 9")
    a("s_add_u32 s13, s8, s9")
    a("v_lshlrev_b32 v9, 4, v5")
    a("v_lshl_add_u32 v9, v4, 11, v9")
    a("s_lshr_b32 s8, s6, 3")
    a("s_lshl_b32 s8, s8, 18")
    a("s_and_b32 s9, s6, 7")
    a("s_lshl_b32 s9, s9, 9")
    a("s_add_u32 s8, s8, s9")
    a("s_lshl_b32 s9, s7, 6")
    a("s_add_u32 s8, s8, s9")
    a(f"s_add_u32 s96, s8, {OP}")
    a("s_add_u32 s97, s96, 4096")
    a("s_add_u32 s98, s96, 8192")
    a("s_add_u32 s99, s96, 12288")
    a("s_lshl_b32 s8, s6, 9")
    a(f"s_add_u32 s14, s8, {ST}")
    a("v_lshlrev_b32 v10, 4, v4")
    a("v_lshl_add_u32 v10, v5, 14, v10")
    a("v_lshlrev_b32 v11, 5, v5")
    a("s_mov_b32 s10, 0x05040100")
    a("s_mov_b32 s11, 0x07060302")
    lds_spin(L_AISS, 4, 12, 4)
    stamp(8)
    for i in range(7):
        a(f"buffer_load_dwordx4 v[{WD+4*i}:{WD+4*i+3}], v8, s[40:43], s12 offen offset:{2048*(i&1)}{NT}")
        if i & 1: a("s_add_u32 s12, s12, 4096")
    for j in range(4):
        for hf in range(2):
            d = WO + (j * 2 + hf) * 4
            a(f"buffer_load_dwordx4 v[{d}:{d+3}], v9, s[44:47], s13 offen offset:{256*hf}{NT}")
        if j < 3: a("s_add_u32 s13, s13, 16384")
    stamp(9)
    for i in range(7):
        a(f"s_waitcnt vmcnt({14-i})")
        c = "0" if i == 0 else f"v[{ACC}:{ACC+3}]"
        a(f"v_mfma_f32_16x16x32_bf16 v[{ACC}:{ACC+3}], v[{HS+4*i}:{HS+4*i+3}], v[{WD+4*i}:{WD+4*i+3}], {c}")
    a("v_lshlrev_b32 v12, 3, v0")
    a("s_lshl_b32 s4, s3, 9")
    a("v_add_u32 v12, s4, v12")
    vreduce(ACC)
    a(f"ds_write_b64 v12, v[{ACC}:{ACC+1}] offset:{RF}")
    for jp in range(2):
        a(f"s_waitcnt vmcnt({4-4*jp})")
        for hf in range(2):
            for e in range(8):
                lo = WO + ((2 * jp) * 2 + hf) * 4 + (e >> 1)
                hi = WO + ((2 * jp + 1) * 2 + hf) * 4 + (e >> 1)
                a(f"v_perm_b32 v{WP+4*e+2*hf+jp}, v{hi}, v{lo}, s{10+(e&1)}")
    stamp(10)
    a("v_cmp_gt_u32 s[100:101], 8, v5")
    a("v_and_b32 v12, 1, v4")
    a("v_cmp_eq_u32 s[8:9], 1, v12")
    a("s_lshl_b32 s4, s3, 10")
    a("v_add_u32 v15, s4, v6")
    L = a.label("L_o"); D = a.label("L_od")
    a(f"s_mov_b32 s60, {spin_limit}")
    a(f"{L}:")
    a(f"buffer_load_dwordx4 v[{PS}:{PS+3}], v11, s[48:51], s14 offen sc1")
    a(f"buffer_load_dwordx4 v[{PS+4}:{PS+7}], v11, s[48:51], s14 offen offset:16 sc1")
    for i in range(4):
        a(f"buffer_load_dwordx4 v[{PD+4*i}:{PD+4*i+3}], v10, s[48:51], s{96+i} offen sc1")
    a("s_waitcnt vmcnt(0)")
    sentinel_check(range(PD, PD + 24), 12)
    retry(L, D, 1)
    stamp(11)
    a(f"v_max3_f32 v16, v{PS}, v{PS+2}, v{PS+4}")
    a(f"v_max_f32 v16, v16, v{PS+6}")
    row_allreduce("v_max_f32", [16])
    for i in range(4): a(f"v_sub_f32 v{17+i}, v{PS+2*i}, v16")
    for i in range(4): a(f"v_exp_f32 v{17+i}, v{17+i}")
    a(f"v_mul_f32 v24, v17, v{PS+1}")
    for k in range(4): a(f"v_mul_f32 v{25+k}, v17, v{PD+k}")
    for i in range(1, 4):
        a(f"v_fmac_f32 v24, v{17+i}, v{PS+2*i+1}")
        for k in range(4): a(f"v_fmac_f32 v{25+k}, v{17+i}, v{PD+4*i+k}")
    row_allreduce("v_add_f32", [24, 25, 26, 27, 28])
    a("v_rcp_f32 v24, v24")
    for k in range(4): a(f"v_mul_f32 v{25+k}, v24, v{25+k}")
    a("v_cvt_pk_bf16_f32 v25, v25, v26")
    a("v_cvt_pk_bf16_f32 v26, v27, v28")
    a("v_cndmask_b32 v16, 0, v25, s[100:101]")
    a("v_cndmask_b32 v17, 0, v26, s[100:101]")
    a("v_cndmask_b32 v18, v25, 0, s[100:101]")
    a("v_cndmask_b32 v19, v26, 0, s[100:101]")
    for e in (0, 4, 1, 5, 2, 6, 3, 7):
        a(f"v_mfma_f32_16x16x32_bf16 v[{CO+4*e}:{CO+4*e+3}], v[16:19], v[{WP+4*e}:{WP+4*e+3}], 0")
    for r in range(4):
        a(f"v_cndmask_b32 v{20+r}, v{CO+4*r}, v{CO+4*(4+r)}, s[8:9]")
    a(f"ds_write_b128 v15, v[20:23] offset:{RS}")
    a("s_waitcnt lgkmcnt(0)")
    stamp(12)
    a("s_barrier")
    a("s_cmp_eq_u32 s3, 1")
    a("s_cbranch_scc1 L_pubf")
    a("s_cmp_eq_u32 s3, 2")
    a("s_cbranch_scc1 L_final")
    a("s_cmp_eq_u32 s3, 3")
    a("s_cbranch_scc1 L_Wend")
    for w in range(4):
        a(f"ds_read_b128 v[{16+4*w}:{19+4*w}], v6 offset:{RS+1024*w}")
    sp_off(6)
    a("v_lshrrev_b32 v12, 1, v4")
    a("v_lshlrev_b32 v12, 9, v12")
    a("v_lshl_add_u32 v12, v5, 5, v12")
    a("v_and_b32 v13, 1, v4")
    a("v_lshl_add_u32 v12, v13, 4, v12")
    a("s_waitcnt lgkmcnt(0)")
    for k in range(4): a(f"v_add_f32 v{16+k}, v{16+k}, v{20+k}")
    for k in range(4): a(f"v_add_f32 v{24+k}, v{24+k}, v{28+k}")
    for k in range(4): a(f"v_add_f32 v{16+k}, v{16+k}, v{24+k}")
    for k in range(4): a(f"v_min_u32 v{16+k}, -2, v{16+k}")
    a("buffer_store_dwordx4 v[16:19], v12, s[48:51], s6 offen sc1")
    stamp(13)
    a("s_branch L_Wend")
    a("L_pubf:")
    a("v_lshlrev_b32 v12, 3, v0")
    for w in range(4):
        a(f"ds_read_b64 v[{16+2*w}:{17+2*w}], v12 offset:{RF+512*w}")
    fp_off(6)
    colofs64(12, 13)
    a("s_waitcnt lgkmcnt(0)")
    for k in range(2): a(f"v_add_f32 v{16+k}, v{16+k}, v{18+k}")
    for k in range(2): a(f"v_add_f32 v{20+k}, v{20+k}, v{22+k}")
    for k in range(2): a(f"v_add_f32 v{16+k}, v{16+k}, v{20+k}")
    for k in range(2): a(f"v_min_u32 v{16+k}, -2, v{16+k}")
    a("s_mov_b32 exec_lo, 0x00ff00ff")
    a("s_mov_b32 exec_hi, 0x00ff00ff")
    a("buffer_store_dwordx2 v[16:17], v12, s[48:51], s6 offen sc1")
    stamp(13)
    a("s_branch L_Wend")
    a("L_final:")
    a("s_and_b32 s4, s2, 7")
    a("s_lshr_b32 s5, s2, 6")
    a("s_lshl_b32 s5, s5, 3")
    a("s_or_b32 s4, s4, s5")
    a("s_lshl_b32 s4, s4, 5")
    a("s_lshr_b32 s5, s2, 3")
    a("s_and_b32 s5, s5, 7")
    a("s_lshl_b32 s5, s5, 2")
    a("s_add_u32 s4, s4, s5")
    a("s_lshl_b32 s5, s4, 2")
    a(f"s_add_u32 s6, s5, {SP}")
    a(f"s_add_u32 s7, s5, {FP}")
    a("s_lshl_b32 s12, s4, 1")
    srd(52, 16, 2048)
    srd(56, 34, 2048)
    a("v_lshlrev_b32 v8, 12, v0")
    a("v_lshlrev_b32 v9, 2, v4")
    a("v_lshl_add_u32 v9, v5, 12, v9")
    a("v_lshlrev_b32 v10, 1, v4")
    a("buffer_load_ushort v24, v10, s[52:55], s12 offen")
    L = a.label("L_s"); D = a.label("L_sd")
    a(f"s_mov_b32 s60, {spin_limit}")
    a(f"{L}:")
    a("buffer_load_dwordx4 v[16:19], v8, s[48:51], s6 offen sc1")
    a("buffer_load_dword v20, v9, s[48:51], s7 offen sc1")
    a("s_waitcnt vmcnt(0)")
    sentinel_check(range(16, 21), 12)
    retry(L, D, 1)
    stamp(13)
    a("v_permlane32_swap_b32 v16, v18")
    a("v_permlane32_swap_b32 v17, v19")
    a("v_add_f32 v16, v16, v18")
    a("v_add_f32 v17, v17, v19")
    a("v_permlane16_swap_b32 v16, v17")
    a("v_add_f32 v16, v16, v17")
    row_allreduce("v_add_f32", [20, 16])
    bf16r(20, 20)
    bf16r(16, 16)
    silu_bf16(20, 20, 12)
    a("v_mul_f32 v16, v16, v20")
    bf16r(16, 16)
    a("v_lshlrev_b32 v24, 16, v24")
    a("v_add_f32 v16, v16, v24")
    a("v_cvt_pk_bf16_f32 v16, v16, v16")
    a("s_mov_b32 exec_lo, 0x00010001")
    a("s_mov_b32 exec_hi, 0x00010001")
    a("buffer_store_short v16, v10, s[56:59], s12 offen")
    stamp(14)
    a("L_Wend:")
    dump_stamps(12, 13)
    a("s_endpgm")

    a("L_A:")
    KB = [128, 160]; VB = [192, 224]
    AC = 96
    Q = 16
    SC = 24
    S = 40
    P = 48
    TP = 52
    M2, LS, AL, NM = 60, 61, 62, 63
    a("s_sub_u32 s15, s3, 4")
    a("v_bfe_u32 v7, v0, 1, 1")
    a("v_lshlrev_b32 v7, 10, v7")
    a("v_bfe_u32 v8, v0, 2, 2")
    a("v_lshl_add_u32 v7, v8, 8, v7")
    a("v_and_b32 v8, 1, v0")
    a("v_lshl_add_u32 v7, v8, 4, v7")
    a("v_lshl_add_u32 v7, v4, 5, v7")
    a("s_lshl_b32 s4, s2, 17")
    a("s_lshl_b32 s5, s15, 13")
    a("s_add_u32 s4, s4, s5")
    a("s_mov_b32 s10, 0x05040100")
    a("s_mov_b32 s11, 0x07060302")
    a(f"s_mov_b32 s12, {LOG2E}")
    a("s_waitcnt lgkmcnt(0)")
    srd(40, 18, 33554432)
    srd(44, 20, 33554432)
    srd(48, 38, 268435456)
    a("s_barrier")
    def issue_k(t):
        kb = KB[t & 1]
        a(f"s_add_u32 s5, s4, {t*32768}")
        a(f"s_add_u32 s6, s4, {t*32768+4096}")
        for g in range(4):
            for hf in range(2):
                d = kb + (g * 2 + hf) * 4
                a(f"buffer_load_dwordx4 v[{d}:{d+3}], v7, s[40:43], s{5+(g>>1)} offen offset:{(g&1)*2048+hf*128}{NT}")
    def issue_v(t):
        vb = VB[t & 1]
        a(f"s_add_u32 s5, s4, {t*32768}")
        a(f"s_add_u32 s6, s4, {t*32768+4096}")
        for j in range(8):
            d = vb + 4 * j
            a(f"buffer_load_dwordx4 v[{d}:{d+3}], v6, s[44:47], s{5+(j>>2)} offen offset:{(j&3)*1024}{NT}")
    issue_k(0); issue_v(0); issue_k(1); issue_v(1)
    stamp(1)
    lds_spin(L_Q, 1, 12, 2)
    stamp(2)
    a(f"ds_read_b128 v[{Q}:{Q+3}], v6 offset:{QF}")
    a(f"ds_read_b128 v[{Q+4}:{Q+7}], v6 offset:{QF+1024}")
    a("s_waitcnt lgkmcnt(0)")
    def qk(t, cnt):
        kb = KB[t & 1]
        a(f"s_waitcnt vmcnt({cnt})")
        for hf in range(2):
            for g in range(4):
                d = kb + (g * 2 + hf) * 4
                c = "0" if hf == 0 else f"v[{SC+4*g}:{SC+4*g+3}]"
                a(f"v_mfma_f32_16x16x32_bf16 v[{SC+4*g}:{SC+4*g+3}], v[{d}:{d+3}], v[{Q+4*hf}:{Q+4*hf+3}], {c}")
    def softmax(t):
        for j in range(8):
            a(f"v_add_f32_dpp v{S+j}, v{SC+2*j+1}, v{SC+2*j} row_ror:8 {DPP}")
        for m in range(4): a(f"v_cvt_pk_bf16_f32 v{P+m}, v{S+2*m}, v{S+2*m+1}")
        for m in range(4):
            a(f"v_lshlrev_b32 v{S+2*m}, 16, v{P+m}")
            a(f"v_and_b32 v{S+2*m+1}, 0xffff0000, v{P+m}")
        for j in range(8): a(f"v_mul_f32 v{S+j}, {SCALE}, v{S+j}")
        for m in range(4): a(f"v_cvt_pk_bf16_f32 v{P+m}, v{S+2*m}, v{S+2*m+1}")
        for m in range(4):
            a(f"v_lshlrev_b32 v{S+2*m}, 16, v{P+m}")
            a(f"v_and_b32 v{S+2*m+1}, 0xffff0000, v{P+m}")
        a(f"v_max3_f32 v12, v{S}, v{S+1}, v{S+2}")
        a(f"v_max3_f32 v13, v{S+3}, v{S+4}, v{S+5}")
        a(f"v_max3_f32 v12, v12, v{S+6}, v{S+7}")
        a("v_max_f32 v12, v12, v13")
        cross_allreduce("v_max_f32", 12, 13)
        a("v_mul_f32 v12, s12, v12")
        if t == 0:
            a(f"v_mov_b32 v{M2}, v12")
        else:
            a(f"v_max_f32 v12, v12, v{M2}")
            a(f"v_sub_f32 v{AL}, v{M2}, v12")
            a(f"v_mov_b32 v{M2}, v12")
            a(f"v_exp_f32 v{AL}, v{AL}")
        for j in range(8): a(f"v_fma_f32 v{S+j}, v{S+j}, s12, -v{M2}")
        for j in range(8): a(f"v_exp_f32 v{S+j}, v{S+j}")
        for m in range(4): a(f"v_cvt_pk_bf16_f32 v{P+m}, v{S+2*m}, v{S+2*m+1}")
        a(f"v_add_f32 v12, v{S}, v{S+1}")
        a(f"v_add_f32 v13, v{S+2}, v{S+3}")
        a(f"v_add_f32 v14, v{S+4}, v{S+5}")
        a(f"v_add_f32 v15, v{S+6}, v{S+7}")
        a("v_add_f32 v12, v12, v13")
        a("v_add_f32 v14, v14, v15")
        if t == 0:
            a(f"v_add_f32 v{LS}, v12, v14")
        else:
            a("v_add_f32 v12, v12, v14")
            a(f"v_fma_f32 v{LS}, v{LS}, v{AL}, v12")
            for i in range(32): a(f"v_mul_f32 v{AC+i}, v{AL}, v{AC+i}")
    def pv(t, cnt):
        vb = VB[t & 1]
        a(f"s_waitcnt vmcnt({cnt})")
        for e in range(8):
            tp = TP + 4 * (e & 1)
            for m in range(4):
                a(f"v_perm_b32 v{tp+m}, v{vb+4*(2*m+1)+(e>>1)}, v{vb+4*(2*m)+(e>>1)}, s{10+(e&1)}")
            c = "0" if t == 0 else f"v[{AC+4*e}:{AC+4*e+3}]"
            a(f"v_mfma_f32_16x16x32_bf16 v[{AC+4*e}:{AC+4*e+3}], v[{tp}:{tp+3}], v[{P}:{P+3}], {c}")
    def pv_last(t):
        vb = VB[t & 1]; tb = VB[(t + 1) & 1]
        for m in range(3):
            a(f"s_waitcnt vmcnt({6-2*m})")
            for e in range(8):
                a(f"v_perm_b32 v{tb+4*e+m}, v{vb+4*(2*m+1)+(e>>1)}, v{vb+4*(2*m)+(e>>1)}, s{10+(e&1)}")
        a("s_waitcnt vmcnt(0)")
        stamp(10)
        m = 3
        for e in range(8):
            a(f"v_perm_b32 v{tb+4*e+m}, v{vb+4*(2*m+1)+(e>>1)}, v{vb+4*(2*m)+(e>>1)}, s{10+(e&1)}")
        for e in range(8):
            a(f"v_mfma_f32_16x16x32_bf16 v[{AC+4*e}:{AC+4*e+3}], v[{tb+4*e}:{tb+4*e+3}], v[{P}:{P+3}], v[{AC+4*e}:{AC+4*e+3}]")
    qk(0, 24); issue_k(2); softmax(0); stamp(3); pv(0, 24); issue_v(2); stamp(4)
    qk(1, 24); issue_k(3); softmax(1); pv(1, 24); issue_v(3)
    lds_inc(L_AISS, 12)
    stamp(5)
    qk(2, 24); softmax(2); pv(2, 16)
    stamp(6)
    qk(3, 8); softmax(3)
    stamp(7)
    a("s_setprio 3")
    cross_allreduce("v_add_f32", LS, 13)
    a("s_mul_i32 s5, s15, 4224")
    a("v_mul_u32_u24 v8, 528, v5")
    a("v_lshl_add_u32 v8, v4, 7, v8")
    a("v_add_u32 v8, s5, v8")
    a("s_lshl_b32 s5, s15, 2")
    a("v_lshlrev_b32 v9, 5, v5")
    a("v_add_u32 v9, s5, v9")
    a("s_mov_b64 exec, 0xff")
    a(f"ds_write_b32 v9, v{M2} offset:{ML}")
    a(f"ds_write_b32 v9, v{LS} offset:{ML+16}")
    a("s_mov_b64 exec, -1")
    a("v_lshrrev_b32 v10, 5, v0")
    a("s_lshl_b32 s5, s15, 1")
    a("v_add_u32 v10, s5, v10")
    a("v_and_b32 v11, 31, v0")
    a("v_lshlrev_b32 v11, 4, v11")
    a("v_mul_u32_u24 v12, 528, v10")
    a("v_add_u32 v11, v11, v12")
    a("v_lshlrev_b32 v14, 9, v10")
    a("v_lshlrev_b32 v10, 5, v10")
    st_off(7)
    a("s_lshl_b32 s4, s2, 12")
    a("s_lshl_b32 s5, s15, 10")
    a("s_add_u32 s4, s4, s5")
    a(f"s_add_u32 s6, s4, {OP}")
    pv_last(3)
    a("s_mov_b32 exec_lo, 0x00ff00ff")
    a("s_mov_b32 exec_hi, 0x00ff00ff")
    for e in range(8):
        a(f"ds_write_b128 v8, v[{AC+4*e}:{AC+4*e+3}] offset:{OB+16*e}")
    a("s_waitcnt lgkmcnt(0)")
    lds_inc(L_ADONE, 12)
    stamp(11)
    lds_spin(L_ADONE, 4, 12, 0)
    stamp(12)
    a(f"ds_read_b128 v[16:19], v10 offset:{ML}")
    a(f"ds_read_b128 v[20:23], v10 offset:{ML+16}")
    for w in range(4):
        a(f"ds_read_b128 v[{24+4*w}:{27+4*w}], v11 offset:{OB+4224*w}")
    a("s_waitcnt lgkmcnt(0)")
    a("v_max3_f32 v40, v16, v17, v18")
    a("v_max_f32 v40, v40, v19")
    for w in range(4): a(f"v_sub_f32 v{16+w}, v{16+w}, v40")
    for w in range(4): a(f"v_exp_f32 v{16+w}, v{16+w}")
    for k in range(4): a(f"v_mul_f32 v{44+k}, v16, v{24+k}")
    a("v_mul_f32 v41, v16, v20")
    for w in range(1, 4):
        for k in range(4): a(f"v_fmac_f32 v{44+k}, v{16+w}, v{24+4*w+k}")
        a(f"v_fmac_f32 v41, v{16+w}, v{20+w}")
    for k in range(4): a(f"v_min_u32 v{44+k}, -2, v{44+k}")
    a("buffer_store_dwordx4 v[44:47], v6, s[48:51], s6 offen sc1")
    a("v_min_u32 v40, -2, v40")
    a("v_min_u32 v41, -2, v41")
    a("s_mov_b32 exec_lo, 1")
    a("s_mov_b32 exec_hi, 1")
    a("buffer_store_dwordx2 v[40:41], v14, s[48:51], s7 offen sc1")
    stamp(13)
    if stamps:
        a("s_waitcnt vmcnt(0)")
        stamp(14)
    dump_stamps(12, 13)
    a("L_end:")
    a("s_endpgm")
    name = NAME + "_kernel"
    hdr = open("cdna_kernels/" + NAME + ".s.ref").read().split("; Override launch")[0]
    txt = hdr + header([f"@launch grid=(256,1,1) block=(512,1,1) lds={LDS_BYTES}"]) + kernel_begin(name) + a.text() + rodata() + \
        kernel_desc(name, 256, 102, extra="  .amdhsa_float_denorm_mode_32 3\n")
    return txt

if __name__ == "__main__":
    open("k1_nt.s", "w").write(gen(nt="nt"))
    open("k1_pl.s", "w").write(gen(nt=""))
    open("k1_nt_st.s", "w").write(gen(nt="nt", stamps=True))
    open("k1_pl_st.s", "w").write(gen(nt="", stamps=True))
```

```python
import sys
from asmlib import *

QP, GP, ST, SP, FP, OP, STAMP = 0, 0x10000, 0x30000, 0x40000, 0x80000, 0x100000, 0x400000
L_TAGOK, L_XN, L_Q, L_AISS, L_ADONE, L_TAG, L_QPUB = 0, 4, 8, 12, 16, 20, 24
EPOCH = 0x3F000
TG = 248
XN, QF, ML, OB, RS, RF = 0x100, 0x1100, 0x1900, 0x2000, 0x6400, 0x7400
LDS_BYTES = 0x7C00
LOG2E = 0x3fb8aa3b
SCALE = 0x3db504f3
DPP = "row_mask:0xf bank_mask:0xf"

def gen(nt="nt", stamps=False, spin_limit=400000):
    a = Asm()
    NT = " " + nt if nt else ""
    nstamp = [0]
    def stamp(k):
        if stamps: a(f"s_memrealtime s[{64+2*k}:{65+2*k}]")
    def dump_stamps(vt, va):
        if not stamps: return
        a("s_waitcnt lgkmcnt(0)")
        a("s_mov_b64 exec, -1")
        a(f"v_mov_b32 v{vt}, 0")
        for k in range(16):
            a(f"v_writelane_b32 v{vt}, s{64+2*k}, {k}")
        a("s_lshl_b32 s4, s2, 3")
        a("s_add_u32 s4, s4, s3")
        a("s_lshl_b32 s4, s4, 6")
        a(f"s_add_u32 s4, s4, {STAMP}")
        a(f"v_lshlrev_b32 v{va}, 2, v0")
        a("s_mov_b64 exec, 0xffff")
        a(f"buffer_store_dword v{vt}, v{va}, s[48:51], s4 offen")
    def srd(d, p, n):
        a(f"s_mov_b32 s{d}, s{p}")
        a(f"s_mov_b32 s{d+1}, s{p+1}")
        a(f"s_mov_b32 s{d+2}, {n}")
        a(f"s_mov_b32 s{d+3}, 0x20000")
    def lds_spin(off, n, vt, sleep=1):
        L = a.label("L_spin"); D = a.label("L_spun")
        a(f"s_mov_b32 s60, {spin_limit}")
        a(f"{L}:")
        a(f"ds_read_b32 v{vt}, v1 offset:{off}")
        a("s_waitcnt lgkmcnt(0)")
        a(f"v_readfirstlane_b32 s61, v{vt}")
        a(f"s_cmp_ge_u32 s61, {n}")
        a(f"s_cbranch_scc1 {D}")
        if sleep: a(f"s_sleep {sleep}")
        a("s_sub_u32 s60, s60, 1")
        a(f"s_cbranch_scc0 {L}")
        a(f"{D}:")
    def lds_inc(off, vt):
        a(f"v_mov_b32 v{vt}, 1")
        a("s_mov_b64 exec, 1")
        a(f"ds_add_u32 v1, v{vt} offset:{off}")
        a("s_mov_b64 exec, -1")
    def row_allreduce(op, regs):
        for k in (1, 2, 4, 8):
            for r in regs:
                a(f"{op}_dpp v{r}, v{r}, v{r} row_ror:{k} {DPP}")
    def cross_allreduce(op, r, t):
        a(f"v_mov_b32 v{t}, v{r}")
        a(f"v_permlane16_swap_b32 v{r}, v{t}")
        a(f"{op} v{r}, v{r}, v{t}")
        a(f"v_mov_b32 v{t}, v{r}")
        a(f"v_permlane32_swap_b32 v{r}, v{t}")
        a(f"{op} v{r}, v{r}, v{t}")
    def bf16r(d, s):
        a(f"v_cvt_pk_bf16_f32 v{d}, v{s}, v{s}")
        a(f"v_and_b32 v{d}, 0xffff0000, v{d}")
    def load_tag(tg):
        a(f"ds_read_b32 v{tg}, v1 offset:{L_TAG}")
        a("s_movk_i32 s63, 0xff")
        a("s_waitcnt lgkmcnt(0)")
        for k in range(1, 4): a(f"v_lshrrev_b32 v{tg+k}, {8*k}, v{tg}")
    def apply_tag(r, tg):
        for k in range(4): a(f"v_bfi_b32 v{r+k}, s63, v{tg+k}, v{r+k}")
    def tag_check(grans, t, tg, full=()):
        first = True
        for g in grans:
            for k in range(4):
                if first: a(f"v_xor_b32 v{t}, v{g+k}, v{tg+k}")
                else: a(f"v_bitop3_b32 v{t}, v{t}, v{g+k}, v{tg+k} bitop3:0xf6")
                first = False
        a(f"v_and_b32 v{t}, 0xff, v{t}")
        for r in full: a(f"v_bitop3_b32 v{t}, v{t}, v{r}, v{tg} bitop3:0xf6")
        a(f"v_cmp_ne_u32 vcc, 0, v{t}")
    def treduce4(r):
        a(f"v_permlane32_swap_b32 v{r}, v{r+2}")
        a(f"v_permlane32_swap_b32 v{r+1}, v{r+3}")
        a(f"v_add_f32 v{r}, v{r}, v{r+2}")
        a(f"v_add_f32 v{r+1}, v{r+1}, v{r+3}")
        a(f"v_permlane16_swap_b32 v{r}, v{r+1}")
        a(f"v_add_f32 v{r}, v{r}, v{r+1}")
    def retry(L, D, sleep=1):
        a(f"s_cbranch_vccz {D}")
        if sleep: a(f"s_sleep {sleep}")
        a("s_sub_u32 s60, s60, 1")
        a(f"s_cbranch_scc0 {L}")
        a(f"{D}:")
    def silu_bf16(d, x, t):
        a(f"v_mul_f32 v{t}, 0xbfb8aa3b, v{x}")
        a(f"v_exp_f32 v{t}, v{t}")
        a(f"v_add_f32 v{t}, 1.0, v{t}")
        a(f"v_rcp_f32 v{t}, v{t}")
        a(f"v_mul_f32 v{t}, v{t}, v{x}")
        bf16r(d, t)

    a("s_cmp_ge_u32 s2, 256")
    a("s_cbranch_scc1 L_end")
    a("s_load_dwordx16 s[16:31], s[0:1], 0")
    a("s_load_dwordx8 s[32:39], s[0:1], 64")
    if stamps:
        for k in range(1, 16): a(f"s_mov_b32 s{64+2*k}, 0")
    stamp(0)
    a("v_lshrrev_b32 v1, 6, v0")
    a("v_and_b32 v0, 63, v0")
    a("v_readfirstlane_b32 s3, v1")
    a("v_mov_b32 v1, 0")
    a("v_lshrrev_b32 v2, 3, v0")
    a("v_and_b32 v3, 7, v0")
    a("v_lshrrev_b32 v4, 4, v0")
    a("v_and_b32 v5, 15, v0")
    a("v_lshlrev_b32 v6, 4, v0")
    a("s_cmp_ge_u32 s3, 4")
    a("s_cbranch_scc1 L_A")
    a("s_setprio 2")
    a("s_cmp_eq_u32 s3, 3")
    a("s_cbranch_scc1 L_W3")

    WB = 128
    XS = 16
    SL, SH = 32, 36
    T0 = 40
    ACC = 48
    a("s_and_b32 s4, s2, 3")
    a("s_lshr_b32 s5, s2, 2")
    a("s_lshl_b32 s6, s5, 7")
    a("s_movk_i32 s7, 7168")
    a("s_cmp_eq_u32 s3, 0")
    a("s_cselect_b32 s7, 8192, s7")
    a("s_lshl_b32 s8, s4, 8")
    a("s_mul_i32 s8, s8, s7")
    a("s_add_u32 s8, s8, s6")
    a("s_lshl_b32 s9, s7, 5")
    a("v_mul_lo_u32 v7, v2, s9")
    a("v_lshl_add_u32 v7, v3, 4, v7")
    a("s_waitcnt lgkmcnt(0)")
    srd(48, 38, 268435456)
    a("s_cmp_eq_u32 s3, 0")
    a("s_cbranch_scc0 L_W12")
    srd(52, 16, 2048)
    srd(40, 22, 8388608)
    a("v_lshlrev_b32 v8, 5, v0")
    a("v_lshlrev_b32 v9, 3, v0")
    a("s_lshl_b32 s10, s4, 9")
    a("buffer_load_dwordx4 v[56:59], v8, s[52:55], 0 offen")
    a("buffer_load_dwordx4 v[60:63], v8, s[52:55], 0 offen offset:16")
    a("buffer_load_dwordx2 v[64:65], v9, s[52:55], s10 offen")
    def issue_block():
        for i in range(32):
            a(f"buffer_load_dwordx4 v[{WB+4*i}:{WB+4*i+3}], v7, s[40:43], s8 offen{NT}")
            if i < 31: a("s_add_u32 s8, s8, s7")
    issue_block()
    a("s_barrier")
    stamp(1)
    a("s_waitcnt vmcnt(32)")
    stamp(2)
    for i in range(8):
        a(f"v_lshlrev_b32 v{72+2*i}, 16, v{56+i}")
        a(f"v_and_b32 v{73+2*i}, 0xffff0000, v{56+i}")
    a("v_add_f32 v10, v72, v73")
    a("v_add_f32 v11, v74, v75")
    for i in range(2, 8):
        a(f"v_add_f32 v10, v10, v{72+2*i}")
        a(f"v_add_f32 v11, v11, v{73+2*i}")
    a("v_add_f32 v10, v10, v11")
    row_allreduce("v_add_f32", [10])
    cross_allreduce("v_add_f32", 10, 11)
    a("v_mul_f32 v10, 0x3a800000, v10")
    for i in range(16):
        a(f"v_sub_f32 v{72+i}, v{72+i}, v10")
    a("v_mul_f32 v11, v72, v72")
    a("v_mul_f32 v12, v73, v73")
    for i in range(1, 8):
        a(f"v_fmac_f32 v11, v{72+2*i}, v{72+2*i}")
        a(f"v_fmac_f32 v12, v{73+2*i}, v{73+2*i}")
    a("v_add_f32 v11, v11, v12")
    row_allreduce("v_add_f32", [11])
    cross_allreduce("v_add_f32", 11, 12)
    a("v_mul_f32 v11, 0x3a800000, v11")
    bf16r(10, 10)
    bf16r(11, 11)
    a("v_add_f32 v11, 0x3727c5ac, v11")
    bf16r(11, 11)
    a("v_sqrt_f32 v11, v11")
    bf16r(11, 11)
    a("v_rcp_f32 v11, v11")
    for i in range(2):
        a(f"v_lshlrev_b32 v12, 16, v{64+i}")
        a(f"v_and_b32 v13, 0xffff0000, v{64+i}")
        a("v_sub_f32 v12, v12, v10")
        a("v_sub_f32 v13, v13, v10")
        a("v_cvt_pk_bf16_f32 v13, v12, v13")
        a("v_lshlrev_b32 v12, 16, v13")
        a("v_and_b32 v13, 0xffff0000, v13")
        a("v_mul_f32 v12, v12, v11")
        a("v_mul_f32 v13, v13, v11")
        a(f"v_cvt_pk_bf16_f32 v{64+i}, v12, v13")
    a(f"ds_write_b64 v9, v[64:65] offset:{XN}")
    a("s_waitcnt lgkmcnt(0)")
    lds_inc(L_XN, 12)
    a("s_branch L_gemv32")
    a("L_W12:")
    a("s_cmp_eq_u32 s3, 1")
    a("s_cselect_b32 s40, s28, s30")
    a("s_cselect_b32 s41, s29, s31")
    a("s_mov_b32 s42, 7340032")
    a("s_mov_b32 s43, 0x20000")
    a("s_barrier")
    a("s_cmp_ge_u32 s2, 224")
    a("s_cbranch_scc1 L_Wsel")
    issue_block()
    stamp(1)
    lds_spin(L_XN, 1, 12)
    a("L_gemv32:")
    a("v_lshlrev_b32 v12, 6, v2")
    for i in range(4):
        a(f"ds_read_b128 v[{XS+4*i}:{XS+4*i+3}], v12 offset:{XN+16*i}")
    def build_sel():
        a("v_and_b32 v12, 1, v0")
        a("v_cmp_eq_u32 vcc, 1, v12")
        a("v_mov_b32 v12, 0x0c0c0100")
        a("v_mov_b32 v13, 0x01000c0c")
        a("v_cndmask_b32 v12, v12, v13, vcc")
        a("v_mov_b32 v13, 0x0c0c0302")
        a("v_mov_b32 v14, 0x03020c0c")
        a("v_cndmask_b32 v13, v13, v14, vcc")
        a("v_lshrrev_b32 v14, 1, v3")
        a("v_mov_b32 v15, 0x0c0c0c0c")
        for j in range(4):
            a(f"v_cmp_eq_u32 vcc, {j}, v14")
            a(f"v_cndmask_b32 v{SL+j}, v15, v12, vcc")
            a(f"v_cndmask_b32 v{SH+j}, v15, v13, vcc")
    build_sel()
    lds_spin(L_TAGOK, 1, 13)
    load_tag(52)
    stamp(3)
    for i in range(32):
        t = T0 + 4 * (i & 1); s = SH if i & 1 else SL
        for j in range(4):
            a(f"v_perm_b32 v{t+j}, v{XS+(i>>1)}, v{XS+(i>>1)}, v{s+j}")
        a(f"s_waitcnt vmcnt({31-i})")
        c = "0" if i == 0 else f"v[{ACC}:{ACC+3}]"
        a(f"v_mfma_f32_16x16x32_bf16 v[{ACC}:{ACC+3}], v[{t}:{t+3}], v[{WB+4*i}:{WB+4*i+3}], {c}")
    stamp(4)
    def vreduce(acc):
        a(f"v_permlane32_swap_b32 v{acc}, v{acc+2}")
        a(f"v_permlane32_swap_b32 v{acc+1}, v{acc+3}")
        a(f"v_add_f32_dpp v{acc}, v{acc+2}, v{acc} row_ror:8 {DPP}")
        a(f"v_add_f32_dpp v{acc+1}, v{acc+3}, v{acc+1} row_ror:8 {DPP}")
    def colofs64(d, t):
        a(f"v_and_b32 v{t}, 1, v4")
        a(f"v_lshlrev_b32 v{t}, 4, v{t}")
        a(f"v_lshl_add_u32 v{d}, v3, 5, v{t}")
        a(f"v_lshrrev_b32 v{t}, 5, v0")
        a(f"v_lshl_add_u32 v{d}, v{t}, 3, v{d}")
    a("v_lshlrev_b32 v12, 5, v3")
    a("v_lshl_add_u32 v12, v4, 4, v12")
    a("s_lshl_b32 s8, s3, 16")
    a("s_lshl_b32 s9, s4, 14")
    a("s_add_u32 s8, s8, s9")
    a("s_lshl_b32 s9, s5, 8")
    a("s_add_u32 s8, s8, s9")
    vreduce(ACC)
    a(f"v_mov_b32 v{ACC+2}, v{ACC}")
    a(f"v_mov_b32 v{ACC+3}, v{ACC+1}")
    a(f"v_permlane32_swap_b32 v{ACC}, v{ACC+2}")
    a(f"v_permlane32_swap_b32 v{ACC+1}, v{ACC+3}")
    apply_tag(ACC, 52)
    a("s_mov_b64 exec, 0x00ff00ff")
    a(f"buffer_store_dwordx4 v[{ACC}:{ACC+3}], v12, s[48:51], s8 offen sc1")
    a("s_mov_b64 exec, -1")
    stamp(5)
    a("s_cmp_eq_u32 s3, 0")
    a("s_cbranch_scc0 L_Wmid")
    lds_inc(L_QPUB, 12)
    a("s_branch L_Wmid")

    a("L_W3:")
    a("v_lshlrev_b32 v7, 2, v0")
    a("ds_write_b32 v7, v1")
    a("s_waitcnt lgkmcnt(0)")
    a(f"s_load_dword s13, s[38:39], {EPOCH}")
    srd(48, 38, 268435456)
    a("s_barrier")
    def rr_cc(srr, scc):
        a(f"s_and_b32 s{srr}, s2, 7")
        a("s_lshr_b32 s62, s2, 5")
        a("s_lshl_b32 s62, s62, 3")
        a(f"s_or_b32 s{srr}, s{srr}, s62")
        a(f"s_lshr_b32 s{scc}, s2, 3")
        a(f"s_and_b32 s{scc}, s{scc}, 3")
    def sp_off(d):
        rr_cc(4, 5)
        a("s_lshl_b32 s4, s4, 12")
        a("s_lshl_b32 s5, s5, 10")
        a("s_add_u32 s4, s4, s5")
        a(f"s_add_u32 s{d}, s4, {SP}")
    def fp_off(d):
        a("s_lshr_b32 s4, s2, 4")
        a("s_lshl_b32 s4, s4, 12")
        a("s_and_b32 s5, s2, 15")
        a("s_lshl_b32 s5, s5, 8")
        a("s_add_u32 s4, s4, s5")
        a(f"s_add_u32 s{d}, s4, {FP}")
    def st_off(d):
        a("s_lshr_b32 s4, s2, 6")
        a("s_lshl_b32 s4, s4, 12")
        a("s_and_b32 s5, s2, 63")
        a("s_lshl_b32 s5, s5, 3")
        a("s_add_u32 s4, s4, s5")
        a(f"s_add_u32 s{d}, s4, {ST}")
    a("s_waitcnt lgkmcnt(0)")
    a("s_add_u32 s13, s13, 0x01010101")
    a("v_mov_b32 v12, s13")
    a(f"ds_write_b32 v1, v12 offset:{L_TAG}")
    a("s_waitcnt lgkmcnt(0)")
    lds_inc(L_TAGOK, 12)
    stamp(1)
    load_tag(52)
    a("v_lshlrev_b32 v8, 9, v3")
    a("v_lshl_add_u32 v8, v2, 5, v8")
    a("s_lshr_b32 s4, s2, 6")
    a("s_lshl_b32 s4, s4, 12")
    a("s_add_u32 s5, s4, 16384")
    a("s_add_u32 s6, s4, 32768")
    a("s_add_u32 s7, s4, 49152")
    lds_spin(L_QPUB, 1, 12, 2)
    stamp(2)
    L = a.label("L_fl"); D = a.label("L_fld")
    a(f"s_mov_b32 s60, {spin_limit}")
    a(f"{L}:")
    for r in range(4):
        for hf in range(2):
            for k in range(2):
                d = 64 + r * 16 + hf * 8 + k * 4
                a(f"buffer_load_dwordx4 v[{d}:{d+3}], v8, s[48:51], s{4+r} offen offset:{hf*256+k*16} sc1")
    a("s_waitcnt vmcnt(0)")
    tag_check(range(64, 128, 4), 12, 52)
    retry(L, D, 2)
    stamp(3)
    if stamps:
        a(f"s_sub_u32 s94, {spin_limit}, s60")
        a("s_add_u32 s94, s94, s64")
    for i in range(16): a(f"v_add_f32 v{64+i}, v{64+i}, v{80+i}")
    for i in range(16): a(f"v_add_f32 v{96+i}, v{96+i}, v{112+i}")
    for i in range(16): a(f"v_add_f32 v{64+i}, v{64+i}, v{96+i}")
    for i in range(8): a(f"v_cvt_pk_bf16_f32 v{16+i}, v{64+2*i}, v{65+2*i}")
    a(f"ds_write_b128 v6, v[16:19] offset:{QF}")
    a(f"ds_write_b128 v6, v[20:23] offset:{QF+1024}")
    a("s_waitcnt lgkmcnt(0)")
    lds_inc(L_Q, 12)
    stamp(4)
    a("L_Wsel:")
    build_sel()

    a("L_Wmid:")
    HS = 64
    WD = 96
    WO = 128
    WP = 160
    CO = 192
    PD = 224
    PS = 240
    lds_spin(L_Q, 1, 12, 4)
    stamp(6)
    a("s_lshr_b32 s4, s2, 4")
    a("s_mul_i32 s4, s4, 224")
    a("s_mul_i32 s5, s3, 56")
    a("s_add_u32 s12, s4, s5")
    a("s_lshl_b32 s4, s12, 2")
    a(f"s_add_u32 s4, s4, {GP}")
    load_tag(52)
    a("v_min_u32 v8, 13, v5")
    a("v_lshlrev_b32 v8, 4, v8")
    a("v_lshl_add_u32 v8, v4, 14, v8")
    a("s_add_u32 s5, s4, 0x10000")
    L = a.label("L_h"); D = a.label("L_hd")
    a(f"s_mov_b32 s60, {spin_limit}")
    a(f"{L}:")
    a("buffer_load_dwordx4 v[16:19], v8, s[48:51], s4 offen sc1")
    a("buffer_load_dwordx4 v[20:23], v8, s[48:51], s5 offen sc1")
    a("s_waitcnt vmcnt(0)")
    tag_check([16, 20], 12, 52)
    retry(L, D, 8)
    stamp(7)
    treduce4(16)
    treduce4(20)
    bf16r(16, 16)
    bf16r(20, 20)
    silu_bf16(16, 16, 12)
    a("v_mul_f32 v16, v16, v20")
    a("v_cvt_pk_bf16_f32 v16, v16, v16")
    a("v_mul_u32_u24 v12, 7, v2")
    for i in range(7):
        a(f"v_add_u32 v13, {i}, v12")
        a("v_and_b32 v14, 3, v13")
        a("v_lshlrev_b32 v14, 6, v14")
        a("v_and_b32 v13, -4, v13")
        a("v_add_u32 v13, v13, v14")
        a(f"ds_bpermute_b32 v{17+i}, v13, v16")
    a("s_waitcnt lgkmcnt(0)")
    for i in range(7):
        for j in range(4):
            a(f"v_perm_b32 v{HS+4*i+j}, v{17+i}, v{17+i}, v{SL+j}")
    srd(40, 32, 7340032)
    srd(44, 24, 8388608)
    a("s_lshl_b32 s12, s12, 11")
    a("s_and_b32 s4, s2, 15")
    a("s_lshl_b32 s4, s4, 7")
    a("s_add_u32 s12, s12, s4")
    a("v_mul_u32_u24 v8, 14336, v2")
    a("v_lshl_add_u32 v8, v3, 4, v8")
    rr_cc(4, 5)
    a("s_lshr_b32 s6, s4, 1")
    a("s_and_b32 s7, s4, 1")
    a("s_lshl_b32 s7, s7, 2")
    a("s_add_u32 s7, s7, s3")
    a("s_lshl_b32 s8, s6, 7")
    a("s_lshr_b32 s9, s7, 1")
    a("s_lshl_b32 s9, s9, 5")
    a("s_add_u32 s8, s8, s9")
    a("s_and_b32 s9, s7, 1")
    a("s_lshl_b32 s9, s9, 2")
    a("s_add_u32 s8, s8, s9")
    a("s_lshl_b32 s8, s8, 11")
    a("s_lshl_b32 s9, s5, 9")
    a("s_add_u32 s13, s8, s9")
    a("v_lshlrev_b32 v9, 4, v5")
    a("v_lshl_add_u32 v9, v4, 11, v9")
    a("s_lshr_b32 s8, s6, 3")
    a("s_lshl_b32 s8, s8, 18")
    a("s_and_b32 s9, s6, 7")
    a("s_lshl_b32 s9, s9, 9")
    a("s_add_u32 s8, s8, s9")
    a("s_lshl_b32 s9, s7, 6")
    a("s_add_u32 s8, s8, s9")
    a(f"s_add_u32 s96, s8, {OP}")
    a("s_add_u32 s97, s96, 4096")
    a("s_add_u32 s98, s96, 8192")
    a("s_add_u32 s99, s96, 12288")
    a("s_lshl_b32 s8, s6, 9")
    a(f"s_add_u32 s14, s8, {ST}")
    a("v_lshlrev_b32 v10, 4, v4")
    a("v_lshl_add_u32 v10, v5, 14, v10")
    a("v_lshlrev_b32 v11, 5, v5")
    a("s_mov_b32 s10, 0x05040100")
    a("s_mov_b32 s11, 0x07060302")
    lds_spin(L_AISS, 4, 12, 4)
    stamp(8)
    for i in range(7):
        a(f"buffer_load_dwordx4 v[{WD+4*i}:{WD+4*i+3}], v8, s[40:43], s12 offen offset:{2048*(i&1)}{NT}")
        if i & 1: a("s_add_u32 s12, s12, 4096")
    for j in range(4):
        for hf in range(2):
            d = WO + (j * 2 + hf) * 4
            a(f"buffer_load_dwordx4 v[{d}:{d+3}], v9, s[44:47], s13 offen offset:{256*hf}{NT}")
        if j < 3: a("s_add_u32 s13, s13, 16384")
    stamp(9)
    for i in range(7):
        a(f"s_waitcnt vmcnt({14-i})")
        c = "0" if i == 0 else f"v[{ACC}:{ACC+3}]"
        a(f"v_mfma_f32_16x16x32_bf16 v[{ACC}:{ACC+3}], v[{HS+4*i}:{HS+4*i+3}], v[{WD+4*i}:{WD+4*i+3}], {c}")
    colofs64(12, 13)
    a("s_lshl_b32 s4, s3, 8")
    a("v_add_u32 v12, s4, v12")
    vreduce(ACC)
    a("s_mov_b32 exec_lo, 0x00ff00ff")
    a("s_mov_b32 exec_hi, 0x00ff00ff")
    a(f"ds_write_b64 v12, v[{ACC}:{ACC+1}] offset:{RF}")
    a("s_mov_b64 exec, -1")
    for jp in range(2):
        a(f"s_waitcnt vmcnt({4-4*jp})")
        for hf in range(2):
            for e in range(8):
                lo = WO + ((2 * jp) * 2 + hf) * 4 + (e >> 1)
                hi = WO + ((2 * jp + 1) * 2 + hf) * 4 + (e >> 1)
                a(f"v_perm_b32 v{WP+4*e+2*hf+jp}, v{hi}, v{lo}, s{10+(e&1)}")
    stamp(10)
    a("v_cmp_gt_u32 s[100:101], 8, v5")
    a("v_and_b32 v12, 1, v4")
    a("v_cmp_eq_u32 s[8:9], 1, v12")
    a("s_lshl_b32 s4, s3, 10")
    a("v_add_u32 v15, s4, v6")
    L = a.label("L_o"); D = a.label("L_od")
    a(f"s_mov_b32 s60, {spin_limit}")
    a(f"{L}:")
    a(f"buffer_load_dwordx4 v[{PS}:{PS+3}], v11, s[48:51], s14 offen sc1")
    a(f"buffer_load_dwordx4 v[{PS+4}:{PS+7}], v11, s[48:51], s14 offen offset:16 sc1")
    for i in range(4):
        a(f"buffer_load_dwordx4 v[{PD+4*i}:{PD+4*i+3}], v10, s[48:51], s{96+i} offen sc1")
    a("s_waitcnt vmcnt(0)")
    tag_check(range(PD, PD + 16, 4), 12, 52, full=[PS+1, PS+3, PS+5, PS+7])
    retry(L, D, 1)
    stamp(11)
    a(f"v_max3_f32 v16, v{PS}, v{PS+2}, v{PS+4}")
    a(f"v_max_f32 v16, v16, v{PS+6}")
    row_allreduce("v_max_f32", [16])
    for i in range(4): a(f"v_sub_f32 v{17+i}, v{PS+2*i}, v16")
    for i in range(4): a(f"v_exp_f32 v{17+i}, v{17+i}")
    for k in range(4): a(f"v_mul_f32 v{25+k}, v17, v{PD+k}")
    a("v_add_f32 v24, v17, v18")
    for i in range(1, 4):
        for k in range(4): a(f"v_fmac_f32 v{25+k}, v{17+i}, v{PD+4*i+k}")
        if i < 3: a(f"v_add_f32 v24, v24, v{18+i}")
    row_allreduce("v_add_f32", [24, 25, 26, 27, 28])
    a("v_rcp_f32 v24, v24")
    for k in range(4): a(f"v_mul_f32 v{25+k}, v24, v{25+k}")
    a("v_cvt_pk_bf16_f32 v25, v25, v26")
    a("v_cvt_pk_bf16_f32 v26, v27, v28")
    a("v_cndmask_b32 v16, 0, v25, s[100:101]")
    a("v_cndmask_b32 v17, 0, v26, s[100:101]")
    a("v_cndmask_b32 v18, v25, 0, s[100:101]")
    a("v_cndmask_b32 v19, v26, 0, s[100:101]")
    for e in (0, 4, 1, 5, 2, 6, 3, 7):
        a(f"v_mfma_f32_16x16x32_bf16 v[{CO+4*e}:{CO+4*e+3}], v[16:19], v[{WP+4*e}:{WP+4*e+3}], 0")
    for r in range(4):
        a(f"v_cndmask_b32 v{20+r}, v{CO+4*r}, v{CO+4*(4+r)}, s[8:9]")
    a(f"ds_write_b128 v15, v[20:23] offset:{RS}")
    a("s_waitcnt lgkmcnt(0)")
    stamp(12)
    a("s_barrier")
    a("s_cmp_eq_u32 s3, 1")
    a("s_cbranch_scc1 L_pubf")
    a("s_cmp_eq_u32 s3, 2")
    a("s_cbranch_scc1 L_final")
    a("s_cmp_eq_u32 s3, 3")
    a("s_cbranch_scc1 L_Wend")
    for w in range(4):
        a(f"ds_read_b128 v[{16+4*w}:{19+4*w}], v6 offset:{RS+1024*w}")
    sp_off(6)
    a("v_lshrrev_b32 v12, 1, v4")
    a("v_lshlrev_b32 v12, 9, v12")
    a("v_lshl_add_u32 v12, v5, 5, v12")
    a("v_and_b32 v13, 1, v4")
    a("v_lshl_add_u32 v12, v13, 4, v12")
    a("s_waitcnt lgkmcnt(0)")
    for k in range(4): a(f"v_add_f32 v{16+k}, v{16+k}, v{20+k}")
    for k in range(4): a(f"v_add_f32 v{24+k}, v{24+k}, v{28+k}")
    for k in range(4): a(f"v_add_f32 v{16+k}, v{16+k}, v{24+k}")
    apply_tag(16, 52)
    a("buffer_store_dwordx4 v[16:19], v12, s[48:51], s6 offen sc1")
    stamp(13)
    a("s_branch L_Wend")
    a("L_pubf:")
    a("s_mov_b64 exec, 0xffff")
    for w in range(4):
        a(f"ds_read_b128 v[{16+4*w}:{19+4*w}], v6 offset:{RF+256*w}")
    fp_off(6)
    a("s_waitcnt lgkmcnt(0)")
    for k in range(4): a(f"v_add_f32 v{16+k}, v{16+k}, v{20+k}")
    for k in range(4): a(f"v_add_f32 v{24+k}, v{24+k}, v{28+k}")
    for k in range(4): a(f"v_add_f32 v{16+k}, v{16+k}, v{24+k}")
    apply_tag(16, 52)
    a("buffer_store_dwordx4 v[16:19], v6, s[48:51], s6 offen sc1")
    stamp(13)
    a("s_branch L_Wend")
    a("L_final:")
    a("s_and_b32 s4, s2, 7")
    a("s_lshr_b32 s5, s2, 6")
    a("s_lshl_b32 s5, s5, 3")
    a("s_or_b32 s4, s4, s5")
    a("s_lshl_b32 s4, s4, 5")
    a("s_lshr_b32 s5, s2, 3")
    a("s_and_b32 s5, s5, 7")
    a("s_lshl_b32 s5, s5, 2")
    a("s_add_u32 s4, s4, s5")
    a("s_lshl_b32 s5, s4, 2")
    a(f"s_add_u32 s6, s5, {SP}")
    a(f"s_add_u32 s7, s5, {FP}")
    a("s_lshl_b32 s12, s4, 1")
    srd(52, 16, 2048)
    srd(56, 34, 2048)
    a("v_lshlrev_b32 v8, 12, v0")
    a("v_lshlrev_b32 v9, 12, v5")
    a("v_lshlrev_b32 v10, 1, v4")
    a("buffer_load_ushort v24, v10, s[52:55], s12 offen")
    a("v_cmp_lt_u32 s[10:11], 31, v0")
    L = a.label("L_s"); D = a.label("L_sd")
    a(f"s_mov_b32 s60, {spin_limit}")
    a(f"{L}:")
    a("buffer_load_dwordx4 v[16:19], v8, s[48:51], s6 offen sc1")
    a("buffer_load_dwordx4 v[20:23], v9, s[48:51], s7 offen sc1")
    a("s_waitcnt vmcnt(0)")
    tag_check([16, 20], 12, 52)
    retry(L, D, 1)
    stamp(13)
    a("v_cndmask_b32 v20, v20, v21, s[8:9]")
    a("v_cndmask_b32 v22, v22, v23, s[8:9]")
    a("v_cndmask_b32 v20, v20, v22, s[10:11]")
    treduce4(16)
    row_allreduce("v_add_f32", [20, 16])
    bf16r(20, 20)
    bf16r(16, 16)
    silu_bf16(20, 20, 12)
    a("v_mul_f32 v16, v16, v20")
    bf16r(16, 16)
    a("v_lshlrev_b32 v24, 16, v24")
    a("v_add_f32 v16, v16, v24")
    a("v_cvt_pk_bf16_f32 v16, v16, v16")
    a("s_mov_b32 exec_lo, 0x00010001")
    a("s_mov_b32 exec_hi, 0x00010001")
    a("buffer_store_short v16, v10, s[56:59], s12 offen")
    stamp(14)
    a("s_cmp_eq_u32 s2, 0")
    a("s_cbranch_scc0 L_Wend")
    a("s_mov_b64 exec, 1")
    a(f"s_mov_b32 s4, {EPOCH}")
    a("buffer_store_dword v52, v1, s[48:51], s4 offen")
    a("L_Wend:")
    dump_stamps(12, 13)
    a("s_endpgm")

    a("L_A:")
    KB = [128, 160]; VB = [192, 224]
    AC = 96
    Q = 16
    SC = 24
    S = 40
    P = 48
    TP = 52
    M2, LS, AL, NM = 60, 61, 62, 63
    a("s_sub_u32 s15, s3, 4")
    if stamps:
        a("s_getreg_b32 s94, hwreg(HW_REG_XCC_ID)")
        a("s_getreg_b32 s95, hwreg(HW_REG_HW_ID)")
        a("s_and_b32 s94, s94, 15")
        a("s_lshl_b32 s94, s94, 16")
        a("s_and_b32 s95, s95, 0xffff")
        a("s_or_b32 s94, s94, s95")
        a("s_or_b32 s94, s94, 0x1000000")
    a("v_bfe_u32 v7, v0, 1, 1")
    a("v_lshlrev_b32 v7, 10, v7")
    a("v_bfe_u32 v8, v0, 2, 2")
    a("v_lshl_add_u32 v7, v8, 8, v7")
    a("v_and_b32 v8, 1, v0")
    a("v_lshl_add_u32 v7, v8, 4, v7")
    a("v_lshl_add_u32 v7, v4, 5, v7")
    a("s_lshl_b32 s4, s2, 17")
    a("s_lshl_b32 s5, s15, 13")
    a("s_add_u32 s4, s4, s5")
    a("s_mov_b32 s10, 0x05040100")
    a("s_mov_b32 s11, 0x07060302")
    a(f"s_mov_b32 s12, {LOG2E}")
    a("s_waitcnt lgkmcnt(0)")
    srd(40, 18, 33554432)
    srd(44, 20, 33554432)
    srd(48, 38, 268435456)
    a("s_barrier")
    def issue_k(t):
        kb = KB[t & 1]
        a(f"s_add_u32 s5, s4, {t*32768}")
        a(f"s_add_u32 s6, s4, {t*32768+4096}")
        for g in range(4):
            for hf in range(2):
                d = kb + (g * 2 + hf) * 4
                a(f"buffer_load_dwordx4 v[{d}:{d+3}], v7, s[40:43], s{5+(g>>1)} offen offset:{(g&1)*2048+hf*128}{NT}")
    def issue_v(t):
        vb = VB[t & 1]
        a(f"s_add_u32 s5, s4, {t*32768}")
        a(f"s_add_u32 s6, s4, {t*32768+4096}")
        for j in range(8):
            d = vb + 4 * j
            a(f"buffer_load_dwordx4 v[{d}:{d+3}], v6, s[44:47], s{5+(j>>2)} offen offset:{(j&3)*1024}{NT}")
    issue_k(0); issue_v(0); issue_k(1); issue_v(1)
    stamp(1)
    lds_spin(L_Q, 1, 12, 2)
    stamp(2)
    a(f"ds_read_b128 v[{Q}:{Q+3}], v6 offset:{QF}")
    a(f"ds_read_b128 v[{Q+4}:{Q+7}], v6 offset:{QF+1024}")
    load_tag(64)
    def qk(t, cnt):
        kb = KB[t & 1]
        a(f"s_waitcnt vmcnt({cnt})")
        for hf in range(2):
            for g in range(4):
                d = kb + (g * 2 + hf) * 4
                c = "0" if hf == 0 else f"v[{SC+4*g}:{SC+4*g+3}]"
                a(f"v_mfma_f32_16x16x32_bf16 v[{SC+4*g}:{SC+4*g+3}], v[{d}:{d+3}], v[{Q+4*hf}:{Q+4*hf+3}], {c}")
    def softmax(t):
        for j in range(8):
            a(f"v_add_f32_dpp v{S+j}, v{SC+2*j+1}, v{SC+2*j} row_ror:8 {DPP}")
        for m in range(4): a(f"v_cvt_pk_bf16_f32 v{P+m}, v{S+2*m}, v{S+2*m+1}")
        for m in range(4):
            a(f"v_lshlrev_b32 v{S+2*m}, 16, v{P+m}")
            a(f"v_and_b32 v{S+2*m+1}, 0xffff0000, v{P+m}")
        for j in range(8): a(f"v_mul_f32 v{S+j}, {SCALE}, v{S+j}")
        for m in range(4): a(f"v_cvt_pk_bf16_f32 v{P+m}, v{S+2*m}, v{S+2*m+1}")
        for m in range(4):
            a(f"v_lshlrev_b32 v{S+2*m}, 16, v{P+m}")
            a(f"v_and_b32 v{S+2*m+1}, 0xffff0000, v{P+m}")
        a(f"v_max3_f32 v12, v{S}, v{S+1}, v{S+2}")
        a(f"v_max3_f32 v13, v{S+3}, v{S+4}, v{S+5}")
        a(f"v_max3_f32 v12, v12, v{S+6}, v{S+7}")
        a("v_max_f32 v12, v12, v13")
        cross_allreduce("v_max_f32", 12, 13)
        a("v_mul_f32 v12, s12, v12")
        if t == 0:
            a(f"v_mov_b32 v{M2}, v12")
        else:
            a(f"v_max_f32 v12, v12, v{M2}")
            a(f"v_sub_f32 v{AL}, v{M2}, v12")
            a(f"v_mov_b32 v{M2}, v12")
            a(f"v_exp_f32 v{AL}, v{AL}")
        for j in range(8): a(f"v_fma_f32 v{S+j}, v{S+j}, s12, -v{M2}")
        for j in range(8): a(f"v_exp_f32 v{S+j}, v{S+j}")
        for m in range(4): a(f"v_cvt_pk_bf16_f32 v{P+m}, v{S+2*m}, v{S+2*m+1}")
        a(f"v_add_f32 v12, v{S}, v{S+1}")
        a(f"v_add_f32 v13, v{S+2}, v{S+3}")
        a(f"v_add_f32 v14, v{S+4}, v{S+5}")
        a(f"v_add_f32 v15, v{S+6}, v{S+7}")
        a("v_add_f32 v12, v12, v13")
        a("v_add_f32 v14, v14, v15")
        if t == 0:
            a(f"v_add_f32 v{LS}, v12, v14")
        else:
            a("v_add_f32 v12, v12, v14")
            a(f"v_fma_f32 v{LS}, v{LS}, v{AL}, v12")
            for i in range(32): a(f"v_mul_f32 v{AC+i}, v{AL}, v{AC+i}")
    def pv(t, cnt):
        vb = VB[t & 1]
        a(f"s_waitcnt vmcnt({cnt})")
        for e in range(8):
            tp = TP + 4 * (e & 1)
            for m in range(4):
                a(f"v_perm_b32 v{tp+m}, v{vb+4*(2*m+1)+(e>>1)}, v{vb+4*(2*m)+(e>>1)}, s{10+(e&1)}")
            c = "0" if t == 0 else f"v[{AC+4*e}:{AC+4*e+3}]"
            a(f"v_mfma_f32_16x16x32_bf16 v[{AC+4*e}:{AC+4*e+3}], v[{tp}:{tp+3}], v[{P}:{P+3}], {c}")
    def pv_last(t):
        vb = VB[t & 1]; tb = VB[(t + 1) & 1]
        for m in range(3):
            a(f"s_waitcnt vmcnt({6-2*m})")
            for e in range(8):
                a(f"v_perm_b32 v{tb+4*e+m}, v{vb+4*(2*m+1)+(e>>1)}, v{vb+4*(2*m)+(e>>1)}, s{10+(e&1)}")
        a("s_waitcnt vmcnt(0)")
        stamp(10)
        m = 3
        for e in range(8):
            a(f"v_perm_b32 v{tb+4*e+m}, v{vb+4*(2*m+1)+(e>>1)}, v{vb+4*(2*m)+(e>>1)}, s{10+(e&1)}")
        for e in range(8):
            a(f"v_mfma_f32_16x16x32_bf16 v[{AC+4*e}:{AC+4*e+3}], v[{tb+4*e}:{tb+4*e+3}], v[{P}:{P+3}], v[{AC+4*e}:{AC+4*e+3}]")
    qk(0, 24); issue_k(2); softmax(0); stamp(3); pv(0, 24); issue_v(2); stamp(4)
    qk(1, 24); issue_k(3); softmax(1); pv(1, 24); issue_v(3)
    lds_inc(L_AISS, 12)
    stamp(5)
    qk(2, 24); softmax(2); pv(2, 16)
    stamp(6)
    qk(3, 8); softmax(3)
    stamp(7)
    a("s_setprio 3")
    cross_allreduce("v_add_f32", LS, 13)
    a("s_mul_i32 s5, s15, 4224")
    a("v_mul_u32_u24 v8, 528, v5")
    a("v_lshl_add_u32 v8, v4, 7, v8")
    a("v_add_u32 v8, s5, v8")
    a("s_lshl_b32 s5, s15, 2")
    a("v_lshlrev_b32 v9, 5, v5")
    a("v_add_u32 v9, s5, v9")
    a("s_mov_b64 exec, 0xff")
    a(f"ds_write_b32 v9, v{M2} offset:{ML}")
    a(f"ds_write_b32 v9, v{LS} offset:{ML+16}")
    a("s_mov_b64 exec, -1")
    a("v_lshrrev_b32 v10, 5, v0")
    a("s_lshl_b32 s5, s15, 1")
    a("v_add_u32 v10, s5, v10")
    a("v_and_b32 v11, 31, v0")
    a("v_lshlrev_b32 v11, 4, v11")
    a("v_mul_u32_u24 v12, 528, v10")
    a("v_add_u32 v11, v11, v12")
    a("v_lshlrev_b32 v14, 9, v10")
    a("v_lshlrev_b32 v10, 5, v10")
    st_off(7)
    a("s_lshl_b32 s4, s2, 12")
    a("s_lshl_b32 s5, s15, 10")
    a("s_add_u32 s4, s4, s5")
    a(f"s_add_u32 s6, s4, {OP}")
    pv_last(3)
    a("s_mov_b32 exec_lo, 0x00ff00ff")
    a("s_mov_b32 exec_hi, 0x00ff00ff")
    for e in range(8):
        a(f"ds_write_b128 v8, v[{AC+4*e}:{AC+4*e+3}] offset:{OB+16*e}")
    a("s_waitcnt lgkmcnt(0)")
    lds_inc(L_ADONE, 12)
    stamp(11)
    lds_spin(L_ADONE, 4, 12, 0)
    stamp(12)
    a(f"ds_read_b128 v[16:19], v10 offset:{ML}")
    a(f"ds_read_b128 v[20:23], v10 offset:{ML+16}")
    for w in range(4):
        a(f"ds_read_b128 v[{24+4*w}:{27+4*w}], v11 offset:{OB+4224*w}")
    a("s_waitcnt lgkmcnt(0)")
    a("v_max3_f32 v40, v16, v17, v18")
    a("v_max_f32 v40, v40, v19")
    for w in range(4): a(f"v_sub_f32 v{16+w}, v{16+w}, v40")
    for w in range(4): a(f"v_exp_f32 v{16+w}, v{16+w}")
    a("v_mul_f32 v41, v16, v20")
    for w in range(1, 4): a(f"v_fmac_f32 v41, v{16+w}, v{20+w}")
    for k in range(4): a(f"v_mul_f32 v{44+k}, v16, v{24+k}")
    a("v_rcp_f32 v42, v41")
    a("v_log_f32 v43, v41")
    for w in range(1, 4):
        for k in range(4): a(f"v_fmac_f32 v{44+k}, v{16+w}, v{24+4*w+k}")
    for k in range(4): a(f"v_mul_f32 v{44+k}, v42, v{44+k}")
    apply_tag(44, 64)
    a("buffer_store_dwordx4 v[44:47], v6, s[48:51], s6 offen sc1")
    a("v_add_f32 v40, v40, v43")
    a("v_mov_b32 v41, v64")
    a("s_mov_b32 exec_lo, 1")
    a("s_mov_b32 exec_hi, 1")
    a("buffer_store_dwordx2 v[40:41], v14, s[48:51], s7 offen sc1")
    stamp(13)
    if stamps:
        a("s_waitcnt vmcnt(0)")
        stamp(14)
    dump_stamps(12, 13)
    a("L_end:")
    a("s_endpgm")
    name = NAME + "_kernel"
    hdr = open("cdna_kernels/" + NAME + ".s.ref").read().split("; Override launch")[0]
    txt = hdr + header([f"@launch grid=(256,1,1) block=(512,1,1) lds={LDS_BYTES}"]) + kernel_begin(name) + a.text() + rodata() + \
        kernel_desc(name, 256, 102, extra="  .amdhsa_float_denorm_mode_32 3\n")
    return txt

if __name__ == "__main__":
    open("k2_nt.s", "w").write(gen(nt="nt"))
    open("k2_pl.s", "w").write(gen(nt=""))
    open("k2_nt_st.s", "w").write(gen(nt="nt", stamps=True))
    open("k2_pl_st.s", "w").write(gen(nt="", stamps=True))
```

```python
import sys
from asmlib import *

QP, GP, ST, SP, FP, OP, STAMP = 0, 0x10000, 0x30000, 0x40000, 0x80000, 0x100000, 0x400000
L_TAGOK, L_XN, L_Q, L_AISS, L_ADONE, L_TAG, L_QPUB = 0, 4, 8, 12, 16, 20, 24
EPOCH = 0x3F000
TG = 248
XN, QF, ML, OB, RS, RF = 0x100, 0x1100, 0x1900, 0x2000, 0x6400, 0x7400
LDS_BYTES = 0x7C00
LOG2E = 0x3fb8aa3b
SCALE = 0x3db504f3
DPP = "row_mask:0xf bank_mask:0xf"

def gen(nt="nt", stamps=False, spin_limit=400000, pad=0):
    a = Asm()
    NT = " " + nt if nt else ""
    nstamp = [0]
    def stamp(k):
        if stamps: a(f"s_memrealtime s[{64+2*k}:{65+2*k}]")
    def dump_stamps(vt, va):
        if not stamps: return
        a("s_waitcnt lgkmcnt(0)")
        a("s_mov_b64 exec, -1")
        a(f"v_mov_b32 v{vt}, 0")
        for k in range(16):
            a(f"v_writelane_b32 v{vt}, s{64+2*k}, {k}")
        a("s_lshl_b32 s4, s2, 3")
        a("s_add_u32 s4, s4, s3")
        a("s_lshl_b32 s4, s4, 6")
        a(f"s_add_u32 s4, s4, {STAMP}")
        a(f"v_lshlrev_b32 v{va}, 2, v0")
        a("s_mov_b64 exec, 0xffff")
        a(f"buffer_store_dword v{vt}, v{va}, s[48:51], s4 offen")
    def srd(d, p, n):
        a(f"s_mov_b32 s{d}, s{p}")
        a(f"s_mov_b32 s{d+1}, s{p+1}")
        a(f"s_mov_b32 s{d+2}, {n}")
        a(f"s_mov_b32 s{d+3}, 0x20000")
    def lds_spin(off, n, vt, sleep=1):
        L = a.label("L_spin"); D = a.label("L_spun")
        a(f"s_mov_b32 s60, {spin_limit}")
        a(f"{L}:")
        a(f"ds_read_b32 v{vt}, v1 offset:{off}")
        a("s_waitcnt lgkmcnt(0)")
        a(f"v_readfirstlane_b32 s61, v{vt}")
        a(f"s_cmp_ge_u32 s61, {n}")
        a(f"s_cbranch_scc1 {D}")
        if sleep: a(f"s_sleep {sleep}")
        a("s_sub_u32 s60, s60, 1")
        a(f"s_cbranch_scc0 {L}")
        a(f"{D}:")
    def lds_inc(off, vt):
        a(f"v_mov_b32 v{vt}, 1")
        a("s_mov_b64 exec, 1")
        a(f"ds_add_u32 v1, v{vt} offset:{off}")
        a("s_mov_b64 exec, -1")
    def row_allreduce(op, regs):
        for k in (1, 2, 4, 8):
            for r in regs:
                a(f"{op}_dpp v{r}, v{r}, v{r} row_ror:{k} {DPP}")
    def cross_allreduce(op, r, t):
        a(f"v_mov_b32 v{t}, v{r}")
        a(f"v_permlane16_swap_b32 v{r}, v{t}")
        a(f"{op} v{r}, v{r}, v{t}")
        a(f"v_mov_b32 v{t}, v{r}")
        a(f"v_permlane32_swap_b32 v{r}, v{t}")
        a(f"{op} v{r}, v{r}, v{t}")
    def bf16r(d, s):
        a(f"v_cvt_pk_bf16_f32 v{d}, v{s}, v{s}")
        a(f"v_and_b32 v{d}, 0xffff0000, v{d}")
    def load_tag(tg):
        a(f"ds_read_b32 v{tg}, v1 offset:{L_TAG}")
        a("s_movk_i32 s63, 0xff")
        a("s_waitcnt lgkmcnt(0)")
        for k in range(1, 4): a(f"v_lshrrev_b32 v{tg+k}, {8*k}, v{tg}")
    def apply_tag(r, tg):
        for k in range(4): a(f"v_bfi_b32 v{r+k}, s63, v{tg+k}, v{r+k}")
    def tag_check(grans, t, tg, full=()):
        first = True
        for g in grans:
            for k in range(4):
                if first: a(f"v_xor_b32 v{t}, v{g+k}, v{tg+k}")
                else: a(f"v_bitop3_b32 v{t}, v{t}, v{g+k}, v{tg+k} bitop3:0xf6")
                first = False
        a(f"v_and_b32 v{t}, 0xff, v{t}")
        for r in full: a(f"v_bitop3_b32 v{t}, v{t}, v{r}, v{tg} bitop3:0xf6")
        a(f"v_cmp_ne_u32 vcc, 0, v{t}")
    def treduce4(r):
        a(f"v_permlane32_swap_b32 v{r}, v{r+2}")
        a(f"v_permlane32_swap_b32 v{r+1}, v{r+3}")
        a(f"v_add_f32 v{r}, v{r}, v{r+2}")
        a(f"v_add_f32 v{r+1}, v{r+1}, v{r+3}")
        a(f"v_permlane16_swap_b32 v{r}, v{r+1}")
        a(f"v_add_f32 v{r}, v{r}, v{r+1}")
    def retry(L, D, sleep=1):
        a(f"s_cbranch_vccz {D}")
        if sleep: a(f"s_sleep {sleep}")
        a("s_sub_u32 s60, s60, 1")
        a(f"s_cbranch_scc0 {L}")
        a(f"{D}:")
    def silu_bf16(d, x, t):
        a(f"v_mul_f32 v{t}, 0xbfb8aa3b, v{x}")
        a(f"v_exp_f32 v{t}, v{t}")
        a(f"v_add_f32 v{t}, 1.0, v{t}")
        a(f"v_rcp_f32 v{t}, v{t}")
        a(f"v_mul_f32 v{t}, v{t}, v{x}")
        bf16r(d, t)

    a("s_cmp_ge_u32 s2, 256")
    a("s_cbranch_scc1 L_end")
    a("s_load_dwordx16 s[16:31], s[0:1], 0")
    a("s_load_dwordx8 s[32:39], s[0:1], 64")
    if stamps:
        for k in range(1, 16): a(f"s_mov_b32 s{64+2*k}, 0")
    stamp(0)
    if pad: a("s_memrealtime s[64:65]")
    a("v_lshrrev_b32 v1, 6, v0")
    a("v_and_b32 v0, 63, v0")
    a("v_readfirstlane_b32 s3, v1")
    a("v_mov_b32 v1, 0")
    a("v_lshrrev_b32 v2, 3, v0")
    a("v_and_b32 v3, 7, v0")
    a("v_lshrrev_b32 v4, 4, v0")
    a("v_and_b32 v5, 15, v0")
    a("v_lshlrev_b32 v6, 4, v0")
    a("s_cmp_ge_u32 s3, 4")
    a("s_cbranch_scc1 L_A")
    a("s_setprio 2")
    a("s_cmp_eq_u32 s3, 3")
    a("s_cbranch_scc1 L_W3")

    WB = 128
    XS = 16
    SL, SH = 32, 36
    T0 = 40
    ACC = 48
    a("s_and_b32 s4, s2, 3")
    a("s_lshr_b32 s5, s2, 2")
    a("s_lshl_b32 s6, s5, 7")
    a("s_movk_i32 s7, 7168")
    a("s_cmp_eq_u32 s3, 0")
    a("s_cselect_b32 s7, 8192, s7")
    a("s_lshl_b32 s8, s4, 8")
    a("s_mul_i32 s8, s8, s7")
    a("s_add_u32 s8, s8, s6")
    a("s_lshl_b32 s9, s7, 5")
    a("v_mul_lo_u32 v7, v2, s9")
    a("v_lshl_add_u32 v7, v3, 4, v7")
    a("s_waitcnt lgkmcnt(0)")
    srd(48, 38, 268435456)
    a("s_cmp_eq_u32 s3, 0")
    a("s_cbranch_scc0 L_W12")
    srd(52, 16, 2048)
    srd(40, 22, 8388608)
    a("v_lshlrev_b32 v8, 5, v0")
    a("v_lshlrev_b32 v9, 3, v0")
    a("s_lshl_b32 s10, s4, 9")
    a("buffer_load_dwordx4 v[56:59], v8, s[52:55], 0 offen")
    a("buffer_load_dwordx4 v[60:63], v8, s[52:55], 0 offen offset:16")
    a("buffer_load_dwordx2 v[64:65], v9, s[52:55], s10 offen")
    def issue_block():
        for i in range(32):
            a(f"buffer_load_dwordx4 v[{WB+4*i}:{WB+4*i+3}], v7, s[40:43], s8 offen{NT}")
            if i < 31: a("s_add_u32 s8, s8, s7")
    issue_block()
    a("s_barrier")
    stamp(1)
    a("s_waitcnt vmcnt(32)")
    stamp(2)
    for i in range(8):
        a(f"v_lshlrev_b32 v{72+2*i}, 16, v{56+i}")
        a(f"v_and_b32 v{73+2*i}, 0xffff0000, v{56+i}")
    a("v_add_f32 v10, v72, v73")
    a("v_add_f32 v11, v74, v75")
    for i in range(2, 8):
        a(f"v_add_f32 v10, v10, v{72+2*i}")
        a(f"v_add_f32 v11, v11, v{73+2*i}")
    a("v_add_f32 v10, v10, v11")
    row_allreduce("v_add_f32", [10])
    cross_allreduce("v_add_f32", 10, 11)
    a("v_mul_f32 v10, 0x3a800000, v10")
    for i in range(16):
        a(f"v_sub_f32 v{72+i}, v{72+i}, v10")
    a("v_mul_f32 v11, v72, v72")
    a("v_mul_f32 v12, v73, v73")
    for i in range(1, 8):
        a(f"v_fmac_f32 v11, v{72+2*i}, v{72+2*i}")
        a(f"v_fmac_f32 v12, v{73+2*i}, v{73+2*i}")
    a("v_add_f32 v11, v11, v12")
    row_allreduce("v_add_f32", [11])
    cross_allreduce("v_add_f32", 11, 12)
    a("v_mul_f32 v11, 0x3a800000, v11")
    bf16r(10, 10)
    bf16r(11, 11)
    a("v_add_f32 v11, 0x3727c5ac, v11")
    bf16r(11, 11)
    a("v_sqrt_f32 v11, v11")
    bf16r(11, 11)
    a("v_rcp_f32 v11, v11")
    for i in range(2):
        a(f"v_lshlrev_b32 v12, 16, v{64+i}")
        a(f"v_and_b32 v13, 0xffff0000, v{64+i}")
        a("v_sub_f32 v12, v12, v10")
        a("v_sub_f32 v13, v13, v10")
        a("v_cvt_pk_bf16_f32 v13, v12, v13")
        a("v_lshlrev_b32 v12, 16, v13")
        a("v_and_b32 v13, 0xffff0000, v13")
        a("v_mul_f32 v12, v12, v11")
        a("v_mul_f32 v13, v13, v11")
        a(f"v_cvt_pk_bf16_f32 v{64+i}, v12, v13")
    a(f"ds_write_b64 v9, v[64:65] offset:{XN}")
    a("s_waitcnt lgkmcnt(0)")
    lds_inc(L_XN, 12)
    a("s_branch L_gemv32")
    a("L_W12:")
    a("s_cmp_eq_u32 s3, 1")
    a("s_cselect_b32 s40, s28, s30")
    a("s_cselect_b32 s41, s29, s31")
    a("s_mov_b32 s42, 7340032")
    a("s_mov_b32 s43, 0x20000")
    a("s_barrier")
    a("s_cmp_ge_u32 s2, 224")
    a("s_cbranch_scc1 L_Wsel")
    issue_block()
    stamp(1)
    lds_spin(L_XN, 1, 12)
    a("L_gemv32:")
    a("v_lshlrev_b32 v12, 6, v2")
    for i in range(4):
        a(f"ds_read_b128 v[{XS+4*i}:{XS+4*i+3}], v12 offset:{XN+16*i}")
    def build_sel():
        a("v_and_b32 v12, 1, v0")
        a("v_cmp_eq_u32 vcc, 1, v12")
        a("v_mov_b32 v12, 0x0c0c0100")
        a("v_mov_b32 v13, 0x01000c0c")
        a("v_cndmask_b32 v12, v12, v13, vcc")
        a("v_mov_b32 v13, 0x0c0c0302")
        a("v_mov_b32 v14, 0x03020c0c")
        a("v_cndmask_b32 v13, v13, v14, vcc")
        a("v_lshrrev_b32 v14, 1, v3")
        a("v_mov_b32 v15, 0x0c0c0c0c")
        for j in range(4):
            a(f"v_cmp_eq_u32 vcc, {j}, v14")
            a(f"v_cndmask_b32 v{SL+j}, v15, v12, vcc")
            a(f"v_cndmask_b32 v{SH+j}, v15, v13, vcc")
    build_sel()
    lds_spin(L_TAGOK, 1, 13)
    load_tag(52)
    stamp(3)
    for i in range(32):
        t = T0 + 4 * (i & 1); s = SH if i & 1 else SL
        for j in range(4):
            a(f"v_perm_b32 v{t+j}, v{XS+(i>>1)}, v{XS+(i>>1)}, v{s+j}")
        a(f"s_waitcnt vmcnt({31-i})")
        c = "0" if i == 0 else f"v[{ACC}:{ACC+3}]"
        a(f"v_mfma_f32_16x16x32_bf16 v[{ACC}:{ACC+3}], v[{t}:{t+3}], v[{WB+4*i}:{WB+4*i+3}], {c}")
    stamp(4)
    def vreduce(acc):
        a(f"v_permlane32_swap_b32 v{acc}, v{acc+2}")
        a(f"v_permlane32_swap_b32 v{acc+1}, v{acc+3}")
        a(f"v_add_f32_dpp v{acc}, v{acc+2}, v{acc} row_ror:8 {DPP}")
        a(f"v_add_f32_dpp v{acc+1}, v{acc+3}, v{acc+1} row_ror:8 {DPP}")
    def colofs64(d, t):
        a(f"v_and_b32 v{t}, 1, v4")
        a(f"v_lshlrev_b32 v{t}, 4, v{t}")
        a(f"v_lshl_add_u32 v{d}, v3, 5, v{t}")
        a(f"v_lshrrev_b32 v{t}, 5, v0")
        a(f"v_lshl_add_u32 v{d}, v{t}, 3, v{d}")
    a("v_lshlrev_b32 v12, 5, v3")
    a("v_lshl_add_u32 v12, v4, 4, v12")
    a("s_lshl_b32 s8, s3, 16")
    a("s_lshl_b32 s9, s4, 14")
    a("s_add_u32 s8, s8, s9")
    a("s_lshl_b32 s9, s5, 8")
    a("s_add_u32 s8, s8, s9")
    vreduce(ACC)
    a(f"v_mov_b32 v{ACC+2}, v{ACC}")
    a(f"v_mov_b32 v{ACC+3}, v{ACC+1}")
    a(f"v_permlane32_swap_b32 v{ACC}, v{ACC+2}")
    a(f"v_permlane32_swap_b32 v{ACC+1}, v{ACC+3}")
    apply_tag(ACC, 52)
    a("s_mov_b64 exec, 0x00ff00ff")
    a(f"buffer_store_dwordx4 v[{ACC}:{ACC+3}], v12, s[48:51], s8 offen sc1")
    a("s_mov_b64 exec, -1")
    stamp(5)
    a("s_cmp_eq_u32 s3, 0")
    a("s_cbranch_scc0 L_Wmid")
    lds_inc(L_QPUB, 12)
    a("s_branch L_Wmid")

    a("L_W3:")
    a("v_lshlrev_b32 v7, 2, v0")
    a("ds_write_b32 v7, v1")
    a("s_waitcnt lgkmcnt(0)")
    a(f"s_load_dword s13, s[38:39], {EPOCH}")
    srd(48, 38, 268435456)
    a("s_barrier")
    def rr_cc(srr, scc):
        a(f"s_and_b32 s{srr}, s2, 7")
        a("s_lshr_b32 s62, s2, 5")
        a("s_lshl_b32 s62, s62, 3")
        a(f"s_or_b32 s{srr}, s{srr}, s62")
        a(f"s_lshr_b32 s{scc}, s2, 3")
        a(f"s_and_b32 s{scc}, s{scc}, 3")
    def sp_off(d):
        rr_cc(4, 5)
        a("s_lshl_b32 s4, s4, 12")
        a("s_lshl_b32 s5, s5, 10")
        a("s_add_u32 s4, s4, s5")
        a(f"s_add_u32 s{d}, s4, {SP}")
    def fp_off(d):
        a("s_lshr_b32 s4, s2, 4")
        a("s_lshl_b32 s4, s4, 12")
        a("s_and_b32 s5, s2, 15")
        a("s_lshl_b32 s5, s5, 8")
        a("s_add_u32 s4, s4, s5")
        a(f"s_add_u32 s{d}, s4, {FP}")
    def st_off(d):
        a("s_lshr_b32 s4, s2, 6")
        a("s_lshl_b32 s4, s4, 12")
        a("s_and_b32 s5, s2, 63")
        a("s_lshl_b32 s5, s5, 3")
        a("s_add_u32 s4, s4, s5")
        a(f"s_add_u32 s{d}, s4, {ST}")
    a("s_waitcnt lgkmcnt(0)")
    a("s_add_u32 s13, s13, 0x01010101")
    a("v_mov_b32 v12, s13")
    a(f"ds_write_b32 v1, v12 offset:{L_TAG}")
    a("s_waitcnt lgkmcnt(0)")
    lds_inc(L_TAGOK, 12)
    stamp(1)
    load_tag(52)
    a("v_lshlrev_b32 v8, 9, v3")
    a("v_lshl_add_u32 v8, v2, 5, v8")
    a("s_lshr_b32 s4, s2, 6")
    a("s_lshl_b32 s4, s4, 12")
    a("s_add_u32 s5, s4, 16384")
    a("s_add_u32 s6, s4, 32768")
    a("s_add_u32 s7, s4, 49152")
    lds_spin(L_QPUB, 1, 12, 2)
    stamp(2)
    L = a.label("L_fl"); D = a.label("L_fld")
    a(f"s_mov_b32 s60, {spin_limit}")
    a(f"{L}:")
    for r in range(4):
        for hf in range(2):
            for k in range(2):
                d = 64 + r * 16 + hf * 8 + k * 4
                a(f"buffer_load_dwordx4 v[{d}:{d+3}], v8, s[48:51], s{4+r} offen offset:{hf*256+k*16} sc1")
    a("s_waitcnt vmcnt(0)")
    tag_check(range(64, 128, 4), 12, 52)
    retry(L, D, 2)
    stamp(3)
    if stamps:
        a(f"s_sub_u32 s94, {spin_limit}, s60")
        a("s_add_u32 s94, s94, s64")
    for i in range(16): a(f"v_add_f32 v{64+i}, v{64+i}, v{80+i}")
    for i in range(16): a(f"v_add_f32 v{96+i}, v{96+i}, v{112+i}")
    for i in range(16): a(f"v_add_f32 v{64+i}, v{64+i}, v{96+i}")
    for i in range(8): a(f"v_cvt_pk_bf16_f32 v{16+i}, v{64+2*i}, v{65+2*i}")
    a(f"ds_write_b128 v6, v[16:19] offset:{QF}")
    a(f"ds_write_b128 v6, v[20:23] offset:{QF+1024}")
    a("s_waitcnt lgkmcnt(0)")
    lds_inc(L_Q, 12)
    stamp(4)
    a("L_Wsel:")
    build_sel()

    a("L_Wmid:")
    HS = 64
    WD = 96
    WO = 128
    WP = 160
    CO = 192
    PD = 224
    PS = 240
    lds_spin(L_Q, 1, 12, 4)
    stamp(6)
    a("s_lshr_b32 s4, s2, 4")
    a("s_mul_i32 s4, s4, 224")
    a("s_mul_i32 s5, s3, 56")
    a("s_add_u32 s12, s4, s5")
    a("s_lshl_b32 s4, s12, 2")
    a(f"s_add_u32 s4, s4, {GP}")
    load_tag(52)
    a("v_min_u32 v8, 13, v5")
    a("v_lshlrev_b32 v8, 4, v8")
    a("v_lshl_add_u32 v8, v4, 14, v8")
    a("s_add_u32 s5, s4, 0x10000")
    L = a.label("L_h"); D = a.label("L_hd")
    a(f"s_mov_b32 s60, {spin_limit}")
    a(f"{L}:")
    a("buffer_load_dwordx4 v[16:19], v8, s[48:51], s4 offen sc1")
    a("buffer_load_dwordx4 v[20:23], v8, s[48:51], s5 offen sc1")
    a("s_waitcnt vmcnt(0)")
    tag_check([16, 20], 12, 52)
    retry(L, D, 8)
    stamp(7)
    treduce4(16)
    treduce4(20)
    bf16r(16, 16)
    bf16r(20, 20)
    silu_bf16(16, 16, 12)
    a("v_mul_f32 v16, v16, v20")
    a("v_cvt_pk_bf16_f32 v16, v16, v16")
    a("v_mul_u32_u24 v12, 7, v2")
    for i in range(7):
        a(f"v_add_u32 v13, {i}, v12")
        a("v_and_b32 v14, 3, v13")
        a("v_lshlrev_b32 v14, 6, v14")
        a("v_and_b32 v13, -4, v13")
        a("v_add_u32 v13, v13, v14")
        a(f"ds_bpermute_b32 v{17+i}, v13, v16")
    a("s_waitcnt lgkmcnt(0)")
    for i in range(7):
        for j in range(4):
            a(f"v_perm_b32 v{HS+4*i+j}, v{17+i}, v{17+i}, v{SL+j}")
    srd(40, 32, 7340032)
    srd(44, 24, 8388608)
    a("s_lshl_b32 s12, s12, 11")
    a("s_and_b32 s4, s2, 15")
    a("s_lshl_b32 s4, s4, 7")
    a("s_add_u32 s12, s12, s4")
    a("v_mul_u32_u24 v8, 14336, v2")
    a("v_lshl_add_u32 v8, v3, 4, v8")
    rr_cc(4, 5)
    a("s_lshr_b32 s6, s4, 1")
    a("s_and_b32 s7, s4, 1")
    a("s_lshl_b32 s7, s7, 2")
    a("s_add_u32 s7, s7, s3")
    a("s_lshl_b32 s8, s6, 7")
    a("s_lshr_b32 s9, s7, 1")
    a("s_lshl_b32 s9, s9, 5")
    a("s_add_u32 s8, s8, s9")
    a("s_and_b32 s9, s7, 1")
    a("s_lshl_b32 s9, s9, 2")
    a("s_add_u32 s8, s8, s9")
    a("s_lshl_b32 s8, s8, 11")
    a("s_lshl_b32 s9, s5, 9")
    a("s_add_u32 s13, s8, s9")
    a("v_lshlrev_b32 v9, 4, v5")
    a("v_lshl_add_u32 v9, v4, 11, v9")
    a("s_lshr_b32 s8, s6, 3")
    a("s_lshl_b32 s8, s8, 18")
    a("s_and_b32 s9, s6, 7")
    a("s_lshl_b32 s9, s9, 9")
    a("s_add_u32 s8, s8, s9")
    a("s_lshl_b32 s9, s7, 6")
    a("s_add_u32 s8, s8, s9")
    a(f"s_add_u32 s96, s8, {OP}")
    a("s_add_u32 s97, s96, 4096")
    a("s_add_u32 s98, s96, 8192")
    a("s_add_u32 s99, s96, 12288")
    a("s_lshl_b32 s8, s6, 9")
    a(f"s_add_u32 s14, s8, {ST}")
    a("v_lshlrev_b32 v10, 4, v4")
    a("v_lshl_add_u32 v10, v5, 14, v10")
    a("v_lshlrev_b32 v11, 5, v5")
    a("s_mov_b32 s10, 0x05040100")
    a("s_mov_b32 s11, 0x07060302")
    lds_spin(L_AISS, 4, 12, 4)
    stamp(8)
    for i in range(7):
        a(f"buffer_load_dwordx4 v[{WD+4*i}:{WD+4*i+3}], v8, s[40:43], s12 offen offset:{2048*(i&1)}{NT}")
        if i & 1: a("s_add_u32 s12, s12, 4096")
    for j in range(4):
        for hf in range(2):
            d = WO + (j * 2 + hf) * 4
            a(f"buffer_load_dwordx4 v[{d}:{d+3}], v9, s[44:47], s13 offen offset:{256*hf}{NT}")
        if j < 3: a("s_add_u32 s13, s13, 16384")
    stamp(9)
    for i in range(7):
        a(f"s_waitcnt vmcnt({14-i})")
        c = "0" if i == 0 else f"v[{ACC}:{ACC+3}]"
        a(f"v_mfma_f32_16x16x32_bf16 v[{ACC}:{ACC+3}], v[{HS+4*i}:{HS+4*i+3}], v[{WD+4*i}:{WD+4*i+3}], {c}")
    colofs64(12, 13)
    a("s_lshl_b32 s4, s3, 8")
    a("v_add_u32 v12, s4, v12")
    vreduce(ACC)
    a("s_mov_b32 exec_lo, 0x00ff00ff")
    a("s_mov_b32 exec_hi, 0x00ff00ff")
    a(f"ds_write_b64 v12, v[{ACC}:{ACC+1}] offset:{RF}")
    a("s_mov_b64 exec, -1")
    for jp in range(2):
        a(f"s_waitcnt vmcnt({4-4*jp})")
        for hf in range(2):
            for e in range(8):
                lo = WO + ((2 * jp) * 2 + hf) * 4 + (e >> 1)
                hi = WO + ((2 * jp + 1) * 2 + hf) * 4 + (e >> 1)
                a(f"v_perm_b32 v{WP+4*e+2*hf+jp}, v{hi}, v{lo}, s{10+(e&1)}")
    stamp(10)
    a("v_cmp_gt_u32 s[100:101], 8, v5")
    a("v_and_b32 v12, 1, v4")
    a("v_cmp_eq_u32 s[8:9], 1, v12")
    a("s_lshl_b32 s4, s3, 10")
    a("v_add_u32 v15, s4, v6")
    L = a.label("L_o"); D = a.label("L_od")
    a(f"s_mov_b32 s60, {spin_limit}")
    a(f"{L}:")
    a(f"buffer_load_dwordx4 v[{PS}:{PS+3}], v11, s[48:51], s14 offen sc1")
    a(f"buffer_load_dwordx4 v[{PS+4}:{PS+7}], v11, s[48:51], s14 offen offset:16 sc1")
    for i in range(4):
        a(f"buffer_load_dwordx4 v[{PD+4*i}:{PD+4*i+3}], v10, s[48:51], s{96+i} offen sc1")
    a("s_waitcnt vmcnt(0)")
    tag_check(range(PD, PD + 16, 4), 12, 52, full=[PS+1, PS+3, PS+5, PS+7])
    retry(L, D, 1)
    stamp(11)
    a(f"v_max3_f32 v16, v{PS}, v{PS+2}, v{PS+4}")
    a(f"v_max_f32 v16, v16, v{PS+6}")
    row_allreduce("v_max_f32", [16])
    for i in range(4): a(f"v_sub_f32 v{17+i}, v{PS+2*i}, v16")
    for i in range(4): a(f"v_exp_f32 v{17+i}, v{17+i}")
    for k in range(4): a(f"v_mul_f32 v{25+k}, v17, v{PD+k}")
    a("v_add_f32 v24, v17, v18")
    for i in range(1, 4):
        for k in range(4): a(f"v_fmac_f32 v{25+k}, v{17+i}, v{PD+4*i+k}")
        if i < 3: a(f"v_add_f32 v24, v24, v{18+i}")
    row_allreduce("v_add_f32", [24, 25, 26, 27, 28])
    a("v_rcp_f32 v24, v24")
    for k in range(4): a(f"v_mul_f32 v{25+k}, v24, v{25+k}")
    a("v_cvt_pk_bf16_f32 v25, v25, v26")
    a("v_cvt_pk_bf16_f32 v26, v27, v28")
    a("v_cndmask_b32 v16, 0, v25, s[100:101]")
    a("v_cndmask_b32 v17, 0, v26, s[100:101]")
    a("v_cndmask_b32 v18, v25, 0, s[100:101]")
    a("v_cndmask_b32 v19, v26, 0, s[100:101]")
    for e in (0, 4, 1, 5, 2, 6, 3, 7):
        a(f"v_mfma_f32_16x16x32_bf16 v[{CO+4*e}:{CO+4*e+3}], v[16:19], v[{WP+4*e}:{WP+4*e+3}], 0")
    for r in range(4):
        a(f"v_cndmask_b32 v{20+r}, v{CO+4*r}, v{CO+4*(4+r)}, s[8:9]")
    a(f"ds_write_b128 v15, v[20:23] offset:{RS}")
    a("s_waitcnt lgkmcnt(0)")
    stamp(12)
    a("s_barrier")
    a("s_cmp_eq_u32 s3, 1")
    a("s_cbranch_scc1 L_pubf")
    a("s_cmp_eq_u32 s3, 2")
    a("s_cbranch_scc1 L_final")
    a("s_cmp_eq_u32 s3, 3")
    a("s_cbranch_scc1 L_Wend")
    for w in range(4):
        a(f"ds_read_b128 v[{16+4*w}:{19+4*w}], v6 offset:{RS+1024*w}")
    sp_off(6)
    a("v_lshrrev_b32 v12, 1, v4")
    a("v_lshlrev_b32 v12, 9, v12")
    a("v_lshl_add_u32 v12, v5, 5, v12")
    a("v_and_b32 v13, 1, v4")
    a("v_lshl_add_u32 v12, v13, 4, v12")
    a("s_waitcnt lgkmcnt(0)")
    for k in range(4): a(f"v_add_f32 v{16+k}, v{16+k}, v{20+k}")
    for k in range(4): a(f"v_add_f32 v{24+k}, v{24+k}, v{28+k}")
    for k in range(4): a(f"v_add_f32 v{16+k}, v{16+k}, v{24+k}")
    apply_tag(16, 52)
    a("buffer_store_dwordx4 v[16:19], v12, s[48:51], s6 offen sc1")
    stamp(13)
    a("s_branch L_Wend")
    a("L_pubf:")
    a("s_mov_b64 exec, 0xffff")
    for w in range(4):
        a(f"ds_read_b128 v[{16+4*w}:{19+4*w}], v6 offset:{RF+256*w}")
    fp_off(6)
    a("s_waitcnt lgkmcnt(0)")
    for k in range(4): a(f"v_add_f32 v{16+k}, v{16+k}, v{20+k}")
    for k in range(4): a(f"v_add_f32 v{24+k}, v{24+k}, v{28+k}")
    for k in range(4): a(f"v_add_f32 v{16+k}, v{16+k}, v{24+k}")
    apply_tag(16, 52)
    a("buffer_store_dwordx4 v[16:19], v6, s[48:51], s6 offen sc1")
    stamp(13)
    a("s_branch L_Wend")
    a("L_final:")
    a("s_and_b32 s4, s2, 7")
    a("s_lshr_b32 s5, s2, 6")
    a("s_lshl_b32 s5, s5, 3")
    a("s_or_b32 s4, s4, s5")
    a("s_lshl_b32 s4, s4, 5")
    a("s_lshr_b32 s5, s2, 3")
    a("s_and_b32 s5, s5, 7")
    a("s_lshl_b32 s5, s5, 2")
    a("s_add_u32 s4, s4, s5")
    a("s_lshl_b32 s5, s4, 2")
    a(f"s_add_u32 s6, s5, {SP}")
    a(f"s_add_u32 s7, s5, {FP}")
    a("s_lshl_b32 s12, s4, 1")
    srd(52, 16, 2048)
    srd(56, 34, 2048)
    a("v_lshlrev_b32 v8, 12, v0")
    a("v_lshlrev_b32 v9, 12, v5")
    a("v_lshlrev_b32 v10, 1, v4")
    a("buffer_load_ushort v24, v10, s[52:55], s12 offen")
    a("v_cmp_lt_u32 s[10:11], 31, v0")
    L = a.label("L_s"); D = a.label("L_sd")
    a(f"s_mov_b32 s60, {spin_limit}")
    a(f"{L}:")
    a("buffer_load_dwordx4 v[16:19], v8, s[48:51], s6 offen sc1")
    a("buffer_load_dwordx4 v[20:23], v9, s[48:51], s7 offen sc1")
    a("s_waitcnt vmcnt(0)")
    tag_check([16, 20], 12, 52)
    retry(L, D, 1)
    stamp(13)
    a("v_cndmask_b32 v20, v20, v21, s[8:9]")
    a("v_cndmask_b32 v22, v22, v23, s[8:9]")
    a("v_cndmask_b32 v20, v20, v22, s[10:11]")
    treduce4(16)
    row_allreduce("v_add_f32", [20, 16])
    bf16r(20, 20)
    bf16r(16, 16)
    silu_bf16(20, 20, 12)
    a("v_mul_f32 v16, v16, v20")
    bf16r(16, 16)
    a("v_lshlrev_b32 v24, 16, v24")
    a("v_add_f32 v16, v16, v24")
    a("v_cvt_pk_bf16_f32 v16, v16, v16")
    a("s_mov_b32 exec_lo, 0x00010001")
    a("s_mov_b32 exec_hi, 0x00010001")
    a("buffer_store_short v16, v10, s[56:59], s12 offen")
    stamp(14)
    if pad:
        a("L_pad:")
        a("s_memrealtime s[66:67]")
        a("s_waitcnt lgkmcnt(0)")
        a("s_sub_u32 s66, s66, s64")
        a(f"s_cmp_lt_u32 s66, {pad}")
        a("s_cbranch_scc1 L_pad")
    a("s_cmp_eq_u32 s2, 0")
    a("s_cbranch_scc0 L_Wend")
    a("s_mov_b64 exec, 1")
    a(f"s_mov_b32 s4, {EPOCH}")
    a("buffer_store_dword v52, v1, s[48:51], s4 offen")
    a("L_Wend:")
    dump_stamps(12, 13)
    a("s_endpgm")

    a("L_A:")
    KB = [128, 160]; VB = [192, 224]
    AC = 96
    Q = 16
    SC = 24
    S = 40
    P = 48
    TP = 52
    M2, LS, AL, NM = 60, 61, 62, 63
    a("s_sub_u32 s15, s3, 4")
    if stamps:
        a("s_getreg_b32 s94, hwreg(HW_REG_XCC_ID)")
        a("s_getreg_b32 s95, hwreg(HW_REG_HW_ID)")
        a("s_and_b32 s94, s94, 15")
        a("s_lshl_b32 s94, s94, 16")
        a("s_and_b32 s95, s95, 0xffff")
        a("s_or_b32 s94, s94, s95")
        a("s_or_b32 s94, s94, 0x1000000")
    a("v_bfe_u32 v7, v0, 1, 1")
    a("v_lshlrev_b32 v7, 10, v7")
    a("v_bfe_u32 v8, v0, 2, 2")
    a("v_lshl_add_u32 v7, v8, 8, v7")
    a("v_and_b32 v8, 1, v0")
    a("v_lshl_add_u32 v7, v8, 4, v7")
    a("v_lshl_add_u32 v7, v4, 5, v7")
    a("s_lshl_b32 s4, s2, 17")
    a("s_lshl_b32 s5, s15, 13")
    a("s_add_u32 s4, s4, s5")
    a("s_mov_b32 s10, 0x05040100")
    a("s_mov_b32 s11, 0x07060302")
    a(f"s_mov_b32 s12, {LOG2E}")
    a("s_waitcnt lgkmcnt(0)")
    srd(40, 18, 33554432)
    srd(44, 20, 33554432)
    srd(48, 38, 268435456)
    a("s_barrier")
    def issue_k(t):
        kb = KB[t & 1]
        a(f"s_add_u32 s5, s4, {t*32768}")
        a(f"s_add_u32 s6, s4, {t*32768+4096}")
        for g in range(4):
            for hf in range(2):
                d = kb + (g * 2 + hf) * 4
                a(f"buffer_load_dwordx4 v[{d}:{d+3}], v7, s[40:43], s{5+(g>>1)} offen offset:{(g&1)*2048+hf*128}{NT}")
    def issue_v(t):
        vb = VB[t & 1]
        a(f"s_add_u32 s5, s4, {t*32768}")
        a(f"s_add_u32 s6, s4, {t*32768+4096}")
        for j in range(8):
            d = vb + 4 * j
            a(f"buffer_load_dwordx4 v[{d}:{d+3}], v6, s[44:47], s{5+(j>>2)} offen offset:{(j&3)*1024}{NT}")
    issue_k(0); issue_v(0); issue_k(1); issue_v(1)
    stamp(1)
    lds_spin(L_Q, 1, 12, 2)
    stamp(2)
    a(f"ds_read_b128 v[{Q}:{Q+3}], v6 offset:{QF}")
    a(f"ds_read_b128 v[{Q+4}:{Q+7}], v6 offset:{QF+1024}")
    load_tag(64)
    def qk(t, cnt):
        kb = KB[t & 1]
        a(f"s_waitcnt vmcnt({cnt})")
        for hf in range(2):
            for g in range(4):
                d = kb + (g * 2 + hf) * 4
                c = "0" if hf == 0 else f"v[{SC+4*g}:{SC+4*g+3}]"
                a(f"v_mfma_f32_16x16x32_bf16 v[{SC+4*g}:{SC+4*g+3}], v[{d}:{d+3}], v[{Q+4*hf}:{Q+4*hf+3}], {c}")
    def softmax(t):
        for j in range(8):
            a(f"v_add_f32_dpp v{S+j}, v{SC+2*j+1}, v{SC+2*j} row_ror:8 {DPP}")
        for m in range(4): a(f"v_cvt_pk_bf16_f32 v{P+m}, v{S+2*m}, v{S+2*m+1}")
        for m in range(4):
            a(f"v_lshlrev_b32 v{S+2*m}, 16, v{P+m}")
            a(f"v_and_b32 v{S+2*m+1}, 0xffff0000, v{P+m}")
        for j in range(8): a(f"v_mul_f32 v{S+j}, {SCALE}, v{S+j}")
        for m in range(4): a(f"v_cvt_pk_bf16_f32 v{P+m}, v{S+2*m}, v{S+2*m+1}")
        for m in range(4):
            a(f"v_lshlrev_b32 v{S+2*m}, 16, v{P+m}")
            a(f"v_and_b32 v{S+2*m+1}, 0xffff0000, v{P+m}")
        a(f"v_max3_f32 v12, v{S}, v{S+1}, v{S+2}")
        a(f"v_max3_f32 v13, v{S+3}, v{S+4}, v{S+5}")
        a(f"v_max3_f32 v12, v12, v{S+6}, v{S+7}")
        a("v_max_f32 v12, v12, v13")
        cross_allreduce("v_max_f32", 12, 13)
        a("v_mul_f32 v12, s12, v12")
        if t == 0:
            a(f"v_mov_b32 v{M2}, v12")
        else:
            a(f"v_max_f32 v12, v12, v{M2}")
            a(f"v_sub_f32 v{AL}, v{M2}, v12")
            a(f"v_mov_b32 v{M2}, v12")
            a(f"v_exp_f32 v{AL}, v{AL}")
        for j in range(8): a(f"v_fma_f32 v{S+j}, v{S+j}, s12, -v{M2}")
        for j in range(8): a(f"v_exp_f32 v{S+j}, v{S+j}")
        for m in range(4): a(f"v_cvt_pk_bf16_f32 v{P+m}, v{S+2*m}, v{S+2*m+1}")
        a(f"v_add_f32 v12, v{S}, v{S+1}")
        a(f"v_add_f32 v13, v{S+2}, v{S+3}")
        a(f"v_add_f32 v14, v{S+4}, v{S+5}")
        a(f"v_add_f32 v15, v{S+6}, v{S+7}")
        a("v_add_f32 v12, v12, v13")
        a("v_add_f32 v14, v14, v15")
        if t == 0:
            a(f"v_add_f32 v{LS}, v12, v14")
        else:
            a("v_add_f32 v12, v12, v14")
            a(f"v_fma_f32 v{LS}, v{LS}, v{AL}, v12")
            for i in range(32): a(f"v_mul_f32 v{AC+i}, v{AL}, v{AC+i}")
    def pv(t, cnt):
        vb = VB[t & 1]
        a(f"s_waitcnt vmcnt({cnt})")
        for e in range(8):
            tp = TP + 4 * (e & 1)
            for m in range(4):
                a(f"v_perm_b32 v{tp+m}, v{vb+4*(2*m+1)+(e>>1)}, v{vb+4*(2*m)+(e>>1)}, s{10+(e&1)}")
            c = "0" if t == 0 else f"v[{AC+4*e}:{AC+4*e+3}]"
            a(f"v_mfma_f32_16x16x32_bf16 v[{AC+4*e}:{AC+4*e+3}], v[{tp}:{tp+3}], v[{P}:{P+3}], {c}")
    def pv_last(t):
        vb = VB[t & 1]; tb = VB[(t + 1) & 1]
        for m in range(3):
            a(f"s_waitcnt vmcnt({6-2*m})")
            for e in range(8):
                a(f"v_perm_b32 v{tb+4*e+m}, v{vb+4*(2*m+1)+(e>>1)}, v{vb+4*(2*m)+(e>>1)}, s{10+(e&1)}")
        a("s_waitcnt vmcnt(0)")
        stamp(10)
        m = 3
        for e in range(8):
            a(f"v_perm_b32 v{tb+4*e+m}, v{vb+4*(2*m+1)+(e>>1)}, v{vb+4*(2*m)+(e>>1)}, s{10+(e&1)}")
        for e in range(8):
            a(f"v_mfma_f32_16x16x32_bf16 v[{AC+4*e}:{AC+4*e+3}], v[{tb+4*e}:{tb+4*e+3}], v[{P}:{P+3}], v[{AC+4*e}:{AC+4*e+3}]")
    qk(0, 24); issue_k(2); softmax(0); stamp(3); pv(0, 24); issue_v(2); stamp(4)
    qk(1, 24); issue_k(3); softmax(1); pv(1, 24); issue_v(3)
    lds_inc(L_AISS, 12)
    stamp(5)
    qk(2, 24); softmax(2); pv(2, 16)
    stamp(6)
    qk(3, 8); softmax(3)
    stamp(7)
    a("s_setprio 3")
    cross_allreduce("v_add_f32", LS, 13)
    a("s_mul_i32 s5, s15, 4224")
    a("v_mul_u32_u24 v8, 528, v5")
    a("v_lshl_add_u32 v8, v4, 7, v8")
    a("v_add_u32 v8, s5, v8")
    a("s_lshl_b32 s5, s15, 2")
    a("v_lshlrev_b32 v9, 5, v5")
    a("v_add_u32 v9, s5, v9")
    a("s_mov_b64 exec, 0xff")
    a(f"ds_write_b32 v9, v{M2} offset:{ML}")
    a(f"ds_write_b32 v9, v{LS} offset:{ML+16}")
    a("s_mov_b64 exec, -1")
    a("v_lshrrev_b32 v10, 5, v0")
    a("s_lshl_b32 s5, s15, 1")
    a("v_add_u32 v10, s5, v10")
    a("v_and_b32 v11, 31, v0")
    a("v_lshlrev_b32 v11, 4, v11")
    a("v_mul_u32_u24 v12, 528, v10")
    a("v_add_u32 v11, v11, v12")
    a("v_lshlrev_b32 v14, 9, v10")
    a("v_lshlrev_b32 v10, 5, v10")
    st_off(7)
    a("s_lshl_b32 s4, s2, 12")
    a("s_lshl_b32 s5, s15, 10")
    a("s_add_u32 s4, s4, s5")
    a(f"s_add_u32 s6, s4, {OP}")
    pv_last(3)
    a("s_mov_b32 exec_lo, 0x00ff00ff")
    a("s_mov_b32 exec_hi, 0x00ff00ff")
    for e in range(8):
        a(f"ds_write_b128 v8, v[{AC+4*e}:{AC+4*e+3}] offset:{OB+16*e}")
    a("s_waitcnt lgkmcnt(0)")
    lds_inc(L_ADONE, 12)
    stamp(11)
    lds_spin(L_ADONE, 4, 12, 0)
    stamp(12)
    a(f"ds_read_b128 v[16:19], v10 offset:{ML}")
    a(f"ds_read_b128 v[20:23], v10 offset:{ML+16}")
    for w in range(4):
        a(f"ds_read_b128 v[{24+4*w}:{27+4*w}], v11 offset:{OB+4224*w}")
    a("s_waitcnt lgkmcnt(0)")
    a("v_max3_f32 v40, v16, v17, v18")
    a("v_max_f32 v40, v40, v19")
    for w in range(4): a(f"v_sub_f32 v{16+w}, v{16+w}, v40")
    for w in range(4): a(f"v_exp_f32 v{16+w}, v{16+w}")
    a("v_mul_f32 v41, v16, v20")
    for w in range(1, 4): a(f"v_fmac_f32 v41, v{16+w}, v{20+w}")
    for k in range(4): a(f"v_mul_f32 v{44+k}, v16, v{24+k}")
    a("v_rcp_f32 v42, v41")
    a("v_log_f32 v43, v41")
    for w in range(1, 4):
        for k in range(4): a(f"v_fmac_f32 v{44+k}, v{16+w}, v{24+4*w+k}")
    for k in range(4): a(f"v_mul_f32 v{44+k}, v42, v{44+k}")
    apply_tag(44, 64)
    a("buffer_store_dwordx4 v[44:47], v6, s[48:51], s6 offen sc1")
    a("v_add_f32 v40, v40, v43")
    a("v_mov_b32 v41, v64")
    a("s_mov_b32 exec_lo, 1")
    a("s_mov_b32 exec_hi, 1")
    a("buffer_store_dwordx2 v[40:41], v14, s[48:51], s7 offen sc1")
    stamp(13)
    if stamps:
        a("s_waitcnt vmcnt(0)")
        stamp(14)
    dump_stamps(12, 13)
    a("L_end:")
    a("s_endpgm")
    name = NAME + "_kernel"
    hdr = open("cdna_kernels/" + NAME + ".s.ref").read().split("; Override launch")[0]
    txt = hdr + header([f"@launch grid=(256,1,1) block=(512,1,1) lds={LDS_BYTES}"]) + kernel_begin(name) + a.text() + rodata() + \
        kernel_desc(name, 256, 102, extra="  .amdhsa_float_denorm_mode_32 3\n")
    return txt

if __name__ == "__main__":
    open("k2_nt.s", "w").write(gen(nt="nt"))
    open("k2_pl.s", "w").write(gen(nt=""))
    open("k2_nt_st.s", "w").write(gen(nt="nt", stamps=True))
    open("k2_pl_st.s", "w").write(gen(nt="", stamps=True))
    open("k2_nt_pad60.s", "w").write(gen(nt="nt", pad=6000))
    open("k2_nt_pad30.s", "w").write(gen(nt="nt", pad=3000))
    open("k2_nt_pad26.s", "w").write(gen(nt="nt", pad=2600))
```

```python
import sys
from asmlib import *

QP, GP, CNT, OCN, EPOCH, SP, FP, OP, STAMP = 0, 0x10000, 0x30000, 0x34000, 0x3F000, 0x40000, 0xD0000, 0x100000, 0x400000
MISC = 0x20000
TQ, STARTED, GATE, GCNT, PCNT = 0x1100, 0x21C, 0x220, 0x224, 0x228
POST, PROG, QCNT, OCNT, GO, ZER, XN, HL, OL, QL = 0, 0x200, 0x210, 0x214, 0x218, 0x240, 0x300, 0x500, 0x700, 0x800
QROW = 272
SCR = 0x1700
LDS_BYTES = MISC + 0x1B00
TCN, AC1, AC2 = 0x340000, 0x390000, 0x3A0000
LOG2E = 0x3fb8aa3b
SCALE = 0x3db504f3
DPP = "row_mask:0xf bank_mask:0xf"
BIG = -1
TAGX = 0x5ac3a569

def interleave(chain, fill, gaps):
    out = []; fill = list(fill)
    for i, x in enumerate(chain):
        out.append(x)
        for _ in range(gaps.get(i, 0)):
            if fill: out.append(fill.pop(0))
    return out + fill

def gen(nt="nt", stamps=False, spin_limit=2000000, win=24, dyn=10, npool=4, outsc="", gate=10, skew=128, vtick=False,
        fsleep=0, osleep=1, qsleep=4, probe=None, cgate=False, early=True, ahead=2, ntw=2, cstride=256, late=None, gtab=None, ztab=None, wtab=None, spw=False, opw=False, fatom=False, leak=None, fine=False, wins=None, csleep=0, pace=0, pnop=0, cpf=True, sig1=None, sig2=False, touch=False, sig2late=False, lite=False, half=False, dup2=False, kmap='E', rot=0, early_t=False, empt=0, spos=0, abl='', win1=None, n1=9, hstart=0, qstart=0, sigpos='chk', gneed=4, flate=False, qlight=None, lex=0, gumix=False, w2=False, rk=None, rk0=4, rkgrp=False, rkat=-5, grow=None, tsleep=1, shardrd=False, s1pos='last', s1from=9):
    a = Asm()
    sw = 1 if spw else 0
    ow = 1 if opw else 0
    RS = 4096 + skew
    RSS = (4096 << sw) + skew
    RSO = (4096 << ow) + skew
    NT = " " + nt if nt else ""
    role = ["-"]
    def stamp(k):
        if lite and (k == 0 or (role[0], k) == ("H", 14)): a(f"s_memrealtime s[{64+2*k}:{65+2*k}]")
        if stamps or (leak and (k == 0 or (role[0], k) in [x[:2] for x in leak])): a(f"s_memrealtime s[{64+2*k}:{65+2*k}]")
        if probe and (k == 0 or (role[0], k) == probe[:2]): a(f"s_memrealtime s[{64+2*min(k,1)}:{65+2*min(k,1)}]")
    def leak_out():
        if not leak: return
        mine = [(i, x) for i, x in enumerate(leak) if x[0] == role[0]]
        Ln = a.label("L_noleak")
        a("s_waitcnt lgkmcnt(0)")
        srd(48, 38, 268435456)
        a("s_mov_b64 exec, 1")
        a("s_cmp_eq_u32 s93, 0")
        a(f"s_cbranch_scc1 {Ln}")
        for i, x in mine:
            if len(x) > 2:
                Ls = a.label("L_lk")
                a(f"s_cmp_lg_u32 s3, {x[2]}")
                a(f"s_cbranch_scc1 {Ls}")
            a(f"s_and_b32 s4, s{64+2*x[1]}, 0x3fff")
            a("v_mov_b32 v12, s4")
            a("s_lshl_b32 s4, s2, 3")
            a(f"s_add_u32 s4, s4, {2*i + 0x500000}")
            a("buffer_store_short v12, v0, s[48:51], s4 offen")
            if len(x) > 2: a(f"{Ls}:")
        a(f"{Ln}:")
        if role[0] == "H":
            Ln = a.label("L_noleak")
            a("s_cmp_eq_u32 s95, 0")
            a(f"s_cbranch_scc1 {Ln}")
            srd(52, 34, 2048)
            a("s_lshl_b32 s4, s2, 3")
            a("s_add_u32 s5, s4, 0x500000")
            a("buffer_load_dwordx2 v[12:13], v0, s[48:51], s5 offen")
            a("s_waitcnt vmcnt(0)")
            a("buffer_store_dwordx2 v[12:13], v0, s[52:55], s4 offen")
            a(f"{Ln}:")
    def leak_flag():
        if not leak: return
        a(f"s_load_dword s95, s[38:39], {EPOCH+4}")
        a("s_load_dword s94, s[16:17], 0")
        a("s_waitcnt lgkmcnt(0)")
        a("s_cmp_lg_u32 s95, 0x600df00d")
        a("s_cselect_b32 s93, 1, 0")
        a("s_cselect_b32 s95, 0, 1")
        a("s_cmp_lg_u32 s94, 0x3c6e3d96")
        a("s_cselect_b32 s95, s95, 0")
        a("s_cmp_lg_u32 s94, 0x3a3abc25")
        a("s_cselect_b32 s95, s95, 0")
    def probe_pad():
        if not probe or probe[0] != role[0]: return
        def until(base, lim):
            L = a.label("L_pp")
            a(f"{L}:")
            a("s_sleep 4")
            a("s_memrealtime s[70:71]")
            a("s_waitcnt lgkmcnt(0)")
            a(f"s_sub_u32 s70, s70, {base}")
            a(f"s_cmp_lt_u32 s70, {lim}")
            a(f"s_cbranch_scc1 {L}")
        a("s_waitcnt lgkmcnt(0)")
        a("s_cmp_eq_u32 s67, -1")
        a("s_cselect_b32 s66, s64, s66")
        a("s_cselect_b32 s69, 1, 0")
        until("s64", 2200)
        a("s_not_b32 s72, s64")
        a("s_atomic_umax s72, s[36:37], 0")
        until("s64", 3200)
        a("s_load_dword s72, s[36:37], 0 glc")
        a("s_waitcnt lgkmcnt(0)")
        a("s_not_b32 s72, s72")
        a("s_sub_u32 s66, s66, s72")
        if len(probe) > 3:
            a("s_atomic_add s66, s[36:37], 128")
            until("s64", 4400)
            a("s_load_dword s66, s[36:37], 128 glc")
            a("s_waitcnt lgkmcnt(0)")
            a("s_lshr_b32 s66, s66, 8")
        if probe[2] < 0 and probe[1]:
            a("s_cmp_eq_u32 s69, 1")
            a("s_cbranch_scc1 L_end")
        a(f"s_mul_i32 s66, s66, {probe[2]}")
        a(f"s_add_u32 s68, s66, {6000 if probe[2] >= 0 else 20000}")
        until("s72", "s68")
    def dump_stamps(vt, va):
        probe_pad()
        leak_out()
        if not (stamps or (lite and role[0] == "H")): return
        a("s_waitcnt lgkmcnt(0)")
        a("s_mov_b64 exec, -1")
        a(f"v_mov_b32 v{vt}, 0")
        for k in range(16):
            a(f"v_writelane_b32 v{vt}, s{64+2*k}, {k}")
        a("s_lshl_b32 s4, s2, 3")
        a("s_add_u32 s4, s4, s3")
        a("s_lshl_b32 s4, s4, 6")
        a(f"s_add_u32 s4, s4, {STAMP}")
        a(f"v_lshlrev_b32 v{va}, 2, v0")
        a("s_mov_b64 exec, 0xffff")
        a(f"buffer_store_dword v{vt}, v{va}, s[48:51], s4 offen")
    def srd(d, p, n):
        a(f"s_mov_b64 s[{d}:{d+1}], s[{p}:{p+1}]")
        a(f"s_mov_b32 s{d+2}, {n}")
        a(f"s_mov_b32 s{d+3}, 0x20000")
    def setexec(lo, hi):
        a(f"s_mov_b32 exec_lo, {lo:#x}")
        a(f"s_mov_b32 exec_hi, {hi:#x}")
    def row_list(op, r, steps=(1, 2, 4, 8)):
        return [f"{op}_dpp v{r}, v{r}, v{r} row_ror:{k} {DPP}" for k in steps]
    def cross_list(op, r, t):
        return [f"v_mov_b32 v{t}, v{r}", f"v_permlane16_swap_b32 v{r}, v{t}", f"{op} v{r}, v{r}, v{t}",
                f"v_mov_b32 v{t}, v{r}", f"v_permlane32_swap_b32 v{r}, v{t}", f"{op} v{r}, v{r}, v{t}"]
    def emit(l):
        for x in l: a(x)
    def bf16r(d, s):
        a(f"v_cvt_pk_bf16_f32 v{d}, 0, v{s}")
    TG = 8
    def make_tag():
        a("s_add_u32 s13, s13, 0x01010101")
        a("s_movk_i32 s63, 0xff")
        a("v_bfe_i32 v12, v0, 0, 1")
        a(f"v_and_b32 v12, {TAGX}, v12")
        a(f"v_xor_b32 v{TG}, s13, v12")
        for k in range(1, 4): a(f"v_lshrrev_b32 v{TG+k}, {8*k}, v{TG}")
    def apply_tag(r, tags=None):
        for k in range(4): a(f"v_bfi_b32 v{r+k}, s63, v{tags[k] if tags else TG+k}, v{r+k}")
    def tag_list(grans, t, n=4):
        o = []
        for g in grans:
            for k in range(n):
                if not o: o.append(f"v_xor_b32 v{t}, v{g+k}, v{TG+k}")
                else: o.append(f"v_bitop3_b32 v{t}, v{t}, v{g+k}, v{TG+k} bitop3:0xf6")
        o.append(f"v_and_b32 v{t}, 0xff, v{t}")
        return o
    def join_list(t, quad=True):
        o = [f"v_or_b32_dpp v{t}, v{t}, v{t} quad_perm:[1,0,3,2] {DPP}"]
        if quad: o.append(f"v_or_b32_dpp v{t}, v{t}, v{t} quad_perm:[2,3,0,1] {DPP}")
        return o
    def tag_check(grans, t, quad=True):
        emit(tag_list(grans, t) + join_list(t, quad))
        a(f"v_cmp_ne_u32 vcc, 0, v{t}")
    def treduce4(r):
        a(f"v_permlane32_swap_b32 v{r}, v{r+2}")
        a(f"v_permlane32_swap_b32 v{r+1}, v{r+3}")
        a(f"v_add_f32 v{r}, v{r}, v{r+2}")
        a(f"v_add_f32 v{r+1}, v{r+1}, v{r+3}")
        a(f"v_permlane16_swap_b32 v{r}, v{r+1}")
        a(f"v_add_f32 v{r}, v{r}, v{r+1}")
    def retry_masked(L, D, sleep=1):
        a("s_and_b64 exec, exec, vcc")
        a(f"s_cbranch_execz {D}")
        if sleep: a(f"s_sleep {sleep}")
        a("s_sub_u32 s60, s60, 1")
        a(f"s_cbranch_scc0 {L}")
        a(f"{D}:")
        a("s_mov_b64 exec, -1")
    def silu_bf16(d, x, t):
        a(f"v_mul_f32 v{t}, 0xbfb8aa3b, v{x}")
        a(f"v_exp_f32 v{t}, v{t}")
        a(f"v_add_f32 v{t}, 1.0, v{t}")
        a(f"v_rcp_f32 v{t}, v{t}")
        a(f"v_mul_f32 v{t}, v{t}, v{x}")
        bf16r(d, t)
    def lds_spin(off, n, vt, sleep=1):
        L = a.label("L_spin")
        a(f"s_mov_b32 s60, {spin_limit}")
        if sleep:
            E = a.label("L_spe")
            a(f"s_branch {E}")
        a(f"{L}:")
        if sleep:
            a(f"s_sleep {sleep}")
            a(f"{E}:")
        a(f"ds_read_b32 v{vt}, v1 offset:{off}")
        a("s_sub_u32 s60, s60, 1")
        a("s_waitcnt lgkmcnt(0)")
        a(f"v_readfirstlane_b32 s61, v{vt}")
        a("s_cselect_b32 s61, -1, s61")
        a(f"s_cmp_lt_u32 s61, {n}")
        a(f"s_cbranch_scc1 {L}")
    def refresh():
        a(f"ds_read_b64 v[12:13], v1 offset:{POST}")
        a("s_waitcnt lgkmcnt(0)")
        a("v_readfirstlane_b32 s96, v12")
        a("v_readfirstlane_b32 s97, v13")
    def need(x, sleep=0, count=True):
        if role[0] == "C": sleep = csleep
        L = a.label("L_need"); D = a.label("L_got")
        a(f"s_cmp_ge_u32 s96, {x}")
        a(f"s_cbranch_scc1 {D}")
        a(f"s_mov_b32 s60, {spin_limit}")
        a(f"{L}:")
        if sleep: a(f"s_sleep {sleep}")
        a(f"ds_read_b64 v[12:13], v1 offset:{POST}")
        a("s_sub_u32 s60, s60, 1")
        a("s_waitcnt lgkmcnt(0)")
        a("v_readfirstlane_b32 s96, v12")
        if count: a("v_readfirstlane_b32 s97, v13")
        a("s_cselect_b32 s96, -1, s96")
        if count: a("s_cselect_b32 s97, 0, s97")
        a(f"s_cmp_lt_u32 s96, {x}")
        a(f"s_cbranch_scc1 {L}")
        a(f"{D}:")
    def light_test():
        a("s_and_b32 s4, s2, 63")
        a("s_cmp_ge_u32 s4, 56")
    def gu_col(d):
        if gumix:
            a("s_lshr_b32 s4, s2, 6")
            a("s_and_b32 s5, s2, 60")
            a(f"s_add_u32 s{d}, s4, s5")
            return
        a("s_lshr_b32 s4, s2, 6")
        a("s_mul_i32 s4, s4, 56")
        a("s_and_b32 s5, s2, 63")
        a("s_add_u32 s4, s4, s5")
        a(f"s_lshr_b32 s{d}, s4, 2")
    def rr_cc(srr, scc):
        a(f"s_and_b32 s{srr}, s2, 7")
        a("s_lshr_b32 s62, s2, 5")
        a("s_lshl_b32 s62, s62, 3")
        a(f"s_or_b32 s{srr}, s{srr}, s62")
        a(f"s_bfe_u32 s{scc}, s2, 0x20003")
    lgp = npool.bit_length() - 1
    def pool_id(d):
        a("s_lshr_b32 s5, s2, 3")
        a("s_add_u32 s5, s5, s2")
        a(f"s_and_b32 s5, s5, {npool-1}")
        a("s_lshr_b32 s4, s2, 6")
        a(f"s_lshl_b32 s4, s4, {lgp}")
        a(f"s_add_u32 s{d}, s4, s5")
    def pool_member(d):
        a("s_bfe_u32 s5, s2, 0x30003")
        a(f"s_lshr_b32 s5, s5, {lgp}")
        a("s_lshl_b32 s5, s5, 3")
        a("s_and_b32 s4, s2, 7")
        a(f"s_add_u32 s{d}, s5, s4")
    def tr_addr(d):
        a("v_lshrrev_b32 v12, 2, v5")
        a("v_lshl_add_u32 v13, v4, 2, v12")
        a("v_bfe_u32 v12, v13, 1, 2")
        a("v_lshlrev_b32 v12, 5, v12")
        a("v_lshl_add_u32 v12, v13, 7, v12")
        a("v_and_b32 v13, 3, v0")
        a(f"v_lshl_add_u32 v{d}, v13, 3, v12")
    def slot_base(d, slot):
        a(f"s_and_b32 s{d}, {slot}, 7")
        a(f"s_lshl_b32 s{d}, s{d}, 14")

    a("s_cmp_ge_u32 s2, 256")
    a("s_cbranch_scc1 L_end")
    a("s_load_dwordx16 s[16:31], s[0:1], 0")
    a("s_load_dwordx8 s[32:39], s[0:1], 64")
    stamp(0)
    if probe: a("s_mov_b32 s67, -1")
    if cpf:
        a("s_getpc_b64 s[4:5]")
        a("L_pc:")
        a("v_subrev_u32 v12, 64, v0")
        a("v_mov_b32 v13, 0")
        a("v_cmp_gt_u32 vcc, (L_codeend-L_pc)/128, v12")
        a("v_lshlrev_b32 v12, 7, v12")
        a("s_and_saveexec_b64 s[6:7], vcc")
        a("s_cbranch_execz L_nopf")
        a("v_lshl_add_u64 v[12:13], v[12:13], 0, s[4:5]")
        a("global_load_dword v16, v[12:13], off offset:64")
        a("L_nopf:")
        a("s_mov_b64 exec, -1")
    a("v_cmp_gt_u32 vcc, 64, v0")
    a("v_lshrrev_b32 v1, 6, v0")
    a("v_and_b32 v0, 63, v0")
    a("v_lshrrev_b32 v2, 3, v0")
    a("v_and_b32 v3, 7, v0")
    a("v_lshrrev_b32 v4, 4, v0")
    a("s_and_b32 s14, s2, 3")
    a("s_mov_b32 s43, 0x20000")
    a("s_cbranch_vccz L_others")

    role[0] = "L"
    a("s_setprio 3")
    a("v_lshrrev_b32 v12, 5, v0")
    a("v_and_b32 v13, 3, v2")
    a("v_lshl_add_u32 v12, v12, 3, v13")
    a("v_lshlrev_b32 v13, 1, v4")
    a("v_xor_b32 v13, v13, v3")
    a("v_lshlrev_b32 v13, 4, v13")
    a("v_lshl_add_u32 v16, v12, 13, v13")
    a("s_lshl_b32 s8, s14, 21")
    a("s_lshr_b32 s5, s2, 2")
    a("s_lshl_b32 s5, s5, 7")
    a("s_add_u32 s8, s8, s5")
    a("s_mov_b32 m0, 0")
    a("s_mov_b32 s42, 8388608")
    a("s_waitcnt lgkmcnt(0)")
    a("s_mov_b64 s[40:41], s[22:23]")
    def wloads(vo, stride):
        for i in range(4):
            ro = (16 * (i & 1) + 4 * (i >> 1)) * stride - 1024 * i
            if i: a(f"s_add_u32 s9, s8, {ro}")
            a(f"buffer_load_dwordx4 v{vo}, s[40:43], s{9 if i else 8} offen offset:{1024*i}{NT} lds")
        a(f"s_add_u32 s8, s8, {32*stride}")
        a("s_add_u32 m0, m0, 4096")
    a("L_ld_q:")
    wloads(16, 8192)
    a("s_cmp_lt_u32 m0, 0x8000")
    a("s_cbranch_scc1 L_ld_q")
    a("s_branch L_loader")
    a("L_others:")
    a("v_readfirstlane_b32 s3, v1")
    a("v_lshlrev_b32 v14, 5, v0")
    a("v_lshlrev_b32 v15, 3, v0")
    a("s_lshl_b32 s10, s14, 9")
    a("s_movk_i32 s42, 2048")
    a("s_xor_b32 s3, s3, 4")
    a("s_cmp_gt_u32 s3, 3")
    a("s_waitcnt lgkmcnt(0)")
    a("s_mov_b64 s[40:41], s[16:17]")
    a(f"s_load_dword s13, s[38:39], {EPOCH}")
    a("s_cbranch_scc1 L_nox")
    a("buffer_load_dwordx4 v[56:59], v14, s[40:43], 0 offen")
    a("buffer_load_dwordx4 v[60:63], v14, s[40:43], 0 offen offset:16")
    a("buffer_load_dwordx2 v[64:65], v15, s[40:43], s10 offen")
    a("L_nox:")
    a("s_barrier")
    a("s_branch L_notloader")
    a("L_loader:")
    mem = 64 // npool; reg = 1024 // npool
    nshared = reg - mem * dyn - 2 * lex
    zone = nshared - ntw * mem + empt
    assert ntw == 2 and dyn + 2 * nshared + 4 <= 512
    a("s_mov_b32 s3, 4")
    a(f"v_mov_b32 v1, {MISC}")
    for k in range(4): a(f"v_mov_b32 v{28+k}, 0")
    a("v_lshl_add_u32 v14, v0, 2, v1")
    a("v_lshl_add_u32 v15, v0, 4, v1")
    a(f"ds_write_b32 v14, v30 offset:{PROG}")
    a(f"ds_write_b128 v15, v[28:31] offset:{TQ}")
    a(f"ds_write_b128 v15, v[28:31] offset:{TQ+1024}")
    pool_id(11)
    pool_member(6)
    if kmap in "DEFGH":
        assert npool == 4
        if kmap == "H":
            a("s_add_u32 s4, s11, s6")
            a("s_and_b32 s4, s4, 3")
            a("s_and_b32 s11, s11, 12")
            a("s_or_b32 s11, s11, s4")
        if kmap == "G":
            a(f"s_mul_i32 s6, s6, {dyn}")
            a("v_add_u32 v15, s6, v0")
        else:
            a("v_lshl_add_u32 v15, v0, 4, s6")
        if lex:
            assert kmap == "E" and lex % 2 == 0
            light_test()
            a(f"s_cselect_b32 s9, {lex}, 0")
            a("s_lshl_b32 s4, s9, 4")
            a("v_subrev_u32 v15, s4, v15")
            a("s_bfe_u32 s4, s2, 0x10002")
            a(f"s_add_u32 s4, s4, {mem*dyn}")
            a("v_lshl_add_u32 v31, v0, 1, s4")
            a("v_cmp_gt_u32 vcc, s9, v0")
            a("v_cndmask_b32 v15, v15, v31, vcc")
        if kmap in "EH":
            a("v_and_b32 v31, 1, v0")
            a("v_xor_b32 v15, v15, v31")
        if kmap == "F":
            a("s_lshr_b32 s7, s11, 1")
            a("s_lshl_b32 s6, s7, 4")
            a("v_add_u32 v15, s6, v15")
            a("v_and_b32 v15, 255, v15")
            a("v_lshrrev_b32 v31, 7, v15")
            a("v_xor_b32 v31, s11, v31")
            a("v_and_b32 v31, 1, v31")
            a("v_lshl_add_u32 v15, v15, 1, v31")
            a("s_lshl_b32 s7, s7, 22")
        else:
            a("s_lshl_b32 s6, s11, 4")
            a("v_add_u32 v15, s6, v15")
            a("v_and_b32 v15, 255, v15")
            a("s_lshl_b32 s7, s11, 21")
        a("v_lshl_add_u32 v15, v15, 13, s7")
    elif kmap == "A":
        a(f"s_mul_i32 s7, s11, {reg*8192}")
        a(f"s_mul_i32 s6, s6, {dyn*8192}")
        a("s_add_u32 s7, s7, s6")
        sh = 13
    elif kmap == "B":
        a(f"s_mul_i32 s7, s11, {reg*8192}")
        a("s_lshl_b32 s6, s6, 13")
        a("s_add_u32 s7, s7, s6")
        sh = 13 + (mem.bit_length() - 1)
    else:
        a(f"s_and_b32 s7, s11, {npool-1}")
        a(f"s_lshl_b32 s6, s6, {lgp}")
        a("s_add_u32 s7, s7, s6")
        a("s_lshl_b32 s7, s7, 13")
        sh = 19
    a(f"v_mov_b32 v31, {BIG}")
    if kmap not in "DEFGH": a(f"v_lshl_add_u32 v15, v0, {sh}, s7")
    if kmap == "C":
        a("s_lshr_b32 s6, s2, 6")
        if rot:
            a(f"s_mul_i32 s7, s6, {rot*8192}")
            a("v_add_u32 v15, s7, v15")
            a("v_and_b32 v15, 0x7fffff, v15")
        a("s_lshl_b32 s6, s6, 23")
        a("v_add_u32 v15, s6, v15")
    a("v_or_b32 v15, 1, v15")
    a("v_readfirstlane_b32 s99, v15")
    a(f"ds_write_b64 v1, v[30:31] offset:{POST}")
    if lex:
        a(f"s_add_u32 s9, s9, {dyn}")
        a("s_bfm_b64 exec, s9, 0")
    else:
        a(f"s_mov_b64 exec, {(1 << dyn) - 1}")
    a(f"ds_write_b32 v14, v15 offset:{TQ}")
    a("s_mov_b64 exec, -1")
    a("s_waitcnt lgkmcnt(0)")
    a("s_barrier")
    if stamps:
        for k in range(1, 16): a(f"s_mov_b32 s{64+2*k}, 0")
    stamp(1)
    def wait_post(w):
        a("v_add_u32 v30, 1, v30")
        a(f"s_waitcnt vmcnt({w})")
        a(f"ds_write_b64 v29, v[30:31] offset:{POST}")
    def unit(vo, srdn, so):
        for i in range(4):
            if half and i == 2: a(f"s_waitcnt vmcnt({win - 4})")
            a(f"buffer_load_dwordx4 v{vo[i]}, s[{srdn}:{srdn+3}], s{so} offen offset:{1024*i}{NT} lds")
        a("s_add_u32 m0, m0, 4096")
        if pace: a(f"s_sleep {pace}")
    a("v_and_b32 v5, 15, v0")
    a("v_lshl_add_u32 v29, v0, 3, v1")
    VG, VD, VK, VV = [40, 41, 42, 43], [44, 45, 46, 47], [20, 21, 22, 23], [24, 25, 24, 25]
    a(f"v_mul_u32_u24 v{VG[0]}, 7168, v12")
    a(f"v_add_u32 v{VG[0]}, v{VG[0]}, v13")
    a(f"v_lshl_add_u32 v{VD[0]}, v12, 11, v13")
    for i in range(1, 4):
        a(f"v_add_u32 v{VG[i]}, {(16 * (i & 1) + 4 * (i >> 1)) * 7168 - 1024 * i}, v{VG[0]}")
        a(f"v_add_u32 v{VD[i]}, {(16 * (i & 1) + 4 * (i >> 1)) * 2048 - 1024 * i}, v{VD[0]}")
    gu_col(6)
    a("s_lshl_b32 s6, s6, 7")
    a(f"s_mul_i32 s7, s14, {256*7168}")
    a("s_add_u32 s12, s7, s6")
    if "w" in abl:
        a("s_lshl_b32 s12, s4, 15")
        for i in range(4):
            a(f"v_lshlrev_b32 v{VG[i]}, 4, v0")
            a(f"v_lshlrev_b32 v{VD[i]}, 4, v0")
    a("s_mov_b32 s8, s12")
    a("s_mov_b32 s42, 7340032")
    a("s_mov_b64 s[40:41], s[28:29]")
    for j in range(4):
        a(f"v_add_u32 v14, {4*j}, v4")
        a("v_xor_b32 v14, v14, v5")
        a("v_lshlrev_b32 v14, 4, v14")
        a(f"v_lshl_add_u32 v{VK[j]}, v4, 8, v14")
    for j in range(2):
        a(f"v_add_u32 v14, {4*j}, v4")
        a("v_lshlrev_b32 v14, 1, v14")
        a("v_xor_b32 v14, v14, v5")
        a("v_lshlrev_b32 v14, 4, v14")
        a(f"v_lshl_add_u32 v{VV[j]}, v4, 8, v14")
    srd(44, 18, 33554432)
    srd(48, 20, 33554432)
    srd(52, 32, 7340032)
    srd(56, 24, 8388608)
    a("s_lshr_b32 s6, s2, 4")
    a(f"s_mul_i32 s96, s6, {224*2048}")
    a("s_and_b32 s6, s2, 15")
    a("s_lshl_b32 s6, s6, 7")
    a("s_add_u32 s96, s96, s6")
    rr_cc(6, 7)
    a("s_lshl_b32 s6, s6, 17")
    a("s_lshl_b32 s7, s7, 9")
    a("s_add_u32 s97, s6, s7")
    if "w" in abl:
        a("s_mul_i32 s96, s2, 28672")
        a("s_lshl_b32 s97, s2, 15")
    a("s_mov_b32 s7, s99")
    a("s_mov_b32 s10, 0")
    a("s_mov_b32 s11, 0")
    a("s_mov_b32 s15, 0")
    a("s_mov_b32 s98, 2")
    a("s_mov_b32 s6, 0x10000")
    light_test()
    w1 = win1 or win
    assert win <= w1 <= 32
    for w in range(28, w1 - 4, -4): wait_post(w)
    a("s_cbranch_scc1 L_ld_kv")
    a("s_mov_b32 s98, 6")
    a("L_ld_gu:")
    wait_post(w1 - 4)
    unit(VG, 40, 8)
    a(f"s_add_u32 s8, s8, {4096 if 'w' in abl else 32*7168}")
    a("s_cmp_lt_u32 m0, s6")
    a("s_cbranch_scc1 L_ld_gu")
    a("s_mov_b32 s8, s12")
    a("s_mov_b64 s[40:41], s[30:31]")
    a("s_mov_b32 s6, 0x18000")
    a("s_cmp_lt_u32 m0, s6")
    a("s_cbranch_scc1 L_ld_gu")
    a("L_ld_kv:")
    stamp(2)
    leak_flag()
    if win1:
        assert n1 <= dyn - ahead
        a("L_ld_tile1:")
        a("s_and_b32 s8, s7, 0xffffe000")
        wait_post(w1 - 4)
        unit(VK, 44, 8)
        a("s_add_u32 s9, s8, 4096")
        a("s_add_u32 s11, s11, 1")
        a("v_mov_b32 v38, s11")
        wait_post(w1 - 4)
        unit(VK, 44, 9)
        a("v_lshl_add_u32 v36, v38, 2, v1")
        a("s_add_u32 s10, s10, 1")
        a("s_add_u32 s98, s98, 1")
        wait_post(w1 - 4)
        unit(VV, 48, 8)
        a(f"ds_read_b128 v[32:35], v1 offset:{PROG}")
        a(f"ds_read_b32 v37, v36 offset:{TQ}")
        wait_post(w1 - 4)
        unit(VV, 48, 9)
        a("s_and_b32 m0, m0, 0x1ffff")
        a(f"s_mov_b32 s60, {spin_limit}")
        a("L_ld_chk1:")
        a("s_waitcnt lgkmcnt(0)")
        a("v_min3_u32 v32, v32, v33, v34")
        a("v_readfirstlane_b32 s7, v37")
        a("v_min_u32 v32, v32, v35")
        a("s_sub_u32 s60, s60, 1")
        a("v_readfirstlane_b32 s4, v32")
        a("s_cselect_b32 s4, s98, s4")
        a("s_add_u32 s4, s4, 8")
        a("s_cmp_gt_u32 s4, s98")
        a("s_cbranch_scc1 L_ld_free1")
        a(f"ds_read_b128 v[32:35], v1 offset:{PROG}")
        a("s_branch L_ld_chk1")
        a("L_ld_free1:")
        a(f"s_cmp_lt_u32 s10, {n1}")
        a("s_cbranch_scc1 L_ld_tile1")
        for w in range(w1 - 4, win - 4, -4): wait_post(w)
    a("L_ld_tile:")
    a("s_and_b32 s8, s7, 0xffffe000")
    wait_post(win - 4)
    unit(VK, 44, 8)
    a("s_add_u32 s9, s8, 4096")
    a("s_bfe_u32 s4, s7, 0x10001")
    a("s_and_b32 s5, s11, 1")
    a("s_lshl_b32 s4, s4, s5")
    a("s_or_b32 s15, s15, s4")
    a("s_add_u32 s11, s11, 1")
    a("s_xor_b32 s5, s5, 1")
    a("s_bitcmp1_b32 s15, s5")
    a("s_addc_u32 s11, s11, 0")
    a("v_mov_b32 v38, s11")
    if spos == 0: a(f"ds_write_b32 v1, v38 offset:{STARTED}")
    wait_post(win - 4)
    unit(VK, 44, 9)
    if spos == 1: a(f"ds_write_b32 v1, v38 offset:{STARTED}")
    a("v_lshl_add_u32 v36, v38, 2, v1")
    a("s_add_u32 s10, s10, 1")
    a("s_cmp_eq_u32 s15, 3")
    a(f"s_cselect_b32 s4, s10, {BIG}")
    a("v_mov_b32 v31, s4")
    a("s_cselect_b32 s4, 4, 1")
    a("s_add_u32 s98, s98, s4")
    wait_post(win - 4)
    unit(VV, 48, 8)
    if spos == 2: a(f"ds_write_b32 v1, v38 offset:{STARTED}")
    def peek():
        a(f"ds_read_b128 v[32:35], v1 offset:{PROG}")
        a(f"ds_read_b32 v37, v36 offset:{TQ}")
    peek()
    wait_post(win - 4)
    unit(VV, 48, 9)
    if spos == 3: a(f"ds_write_b32 v1, v38 offset:{STARTED}")
    a("s_and_b32 m0, m0, 0x1ffff")
    if stamps: a("s_memrealtime s[100:101]")
    a(f"s_mov_b32 s60, {spin_limit}")
    a("L_ld_chk:")
    a("s_waitcnt lgkmcnt(0)")
    a("v_min3_u32 v32, v32, v33, v34")
    a("v_readfirstlane_b32 s5, v37")
    a("v_min_u32 v32, v32, v35")
    a("s_cmp_eq_u32 s15, 3")
    a("v_readfirstlane_b32 s4, v32")
    a("s_cbranch_scc1 L_ld_end")
    a("s_add_u32 s4, s4, 8")
    a("s_cmp_gt_u32 s4, s98")
    a("s_cselect_b32 s7, s5, 0")
    a("s_bitcmp1_b32 s7, 0")
    if stamps:
        a("s_cbranch_scc0 L_ld_again")
        a("s_memrealtime s[62:63]")
        a("s_waitcnt lgkmcnt(0)")
        a("s_sub_u32 s62, s62, s100")
        a("s_add_u32 s88, s88, s62")
        a("s_max_u32 s90, s90, s62")
        a("s_branch L_ld_tile")
    else:
        a("s_cbranch_scc1 L_ld_tile")
    a("L_ld_again:")
    if empt:
        a("s_cmp_eq_u32 s15, 3")
        a("s_cselect_b32 s5, 0, s5")
        a("s_cmp_lg_u32 s5, 2")
        a("s_cbranch_scc1 L_ld_peek")
        a("s_and_b32 s5, s11, 1")
        a("s_bitset1_b32 s15, s5")
        a("s_add_u32 s11, s11, 1")
        a("v_mov_b32 v32, s11")
        a("v_lshl_add_u32 v36, v32, 2, v1")
        a(f"ds_write_b32 v1, v32 offset:{STARTED}")
        a("s_cmp_eq_u32 s15, 3")
        a("s_cbranch_scc0 L_ld_peek")
        a("v_mov_b32 v31, s10")
        a("s_add_u32 s98, s98, 3")
        a("s_cmp_gt_u32 s4, s98")
        a("s_cbranch_scc1 L_ld_go")
        a("L_ld_peek:")
    peek()
    a("s_sub_u32 s60, s60, 1")
    a("s_cbranch_scc0 L_ld_chk")
    a("v_mov_b32 v30, 0x7fffffff")
    a("v_mov_b32 v31, s10")
    a(f"ds_write_b64 v29, v[30:31] offset:{POST}")
    a("s_endpgm")
    a("L_ld_end:")
    a("s_add_u32 s4, s4, 8")
    a("s_cmp_gt_u32 s4, s98")
    a("s_cbranch_scc0 L_ld_again")
    a("L_ld_go:")
    stamp(3)
    if stamps:
        a("s_add_u32 s92, s10, s64")
        a("s_add_u32 s88, s88, s64")
        a("s_add_u32 s90, s90, s64")
    def tail(wn, k0, k1):
        for w in range(win - 4, wn - 4, -4): wait_post(w)
        skip = max(0, (wn - win) // 4)
        for k in range(k0, k1):
            if k - k0 >= skip: wait_post(wn - 4)
            if rk and k1 < 15 and k == k1 - 1: a(f"ds_read_b32 v32, v1 offset:{GATE}")
            if k < 7:
                unit(VD, 52, 96)
                if k < 6: a(f"s_add_u32 s96, s96, {4096 if 'w' in abl else 0x10000}")
            else:
                unit(VD, 56, 97)
                if k < 14: a(f"s_add_u32 s97, s97, {4096 if 'w' in abl else 0x10000 - 384 if k == 10 else 128}")
            if k % 4 == 3: a("s_and_b32 m0, m0, 0x1ffff")
            if k == 6: stamp(4)
        if k1 < 15: return
        stamp(5)
        for w in range(min(wn, win + 4 * (k1 - k0)) - 4, -4, -4): wait_post(w)
        stamp(6)
    ws_ = wins or [win]
    if grow:
        tail(win, 0, grow[0])
        ws_ = [grow[1]]; rk0_ = grow[0]
    elif rk:
        tail(win, 0, rk0)
        a("s_waitcnt lgkmcnt(0)")
        a("v_readfirstlane_b32 s4, v32")
    elif len(ws_) > 1: a("s_bfe_u32 s4, s7, 0x40004")
    for c in range(1, len(ws_)):
        a(f"s_cmp_eq_u32 s4, {c}")
        a(f"s_cbranch_scc1 L_ld_tail{c}")
    for c, wn in enumerate(ws_):
        a(f"L_ld_tail{c}:")
        tail(wn, grow[0] if grow else rk0 if rk else 0, 15)
        if c < len(ws_) - 1: a("s_branch L_ld_done" if (stamps or probe or leak) else "s_endpgm")
    a("L_ld_done:")
    if stamps:
        srd(48, 38, 268435456)
        a("s_getreg_b32 s94, hwreg(HW_REG_XCC_ID)")
        a("s_getreg_b32 s95, hwreg(HW_REG_HW_ID)")
        a("s_and_b32 s94, s94, 15")
        a("s_lshl_b32 s94, s94, 16")
        a("s_and_b32 s95, s95, 0xffff")
        a("s_or_b32 s94, s94, s95")
        a("s_or_b32 s94, s94, 0x1000000")
    dump_stamps(12, 13)
    a("s_endpgm")

    a("L_notloader:")
    if stamps or lite:
        for k in range(1, 16): a(f"s_mov_b32 s{64+2*k}, 0")
    a(f"v_mov_b32 v1, {MISC}")
    a("v_and_b32 v5, 15, v0")
    a("v_lshlrev_b32 v6, 4, v0")
    srd(48, 38, 268435456)
    a("s_mov_b32 s96, 0")
    a(f"s_mov_b32 s97, {BIG}")
    a("s_cmp_eq_u32 s3, 5")
    a("s_cbranch_scc1 L_helper")
    a("s_cmp_gt_u32 s3, 5")
    a("s_cbranch_scc1 L_ticket")

    role[0] = "C"
    XF = 32
    AF = 64
    ACC = 80
    TA = 7
    a("s_setprio 1")
    tr_addr(TA)
    a("s_waitcnt lgkmcnt(0)")
    make_tag()
    a("s_waitcnt vmcnt(0)")
    stamp(1)
    pool_member(6)
    a("s_cmp_lg_u32 s6, 0")
    a("s_cbranch_scc1 L_nozero")
    pool_id(6)
    a("v_mov_b32 v12, 0")
    a("v_lshlrev_b32 v13, 10, v0")
    a(f"s_mul_i32 s7, s6, {cstride}")
    a(f"s_add_u32 s7, s7, {TCN}")
    a("s_mov_b64 exec, 1")
    if sig1 is not None or sig2:
        assert npool == 4
        a("s_cmp_eq_u32 s3, 0")
        a("s_cbranch_scc1 " + ("L_zeroed" if early_t else "L_dozero"))
        a("s_mov_b64 exec, 0xffff")
        a("s_lshr_b32 s4, s6, 2")
        a("s_and_b32 s5, s6, 3")
        if sig1 is not None or rk:
            a("s_lshl_b32 s7, s4, 14")
            a("s_lshl_b32 s8, s5, 8")
            a("s_add_u32 s7, s7, s8")
            a(f"s_add_u32 s7, s7, {AC1}")
            a("s_cmp_eq_u32 s3, 1")
            a("s_cbranch_scc1 L_dozero")
        a("s_lshl_b32 s7, s5, 14")
        a("s_lshl_b32 s8, s4, 8")
        a("s_add_u32 s7, s7, s8")
        a(f"s_add_u32 s7, s7, {AC2}")
        a("v_mov_b32 v12, s13")
        a("s_cmp_eq_u32 s3, 2")
    else:
        a("s_cmp_eq_u32 s3, 0")
    a("s_cbranch_scc0 L_zeroed")
    a("L_dozero:")
    a("buffer_store_dword v12, v13, s[48:51], s7 offen sc1")
    a("L_zeroed:")
    a("s_mov_b64 exec, -1")
    a("L_nozero:")
    for i in range(8):
        a(f"v_lshlrev_b32 v{32+2*i}, 16, v{56+i}")
        a(f"v_and_b32 v{33+2*i}, 0xffff0000, v{56+i}")
    a("v_add_f32 v16, v32, v33")
    a("v_add_f32 v17, v34, v35")
    for i in range(2, 8):
        a(f"v_add_f32 v16, v16, v{32+2*i}")
        a(f"v_add_f32 v17, v17, v{33+2*i}")
    a("v_add_f32 v16, v16, v17")
    emit(row_list("v_add_f32", 16) + cross_list("v_add_f32", 16, 17))
    a("v_mul_f32 v16, 0x3a800000, v16")
    for i in range(16):
        a(f"v_sub_f32 v{32+i}, v{32+i}, v16")
    a("v_mul_f32 v17, v32, v32")
    a("v_mul_f32 v18, v33, v33")
    for i in range(1, 8):
        a(f"v_fmac_f32 v17, v{32+2*i}, v{32+2*i}")
        a(f"v_fmac_f32 v18, v{33+2*i}, v{33+2*i}")
    a("v_add_f32 v17, v17, v18")
    emit(row_list("v_add_f32", 17) + cross_list("v_add_f32", 17, 18))
    a("v_mul_f32 v17, 0x3a800000, v17")
    bf16r(16, 16)
    bf16r(17, 17)
    a("v_add_f32 v17, 0x3727c5ac, v17")
    bf16r(17, 17)
    a("v_sqrt_f32 v17, v17")
    for i in range(2):
        a(f"v_lshlrev_b32 v{18+2*i}, 16, v{64+i}")
        a(f"v_and_b32 v{19+2*i}, 0xffff0000, v{64+i}")
    bf16r(17, 17)
    a("v_rcp_f32 v17, v17")
    for i in range(4): a(f"v_sub_f32 v{18+i}, v{18+i}, v16")
    for i in range(4): bf16r(18 + i, 18 + i)
    for i in range(4): a(f"v_mul_f32 v{18+i}, v{18+i}, v17")
    a("v_cvt_pk_bf16_f32 v18, v18, v19")
    a("v_cvt_pk_bf16_f32 v19, v20, v21")
    a("v_add_u32 v15, v15, v1")
    a(f"ds_write_b64 v15, v[18:19] offset:{XN}")
    a("v_lshl_add_u32 v14, v4, 4, v1")
    for s in range(8):
        a(f"ds_read_b128 v[{XF+4*s}:{XF+4*s+3}], v14 offset:{XN+64*s}")
    stamp(2)
    A1 = 27
    a(f"v_lshl_add_u32 v12, v0, 2, v1")
    a(f"v_add_u32 v12, {SCR}, v12")
    a("v_cmp_eq_u32 vcc, 0, v0")
    a(f"v_cndmask_b32 v{A1}, v12, v1, vcc")
    a("s_lshl_b32 s4, s3, 2")
    a(f"v_add_u32 v28, s4, v{A1}")
    def progress(x):
        a(f"v_mov_b32 v29, {x}")
        a(f"ds_write_b32 v28, v29 offset:{PROG}")
    a("s_lshl_b32 s4, s3, 5")
    a(f"v_xor_b32 v14, s4, v{TA}")
    a("s_lshl_b32 s8, s14, 14")
    a("s_lshl_b32 s9, s3, 6")
    a("s_add_u32 s8, s8, s9")
    gu_col(11)
    a("s_lshl_b32 s11, s11, 8")
    a("s_add_u32 s11, s11, s8")
    a("s_lshr_b32 s9, s2, 2")
    a("s_lshl_b32 s9, s9, 8")
    a("s_add_u32 s9, s9, s8")
    light_test()
    a("s_cselect_b32 s15, 2, 6")
    a("s_mov_b32 s99, 0")
    a("s_mov_b32 s10, 0")
    a("v_lshlrev_b32 v15, 6, v4")
    a("v_and_b32 v15, 3, v0")
    a("v_lshlrev_b32 v15, 6, v15")
    a("L_c_blk:")
    for (s0, s1) in [(0, 4), (4, 6), (6, 8)]:
        a(f"s_add_u32 s10, s10, {s1-s0}")
        need("s10")
        for s in range(s0, s1):
            for t in range(2):
                d = AF + 4 * (s & 3) + 2 * t
                a(f"ds_read_b64_tr_b16 v[{d}:{d+1}], v14 offset:{s*4096+t*2048}")
        a("s_waitcnt lgkmcnt(0)")
        for s in range(s0, s1):
            c = "0" if s == 0 else f"v[{ACC}:{ACC+3}]"
            a(f"v_mfma_f32_16x16x32_bf16 v[{ACC}:{ACC+3}], v[{AF+4*(s&3)}:{AF+4*(s&3)+3}], v[{XF+4*s}:{XF+4*s+3}], {c}")
        if s1 % 4 == 0:
            a("s_add_u32 s99, s99, 1")
            progress("s99")
    a("v_add_u32 v14, 0x8000, v14")
    for k in range(4): a(f"ds_bpermute_b32 v{ACC+k}, v15, v{ACC+k}")
    a("s_waitcnt vmcnt(0) lgkmcnt(0)")
    apply_tag(ACC)
    a("s_mov_b64 exec, 0xf")
    a(f"buffer_store_dwordx4 v[{ACC}:{ACC+3}], v6, s[48:51], s9 offen sc1")
    a("s_mov_b64 exec, -1")
    if stamps or probe or leak:
        a("s_cmp_lg_u32 s99, 2")
        a("s_cbranch_scc1 L_c_ns3")
        stamp(3)
        a("L_c_ns3:")
    a("s_add_u32 s11, s11, 0x10000")
    a("s_mov_b32 s9, s11")
    a("s_cmp_lt_u32 s99, s15")
    a("s_cbranch_scc1 L_c_blk")
    stamp(4)
    leak_flag()
    if qlight:
        light_test()
        a(f"s_cselect_b32 s4, {qlight}, {qstart}")
        need("s4")
    elif qstart: need(qstart)
    a("s_lshr_b32 s4, s2, 6")
    a("s_lshl_b32 s4, s4, 12")
    a("s_lshl_b32 s5, s3, 10")
    a("s_add_u32 s52, s4, s5")
    a("s_add_u32 s53, s52, 16384")
    a("s_add_u32 s54, s52, 32768")
    a("s_add_u32 s55, s52, 49152")
    def q_loads():
        for r in range(1 if "q" in abl else 4):
            a(f"buffer_load_dwordx4 v[{64+4*r}:{67+4*r}], v6, s[48:51], s{52+r} offen sc1")
    q_loads()
    KF = 32; QF = 96; SC = 64; VF = 72; AO = 80
    KA = 112; VA = 116; KC = 120; VC = 118
    S = 16; P = 20; M2, LS, AL = 24, 25, 26
    RL, LB = 30, 31
    A_OP, A_PERM, A_SH, A_G, A_OL, A_SP, A_M, SEL1, SEL2, A_QR, ONE = 128, 129, 130, 131, 132, 133, 134, 138, 139, 140, 141
    for m in range(4):
        a(f"v_add_u32 v12, {4*m}, v4")
        a("v_xor_b32 v12, v12, v5")
        a("v_lshlrev_b32 v12, 4, v12")
        a(f"v_lshl_add_u32 v{KA+m}, v5, 8, v12")
    a("v_lshrrev_b32 v12, 2, v5")
    a("v_lshl_add_u32 v12, v4, 2, v12")
    a("v_and_b32 v15, 3, v0")
    a("v_lshlrev_b32 v13, 3, v15")
    a("v_lshl_add_u32 v13, v12, 8, v13")
    a("v_add_u32 v13, 8192, v13")
    a("v_and_b32 v12, 7, v12")
    a("s_lshl_b32 s4, s3, 1")
    for n in range(2):
        a(f"s_add_u32 s5, s4, {n}")
        a("v_xor_b32 v14, s5, v12")
        a(f"v_lshl_add_u32 v{VA+n}, v14, 5, v13")
    a(f"v_mov_b32 v{M2}, 0xff7fffff")
    a(f"v_mov_b32 v{LS}, 0")
    for i in range(8): a(f"v_mov_b32 v{AO+i}, 0")
    a("v_cmp_lt_u32 s[100:101], 7, v5")
    a(f"s_mov_b32 s12, {LOG2E}")
    a(f"v_mul_u32_u24 v14, {QROW}, v3")
    a("v_lshl_add_u32 v14, v4, 4, v14")
    a(f"v_add_u32 v{A_QR}, v14, v1")
    a(f"v_mov_b32 v{ONE}, 1")
    a(f"v_lshlrev_b32 v14, {9+ow}, v2")
    if opw:
        a("v_and_b32 v13, 4, v0")
        a("v_lshl_add_u32 v14, v13, 4, v14")
    a(f"v_lshl_add_u32 v{A_OP}, v3, 4, v14")
    a("v_lshlrev_b32 v13, 4, v15")
    a("v_and_b32 v14, 4, v0")
    a("v_lshl_add_u32 v13, v14, 1, v13")
    a("v_add_u32 v13, v13, v2")
    a(f"v_lshlrev_b32 v{A_PERM}, 2, v13")
    a(f"v_lshlrev_b32 v{A_SH}, 3, v4")
    TO = 143
    a("v_bfe_i32 v12, v0, 4, 1")
    a(f"v_and_b32 v12, {TAGX}, v12")
    a(f"v_xor_b32 v{TO}, s13, v12")
    for k in range(1, 3): a(f"v_lshrrev_b32 v{TO+k}, {8*k}, v{TO}")
    a(f"s_mul_i32 s4, s2, {RSO}")
    a(f"s_lshl_b32 s5, s3, {7+ow}")
    a("s_add_u32 s4, s4, s5")
    a(f"s_add_u32 s44, s4, {OP}")
    rr_cc(4, 5)
    a(f"s_mul_i32 s8, s4, {RSS}")
    a(f"s_lshl_b32 s9, s5, {10+sw}")
    a("s_add_u32 s8, s8, s9")
    a(f"s_lshl_b32 s9, s3, {8+sw}")
    a("s_add_u32 s8, s8, s9")
    a(f"s_add_u32 s45, s8, {SP}")
    if cgate:
        a("s_lshl_b32 s8, s4, 8")
        a(f"s_add_u32 s8, s8, {OCN}")
        a("s_add_u32 s58, s38, s8")
        a("s_addc_u32 s59, s39, 0")
        a("s_lshr_b32 s8, s2, 6")
        a("s_lshl_b32 s8, s8, 12")
        a(f"s_add_u32 s46, s8, {OCN}")
        a("v_lshlrev_b32 v142, 8, v0")
    a("s_lshr_b32 s8, s4, 4")
    a(f"s_mul_i32 s8, s8, {64*RSO}")
    a("s_and_b32 s9, s4, 15")
    a(f"s_lshl_b32 s9, s9, {8+ow}")
    a("s_add_u32 s8, s8, s9")
    a(f"s_lshl_b32 s9, s3, {6+ow}")
    a("s_add_u32 s8, s8, s9")
    a(f"s_add_u32 s16, s8, {OP}")
    a(f"s_add_u32 s17, s16, {RSO}")
    a(f"s_add_u32 s18, s16, {2*RSO}")
    a(f"s_add_u32 s19, s16, {3*RSO}")
    a("v_lshrrev_b32 v13, 2, v0")
    a(f"v_mul_u32_u24 v13, {4*RSO}, v13")
    a(f"v_lshl_add_u32 v{A_G}, v15, 4, v13")
    a("v_lshl_add_u32 v12, v4, 4, v1")
    a(f"v_add_u32 v12, {OL}, v12")
    a(f"v_add_u32 v13, {ZER}, v1")
    for u in range(4):
        a(f"v_cmp_eq_u32 vcc, {u}, v15")
        a(f"v_cndmask_b32 v{A_M+u}, v13, v12, vcc")
    a("s_lshl_b32 s4, s3, 5")
    a("v_lshl_add_u32 v13, v4, 1, v1")
    a("v_lshl_add_u32 v13, v15, 3, v13")
    a(f"v_add_u32 v{A_OL}, s4, v13")
    a("v_lshlrev_b32 v13, 4, v5")
    a(f"v_lshl_add_u32 v{A_SP}, v4, {6+sw}, v13")
    a("v_and_b32 v12, 1, v0")
    a("v_cmp_eq_u32 vcc, 1, v12")
    a("v_mov_b32 v12, 0x06020400")
    a("v_mov_b32 v13, 0x03070105")
    a(f"v_cndmask_b32 v{SEL1}, v12, v13, vcc")
    a("v_and_b32 v12, 2, v0")
    a("v_cmp_eq_u32 vcc, 2, v12")
    a("v_mov_b32 v12, 0x05040100")
    a("v_mov_b32 v13, 0x03020706")
    a(f"v_cndmask_b32 v{SEL2}, v12, v13, vcc")
    a("s_mov_b32 s20, 0x0c0c0400")
    a("s_mov_b32 s21, 0x05040100")
    L = a.label("L_q"); D = a.label("L_qd")
    a(f"s_mov_b32 s60, {spin_limit}")
    a("s_branch L_q_wait")
    a(f"{L}:")
    q_loads()
    a("L_q_wait:")
    a("s_waitcnt vmcnt(0)")
    tag_check([64] if "q" in abl else [64, 68, 72, 76], 12)
    retry_masked(L, D, qsleep)
    stamp(5)
    for k in range(4): a(f"v_add_f32 v{64+k}, v{64+k}, v{68+k}")
    for k in range(4): a(f"v_add_f32 v{72+k}, v{72+k}, v{76+k}")
    for k in range(4): a(f"v_add_f32 v{64+k}, v{64+k}, v{72+k}")
    a("v_cvt_pk_bf16_f32 v64, v64, v65")
    a("v_cvt_pk_bf16_f32 v65, v66, v67")
    a("v_lshrrev_b32 v12, 5, v0")
    a("s_lshl_b32 s4, s3, 1")
    a("v_add_u32 v12, s4, v12")
    a(f"v_mul_u32_u24 v12, {QROW}, v12")
    a("v_and_b32 v13, 31, v0")
    a("v_lshl_add_u32 v12, v13, 3, v12")
    a("v_add_u32 v12, v12, v1")
    a(f"ds_write_b64 v12, v[64:65] offset:{QL}")
    a(f"ds_add_u32 v{A1}, v{ONE} offset:{QCNT}")
    lds_spin(QCNT, 7 if early_t else 5, 12, 0)
    for m in range(4):
        a(f"ds_read_b128 v[{QF+4*m}:{QF+4*m+3}], v{A_QR} offset:{QL+64*m}")
    stamp(6)
    def k_reads():
        for m in range(4): a(f"v_add_u32 v{KC+m}, s4, v{KA+m}")
        for t in range(2):
            for m in range(4):
                d = KF + 16 * t + 4 * m
                a(f"ds_read_b128 v[{d}:{d+3}], v{KC+m} offset:{4096*t}")
    def v_addr():
        for n in range(2): a(f"v_add_u32 v{VC+n}, s5, v{VA+n}")
    def v_reads():
        for n in range(2):
            for t in range(2):
                d = VF + 4 * n + 2 * t
                a(f"ds_read_b64_tr_b16 v[{d}:{d+1}], v{VC+n} offset:{4096*t}")
    def qk_list():
        out = []
        for t in range(2):
            for m in range(4):
                d = KF + 16 * t + 4 * m
                c = "0" if m == 0 else f"v[{SC+4*t}:{SC+4*t+3}]"
                out.append(f"v_mfma_f32_16x16x32_bf16 v[{SC+4*t}:{SC+4*t+3}], v[{d}:{d+3}], v[{QF+4*m}:{QF+4*m+3}], {c}")
        return out
    def softmax_list():
        o = []
        for k in range(4): o.append(f"v_cndmask_b32 v{S+k}, v{SC+k}, v{SC+4+k}, s[100:101]")
        for k in range(4): o.append(f"v_cvt_pk_bf16_f32 v{S+k}, 0, v{S+k}")
        for k in range(4): o.append(f"v_mul_f32 v{S+k}, {SCALE}, v{S+k}")
        for k in range(4): o.append(f"v_cvt_pk_bf16_f32 v{S+k}, 0, v{S+k}")
        o.append(f"v_max3_f32 v14, v{S}, v{S+1}, v{S+2}")
        o.append(f"v_max_f32 v14, v14, v{S+3}")
        o.append("MARK")
        o += row_list("v_max_f32", 14, (8,)) + cross_list("v_max_f32", 14, 15)
        o.append("v_mul_f32 v14, s12, v14")
        o.append(f"v_max_f32 v14, v14, v{M2}")
        o.append(f"v_sub_f32 v{AL}, v{M2}, v14")
        o.append(f"v_mov_b32 v{M2}, v14")
        o.append(f"v_exp_f32 v{AL}, v{AL}")
        for k in range(4): o.append(f"v_fma_f32 v{S+k}, v{S+k}, s12, -v14")
        for k in range(4): o.append(f"v_exp_f32 v{S+k}, v{S+k}")
        for i in range(4): o.append(f"v_mul_f32 v{AO+i}, v{AL}, v{AO+i}")
        o.append(f"v_cvt_pk_bf16_f32 v{P}, v{S}, v{S+1}")
        o.append(f"v_cvt_pk_bf16_f32 v{P+1}, v{S+2}, v{S+3}")
        for i in range(4, 8): o.append(f"v_mul_f32 v{AO+i}, v{AL}, v{AO+i}")
        o.append(f"v_mov_b32_dpp v{P+2}, v{P} row_ror:8 {DPP}")
        o.append(f"v_mov_b32_dpp v{P+3}, v{P+1} row_ror:8 {DPP}")
        o.append(f"v_add_f32 v14, v{S}, v{S+1}")
        o.append(f"v_add_f32 v15, v{S+2}, v{S+3}")
        o.append("v_add_f32 v14, v14, v15")
        o.append(f"v_fma_f32 v{LS}, v{LS}, v{AL}, v14")
        return o
    def pv():
        for n in range(2):
            a(f"v_mfma_f32_16x16x32_bf16 v[{AO+4*n}:{AO+4*n+3}], v[{VF+4*n}:{VF+4*n+3}], v[{P}:{P+3}], v[{AO+4*n}:{AO+4*n+3}]")
    def arrive():
        Ln = a.label("L_noarr")
        a("s_cmp_lg_u32 s3, 0")
        a(f"s_cbranch_scc1 {Ln}")
        a("s_mov_b64 exec, 0xffff")
        a(f"buffer_atomic_add v{ONE}, v142, s[48:51], s46 offen sc1")
        a("s_mov_b64 exec, -1")
        a(f"{Ln}:")
    a("s_add_u32 s10, s10, 2")
    a("s_mov_b32 s11, 0")
    a("s_branch L_c_k")
    a("L_c_fast:")
    slot_base(5, "s99")
    a("s_add_u32 s99, s99, 1")
    slot_base(4, "s99")
    v_addr()
    v_reads()
    k_reads()
    sm = softmax_list(); i = sm.index("MARK")
    emit(sm[:i])
    a("s_waitcnt lgkmcnt(0)")
    progress("s99")
    rest = sm[i + 1:]; q = qk_list()
    pos = {0: 1, 1: 0, 2: 1, 4: 0, 5: 2, 9: 1, 12: 1, 16: 1, 20: 1}
    for j, x in enumerate(rest):
        for _ in range(pos.get(j, 0)): a(q.pop(0))
        a(x)
    assert not q
    pv()
    a("L_c_top:")
    a("s_add_u32 s11, s11, 1")
    a("s_add_u32 s10, s10, 4")
    a("s_cmp_ge_u32 s11, s97")
    a("s_cbranch_scc1 L_c_slow")
    a("s_cmp_ge_u32 s96, s10")
    a("s_cbranch_scc1 L_c_fast")
    refresh()
    a("s_cmp_ge_u32 s96, s10")
    a("s_cbranch_scc1 L_c_fast")
    a("L_c_slow:")
    if stamps or probe or leak: stamp(8)
    slot_base(5, "s99")
    v_addr()
    emit([x for x in softmax_list() if x != "MARK"])
    a(f"v_mov_b32 v{RL}, v{LS}")
    emit(row_list("v_add_f32", RL, (8,)) + cross_list("v_add_f32", RL, 15))
    a(f"v_log_f32 v{LB}, v{RL}")
    a(f"v_rcp_f32 v{RL}, v{RL}")
    a("s_sub_u32 s6, s10, 2")
    a(f"v_add_f32 v{LB}, v{LB}, v{M2}")
    a(f"v_lshrrev_b32 v{LB}, v{A_SH}, v{LB}")
    if stamps or probe or leak: stamp(9)
    need("s6")
    v_reads()
    a("s_add_u32 s99, s99, 1")
    a("s_cmp_ge_u32 s11, s97")
    a("s_cbranch_scc1 L_c_last")
    a("s_waitcnt lgkmcnt(0)")
    pv()
    progress("s99")
    a("L_c_k:")
    need("s10")
    slot_base(4, "s99")
    k_reads()
    q = qk_list()
    for j in range(8):
        if not (stamps or probe or leak): a(f"s_waitcnt lgkmcnt({7-j})")
        elif j == 0: a("s_waitcnt lgkmcnt(0)")
        a(q[j])
    a("s_branch L_c_top")
    a("L_c_last:")
    if sig1 is not None and s1pos == "last": a(f"ds_add_u32 v{A1}, v{ONE} offset:{PCNT}")
    a("s_waitcnt lgkmcnt(0)")
    pv()
    progress("s99")
    for k in range(4): a(f"v_mov_b32_dpp v{AO+k}, v{AO+4+k} row_ror:8 row_mask:0xf bank_mask:0xc")
    for k in range(4):
        a(f"v_mul_f32 v{AO+k}, v{RL}, v{AO+k}")
    apply_tag(AO, [TO, TO + 1, TO + 2, LB])
    for k in range(4): a(f"ds_bpermute_b32 v{AO+k}, v{A_PERM}, v{AO+k}")
    a("s_waitcnt lgkmcnt(0)")
    a(f"buffer_store_dwordx4 v[{AO}:{AO+3}], v{A_OP}, s[48:51], s44 offen sc1")
    if sig1 is not None and s1pos == "store": a(f"ds_add_u32 v{A1}, v{ONE} offset:{PCNT}")
    stamp(10)
    PD, WF, BF, WA = 64, 32, 96, 88
    a("s_lshl_b32 s99, s99, 2")
    a("s_add_u32 s22, s99, s3")
    a("s_add_u32 s22, s22, 8")
    a("s_add_u32 s23, s22, 4")
    for st in range(2):
        a(f"s_sub_u32 s4, s{22+st}, 1")
        a("s_and_b32 s4, s4, 31")
        a("s_lshl_b32 s4, s4, 12")
        for u in range(4):
            a(f"v_xor_b32 v14, {32*u}, v{TA}")
            a(f"v_add_u32 v{WA+4*st+u}, s4, v14")
    def wo_reads(st):
        for u in range(4):
            for t in range(2):
                d = WF + 8 * u + 4 * st + 2 * t
                a(f"ds_read_b64_tr_b16 v[{d}:{d+1}], v{WA+4*st+u} offset:{t*2048}")
    stamp(11)
    assert gate >= 15 - (win // 4 - 1)
    a(f"s_add_u32 s10, s99, {gate}")
    need("s10", count=False)
    stamp(14)
    def o_loads():
        for i in range(4):
            a(f"buffer_load_dwordx4 v[{PD+4*i}:{PD+4*i+3}], v{A_G}, s[48:51], s{16+i} offen sc1")
    if sig1 is not None:
        a(f"ds_read_b32 v14, v1 offset:{GO}")
        a("s_waitcnt lgkmcnt(0)")
        a("v_readfirstlane_b32 s4, v14")
        a("s_cmp_eq_u32 s4, 0")
        a("s_cbranch_scc1 L_o_notyet")
    o_loads()
    need("s22", count=False)
    wo_reads(0)
    need("s23", count=False)
    wo_reads(1)
    a(f"s_mov_b32 s60, {spin_limit}")
    if sigpos != "chk":
        a(f"s_waitcnt vmcnt({0 if sigpos == 'arr' else 3})")
        a(f"ds_add_u32 v{A1}, v{ONE} offset:{GCNT}")
    a("L_o_chk:")
    fill = tag_list(range(PD, PD + 16, 4), 12, n=3)
    a("s_waitcnt vmcnt(2)")
    a(f"v_perm_b32 v16, v{PD+7}, v{PD+3}, s20")
    a("s_waitcnt vmcnt(0)")
    chain = [f"v_perm_b32 v17, v{PD+15}, v{PD+11}, s20", "v_perm_b32 v16, v17, v16, s21",
             f"v_mov_b32_dpp v17, v16 quad_perm:[1,0,3,2] {DPP}", f"v_perm_b32 v16, v17, v16, v{SEL1}",
             f"v_mov_b32_dpp v17, v16 quad_perm:[2,3,0,1] {DPP}", f"v_perm_b32 v18, v17, v16, v{SEL2}",
             f"v_max_f32_dpp v16, v18, v18 row_ror:1 {DPP}"] + row_list("v_max_f32", 16, (2, 4, 8)) + cross_list("v_max_f32", 16, 17)
    fill += ["s_nop 0", f"v_or_b32_dpp v12, v12, v12 quad_perm:[1,0,3,2] {DPP}", "s_nop 0", f"v_or_b32_dpp v12, v12, v12 quad_perm:[2,3,0,1] {DPP}"]
    emit(interleave(chain, fill, {1: 2, 3: 2, 5: 2, 6: 2, 7: 2, 8: 2, 10: 2, 13: 2}))
    a("v_cmp_ne_u32 vcc, 0, v12")
    a("v_sub_f32 v18, v18, v16")
    a("v_exp_f32 v18, v18")
    a("s_cbranch_vccnz L_o_again")
    a("L_o_done:")
    if sig2 and sigpos == "chk": a(f"ds_add_u32 v{A1}, v{ONE} offset:{GCNT}")
    stamp(12)
    fm = [f"v_mul_f32_dpp v{20+k}, v18, v{PD+k} quad_perm:[0,0,0,0] {DPP}" for k in range(4)]
    for i in range(1, 4):
        fm += [f"v_fmac_f32_dpp v{20+k}, v18, v{PD+4*i+k} quad_perm:[{i},{i},{i},{i}] {DPP}" for k in range(4)]
    wsum = [f"v_add_f32_dpp v16, v18, v18 row_ror:1 {DPP}"] + row_list("v_add_f32", 16, (2, 4, 8)) + cross_list("v_add_f32", 16, 17) + ["v_rcp_f32 v16, v16"]
    red = ["v_permlane32_swap_b32 v20, v22", "v_permlane32_swap_b32 v21, v23", "v_add_f32 v20, v20, v22", "v_add_f32 v21, v21, v23",
           "v_permlane16_swap_b32 v20, v21", "v_add_f32 v20, v20, v21"] + row_list("v_add_f32", 20, (4, 8))
    emit(interleave(fm + red, wsum, {3: 1, 7: 1, 11: 1, 15: 2, 19: 2, 21: 1, 22: 2}))
    a("v_mul_f32 v20, v20, v16")
    a("v_cvt_pk_bf16_f32 v20, v20, v20")
    a(f"ds_write_b16 v{A_OL}, v20 offset:{OL}")
    a(f"ds_add_u32 v{A1}, v{ONE} offset:{OCNT}")
    a(f"s_mov_b32 s60, {spin_limit}")
    a("L_x:")
    a(f"ds_read_b32 v12, v1 offset:{OCNT}")
    for u in range(4):
        for st in range(2):
            d = BF + 8 * u + 4 * st
            a(f"ds_read_b128 v[{d}:{d+3}], v{A_M+u} offset:{64*st}")
    a("s_sub_u32 s60, s60, 1")
    a("s_waitcnt lgkmcnt(0)" if (stamps or probe or leak) else "s_waitcnt lgkmcnt(8)")
    a("v_readfirstlane_b32 s61, v12")
    a("s_cselect_b32 s61, -1, s61")
    a("s_cmp_lt_u32 s61, 4")
    a("s_cbranch_scc1 L_x")
    for u in range(4):
        for st in range(2):
            if not (stamps or probe or leak): a(f"s_waitcnt lgkmcnt({7-2*u-st})")
            c = "0" if u + st == 0 else f"v[{ACC}:{ACC+3}]"
            a(f"v_mfma_f32_16x16x32_bf16 v[{ACC}:{ACC+3}], v[{WF+8*u+4*st}:{WF+8*u+4*st+3}], v[{BF+8*u+4*st}:{BF+8*u+4*st+3}], {c}")
    setexec(0x000f000f, 0x000f000f)
    apply_tag(ACC)
    a(f"buffer_store_dwordx4 v[{ACC}:{ACC+3}], v{A_SP}, s[48:51], s45 offen sc1")
    stamp(13)
    dump_stamps(12, 13)
    a("s_endpgm")
    if sig1 is not None:
        a("L_o_notyet:")
        need("s22", count=False)
        wo_reads(0)
        need("s23", count=False)
        wo_reads(1)
        lds_spin(GO, 1, 12, 0)
        o_loads()
        a(f"s_mov_b32 s60, {spin_limit}")
        a("s_branch L_o_chk")
    a("L_o_again:")
    a("s_sub_u32 s60, s60, 1")
    a("s_cbranch_scc1 L_o_done")
    if osleep: a(f"s_sleep {osleep}")
    a("s_mov_b64 exec, vcc")
    o_loads()
    a("s_mov_b64 exec, -1")
    a("s_branch L_o_chk")

    role[0] = "H"
    a("L_helper:")
    srd(56, 34, 2048)
    a("v_mov_b32 v12, 1")
    a("s_waitcnt lgkmcnt(0)")
    a("s_mov_b64 exec, 1")
    a(f"ds_add_u32 v1, v12 offset:{QCNT}")
    a("s_mov_b64 exec, -1")
    make_tag()
    a("s_lshr_b32 s4, s2, 4")
    a("s_mul_i32 s4, s4, 896")
    a(f"s_add_u32 s8, s4, {GP}")
    a("s_add_u32 s9, s8, 0x10000")
    a("v_add_u32 v14, -2, v5")
    a("v_cmp_gt_u32 vcc, 14, v5")
    a("v_cndmask_b32 v14, v14, v5, vcc")
    a("v_lshlrev_b32 v15, 4, v14")
    a("v_lshl_add_u32 v15, v4, 14, v15")
    a("v_lshlrev_b32 v14, 3, v14")
    a("v_lshl_add_u32 v14, v4, 1, v14")
    a("v_add_u32 v14, v14, v1")
    leak_flag()
    if leak:
        for x in leak:
            if x[0] == "H" and x[1]: a(f"s_mov_b32 s{64+2*x[1]}, 0")
    if hstart: need(hstart, sleep=8)
    else: lds_spin(QCNT, 7 if early_t else 5, 12, 8)
    stamp(1)
    L = a.label("L_h"); D = a.label("L_hd")
    a(f"s_mov_b32 s60, {spin_limit}")
    a(f"{L}:")
    for w in range(0 if "h" in abl else 4):
        a(f"buffer_load_dwordx4 v[{32+8*w}:{35+8*w}], v15, s[48:51], s8 offen offset:{224*w} sc1")
        a(f"buffer_load_dwordx4 v[{36+8*w}:{39+8*w}], v15, s[48:51], s9 offen offset:{224*w} sc1")
    a("s_waitcnt vmcnt(0)")
    tag_check(range(32, 64, 4), 12, quad=False)
    if "h" in abl: a("s_mov_b64 vcc, 0")
    retry_masked(L, D, 16)
    stamp(2)
    for w in range(4):
        g = 32 + 8 * w; u = g + 4
        treduce4(g)
        treduce4(u)
        bf16r(g, g)
        bf16r(u, u)
        silu_bf16(g, g, 12)
        a(f"v_mul_f32 v{g}, v{g}, v{u}")
        a(f"v_cvt_pk_bf16_f32 v{g}, v{g}, v{g}")
        a(f"ds_write_b16 v14, v{g} offset:{HL+112*w}")
    a("s_and_b32 s4, s2, 7")
    a("s_lshr_b32 s5, s2, 6")
    a("s_lshl_b32 s5, s5, 3")
    a("s_or_b32 s4, s4, s5")
    a("s_lshl_b32 s4, s4, 1")
    a("s_bfe_u32 s5, s2, 0x10005")
    a("s_add_u32 s4, s4, s5")
    if sig2:
        a("s_lshl_b32 s5, s4, 10")
        a(f"s_add_u32 s5, s5, {AC2}")
        a("s_add_u32 s52, s38, s5")
        a("s_addc_u32 s53, s39, 0")
        a("s_lshl_b32 s47, s13, 2")
        a("s_add_u32 s47, s47, 64")
    a(f"s_lshl_b32 s5, s4, {6+sw}")
    for i in range(8 if fatom else 4): a(f"s_add_u32 s{20+i}, s5, {SP + i*RSS}")
    a("s_lshl_b32 s5, s4, 6")
    a(f"s_add_u32 s45, s5, {FP}")
    a("s_lshr_b32 s46, s4, 2")
    a("s_lshl_b32 s46, s46, 7")
    a("s_and_b32 s5, s4, 3")
    a("s_lshl_b32 s5, s5, 3")
    a("s_add_u32 s46, s46, s5")
    a("v_lshrrev_b32 v12, 2, v0")
    a("v_and_b32 v13, 3, v0")
    a(f"v_mul_u32_u24 v19, {RS}, v12")
    if fatom:
        a(f"v_mul_u32_u24 v18, {8*RSS}, v2")
        a("v_lshl_add_u32 v18, v3, 3, v18")
        a("v_bfe_i32 v23, v0, 1, 1")
        a(f"v_and_b32 v23, {TAGX}, v23")
        a("v_xor_b32 v23, s13, v23")
        a("v_and_b32 v16, 1, v0")
        a("v_lshlrev_b32 v16, 4, v16")
        a("v_lshrrev_b32 v16, v16, v23")
        a("v_lshrrev_b32 v17, 8, v16")
        a("v_lshrrev_b32 v23, 5, v0")
        a("v_and_b32 v100, 1, v0")
        a("v_lshl_add_u32 v23, v100, 1, v23")
        a("v_bfe_u32 v100, v0, 1, 2")
        a("v_lshlrev_b32 v101, 6, v23")
        a("v_lshl_add_u32 v101, v100, 2, v101")
        a("v_lshlrev_b32 v23, 1, v23")
        a("v_lshl_add_u32 v23, v100, 5, v23")
    else:
        a(f"v_mul_u32_u24 v18, {4*RSS}, v12")
        a("v_lshl_add_u32 v18, v13, 4, v18")
    a("v_lshl_add_u32 v19, v13, 4, v19")
    a("v_lshlrev_b32 v20, 5, v13")
    a("v_lshl_add_u32 v20, v4, 1, v20")
    if fatom: a("v_mov_b32 v20, v23")
    a("buffer_load_ushort v22, v20, s[40:43], s46 offen")
    a("s_lshr_b32 s4, s2, 4")
    a(f"s_mul_i32 s4, s4, {RS}")
    a("s_and_b32 s5, s2, 15")
    a("s_lshl_b32 s5, s5, 8")
    a("s_add_u32 s4, s4, s5")
    a(f"s_add_u32 s15, s4, {FP}")
    a("v_lshlrev_b32 v21, 4, v5")
    a("v_lshl_add_u32 v21, v4, 6, v21")
    tr_addr(TA)
    for u in range(4): a(f"v_xor_b32 v{28+u}, {32*u}, v{TA}")
    a("v_lshl_add_u32 v14, v4, 4, v1")
    a("v_and_b32 v12, 1, v0")
    a("v_cmp_eq_u32 s[8:9], 1, v12")
    a("v_and_b32 v12, 2, v0")
    a("v_cmp_eq_u32 s[6:7], 2, v12")
    CA = 64; HF = 48
    for k in range(16): a(f"v_mov_b32 v{CA+k}, 0")
    stamp(3)
    L = a.label("L_nt"); D = a.label("L_ntd")
    a(f"s_mov_b32 s60, {spin_limit}")
    a(f"{L}:")
    refresh()
    a(f"s_cmp_lg_u32 s97, {BIG}")
    a(f"s_cbranch_scc1 {D}")
    a("s_sleep 4")
    a("s_sub_u32 s60, s60, 1")
    a(f"s_cbranch_scc0 {L}")
    a(f"{D}:")
    light_test()
    a("s_cselect_b32 s10, 2, 6")
    a("s_add_u32 s10, s10, s97")
    a("s_lshl_b32 s10, s10, 2")
    a("s_mov_b32 s11, 0")
    need("s10", sleep=2)
    a("s_setprio 2")
    a("L_h_step:")
    a("s_and_b32 s4, s10, 31")
    a("s_lshl_b32 s4, s4, 12")
    for u in range(4): a(f"v_add_u32 v{24+u}, s4, v{28+u}")
    a(f"ds_read_b128 v[{HF}:{HF+3}], v14 offset:{HL}")
    a("v_add_u32 v14, 64, v14")
    a("s_add_u32 s10, s10, 1")
    need("s10")
    stamp(4)
    for u in range(4):
        for t in range(2):
            d = 32 + 4 * u + 2 * t
            a(f"ds_read_b64_tr_b16 v[{d}:{d+1}], v{24+u} offset:{t*2048}")
    for u in range(4):
        if not (stamps or probe or leak): a(f"s_waitcnt lgkmcnt({6-2*u})")
        elif u == 0: a("s_waitcnt lgkmcnt(0)")
        a(f"v_mfma_f32_16x16x32_bf16 v[{CA+4*u}:{CA+4*u+3}], v[{32+4*u}:{35+4*u}], v[{HF}:{HF+3}], v[{CA+4*u}:{CA+4*u+3}]")
    a("s_add_u32 s11, s11, 1")
    a("s_cmp_lt_u32 s11, 7")
    a("s_cbranch_scc1 L_h_step")
    for k in range(4): a(f"v_cndmask_b32 v{CA+k}, v{CA+k}, v{CA+4+k}, s[8:9]")
    for k in range(4): a(f"v_cndmask_b32 v{CA+8+k}, v{CA+8+k}, v{CA+12+k}, s[8:9]")
    for k in range(4): a(f"v_cndmask_b32 v{CA+k}, v{CA+k}, v{CA+8+k}, s[6:7]")
    apply_tag(CA)
    setexec(0x000f000f, 0x000f000f)
    a(f"buffer_store_dwordx4 v[{CA}:{CA+3}], v21, s[48:51], s15 offen sc1")
    a("s_mov_b64 exec, -1")
    a("s_setprio 0")
    stamp(5)
    a("s_and_b32 s4, s2, 0x18")
    a("s_cbranch_scc1 L_hend")
    def f_math():
        treduce4(96)
        emit(row_list("v_add_f32", 96, (4, 8)))
        bf16r(96, 96)
        silu_bf16(96, 96, 12)
        a("v_lshlrev_b32 v22, 16, v22")
    if flate:
        lds_spin(GCNT, 4, 12, 1)
        a("buffer_load_dwordx4 v[96:99], v19, s[48:51], s45 offen sc1")
    else:
        a("s_add_u32 s10, s10, 8")
        need("s10", sleep=1)
        L = a.label("L_f"); D = a.label("L_fd")
        a(f"s_mov_b32 s60, {spin_limit}")
        a(f"{L}:")
        a("buffer_load_dwordx4 v[96:99], v19, s[48:51], s45 offen sc1")
        a("s_waitcnt vmcnt(0)")
        tag_check([96], 12)
        retry_masked(L, D, 2)
        stamp(12)
        f_math()
    if sig2:
        a(f"s_mov_b32 s60, {spin_limit}")
        a("L_h_watch:")
        for k in range(4): a(f"s_load_dword s{28+k}, s[52:53], {256*k} glc")
        a("s_sub_u32 s60, s60, 1")
        a("s_cbranch_scc1 L_h_go")
        a("s_waitcnt lgkmcnt(0)")
        a("s_add_u32 s28, s28, s29")
        a("s_add_u32 s30, s30, s31")
        a("s_add_u32 s28, s28, s30")
        a("s_cmp_lg_u32 s28, s47")
        a("s_cbranch_scc1 L_h_watch")
        a("L_h_go:")
    else:
        lds_spin(OCNT, 4, 12, 1)
    def s_loads():
        for i in range(4):
            a(f"buffer_load_dwordx4 v[{80+4*i}:{83+4*i}], v18, s[48:51], s{20+i} offen sc1")
    s_loads()
    stamp(6)
    if flate:
        L = a.label("L_f"); D = a.label("L_fd")
        a(f"s_mov_b32 s60, {spin_limit}")
        a("s_waitcnt vmcnt(4)")
        a("s_branch L_f_chk")
        a(f"{L}:")
        a("buffer_load_dwordx4 v[96:99], v19, s[48:51], s45 offen sc1")
        a("s_waitcnt vmcnt(0)")
        a("L_f_chk:")
        tag_check([96], 12)
        retry_masked(L, D, 0)
        f_math()
    a(f"s_mov_b32 s60, {spin_limit}")
    a("L_s_chk:")
    tl = tag_list([80, 84, 88, 92], 12)
    a("s_waitcnt vmcnt(3)")
    emit(tl[0:4])
    a("s_waitcnt vmcnt(2)")
    emit(tl[4:8])
    for k in range(4): a(f"v_add_f32 v{100+k}, v{80+k}, v{84+k}")
    a("s_waitcnt vmcnt(1)")
    emit(tl[8:12])
    for k in range(4): a(f"v_add_f32 v{100+k}, v{100+k}, v{88+k}")
    a("s_waitcnt vmcnt(0)")
    for k in range(4): a(f"v_add_f32 v{100+k}, v{100+k}, v{92+k}")
    red = ["v_permlane32_swap_b32 v100, v102", "v_permlane32_swap_b32 v101, v103", "v_add_f32 v100, v100, v102", "v_add_f32 v101, v101, v103",
           "v_permlane16_swap_b32 v100, v101", "v_add_f32 v100, v100, v101"] + row_list("v_add_f32", 100, (4, 8))
    a(tl[12])
    emit(interleave(red, tl[13:] + join_list(12), {3: 2, 5: 2, 6: 1}))
    a("v_cmp_ne_u32 vcc, 0, v12")
    bf16r(100, 100)
    a("v_mul_f32 v100, v100, v96")
    a("s_cbranch_vccnz L_s_again")
    a("L_s_done:")
    stamp(13)
    bf16r(100, 100)
    a("v_add_f32 v100, v100, v22")
    a("v_cvt_pk_bf16_f32 v80, v100, v100")
    setexec(0x000f000f, 0x000f000f)
    if leak:
        a("s_cmp_lg_u32 s95, 0")
        a("s_cselect_b32 s58, 0, s58")
    a(f"buffer_store_short v80, v20, s[56:59], s46 offen{outsc}")
    stamp(14)
    a("s_cmp_eq_u32 s2, 0")
    a("s_cbranch_scc0 L_hend")
    a("s_mov_b64 exec, 1")
    a(f"s_mov_b32 s4, {EPOCH}")
    a(f"buffer_store_dword v{TG}, v0, s[48:51], s4 offen{outsc}")
    if leak:
        a("v_mov_b32 v12, 0x600df00d")
        a("buffer_store_dword v12, v0, s[48:51], s4 offen offset:4")
    a("L_hend:")
    dump_stamps(12, 13)
    if late is not None:
        a("s_mov_b64 exec, 0xff")
        a("s_lshl_b32 s4, s2, 7")
        a("s_add_u32 s4, s4, 0x800000")
        a(f"buffer_store_dwordx4 v[8:11], v6, s[48:51], s4 offen {late}")
    a("s_endpgm")

    a("L_s_again:")
    a("s_sub_u32 s60, s60, 1")
    a("s_cbranch_scc1 L_s_done")
    a("s_mov_b64 exec, vcc")
    s_loads()
    a("s_mov_b64 exec, -1")
    a("s_branch L_s_chk")

    role[0] = "T"
    a("L_ticket:")
    pool_id(11)
    if kmap in "DEFGH":
        if kmap == "F":
            a("s_lshr_b32 s9, s11, 1")
            a("s_lshl_b32 s12, s9, 4")
            a("s_lshl_b32 s9, s9, 22")
            a("s_mov_b32 s8, s11")
        else:
            a("s_lshl_b32 s12, s11, 4")
            a("s_lshl_b32 s9, s11, 21")
        a(f"s_add_u32 s12, s12, {mem*dyn + 2*lex}")
        a("s_or_b32 s9, s9, 1")
        if kmap == "H":
            a("s_and_b32 s8, s11, 3")
            a("s_and_b32 s9, s11, 12")
    elif kmap == "C":
        a(f"s_and_b32 s12, s11, {npool-1}")
        a("s_lshr_b32 s9, s2, 6")
        a(f"s_mul_i32 s4, s9, {rot}")
        a("s_add_u32 s12, s12, s4")
        a("s_lshl_b32 s12, s12, 13")
        a(f"s_add_u32 s12, s12, {64*dyn*8192 + 1}")
        a("s_lshl_b32 s9, s9, 23")
    else:
        a(f"s_mul_i32 s12, s11, {reg*8192}")
        a(f"s_add_u32 s12, s12, {mem*dyn*8192 + 1}")
    a(f"s_mul_i32 s11, s11, {cstride}")
    a(f"s_add_u32 s11, s11, {TCN}")
    a("s_add_u32 s56, s38, s11")
    a("s_addc_u32 s57, s39, 0")
    a(f"s_add_u32 s10, s3, {dyn - 6}")
    if lex:
        light_test()
        a(f"s_cselect_b32 s4, {lex}, 0")
        a("s_add_u32 s10, s10, s4")
    if early_t:
        a("s_waitcnt lgkmcnt(0)")
        a("s_add_u32 s13, s13, 0x01010101")
        a(f"s_xor_b32 s14, s13, {TAGX}")
        a("v_mov_b32 v12, 1")
        a("s_mov_b64 exec, 1")
        a(f"ds_add_u32 v1, v12 offset:{QCNT}")
        pool_member(6)
        a("s_add_u32 s6, s6, s3")
        a("s_cmp_lg_u32 s6, 6")
        a("s_cbranch_scc1 L_t_noinit")
        a("v_mov_b32 v20, 0")
        a("v_mov_b32 v21, s13")
        a("v_mov_b32 v22, s14")
        a("v_mov_b32 v23, s13")
        a("buffer_store_dwordx4 v[20:23], v0, s[48:51], s11 offen sc1")
        a("L_t_noinit:")
        a("s_mov_b64 exec, -1")
        a(f"s_sub_u32 s11, s10, {ahead}")
        a("s_max_i32 s11, s11, 0")
        light_test()
        a("s_cselect_b32 s4, 4, 14")
        need("s4", sleep=4, count=False)
        a(f"s_mov_b32 s60, {spin_limit}")
        a("L_t_rdy:")
        a("s_load_dwordx4 s[28:31], s[56:57], 0 glc")
        a("s_sub_u32 s60, s60, 1")
        a("s_cbranch_scc1 L_t_next")
        a("s_waitcnt lgkmcnt(0)")
        a("s_xor_b32 s29, s29, s13")
        a("s_xor_b32 s30, s30, s14")
        a("s_xor_b32 s31, s31, s13")
        a("s_or_b32 s29, s29, s30")
        a("s_or_b32 s29, s29, s31")
        a("s_cbranch_scc0 L_t_next")
        a("s_sleep 8")
        a("s_branch L_t_rdy")
    else:
        lds_spin(QCNT, 5, 12, 8)
    if touch:
        a("s_cmp_eq_u32 s3, 6")
        a("s_cselect_b64 s[40:41], s[32:33], s[24:25]")
        a("s_cselect_b32 s42, 7340032, s43")
        a("s_cselect_b32 s42, s42, 8388608")
        a("s_cselect_b64 exec, 0x7f, 3")
        rr_cc(6, 7)
        a("s_lshl_b32 s6, s6, 17")
        a("s_lshr_b32 s7, s2, 4")
        a(f"s_mul_i32 s7, s7, {224*2048}")
        a("s_cmp_eq_u32 s3, 6")
        a("s_cselect_b32 s6, s7, s6")
        a("v_lshlrev_b32 v14, 16, v0")
        a("buffer_load_dword v17, v14, s[40:43], s6 offen nt")
        a("s_mov_b64 exec, -1")
    a("L_t_next:")
    a(f"s_sub_u32 s11, s10, {ahead - 1}")
    lds_spin(STARTED, "s11", 12, tsleep)
    a("s_mov_b32 s15, 1")
    a("s_atomic_add s15, s[56:57], 0 glc")
    a("s_lshl_b32 s4, s10, 2")
    a("v_add_u32 v14, s4, v1")
    a("s_waitcnt lgkmcnt(0)")
    if not empt: a(f"s_min_u32 s15, s15, {nshared-1}")
    if kmap in "DEFGH":
        if kmap == "H":
            a("s_add_u32 s5, s15, s8")
            a("s_and_b32 s5, s5, 3")
            a("s_or_b32 s5, s5, s9")
            a("s_and_b32 s4, s15, -4")
            a("s_add_u32 s4, s4, s8")
            a(f"s_add_u32 s4, s4, {mem*dyn}")
            a("s_lshl4_add_u32 s4, s5, s4")
        else:
            a("s_add_u32 s4, s15, s12")
        a("s_and_b32 s4, s4, 255")
        if kmap == "F":
            a("s_lshr_b32 s5, s4, 7")
            a("s_xor_b32 s5, s5, s8")
            a("s_and_b32 s5, s5, 1")
            a("s_lshl_b32 s4, s4, 1")
            a("s_add_u32 s4, s4, s5")
        a("s_lshl_b32 s4, s4, 13")
        if kmap == "H":
            a("s_lshl_b32 s5, s5, 21")
            a("s_add_u32 s4, s4, s5")
            a("s_or_b32 s4, s4, 1")
        else:
            a("s_add_u32 s4, s4, s9")
    else:
        a(f"s_lshl_b32 s4, s15, {13 + (lgp if kmap == 'C' else 0)}")
        a("s_add_u32 s4, s4, s12")
    if kmap == "C":
        a("s_and_b32 s4, s4, 0x7fffff")
        a("s_add_u32 s4, s4, s9")
    if ztab:
        tab = sum(g << (4 * i) for i, g in enumerate(ztab))
        a(f"s_sub_u32 s5, s15, {zone}")
        a("s_and_b32 s5, s5, 0x1c")
        a(f"s_lshr_b32 s5, {tab}, s5")
        a("s_and_b32 s5, s5, 15")
        a("s_lshl_b32 s5, s5, 4")
        a("s_or_b32 s4, s4, s5")
    if empt:
        a(f"s_cmp_lt_u32 s15, {nshared}")
        a("s_cselect_b32 s4, s4, 0")
    a(f"s_add_u32 s10, s10, {ntw}")
    a(f"s_cmp_lt_u32 s15, {zone}")
    a("s_cselect_b32 s5, 0, 2")
    a("v_mov_b32 v15, s4")
    a("v_or_b32 v15, s5, v15")
    a(f"ds_write_b32 v14, v15 offset:{TQ}")
    a("s_cbranch_scc1 L_t_next")
    if sig1 is not None or sig2:
        L = a.label("L_nt"); D = a.label("L_ntd")
        a(f"s_mov_b32 s60, {spin_limit}")
        a(f"{L}:")
        refresh()
        a(f"s_cmp_lg_u32 s97, {BIG}")
        a(f"s_cbranch_scc1 {D}")
        a("s_sleep 2")
        a("s_sub_u32 s60, s60, 1")
        a(f"s_cbranch_scc0 {L}")
        a(f"{D}:")
        light_test()
        a("s_cselect_b32 s10, 2, 6")
        a("s_add_u32 s10, s10, s97")
        a("s_lshl_b32 s10, s10, 2")
        a("s_cmp_eq_u32 s3, 6")
        a("s_cbranch_scc1 L_t_zero")
    if rk:
        pool_id(6)
        a("s_lshr_b32 s4, s6, 2")
        a("s_lshl_b32 s7, s4, 14")
        if not rkgrp:
            a("s_and_b32 s5, s6, 3")
            a("s_lshl_b32 s8, s5, 8")
            a("s_add_u32 s7, s7, s8")
        a(f"s_add_u32 s7, s7, {AC1}")
        a("s_add_u32 s56, s38, s7")
        a("s_addc_u32 s57, s39, 0")
        a("s_mov_b32 s15, 1")
        a(f"s_add_u32 s11, s10, {rkat & 0xffffffff}")
        need("s11", sleep=1)
        a("s_atomic_add s15, s[56:57], 0 glc")
        tab = sum(g << (2 * i) for i, g in enumerate(rk))
        a(f"s_mov_b32 s6, {tab}")
        a("s_waitcnt lgkmcnt(0)")
        if rkgrp: a("s_lshr_b32 s15, s15, 2")
        a("s_lshl_b32 s15, s15, 1")
        a("s_lshr_b32 s6, s6, s15")
        a("s_and_b32 s6, s6, 3")
        a("v_mov_b32 v15, s6")
        a(f"ds_write_b32 v1, v15 offset:{GATE}")
    if sig1 is not None:
        pool_id(6)
        a("s_lshr_b32 s4, s6, 2")
        a("s_and_b32 s5, s6, 3")
        a("s_lshl_b32 s7, s4, 14")
        a("s_lshl_b32 s8, s5, 8")
        a("s_add_u32 s7, s7, s8")
        a(f"s_add_u32 s7, s7, {AC1}")
        a("s_add_u32 s56, s38, s7")
        a("s_addc_u32 s57, s39, 0")
        a("s_mov_b32 s15, 1")
        a("s_sub_u32 s11, s10, 2")
        need("s11", sleep=1)
        lds_spin(PCNT, sig1, 12, 0)
        for i in range(16): a(f"s_atomic_add s15, s[56:57], {1024*i}")
    if sig1 is not None or sig2:
        a("s_endpgm")
        a("L_t_zero:")
        rr_cc(6, 7)
    if sig1 is not None:
        a("s_lshl_b32 s5, s6, 10")
        a(f"s_add_u32 s5, s5, {AC1}")
        a("s_add_u32 s56, s38, s5")
        a("s_addc_u32 s57, s39, 0")
        a("v_mov_b32 v15, 1")
        a(f"s_add_u32 s11, s10, {s1from}")
        need("s11", sleep=1)
        L = a.label("L_w"); D = a.label("L_wd")
        a(f"s_mov_b32 s60, {spin_limit}")
        a(f"{L}:")
        for k in range(4): a(f"s_load_dword s{28+k}, s[56:57], {256*k} glc")
        a("s_waitcnt lgkmcnt(0)")
        a("s_add_u32 s28, s28, s29")
        a("s_add_u32 s30, s30, s31")
        a("s_add_u32 s28, s28, s30")
        a("s_cmp_eq_u32 s28, 64")
        a(f"s_cbranch_scc1 {D}")
        a("s_sub_u32 s60, s60, 1")
        a(f"s_cbranch_scc0 {L}")
        a(f"{D}:")
        a(f"ds_write_b32 v1, v15 offset:{GO}")
    if sig2:
        a("s_lshl_b32 s7, s7, 14")
        a("s_lshr_b32 s5, s2, 6")
        a("s_lshl_b32 s5, s5, 8")
        a("s_add_u32 s7, s7, s5")
        a(f"s_add_u32 s7, s7, {AC2}")
        a("v_mov_b32 v15, 1")
        a("v_lshlrev_b32 v14, 10, v0")
        a("s_add_u32 s10, s10, 15")
        need("s10", sleep=1)
        lds_spin(OCNT if sig2late else GCNT, gneed, 12, 0)
        a("s_mov_b64 exec, 0xffff")
        a("buffer_atomic_add v15, v14, s[48:51], s7 offen sc1")
    a("L_end:")
    a("s_endpgm")
    a("L_codeend:")
    name = NAME + "_kernel"
    hdr = open("cdna_kernels/" + NAME + ".s.ref").read().split("; Override launch")[0]
    txt = hdr + header([f"@launch grid=(256,1,1) block=({64*(6+ntw)},1,1) lds={LDS_BYTES}"]) + kernel_begin(name) + a.text() + rodata() + \
        kernel_desc(name, 152, 102, extra="  .amdhsa_float_denorm_mode_32 3\n")
    return txt

BASE = dict(gate=13, sig2=True, dyn=11, lex=4, empt=14, flate=True, qstart=36, qlight=28, hstart=56, grow=(8, 32))
if __name__ == "__main__":
    V = {
        "k21": {},
        "k21g14": dict(gate=14),
        "k21a": dict(sig1=1, gate=12),
        "k21b": dict(sig1=4, gate=12),
        "k21c": dict(sig1=1, gate=10, s1from=6),
        "k21d": dict(sig1=4, gate=11, s1from=7, s1pos="store"),
        "k21e": dict(sig1=1, gate=13, s1from=10),
    }
    for k, v in V.items():
        v = dict(BASE, **v)
        open(k + ".s", "w").write(gen(**v))
        open(k + "_st.s", "w").write(gen(stamps=True, **v))
        open(k + "_lt.s", "w").write(gen(lite=True, **v))
```

```python
import re
NAME = "recurrent_scan__gqa_block_cached__swiglu_ffn__decode"

def regs_of(op):
    op = op.strip()
    op = re.sub(r"^-", "", op)
    m = re.fullmatch(r"abs\((.*)\)", op) or re.fullmatch(r"\|(.*)\|", op)
    if m: op = m.group(1)
    m = re.fullmatch(r"([vsa])(\d+)", op)
    if m: return {(m.group(1), int(m.group(2)))}
    m = re.fullmatch(r"([vsa])\[(\d+):(\d+)\]", op)
    if m: return {(m.group(1), i) for i in range(int(m.group(2)), int(m.group(3)) + 1)}
    if op == "vcc": return {("s", 106), ("s", 107)}
    if op == "vcc_lo": return {("s", 106)}
    if op == "vcc_hi": return {("s", 107)}
    if op == "exec": return {("s", 126), ("s", 127)}
    if op == "exec_lo": return {("s", 126)}
    if op == "exec_hi": return {("s", 127)}
    if op == "m0": return {("s", 124)}
    return set()

VCC = {("s", 106), ("s", 107)}
EXEC = {("s", 126), ("s", 127)}
TRANS = ("v_exp_f32", "v_log_f32", "v_rcp_f32", "v_rsq_f32", "v_sqrt_f32", "v_sin_f32", "v_cos_f32", "v_rcp_iflag_f32")

class Ins:
    def __init__(self, text):
        self.text = text
        t = text.split(";")[0].strip()
        self.label = None
        self.op = ""
        self.w = set(); self.r = set()
        self.kind = "other"
        self.dpp = False
        if t.endswith(":"):
            self.label = t[:-1]; self.kind = "label"; return
        if not t or t.startswith("."):
            self.kind = "none"; return
        parts = t.split(None, 1)
        op = parts[0]; self.op = op
        rest = parts[1] if len(parts) > 1 else ""
        ops = [x.strip() for x in re.split(r",(?![^\[]*\])", rest)] if rest else []
        if ops:
            last = ops[-1].split()
            self.mods = last[1:]
            ops[-1] = last[0] if last else ""
        else:
            self.mods = []
        self.ops = ops
        R = [regs_of(o) for o in ops]
        allr = lambda l: set().union(*l) if l else set()
        if op.startswith("v_mfma"):
            self.kind = "mfma"; self.w = R[0]; self.a = R[1]; self.b = R[2]; self.c = R[3]; self.r = R[1] | R[2] | R[3]
            self.passes = 4 if "16x16x32" in op or "16x16x16" in op else 8
        elif op.startswith("v_"):
            self.kind = "valu"
            self.dpp = "_dpp" in op
            base = op.replace("_dpp", "").replace("_e32", "").replace("_e64", "").replace("_sdwa", "")
            self.base = base
            if base.startswith("v_permlane"):
                self.w = R[0] | R[1]; self.r = R[0] | R[1]
            elif base.startswith("v_cmpx"):
                self.w = R[0] | EXEC; self.r = allr(R[1:])
            elif base in ("v_add_co_u32", "v_sub_co_u32", "v_addc_co_u32", "v_subb_co_u32", "v_div_scale_f32", "v_mad_u64_u32"):
                self.w = R[0] | R[1]; self.r = allr(R[2:])
            elif base in ("v_nop",):
                pass
            else:
                self.w = R[0]; self.r = allr(R[1:])
                if base.startswith(("v_fmac", "v_pk_fmac", "v_dot2c", "v_writelane")) or self.dpp or "_sdwa" in op:
                    self.r |= R[0]
        elif op.startswith(("buffer_", "global_")):
            self.kind = "vmem"
            if "load" in op:
                if "lds" in self.mods or "_lds_" in op:
                    self.r = allr(R) | {("s", 124)}; self.ldsdma = True
                else:
                    self.w = R[0]; self.r = allr(R[1:])
            else:
                self.r = allr(R)
                if "atomic" in op and "sc0" in self.mods: self.w = R[0]
                if re.search(r"store_dwordx[34]", op):
                    self.wide = R[0] if op.startswith("buffer_") else R[1]
        elif op.startswith("ds_"):
            self.kind = "ds"
            if op.startswith(("ds_read", "ds_bpermute", "ds_permute", "ds_swizzle")) or "_rtn_" in op:
                self.w = R[0]; self.r = allr(R[1:])
            else:
                self.r = allr(R)
        elif op.startswith("s_"):
            self.kind = "salu"
            if op in ("s_nop",): self.kind = "nop"
            elif op.startswith(("s_cbranch", "s_branch")): self.kind = "branch"; self.target = ops[0]
            elif op == "s_endpgm": self.kind = "end"
            elif op.startswith(("s_cmp", "s_bitcmp", "s_waitcnt", "s_barrier", "s_sleep", "s_setprio")):
                self.r = allr(R)
            else:
                self.w = R[0] if R else set(); self.r = allr(R[1:])
                if "saveexec" in op: self.w |= EXEC
    def states(self):
        if self.kind in ("label", "none"): return 0
        if self.kind == "nop": return int(self.ops[0], 0) + 1
        return 1

def vonly(s): return {x for x in s if x[0] in "va"}
def sonly(s): return {x for x in s if x[0] == "s"}

def required(p, c):
    n = 0
    if p.kind == "valu":
        pv = vonly(p.w); ps = sonly(p.w)
        if c.kind == "mfma":
            if pv & c.r: n = max(n, 2)
            if ps & EXEC: n = max(n, 4)
        if c.kind == "valu":
            if c.dpp and (pv & c.r): n = max(n, 2)
            if c.dpp and (ps & EXEC): n = max(n, 5)
            if c.base.startswith("v_permlane") and (pv & c.r): n = max(n, 2)
            if c.base.startswith("v_permlane") and (ps & EXEC): n = max(n, 4)
            if c.base in ("v_readlane_b32", "v_readfirstlane_b32") and (pv & c.r): n = max(n, 1)
            if c.base in ("v_readlane_b32", "v_readfirstlane_b32", "v_writelane_b32"):
                if ps & EXEC: n = max(n, 4)
                if ps & c.r: n = max(n, 4)
            if ps & c.r: n = max(n, 2)
            if c.base == "v_div_fmas_f32" and (ps & VCC): n = max(n, 4)
            if p.base in TRANS and (pv & c.r): n = max(n, 1)
            if ("_sdwa" in p.op or "op_sel" in p.text) and (pv & (c.r | c.w)): n = max(n, 1)
        if c.kind == "vmem" and (ps & c.r): n = max(n, 5)
        if c.kind in ("vmem", "ds") and p.base in TRANS and (pv & c.r): n = max(n, 1)
        if c.kind in ("salu", "branch") and (ps & (c.r | (VCC if "vcc" in c.op else set()))): n = max(n, 1)
    if p.kind == "mfma":
        big = {4: 8, 8: 12}[p.passes]
        if c.kind == "mfma":
            if p.w & (c.a | c.b): n = max(n, big)
            if p.w & c.c:
                if not (p.w == c.c and p.passes == c.passes): n = max(n, big - 2)
            elif p.w & c.w: n = max(n, big)
        elif c.kind in ("valu", "vmem", "ds"):
            if p.w & (c.r | c.w): n = max(n, big)
            if c.kind == "valu" and (p.c & c.w): n = max(n, {4: 3, 8: 7}[p.passes])
    if p.kind == "vmem" and hasattr(p, "wide"):
        if c.kind in ("valu", "mfma") and (p.wide & c.w): n = max(n, 2)
        elif p.wide & c.w: n = max(n, 1)
    if p.kind == "salu" and ("s", 124) in p.w and getattr(c, "ldsdma", False): n = max(n, 1)
    return n

class Asm:
    def __init__(self):
        self.ins = []
        self.nlabel = 0
    comments = False
    def __call__(self, s=""):
        tail = ""
        if self.comments:
            import sys, linecache
            f = sys._getframe(1); first = True; chain = []
            while f is not None and f.f_code.co_filename == sys._getframe(1).f_code.co_filename and f.f_code.co_name != "<module>":
                chain.append((f.f_code.co_filename, f.f_lineno)); f = f.f_back
            seen = self.__dict__.setdefault("seen", set())
            for fn, ln in reversed(chain):
                k = ln - 1; pre = []
                while True:
                    t = linecache.getline(fn, k).strip()
                    if t.startswith("#"): pre.append((k, t.lstrip("# ").rstrip()))
                    elif re.match(r"(for |if |else:|elif |assert |role\[|[A-Za-z_0-9, ]+ = )", t) and not pre: pass
                    else: break
                    k -= 1
                for k, t in reversed(pre):
                    if (fn, k) not in seen:
                        seen.add((fn, k)); self.ins.append(Ins("; " + t))
            m = re.search(r"\)\s+# (.*)$", linecache.getline(*chain[0]).rstrip())
            if m: tail = m.group(1)
        for l in s.split("\n"):
            l = l.strip()
            if l: self.ins.append(Ins(l + (" " * max(1, 60 - len(l)) + "; " + tail if tail and not l.endswith(":") else "")))
    def label(self, base="L"):
        self.nlabel += 1
        return f"{base}_{self.nlabel}"
    def fix(self):
        added = 0
        i = 0
        while i < len(self.ins):
            ins = self.ins
            c = ins[i]
            if c.kind in ("label", "none", "nop", "end"):
                i += 1; continue
            branches = {}
            for k, x in enumerate(ins):
                if x.kind == "branch": branches.setdefault(x.target, []).append(k)
            need = 0
            stack = [(i - 1, 0, True)]
            seen = set()
            while stack:
                k, d, fall = stack.pop()
                if k < 0 or d >= 14 or (k, d) in seen: continue
                seen.add((k, d))
                p = ins[k]
                if fall and (p.kind == "end" or p.op == "s_branch"): continue
                if p.kind == "label":
                    for b in branches.get(p.label, []): stack.append((b, d, False))
                    stack.append((k - 1, d, True)); continue
                need = max(need, required(p, c) - d)
                stack.append((k - 1, d + p.states(), True))
            if need > 0:
                self.ins.insert(i, Ins(f"s_nop {need-1}"))
                added += 1
                i += 1
            i += 1
        return added
    def text(self):
        self.fix()
        out = []
        for x in self.ins:
            out.append(x.text if x.kind == "label" else "    " + x.text)
        return "\n".join(out) + "\n"

def header(launch_lines):
    return "".join(f"; {l}\n" for l in launch_lines) + '.amdgcn_target "amdgcn-amd-amdhsa--gfx950"\n.text\n'

def kernel_begin(name):
    return f".globl {name}\n.p2align 8\n.type {name},@function\n{name}:\n"

def kernel_desc(name, vgpr, sgpr, accum=None, extra=""):
    if accum is None:
        accum = min(256, (vgpr + 3) // 4 * 4)
    return f""".amdhsa_kernel {name}
  .amdhsa_next_free_vgpr {vgpr}
  .amdhsa_next_free_sgpr {sgpr}
  .amdhsa_accum_offset {accum}
  .amdhsa_group_segment_fixed_size 0
  .amdhsa_kernarg_size 96
  .amdhsa_user_sgpr_count 2
  .amdhsa_user_sgpr_kernarg_segment_ptr 1
  .amdhsa_system_sgpr_workgroup_id_x 1
{extra}.end_amdhsa_kernel
"""

def rodata():
    return '.section .rodata,"a"\n.p2align 6\n'
```

```python
import sys
from asmlib import *

QP, GP, CNT, OCN, EPOCH, SP, FP, OP, STAMP = 0, 0x10000, 0x30000, 0x34000, 0x3F000, 0x40000, 0xD0000, 0x100000, 0x400000
MISC = 0x20000
TQ, STARTED, GATE, GCNT, PCNT = 0x1100, 0x21C, 0x220, 0x224, 0x228
POST, PROG, QCNT, OCNT, GO, ZER, XN, HL, OL, QL = 0, 0x200, 0x210, 0x214, 0x218, 0x240, 0x300, 0x500, 0x700, 0x800
QROW = 272
SCR = 0x1700
SB = 0x1B00
LDS_BYTES = MISC + 0x3B00
TCN, AC1, AC2 = 0x340000, 0x390000, 0x3A0000
LOG2E = 0x3fb8aa3b
SCALE = 0x3db504f3
DPP = "row_mask:0xf bank_mask:0xf"
BIG = -1
TAGX = 0x5ac3a569

DOC = """
;
;
; Hand-offs between workgroups go through d_ws with write-through stores (sc1) and sc1 loads:
;   f partials [16][1024], all fp32. Each 16-byte granule carries this launch's tag in the low byte of its words and
;   is only accepted together with the neighbours stored by the same instruction. The tag is the word found at
;   The counters in d_ws (tickets, arrival hints) are reset inside the launch before the q hand-off that precedes their use.
"""

def interleave(chain, fill, gaps):
    out = []; fill = list(fill)
    for i, x in enumerate(chain):
        out.append(x)
        for _ in range(gaps.get(i, 0)):
            if fill: out.append(fill.pop(0))
    return out + fill

def gen(nt="nt", stamps=False, spin_limit=2000000, win=24, dyn=10, npool=4, outsc="", gate=10, skew=128, vtick=False,
        fsleep=0, osleep=1, qsleep=4, probe=None, cgate=False, early=True, ahead=2, ntw=2, cstride=256, late=None, gtab=None, ztab=None, wtab=None, spw=False, opw=False, fatom=False, leak=None, fine=False, wins=None, csleep=0, pace=0, pnop=0, cpf=True, sig1=None, sig2=False, touch=False, sig2late=False, lite=False, half=False, dup2=False, kmap='E', rot=0, early_t=False, empt=0, spos=0, abl='', win1=None, n1=9, hstart=0, qstart=0, sigpos='chk', gneed=4, flate=False, qlight=None, lex=0, gumix=False, w2=False, rk=None, rk0=4, rkgrp=False, rkat=-5, grow=None, tsleep=1, shardrd=False, s1pos='last', s1from=9, two=False, prot=16, dmap=False, fw=None, stouch=None, ofirst=True, pfn=None, comments=False, otouch=None, ost='sc1', old_='sc1', sched=None, wide=None, cmap='', ush=28, gui=False):
    a = Asm()
    a.comments = comments
    sw = 1 if spw else 0
    ow = 1 if opw else 0
    RS = 4096 + skew
    RSS = (4096 << sw) + skew
    RSO = (4096 << ow) + skew
    NT = " " + nt if nt else ""
    role = ["-"]
    def stamp(k):
        if lite and (k == 0 or (role[0], k) == ("H", 14)): a(f"s_memrealtime s[{64+2*k}:{65+2*k}]")
        if stamps or (leak and (k == 0 or (role[0], k) in [x[:2] for x in leak])): a(f"s_memrealtime s[{64+2*k}:{65+2*k}]")
        if probe and (k == 0 or (role[0], k) == probe[:2]): a(f"s_memrealtime s[{64+2*min(k,1)}:{65+2*min(k,1)}]")
    def leak_out():
        if not leak: return
        mine = [(i, x) for i, x in enumerate(leak) if x[0] == role[0]]
        Ln = a.label("L_noleak")
        a("s_waitcnt lgkmcnt(0)")
        srd(48, 38, 268435456)
        a("s_mov_b64 exec, 1")
        a("s_cmp_eq_u32 s93, 0")
        a(f"s_cbranch_scc1 {Ln}")
        for i, x in mine:
            if len(x) > 2:
                Ls = a.label("L_lk")
                a(f"s_cmp_lg_u32 s3, {x[2]}")
                a(f"s_cbranch_scc1 {Ls}")
            a(f"s_and_b32 s4, s{64+2*x[1]}, 0x3fff")
            a("v_mov_b32 v12, s4")
            a("s_lshl_b32 s4, s2, 3")
            a(f"s_add_u32 s4, s4, {2*i + 0x500000}")
            a("buffer_store_short v12, v0, s[48:51], s4 offen")
            if len(x) > 2: a(f"{Ls}:")
        a(f"{Ln}:")
        if role[0] == "H":
            Ln = a.label("L_noleak")
            a("s_cmp_eq_u32 s95, 0")
            a(f"s_cbranch_scc1 {Ln}")
            srd(52, 34, 2048)
            a("s_lshl_b32 s4, s2, 3")
            a("s_add_u32 s5, s4, 0x500000")
            a("buffer_load_dwordx2 v[12:13], v0, s[48:51], s5 offen")
            a("s_waitcnt vmcnt(0)")
            a("buffer_store_dwordx2 v[12:13], v0, s[52:55], s4 offen")
            a(f"{Ln}:")
    def leak_flag():
        if not leak: return
        a(f"s_load_dword s95, s[38:39], {EPOCH+4}")
        a("s_load_dword s94, s[16:17], 0")
        a("s_waitcnt lgkmcnt(0)")
        a("s_cmp_lg_u32 s95, 0x600df00d")
        a("s_cselect_b32 s93, 1, 0")
        a("s_cselect_b32 s95, 0, 1")
        a("s_cmp_lg_u32 s94, 0x3c6e3d96")
        a("s_cselect_b32 s95, s95, 0")
        a("s_cmp_lg_u32 s94, 0x3a3abc25")
        a("s_cselect_b32 s95, s95, 0")
    def probe_pad():
        if not probe or probe[0] != role[0]: return
        def until(base, lim):
            L = a.label("L_pp")
            a(f"{L}:")
            a("s_sleep 4")
            a("s_memrealtime s[70:71]")
            a("s_waitcnt lgkmcnt(0)")
            a(f"s_sub_u32 s70, s70, {base}")
            a(f"s_cmp_lt_u32 s70, {lim}")
            a(f"s_cbranch_scc1 {L}")
        a("s_waitcnt lgkmcnt(0)")
        a("s_cmp_eq_u32 s67, -1")
        a("s_cselect_b32 s66, s64, s66")
        a("s_cselect_b32 s69, 1, 0")
        until("s64", 2200)
        a("s_not_b32 s72, s64")
        a("s_atomic_umax s72, s[36:37], 0")
        until("s64", 3200)
        a("s_load_dword s72, s[36:37], 0 glc")
        a("s_waitcnt lgkmcnt(0)")
        a("s_not_b32 s72, s72")
        a("s_sub_u32 s66, s66, s72")
        if len(probe) > 3:
            a("s_atomic_add s66, s[36:37], 128")
            until("s64", 4400)
            a("s_load_dword s66, s[36:37], 128 glc")
            a("s_waitcnt lgkmcnt(0)")
            a("s_lshr_b32 s66, s66, 8")
        if probe[2] < 0 and probe[1]:
            a("s_cmp_eq_u32 s69, 1")
            a("s_cbranch_scc1 L_end")
        a(f"s_mul_i32 s66, s66, {probe[2]}")
        a(f"s_add_u32 s68, s66, {6000 if probe[2] >= 0 else 20000}")
        until("s72", "s68")
    def dump_stamps(vt, va):
        probe_pad()
        leak_out()
        if not (stamps or (lite and role[0] == "H")): return
        a("s_waitcnt lgkmcnt(0)")
        a("s_mov_b64 exec, -1")
        a(f"v_mov_b32 v{vt}, 0")
        for k in range(16):
            a(f"v_writelane_b32 v{vt}, s{64+2*k}, {k}")
        a("s_lshl_b32 s4, s2, 3")
        a("s_add_u32 s4, s4, s3")
        a("s_lshl_b32 s4, s4, 6")
        a(f"s_add_u32 s4, s4, {STAMP}")
        a(f"v_lshlrev_b32 v{va}, 2, v0")
        a("s_mov_b64 exec, 0xffff")
        a(f"buffer_store_dword v{vt}, v{va}, s[48:51], s4 offen")
    def srd(d, p, n):
        a(f"s_mov_b64 s[{d}:{d+1}], s[{p}:{p+1}]")
        a(f"s_mov_b32 s{d+2}, {n}")
        a(f"s_mov_b32 s{d+3}, 0x20000")
    def setexec(lo, hi):
        a(f"s_mov_b32 exec_lo, {lo:#x}")
        a(f"s_mov_b32 exec_hi, {hi:#x}")
    def row_list(op, r, steps=(1, 2, 4, 8)):
        return [f"{op}_dpp v{r}, v{r}, v{r} row_ror:{k} {DPP}" for k in steps]
    def cross_list(op, r, t):
        return [f"v_mov_b32 v{t}, v{r}", f"v_permlane16_swap_b32 v{r}, v{t}", f"{op} v{r}, v{r}, v{t}",
                f"v_mov_b32 v{t}, v{r}", f"v_permlane32_swap_b32 v{r}, v{t}", f"{op} v{r}, v{r}, v{t}"]
    def emit(l):
        for x in l: a(x)
    def bf16r(d, s):
        a(f"v_cvt_pk_bf16_f32 v{d}, 0, v{s}")
    TG = 8
    def make_tag():
        a("s_add_u32 s13, s13, 0x01010101")
        a("s_movk_i32 s63, 0xff")
        a("v_bfe_i32 v12, v0, 0, 1")
        a(f"v_and_b32 v12, {TAGX}, v12")
        a(f"v_xor_b32 v{TG}, s13, v12")
        for k in range(1, 4): a(f"v_lshrrev_b32 v{TG+k}, {8*k}, v{TG}")
    def apply_tag(r, tags=None):
        for k in range(4): a(f"v_bfi_b32 v{r+k}, s63, v{tags[k] if tags else TG+k}, v{r+k}")
    def tag_list(grans, t, n=4):
        o = []
        for g in grans:
            for k in range(n):
                if not o: o.append(f"v_xor_b32 v{t}, v{g+k}, v{TG+k}")
                else: o.append(f"v_bitop3_b32 v{t}, v{t}, v{g+k}, v{TG+k} bitop3:0xf6")
        o.append(f"v_and_b32 v{t}, 0xff, v{t}")
        return o
    def join_list(t, quad=True):
        o = [f"v_or_b32_dpp v{t}, v{t}, v{t} quad_perm:[1,0,3,2] {DPP}"]
        if quad: o.append(f"v_or_b32_dpp v{t}, v{t}, v{t} quad_perm:[2,3,0,1] {DPP}")
        return o
    def tag_check(grans, t, quad=True):
        emit(tag_list(grans, t) + join_list(t, quad))
        a(f"v_cmp_ne_u32 vcc, 0, v{t}")
    def treduce4(r):
        a(f"v_permlane32_swap_b32 v{r}, v{r+2}")
        a(f"v_permlane32_swap_b32 v{r+1}, v{r+3}")
        a(f"v_add_f32 v{r}, v{r}, v{r+2}")
        a(f"v_add_f32 v{r+1}, v{r+1}, v{r+3}")
        a(f"v_permlane16_swap_b32 v{r}, v{r+1}")
        a(f"v_add_f32 v{r}, v{r}, v{r+1}")
    def retry_masked(L, D, sleep=1):
        a("s_and_b64 exec, exec, vcc")
        a(f"s_cbranch_execz {D}")
        if sleep: a(f"s_sleep {sleep}")
        a("s_sub_u32 s60, s60, 1")
        a(f"s_cbranch_scc0 {L}")
        a(f"{D}:")
        a("s_mov_b64 exec, -1")
    def silu_bf16(d, x, t):
        a(f"v_mul_f32 v{t}, 0xbfb8aa3b, v{x}")
        a(f"v_exp_f32 v{t}, v{t}")
        a(f"v_add_f32 v{t}, 1.0, v{t}")
        a(f"v_rcp_f32 v{t}, v{t}")
        a(f"v_mul_f32 v{t}, v{t}, v{x}")
        bf16r(d, t)
    def lds_spin(off, n, vt, sleep=1):
        L = a.label("L_spin")
        a(f"s_mov_b32 s60, {spin_limit}")
        if sleep:
            E = a.label("L_spe")
            a(f"s_branch {E}")
        a(f"{L}:")
        if sleep:
            a(f"s_sleep {sleep}")
            a(f"{E}:")
        a(f"ds_read_b32 v{vt}, v1 offset:{off}")
        a("s_sub_u32 s60, s60, 1")
        a("s_waitcnt lgkmcnt(0)")
        a(f"v_readfirstlane_b32 s61, v{vt}")
        a("s_cselect_b32 s61, -1, s61")
        a(f"s_cmp_lt_u32 s61, {n}")
        a(f"s_cbranch_scc1 {L}")
    def refresh():
        a(f"ds_read_b64 v[12:13], v1 offset:{POST}")
        a("s_waitcnt lgkmcnt(0)")
        a("v_readfirstlane_b32 s96, v12")
        a("v_readfirstlane_b32 s97, v13")
    def need(x, sleep=0, count=True):
        if role[0] == "C": sleep = csleep
        L = a.label("L_need"); D = a.label("L_got")
        a(f"s_cmp_ge_u32 s96, {x}")
        a(f"s_cbranch_scc1 {D}")
        a(f"s_mov_b32 s60, {spin_limit}")
        a(f"{L}:")
        if sleep: a(f"s_sleep {sleep}")
        a(f"ds_read_b64 v[12:13], v1 offset:{POST}")
        a("s_sub_u32 s60, s60, 1")
        a("s_waitcnt lgkmcnt(0)")
        a("v_readfirstlane_b32 s96, v12")
        if count: a("v_readfirstlane_b32 s97, v13")
        a("s_cselect_b32 s96, -1, s96")
        if count: a("s_cselect_b32 s97, 0, s97")
        a(f"s_cmp_lt_u32 s96, {x}")
        a(f"s_cbranch_scc1 {L}")
        a(f"{D}:")
    def light_test():
        a("s_and_b32 s4, s2, 63")
        a("s_cmp_ge_u32 s4, 56")
    def wq_col(d):
        if "q" in cmap:
            a(f"s_lshr_b32 s{d}, s2, 3")
            a("s_lshl_b32 s4, s2, 1")
            a("s_and_b32 s4, s4, 8")
            a(f"s_xor_b32 s{d}, s{d}, s4")
            a(f"s_xor_b32 s{d}, s{d}, 4")
            a(f"s_and_b32 s{d}, s{d}, 15")
            a("s_lshr_b32 s4, s2, 6")
            a(f"s_lshl4_add_u32 s{d}, s4, s{d}")
        else: a(f"s_lshr_b32 s{d}, s2, 2")
    def up_shift(d, c, unit):
        if "u" in cmap:
            a(f"s_mov_b32 s{d}, {ush * unit}")
            a(f"s_cmp_ge_u32 s{c}, {56 - ush}")
            a(f"s_cselect_b32 s{d}, {((ush - 56) * unit) & 0xffffffff}, s{d}")
        else: a(f"s_mov_b32 s{d}, 0")
    def gu_col(d):
        if "g" in cmap:
            a("s_lshr_b32 s4, s2, 6")
            a("s_bfe_u32 s5, s2, 0x10002")
            a("s_lshl1_add_u32 s4, s4, s5")
            a("s_mul_i32 s4, s4, 7")
            a("s_bfe_u32 s5, s2, 0x30003")
            a(f"s_add_u32 s{d}, s4, s5")
            return
        if gumix:
            a("s_lshr_b32 s4, s2, 6")
            a("s_and_b32 s5, s2, 60")
            a(f"s_add_u32 s{d}, s4, s5")
            return
        a("s_lshr_b32 s4, s2, 6")
        a("s_mul_i32 s4, s4, 56")
        a("s_and_b32 s5, s2, 63")
        a("s_add_u32 s4, s4, s5")
        a(f"s_lshr_b32 s{d}, s4, 2")
    def wd_row(d):
        if dmap:
            a("s_lshr_b32 s62, s2, 7")
            a("s_lshl_b32 s62, s62, 3")
            a(f"s_and_b32 s{d}, s2, 7")
            a(f"s_or_b32 s{d}, s{d}, s62")
        else: a(f"s_lshr_b32 s{d}, s2, 4")
    def wd_col(d):
        if dmap: a(f"s_bfe_u32 s{d}, s2, 0x40003")
        else: a(f"s_and_b32 s{d}, s2, 15")
    def rr_cc(srr, scc):
        a(f"s_and_b32 s{srr}, s2, 7")
        a("s_lshr_b32 s62, s2, 5")
        a("s_lshl_b32 s62, s62, 3")
        a(f"s_or_b32 s{srr}, s{srr}, s62")
        a(f"s_bfe_u32 s{scc}, s2, 0x20003")
    lgp = npool.bit_length() - 1
    def pool_id(d):
        a("s_lshr_b32 s5, s2, 3")
        a("s_add_u32 s5, s5, s2")
        a(f"s_and_b32 s5, s5, {npool-1}")
        a("s_lshr_b32 s4, s2, 6")
        a(f"s_lshl_b32 s4, s4, {lgp}")
        a(f"s_add_u32 s{d}, s4, s5")
    def pool_member(d):
        a("s_bfe_u32 s5, s2, 0x30003")
        a(f"s_lshr_b32 s5, s5, {lgp}")
        a("s_lshl_b32 s5, s5, 3")
        a("s_and_b32 s4, s2, 7")
        a(f"s_add_u32 s{d}, s5, s4")
    def tr_addr(d):
        a("v_lshrrev_b32 v12, 2, v5")
        a("v_lshl_add_u32 v13, v4, 2, v12")
        a("v_bfe_u32 v12, v13, 1, 2")
        a("v_lshlrev_b32 v12, 5, v12")
        a("v_lshl_add_u32 v12, v13, 7, v12")
        a("v_and_b32 v13, 3, v0")
        a(f"v_lshl_add_u32 v{d}, v13, 3, v12")
    def slot_base(d, slot):
        a(f"s_and_b32 s{d}, {slot}, 7")
        a(f"s_lshl_b32 s{d}, s{d}, 14")

    a("s_cmp_ge_u32 s2, 256")
    a("s_cbranch_scc1 L_end")
    a("s_load_dwordx16 s[16:31], s[0:1], 0")
    a("s_load_dwordx8 s[32:39], s[0:1], 64")
    stamp(0)
    if probe: a("s_mov_b32 s67, -1")
    if cpf:
        a("s_getpc_b64 s[4:5]")
        a("L_pc:")
        a("v_subrev_u32 v12, 64, v0")
        a("v_mov_b32 v13, 0")
        a("v_cmp_gt_u32 vcc, (L_codeend-L_pc)/128, v12")
        a("v_lshlrev_b32 v12, 7, v12")
        a("s_and_saveexec_b64 s[6:7], vcc")
        a("s_cbranch_execz L_nopf")
        a("v_lshl_add_u64 v[12:13], v[12:13], 0, s[4:5]")
        a("global_load_dword v16, v[12:13], off offset:64")
        a("L_nopf:")
        a("s_mov_b64 exec, -1")
    a("v_cmp_gt_u32 vcc, 64, v0")
    a("v_lshrrev_b32 v1, 6, v0")
    a("v_and_b32 v0, 63, v0")
    a("v_lshrrev_b32 v2, 3, v0")
    a("v_and_b32 v3, 7, v0")
    a("v_lshrrev_b32 v4, 4, v0")
    a("s_and_b32 s14, s2, 3")
    a("s_mov_b32 s43, 0x20000")
    a("s_cbranch_vccz L_others")
    OTHERS_FIRST = ofirst
    def emit_others():
        a("L_others:")
        a("v_readfirstlane_b32 s3, v1")
        a("v_lshlrev_b32 v14, 5, v0")
        a("v_lshlrev_b32 v15, 3, v0")
        a("s_lshl_b32 s10, s14, 9")
        a("s_movk_i32 s42, 2048")
        a("s_xor_b32 s3, s3, 4")
        a("s_cmp_gt_u32 s3, 3")
        a(f"v_mov_b32 v1, {MISC}")
        for k in range(4): a(f"v_mov_b32 v{28+k}, 0")
        a("v_lshl_add_u32 v12, v0, 4, v1")
        a(f"ds_write_b128 v12, v[28:31] offset:{TQ}")
        a("v_lshl_add_u32 v13, v0, 2, v1")
        a(f"v_mov_b32 v27, {BIG}")
        a(f"ds_write_b32 v13, v30 offset:{PROG}")
        a(f"ds_write2_b32 v1, v30, v27 offset0:{POST//4} offset1:{POST//4+1}")
        a("s_waitcnt lgkmcnt(0)")
        a("s_mov_b64 s[40:41], s[16:17]")
        a(f"s_load_dword s13, s[38:39], {EPOCH}")
        a("s_cbranch_scc1 L_nox")
        a("buffer_load_dwordx4 v[56:59], v14, s[40:43], 0 offen")
        a("buffer_load_dwordx4 v[60:63], v14, s[40:43], 0 offen offset:16")
        a("buffer_load_dwordx2 v[64:65], v15, s[40:43], s10 offen")
        a("L_nox:")
        a("s_barrier")
        a("s_branch L_notloader")

    role[0] = "L"
    a("s_setprio 3")
    a("v_lshrrev_b32 v12, 5, v0")
    a("v_and_b32 v13, 3, v2")
    a("v_lshl_add_u32 v12, v12, 3, v13")
    a("v_lshlrev_b32 v13, 1, v4")
    a("v_xor_b32 v13, v13, v3")
    a("v_lshlrev_b32 v13, 4, v13")
    a("v_lshl_add_u32 v16, v12, 13, v13")
    a("s_lshl_b32 s8, s14, 21")
    wq_col(5)
    a("s_lshl_b32 s5, s5, 7")
    a("s_add_u32 s8, s8, s5")
    a("s_mov_b32 m0, 0")
    a("s_mov_b32 s42, 8388608")
    a("s_waitcnt lgkmcnt(0)")
    if fine: stamp(7)
    a("s_mov_b64 s[40:41], s[22:23]")
    def wloads(vo, stride):
        for i in range(4):
            ro = (16 * (i & 1) + 4 * (i >> 1)) * stride - 1024 * i
            if i: a(f"s_add_u32 s9, s8, {ro}")
            a(f"buffer_load_dwordx4 v{vo}, s[40:43], s{9 if i else 8} offen offset:{1024*i}{NT} lds")
        a(f"s_add_u32 s8, s8, {32*stride}")
        a("s_add_u32 m0, m0, 4096")
    a("L_ld_q:")
    wloads(16, 8192)
    a("s_cmp_lt_u32 m0, 0x8000")
    a("s_cbranch_scc1 L_ld_q")
    if fine: stamp(8)
    if ofirst:
        a("s_branch L_loader")
        emit_others()
    a("L_loader:")
    mem = 64 // npool; reg = 1024 // npool
    nshared = reg - mem * dyn - 2 * lex
    zone = nshared - ntw * mem + empt
    assert ntw == 2 and dyn + lex + 2 * (nshared + empt) + 4 <= 256
    a(f"v_mov_b32 v1, {MISC}")
    a("v_mov_b32 v30, 0")
    a(f"v_mov_b32 v31, {BIG}")
    a("s_barrier")
    if stamps:
        for k in range(1, 16):
            if not (fine and k in (7, 8)): a(f"s_mov_b32 s{64+2*k}, 0")
    stamp(1)
    pend = [None]; viamax = [False]
    def wait_post(w, defer=False):
        if defer and fw:
            pend[0] = w
            return
        if viamax[0]:
            a("v_add_u32 v39, 1, v39")
            a("v_max_i32 v30, v30, v39")
        else: a("v_add_u32 v30, 1, v30")
        a(f"s_waitcnt vmcnt({w})")
        a(f"ds_write_b64 v29, v[30:31] offset:{POST}")
    def unit(vo, srdn, so, step=4096):
        w = pend[0]; pend[0] = None
        for i in range(4):
            if w is not None and i % fw[1] == 0:
                if i == fw[0]: wait_post(w + fw[0])
                else: a(f"s_waitcnt vmcnt({w + fw[0]})")
            a(f"buffer_load_dwordx4 v{vo[i]}, s[{srdn}:{srdn+3}], s{so} offen offset:{1024*i}{NT} lds")
        a(f"s_add_u32 m0, m0, {step}" if step > 0 else f"s_sub_u32 m0, m0, {-step}")
        if pace: a(f"s_sleep {pace}")
    a("v_lshl_add_u32 v29, v0, 3, v1")
    VG, VD, VK, VV = [40, 41, 42, 43], [44, 45, 46, 47], [24, 25, 24, 25], [24, 25, 24, 25]
    a("s_movk_i32 s7, 7168")
    a(f"v_mad_u32_u24 v{VG[0]}, v12, s7, v13")
    for i in range(1, 4):
        a(f"v_add_u32 v{VG[i]}, {(16 * (i & 1) + 4 * (i >> 1)) * 7168 - 1024 * i}, v{VG[0]}")
    gu_col(6)
    if cmap: up_shift(12, 6, 128)
    a("s_lshl_b32 s6, s6, 7")
    a(f"s_mul_i32 s7, s14, {256*7168}")
    a("s_add_u32 s8, s7, s6")
    a("s_mov_b32 s42, 7340032")
    a("s_mov_b64 s[40:41], s[28:29]")
    a("s_mov_b32 s98, 2")
    a(f"s_cmp_ge_u32 s5, {7 if 'g' in cmap else 56}")
    w1 = win
    if fine: stamp(9)
    for w in range(28, w1 - 4, -4):
        wait_post(w)
        if fine: stamp(10 if w == 28 else 11)
    a("s_cbranch_scc1 L_ld_kv")
    a("s_add_u32 s12, s12, s8" if cmap else "s_mov_b32 s12, s8")
    if gui:
        srd(52, 30, 7340032)
        a("s_mov_b32 s98, 6")
        a("L_ld_gu2:")
        wait_post(w1 - 4, True)
        unit(VG, 40, 8, 0x8000)
        a(f"s_add_u32 s8, s8, {32*7168}")
        wait_post(w1 - 4, True)
        unit(VG, 52, 12, -0x7000)
        a(f"s_add_u32 s12, s12, {32*7168}")
        a("s_cmp_lt_u32 m0, 0x10000")
        a("s_cbranch_scc1 L_ld_gu2")
        a("s_mov_b32 m0, 0x18000")
    if not gui:
     a("s_mov_b32 s6, 0x10000")
     a("s_mov_b32 s98, 6")
     a("L_ld_gu:")
     wait_post(w1 - 4, True)
     unit(VG, 40, 8)
     a(f"s_add_u32 s8, s8, {32*7168}")
     a("s_cmp_lt_u32 m0, s6")
     a("s_cbranch_scc1 L_ld_gu")
     a("s_mov_b32 s8, s12")
     a("s_mov_b64 s[40:41], s[30:31]")
     a("s_mov_b32 s6, 0x18000")
     a("s_cmp_lt_u32 m0, s6")
     a("s_cbranch_scc1 L_ld_gu")
    a("L_ld_kv:")
    stamp(2)
    a(f"ds_read_b128 v[32:35], v1 offset:{PROG}")
    a(f"ds_read_b32 v37, v1 offset:{TQ}")
    a("v_mov_b32 v36, v1")
    a("v_and_b32 v5, 15, v0")
    for j in range(2):
        a(f"v_add_u32 v14, {4*j}, v4")
        a("v_lshlrev_b32 v14, 1, v14")
        a("v_xor_b32 v14, v14, v5")
        a("v_lshlrev_b32 v14, 4, v14")
        a(f"v_lshl_add_u32 v{VV[j]}, v4, 8, v14")
    srd(44, 18, 33554432)
    srd(48, 20, 33554432)
    a("s_mov_b32 s10, 0")
    a("s_mov_b32 s11, 0")
    a("s_mov_b32 s15, 0")
    if wide: a("s_mov_b32 s99, 0")
    a(f"s_mov_b32 s60, {spin_limit}")
    if stamps: a("s_memrealtime s[100:101]")
    a("s_branch L_ld_chk")
    if win1:
        assert n1 <= dyn - ahead
        a("L_ld_tile1:")
        a("s_and_b32 s8, s7, 0xffffe000")
        wait_post(w1 - 4, True)
        unit(VK, 44, 8)
        a("s_add_u32 s9, s8, 4096")
        a("s_add_u32 s11, s11, 1")
        a("v_mov_b32 v38, s11")
        wait_post(w1 - 4, True)
        unit(VK, 44, 9)
        a("v_lshl_add_u32 v36, v38, 2, v1")
        a("s_add_u32 s10, s10, 1")
        a("s_add_u32 s98, s98, 1")
        wait_post(w1 - 4, True)
        unit(VV, 48, 8)
        a(f"ds_read_b128 v[32:35], v1 offset:{PROG}")
        a(f"ds_read_b32 v37, v36 offset:{TQ}")
        wait_post(w1 - 4, True)
        unit(VV, 48, 9)
        a("s_and_b32 m0, m0, 0x1ffff")
        a(f"s_mov_b32 s60, {spin_limit}")
        a("L_ld_chk1:")
        a("s_waitcnt lgkmcnt(0)")
        a("v_min3_u32 v32, v32, v33, v34")
        a("v_readfirstlane_b32 s7, v37")
        a("v_min_u32 v32, v32, v35")
        a("s_sub_u32 s60, s60, 1")
        a("v_readfirstlane_b32 s4, v32")
        a("s_cselect_b32 s4, s98, s4")
        a("s_add_u32 s4, s4, 8")
        a("s_cmp_gt_u32 s4, s98")
        a("s_cbranch_scc1 L_ld_free1")
        a(f"ds_read_b128 v[32:35], v1 offset:{PROG}")
        a("s_branch L_ld_chk1")
        a("L_ld_free1:")
        a(f"s_cmp_lt_u32 s10, {n1}")
        a("s_cbranch_scc1 L_ld_tile1")
        for w in range(w1 - 4, win - 4, -4): wait_post(w)
    def peek():
        a(f"ds_read_b128 v[32:35], v1 offset:{PROG}")
        a(f"ds_read_b32 v37, v36 offset:{TQ}")
    def slot_body(wn):
        a("s_and_b32 s8, s7, 0xffffe000")
        if two:
            a("s_bitcmp1_b32 s7, 2")
            a("s_cselect_b64 s[44:45], s[20:21], s[18:19]")
        wait_post(wn - 4, True)
        unit(VK, 44, 8)
        a("s_add_u32 s9, s8, 4096")
        a("s_bfe_u32 s4, s7, 0x10001")
        a("s_and_b32 s5, s11, 1")
        a("s_lshl_b32 s4, s4, s5")
        a("s_or_b32 s15, s15, s4")
        a("s_add_u32 s11, s11, 1")
        a("s_xor_b32 s5, s5, 1")
        a("s_bitcmp1_b32 s15, s5")
        a("s_addc_u32 s11, s11, 0")
        a("v_mov_b32 v38, s11")
        if spos == 0: a(f"ds_write_b32 v1, v38 offset:{STARTED}")
        wait_post(wn - 4, True)
        unit(VK, 44, 9)
        if spos == 1: a(f"ds_write_b32 v1, v38 offset:{STARTED}")
        a("v_lshl_add_u32 v36, v38, 2, v1")
        a("s_add_u32 s10, s10, 1")
        a("s_cmp_eq_u32 s15, 3")
        a(f"s_cselect_b32 s4, s10, {BIG}")
        a("v_mov_b32 v31, s4")
        a("s_cselect_b32 s4, 4, 1")
        a("s_add_u32 s98, s98, s4")
        if two:
            a("s_bitcmp1_b32 s7, 3")
            a("s_cselect_b64 s[48:49], s[18:19], s[20:21]")
            a("s_and_b32 s4, s7, 12")
            a("s_cselect_b32 s4, 0x2000, 0")
            a("s_add_u32 s8, s8, s4")
            a("s_add_u32 s9, s9, s4")
        wait_post(wn - 4, True)
        unit(VV, 48, 8)
        if spos == 2: a(f"ds_write_b32 v1, v38 offset:{STARTED}")
        peek()
        wait_post(wn - 4, True)
        unit(VV, 48, 9)
        if spos == 3: a(f"ds_write_b32 v1, v38 offset:{STARTED}")
        a("s_and_b32 m0, m0, 0x1ffff")
        if stamps: a("s_memrealtime s[100:101]")
        a(f"s_mov_b32 s60, {spin_limit}")
    if wide:
        a("L_ld_wide0:")
        a(f"v_subrev_u32 v39, {wide[0] // 4}, v30")
        a("s_mov_b32 s99, 16")
        a("L_ld_wide:")
        viamax[0] = True
        slot_body(win + wide[0])
        viamax[0] = False
        a("s_branch L_ld_chk")
    a("L_ld_tile:")
    if wide:
        a("s_cmp_lg_u32 s99, 0")
        a("s_cbranch_scc1 L_ld_wide")
        a("s_bitcmp1_b32 s7, 4")
        a("s_cbranch_scc1 L_ld_wide0")
    slot_body(win)
    a("L_ld_chk:")
    a("s_waitcnt lgkmcnt(0)")
    a("v_min3_u32 v32, v32, v33, v34")
    a("v_readfirstlane_b32 s5, v37")
    a("v_min_u32 v32, v32, v35")
    a("s_cmp_eq_u32 s15, 3")
    a("v_readfirstlane_b32 s4, v32")
    a("s_cbranch_scc1 L_ld_end")
    a("s_add_u32 s4, s4, 8")
    a("s_cmp_gt_u32 s4, s98")
    a("s_cselect_b32 s7, s5, 0")
    a("s_bitcmp1_b32 s7, 0")
    if stamps:
        a("s_cbranch_scc0 L_ld_again")
        a("s_memrealtime s[62:63]")
        a("s_waitcnt lgkmcnt(0)")
        a("s_sub_u32 s62, s62, s100")
        a("s_add_u32 s88, s88, s62")
        a("s_max_u32 s90, s90, s62")
        a(f"s_cmp_eq_u32 s10, {dyn // 2}")
        a("s_cselect_b32 s78, s100, s78")
        a(f"s_cmp_eq_u32 s10, {dyn}")
        a("s_cselect_b32 s80, s100, s80")
        a("s_branch L_ld_tile")
    else:
        a("s_cbranch_scc1 L_ld_tile")
    a("L_ld_again:")
    if empt:
        a("s_cmp_eq_u32 s15, 3")
        a("s_cselect_b32 s5, 0, s5")
        a("s_cmp_lg_u32 s5, 2")
        a("s_cbranch_scc1 L_ld_peek")
        a("s_and_b32 s5, s11, 1")
        a("s_bitset1_b32 s15, s5")
        a("s_add_u32 s11, s11, 1")
        a("v_mov_b32 v32, s11")
        a("v_lshl_add_u32 v36, v32, 2, v1")
        a(f"ds_write_b32 v1, v32 offset:{STARTED}")
        a("s_cmp_eq_u32 s15, 3")
        a("s_cbranch_scc0 L_ld_peek")
        a("v_mov_b32 v31, s10")
        a("s_add_u32 s98, s98, 3")
        a("s_cmp_gt_u32 s4, s98")
        a("s_cbranch_scc1 L_ld_go")
        a("L_ld_peek:")
    peek()
    a("s_sub_u32 s60, s60, 1")
    a("s_cbranch_scc0 L_ld_chk")
    a("v_mov_b32 v30, 0x7fffffff")
    a("v_mov_b32 v31, s10")
    a(f"ds_write_b64 v29, v[30:31] offset:{POST}")
    a("s_endpgm")
    a("L_ld_end:")
    a("s_add_u32 s4, s4, 8")
    a("s_cmp_gt_u32 s4, s98")
    a("s_cbranch_scc0 L_ld_again")
    a("L_ld_go:")
    stamp(3)
    a(f"v_lshl_add_u32 v{VD[0]}, v12, 11, v13")
    for i in range(1, 4):
        a(f"v_add_u32 v{VD[i]}, {(16 * (i & 1) + 4 * (i >> 1)) * 2048 - 1024 * i}, v{VD[0]}")
    srd(52, 32, 7340032)
    wd_row(6)
    a(f"s_mul_i32 s96, s6, {224*2048}")
    wd_col(6)
    a("s_lshl_b32 s6, s6, 7")
    a("s_add_u32 s96, s96, s6")
    if stamps:
        a("s_add_u32 s92, s10, s64")
        a("s_add_u32 s88, s88, s64")
        a("s_add_u32 s90, s90, s64")
    if wide:
        a("s_cmp_eq_u32 s99, 0")
        a("s_cbranch_scc1 L_ld_narrow")
        for w in range(win + wide[0] - 4, win - 4, -4): wait_post(w)
        a("L_ld_narrow:")
    sch = dict(sched or ([(0, win), grow] if grow else [(0, win)]))
    infl = win // 4
    wn = win
    for k in range(15):
        wn = sch.get(k, wn)
        while infl > wn // 4:
            infl -= 1; wait_post(4 * infl)
        if infl == wn // 4: wait_post(wn - 4, True)
        else: infl += 1
        if k < 7:
            unit(VD, 52, 96)
            if k < 6: a("s_add_u32 s96, s96, 0x10000")
        else:
            unit(VD, 56, 97)
            if k < 14: a(f"s_add_u32 s97, s97, {0x10000 - 384 if k == 10 else 128}")
        if k % 4 == 3: a("s_and_b32 m0, m0, 0x1ffff")
        if k == 1: srd(56, 24, 8388608)
        if k == 2: rr_cc(6, 7)
        if k == 4:
            a("s_lshl_b32 s6, s6, 17")
            a("s_lshl_b32 s7, s7, 9")
            a("s_add_u32 s97, s6, s7")
        if k == 6: stamp(4)
    stamp(5)
    while infl > 0:
        infl -= 1; wait_post(4 * infl)
    stamp(6)
    a("L_ld_done:")
    if stamps:
        a("s_mov_b32 s3, 4")
        srd(48, 38, 268435456)
        a("s_getreg_b32 s94, hwreg(HW_REG_XCC_ID)")
        a("s_getreg_b32 s95, hwreg(HW_REG_HW_ID)")
        a("s_and_b32 s94, s94, 15")
        a("s_lshl_b32 s94, s94, 16")
        a("s_and_b32 s95, s95, 0xffff")
        a("s_or_b32 s94, s94, s95")
        a("s_or_b32 s94, s94, 0x1000000")
    dump_stamps(12, 13)
    a("s_endpgm")

    if not ofirst: emit_others()
    a("L_notloader:")
    if stamps or lite:
        for k in range(1, 16): a(f"s_mov_b32 s{64+2*k}, 0")
    a("v_and_b32 v5, 15, v0")
    a("v_lshlrev_b32 v6, 4, v0")
    srd(48, 38, 268435456)
    a("s_mov_b32 s96, 0")
    a(f"s_mov_b32 s97, {BIG}")
    a("s_cmp_eq_u32 s3, 5")
    a("s_cbranch_scc1 L_helper")
    a("s_cmp_gt_u32 s3, 5")
    a("s_cbranch_scc1 L_ticket")

    role[0] = "C"
    XF = 32
    AF = 64
    ACC = 80
    TA = 7
    a("s_setprio 1")
    tr_addr(TA)
    a("s_waitcnt lgkmcnt(0)")
    make_tag()
    a("s_waitcnt vmcnt(0)")
    stamp(1)
    pool_member(6)
    a("s_cmp_lg_u32 s6, 0")
    a("s_cbranch_scc1 L_nozero")
    pool_id(6)
    a("v_mov_b32 v12, 0")
    a("v_lshlrev_b32 v13, 10, v0")
    a(f"s_mul_i32 s7, s6, {cstride}")
    a(f"s_add_u32 s7, s7, {TCN}")
    a("s_mov_b64 exec, 1")
    if sig1 is not None or sig2:
        assert npool == 4
        a("s_cmp_eq_u32 s3, 0")
        a("s_cbranch_scc1 " + ("L_zeroed" if early_t else "L_dozero"))
        a("s_mov_b64 exec, 0xffff")
        a("s_lshr_b32 s4, s6, 2")
        a("s_and_b32 s5, s6, 3")
        if sig1 is not None or rk:
            a("s_lshl_b32 s7, s4, 14")
            a("s_lshl_b32 s8, s5, 8")
            a("s_add_u32 s7, s7, s8")
            a(f"s_add_u32 s7, s7, {AC1}")
            a("s_cmp_eq_u32 s3, 1")
            a("s_cbranch_scc1 L_dozero")
        a("s_lshl_b32 s7, s5, 14")
        a("s_lshl_b32 s8, s4, 8")
        a("s_add_u32 s7, s7, s8")
        a(f"s_add_u32 s7, s7, {AC2}")
        a("v_mov_b32 v12, s13")
        a("s_cmp_eq_u32 s3, 2")
    else:
        a("s_cmp_eq_u32 s3, 0")
    a("s_cbranch_scc0 L_zeroed")
    a("L_dozero:")
    a("buffer_store_dword v12, v13, s[48:51], s7 offen sc1")
    a("L_zeroed:")
    a("s_mov_b64 exec, -1")
    a("L_nozero:")
    for i in range(8):
        a(f"v_lshlrev_b32 v{32+2*i}, 16, v{56+i}")
        a(f"v_and_b32 v{33+2*i}, 0xffff0000, v{56+i}")
    a("v_add_f32 v16, v32, v33")
    a("v_add_f32 v17, v34, v35")
    for i in range(2, 8):
        a(f"v_add_f32 v16, v16, v{32+2*i}")
        a(f"v_add_f32 v17, v17, v{33+2*i}")
    a("v_add_f32 v16, v16, v17")
    emit(row_list("v_add_f32", 16) + cross_list("v_add_f32", 16, 17))
    a("v_mul_f32 v16, 0x3a800000, v16")
    for i in range(16):
        a(f"v_sub_f32 v{32+i}, v{32+i}, v16")
    a("v_mul_f32 v17, v32, v32")
    a("v_mul_f32 v18, v33, v33")
    for i in range(1, 8):
        a(f"v_fmac_f32 v17, v{32+2*i}, v{32+2*i}")
        a(f"v_fmac_f32 v18, v{33+2*i}, v{33+2*i}")
    a("v_add_f32 v17, v17, v18")
    emit(row_list("v_add_f32", 17) + cross_list("v_add_f32", 17, 18))
    a("v_mul_f32 v17, 0x3a800000, v17")
    bf16r(16, 16)
    bf16r(17, 17)
    a("v_add_f32 v17, 0x3727c5ac, v17")
    bf16r(17, 17)
    a("v_sqrt_f32 v17, v17")
    for i in range(2):
        a(f"v_lshlrev_b32 v{18+2*i}, 16, v{64+i}")
        a(f"v_and_b32 v{19+2*i}, 0xffff0000, v{64+i}")
    bf16r(17, 17)
    a("v_rcp_f32 v17, v17")
    for i in range(4): a(f"v_sub_f32 v{18+i}, v{18+i}, v16")
    for i in range(4): bf16r(18 + i, 18 + i)
    for i in range(4): a(f"v_mul_f32 v{18+i}, v{18+i}, v17")
    a("v_cvt_pk_bf16_f32 v18, v18, v19")
    a("v_cvt_pk_bf16_f32 v19, v20, v21")
    a("v_add_u32 v15, v15, v1")
    a(f"ds_write_b64 v15, v[18:19] offset:{XN}")
    a("v_lshl_add_u32 v14, v4, 4, v1")
    for s in range(8):
        a(f"ds_read_b128 v[{XF+4*s}:{XF+4*s+3}], v14 offset:{XN+64*s}")
    stamp(2)
    A1 = 27
    a(f"v_lshl_add_u32 v12, v0, 2, v1")
    a(f"v_add_u32 v12, {SCR}, v12")
    a("v_cmp_eq_u32 vcc, 0, v0")
    a(f"v_cndmask_b32 v{A1}, v12, v1, vcc")
    a("s_lshl_b32 s4, s3, 2")
    a(f"v_add_u32 v28, s4, v{A1}")
    def progress(x):
        a(f"v_mov_b32 v29, {x}")
        a(f"ds_write_b32 v28, v29 offset:{PROG}")
    a("s_lshl_b32 s4, s3, 5")
    a(f"v_xor_b32 v14, s4, v{TA}")
    a("s_lshl_b32 s8, s14, 14")
    a("s_lshl_b32 s9, s3, 6")
    a("s_add_u32 s8, s8, s9")
    gu_col(11)
    if cmap:
        up_shift(27, 11, 256)
        a("s_add_u32 s27, s27, 0x10000")
    a("s_lshl_b32 s11, s11, 8")
    a("s_add_u32 s11, s11, s8")
    if cmap: a(f"s_add_u32 s11, s11, {GP}")
    wq_col(9)
    a("s_lshl_b32 s9, s9, 8")
    a("s_add_u32 s9, s9, s8")
    light_test()
    a("s_cselect_b32 s15, 2, 6")
    a("s_mov_b32 s99, 0")
    a("s_mov_b32 s10, 0")
    a("v_lshlrev_b32 v15, 6, v4")
    a("v_and_b32 v15, 3, v0")
    a("v_lshlrev_b32 v15, 6, v15")
    if gui: a("s_mov_b32 s24, 1")
    a("L_c_blk:")
    for (s0, s1) in [(0, 4), (4, 6), (6, 8)]:
        if gui: a(f"s_lshl{(s1-s0)//2}_add_u32 s10, s24, s10")
        else: a(f"s_add_u32 s10, s10, {s1-s0}")
        need("s10")
        for s in range(s0, s1):
            for t in range(2):
                d = AF + 4 * (s & 3) + 2 * t
                a(f"ds_read_b64_tr_b16 v[{d}:{d+1}], v14 offset:{s*4096+t*2048}")
        a("s_waitcnt lgkmcnt(0)")
        for s in range(s0, s1):
            c = "0" if s == 0 else f"v[{ACC}:{ACC+3}]"
            a(f"v_mfma_f32_16x16x32_bf16 v[{ACC}:{ACC+3}], v[{AF+4*(s&3)}:{AF+4*(s&3)+3}], v[{XF+4*s}:{XF+4*s+3}], {c}")
        if s1 % 4 == 0:
            a("s_add_u32 s99, s99, 1")
            progress("s99")
    a("v_add_u32 v14, 0x8000, v14")
    for k in range(4): a(f"ds_bpermute_b32 v{ACC+k}, v15, v{ACC+k}")
    a("s_waitcnt vmcnt(0) lgkmcnt(0)")
    apply_tag(ACC)
    a("s_mov_b64 exec, 0xf")
    a(f"buffer_store_dwordx4 v[{ACC}:{ACC+3}], v6, s[48:51], s9 offen sc1")
    a("s_mov_b64 exec, -1")
    if stamps or probe or leak:
        a("s_cmp_lg_u32 s99, 2")
        a("s_cbranch_scc1 L_c_ns3")
        stamp(3)
        a("L_c_ns3:")
    if cmap:
        a("s_mov_b32 s9, s11")
        a("s_add_u32 s11, s11, s27")
    else:
        a("s_add_u32 s11, s11, 0x10000")
        a("s_mov_b32 s9, s11")
    if gui:
        a("s_lshl_b32 s24, s24, 1")
        a("s_and_b32 s24, s24, 3")
    a("s_cmp_lt_u32 s99, s15")
    a("s_cbranch_scc1 L_c_blk")
    stamp(4)
    leak_flag()
    if qlight:
        light_test()
        a(f"s_cselect_b32 s4, {qlight}, {qstart}")
        need("s4")
    elif qstart: need(qstart)
    a("s_lshr_b32 s4, s2, 6")
    a("s_lshl_b32 s4, s4, 12")
    a("s_lshl_b32 s5, s3, 10")
    a("s_add_u32 s52, s4, s5")
    a("s_add_u32 s53, s52, 16384")
    a("s_add_u32 s54, s52, 32768")
    a("s_add_u32 s55, s52, 49152")
    def q_loads():
        for r in range(1 if "q" in abl else 4):
            a(f"buffer_load_dwordx4 v[{64+4*r}:{67+4*r}], v6, s[48:51], s{52+r} offen sc1")
    q_loads()
    KF = 32; QF = 96; SC = 64; VF = 72; AO = 80
    KA = 112; VA = 116; KC = 120; VC = 118
    S = 16; P = 20; M2, LS, AL = 24, 25, 26
    RL, LB = 30, 31
    A_OP, A_PERM, A_SH, A_G, A_OL, A_SP, A_M, SEL1, SEL2, A_QR, ONE = 128, 129, 130, 131, 132, 133, 134, 138, 139, 140, 141
    a("v_lshlrev_b32 v13, 1, v3")
    for m in range(4):
        a(f"v_add_u32 v12, {4*m}, v4")
        a("v_xor_b32 v12, v12, v13")
        a("v_lshlrev_b32 v12, 4, v12")
        a(f"v_lshl_add_u32 v{KA+m}, v5, 8, v12")
    a("v_lshrrev_b32 v12, 2, v5")
    a("v_lshl_add_u32 v12, v4, 2, v12")
    a("v_and_b32 v15, 3, v0")
    a("v_lshlrev_b32 v13, 3, v15")
    a("v_lshl_add_u32 v13, v12, 8, v13")
    a("v_add_u32 v13, 8192, v13")
    a("v_and_b32 v12, 7, v12")
    a("s_lshl_b32 s4, s3, 1")
    for n in range(2):
        a(f"s_add_u32 s5, s4, {n}")
        a("v_xor_b32 v14, s5, v12")
        a(f"v_lshl_add_u32 v{VA+n}, v14, 5, v13")
    a(f"v_mov_b32 v{M2}, 0xff7fffff")
    a(f"v_mov_b32 v{LS}, 0")
    for i in range(8): a(f"v_mov_b32 v{AO+i}, 0")
    a("v_cmp_lt_u32 s[100:101], 7, v5")
    a(f"s_mov_b32 s12, {LOG2E}")
    a(f"v_mul_u32_u24 v14, {QROW}, v3")
    a("v_lshl_add_u32 v14, v4, 4, v14")
    a(f"v_add_u32 v{A_QR}, v14, v1")
    a(f"v_mov_b32 v{ONE}, 1")
    a(f"v_lshlrev_b32 v14, {9+ow}, v2")
    if opw:
        a("v_and_b32 v13, 4, v0")
        a("v_lshl_add_u32 v14, v13, 4, v14")
    a(f"v_lshl_add_u32 v{A_OP}, v3, 4, v14")
    a("v_lshlrev_b32 v13, 4, v15")
    a("v_and_b32 v14, 4, v0")
    a("v_lshl_add_u32 v13, v14, 1, v13")
    a("v_add_u32 v13, v13, v2")
    a(f"v_lshlrev_b32 v{A_PERM}, 2, v13")
    a(f"v_lshlrev_b32 v{A_SH}, 3, v4")
    TO = 143
    a("v_bfe_i32 v12, v0, 4, 1")
    a(f"v_and_b32 v12, {TAGX}, v12")
    a(f"v_xor_b32 v{TO}, s13, v12")
    for k in range(1, 3): a(f"v_lshrrev_b32 v{TO+k}, {8*k}, v{TO}")
    a(f"s_mul_i32 s4, s2, {RSO}")
    a(f"s_lshl_b32 s5, s3, {7+ow}")
    a("s_add_u32 s4, s4, s5")
    a(f"s_add_u32 s44, s4, {OP}")
    rr_cc(4, 5)
    a(f"s_mul_i32 s8, s4, {RSS}")
    a(f"s_lshl_b32 s9, s5, {10+sw}")
    a("s_add_u32 s8, s8, s9")
    a(f"s_lshl_b32 s9, s3, {8+sw}")
    a("s_add_u32 s8, s8, s9")
    a(f"s_add_u32 s45, s8, {SP}")
    if cgate:
        a("s_lshl_b32 s8, s4, 8")
        a(f"s_add_u32 s8, s8, {OCN}")
        a("s_add_u32 s58, s38, s8")
        a("s_addc_u32 s59, s39, 0")
        a("s_lshr_b32 s8, s2, 6")
        a("s_lshl_b32 s8, s8, 12")
        a(f"s_add_u32 s46, s8, {OCN}")
        a("v_lshlrev_b32 v142, 8, v0")
    a("s_lshr_b32 s8, s4, 4")
    a(f"s_mul_i32 s8, s8, {64*RSO}")
    a("s_and_b32 s9, s4, 15")
    a(f"s_lshl_b32 s9, s9, {8+ow}")
    a("s_add_u32 s8, s8, s9")
    a(f"s_lshl_b32 s9, s3, {6+ow}")
    a("s_add_u32 s8, s8, s9")
    a(f"s_add_u32 s16, s8, {OP}")
    a(f"s_add_u32 s17, s16, {RSO}")
    a(f"s_add_u32 s18, s16, {2*RSO}")
    a(f"s_add_u32 s19, s16, {3*RSO}")
    a("v_lshrrev_b32 v13, 2, v0")
    a(f"v_mul_u32_u24 v13, {4*RSO}, v13")
    a(f"v_lshl_add_u32 v{A_G}, v15, 4, v13")
    a("v_lshl_add_u32 v12, v4, 4, v1")
    a(f"v_add_u32 v12, {OL}, v12")
    a(f"v_add_u32 v13, {ZER}, v1")
    for u in range(4):
        a(f"v_cmp_eq_u32 vcc, {u}, v15")
        a(f"v_cndmask_b32 v{A_M+u}, v13, v12, vcc")
    a("s_lshl_b32 s4, s3, 5")
    a("v_lshl_add_u32 v13, v4, 1, v1")
    a("v_lshl_add_u32 v13, v15, 3, v13")
    a(f"v_add_u32 v{A_OL}, s4, v13")
    a("v_lshlrev_b32 v13, 4, v5")
    a(f"v_lshl_add_u32 v{A_SP}, v4, {6+sw}, v13")
    a("v_and_b32 v12, 1, v0")
    a("v_cmp_eq_u32 vcc, 1, v12")
    a("v_mov_b32 v12, 0x06020400")
    a("v_mov_b32 v13, 0x03070105")
    a(f"v_cndmask_b32 v{SEL1}, v12, v13, vcc")
    a("v_and_b32 v12, 2, v0")
    a("v_cmp_eq_u32 vcc, 2, v12")
    a("v_mov_b32 v12, 0x05040100")
    a("v_mov_b32 v13, 0x03020706")
    a(f"v_cndmask_b32 v{SEL2}, v12, v13, vcc")
    a("s_mov_b32 s20, 0x0c0c0400")
    a("s_mov_b32 s21, 0x05040100")
    L = a.label("L_q"); D = a.label("L_qd")
    a(f"s_mov_b32 s60, {spin_limit}")
    a("s_branch L_q_wait")
    a(f"{L}:")
    q_loads()
    a("L_q_wait:")
    a("s_waitcnt vmcnt(0)")
    tag_check([64] if "q" in abl else [64, 68, 72, 76], 12)
    retry_masked(L, D, qsleep)
    stamp(5)
    for k in range(4): a(f"v_add_f32 v{64+k}, v{64+k}, v{68+k}")
    for k in range(4): a(f"v_add_f32 v{72+k}, v{72+k}, v{76+k}")
    for k in range(4): a(f"v_add_f32 v{64+k}, v{64+k}, v{72+k}")
    a("v_cvt_pk_bf16_f32 v64, v64, v65")
    a("v_cvt_pk_bf16_f32 v65, v66, v67")
    a("v_lshrrev_b32 v12, 5, v0")
    a("s_lshl_b32 s4, s3, 1")
    a("v_add_u32 v12, s4, v12")
    a(f"v_mul_u32_u24 v12, {QROW}, v12")
    a("v_and_b32 v13, 31, v0")
    a("v_lshl_add_u32 v12, v13, 3, v12")
    a("v_add_u32 v12, v12, v1")
    a(f"ds_write_b64 v12, v[64:65] offset:{QL}")
    a(f"ds_add_u32 v{A1}, v{ONE} offset:{QCNT}")
    lds_spin(QCNT, 7 if early_t else 5, 12, 0)
    for m in range(4):
        a(f"ds_read_b128 v[{QF+4*m}:{QF+4*m+3}], v{A_QR} offset:{QL+64*m}")
    stamp(6)
    def k_reads():
        for m in range(4): a(f"v_add_u32 v{KC+m}, s4, v{KA+m}")
        for t in range(2):
            for m in range(4):
                d = KF + 16 * t + 4 * m
                a(f"ds_read_b128 v[{d}:{d+3}], v{KC+m} offset:{4096*t}")
    def v_addr():
        for n in range(2): a(f"v_add_u32 v{VC+n}, s5, v{VA+n}")
    def v_reads(VF=VF, off=0):
        for n in range(2):
            for t in range(2):
                d = VF + 4 * n + 2 * t
                a(f"ds_read_b64_tr_b16 v[{d}:{d+1}], v{VC+n} offset:{off+4096*t}")
    def qk_list(KF=KF, SC=SC):
        out = []
        for t in range(2):
            for m in range(4):
                d = KF + 16 * t + 4 * m
                c = "0" if m == 0 else f"v[{SC+4*t}:{SC+4*t+3}]"
                out.append(f"v_mfma_f32_16x16x32_bf16 v[{SC+4*t}:{SC+4*t+3}], v[{d}:{d+3}], v[{QF+4*m}:{QF+4*m+3}], {c}")
        return out
    def softmax_list():
        o = []
        for k in range(4): o.append(f"v_cndmask_b32 v{S+k}, v{SC+k}, v{SC+4+k}, s[100:101]")
        for k in range(4): o.append(f"v_cvt_pk_bf16_f32 v{S+k}, 0, v{S+k}")
        for k in range(4): o.append(f"v_mul_f32 v{S+k}, {SCALE}, v{S+k}")
        for k in range(4): o.append(f"v_cvt_pk_bf16_f32 v{S+k}, 0, v{S+k}")
        o.append(f"v_max3_f32 v14, v{S}, v{S+1}, v{S+2}")
        o.append(f"v_max_f32 v14, v14, v{S+3}")
        o.append("MARK")
        o += row_list("v_max_f32", 14, (8,)) + cross_list("v_max_f32", 14, 15)
        o.append("v_mul_f32 v14, s12, v14")
        o.append(f"v_max_f32 v14, v14, v{M2}")
        o.append(f"v_sub_f32 v{AL}, v{M2}, v14")
        o.append(f"v_mov_b32 v{M2}, v14")
        o.append(f"v_exp_f32 v{AL}, v{AL}")
        for k in range(4): o.append(f"v_fma_f32 v{S+k}, v{S+k}, s12, -v14")
        for k in range(4): o.append(f"v_exp_f32 v{S+k}, v{S+k}")
        for i in range(4): o.append(f"v_mul_f32 v{AO+i}, v{AL}, v{AO+i}")
        o.append(f"v_cvt_pk_bf16_f32 v{P}, v{S}, v{S+1}")
        o.append(f"v_cvt_pk_bf16_f32 v{P+1}, v{S+2}, v{S+3}")
        for i in range(4, 8): o.append(f"v_mul_f32 v{AO+i}, v{AL}, v{AO+i}")
        o.append(f"v_mov_b32_dpp v{P+2}, v{P} row_ror:8 {DPP}")
        o.append(f"v_mov_b32_dpp v{P+3}, v{P+1} row_ror:8 {DPP}")
        o.append(f"v_add_f32 v14, v{S}, v{S+1}")
        o.append(f"v_add_f32 v15, v{S+2}, v{S+3}")
        o.append("v_add_f32 v14, v14, v15")
        o.append(f"v_fma_f32 v{LS}, v{LS}, v{AL}, v14")
        return o
    def pv(VF=VF, P=P):
        for n in range(2):
            a(f"v_mfma_f32_16x16x32_bf16 v[{AO+4*n}:{AO+4*n+3}], v[{VF+4*n}:{VF+4*n+3}], v[{P}:{P+3}], v[{AO+4*n}:{AO+4*n+3}]")
    def arrive():
        Ln = a.label("L_noarr")
        a("s_cmp_lg_u32 s3, 0")
        a(f"s_cbranch_scc1 {Ln}")
        a("s_mov_b64 exec, 0xffff")
        a(f"buffer_atomic_add v{ONE}, v142, s[48:51], s46 offen sc1")
        a("s_mov_b64 exec, -1")
        a(f"{Ln}:")
    def stats():
        a(f"v_mov_b32 v{RL}, v{LS}")
        emit(row_list("v_add_f32", RL, (8,)) + cross_list("v_add_f32", RL, 15))
        a(f"v_log_f32 v{LB}, v{RL}")
        a(f"v_rcp_f32 v{RL}, v{RL}")
        a("s_sub_u32 s6, s10, 2")
        a(f"v_add_f32 v{LB}, v{LB}, v{M2}")
        a(f"v_lshrrev_b32 v{LB}, v{A_SH}, v{LB}")
    cnt = not (stamps or probe or leak)
    if two:
        KF2, SC2, S2, PK, A_SB, VF2, P2 = 152, 72, 88, 92, 146, 152, 160
        light_test()
        a(f"s_cselect_b32 s25, {(dyn + lex) // 2}, {dyn // 2}")
        a("s_mov_b32 s11, 0")
        a("s_mov_b32 s26, 0x07060302")
        a(f"v_add_u32 v{A_SB}, v6, v1")
        a("L_c_kk:")
        a("s_add_u32 s10, s10, 4")
        need("s10")
        slot_base(4, "s99")
        k_reads()
        for t in range(2):
            for m in range(4):
                d = KF2 + 16 * t + 4 * m
                a(f"ds_read_b128 v[{d}:{d+3}], v{KC+m} offset:{8192+4096*t}")
        a("s_add_u32 s99, s99, 1")
        a("s_add_u32 s11, s11, 1")
        qa = qk_list(); qb = qk_list(KF2, SC2)
        a("s_waitcnt lgkmcnt(8)" if cnt else "s_waitcnt lgkmcnt(0)")
        emit(qa)
        a("s_waitcnt lgkmcnt(0)")
        progress("s99")
        def pre(sc, sv, pk):
            o = [f"v_cndmask_b32 v{sv+k}, v{sc+k}, v{sc+4+k}, s[100:101]" for k in range(4)]
            o += [f"v_cvt_pk_bf16_f32 v{sv+k}, 0, v{sv+k}" for k in range(4)]
            o += [f"v_mul_f32 v{sv+k}, {SCALE}, v{sv+k}" for k in range(4)]
            o += [f"v_cvt_pk_bf16_f32 v{sv+k}, 0, v{sv+k}" for k in range(4)]
            o += [f"v_max3_f32 v{M2}, v{M2}, v{sv}, v{sv+1}", f"v_perm_b32 v{pk}, v{sv+1}, v{sv}, s26",
                  f"v_max3_f32 v{M2}, v{M2}, v{sv+2}, v{sv+3}", f"v_perm_b32 v{pk+1}, v{sv+3}, v{sv+2}, s26"]
            return o
        emit(interleave(qb, pre(SC, S, PK), {3: 1, 4: 3, 5: 3, 6: 3}))
        emit(pre(SC2, S2, PK + 2))
        a(f"ds_write_b128 v{A_SB}, v[{PK}:{PK+3}] offset:{SB}")
        a(f"v_add_u32 v{A_SB}, 1024, v{A_SB}")
        a("s_cmp_lt_u32 s11, s25")
        a("s_cbranch_scc1 L_c_kk")
        stamp(7)
        emit(row_list("v_max_f32", M2, (8,)) + cross_list("v_max_f32", M2, 15))
        a(f"v_mul_f32 v{M2}, s12, v{M2}")
        a(f"v_add_u32 v{A_SB}, v6, v1")
        a("s_lshl_b32 s25, s25, 1")
        a("L_c_vv:")
        a(f"ds_read_b128 v[{PK}:{PK+3}], v{A_SB} offset:{SB}")
        a(f"v_add_u32 v{A_SB}, 1024, v{A_SB}")
        slot_base(5, "s99")
        a("s_sub_u32 s5, s5, 8192")
        v_addr()
        a("s_add_u32 s10, s10, 4")
        a("s_add_u32 s99, s99, 1")
        a("s_add_u32 s11, s11, 1")
        a("s_waitcnt lgkmcnt(0)")
        for h, sv in enumerate((S, S2)):
            for k in range(2):
                a(f"v_lshlrev_b32 v{sv+2*k}, 16, v{PK+2*h+k}")
                a(f"v_and_b32 v{sv+2*k+1}, 0xffff0000, v{PK+2*h+k}")
        for sv in (S, S2):
            for k in range(4): a(f"v_fma_f32 v{sv+k}, v{sv+k}, s12, -v{M2}")
        need("s10")
        v_reads()
        v_reads(VF2, 8192)
        for sv in (S, S2):
            for k in range(4): a(f"v_exp_f32 v{sv+k}, v{sv+k}")
        for sv, pp in ((S, P), (S2, P2)):
            a(f"v_cvt_pk_bf16_f32 v{pp}, v{sv}, v{sv+1}")
            a(f"v_cvt_pk_bf16_f32 v{pp+1}, v{sv+2}, v{sv+3}")
        for k in range(4): a(f"v_add_f32 v{S+k}, v{S+k}, v{S2+k}")
        for pp in (P, P2):
            a(f"v_mov_b32_dpp v{pp+2}, v{pp} row_ror:8 {DPP}")
            a(f"v_mov_b32_dpp v{pp+3}, v{pp+1} row_ror:8 {DPP}")
        a(f"v_add_f32 v{S}, v{S}, v{S+1}")
        a(f"v_add_f32 v{S+2}, v{S+2}, v{S+3}")
        a("s_waitcnt lgkmcnt(0)")
        progress("s99")
        pv()
        pv(VF2, P2)
        a(f"v_add_f32 v{S}, v{S}, v{S+2}")
        a(f"v_add_f32 v{LS}, v{LS}, v{S}")
        a("s_cmp_lt_u32 s11, s25")
        a("s_cbranch_scc1 L_c_vv")
        a("s_add_u32 s10, s10, 2")
        a("s_cmp_lt_u32 s11, s97")
        a("s_cbranch_scc1 L_c_k")
        stats()
        a("s_branch L_c_pub")
    else:
        a("s_add_u32 s10, s10, 2")
        a("s_mov_b32 s11, 0")
        a("s_branch L_c_k")
    a("L_c_fast:")
    slot_base(5, "s99")
    a("s_add_u32 s99, s99, 1")
    slot_base(4, "s99")
    v_addr()
    v_reads()
    k_reads()
    sm = softmax_list(); i = sm.index("MARK")
    emit(sm[:i])
    a("s_waitcnt lgkmcnt(0)")
    progress("s99")
    rest = sm[i + 1:]; q = qk_list()
    pos = {0: 1, 1: 0, 2: 1, 4: 0, 5: 2, 9: 1, 12: 1, 16: 1, 20: 1}
    for j, x in enumerate(rest):
        for _ in range(pos.get(j, 0)): a(q.pop(0))
        a(x)
    assert not q
    pv()
    a("L_c_top:")
    a("s_add_u32 s11, s11, 1")
    a("s_add_u32 s10, s10, 4")
    a("s_cmp_ge_u32 s11, s97")
    a("s_cbranch_scc1 L_c_slow")
    a("s_cmp_ge_u32 s96, s10")
    a("s_cbranch_scc1 L_c_fast")
    refresh()
    a("s_cmp_ge_u32 s96, s10")
    a("s_cbranch_scc1 L_c_fast")
    a("L_c_slow:")
    if stamps or probe or leak: stamp(8)
    slot_base(5, "s99")
    v_addr()
    emit([x for x in softmax_list() if x != "MARK"])
    stats()
    if stamps or probe or leak: stamp(9)
    need("s6")
    v_reads()
    a("s_add_u32 s99, s99, 1")
    a("s_cmp_ge_u32 s11, s97")
    a("s_cbranch_scc1 L_c_last")
    a("s_waitcnt lgkmcnt(0)")
    pv()
    progress("s99")
    a("L_c_k:")
    need("s10")
    slot_base(4, "s99")
    k_reads()
    q = qk_list()
    for j in range(8):
        if not (stamps or probe or leak): a(f"s_waitcnt lgkmcnt({7-j})")
        elif j == 0: a("s_waitcnt lgkmcnt(0)")
        a(q[j])
    a("s_branch L_c_top")
    a("L_c_last:")
    if sig1 is not None and s1pos == "last": a(f"ds_add_u32 v{A1}, v{ONE} offset:{PCNT}")
    a("s_waitcnt lgkmcnt(0)")
    pv()
    progress("s99")
    a("L_c_pub:")
    for k in range(4): a(f"v_mov_b32_dpp v{AO+k}, v{AO+4+k} row_ror:8 row_mask:0xf bank_mask:0xc")
    for k in range(4):
        a(f"v_mul_f32 v{AO+k}, v{RL}, v{AO+k}")
    apply_tag(AO, [TO, TO + 1, TO + 2, LB])
    for k in range(4): a(f"ds_bpermute_b32 v{AO+k}, v{A_PERM}, v{AO+k}")
    a("s_waitcnt lgkmcnt(0)")
    if "o" not in abl: a(f"buffer_store_dwordx4 v[{AO}:{AO+3}], v{A_OP}, s[48:51], s44 offen {ost}")
    if sig1 is not None and s1pos == "store": a(f"ds_add_u32 v{A1}, v{ONE} offset:{PCNT}")
    stamp(10)
    PD, WF, BF, WA = 64, 32, 96, 88
    a("s_lshl_b32 s99, s99, 2")
    a("s_add_u32 s22, s99, s3")
    a("s_add_u32 s22, s22, 8")
    a("s_add_u32 s23, s22, 4")
    for st in range(2):
        a(f"s_sub_u32 s4, s{22+st}, 1")
        a("s_and_b32 s4, s4, 31")
        a("s_lshl_b32 s4, s4, 12")
        for u in range(4):
            a(f"v_xor_b32 v14, {32*u}, v{TA}")
            a(f"v_add_u32 v{WA+4*st+u}, s4, v14")
    def wo_reads(st):
        for u in range(4):
            for t in range(2):
                d = WF + 8 * u + 4 * st + 2 * t
                a(f"ds_read_b64_tr_b16 v[{d}:{d+1}], v{WA+4*st+u} offset:{t*2048}")
    stamp(11)
    assert gate >= 15 - (win // 4 - 1)
    a(f"s_add_u32 s10, s99, {gate}")
    need("s10", count=False)
    stamp(14)
    def o_loads():
        for i in range(0 if "g" in abl else 4):
            a(f"buffer_load_dwordx4 v[{PD+4*i}:{PD+4*i+3}], v{A_G}, s[48:51], s{16+i} offen {old_}")
    if sig1 is not None:
        a(f"ds_read_b32 v14, v1 offset:{GO}")
        a("s_waitcnt lgkmcnt(0)")
        a("v_readfirstlane_b32 s4, v14")
        a("s_cmp_eq_u32 s4, 0")
        a("s_cbranch_scc1 L_o_notyet")
    o_loads()
    need("s22", count=False)
    wo_reads(0)
    need("s23", count=False)
    wo_reads(1)
    a(f"s_mov_b32 s60, {spin_limit}")
    if sigpos != "chk":
        a(f"s_waitcnt vmcnt({0 if sigpos == 'arr' else 3})")
        a(f"ds_add_u32 v{A1}, v{ONE} offset:{GCNT}")
    a("L_o_chk:")
    fill = tag_list(range(PD, PD + 16, 4), 12, n=3)
    a("s_waitcnt vmcnt(2)")
    a(f"v_perm_b32 v16, v{PD+7}, v{PD+3}, s20")
    a("s_waitcnt vmcnt(0)")
    chain = [f"v_perm_b32 v17, v{PD+15}, v{PD+11}, s20", "v_perm_b32 v16, v17, v16, s21",
             f"v_mov_b32_dpp v17, v16 quad_perm:[1,0,3,2] {DPP}", f"v_perm_b32 v16, v17, v16, v{SEL1}",
             f"v_mov_b32_dpp v17, v16 quad_perm:[2,3,0,1] {DPP}", f"v_perm_b32 v18, v17, v16, v{SEL2}",
             f"v_max_f32_dpp v16, v18, v18 row_ror:1 {DPP}"] + row_list("v_max_f32", 16, (2, 4, 8)) + cross_list("v_max_f32", 16, 17)
    fill += ["s_nop 0", f"v_or_b32_dpp v12, v12, v12 quad_perm:[1,0,3,2] {DPP}", "s_nop 0", f"v_or_b32_dpp v12, v12, v12 quad_perm:[2,3,0,1] {DPP}"]
    emit(interleave(chain, fill, {1: 2, 3: 2, 5: 2, 6: 2, 7: 2, 8: 2, 10: 2, 13: 2}))
    a("v_cmp_ne_u32 vcc, 0, v12")
    a("v_sub_f32 v18, v18, v16")
    a("v_exp_f32 v18, v18")
    if "o" not in abl and "c" not in abl: a("s_cbranch_vccnz L_o_again")
    a("L_o_done:")
    if sig2 and sigpos == "chk": a(f"ds_add_u32 v{A1}, v{ONE} offset:{GCNT}")
    stamp(12)
    fm = [f"v_mul_f32_dpp v{20+k}, v18, v{PD+k} quad_perm:[0,0,0,0] {DPP}" for k in range(4)]
    for i in range(1, 4):
        fm += [f"v_fmac_f32_dpp v{20+k}, v18, v{PD+4*i+k} quad_perm:[{i},{i},{i},{i}] {DPP}" for k in range(4)]
    wsum = [f"v_add_f32_dpp v16, v18, v18 row_ror:1 {DPP}"] + row_list("v_add_f32", 16, (2, 4, 8)) + cross_list("v_add_f32", 16, 17) + ["v_rcp_f32 v16, v16"]
    red = ["v_permlane32_swap_b32 v20, v22", "v_permlane32_swap_b32 v21, v23", "v_add_f32 v20, v20, v22", "v_add_f32 v21, v21, v23",
           "v_permlane16_swap_b32 v20, v21", "v_add_f32 v20, v20, v21"] + row_list("v_add_f32", 20, (4, 8))
    emit(interleave(fm + red, wsum, {3: 1, 7: 1, 11: 1, 15: 2, 19: 2, 21: 1, 22: 2}))
    a("v_mul_f32 v20, v20, v16")
    a("v_cvt_pk_bf16_f32 v20, v20, v20")
    a(f"ds_write_b16 v{A_OL}, v20 offset:{OL}")
    a(f"ds_add_u32 v{A1}, v{ONE} offset:{OCNT}")
    a(f"s_mov_b32 s60, {spin_limit}")
    a("L_x:")
    a(f"ds_read_b32 v12, v1 offset:{OCNT}")
    for u in range(4):
        for st in range(2):
            d = BF + 8 * u + 4 * st
            a(f"ds_read_b128 v[{d}:{d+3}], v{A_M+u} offset:{64*st}")
    a("s_sub_u32 s60, s60, 1")
    a("s_waitcnt lgkmcnt(0)" if (stamps or probe or leak) else "s_waitcnt lgkmcnt(8)")
    a("v_readfirstlane_b32 s61, v12")
    a("s_cselect_b32 s61, -1, s61")
    a("s_cmp_lt_u32 s61, 4")
    a("s_cbranch_scc1 L_x")
    for u in range(4):
        for st in range(2):
            if not (stamps or probe or leak): a(f"s_waitcnt lgkmcnt({7-2*u-st})")
            c = "0" if u + st == 0 else f"v[{ACC}:{ACC+3}]"
            a(f"v_mfma_f32_16x16x32_bf16 v[{ACC}:{ACC+3}], v[{WF+8*u+4*st}:{WF+8*u+4*st+3}], v[{BF+8*u+4*st}:{BF+8*u+4*st+3}], {c}")
    setexec(0x000f000f, 0x000f000f)
    apply_tag(ACC)
    a(f"buffer_store_dwordx4 v[{ACC}:{ACC+3}], v{A_SP}, s[48:51], s45 offen sc1")
    stamp(13)
    dump_stamps(12, 13)
    a("s_endpgm")
    if sig1 is not None:
        a("L_o_notyet:")
        need("s22", count=False)
        wo_reads(0)
        need("s23", count=False)
        wo_reads(1)
        lds_spin(GO, 1, 12, 0)
        o_loads()
        a(f"s_mov_b32 s60, {spin_limit}")
        a("s_branch L_o_chk")
    a("L_o_again:")
    a("s_sub_u32 s60, s60, 1")
    a("s_cbranch_scc1 L_o_done")
    if osleep: a(f"s_sleep {osleep}")
    a("s_mov_b64 exec, vcc")
    o_loads()
    a("s_mov_b64 exec, -1")
    a("s_branch L_o_chk")

    role[0] = "H"
    a("L_helper:")
    srd(56, 34, 2048)
    a("v_mov_b32 v12, 1")
    a("s_waitcnt lgkmcnt(0)")
    a("s_mov_b64 exec, 1")
    a(f"ds_add_u32 v1, v12 offset:{QCNT}")
    a("s_mov_b64 exec, -1")
    make_tag()
    wd_row(4)
    a("s_mul_i32 s4, s4, 896")
    a(f"s_add_u32 s8, s4, {GP}")
    a("s_add_u32 s9, s8, 0x10000")
    a("v_add_u32 v14, -2, v5")
    a("v_cmp_gt_u32 vcc, 14, v5")
    a("v_cndmask_b32 v14, v14, v5, vcc")
    a("v_lshlrev_b32 v15, 4, v14")
    a("v_lshl_add_u32 v15, v4, 14, v15")
    a("v_lshlrev_b32 v14, 3, v14")
    a("v_lshl_add_u32 v14, v4, 1, v14")
    a("v_add_u32 v14, v14, v1")
    leak_flag()
    if leak:
        for x in leak:
            if x[0] == "H" and x[1]: a(f"s_mov_b32 s{64+2*x[1]}, 0")
    if hstart: need(hstart, sleep=8)
    else: lds_spin(QCNT, 7 if early_t else 5, 12, 8)
    stamp(1)
    L = a.label("L_h"); D = a.label("L_hd")
    a(f"s_mov_b32 s60, {spin_limit}")
    a(f"{L}:")
    for w in range(0 if "h" in abl else 4):
        a(f"buffer_load_dwordx4 v[{32+8*w}:{35+8*w}], v15, s[48:51], s8 offen offset:{224*w} sc1")
        a(f"buffer_load_dwordx4 v[{36+8*w}:{39+8*w}], v15, s[48:51], s9 offen offset:{224*w} sc1")
    a("s_waitcnt vmcnt(0)")
    tag_check(range(32, 64, 4), 12, quad=False)
    if "h" in abl: a("s_mov_b64 vcc, 0")
    retry_masked(L, D, 16)
    stamp(2)
    G8 = list(range(32, 64, 4)); G4 = G8[::2]
    for step in ("v_permlane32_swap_b32 v{r}, v{r2}", "v_permlane32_swap_b32 v{r1}, v{r3}", "v_add_f32 v{r}, v{r}, v{r2}",
                 "v_add_f32 v{r1}, v{r1}, v{r3}", "v_permlane16_swap_b32 v{r}, v{r1}", "v_add_f32 v{r}, v{r}, v{r1}",
                 "v_cvt_pk_bf16_f32 v{r}, 0, v{r}"):
        for r in G8: a(step.format(r=r, r1=r + 1, r2=r + 2, r3=r + 3))
    for step in ("v_mul_f32 v{t}, 0xbfb8aa3b, v{g}", "v_exp_f32 v{t}, v{t}", "v_add_f32 v{t}, 1.0, v{t}", "v_rcp_f32 v{t}, v{t}",
                 "v_mul_f32 v{t}, v{t}, v{g}", "v_cvt_pk_bf16_f32 v{g}, 0, v{t}", "v_mul_f32 v{g}, v{g}, v{u}",
                 "v_cvt_pk_bf16_f32 v{g}, v{g}, v{g}"):
        for g in G4: a(step.format(g=g, t=g + 1, u=g + 4))
    for w, g in enumerate(G4): a(f"ds_write_b16 v14, v{g} offset:{HL+112*w}")
    a("s_and_b32 s4, s2, 7")
    a("s_lshr_b32 s5, s2, 6")
    a("s_lshl_b32 s5, s5, 3")
    a("s_or_b32 s4, s4, s5")
    a("s_lshl_b32 s4, s4, 1")
    a("s_bfe_u32 s5, s2, 0x10005")
    a("s_add_u32 s4, s4, s5")
    if sig2:
        a("s_lshl_b32 s5, s4, 10")
        a(f"s_add_u32 s5, s5, {AC2}")
        a("s_add_u32 s52, s38, s5")
        a("s_addc_u32 s53, s39, 0")
        a("s_lshl_b32 s47, s13, 2")
        a("s_add_u32 s47, s47, 64")
    a(f"s_lshl_b32 s5, s4, {6+sw}")
    for i in range(8 if fatom else 4): a(f"s_add_u32 s{20+i}, s5, {SP + i*RSS}")
    a("s_lshl_b32 s5, s4, 6")
    a(f"s_add_u32 s45, s5, {FP}")
    a("s_lshr_b32 s46, s4, 2")
    a("s_lshl_b32 s46, s46, 7")
    a("s_and_b32 s5, s4, 3")
    a("s_lshl_b32 s5, s5, 3")
    a("s_add_u32 s46, s46, s5")
    a("v_lshrrev_b32 v12, 2, v0")
    a("v_and_b32 v13, 3, v0")
    a(f"v_mul_u32_u24 v19, {RS}, v12")
    if fatom:
        a(f"v_mul_u32_u24 v18, {8*RSS}, v2")
        a("v_lshl_add_u32 v18, v3, 3, v18")
        a("v_bfe_i32 v23, v0, 1, 1")
        a(f"v_and_b32 v23, {TAGX}, v23")
        a("v_xor_b32 v23, s13, v23")
        a("v_and_b32 v16, 1, v0")
        a("v_lshlrev_b32 v16, 4, v16")
        a("v_lshrrev_b32 v16, v16, v23")
        a("v_lshrrev_b32 v17, 8, v16")
        a("v_lshrrev_b32 v23, 5, v0")
        a("v_and_b32 v100, 1, v0")
        a("v_lshl_add_u32 v23, v100, 1, v23")
        a("v_bfe_u32 v100, v0, 1, 2")
        a("v_lshlrev_b32 v101, 6, v23")
        a("v_lshl_add_u32 v101, v100, 2, v101")
        a("v_lshlrev_b32 v23, 1, v23")
        a("v_lshl_add_u32 v23, v100, 5, v23")
    else:
        a(f"v_mul_u32_u24 v18, {4*RSS}, v12")
        a("v_lshl_add_u32 v18, v13, 4, v18")
    a("v_lshl_add_u32 v19, v13, 4, v19")
    a("v_lshlrev_b32 v20, 5, v13")
    a("v_lshl_add_u32 v20, v4, 1, v20")
    if fatom: a("v_mov_b32 v20, v23")
    a("buffer_load_ushort v22, v20, s[40:43], s46 offen")
    wd_row(4)
    a(f"s_mul_i32 s4, s4, {RS}")
    wd_col(5)
    a("s_lshl_b32 s5, s5, 8")
    a("s_add_u32 s4, s4, s5")
    a(f"s_add_u32 s15, s4, {FP}")
    a("v_lshlrev_b32 v21, 4, v5")
    a("v_lshl_add_u32 v21, v4, 6, v21")
    tr_addr(TA)
    for u in range(4): a(f"v_xor_b32 v{28+u}, {32*u}, v{TA}")
    a("v_lshl_add_u32 v14, v4, 4, v1")
    a("v_and_b32 v12, 1, v0")
    a("v_cmp_eq_u32 s[8:9], 1, v12")
    a("v_and_b32 v12, 2, v0")
    a("v_cmp_eq_u32 s[6:7], 2, v12")
    CA = 64; HF = 48
    for k in range(16): a(f"v_mov_b32 v{CA+k}, 0")
    stamp(3)
    L = a.label("L_nt"); D = a.label("L_ntd")
    a(f"s_mov_b32 s60, {spin_limit}")
    a(f"{L}:")
    refresh()
    a(f"s_cmp_lg_u32 s97, {BIG}")
    a(f"s_cbranch_scc1 {D}")
    a("s_sleep 4")
    a("s_sub_u32 s60, s60, 1")
    a(f"s_cbranch_scc0 {L}")
    a(f"{D}:")
    light_test()
    a("s_cselect_b32 s10, 2, 6")
    a("s_add_u32 s10, s10, s97")
    a("s_lshl_b32 s10, s10, 2")
    a("s_mov_b32 s11, 0")
    need("s10", sleep=2)
    a("s_setprio 2")
    a("L_h_step:")
    a("s_and_b32 s4, s10, 31")
    a("s_lshl_b32 s4, s4, 12")
    for u in range(4): a(f"v_add_u32 v{24+u}, s4, v{28+u}")
    a(f"ds_read_b128 v[{HF}:{HF+3}], v14 offset:{HL}")
    a("v_add_u32 v14, 64, v14")
    a("s_add_u32 s10, s10, 1")
    need("s10")
    stamp(4)
    for u in range(4):
        for t in range(2):
            d = 32 + 4 * u + 2 * t
            a(f"ds_read_b64_tr_b16 v[{d}:{d+1}], v{24+u} offset:{t*2048}")
    for u in range(4):
        if not (stamps or probe or leak): a(f"s_waitcnt lgkmcnt({6-2*u})")
        elif u == 0: a("s_waitcnt lgkmcnt(0)")
        a(f"v_mfma_f32_16x16x32_bf16 v[{CA+4*u}:{CA+4*u+3}], v[{32+4*u}:{35+4*u}], v[{HF}:{HF+3}], v[{CA+4*u}:{CA+4*u+3}]")
    a("s_add_u32 s11, s11, 1")
    a("s_cmp_lt_u32 s11, 7")
    a("s_cbranch_scc1 L_h_step")
    for k in range(4): a(f"v_cndmask_b32 v{CA+k}, v{CA+k}, v{CA+4+k}, s[8:9]")
    for k in range(4): a(f"v_cndmask_b32 v{CA+8+k}, v{CA+8+k}, v{CA+12+k}, s[8:9]")
    for k in range(4): a(f"v_cndmask_b32 v{CA+k}, v{CA+k}, v{CA+8+k}, s[6:7]")
    apply_tag(CA)
    setexec(0x000f000f, 0x000f000f)
    a(f"buffer_store_dwordx4 v[{CA}:{CA+3}], v21, s[48:51], s15 offen sc1")
    a("s_mov_b64 exec, -1")
    a("s_setprio 0")
    stamp(5)
    a("s_and_b32 s4, s2, 0x18")
    a("s_cbranch_scc1 L_hend")
    def f_math():
        treduce4(96)
        emit(row_list("v_add_f32", 96, (4, 8)))
        bf16r(96, 96)
        silu_bf16(96, 96, 12)
        a("v_lshlrev_b32 v22, 16, v22")
    if flate:
        lds_spin(GCNT, 4, 12, 1)
        a("buffer_load_dwordx4 v[96:99], v19, s[48:51], s45 offen sc1")
    else:
        a("s_add_u32 s10, s10, 8")
        need("s10", sleep=1)
        L = a.label("L_f"); D = a.label("L_fd")
        a(f"s_mov_b32 s60, {spin_limit}")
        a(f"{L}:")
        a("buffer_load_dwordx4 v[96:99], v19, s[48:51], s45 offen sc1")
        a("s_waitcnt vmcnt(0)")
        tag_check([96], 12)
        retry_masked(L, D, 2)
        stamp(12)
        f_math()
    if sig2:
        a(f"s_mov_b32 s60, {spin_limit}")
        a("L_h_watch:")
        for k in range(4): a(f"s_load_dword s{28+k}, s[52:53], {256*k} glc")
        a("s_sub_u32 s60, s60, 1")
        a("s_cbranch_scc1 L_h_go")
        a("s_waitcnt lgkmcnt(0)")
        a("s_add_u32 s28, s28, s29")
        a("s_add_u32 s30, s30, s31")
        a("s_add_u32 s28, s28, s30")
        a("s_cmp_lg_u32 s28, s47")
        a("s_cbranch_scc1 L_h_watch")
        a("L_h_go:")
    else:
        lds_spin(OCNT, 4, 12, 1)
    def s_loads():
        for i in range(4):
            a(f"buffer_load_dwordx4 v[{80+4*i}:{83+4*i}], v18, s[48:51], s{20+i} offen sc1")
    s_loads()
    stamp(6)
    if flate:
        L = a.label("L_f"); D = a.label("L_fd")
        a(f"s_mov_b32 s60, {spin_limit}")
        a("s_waitcnt vmcnt(4)")
        a("s_branch L_f_chk")
        a(f"{L}:")
        a("buffer_load_dwordx4 v[96:99], v19, s[48:51], s45 offen sc1")
        a("s_waitcnt vmcnt(0)")
        a("L_f_chk:")
        tag_check([96], 12)
        retry_masked(L, D, 0)
        f_math()
    a(f"s_mov_b32 s60, {spin_limit}")
    a("L_s_chk:")
    tl = tag_list([80, 84, 88, 92], 12)
    a("s_waitcnt vmcnt(3)")
    emit(tl[0:4])
    a("s_waitcnt vmcnt(2)")
    emit(tl[4:8])
    for k in range(4): a(f"v_add_f32 v{100+k}, v{80+k}, v{84+k}")
    a("s_waitcnt vmcnt(1)")
    emit(tl[8:12])
    for k in range(4): a(f"v_add_f32 v{100+k}, v{100+k}, v{88+k}")
    a("s_waitcnt vmcnt(0)")
    for k in range(4): a(f"v_add_f32 v{100+k}, v{100+k}, v{92+k}")
    red = ["v_permlane32_swap_b32 v100, v102", "v_permlane32_swap_b32 v101, v103", "v_add_f32 v100, v100, v102", "v_add_f32 v101, v101, v103",
           "v_permlane16_swap_b32 v100, v101", "v_add_f32 v100, v100, v101"] + row_list("v_add_f32", 100, (4, 8))
    a(tl[12])
    emit(interleave(red, tl[13:] + join_list(12), {3: 2, 5: 2, 6: 1}))
    a("v_cmp_ne_u32 vcc, 0, v12")
    bf16r(100, 100)
    a("v_mul_f32 v100, v100, v96")
    a("s_cbranch_vccnz L_s_again")
    a("L_s_done:")
    stamp(13)
    bf16r(100, 100)
    a("v_add_f32 v100, v100, v22")
    a("v_cvt_pk_bf16_f32 v80, v100, v100")
    setexec(0x000f000f, 0x000f000f)
    if leak:
        a("s_cmp_lg_u32 s95, 0")
        a("s_cselect_b32 s58, 0, s58")
    a(f"buffer_store_short v80, v20, s[56:59], s46 offen{outsc}")
    stamp(14)
    a("s_cmp_eq_u32 s2, 0")
    a("s_cbranch_scc0 L_hend")
    a("s_mov_b64 exec, 1")
    a(f"s_mov_b32 s4, {EPOCH}")
    a(f"buffer_store_dword v{TG}, v0, s[48:51], s4 offen{outsc}")
    if leak:
        a("v_mov_b32 v12, 0x600df00d")
        a("buffer_store_dword v12, v0, s[48:51], s4 offen offset:4")
    a("L_hend:")
    dump_stamps(12, 13)
    if late is not None:
        a("s_mov_b64 exec, 0xff")
        a("s_lshl_b32 s4, s2, 7")
        a("s_add_u32 s4, s4, 0x800000")
        a(f"buffer_store_dwordx4 v[8:11], v6, s[48:51], s4 offen {late}")
    a("s_endpgm")

    a("L_s_again:")
    a("s_sub_u32 s60, s60, 1")
    a("s_cbranch_scc1 L_s_done")
    a("s_mov_b64 exec, vcc")
    s_loads()
    a("s_mov_b64 exec, -1")
    a("s_branch L_s_chk")

    role[0] = "T"
    a("L_ticket:")
    assert two
    a("s_cmp_lg_u32 s3, 6")
    a("s_cbranch_scc1 L_t_noent")
    pool_id(11)
    pool_member(6)
    if two:
        assert npool == 4 and dyn % 2 == 0 and lex % 2 == 0
        light_test()
        a(f"s_cselect_b32 s9, {lex // 2}, 0")
        a(f"s_add_u32 s8, s9, {dyn // 2}")
        a("v_subrev_u32 v15, s8, v0")
        a("v_cmp_gt_u32 s[100:101], s8, v0")
        a("v_cndmask_b32 v28, v15, v0, s[100:101]")
        a("s_lshl_b32 s4, s9, 4")
        a("s_sub_u32 s6, s6, s4")
        a("v_lshl_add_u32 v15, v28, 4, s6")
        a("s_bfe_u32 s4, s2, 0x10002")
        a(f"s_add_u32 s4, s4, {mem * dyn // 2}")
        a("v_lshl_add_u32 v31, v28, 1, s4")
        a("v_cmp_gt_u32 vcc, s9, v28")
        a("v_cndmask_b32 v15, v15, v31, vcc")
        a(f"s_mul_i32 s6, s11, {prot}")
        a("v_lshl_add_u32 v15, v15, 1, s6")
        a("v_and_b32 v15, 255, v15")
        a("s_lshl_b32 s7, s11, 21")
        a("v_lshl_add_u32 v15, v15, 13, s7")
        a("v_cndmask_b32 v28, 4, 8, s[100:101]")
        a("v_or_b32 v15, v15, v28")
        a("s_lshl_b32 s9, s9, 1")
    a("v_or_b32 v15, 1, v15")
    a("v_lshl_add_u32 v14, v0, 2, v1")
    if lex:
        a(f"s_add_u32 s9, s9, {dyn}")
        a("s_bfm_b64 exec, s9, 0")
    else:
        a(f"s_mov_b64 exec, {(1 << dyn) - 1}")
    a(f"ds_write_b32 v14, v15 offset:{TQ}")
    a("s_mov_b64 exec, -1")
    a("L_t_noent:")
    if otouch:
        a("s_cmp_lg_u32 s3, 7")
        a("s_cbranch_scc1 L_t_notouch2")
        need(otouch[0], sleep=8, count=False)
        a(f"s_mul_i32 s4, s2, {RSO}")
        a(f"s_add_u32 s4, s4, {OP}")
        if otouch[1] == "r":
            a("v_lshlrev_b32 v14, 7, v0")
            a("s_mov_b32 exec_hi, 0")
            a("buffer_load_dword v17, v14, s[48:51], s4 offen")
            a("s_mov_b64 exec, -1")
        else:
            for k in range(4): a(f"v_not_b32 v{20+k}, s13")
            for k in range(4): a(f"buffer_store_dwordx4 v[20:23], v6, s[48:51], s4 offen offset:{1024*k} sc1")
        a("L_t_notouch2:")
    pool_id(11)
    if stouch:
        a("s_cmp_lg_u32 s3, 7")
        a("s_cbranch_scc1 L_t_notouch")
        k = [64]
        def tch(p, off, imm=0):
            if imm: a(f"s_add_u32 s{off}, s{off}, {imm}")
            a(f"s_load_dword s{k[0]}, s[{p}:{p+1}], s{off}")
            k[0] += 1
        if "g" in stouch:
            a(f"s_mul_i32 s6, s14, {256*7168}")
            tch(28, 6); tch(30, 6); tch(28, 6, 255 * 7168); tch(30, 6)
        if "k" in stouch:
            a("s_lshl_b32 s6, s11, 21")
            tch(18, 6); tch(20, 6)
        if "t" in stouch:
            if "d" in stouch: need(40, sleep=8, count=False)
            wd_row(6)
            a(f"s_mul_i32 s6, s6, {224*2048}")
            tch(32, 6); tch(32, 6, 223 * 2048)
            rr_cc(6, 7)
            a("s_lshl_b32 s6, s6, 17")
            tch(24, 6)
        if "w" in stouch:
            a(f"s_mov_b32 s6, {0x280000}")
            tch(38, 6)
        a("s_waitcnt lgkmcnt(0)")
        a("L_t_notouch:")
    if kmap in "DEFGH":
        if kmap == "F":
            a("s_lshr_b32 s9, s11, 1")
            a("s_lshl_b32 s12, s9, 4")
            a("s_lshl_b32 s9, s9, 22")
            a("s_mov_b32 s8, s11")
        else:
            a(f"s_mul_i32 s12, s11, {prot}")
            a("s_lshl_b32 s9, s11, 21")
        a(f"s_add_u32 s12, s12, {mem*dyn + 2*lex}")
        a("s_or_b32 s9, s9, 1")
        if kmap == "H":
            a("s_and_b32 s8, s11, 3")
            a("s_and_b32 s9, s11, 12")
    elif kmap == "C":
        a(f"s_and_b32 s12, s11, {npool-1}")
        a("s_lshr_b32 s9, s2, 6")
        a(f"s_mul_i32 s4, s9, {rot}")
        a("s_add_u32 s12, s12, s4")
        a("s_lshl_b32 s12, s12, 13")
        a(f"s_add_u32 s12, s12, {64*dyn*8192 + 1}")
        a("s_lshl_b32 s9, s9, 23")
    else:
        a(f"s_mul_i32 s12, s11, {reg*8192}")
        a(f"s_add_u32 s12, s12, {mem*dyn*8192 + 1}")
    a(f"s_mul_i32 s11, s11, {cstride}")
    a(f"s_add_u32 s11, s11, {TCN}")
    a("s_add_u32 s56, s38, s11")
    a("s_addc_u32 s57, s39, 0")
    a(f"s_add_u32 s10, s3, {dyn - 6}")
    if lex:
        light_test()
        a(f"s_cselect_b32 s4, {lex}, 0")
        a("s_add_u32 s10, s10, s4")
    if early_t:
        a("s_waitcnt lgkmcnt(0)")
        a("s_add_u32 s13, s13, 0x01010101")
        a(f"s_xor_b32 s14, s13, {TAGX}")
        a("v_mov_b32 v12, 1")
        a("s_mov_b64 exec, 1")
        a(f"ds_add_u32 v1, v12 offset:{QCNT}")
        pool_member(6)
        a("s_add_u32 s6, s6, s3")
        a("s_cmp_lg_u32 s6, 6")
        a("s_cbranch_scc1 L_t_noinit")
        a("v_mov_b32 v20, 0")
        a("v_mov_b32 v21, s13")
        a("v_mov_b32 v22, s14")
        a("v_mov_b32 v23, s13")
        a("buffer_store_dwordx4 v[20:23], v0, s[48:51], s11 offen sc1")
        a("L_t_noinit:")
        a("s_mov_b64 exec, -1")
        a(f"s_sub_u32 s11, s10, {ahead}")
        a("s_max_i32 s11, s11, 0")
        light_test()
        a("s_cselect_b32 s4, 4, 14")
        need("s4", sleep=4, count=False)
        a(f"s_mov_b32 s60, {spin_limit}")
        a("L_t_rdy:")
        a("s_load_dwordx4 s[28:31], s[56:57], 0 glc")
        a("s_sub_u32 s60, s60, 1")
        a("s_cbranch_scc1 L_t_next")
        a("s_waitcnt lgkmcnt(0)")
        a("s_xor_b32 s29, s29, s13")
        a("s_xor_b32 s30, s30, s14")
        a("s_xor_b32 s31, s31, s13")
        a("s_or_b32 s29, s29, s30")
        a("s_or_b32 s29, s29, s31")
        a("s_cbranch_scc0 L_t_next")
        a("s_sleep 8")
        a("s_branch L_t_rdy")
    else:
        lds_spin(QCNT, 5, 12, 8)
    if touch:
        a("s_cmp_eq_u32 s3, 6")
        a("s_cselect_b64 s[40:41], s[32:33], s[24:25]")
        a("s_cselect_b32 s42, 7340032, s43")
        a("s_cselect_b32 s42, s42, 8388608")
        a("s_cselect_b64 exec, 0x7f, 3")
        rr_cc(6, 7)
        a("s_lshl_b32 s6, s6, 17")
        a("s_lshr_b32 s7, s2, 4")
        a(f"s_mul_i32 s7, s7, {224*2048}")
        a("s_cmp_eq_u32 s3, 6")
        a("s_cselect_b32 s6, s7, s6")
        a("v_lshlrev_b32 v14, 16, v0")
        a("buffer_load_dword v17, v14, s[40:43], s6 offen nt")
        a("s_mov_b64 exec, -1")
    a("L_t_next:")
    a(f"s_sub_u32 s11, s10, {ahead - 1}")
    lds_spin(STARTED, "s11", 12, tsleep)
    a("s_mov_b32 s15, 1")
    a("s_atomic_add s15, s[56:57], 0 glc")
    a("s_lshl_b32 s4, s10, 2")
    a("v_add_u32 v14, s4, v1")
    a("s_waitcnt lgkmcnt(0)")
    if not empt: a(f"s_min_u32 s15, s15, {nshared-1}")
    if kmap in "DEFGH":
        if kmap == "H":
            a("s_add_u32 s5, s15, s8")
            a("s_and_b32 s5, s5, 3")
            a("s_or_b32 s5, s5, s9")
            a("s_and_b32 s4, s15, -4")
            a("s_add_u32 s4, s4, s8")
            a(f"s_add_u32 s4, s4, {mem*dyn}")
            a("s_lshl4_add_u32 s4, s5, s4")
        else:
            a("s_add_u32 s4, s15, s12")
        a("s_and_b32 s4, s4, 255")
        if kmap == "F":
            a("s_lshr_b32 s5, s4, 7")
            a("s_xor_b32 s5, s5, s8")
            a("s_and_b32 s5, s5, 1")
            a("s_lshl_b32 s4, s4, 1")
            a("s_add_u32 s4, s4, s5")
        a("s_lshl_b32 s4, s4, 13")
        if kmap == "H":
            a("s_lshl_b32 s5, s5, 21")
            a("s_add_u32 s4, s4, s5")
            a("s_or_b32 s4, s4, 1")
        else:
            a("s_add_u32 s4, s4, s9")
    else:
        a(f"s_lshl_b32 s4, s15, {13 + (lgp if kmap == 'C' else 0)}")
        a("s_add_u32 s4, s4, s12")
    if kmap == "C":
        a("s_and_b32 s4, s4, 0x7fffff")
        a("s_add_u32 s4, s4, s9")
    if ztab:
        tab = sum(g << (4 * i) for i, g in enumerate(ztab))
        a(f"s_sub_u32 s5, s15, {zone}")
        a("s_and_b32 s5, s5, 0x1c")
        a(f"s_lshr_b32 s5, {tab}, s5")
        a("s_and_b32 s5, s5, 15")
        a("s_lshl_b32 s5, s5, 4")
        a("s_or_b32 s4, s4, s5")
    if wide:
        a(f"s_cmp_ge_u32 s15, {max(0, zone - wide[1])}")
        a("s_cselect_b32 s5, 16, 0")
        a("s_or_b32 s4, s4, s5")
    if empt:
        a(f"s_cmp_lt_u32 s15, {nshared}")
        a("s_cselect_b32 s4, s4, 0")
    a(f"s_add_u32 s10, s10, {ntw}")
    a(f"s_cmp_lt_u32 s15, {zone}")
    a("s_cselect_b32 s5, 0, 2")
    a("v_mov_b32 v15, s4")
    a("v_or_b32 v15, s5, v15")
    a(f"ds_write_b32 v14, v15 offset:{TQ}")
    a("s_cbranch_scc1 L_t_next")
    if sig1 is not None or sig2:
        L = a.label("L_nt"); D = a.label("L_ntd")
        a(f"s_mov_b32 s60, {spin_limit}")
        a(f"{L}:")
        refresh()
        a(f"s_cmp_lg_u32 s97, {BIG}")
        a(f"s_cbranch_scc1 {D}")
        a("s_sleep 2")
        a("s_sub_u32 s60, s60, 1")
        a(f"s_cbranch_scc0 {L}")
        a(f"{D}:")
        light_test()
        a("s_cselect_b32 s10, 2, 6")
        a("s_add_u32 s10, s10, s97")
        a("s_lshl_b32 s10, s10, 2")
        a("s_cmp_eq_u32 s3, 6")
        a("s_cbranch_scc1 L_t_zero")
    if rk:
        pool_id(6)
        a("s_lshr_b32 s4, s6, 2")
        a("s_lshl_b32 s7, s4, 14")
        if not rkgrp:
            a("s_and_b32 s5, s6, 3")
            a("s_lshl_b32 s8, s5, 8")
            a("s_add_u32 s7, s7, s8")
        a(f"s_add_u32 s7, s7, {AC1}")
        a("s_add_u32 s56, s38, s7")
        a("s_addc_u32 s57, s39, 0")
        a("s_mov_b32 s15, 1")
        a(f"s_add_u32 s11, s10, {rkat & 0xffffffff}")
        need("s11", sleep=1)
        a("s_atomic_add s15, s[56:57], 0 glc")
        tab = sum(g << (2 * i) for i, g in enumerate(rk))
        a(f"s_mov_b32 s6, {tab}")
        a("s_waitcnt lgkmcnt(0)")
        if rkgrp: a("s_lshr_b32 s15, s15, 2")
        a("s_lshl_b32 s15, s15, 1")
        a("s_lshr_b32 s6, s6, s15")
        a("s_and_b32 s6, s6, 3")
        a("v_mov_b32 v15, s6")
        a(f"ds_write_b32 v1, v15 offset:{GATE}")
    if sig1 is not None:
        pool_id(6)
        a("s_lshr_b32 s4, s6, 2")
        a("s_and_b32 s5, s6, 3")
        a("s_lshl_b32 s7, s4, 14")
        a("s_lshl_b32 s8, s5, 8")
        a("s_add_u32 s7, s7, s8")
        a(f"s_add_u32 s7, s7, {AC1}")
        a("s_add_u32 s56, s38, s7")
        a("s_addc_u32 s57, s39, 0")
        a("s_mov_b32 s15, 1")
        a("s_sub_u32 s11, s10, 2")
        need("s11", sleep=1)
        lds_spin(PCNT, sig1, 12, 0)
        for i in range(16): a(f"s_atomic_add s15, s[56:57], {1024*i}")
    if sig1 is not None or sig2:
        a("s_endpgm")
        a("L_t_zero:")
        rr_cc(6, 7)
    if sig1 is not None:
        a("s_lshl_b32 s5, s6, 10")
        a(f"s_add_u32 s5, s5, {AC1}")
        a("s_add_u32 s56, s38, s5")
        a("s_addc_u32 s57, s39, 0")
        a("v_mov_b32 v15, 1")
        a(f"s_add_u32 s11, s10, {s1from}")
        need("s11", sleep=1)
        L = a.label("L_w"); D = a.label("L_wd")
        a(f"s_mov_b32 s60, {spin_limit}")
        a(f"{L}:")
        for k in range(4): a(f"s_load_dword s{28+k}, s[56:57], {256*k} glc")
        a("s_waitcnt lgkmcnt(0)")
        a("s_add_u32 s28, s28, s29")
        a("s_add_u32 s30, s30, s31")
        a("s_add_u32 s28, s28, s30")
        a("s_cmp_eq_u32 s28, 64")
        a(f"s_cbranch_scc1 {D}")
        a("s_sub_u32 s60, s60, 1")
        a(f"s_cbranch_scc0 {L}")
        a(f"{D}:")
        a(f"ds_write_b32 v1, v15 offset:{GO}")
    if sig2:
        a("s_lshl_b32 s7, s7, 14")
        a("s_lshr_b32 s5, s2, 6")
        a("s_lshl_b32 s5, s5, 8")
        a("s_add_u32 s7, s7, s5")
        a(f"s_add_u32 s7, s7, {AC2}")
        a("v_mov_b32 v15, 1")
        a("v_lshlrev_b32 v14, 10, v0")
        a("s_add_u32 s10, s10, 15")
        need("s10", sleep=1)
        lds_spin(OCNT if sig2late else GCNT, gneed, 12, 0)
        a("s_mov_b64 exec, 0xffff")
        a("buffer_atomic_add v15, v14, s[48:51], s7 offen sc1")
    a("L_end:")
    a("s_endpgm")
    a("L_codeend:")
    name = NAME + "_kernel"
    hdr = open("cdna_kernels/" + NAME + ".s.ref").read().split("; Override launch")[0]
    txt = hdr + header([f"@launch grid=(256,1,1) block=({64*(6+ntw)},1,1) lds={LDS_BYTES}"]) + (DOC if comments else "") + kernel_begin(name) + a.text() + rodata() + \
        kernel_desc(name, 184, 102, extra="  .amdhsa_float_denorm_mode_32 3\n")
    return txt

BASE = dict(gate=13, sig2=True, dyn=12, lex=2, empt=12, flate=True, qstart=32, qlight=24, hstart=64, grow=(8, 32), two=True, dmap=True, fw=(1, 1), cmap="qu")
if __name__ == "__main__":
    open("final.s", "w").write(gen(comments=True, **BASE))
    open("k34.s", "w").write(gen(**BASE))
```

```python
import sys
from asmlib import *

QP, GP, CNT, OCN, EPOCH, SP, FP, OP, STAMP = 0, 0x10000, 0x30000, 0x34000, 0x3F000, 0x40000, 0xD0000, 0x100000, 0x400000
MISC = 0x20000
TQ, STARTED, GATE, GCNT = 0x1100, 0x21C, 0x220, 0x224
POST, PROG, QCNT, OCNT, GO, ZER, XN, HL, OL, QL = 0, 0x200, 0x210, 0x214, 0x218, 0x240, 0x300, 0x500, 0x700, 0x800
QROW = 272
SCR = 0x1700
LDS_BYTES = MISC + 0x1B00
TCN, AC1, AC2 = 0x340000, 0x390000, 0x3A0000
LOG2E = 0x3fb8aa3b
SCALE = 0x3db504f3
DPP = "row_mask:0xf bank_mask:0xf"
BIG = -1
TAGX = 0x5ac3a569

def interleave(chain, fill, gaps):
    out = []; fill = list(fill)
    for i, x in enumerate(chain):
        out.append(x)
        for _ in range(gaps.get(i, 0)):
            if fill: out.append(fill.pop(0))
    return out + fill

def gen(nt="nt", stamps=False, spin_limit=2000000, win=24, dyn=10, npool=4, outsc="", gate=10, skew=128, vtick=False,
        fsleep=0, osleep=1, qsleep=4, probe=None, cgate=False, early=True, ahead=2, ntw=2, cstride=256, late=None, gtab=None, ztab=None, wtab=None, spw=False, opw=False, fatom=False, leak=None, fine=False, wins=None, csleep=0, pace=0, pnop=0, cpf=True, sig1=None, sig2=False, touch=False, sig2late=False, lite=False, half=False, dup2=False, kmap='E', rot=0, early_t=False, empt=0, spos=0, abl='', win1=None, n1=9, hstart=0, qstart=0, sigpos='chk', gneed=4, flate=False, qlight=None):
    a = Asm()
    sw = 1 if spw else 0
    ow = 1 if opw else 0
    RS = 4096 + skew
    RSS = (4096 << sw) + skew
    RSO = (4096 << ow) + skew
    NT = " " + nt if nt else ""
    role = ["-"]
    def stamp(k):
        if lite and (k == 0 or (role[0], k) == ("H", 14)): a(f"s_memrealtime s[{64+2*k}:{65+2*k}]")
        if stamps or (leak and (k == 0 or (role[0], k) in [x[:2] for x in leak])): a(f"s_memrealtime s[{64+2*k}:{65+2*k}]")
        if probe and (k == 0 or (role[0], k) == probe[:2]): a(f"s_memrealtime s[{64+2*min(k,1)}:{65+2*min(k,1)}]")
    def leak_out():
        if not leak: return
        mine = [(i, x) for i, x in enumerate(leak) if x[0] == role[0]]
        Ln = a.label("L_noleak")
        a("s_waitcnt lgkmcnt(0)")
        srd(48, 38, 268435456)
        a("s_mov_b64 exec, 1")
        a("s_cmp_eq_u32 s93, 0")
        a(f"s_cbranch_scc1 {Ln}")
        for i, x in mine:
            if len(x) > 2:
                Ls = a.label("L_lk")
                a(f"s_cmp_lg_u32 s3, {x[2]}")
                a(f"s_cbranch_scc1 {Ls}")
            a(f"s_and_b32 s4, s{64+2*x[1]}, 0x3fff")
            a("v_mov_b32 v12, s4")
            a("s_lshl_b32 s4, s2, 3")
            a(f"s_add_u32 s4, s4, {2*i + 0x500000}")
            a("buffer_store_short v12, v0, s[48:51], s4 offen")
            if len(x) > 2: a(f"{Ls}:")
        a(f"{Ln}:")
        if role[0] == "H":
            Ln = a.label("L_noleak")
            a("s_cmp_eq_u32 s95, 0")
            a(f"s_cbranch_scc1 {Ln}")
            srd(52, 34, 2048)
            a("s_lshl_b32 s4, s2, 3")
            a("s_add_u32 s5, s4, 0x500000")
            a("buffer_load_dwordx2 v[12:13], v0, s[48:51], s5 offen")
            a("s_waitcnt vmcnt(0)")
            a("buffer_store_dwordx2 v[12:13], v0, s[52:55], s4 offen")
            a(f"{Ln}:")
    def leak_flag():
        if not leak: return
        a(f"s_load_dword s95, s[38:39], {EPOCH+4}")
        a("s_load_dword s94, s[16:17], 0")
        a("s_waitcnt lgkmcnt(0)")
        a("s_cmp_lg_u32 s95, 0x600df00d")
        a("s_cselect_b32 s93, 1, 0")
        a("s_cselect_b32 s95, 0, 1")
        a("s_cmp_lg_u32 s94, 0x3c6e3d96")
        a("s_cselect_b32 s95, s95, 0")
        a("s_cmp_lg_u32 s94, 0x3a3abc25")
        a("s_cselect_b32 s95, s95, 0")
    def probe_pad():
        if not probe or probe[0] != role[0]: return
        def until(base, lim):
            L = a.label("L_pp")
            a(f"{L}:")
            a("s_sleep 4")
            a("s_memrealtime s[70:71]")
            a("s_waitcnt lgkmcnt(0)")
            a(f"s_sub_u32 s70, s70, {base}")
            a(f"s_cmp_lt_u32 s70, {lim}")
            a(f"s_cbranch_scc1 {L}")
        a("s_waitcnt lgkmcnt(0)")
        a("s_cmp_eq_u32 s67, -1")
        a("s_cselect_b32 s66, s64, s66")
        a("s_cselect_b32 s69, 1, 0")
        until("s64", 2200)
        a("s_not_b32 s72, s64")
        a("s_atomic_umax s72, s[36:37], 0")
        until("s64", 3200)
        a("s_load_dword s72, s[36:37], 0 glc")
        a("s_waitcnt lgkmcnt(0)")
        a("s_not_b32 s72, s72")
        a("s_sub_u32 s66, s66, s72")
        if len(probe) > 3:
            a("s_atomic_add s66, s[36:37], 128")
            until("s64", 4400)
            a("s_load_dword s66, s[36:37], 128 glc")
            a("s_waitcnt lgkmcnt(0)")
            a("s_lshr_b32 s66, s66, 8")
        if probe[2] < 0 and probe[1]:
            a("s_cmp_eq_u32 s69, 1")
            a("s_cbranch_scc1 L_end")
        a(f"s_mul_i32 s66, s66, {probe[2]}")
        a(f"s_add_u32 s68, s66, {6000 if probe[2] >= 0 else 20000}")
        until("s72", "s68")
    def dump_stamps(vt, va):
        probe_pad()
        leak_out()
        if not (stamps or (lite and role[0] == "H")): return
        a("s_waitcnt lgkmcnt(0)")
        a("s_mov_b64 exec, -1")
        a(f"v_mov_b32 v{vt}, 0")
        for k in range(16):
            a(f"v_writelane_b32 v{vt}, s{64+2*k}, {k}")
        a("s_lshl_b32 s4, s2, 3")
        a("s_add_u32 s4, s4, s3")
        a("s_lshl_b32 s4, s4, 6")
        a(f"s_add_u32 s4, s4, {STAMP}")
        a(f"v_lshlrev_b32 v{va}, 2, v0")
        a("s_mov_b64 exec, 0xffff")
        a(f"buffer_store_dword v{vt}, v{va}, s[48:51], s4 offen")
    def srd(d, p, n):
        a(f"s_mov_b64 s[{d}:{d+1}], s[{p}:{p+1}]")
        a(f"s_mov_b32 s{d+2}, {n}")
        a(f"s_mov_b32 s{d+3}, 0x20000")
    def setexec(lo, hi):
        a(f"s_mov_b32 exec_lo, {lo:#x}")
        a(f"s_mov_b32 exec_hi, {hi:#x}")
    def row_list(op, r, steps=(1, 2, 4, 8)):
        return [f"{op}_dpp v{r}, v{r}, v{r} row_ror:{k} {DPP}" for k in steps]
    def cross_list(op, r, t):
        return [f"v_mov_b32 v{t}, v{r}", f"v_permlane16_swap_b32 v{r}, v{t}", f"{op} v{r}, v{r}, v{t}",
                f"v_mov_b32 v{t}, v{r}", f"v_permlane32_swap_b32 v{r}, v{t}", f"{op} v{r}, v{r}, v{t}"]
    def emit(l):
        for x in l: a(x)
    def bf16r(d, s):
        a(f"v_cvt_pk_bf16_f32 v{d}, 0, v{s}")
    TG = 8
    def make_tag():
        a("s_add_u32 s13, s13, 0x01010101")
        a("s_movk_i32 s63, 0xff")
        a("v_bfe_i32 v12, v0, 0, 1")
        a(f"v_and_b32 v12, {TAGX}, v12")
        a(f"v_xor_b32 v{TG}, s13, v12")
        for k in range(1, 4): a(f"v_lshrrev_b32 v{TG+k}, {8*k}, v{TG}")
    def apply_tag(r, tags=None):
        for k in range(4): a(f"v_bfi_b32 v{r+k}, s63, v{tags[k] if tags else TG+k}, v{r+k}")
    def tag_list(grans, t, n=4):
        o = []
        for g in grans:
            for k in range(n):
                if not o: o.append(f"v_xor_b32 v{t}, v{g+k}, v{TG+k}")
                else: o.append(f"v_bitop3_b32 v{t}, v{t}, v{g+k}, v{TG+k} bitop3:0xf6")
        o.append(f"v_and_b32 v{t}, 0xff, v{t}")
        return o
    def join_list(t, quad=True):
        o = [f"v_or_b32_dpp v{t}, v{t}, v{t} quad_perm:[1,0,3,2] {DPP}"]
        if quad: o.append(f"v_or_b32_dpp v{t}, v{t}, v{t} quad_perm:[2,3,0,1] {DPP}")
        return o
    def tag_check(grans, t, quad=True):
        emit(tag_list(grans, t) + join_list(t, quad))
        a(f"v_cmp_ne_u32 vcc, 0, v{t}")
    def treduce4(r):
        a(f"v_permlane32_swap_b32 v{r}, v{r+2}")
        a(f"v_permlane32_swap_b32 v{r+1}, v{r+3}")
        a(f"v_add_f32 v{r}, v{r}, v{r+2}")
        a(f"v_add_f32 v{r+1}, v{r+1}, v{r+3}")
        a(f"v_permlane16_swap_b32 v{r}, v{r+1}")
        a(f"v_add_f32 v{r}, v{r}, v{r+1}")
    def retry_masked(L, D, sleep=1):
        a("s_and_b64 exec, exec, vcc")
        a(f"s_cbranch_execz {D}")
        if sleep: a(f"s_sleep {sleep}")
        a("s_sub_u32 s60, s60, 1")
        a(f"s_cbranch_scc0 {L}")
        a(f"{D}:")
        a("s_mov_b64 exec, -1")
    def silu_bf16(d, x, t):
        a(f"v_mul_f32 v{t}, 0xbfb8aa3b, v{x}")
        a(f"v_exp_f32 v{t}, v{t}")
        a(f"v_add_f32 v{t}, 1.0, v{t}")
        a(f"v_rcp_f32 v{t}, v{t}")
        a(f"v_mul_f32 v{t}, v{t}, v{x}")
        bf16r(d, t)
    def lds_spin(off, n, vt, sleep=1):
        L = a.label("L_spin")
        a(f"s_mov_b32 s60, {spin_limit}")
        if sleep:
            E = a.label("L_spe")
            a(f"s_branch {E}")
        a(f"{L}:")
        if sleep:
            a(f"s_sleep {sleep}")
            a(f"{E}:")
        a(f"ds_read_b32 v{vt}, v1 offset:{off}")
        a("s_sub_u32 s60, s60, 1")
        a("s_waitcnt lgkmcnt(0)")
        a(f"v_readfirstlane_b32 s61, v{vt}")
        a("s_cselect_b32 s61, -1, s61")
        a(f"s_cmp_lt_u32 s61, {n}")
        a(f"s_cbranch_scc1 {L}")
    def refresh():
        a(f"ds_read_b64 v[12:13], v1 offset:{POST}")
        a("s_waitcnt lgkmcnt(0)")
        a("v_readfirstlane_b32 s96, v12")
        a("v_readfirstlane_b32 s97, v13")
    def need(x, sleep=0, count=True):
        if role[0] == "C": sleep = csleep
        L = a.label("L_need"); D = a.label("L_got")
        a(f"s_cmp_ge_u32 s96, {x}")
        a(f"s_cbranch_scc1 {D}")
        a(f"s_mov_b32 s60, {spin_limit}")
        a(f"{L}:")
        if sleep: a(f"s_sleep {sleep}")
        a(f"ds_read_b64 v[12:13], v1 offset:{POST}")
        a("s_sub_u32 s60, s60, 1")
        a("s_waitcnt lgkmcnt(0)")
        a("v_readfirstlane_b32 s96, v12")
        if count: a("v_readfirstlane_b32 s97, v13")
        a("s_cselect_b32 s96, -1, s96")
        if count: a("s_cselect_b32 s97, 0, s97")
        a(f"s_cmp_lt_u32 s96, {x}")
        a(f"s_cbranch_scc1 {L}")
        a(f"{D}:")
    def light_test():
        a("s_and_b32 s4, s2, 63")
        a("s_cmp_ge_u32 s4, 56")
    def gu_col(d):
        a("s_lshr_b32 s4, s2, 6")
        a("s_mul_i32 s4, s4, 56")
        a("s_and_b32 s5, s2, 63")
        a("s_add_u32 s4, s4, s5")
        a(f"s_lshr_b32 s{d}, s4, 2")
    def rr_cc(srr, scc):
        a(f"s_and_b32 s{srr}, s2, 7")
        a("s_lshr_b32 s62, s2, 5")
        a("s_lshl_b32 s62, s62, 3")
        a(f"s_or_b32 s{srr}, s{srr}, s62")
        a(f"s_bfe_u32 s{scc}, s2, 0x20003")
    lgp = npool.bit_length() - 1
    def pool_id(d):
        a("s_lshr_b32 s5, s2, 3")
        a("s_add_u32 s5, s5, s2")
        a(f"s_and_b32 s5, s5, {npool-1}")
        a("s_lshr_b32 s4, s2, 6")
        a(f"s_lshl_b32 s4, s4, {lgp}")
        a(f"s_add_u32 s{d}, s4, s5")
    def pool_member(d):
        a("s_bfe_u32 s5, s2, 0x30003")
        a(f"s_lshr_b32 s5, s5, {lgp}")
        a("s_lshl_b32 s5, s5, 3")
        a("s_and_b32 s4, s2, 7")
        a(f"s_add_u32 s{d}, s5, s4")
    def tr_addr(d):
        a("v_lshrrev_b32 v12, 2, v5")
        a("v_lshl_add_u32 v13, v4, 2, v12")
        a("v_bfe_u32 v12, v13, 1, 2")
        a("v_lshlrev_b32 v12, 5, v12")
        a("v_lshl_add_u32 v12, v13, 7, v12")
        a("v_and_b32 v13, 3, v0")
        a(f"v_lshl_add_u32 v{d}, v13, 3, v12")
    def slot_base(d, slot):
        a(f"s_and_b32 s{d}, {slot}, 7")
        a(f"s_lshl_b32 s{d}, s{d}, 14")

    a("s_cmp_ge_u32 s2, 256")
    a("s_cbranch_scc1 L_end")
    a("s_load_dwordx16 s[16:31], s[0:1], 0")
    a("s_load_dwordx8 s[32:39], s[0:1], 64")
    stamp(0)
    if probe: a("s_mov_b32 s67, -1")
    if cpf:
        a("s_getpc_b64 s[4:5]")
        a("L_pc:")
        a("v_subrev_u32 v12, 64, v0")
        a("v_mov_b32 v13, 0")
        a("v_cmp_gt_u32 vcc, (L_codeend-L_pc)/128, v12")
        a("v_lshlrev_b32 v12, 7, v12")
        a("s_and_saveexec_b64 s[6:7], vcc")
        a("s_cbranch_execz L_nopf")
        a("v_lshl_add_u64 v[12:13], v[12:13], 0, s[4:5]")
        a("global_load_dword v16, v[12:13], off offset:64")
        a("L_nopf:")
        a("s_mov_b64 exec, -1")
    a("v_cmp_gt_u32 vcc, 64, v0")
    a("v_lshrrev_b32 v1, 6, v0")
    a("v_and_b32 v0, 63, v0")
    a("v_lshrrev_b32 v2, 3, v0")
    a("v_and_b32 v3, 7, v0")
    a("v_lshrrev_b32 v4, 4, v0")
    a("s_and_b32 s14, s2, 3")
    a("s_mov_b32 s43, 0x20000")
    a("s_cbranch_vccz L_others")

    role[0] = "L"
    a("s_setprio 3")
    a("v_lshrrev_b32 v12, 5, v0")
    a("v_and_b32 v13, 3, v2")
    a("v_lshl_add_u32 v12, v12, 3, v13")
    a("v_lshlrev_b32 v13, 1, v4")
    a("v_xor_b32 v13, v13, v3")
    a("v_lshlrev_b32 v13, 4, v13")
    a("v_lshl_add_u32 v16, v12, 13, v13")
    a("s_lshl_b32 s8, s14, 21")
    a("s_lshr_b32 s5, s2, 2")
    a("s_lshl_b32 s5, s5, 7")
    a("s_add_u32 s8, s8, s5")
    a("s_mov_b32 m0, 0")
    a("s_mov_b32 s42, 8388608")
    a("s_waitcnt lgkmcnt(0)")
    a("s_mov_b64 s[40:41], s[22:23]")
    def wloads(vo, stride):
        for i in range(4):
            ro = (16 * (i & 1) + 4 * (i >> 1)) * stride - 1024 * i
            if i: a(f"s_add_u32 s9, s8, {ro}")
            a(f"buffer_load_dwordx4 v{vo}, s[40:43], s{9 if i else 8} offen offset:{1024*i}{NT} lds")
        a(f"s_add_u32 s8, s8, {32*stride}")
        a("s_add_u32 m0, m0, 4096")
    a("L_ld_q:")
    wloads(16, 8192)
    a("s_cmp_lt_u32 m0, 0x8000")
    a("s_cbranch_scc1 L_ld_q")
    a("s_branch L_loader")
    a("L_others:")
    a("v_readfirstlane_b32 s3, v1")
    a("v_lshlrev_b32 v14, 5, v0")
    a("v_lshlrev_b32 v15, 3, v0")
    a("s_lshl_b32 s10, s14, 9")
    a("s_movk_i32 s42, 2048")
    a("s_xor_b32 s3, s3, 4")
    a("s_cmp_gt_u32 s3, 3")
    a("s_waitcnt lgkmcnt(0)")
    a("s_mov_b64 s[40:41], s[16:17]")
    a(f"s_load_dword s13, s[38:39], {EPOCH}")
    a("s_cbranch_scc1 L_nox")
    a("buffer_load_dwordx4 v[56:59], v14, s[40:43], 0 offen")
    a("buffer_load_dwordx4 v[60:63], v14, s[40:43], 0 offen offset:16")
    a("buffer_load_dwordx2 v[64:65], v15, s[40:43], s10 offen")
    a("L_nox:")
    a("s_barrier")
    a("s_branch L_notloader")
    a("L_loader:")
    mem = 64 // npool; reg = 1024 // npool
    nshared = reg - mem * dyn
    zone = nshared - ntw * mem + empt
    assert ntw == 2 and dyn + 2 * nshared + 4 <= 512
    a("s_mov_b32 s3, 4")
    a(f"v_mov_b32 v1, {MISC}")
    for k in range(4): a(f"v_mov_b32 v{28+k}, 0")
    a("v_lshl_add_u32 v14, v0, 2, v1")
    a("v_lshl_add_u32 v15, v0, 4, v1")
    a(f"ds_write_b32 v14, v30 offset:{PROG}")
    a(f"ds_write_b128 v15, v[28:31] offset:{TQ}")
    a(f"ds_write_b128 v15, v[28:31] offset:{TQ+1024}")
    pool_id(11)
    pool_member(6)
    if kmap in "DEFGH":
        assert npool == 4
        if kmap == "H":
            a("s_add_u32 s4, s11, s6")
            a("s_and_b32 s4, s4, 3")
            a("s_and_b32 s11, s11, 12")
            a("s_or_b32 s11, s11, s4")
        if kmap == "G":
            a(f"s_mul_i32 s6, s6, {dyn}")
            a("v_add_u32 v15, s6, v0")
        else:
            a("v_lshl_add_u32 v15, v0, 4, s6")
        if kmap in "EH":
            a("v_and_b32 v31, 1, v0")
            a("v_xor_b32 v15, v15, v31")
        if kmap == "F":
            a("s_lshr_b32 s7, s11, 1")
            a("s_lshl_b32 s6, s7, 4")
            a("v_add_u32 v15, s6, v15")
            a("v_and_b32 v15, 255, v15")
            a("v_lshrrev_b32 v31, 7, v15")
            a("v_xor_b32 v31, s11, v31")
            a("v_and_b32 v31, 1, v31")
            a("v_lshl_add_u32 v15, v15, 1, v31")
            a("s_lshl_b32 s7, s7, 22")
        else:
            a("s_lshl_b32 s6, s11, 4")
            a("v_add_u32 v15, s6, v15")
            a("v_and_b32 v15, 255, v15")
            a("s_lshl_b32 s7, s11, 21")
        a("v_lshl_add_u32 v15, v15, 13, s7")
    elif kmap == "A":
        a(f"s_mul_i32 s7, s11, {reg*8192}")
        a(f"s_mul_i32 s6, s6, {dyn*8192}")
        a("s_add_u32 s7, s7, s6")
        sh = 13
    elif kmap == "B":
        a(f"s_mul_i32 s7, s11, {reg*8192}")
        a("s_lshl_b32 s6, s6, 13")
        a("s_add_u32 s7, s7, s6")
        sh = 13 + (mem.bit_length() - 1)
    else:
        a(f"s_and_b32 s7, s11, {npool-1}")
        a(f"s_lshl_b32 s6, s6, {lgp}")
        a("s_add_u32 s7, s7, s6")
        a("s_lshl_b32 s7, s7, 13")
        sh = 19
    a(f"v_mov_b32 v31, {BIG}")
    if kmap not in "DEFGH": a(f"v_lshl_add_u32 v15, v0, {sh}, s7")
    if kmap == "C":
        a("s_lshr_b32 s6, s2, 6")
        if rot:
            a(f"s_mul_i32 s7, s6, {rot*8192}")
            a("v_add_u32 v15, s7, v15")
            a("v_and_b32 v15, 0x7fffff, v15")
        a("s_lshl_b32 s6, s6, 23")
        a("v_add_u32 v15, s6, v15")
    a("v_or_b32 v15, 1, v15")
    a("v_readfirstlane_b32 s99, v15")
    a(f"ds_write_b64 v1, v[30:31] offset:{POST}")
    a(f"s_mov_b64 exec, {(1 << dyn) - 1}")
    a(f"ds_write_b32 v14, v15 offset:{TQ}")
    a("s_mov_b64 exec, -1")
    a("s_waitcnt lgkmcnt(0)")
    a("s_barrier")
    if stamps:
        for k in range(1, 16): a(f"s_mov_b32 s{64+2*k}, 0")
    stamp(1)
    def wait_post(w):
        a("v_add_u32 v30, 1, v30")
        a(f"s_waitcnt vmcnt({w})")
        a(f"ds_write_b64 v29, v[30:31] offset:{POST}")
    def unit(vo, srdn, so):
        for i in range(4):
            if half and i == 2: a(f"s_waitcnt vmcnt({win - 4})")
            a(f"buffer_load_dwordx4 v{vo[i]}, s[{srdn}:{srdn+3}], s{so} offen offset:{1024*i}{NT} lds")
        a("s_add_u32 m0, m0, 4096")
        if pace: a(f"s_sleep {pace}")
    a("v_and_b32 v5, 15, v0")
    a("v_lshl_add_u32 v29, v0, 3, v1")
    VG, VD, VK, VV = [40, 41, 42, 43], [44, 45, 46, 47], [20, 21, 22, 23], [24, 25, 24, 25]
    a(f"v_mul_u32_u24 v{VG[0]}, 7168, v12")
    a(f"v_add_u32 v{VG[0]}, v{VG[0]}, v13")
    a(f"v_lshl_add_u32 v{VD[0]}, v12, 11, v13")
    for i in range(1, 4):
        a(f"v_add_u32 v{VG[i]}, {(16 * (i & 1) + 4 * (i >> 1)) * 7168 - 1024 * i}, v{VG[0]}")
        a(f"v_add_u32 v{VD[i]}, {(16 * (i & 1) + 4 * (i >> 1)) * 2048 - 1024 * i}, v{VD[0]}")
    gu_col(6)
    a("s_lshl_b32 s6, s6, 7")
    a(f"s_mul_i32 s7, s14, {256*7168}")
    a("s_add_u32 s12, s7, s6")
    if "w" in abl:
        a("s_lshl_b32 s12, s4, 15")
        for i in range(4):
            a(f"v_lshlrev_b32 v{VG[i]}, 4, v0")
            a(f"v_lshlrev_b32 v{VD[i]}, 4, v0")
    a("s_mov_b32 s8, s12")
    a("s_mov_b32 s42, 7340032")
    a("s_mov_b64 s[40:41], s[28:29]")
    for j in range(4):
        a(f"v_add_u32 v14, {4*j}, v4")
        a("v_xor_b32 v14, v14, v5")
        a("v_lshlrev_b32 v14, 4, v14")
        a(f"v_lshl_add_u32 v{VK[j]}, v4, 8, v14")
    for j in range(2):
        a(f"v_add_u32 v14, {4*j}, v4")
        a("v_lshlrev_b32 v14, 1, v14")
        a("v_xor_b32 v14, v14, v5")
        a("v_lshlrev_b32 v14, 4, v14")
        a(f"v_lshl_add_u32 v{VV[j]}, v4, 8, v14")
    srd(44, 18, 33554432)
    srd(48, 20, 33554432)
    srd(52, 32, 7340032)
    srd(56, 24, 8388608)
    a("s_lshr_b32 s6, s2, 4")
    a(f"s_mul_i32 s96, s6, {224*2048}")
    a("s_and_b32 s6, s2, 15")
    a("s_lshl_b32 s6, s6, 7")
    a("s_add_u32 s96, s96, s6")
    rr_cc(6, 7)
    a("s_lshl_b32 s6, s6, 17")
    a("s_lshl_b32 s7, s7, 9")
    a("s_add_u32 s97, s6, s7")
    if "w" in abl:
        a("s_mul_i32 s96, s2, 28672")
        a("s_lshl_b32 s97, s2, 15")
    a("s_mov_b32 s7, s99")
    a("s_mov_b32 s10, 0")
    a("s_mov_b32 s11, 0")
    a("s_mov_b32 s15, 0")
    a("s_mov_b32 s98, 2")
    a("s_mov_b32 s6, 0x10000")
    light_test()
    w1 = win1 or win
    assert win <= w1 <= 32
    for w in range(28, w1 - 4, -4): wait_post(w)
    a("s_cbranch_scc1 L_ld_kv")
    a("s_mov_b32 s98, 6")
    a("L_ld_gu:")
    wait_post(w1 - 4)
    unit(VG, 40, 8)
    a(f"s_add_u32 s8, s8, {4096 if 'w' in abl else 32*7168}")
    a("s_cmp_lt_u32 m0, s6")
    a("s_cbranch_scc1 L_ld_gu")
    a("s_mov_b32 s8, s12")
    a("s_mov_b64 s[40:41], s[30:31]")
    a("s_mov_b32 s6, 0x18000")
    a("s_cmp_lt_u32 m0, s6")
    a("s_cbranch_scc1 L_ld_gu")
    a("L_ld_kv:")
    stamp(2)
    leak_flag()
    if win1:
        assert n1 <= dyn - ahead
        a("L_ld_tile1:")
        a("s_and_b32 s8, s7, 0xffffe000")
        wait_post(w1 - 4)
        unit(VK, 44, 8)
        a("s_add_u32 s9, s8, 4096")
        a("s_add_u32 s11, s11, 1")
        a("v_mov_b32 v38, s11")
        wait_post(w1 - 4)
        unit(VK, 44, 9)
        a("v_lshl_add_u32 v36, v38, 2, v1")
        a("s_add_u32 s10, s10, 1")
        a("s_add_u32 s98, s98, 1")
        wait_post(w1 - 4)
        unit(VV, 48, 8)
        a(f"ds_read_b128 v[32:35], v1 offset:{PROG}")
        a(f"ds_read_b32 v37, v36 offset:{TQ}")
        wait_post(w1 - 4)
        unit(VV, 48, 9)
        a("s_and_b32 m0, m0, 0x1ffff")
        a(f"s_mov_b32 s60, {spin_limit}")
        a("L_ld_chk1:")
        a("s_waitcnt lgkmcnt(0)")
        a("v_min3_u32 v32, v32, v33, v34")
        a("v_readfirstlane_b32 s7, v37")
        a("v_min_u32 v32, v32, v35")
        a("s_sub_u32 s60, s60, 1")
        a("v_readfirstlane_b32 s4, v32")
        a("s_cselect_b32 s4, s98, s4")
        a("s_add_u32 s4, s4, 8")
        a("s_cmp_gt_u32 s4, s98")
        a("s_cbranch_scc1 L_ld_free1")
        a(f"ds_read_b128 v[32:35], v1 offset:{PROG}")
        a("s_branch L_ld_chk1")
        a("L_ld_free1:")
        a(f"s_cmp_lt_u32 s10, {n1}")
        a("s_cbranch_scc1 L_ld_tile1")
        for w in range(w1 - 4, win - 4, -4): wait_post(w)
    a("L_ld_tile:")
    a("s_and_b32 s8, s7, 0xffffe000")
    wait_post(win - 4)
    unit(VK, 44, 8)
    a("s_add_u32 s9, s8, 4096")
    a("s_bfe_u32 s4, s7, 0x10001")
    a("s_and_b32 s5, s11, 1")
    a("s_lshl_b32 s4, s4, s5")
    a("s_or_b32 s15, s15, s4")
    a("s_add_u32 s11, s11, 1")
    a("s_xor_b32 s5, s5, 1")
    a("s_bitcmp1_b32 s15, s5")
    a("s_addc_u32 s11, s11, 0")
    a("v_mov_b32 v38, s11")
    if spos == 0: a(f"ds_write_b32 v1, v38 offset:{STARTED}")
    wait_post(win - 4)
    unit(VK, 44, 9)
    if spos == 1: a(f"ds_write_b32 v1, v38 offset:{STARTED}")
    a("v_lshl_add_u32 v36, v38, 2, v1")
    a("s_add_u32 s10, s10, 1")
    a("s_cmp_eq_u32 s15, 3")
    a(f"s_cselect_b32 s4, s10, {BIG}")
    a("v_mov_b32 v31, s4")
    a("s_cselect_b32 s4, 4, 1")
    a("s_add_u32 s98, s98, s4")
    wait_post(win - 4)
    unit(VV, 48, 8)
    if spos == 2: a(f"ds_write_b32 v1, v38 offset:{STARTED}")
    def peek():
        a(f"ds_read_b128 v[32:35], v1 offset:{PROG}")
        a(f"ds_read_b32 v37, v36 offset:{TQ}")
    peek()
    wait_post(win - 4)
    unit(VV, 48, 9)
    if spos == 3: a(f"ds_write_b32 v1, v38 offset:{STARTED}")
    a("s_and_b32 m0, m0, 0x1ffff")
    if stamps: a("s_memrealtime s[100:101]")
    a(f"s_mov_b32 s60, {spin_limit}")
    a("L_ld_chk:")
    a("s_waitcnt lgkmcnt(0)")
    a("v_min3_u32 v32, v32, v33, v34")
    a("v_readfirstlane_b32 s5, v37")
    a("v_min_u32 v32, v32, v35")
    a("s_cmp_eq_u32 s15, 3")
    a("v_readfirstlane_b32 s4, v32")
    a("s_cbranch_scc1 L_ld_end")
    a("s_add_u32 s4, s4, 8")
    a("s_cmp_gt_u32 s4, s98")
    a("s_cselect_b32 s7, s5, 0")
    a("s_bitcmp1_b32 s7, 0")
    if stamps:
        a("s_cbranch_scc0 L_ld_again")
        a("s_memrealtime s[62:63]")
        a("s_waitcnt lgkmcnt(0)")
        a("s_sub_u32 s62, s62, s100")
        a("s_add_u32 s88, s88, s62")
        a("s_max_u32 s90, s90, s62")
        a("s_branch L_ld_tile")
    else:
        a("s_cbranch_scc1 L_ld_tile")
    a("L_ld_again:")
    if empt:
        a("s_cmp_eq_u32 s15, 3")
        a("s_cselect_b32 s5, 0, s5")
        a("s_cmp_lg_u32 s5, 2")
        a("s_cbranch_scc1 L_ld_peek")
        a("s_and_b32 s5, s11, 1")
        a("s_bitset1_b32 s15, s5")
        a("s_add_u32 s11, s11, 1")
        a("v_mov_b32 v32, s11")
        a("v_lshl_add_u32 v36, v32, 2, v1")
        a(f"ds_write_b32 v1, v32 offset:{STARTED}")
        a("s_cmp_eq_u32 s15, 3")
        a("s_cbranch_scc0 L_ld_peek")
        a("v_mov_b32 v31, s10")
        a("s_add_u32 s98, s98, 3")
        a("s_cmp_gt_u32 s4, s98")
        a("s_cbranch_scc1 L_ld_go")
        a("L_ld_peek:")
    peek()
    a("s_sub_u32 s60, s60, 1")
    a("s_cbranch_scc0 L_ld_chk")
    a("v_mov_b32 v30, 0x7fffffff")
    a("v_mov_b32 v31, s10")
    a(f"ds_write_b64 v29, v[30:31] offset:{POST}")
    a("s_endpgm")
    a("L_ld_end:")
    a("s_add_u32 s4, s4, 8")
    a("s_cmp_gt_u32 s4, s98")
    a("s_cbranch_scc0 L_ld_again")
    a("L_ld_go:")
    stamp(3)
    if stamps:
        a("s_add_u32 s92, s10, s64")
        a("s_add_u32 s88, s88, s64")
        a("s_add_u32 s90, s90, s64")
    def tail(wn):
        for w in range(win - 4, wn - 4, -4): wait_post(w)
        skip = max(0, (wn - win) // 4)
        for k in range(15):
            if k >= skip: wait_post(wn - 4)
            if k < 7:
                unit(VD, 52, 96)
                if k < 6: a(f"s_add_u32 s96, s96, {4096 if 'w' in abl else 0x10000}")
            else:
                unit(VD, 56, 97)
                if k < 14: a(f"s_add_u32 s97, s97, {4096 if 'w' in abl else 0x10000 - 384 if k == 10 else 128}")
            if k % 4 == 3: a("s_and_b32 m0, m0, 0x1ffff")
            if fine and k < 6: stamp(7 + k)
            if k == 6: stamp(4)
        stamp(5)
        for w in range(wn - 4, -4, -4): wait_post(w)
        stamp(6)
    ws_ = wins or [win]
    if len(ws_) > 1: a("s_bfe_u32 s4, s7, 0x40004")
    for c in range(1, len(ws_)):
        a(f"s_cmp_eq_u32 s4, {c}")
        a(f"s_cbranch_scc1 L_ld_tail{c}")
    for c, wn in enumerate(ws_):
        a(f"L_ld_tail{c}:")
        tail(wn)
        if c < len(ws_) - 1: a("s_branch L_ld_done" if (stamps or probe or leak) else "s_endpgm")
    a("L_ld_done:")
    if stamps:
        srd(48, 38, 268435456)
        a("s_getreg_b32 s94, hwreg(HW_REG_XCC_ID)")
        a("s_getreg_b32 s95, hwreg(HW_REG_HW_ID)")
        a("s_and_b32 s94, s94, 15")
        a("s_lshl_b32 s94, s94, 16")
        a("s_and_b32 s95, s95, 0xffff")
        a("s_or_b32 s94, s94, s95")
        a("s_or_b32 s94, s94, 0x1000000")
    dump_stamps(12, 13)
    a("s_endpgm")

    a("L_notloader:")
    if stamps or lite:
        for k in range(1, 16): a(f"s_mov_b32 s{64+2*k}, 0")
    a(f"v_mov_b32 v1, {MISC}")
    a("v_and_b32 v5, 15, v0")
    a("v_lshlrev_b32 v6, 4, v0")
    srd(48, 38, 268435456)
    a("s_mov_b32 s96, 0")
    a(f"s_mov_b32 s97, {BIG}")
    a("s_cmp_eq_u32 s3, 5")
    a("s_cbranch_scc1 L_helper")
    a("s_cmp_gt_u32 s3, 5")
    a("s_cbranch_scc1 L_ticket")

    role[0] = "C"
    XF = 32
    AF = 64
    ACC = 80
    TA = 7
    a("s_setprio 1")
    tr_addr(TA)
    a("s_waitcnt lgkmcnt(0)")
    make_tag()
    a("s_waitcnt vmcnt(0)")
    stamp(1)
    pool_member(6)
    a("s_cmp_lg_u32 s6, 0")
    a("s_cbranch_scc1 L_nozero")
    pool_id(6)
    a("v_mov_b32 v12, 0")
    a("v_lshlrev_b32 v13, 10, v0")
    a(f"s_mul_i32 s7, s6, {cstride}")
    a(f"s_add_u32 s7, s7, {TCN}")
    a("s_mov_b64 exec, 1")
    if sig1 is not None or sig2:
        assert npool == 4
        a("s_cmp_eq_u32 s3, 0")
        a("s_cbranch_scc1 " + ("L_zeroed" if early_t else "L_dozero"))
        a("s_mov_b64 exec, 0xffff")
        a("s_lshr_b32 s4, s6, 2")
        a("s_and_b32 s5, s6, 3")
        a("s_lshl_b32 s7, s4, 14")
        a("s_lshl_b32 s8, s5, 8")
        a("s_add_u32 s7, s7, s8")
        a(f"s_add_u32 s7, s7, {AC1}")
        a("s_cmp_eq_u32 s3, 1")
        a("s_cbranch_scc1 L_dozero")
        a("s_lshl_b32 s7, s5, 14")
        a("s_lshl_b32 s8, s4, 8")
        a("s_add_u32 s7, s7, s8")
        a(f"s_add_u32 s7, s7, {AC2}")
        a("v_mov_b32 v12, s13")
        a("s_cmp_eq_u32 s3, 2")
    else:
        a("s_cmp_eq_u32 s3, 0")
    a("s_cbranch_scc0 L_zeroed")
    a("L_dozero:")
    a("buffer_store_dword v12, v13, s[48:51], s7 offen sc1")
    a("L_zeroed:")
    a("s_mov_b64 exec, -1")
    a("L_nozero:")
    for i in range(8):
        a(f"v_lshlrev_b32 v{32+2*i}, 16, v{56+i}")
        a(f"v_and_b32 v{33+2*i}, 0xffff0000, v{56+i}")
    a("v_add_f32 v16, v32, v33")
    a("v_add_f32 v17, v34, v35")
    for i in range(2, 8):
        a(f"v_add_f32 v16, v16, v{32+2*i}")
        a(f"v_add_f32 v17, v17, v{33+2*i}")
    a("v_add_f32 v16, v16, v17")
    emit(row_list("v_add_f32", 16) + cross_list("v_add_f32", 16, 17))
    a("v_mul_f32 v16, 0x3a800000, v16")
    for i in range(16):
        a(f"v_sub_f32 v{32+i}, v{32+i}, v16")
    a("v_mul_f32 v17, v32, v32")
    a("v_mul_f32 v18, v33, v33")
    for i in range(1, 8):
        a(f"v_fmac_f32 v17, v{32+2*i}, v{32+2*i}")
        a(f"v_fmac_f32 v18, v{33+2*i}, v{33+2*i}")
    a("v_add_f32 v17, v17, v18")
    emit(row_list("v_add_f32", 17) + cross_list("v_add_f32", 17, 18))
    a("v_mul_f32 v17, 0x3a800000, v17")
    bf16r(16, 16)
    bf16r(17, 17)
    a("v_add_f32 v17, 0x3727c5ac, v17")
    bf16r(17, 17)
    a("v_sqrt_f32 v17, v17")
    for i in range(2):
        a(f"v_lshlrev_b32 v{18+2*i}, 16, v{64+i}")
        a(f"v_and_b32 v{19+2*i}, 0xffff0000, v{64+i}")
    bf16r(17, 17)
    a("v_rcp_f32 v17, v17")
    for i in range(4): a(f"v_sub_f32 v{18+i}, v{18+i}, v16")
    for i in range(4): bf16r(18 + i, 18 + i)
    for i in range(4): a(f"v_mul_f32 v{18+i}, v{18+i}, v17")
    a("v_cvt_pk_bf16_f32 v18, v18, v19")
    a("v_cvt_pk_bf16_f32 v19, v20, v21")
    a("v_add_u32 v15, v15, v1")
    a(f"ds_write_b64 v15, v[18:19] offset:{XN}")
    a("v_lshl_add_u32 v14, v4, 4, v1")
    for s in range(8):
        a(f"ds_read_b128 v[{XF+4*s}:{XF+4*s+3}], v14 offset:{XN+64*s}")
    stamp(2)
    A1 = 27
    a(f"v_lshl_add_u32 v12, v0, 2, v1")
    a(f"v_add_u32 v12, {SCR}, v12")
    a("v_cmp_eq_u32 vcc, 0, v0")
    a(f"v_cndmask_b32 v{A1}, v12, v1, vcc")
    a("s_lshl_b32 s4, s3, 2")
    a(f"v_add_u32 v28, s4, v{A1}")
    def progress(x):
        a(f"v_mov_b32 v29, {x}")
        a(f"ds_write_b32 v28, v29 offset:{PROG}")
    a("s_lshl_b32 s4, s3, 5")
    a(f"v_xor_b32 v14, s4, v{TA}")
    a("s_lshl_b32 s8, s14, 14")
    a("s_lshl_b32 s9, s3, 6")
    a("s_add_u32 s8, s8, s9")
    gu_col(11)
    a("s_lshl_b32 s11, s11, 8")
    a("s_add_u32 s11, s11, s8")
    a("s_lshr_b32 s9, s2, 2")
    a("s_lshl_b32 s9, s9, 8")
    a("s_add_u32 s9, s9, s8")
    light_test()
    a("s_cselect_b32 s15, 2, 6")
    a("s_mov_b32 s99, 0")
    a("s_mov_b32 s10, 0")
    a("v_lshlrev_b32 v15, 6, v4")
    a("v_and_b32 v15, 3, v0")
    a("v_lshlrev_b32 v15, 6, v15")
    a("L_c_blk:")
    for (s0, s1) in [(0, 4), (4, 6), (6, 8)]:
        a(f"s_add_u32 s10, s10, {s1-s0}")
        need("s10")
        for s in range(s0, s1):
            for t in range(2):
                d = AF + 4 * (s & 3) + 2 * t
                a(f"ds_read_b64_tr_b16 v[{d}:{d+1}], v14 offset:{s*4096+t*2048}")
        a("s_waitcnt lgkmcnt(0)")
        for s in range(s0, s1):
            c = "0" if s == 0 else f"v[{ACC}:{ACC+3}]"
            a(f"v_mfma_f32_16x16x32_bf16 v[{ACC}:{ACC+3}], v[{AF+4*(s&3)}:{AF+4*(s&3)+3}], v[{XF+4*s}:{XF+4*s+3}], {c}")
        if s1 % 4 == 0:
            a("s_add_u32 s99, s99, 1")
            progress("s99")
    a("v_add_u32 v14, 0x8000, v14")
    for k in range(4): a(f"ds_bpermute_b32 v{ACC+k}, v15, v{ACC+k}")
    a("s_waitcnt vmcnt(0) lgkmcnt(0)")
    apply_tag(ACC)
    a("s_mov_b64 exec, 0xf")
    a(f"buffer_store_dwordx4 v[{ACC}:{ACC+3}], v6, s[48:51], s9 offen sc1")
    a("s_mov_b64 exec, -1")
    if stamps or probe or leak:
        a("s_cmp_lg_u32 s99, 2")
        a("s_cbranch_scc1 L_c_ns3")
        stamp(3)
        a("L_c_ns3:")
    a("s_add_u32 s11, s11, 0x10000")
    a("s_mov_b32 s9, s11")
    a("s_cmp_lt_u32 s99, s15")
    a("s_cbranch_scc1 L_c_blk")
    stamp(4)
    leak_flag()
    if qlight:
        light_test()
        a(f"s_cselect_b32 s4, {qlight}, {qstart}")
        need("s4")
    elif qstart: need(qstart)
    a("s_lshr_b32 s4, s2, 6")
    a("s_lshl_b32 s4, s4, 12")
    a("s_lshl_b32 s5, s3, 10")
    a("s_add_u32 s52, s4, s5")
    a("s_add_u32 s53, s52, 16384")
    a("s_add_u32 s54, s52, 32768")
    a("s_add_u32 s55, s52, 49152")
    def q_loads():
        for r in range(1 if "q" in abl else 4):
            a(f"buffer_load_dwordx4 v[{64+4*r}:{67+4*r}], v6, s[48:51], s{52+r} offen sc1")
    q_loads()
    KF = 32; QF = 96; SC = 64; VF = 72; AO = 80
    KA = 112; VA = 116; KC = 120; VC = 118
    S = 16; P = 20; M2, LS, AL = 24, 25, 26
    RL, LB = 30, 31
    A_OP, A_PERM, A_SH, A_G, A_OL, A_SP, A_M, SEL1, SEL2, A_QR, ONE = 128, 129, 130, 131, 132, 133, 134, 138, 139, 140, 141
    for m in range(4):
        a(f"v_add_u32 v12, {4*m}, v4")
        a("v_xor_b32 v12, v12, v5")
        a("v_lshlrev_b32 v12, 4, v12")
        a(f"v_lshl_add_u32 v{KA+m}, v5, 8, v12")
    a("v_lshrrev_b32 v12, 2, v5")
    a("v_lshl_add_u32 v12, v4, 2, v12")
    a("v_and_b32 v15, 3, v0")
    a("v_lshlrev_b32 v13, 3, v15")
    a("v_lshl_add_u32 v13, v12, 8, v13")
    a("v_add_u32 v13, 8192, v13")
    a("v_and_b32 v12, 7, v12")
    a("s_lshl_b32 s4, s3, 1")
    for n in range(2):
        a(f"s_add_u32 s5, s4, {n}")
        a("v_xor_b32 v14, s5, v12")
        a(f"v_lshl_add_u32 v{VA+n}, v14, 5, v13")
    a(f"v_mov_b32 v{M2}, 0xff7fffff")
    a(f"v_mov_b32 v{LS}, 0")
    for i in range(8): a(f"v_mov_b32 v{AO+i}, 0")
    a("v_cmp_lt_u32 s[100:101], 7, v5")
    a(f"s_mov_b32 s12, {LOG2E}")
    a(f"v_mul_u32_u24 v14, {QROW}, v3")
    a("v_lshl_add_u32 v14, v4, 4, v14")
    a(f"v_add_u32 v{A_QR}, v14, v1")
    a(f"v_mov_b32 v{ONE}, 1")
    a(f"v_lshlrev_b32 v14, {9+ow}, v2")
    if opw:
        a("v_and_b32 v13, 4, v0")
        a("v_lshl_add_u32 v14, v13, 4, v14")
    a(f"v_lshl_add_u32 v{A_OP}, v3, 4, v14")
    a("v_lshlrev_b32 v13, 4, v15")
    a("v_and_b32 v14, 4, v0")
    a("v_lshl_add_u32 v13, v14, 1, v13")
    a("v_add_u32 v13, v13, v2")
    a(f"v_lshlrev_b32 v{A_PERM}, 2, v13")
    a(f"v_lshlrev_b32 v{A_SH}, 3, v4")
    TO = 143
    a("v_bfe_i32 v12, v0, 4, 1")
    a(f"v_and_b32 v12, {TAGX}, v12")
    a(f"v_xor_b32 v{TO}, s13, v12")
    for k in range(1, 3): a(f"v_lshrrev_b32 v{TO+k}, {8*k}, v{TO}")
    a(f"s_mul_i32 s4, s2, {RSO}")
    a(f"s_lshl_b32 s5, s3, {7+ow}")
    a("s_add_u32 s4, s4, s5")
    a(f"s_add_u32 s44, s4, {OP}")
    rr_cc(4, 5)
    a(f"s_mul_i32 s8, s4, {RSS}")
    a(f"s_lshl_b32 s9, s5, {10+sw}")
    a("s_add_u32 s8, s8, s9")
    a(f"s_lshl_b32 s9, s3, {8+sw}")
    a("s_add_u32 s8, s8, s9")
    a(f"s_add_u32 s45, s8, {SP}")
    if cgate:
        a("s_lshl_b32 s8, s4, 8")
        a(f"s_add_u32 s8, s8, {OCN}")
        a("s_add_u32 s58, s38, s8")
        a("s_addc_u32 s59, s39, 0")
        a("s_lshr_b32 s8, s2, 6")
        a("s_lshl_b32 s8, s8, 12")
        a(f"s_add_u32 s46, s8, {OCN}")
        a("v_lshlrev_b32 v142, 8, v0")
    a("s_lshr_b32 s8, s4, 4")
    a(f"s_mul_i32 s8, s8, {64*RSO}")
    a("s_and_b32 s9, s4, 15")
    a(f"s_lshl_b32 s9, s9, {8+ow}")
    a("s_add_u32 s8, s8, s9")
    a(f"s_lshl_b32 s9, s3, {6+ow}")
    a("s_add_u32 s8, s8, s9")
    a(f"s_add_u32 s16, s8, {OP}")
    a(f"s_add_u32 s17, s16, {RSO}")
    a(f"s_add_u32 s18, s16, {2*RSO}")
    a(f"s_add_u32 s19, s16, {3*RSO}")
    a("v_lshrrev_b32 v13, 2, v0")
    a(f"v_mul_u32_u24 v13, {4*RSO}, v13")
    a(f"v_lshl_add_u32 v{A_G}, v15, 4, v13")
    a("v_lshl_add_u32 v12, v4, 4, v1")
    a(f"v_add_u32 v12, {OL}, v12")
    a(f"v_add_u32 v13, {ZER}, v1")
    for u in range(4):
        a(f"v_cmp_eq_u32 vcc, {u}, v15")
        a(f"v_cndmask_b32 v{A_M+u}, v13, v12, vcc")
    a("s_lshl_b32 s4, s3, 5")
    a("v_lshl_add_u32 v13, v4, 1, v1")
    a("v_lshl_add_u32 v13, v15, 3, v13")
    a(f"v_add_u32 v{A_OL}, s4, v13")
    a("v_lshlrev_b32 v13, 4, v5")
    a(f"v_lshl_add_u32 v{A_SP}, v4, {6+sw}, v13")
    a("v_and_b32 v12, 1, v0")
    a("v_cmp_eq_u32 vcc, 1, v12")
    a("v_mov_b32 v12, 0x06020400")
    a("v_mov_b32 v13, 0x03070105")
    a(f"v_cndmask_b32 v{SEL1}, v12, v13, vcc")
    a("v_and_b32 v12, 2, v0")
    a("v_cmp_eq_u32 vcc, 2, v12")
    a("v_mov_b32 v12, 0x05040100")
    a("v_mov_b32 v13, 0x03020706")
    a(f"v_cndmask_b32 v{SEL2}, v12, v13, vcc")
    a("s_mov_b32 s20, 0x0c0c0400")
    a("s_mov_b32 s21, 0x05040100")
    L = a.label("L_q"); D = a.label("L_qd")
    a(f"s_mov_b32 s60, {spin_limit}")
    a("s_branch L_q_wait")
    a(f"{L}:")
    q_loads()
    a("L_q_wait:")
    a("s_waitcnt vmcnt(0)")
    tag_check([64] if "q" in abl else [64, 68, 72, 76], 12)
    retry_masked(L, D, qsleep)
    stamp(5)
    for k in range(4): a(f"v_add_f32 v{64+k}, v{64+k}, v{68+k}")
    for k in range(4): a(f"v_add_f32 v{72+k}, v{72+k}, v{76+k}")
    for k in range(4): a(f"v_add_f32 v{64+k}, v{64+k}, v{72+k}")
    a("v_cvt_pk_bf16_f32 v64, v64, v65")
    a("v_cvt_pk_bf16_f32 v65, v66, v67")
    a("v_lshrrev_b32 v12, 5, v0")
    a("s_lshl_b32 s4, s3, 1")
    a("v_add_u32 v12, s4, v12")
    a(f"v_mul_u32_u24 v12, {QROW}, v12")
    a("v_and_b32 v13, 31, v0")
    a("v_lshl_add_u32 v12, v13, 3, v12")
    a("v_add_u32 v12, v12, v1")
    a(f"ds_write_b64 v12, v[64:65] offset:{QL}")
    a(f"ds_add_u32 v{A1}, v{ONE} offset:{QCNT}")
    lds_spin(QCNT, 7 if early_t else 5, 12, 0)
    for m in range(4):
        a(f"ds_read_b128 v[{QF+4*m}:{QF+4*m+3}], v{A_QR} offset:{QL+64*m}")
    stamp(6)
    def k_reads():
        for m in range(4): a(f"v_add_u32 v{KC+m}, s4, v{KA+m}")
        for t in range(2):
            for m in range(4):
                d = KF + 16 * t + 4 * m
                a(f"ds_read_b128 v[{d}:{d+3}], v{KC+m} offset:{4096*t}")
    def v_addr():
        for n in range(2): a(f"v_add_u32 v{VC+n}, s5, v{VA+n}")
    def v_reads():
        for n in range(2):
            for t in range(2):
                d = VF + 4 * n + 2 * t
                a(f"ds_read_b64_tr_b16 v[{d}:{d+1}], v{VC+n} offset:{4096*t}")
    def qk_list():
        out = []
        for t in range(2):
            for m in range(4):
                d = KF + 16 * t + 4 * m
                c = "0" if m == 0 else f"v[{SC+4*t}:{SC+4*t+3}]"
                out.append(f"v_mfma_f32_16x16x32_bf16 v[{SC+4*t}:{SC+4*t+3}], v[{d}:{d+3}], v[{QF+4*m}:{QF+4*m+3}], {c}")
        return out
    def softmax_list():
        o = []
        for k in range(4): o.append(f"v_cndmask_b32 v{S+k}, v{SC+k}, v{SC+4+k}, s[100:101]")
        for k in range(4): o.append(f"v_cvt_pk_bf16_f32 v{S+k}, 0, v{S+k}")
        for k in range(4): o.append(f"v_mul_f32 v{S+k}, {SCALE}, v{S+k}")
        for k in range(4): o.append(f"v_cvt_pk_bf16_f32 v{S+k}, 0, v{S+k}")
        o.append(f"v_max3_f32 v14, v{S}, v{S+1}, v{S+2}")
        o.append(f"v_max_f32 v14, v14, v{S+3}")
        o.append("MARK")
        o += row_list("v_max_f32", 14, (8,)) + cross_list("v_max_f32", 14, 15)
        o.append("v_mul_f32 v14, s12, v14")
        o.append(f"v_max_f32 v14, v14, v{M2}")
        o.append(f"v_sub_f32 v{AL}, v{M2}, v14")
        o.append(f"v_mov_b32 v{M2}, v14")
        o.append(f"v_exp_f32 v{AL}, v{AL}")
        for k in range(4): o.append(f"v_fma_f32 v{S+k}, v{S+k}, s12, -v14")
        for k in range(4): o.append(f"v_exp_f32 v{S+k}, v{S+k}")
        for i in range(4): o.append(f"v_mul_f32 v{AO+i}, v{AL}, v{AO+i}")
        o.append(f"v_cvt_pk_bf16_f32 v{P}, v{S}, v{S+1}")
        o.append(f"v_cvt_pk_bf16_f32 v{P+1}, v{S+2}, v{S+3}")
        for i in range(4, 8): o.append(f"v_mul_f32 v{AO+i}, v{AL}, v{AO+i}")
        o.append(f"v_mov_b32_dpp v{P+2}, v{P} row_ror:8 {DPP}")
        o.append(f"v_mov_b32_dpp v{P+3}, v{P+1} row_ror:8 {DPP}")
        o.append(f"v_add_f32 v14, v{S}, v{S+1}")
        o.append(f"v_add_f32 v15, v{S+2}, v{S+3}")
        o.append("v_add_f32 v14, v14, v15")
        o.append(f"v_fma_f32 v{LS}, v{LS}, v{AL}, v14")
        return o
    def pv():
        for n in range(2):
            a(f"v_mfma_f32_16x16x32_bf16 v[{AO+4*n}:{AO+4*n+3}], v[{VF+4*n}:{VF+4*n+3}], v[{P}:{P+3}], v[{AO+4*n}:{AO+4*n+3}]")
    def arrive():
        Ln = a.label("L_noarr")
        a("s_cmp_lg_u32 s3, 0")
        a(f"s_cbranch_scc1 {Ln}")
        a("s_mov_b64 exec, 0xffff")
        a(f"buffer_atomic_add v{ONE}, v142, s[48:51], s46 offen sc1")
        a("s_mov_b64 exec, -1")
        a(f"{Ln}:")
    a("s_add_u32 s10, s10, 2")
    a("s_mov_b32 s11, 0")
    a("s_branch L_c_k")
    a("L_c_fast:")
    slot_base(5, "s99")
    a("s_add_u32 s99, s99, 1")
    slot_base(4, "s99")
    v_addr()
    v_reads()
    k_reads()
    sm = softmax_list(); i = sm.index("MARK")
    emit(sm[:i])
    a("s_waitcnt lgkmcnt(0)")
    progress("s99")
    rest = sm[i + 1:]; q = qk_list()
    pos = {0: 1, 1: 0, 2: 1, 4: 0, 5: 2, 9: 1, 12: 1, 16: 1, 20: 1}
    for j, x in enumerate(rest):
        for _ in range(pos.get(j, 0)): a(q.pop(0))
        a(x)
    assert not q
    pv()
    a("L_c_top:")
    a("s_add_u32 s11, s11, 1")
    a("s_add_u32 s10, s10, 4")
    a("s_cmp_ge_u32 s11, s97")
    a("s_cbranch_scc1 L_c_slow")
    a("s_cmp_ge_u32 s96, s10")
    a("s_cbranch_scc1 L_c_fast")
    refresh()
    a("s_cmp_ge_u32 s96, s10")
    a("s_cbranch_scc1 L_c_fast")
    a("L_c_slow:")
    if stamps or probe or leak: stamp(8)
    slot_base(5, "s99")
    v_addr()
    emit([x for x in softmax_list() if x != "MARK"])
    a(f"v_mov_b32 v{RL}, v{LS}")
    emit(row_list("v_add_f32", RL, (8,)) + cross_list("v_add_f32", RL, 15))
    a(f"v_log_f32 v{LB}, v{RL}")
    a(f"v_rcp_f32 v{RL}, v{RL}")
    a("s_sub_u32 s6, s10, 2")
    a(f"v_add_f32 v{LB}, v{LB}, v{M2}")
    a(f"v_lshrrev_b32 v{LB}, v{A_SH}, v{LB}")
    if stamps or probe or leak: stamp(9)
    need("s6")
    v_reads()
    a("s_add_u32 s99, s99, 1")
    a("s_cmp_ge_u32 s11, s97")
    a("s_cbranch_scc1 L_c_last")
    a("s_waitcnt lgkmcnt(0)")
    pv()
    progress("s99")
    a("L_c_k:")
    need("s10")
    slot_base(4, "s99")
    k_reads()
    q = qk_list()
    for j in range(8):
        if not (stamps or probe or leak): a(f"s_waitcnt lgkmcnt({7-j})")
        elif j == 0: a("s_waitcnt lgkmcnt(0)")
        a(q[j])
    a("s_branch L_c_top")
    a("L_c_last:")
    if cgate and early: arrive()
    a("s_waitcnt lgkmcnt(0)")
    pv()
    progress("s99")
    for k in range(4): a(f"v_mov_b32_dpp v{AO+k}, v{AO+4+k} row_ror:8 row_mask:0xf bank_mask:0xc")
    for k in range(4):
        a(f"v_mul_f32 v{AO+k}, v{RL}, v{AO+k}")
    apply_tag(AO, [TO, TO + 1, TO + 2, LB])
    for k in range(4): a(f"ds_bpermute_b32 v{AO+k}, v{A_PERM}, v{AO+k}")
    a("s_waitcnt lgkmcnt(0)")
    a(f"buffer_store_dwordx4 v[{AO}:{AO+3}], v{A_OP}, s[48:51], s44 offen sc1")
    if cgate and not early: arrive()
    stamp(10)
    PD, WF, BF, WA = 64, 32, 96, 88
    a("s_lshl_b32 s99, s99, 2")
    a("s_add_u32 s22, s99, s3")
    a("s_add_u32 s22, s22, 8")
    a("s_add_u32 s23, s22, 4")
    for st in range(2):
        a(f"s_sub_u32 s4, s{22+st}, 1")
        a("s_and_b32 s4, s4, 31")
        a("s_lshl_b32 s4, s4, 12")
        for u in range(4):
            a(f"v_xor_b32 v14, {32*u}, v{TA}")
            a(f"v_add_u32 v{WA+4*st+u}, s4, v14")
    def wo_reads(st):
        for u in range(4):
            for t in range(2):
                d = WF + 8 * u + 4 * st + 2 * t
                a(f"ds_read_b64_tr_b16 v[{d}:{d+1}], v{WA+4*st+u} offset:{t*2048}")
    stamp(11)
    assert gate >= 15 - (win // 4 - 1)
    a(f"s_add_u32 s10, s99, {gate}")
    need("s10", count=False)
    stamp(14)
    def o_loads():
        for i in range(4):
            a(f"buffer_load_dwordx4 v[{PD+4*i}:{PD+4*i+3}], v{A_G}, s[48:51], s{16+i} offen sc1")
    o_loads()
    need("s22", count=False)
    wo_reads(0)
    need("s23", count=False)
    wo_reads(1)
    a(f"s_mov_b32 s60, {spin_limit}")
    if sigpos != "chk":
        a(f"s_waitcnt vmcnt({0 if sigpos == 'arr' else 3})")
        a(f"ds_add_u32 v{A1}, v{ONE} offset:{GCNT}")
    a("L_o_chk:")
    fill = tag_list(range(PD, PD + 16, 4), 12, n=3)
    a("s_waitcnt vmcnt(2)")
    a(f"v_perm_b32 v16, v{PD+7}, v{PD+3}, s20")
    a("s_waitcnt vmcnt(0)")
    chain = [f"v_perm_b32 v17, v{PD+15}, v{PD+11}, s20", "v_perm_b32 v16, v17, v16, s21",
             f"v_mov_b32_dpp v17, v16 quad_perm:[1,0,3,2] {DPP}", f"v_perm_b32 v16, v17, v16, v{SEL1}",
             f"v_mov_b32_dpp v17, v16 quad_perm:[2,3,0,1] {DPP}", f"v_perm_b32 v18, v17, v16, v{SEL2}",
             f"v_max_f32_dpp v16, v18, v18 row_ror:1 {DPP}"] + row_list("v_max_f32", 16, (2, 4, 8)) + cross_list("v_max_f32", 16, 17)
    fill += ["s_nop 0", f"v_or_b32_dpp v12, v12, v12 quad_perm:[1,0,3,2] {DPP}", "s_nop 0", f"v_or_b32_dpp v12, v12, v12 quad_perm:[2,3,0,1] {DPP}"]
    emit(interleave(chain, fill, {1: 2, 3: 2, 5: 2, 6: 2, 7: 2, 8: 2, 10: 2, 13: 2}))
    a("v_cmp_ne_u32 vcc, 0, v12")
    a("v_sub_f32 v18, v18, v16")
    a("v_exp_f32 v18, v18")
    a("s_cbranch_vccnz L_o_again")
    a("L_o_done:")
    if sig2 and sigpos == "chk": a(f"ds_add_u32 v{A1}, v{ONE} offset:{GCNT}")
    stamp(12)
    fm = [f"v_mul_f32_dpp v{20+k}, v18, v{PD+k} quad_perm:[0,0,0,0] {DPP}" for k in range(4)]
    for i in range(1, 4):
        fm += [f"v_fmac_f32_dpp v{20+k}, v18, v{PD+4*i+k} quad_perm:[{i},{i},{i},{i}] {DPP}" for k in range(4)]
    wsum = [f"v_add_f32_dpp v16, v18, v18 row_ror:1 {DPP}"] + row_list("v_add_f32", 16, (2, 4, 8)) + cross_list("v_add_f32", 16, 17) + ["v_rcp_f32 v16, v16"]
    red = ["v_permlane32_swap_b32 v20, v22", "v_permlane32_swap_b32 v21, v23", "v_add_f32 v20, v20, v22", "v_add_f32 v21, v21, v23",
           "v_permlane16_swap_b32 v20, v21", "v_add_f32 v20, v20, v21"] + row_list("v_add_f32", 20, (4, 8))
    emit(interleave(fm + red, wsum, {3: 1, 7: 1, 11: 1, 15: 2, 19: 2, 21: 1, 22: 2}))
    a("v_mul_f32 v20, v20, v16")
    a("v_cvt_pk_bf16_f32 v20, v20, v20")
    a(f"ds_write_b16 v{A_OL}, v20 offset:{OL}")
    a(f"ds_add_u32 v{A1}, v{ONE} offset:{OCNT}")
    a(f"s_mov_b32 s60, {spin_limit}")
    a("L_x:")
    a(f"ds_read_b32 v12, v1 offset:{OCNT}")
    for u in range(4):
        for st in range(2):
            d = BF + 8 * u + 4 * st
            a(f"ds_read_b128 v[{d}:{d+3}], v{A_M+u} offset:{64*st}")
    a("s_sub_u32 s60, s60, 1")
    a("s_waitcnt lgkmcnt(0)" if (stamps or probe or leak) else "s_waitcnt lgkmcnt(8)")
    a("v_readfirstlane_b32 s61, v12")
    a("s_cselect_b32 s61, -1, s61")
    a("s_cmp_lt_u32 s61, 4")
    a("s_cbranch_scc1 L_x")
    for u in range(4):
        for st in range(2):
            if not (stamps or probe or leak): a(f"s_waitcnt lgkmcnt({7-2*u-st})")
            c = "0" if u + st == 0 else f"v[{ACC}:{ACC+3}]"
            a(f"v_mfma_f32_16x16x32_bf16 v[{ACC}:{ACC+3}], v[{WF+8*u+4*st}:{WF+8*u+4*st+3}], v[{BF+8*u+4*st}:{BF+8*u+4*st+3}], {c}")
    setexec(0x000f000f, 0x000f000f)
    apply_tag(ACC)
    a(f"buffer_store_dwordx4 v[{ACC}:{ACC+3}], v{A_SP}, s[48:51], s45 offen sc1")
    stamp(13)
    dump_stamps(12, 13)
    a("s_endpgm")
    a("L_o_again:")
    a("s_sub_u32 s60, s60, 1")
    a("s_cbranch_scc1 L_o_done")
    if osleep: a(f"s_sleep {osleep}")
    a("s_mov_b64 exec, vcc")
    o_loads()
    a("s_mov_b64 exec, -1")
    a("s_branch L_o_chk")

    role[0] = "H"
    a("L_helper:")
    srd(56, 34, 2048)
    a("v_mov_b32 v12, 1")
    a("s_waitcnt lgkmcnt(0)")
    a("s_mov_b64 exec, 1")
    a(f"ds_add_u32 v1, v12 offset:{QCNT}")
    a("s_mov_b64 exec, -1")
    make_tag()
    a("s_lshr_b32 s4, s2, 4")
    a("s_mul_i32 s4, s4, 896")
    a(f"s_add_u32 s8, s4, {GP}")
    a("s_add_u32 s9, s8, 0x10000")
    a("v_add_u32 v14, -2, v5")
    a("v_cmp_gt_u32 vcc, 14, v5")
    a("v_cndmask_b32 v14, v14, v5, vcc")
    a("v_lshlrev_b32 v15, 4, v14")
    a("v_lshl_add_u32 v15, v4, 14, v15")
    a("v_lshlrev_b32 v14, 3, v14")
    a("v_lshl_add_u32 v14, v4, 1, v14")
    a("v_add_u32 v14, v14, v1")
    leak_flag()
    if leak:
        for x in leak:
            if x[0] == "H" and x[1]: a(f"s_mov_b32 s{64+2*x[1]}, 0")
    if hstart: need(hstart, sleep=8)
    else: lds_spin(QCNT, 7 if early_t else 5, 12, 8)
    stamp(1)
    L = a.label("L_h"); D = a.label("L_hd")
    a(f"s_mov_b32 s60, {spin_limit}")
    a(f"{L}:")
    for w in range(0 if "h" in abl else 4):
        a(f"buffer_load_dwordx4 v[{32+8*w}:{35+8*w}], v15, s[48:51], s8 offen offset:{224*w} sc1")
        a(f"buffer_load_dwordx4 v[{36+8*w}:{39+8*w}], v15, s[48:51], s9 offen offset:{224*w} sc1")
    a("s_waitcnt vmcnt(0)")
    tag_check(range(32, 64, 4), 12, quad=False)
    if "h" in abl: a("s_mov_b64 vcc, 0")
    retry_masked(L, D, 16)
    stamp(2)
    for w in range(4):
        g = 32 + 8 * w; u = g + 4
        treduce4(g)
        treduce4(u)
        bf16r(g, g)
        bf16r(u, u)
        silu_bf16(g, g, 12)
        a(f"v_mul_f32 v{g}, v{g}, v{u}")
        a(f"v_cvt_pk_bf16_f32 v{g}, v{g}, v{g}")
        a(f"ds_write_b16 v14, v{g} offset:{HL+112*w}")
    a("s_and_b32 s4, s2, 7")
    a("s_lshr_b32 s5, s2, 6")
    a("s_lshl_b32 s5, s5, 3")
    a("s_or_b32 s4, s4, s5")
    a("s_lshl_b32 s4, s4, 1")
    a("s_bfe_u32 s5, s2, 0x10005")
    a("s_add_u32 s4, s4, s5")
    if sig2:
        a("s_lshl_b32 s5, s4, 10")
        a(f"s_add_u32 s5, s5, {AC2}")
        a("s_add_u32 s52, s38, s5")
        a("s_addc_u32 s53, s39, 0")
        a("s_lshl_b32 s47, s13, 2")
        a("s_add_u32 s47, s47, 64")
    a(f"s_lshl_b32 s5, s4, {6+sw}")
    for i in range(8 if fatom else 4): a(f"s_add_u32 s{20+i}, s5, {SP + i*RSS}")
    a("s_lshl_b32 s5, s4, 6")
    a(f"s_add_u32 s45, s5, {FP}")
    a("s_lshr_b32 s46, s4, 2")
    a("s_lshl_b32 s46, s46, 7")
    a("s_and_b32 s5, s4, 3")
    a("s_lshl_b32 s5, s5, 3")
    a("s_add_u32 s46, s46, s5")
    a("v_lshrrev_b32 v12, 2, v0")
    a("v_and_b32 v13, 3, v0")
    a(f"v_mul_u32_u24 v19, {RS}, v12")
    if fatom:
        a(f"v_mul_u32_u24 v18, {8*RSS}, v2")
        a("v_lshl_add_u32 v18, v3, 3, v18")
        a("v_bfe_i32 v23, v0, 1, 1")
        a(f"v_and_b32 v23, {TAGX}, v23")
        a("v_xor_b32 v23, s13, v23")
        a("v_and_b32 v16, 1, v0")
        a("v_lshlrev_b32 v16, 4, v16")
        a("v_lshrrev_b32 v16, v16, v23")
        a("v_lshrrev_b32 v17, 8, v16")
        a("v_lshrrev_b32 v23, 5, v0")
        a("v_and_b32 v100, 1, v0")
        a("v_lshl_add_u32 v23, v100, 1, v23")
        a("v_bfe_u32 v100, v0, 1, 2")
        a("v_lshlrev_b32 v101, 6, v23")
        a("v_lshl_add_u32 v101, v100, 2, v101")
        a("v_lshlrev_b32 v23, 1, v23")
        a("v_lshl_add_u32 v23, v100, 5, v23")
    else:
        a(f"v_mul_u32_u24 v18, {4*RSS}, v12")
        a("v_lshl_add_u32 v18, v13, 4, v18")
    a("v_lshl_add_u32 v19, v13, 4, v19")
    a("v_lshlrev_b32 v20, 5, v13")
    a("v_lshl_add_u32 v20, v4, 1, v20")
    if fatom: a("v_mov_b32 v20, v23")
    a("buffer_load_ushort v22, v20, s[40:43], s46 offen")
    a("s_lshr_b32 s4, s2, 4")
    a(f"s_mul_i32 s4, s4, {RS}")
    a("s_and_b32 s5, s2, 15")
    a("s_lshl_b32 s5, s5, 8")
    a("s_add_u32 s4, s4, s5")
    a(f"s_add_u32 s15, s4, {FP}")
    a("v_lshlrev_b32 v21, 4, v5")
    a("v_lshl_add_u32 v21, v4, 6, v21")
    tr_addr(TA)
    for u in range(4): a(f"v_xor_b32 v{28+u}, {32*u}, v{TA}")
    a("v_lshl_add_u32 v14, v4, 4, v1")
    a("v_and_b32 v12, 1, v0")
    a("v_cmp_eq_u32 s[8:9], 1, v12")
    a("v_and_b32 v12, 2, v0")
    a("v_cmp_eq_u32 s[6:7], 2, v12")
    CA = 64; HF = 48
    for k in range(16): a(f"v_mov_b32 v{CA+k}, 0")
    stamp(3)
    L = a.label("L_nt"); D = a.label("L_ntd")
    a(f"s_mov_b32 s60, {spin_limit}")
    a(f"{L}:")
    refresh()
    a(f"s_cmp_lg_u32 s97, {BIG}")
    a(f"s_cbranch_scc1 {D}")
    a("s_sleep 4")
    a("s_sub_u32 s60, s60, 1")
    a(f"s_cbranch_scc0 {L}")
    a(f"{D}:")
    light_test()
    a("s_cselect_b32 s10, 2, 6")
    a("s_add_u32 s10, s10, s97")
    a("s_lshl_b32 s10, s10, 2")
    a("s_mov_b32 s11, 0")
    need("s10", sleep=2)
    a("s_setprio 2")
    a("L_h_step:")
    a("s_and_b32 s4, s10, 31")
    a("s_lshl_b32 s4, s4, 12")
    for u in range(4): a(f"v_add_u32 v{24+u}, s4, v{28+u}")
    a(f"ds_read_b128 v[{HF}:{HF+3}], v14 offset:{HL}")
    a("v_add_u32 v14, 64, v14")
    a("s_add_u32 s10, s10, 1")
    need("s10")
    stamp(4)
    for u in range(4):
        for t in range(2):
            d = 32 + 4 * u + 2 * t
            a(f"ds_read_b64_tr_b16 v[{d}:{d+1}], v{24+u} offset:{t*2048}")
    for u in range(4):
        if not (stamps or probe or leak): a(f"s_waitcnt lgkmcnt({6-2*u})")
        elif u == 0: a("s_waitcnt lgkmcnt(0)")
        a(f"v_mfma_f32_16x16x32_bf16 v[{CA+4*u}:{CA+4*u+3}], v[{32+4*u}:{35+4*u}], v[{HF}:{HF+3}], v[{CA+4*u}:{CA+4*u+3}]")
    a("s_add_u32 s11, s11, 1")
    a("s_cmp_lt_u32 s11, 7")
    a("s_cbranch_scc1 L_h_step")
    for k in range(4): a(f"v_cndmask_b32 v{CA+k}, v{CA+k}, v{CA+4+k}, s[8:9]")
    for k in range(4): a(f"v_cndmask_b32 v{CA+8+k}, v{CA+8+k}, v{CA+12+k}, s[8:9]")
    for k in range(4): a(f"v_cndmask_b32 v{CA+k}, v{CA+k}, v{CA+8+k}, s[6:7]")
    apply_tag(CA)
    setexec(0x000f000f, 0x000f000f)
    a(f"buffer_store_dwordx4 v[{CA}:{CA+3}], v21, s[48:51], s15 offen sc1")
    a("s_mov_b64 exec, -1")
    a("s_setprio 0")
    stamp(5)
    a("s_and_b32 s4, s2, 0x18")
    a("s_cbranch_scc1 L_hend")
    def f_math():
        treduce4(96)
        emit(row_list("v_add_f32", 96, (4, 8)))
        bf16r(96, 96)
        silu_bf16(96, 96, 12)
        a("v_lshlrev_b32 v22, 16, v22")
    if flate:
        lds_spin(GCNT, 4, 12, 1)
        a("buffer_load_dwordx4 v[96:99], v19, s[48:51], s45 offen sc1")
    else:
        a("s_add_u32 s10, s10, 8")
        need("s10", sleep=1)
        L = a.label("L_f"); D = a.label("L_fd")
        a(f"s_mov_b32 s60, {spin_limit}")
        a(f"{L}:")
        a("buffer_load_dwordx4 v[96:99], v19, s[48:51], s45 offen sc1")
        a("s_waitcnt vmcnt(0)")
        tag_check([96], 12)
        retry_masked(L, D, 2)
        stamp(12)
        f_math()
    if sig2:
        a(f"s_mov_b32 s60, {spin_limit}")
        a("L_h_watch:")
        for k in range(4): a(f"s_load_dword s{28+k}, s[52:53], {256*k} glc")
        a("s_sub_u32 s60, s60, 1")
        a("s_cbranch_scc1 L_h_go")
        a("s_waitcnt lgkmcnt(0)")
        a("s_add_u32 s28, s28, s29")
        a("s_add_u32 s30, s30, s31")
        a("s_add_u32 s28, s28, s30")
        a("s_cmp_lg_u32 s28, s47")
        a("s_cbranch_scc1 L_h_watch")
        a("L_h_go:")
    else:
        lds_spin(OCNT, 4, 12, 1)
    def s_loads():
        for i in range(4):
            a(f"buffer_load_dwordx4 v[{80+4*i}:{83+4*i}], v18, s[48:51], s{20+i} offen sc1")
    s_loads()
    stamp(6)
    if flate:
        L = a.label("L_f"); D = a.label("L_fd")
        a(f"s_mov_b32 s60, {spin_limit}")
        a("s_waitcnt vmcnt(4)")
        a("s_branch L_f_chk")
        a(f"{L}:")
        a("buffer_load_dwordx4 v[96:99], v19, s[48:51], s45 offen sc1")
        a("s_waitcnt vmcnt(0)")
        a("L_f_chk:")
        tag_check([96], 12)
        retry_masked(L, D, 0)
        f_math()
    a(f"s_mov_b32 s60, {spin_limit}")
    a("L_s_chk:")
    tl = tag_list([80, 84, 88, 92], 12)
    a("s_waitcnt vmcnt(3)")
    emit(tl[0:4])
    a("s_waitcnt vmcnt(2)")
    emit(tl[4:8])
    for k in range(4): a(f"v_add_f32 v{100+k}, v{80+k}, v{84+k}")
    a("s_waitcnt vmcnt(1)")
    emit(tl[8:12])
    for k in range(4): a(f"v_add_f32 v{100+k}, v{100+k}, v{88+k}")
    a("s_waitcnt vmcnt(0)")
    for k in range(4): a(f"v_add_f32 v{100+k}, v{100+k}, v{92+k}")
    red = ["v_permlane32_swap_b32 v100, v102", "v_permlane32_swap_b32 v101, v103", "v_add_f32 v100, v100, v102", "v_add_f32 v101, v101, v103",
           "v_permlane16_swap_b32 v100, v101", "v_add_f32 v100, v100, v101"] + row_list("v_add_f32", 100, (4, 8))
    a(tl[12])
    emit(interleave(red, tl[13:] + join_list(12), {3: 2, 5: 2, 6: 1}))
    a("v_cmp_ne_u32 vcc, 0, v12")
    bf16r(100, 100)
    a("v_mul_f32 v100, v100, v96")
    a("s_cbranch_vccnz L_s_again")
    a("L_s_done:")
    stamp(13)
    bf16r(100, 100)
    a("v_add_f32 v100, v100, v22")
    a("v_cvt_pk_bf16_f32 v80, v100, v100")
    setexec(0x000f000f, 0x000f000f)
    if leak:
        a("s_cmp_lg_u32 s95, 0")
        a("s_cselect_b32 s58, 0, s58")
    a(f"buffer_store_short v80, v20, s[56:59], s46 offen{outsc}")
    stamp(14)
    a("s_cmp_eq_u32 s2, 0")
    a("s_cbranch_scc0 L_hend")
    a("s_mov_b64 exec, 1")
    a(f"s_mov_b32 s4, {EPOCH}")
    a(f"buffer_store_dword v{TG}, v0, s[48:51], s4 offen{outsc}")
    if leak:
        a("v_mov_b32 v12, 0x600df00d")
        a("buffer_store_dword v12, v0, s[48:51], s4 offen offset:4")
    a("L_hend:")
    dump_stamps(12, 13)
    if late is not None:
        a("s_mov_b64 exec, 0xff")
        a("s_lshl_b32 s4, s2, 7")
        a("s_add_u32 s4, s4, 0x800000")
        a(f"buffer_store_dwordx4 v[8:11], v6, s[48:51], s4 offen {late}")
    a("s_endpgm")

    a("L_s_again:")
    a("s_sub_u32 s60, s60, 1")
    a("s_cbranch_scc1 L_s_done")
    a("s_mov_b64 exec, vcc")
    s_loads()
    a("s_mov_b64 exec, -1")
    a("s_branch L_s_chk")

    role[0] = "T"
    a("L_ticket:")
    pool_id(11)
    if kmap in "DEFGH":
        if kmap == "F":
            a("s_lshr_b32 s9, s11, 1")
            a("s_lshl_b32 s12, s9, 4")
            a("s_lshl_b32 s9, s9, 22")
            a("s_mov_b32 s8, s11")
        else:
            a("s_lshl_b32 s12, s11, 4")
            a("s_lshl_b32 s9, s11, 21")
        a(f"s_add_u32 s12, s12, {mem*dyn}")
        a("s_or_b32 s9, s9, 1")
        if kmap == "H":
            a("s_and_b32 s8, s11, 3")
            a("s_and_b32 s9, s11, 12")
    elif kmap == "C":
        a(f"s_and_b32 s12, s11, {npool-1}")
        a("s_lshr_b32 s9, s2, 6")
        a(f"s_mul_i32 s4, s9, {rot}")
        a("s_add_u32 s12, s12, s4")
        a("s_lshl_b32 s12, s12, 13")
        a(f"s_add_u32 s12, s12, {64*dyn*8192 + 1}")
        a("s_lshl_b32 s9, s9, 23")
    else:
        a(f"s_mul_i32 s12, s11, {reg*8192}")
        a(f"s_add_u32 s12, s12, {mem*dyn*8192 + 1}")
    a(f"s_mul_i32 s11, s11, {cstride}")
    a(f"s_add_u32 s11, s11, {TCN}")
    a("s_add_u32 s56, s38, s11")
    a("s_addc_u32 s57, s39, 0")
    a(f"s_add_u32 s10, s3, {dyn - 6}")
    if early_t:
        a("s_waitcnt lgkmcnt(0)")
        a("s_add_u32 s13, s13, 0x01010101")
        a(f"s_xor_b32 s14, s13, {TAGX}")
        a("v_mov_b32 v12, 1")
        a("s_mov_b64 exec, 1")
        a(f"ds_add_u32 v1, v12 offset:{QCNT}")
        pool_member(6)
        a("s_add_u32 s6, s6, s3")
        a("s_cmp_lg_u32 s6, 6")
        a("s_cbranch_scc1 L_t_noinit")
        a("v_mov_b32 v20, 0")
        a("v_mov_b32 v21, s13")
        a("v_mov_b32 v22, s14")
        a("v_mov_b32 v23, s13")
        a("buffer_store_dwordx4 v[20:23], v0, s[48:51], s11 offen sc1")
        a("L_t_noinit:")
        a("s_mov_b64 exec, -1")
        a(f"s_sub_u32 s11, s10, {ahead}")
        a("s_max_i32 s11, s11, 0")
        light_test()
        a("s_cselect_b32 s4, 4, 14")
        need("s4", sleep=4, count=False)
        a(f"s_mov_b32 s60, {spin_limit}")
        a("L_t_rdy:")
        a("s_load_dwordx4 s[28:31], s[56:57], 0 glc")
        a("s_sub_u32 s60, s60, 1")
        a("s_cbranch_scc1 L_t_next")
        a("s_waitcnt lgkmcnt(0)")
        a("s_xor_b32 s29, s29, s13")
        a("s_xor_b32 s30, s30, s14")
        a("s_xor_b32 s31, s31, s13")
        a("s_or_b32 s29, s29, s30")
        a("s_or_b32 s29, s29, s31")
        a("s_cbranch_scc0 L_t_next")
        a("s_sleep 8")
        a("s_branch L_t_rdy")
    else:
        lds_spin(QCNT, 5, 12, 8)
    if touch:
        a("s_cmp_eq_u32 s3, 6")
        a("s_cselect_b64 s[40:41], s[32:33], s[24:25]")
        a("s_cselect_b32 s42, 7340032, s43")
        a("s_cselect_b32 s42, s42, 8388608")
        a("s_cselect_b64 exec, 0x7f, 3")
        rr_cc(6, 7)
        a("s_lshl_b32 s6, s6, 17")
        a("s_lshr_b32 s7, s2, 4")
        a(f"s_mul_i32 s7, s7, {224*2048}")
        a("s_cmp_eq_u32 s3, 6")
        a("s_cselect_b32 s6, s7, s6")
        a("v_lshlrev_b32 v14, 16, v0")
        a("buffer_load_dword v17, v14, s[40:43], s6 offen nt")
        a("s_mov_b64 exec, -1")
    a("L_t_next:")
    a(f"s_sub_u32 s11, s10, {ahead - 1}")
    lds_spin(STARTED, "s11", 12, 1)
    a("s_mov_b32 s15, 1")
    a("s_atomic_add s15, s[56:57], 0 glc")
    a("s_lshl_b32 s4, s10, 2")
    a("v_add_u32 v14, s4, v1")
    a("s_waitcnt lgkmcnt(0)")
    if not empt: a(f"s_min_u32 s15, s15, {nshared-1}")
    if kmap in "DEFGH":
        if kmap == "H":
            a("s_add_u32 s5, s15, s8")
            a("s_and_b32 s5, s5, 3")
            a("s_or_b32 s5, s5, s9")
            a("s_and_b32 s4, s15, -4")
            a("s_add_u32 s4, s4, s8")
            a(f"s_add_u32 s4, s4, {mem*dyn}")
            a("s_lshl4_add_u32 s4, s5, s4")
        else:
            a("s_add_u32 s4, s15, s12")
        a("s_and_b32 s4, s4, 255")
        if kmap == "F":
            a("s_lshr_b32 s5, s4, 7")
            a("s_xor_b32 s5, s5, s8")
            a("s_and_b32 s5, s5, 1")
            a("s_lshl_b32 s4, s4, 1")
            a("s_add_u32 s4, s4, s5")
        a("s_lshl_b32 s4, s4, 13")
        if kmap == "H":
            a("s_lshl_b32 s5, s5, 21")
            a("s_add_u32 s4, s4, s5")
            a("s_or_b32 s4, s4, 1")
        else:
            a("s_add_u32 s4, s4, s9")
    else:
        a(f"s_lshl_b32 s4, s15, {13 + (lgp if kmap == 'C' else 0)}")
        a("s_add_u32 s4, s4, s12")
    if kmap == "C":
        a("s_and_b32 s4, s4, 0x7fffff")
        a("s_add_u32 s4, s4, s9")
    if ztab:
        tab = sum(g << (4 * i) for i, g in enumerate(ztab))
        a(f"s_sub_u32 s5, s15, {zone}")
        a("s_and_b32 s5, s5, 0x1c")
        a(f"s_lshr_b32 s5, {tab}, s5")
        a("s_and_b32 s5, s5, 15")
        a("s_lshl_b32 s5, s5, 4")
        a("s_or_b32 s4, s4, s5")
    if empt:
        a(f"s_cmp_lt_u32 s15, {nshared}")
        a("s_cselect_b32 s4, s4, 0")
    a(f"s_add_u32 s10, s10, {ntw}")
    a(f"s_cmp_lt_u32 s15, {zone}")
    a("s_cselect_b32 s5, 0, 2")
    a("v_mov_b32 v15, s4")
    a("v_or_b32 v15, s5, v15")
    a(f"ds_write_b32 v14, v15 offset:{TQ}")
    a("s_cbranch_scc1 L_t_next")
    if sig1 is not None or sig2:
        L = a.label("L_nt"); D = a.label("L_ntd")
        a(f"s_mov_b32 s60, {spin_limit}")
        a(f"{L}:")
        refresh()
        a(f"s_cmp_lg_u32 s97, {BIG}")
        a(f"s_cbranch_scc1 {D}")
        a("s_sleep 2")
        a("s_sub_u32 s60, s60, 1")
        a(f"s_cbranch_scc0 {L}")
        a(f"{D}:")
        light_test()
        a("s_cselect_b32 s10, 2, 6")
        a("s_add_u32 s10, s10, s97")
        a("s_lshl_b32 s10, s10, 2")
        a("s_cmp_eq_u32 s3, 6")
        a("s_cbranch_scc1 L_t_zero")
    if sig1 is not None:
        pool_id(6)
        a("s_lshr_b32 s4, s6, 2")
        a("s_and_b32 s5, s6, 3")
        a("s_lshl_b32 s7, s4, 14")
        a("s_lshl_b32 s8, s5, 8")
        a("s_add_u32 s7, s7, s8")
        a(f"s_add_u32 s7, s7, {AC1}")
        a("s_add_u32 s56, s38, s7")
        a("s_addc_u32 s57, s39, 0")
        a("s_mov_b32 s15, 1")
        a(f"s_add_u32 s11, s10, {sig1 & 0xffffffff}")
        need("s11", sleep=1)
        for i in range(16): a(f"s_atomic_add s15, s[56:57], {1024*i}")
    if sig1 is not None or sig2:
        a("s_endpgm")
        a("L_t_zero:")
        rr_cc(6, 7)
    if sig1 is not None:
        a("s_lshl_b32 s5, s6, 10")
        a(f"s_add_u32 s5, s5, {AC1}")
        a("s_add_u32 s56, s38, s5")
        a("s_addc_u32 s57, s39, 0")
        a("v_mov_b32 v15, 1")
        need("s10", sleep=1)
        L = a.label("L_w"); D = a.label("L_wd")
        a(f"s_mov_b32 s60, {spin_limit}")
        a(f"{L}:")
        for k in range(4): a(f"s_load_dword s{28+k}, s[56:57], {256*k} glc")
        a("s_waitcnt lgkmcnt(0)")
        a("s_add_u32 s28, s28, s29")
        a("s_add_u32 s30, s30, s31")
        a("s_add_u32 s28, s28, s30")
        a("s_cmp_eq_u32 s28, 64")
        a(f"s_cbranch_scc1 {D}")
        a("s_sub_u32 s60, s60, 1")
        a(f"s_cbranch_scc0 {L}")
        a(f"{D}:")
        a(f"ds_write_b32 v1, v15 offset:{GO}")
    if sig2:
        a("s_lshl_b32 s7, s7, 14")
        a("s_lshr_b32 s5, s2, 6")
        a("s_lshl_b32 s5, s5, 8")
        a("s_add_u32 s7, s7, s5")
        a(f"s_add_u32 s7, s7, {AC2}")
        a("v_mov_b32 v15, 1")
        a("v_lshlrev_b32 v14, 10, v0")
        a("s_add_u32 s10, s10, 15")
        need("s10", sleep=1)
        lds_spin(OCNT if sig2late else GCNT, gneed, 12, 0)
        a("s_mov_b64 exec, 0xffff")
        a("buffer_atomic_add v15, v14, s[48:51], s7 offen sc1")
    a("L_end:")
    a("s_endpgm")
    a("L_codeend:")
    name = NAME + "_kernel"
    hdr = open("cdna_kernels/" + NAME + ".s.ref").read().split("; Override launch")[0]
    txt = hdr + header([f"@launch grid=(256,1,1) block=({64*(6+ntw)},1,1) lds={LDS_BYTES}"]) + kernel_begin(name) + a.text() + rodata() + \
        kernel_desc(name, 152, 102, extra="  .amdhsa_float_denorm_mode_32 3\n")
    return txt

BASE = dict(gate=12, sig2=True, dyn=11, empt=16, flate=True, qstart=36, qlight=28, hstart=56)
if __name__ == "__main__":
    V = {
        "k16c": {},
        "k16d10": dict(dyn=10),
        "k16d12": dict(dyn=12),
        "k16d13": dict(dyn=13, empt=20),
        "k16d12e20": dict(dyn=12, empt=20),
        "k16e10": dict(empt=10),
        "k16g13": dict(gate=13),
        "k16H": dict(kmap="H"),
        "k16s1": dict(spos=1),
        "k16k0": dict(skew=0),
    }
    for k, v in V.items():
        v = dict(BASE, **v)
        open(k + ".s", "w").write(gen(**v))
        open(k + "_st.s", "w").write(gen(stamps=True, **v))
        open(k + "_lt.s", "w").write(gen(lite=True, **v))
```

```python
import sys
from asmlib import *

QP, GP, CNT, OCN, EPOCH, SP, FP, OP, STAMP = 0, 0x10000, 0x30000, 0x34000, 0x3F000, 0x40000, 0xD0000, 0x100000, 0x400000
MISC = 0x20000
TQ, STARTED, GATE, GCNT, PCNT = 0x1100, 0x21C, 0x220, 0x224, 0x228
POST, PROG, QCNT, OCNT, GO, ZER, XN, HL, OL, QL = 0, 0x200, 0x210, 0x214, 0x218, 0x240, 0x300, 0x500, 0x700, 0x800
QROW = 272
SCR = 0x1700
LDS_BYTES = MISC + 0x1B00
TCN, AC1, AC2 = 0x340000, 0x390000, 0x3A0000
LOG2E = 0x3fb8aa3b
SCALE = 0x3db504f3
DPP = "row_mask:0xf bank_mask:0xf"
BIG = -1
TAGX = 0x5ac3a569

def interleave(chain, fill, gaps):
    out = []; fill = list(fill)
    for i, x in enumerate(chain):
        out.append(x)
        for _ in range(gaps.get(i, 0)):
            if fill: out.append(fill.pop(0))
    return out + fill

def gen(nt="nt", stamps=False, spin_limit=2000000, win=24, dyn=10, npool=4, outsc="", gate=10, skew=128, vtick=False,
        fsleep=0, osleep=1, qsleep=4, probe=None, cgate=False, early=True, ahead=2, ntw=2, cstride=256, late=None, gtab=None, ztab=None, wtab=None, spw=False, opw=False, fatom=False, leak=None, fine=False, wins=None, csleep=0, pace=0, pnop=0, cpf=True, sig1=None, sig2=False, touch=False, sig2late=False, lite=False, half=False, dup2=False, kmap='E', rot=0, early_t=False, empt=0, spos=0, abl='', win1=None, n1=9, hstart=0, qstart=0, sigpos='chk', gneed=4, flate=False, qlight=None, lex=0, gumix=False, w2=False, rk=None, rk0=4, rkgrp=False, rkat=-5, grow=None, tsleep=1, shardrd=False, s1pos='last', s1from=9):
    a = Asm()
    sw = 1 if spw else 0
    ow = 1 if opw else 0
    RS = 4096 + skew
    RSS = (4096 << sw) + skew
    RSO = (4096 << ow) + skew
    NT = " " + nt if nt else ""
    role = ["-"]
    def stamp(k):
        if lite and (k == 0 or (role[0], k) == ("H", 14)): a(f"s_memrealtime s[{64+2*k}:{65+2*k}]")
        if stamps or (leak and (k == 0 or (role[0], k) in [x[:2] for x in leak])): a(f"s_memrealtime s[{64+2*k}:{65+2*k}]")
        if probe and (k == 0 or (role[0], k) == probe[:2]): a(f"s_memrealtime s[{64+2*min(k,1)}:{65+2*min(k,1)}]")
    def leak_out():
        if not leak: return
        mine = [(i, x) for i, x in enumerate(leak) if x[0] == role[0]]
        Ln = a.label("L_noleak")
        a("s_waitcnt lgkmcnt(0)")
        srd(48, 38, 268435456)
        a("s_mov_b64 exec, 1")
        a("s_cmp_eq_u32 s93, 0")
        a(f"s_cbranch_scc1 {Ln}")
        for i, x in mine:
            if len(x) > 2:
                Ls = a.label("L_lk")
                a(f"s_cmp_lg_u32 s3, {x[2]}")
                a(f"s_cbranch_scc1 {Ls}")
            a(f"s_and_b32 s4, s{64+2*x[1]}, 0x3fff")
            a("v_mov_b32 v12, s4")
            a("s_lshl_b32 s4, s2, 3")
            a(f"s_add_u32 s4, s4, {2*i + 0x500000}")
            a("buffer_store_short v12, v0, s[48:51], s4 offen")
            if len(x) > 2: a(f"{Ls}:")
        a(f"{Ln}:")
        if role[0] == "H":
            Ln = a.label("L_noleak")
            a("s_cmp_eq_u32 s95, 0")
            a(f"s_cbranch_scc1 {Ln}")
            srd(52, 34, 2048)
            a("s_lshl_b32 s4, s2, 3")
            a("s_add_u32 s5, s4, 0x500000")
            a("buffer_load_dwordx2 v[12:13], v0, s[48:51], s5 offen")
            a("s_waitcnt vmcnt(0)")
            a("buffer_store_dwordx2 v[12:13], v0, s[52:55], s4 offen")
            a(f"{Ln}:")
    def leak_flag():
        if not leak: return
        a(f"s_load_dword s95, s[38:39], {EPOCH+4}")
        a("s_load_dword s94, s[16:17], 0")
        a("s_waitcnt lgkmcnt(0)")
        a("s_cmp_lg_u32 s95, 0x600df00d")
        a("s_cselect_b32 s93, 1, 0")
        a("s_cselect_b32 s95, 0, 1")
        a("s_cmp_lg_u32 s94, 0x3c6e3d96")
        a("s_cselect_b32 s95, s95, 0")
        a("s_cmp_lg_u32 s94, 0x3a3abc25")
        a("s_cselect_b32 s95, s95, 0")
    def probe_pad():
        if not probe or probe[0] != role[0]: return
        def until(base, lim):
            L = a.label("L_pp")
            a(f"{L}:")
            a("s_sleep 4")
            a("s_memrealtime s[70:71]")
            a("s_waitcnt lgkmcnt(0)")
            a(f"s_sub_u32 s70, s70, {base}")
            a(f"s_cmp_lt_u32 s70, {lim}")
            a(f"s_cbranch_scc1 {L}")
        a("s_waitcnt lgkmcnt(0)")
        a("s_cmp_eq_u32 s67, -1")
        a("s_cselect_b32 s66, s64, s66")
        a("s_cselect_b32 s69, 1, 0")
        until("s64", 2200)
        a("s_not_b32 s72, s64")
        a("s_atomic_umax s72, s[36:37], 0")
        until("s64", 3200)
        a("s_load_dword s72, s[36:37], 0 glc")
        a("s_waitcnt lgkmcnt(0)")
        a("s_not_b32 s72, s72")
        a("s_sub_u32 s66, s66, s72")
        if len(probe) > 3:
            a("s_atomic_add s66, s[36:37], 128")
            until("s64", 4400)
            a("s_load_dword s66, s[36:37], 128 glc")
            a("s_waitcnt lgkmcnt(0)")
            a("s_lshr_b32 s66, s66, 8")
        if probe[2] < 0 and probe[1]:
            a("s_cmp_eq_u32 s69, 1")
            a("s_cbranch_scc1 L_end")
        a(f"s_mul_i32 s66, s66, {probe[2]}")
        a(f"s_add_u32 s68, s66, {6000 if probe[2] >= 0 else 20000}")
        until("s72", "s68")
    def dump_stamps(vt, va):
        probe_pad()
        leak_out()
        if not (stamps or (lite and role[0] == "H")): return
        a("s_waitcnt lgkmcnt(0)")
        a("s_mov_b64 exec, -1")
        a(f"v_mov_b32 v{vt}, 0")
        for k in range(16):
            a(f"v_writelane_b32 v{vt}, s{64+2*k}, {k}")
        a("s_lshl_b32 s4, s2, 3")
        a("s_add_u32 s4, s4, s3")
        a("s_lshl_b32 s4, s4, 6")
        a(f"s_add_u32 s4, s4, {STAMP}")
        a(f"v_lshlrev_b32 v{va}, 2, v0")
        a("s_mov_b64 exec, 0xffff")
        a(f"buffer_store_dword v{vt}, v{va}, s[48:51], s4 offen")
    def srd(d, p, n):
        a(f"s_mov_b64 s[{d}:{d+1}], s[{p}:{p+1}]")
        a(f"s_mov_b32 s{d+2}, {n}")
        a(f"s_mov_b32 s{d+3}, 0x20000")
    def setexec(lo, hi):
        a(f"s_mov_b32 exec_lo, {lo:#x}")
        a(f"s_mov_b32 exec_hi, {hi:#x}")
    def row_list(op, r, steps=(1, 2, 4, 8)):
        return [f"{op}_dpp v{r}, v{r}, v{r} row_ror:{k} {DPP}" for k in steps]
    def cross_list(op, r, t):
        return [f"v_mov_b32 v{t}, v{r}", f"v_permlane16_swap_b32 v{r}, v{t}", f"{op} v{r}, v{r}, v{t}",
                f"v_mov_b32 v{t}, v{r}", f"v_permlane32_swap_b32 v{r}, v{t}", f"{op} v{r}, v{r}, v{t}"]
    def emit(l):
        for x in l: a(x)
    def bf16r(d, s):
        a(f"v_cvt_pk_bf16_f32 v{d}, 0, v{s}")
    TG = 8
    def make_tag():
        a("s_add_u32 s13, s13, 0x01010101")
        a("s_movk_i32 s63, 0xff")
        a("v_bfe_i32 v12, v0, 0, 1")
        a(f"v_and_b32 v12, {TAGX}, v12")
        a(f"v_xor_b32 v{TG}, s13, v12")
        for k in range(1, 4): a(f"v_lshrrev_b32 v{TG+k}, {8*k}, v{TG}")
    def apply_tag(r, tags=None):
        for k in range(4): a(f"v_bfi_b32 v{r+k}, s63, v{tags[k] if tags else TG+k}, v{r+k}")
    def tag_list(grans, t, n=4):
        o = []
        for g in grans:
            for k in range(n):
                if not o: o.append(f"v_xor_b32 v{t}, v{g+k}, v{TG+k}")
                else: o.append(f"v_bitop3_b32 v{t}, v{t}, v{g+k}, v{TG+k} bitop3:0xf6")
        o.append(f"v_and_b32 v{t}, 0xff, v{t}")
        return o
    def join_list(t, quad=True):
        o = [f"v_or_b32_dpp v{t}, v{t}, v{t} quad_perm:[1,0,3,2] {DPP}"]
        if quad: o.append(f"v_or_b32_dpp v{t}, v{t}, v{t} quad_perm:[2,3,0,1] {DPP}")
        return o
    def tag_check(grans, t, quad=True):
        emit(tag_list(grans, t) + join_list(t, quad))
        a(f"v_cmp_ne_u32 vcc, 0, v{t}")
    def treduce4(r):
        a(f"v_permlane32_swap_b32 v{r}, v{r+2}")
        a(f"v_permlane32_swap_b32 v{r+1}, v{r+3}")
        a(f"v_add_f32 v{r}, v{r}, v{r+2}")
        a(f"v_add_f32 v{r+1}, v{r+1}, v{r+3}")
        a(f"v_permlane16_swap_b32 v{r}, v{r+1}")
        a(f"v_add_f32 v{r}, v{r}, v{r+1}")
    def retry_masked(L, D, sleep=1):
        a("s_and_b64 exec, exec, vcc")
        a(f"s_cbranch_execz {D}")
        if sleep: a(f"s_sleep {sleep}")
        a("s_sub_u32 s60, s60, 1")
        a(f"s_cbranch_scc0 {L}")
        a(f"{D}:")
        a("s_mov_b64 exec, -1")
    def silu_bf16(d, x, t):
        a(f"v_mul_f32 v{t}, 0xbfb8aa3b, v{x}")
        a(f"v_exp_f32 v{t}, v{t}")
        a(f"v_add_f32 v{t}, 1.0, v{t}")
        a(f"v_rcp_f32 v{t}, v{t}")
        a(f"v_mul_f32 v{t}, v{t}, v{x}")
        bf16r(d, t)
    def lds_spin(off, n, vt, sleep=1):
        L = a.label("L_spin")
        a(f"s_mov_b32 s60, {spin_limit}")
        if sleep:
            E = a.label("L_spe")
            a(f"s_branch {E}")
        a(f"{L}:")
        if sleep:
            a(f"s_sleep {sleep}")
            a(f"{E}:")
        a(f"ds_read_b32 v{vt}, v1 offset:{off}")
        a("s_sub_u32 s60, s60, 1")
        a("s_waitcnt lgkmcnt(0)")
        a(f"v_readfirstlane_b32 s61, v{vt}")
        a("s_cselect_b32 s61, -1, s61")
        a(f"s_cmp_lt_u32 s61, {n}")
        a(f"s_cbranch_scc1 {L}")
    def refresh():
        a(f"ds_read_b64 v[12:13], v1 offset:{POST}")
        a("s_waitcnt lgkmcnt(0)")
        a("v_readfirstlane_b32 s96, v12")
        a("v_readfirstlane_b32 s97, v13")
    def need(x, sleep=0, count=True):
        if role[0] == "C": sleep = csleep
        L = a.label("L_need"); D = a.label("L_got")
        a(f"s_cmp_ge_u32 s96, {x}")
        a(f"s_cbranch_scc1 {D}")
        a(f"s_mov_b32 s60, {spin_limit}")
        a(f"{L}:")
        if sleep: a(f"s_sleep {sleep}")
        a(f"ds_read_b64 v[12:13], v1 offset:{POST}")
        a("s_sub_u32 s60, s60, 1")
        a("s_waitcnt lgkmcnt(0)")
        a("v_readfirstlane_b32 s96, v12")
        if count: a("v_readfirstlane_b32 s97, v13")
        a("s_cselect_b32 s96, -1, s96")
        if count: a("s_cselect_b32 s97, 0, s97")
        a(f"s_cmp_lt_u32 s96, {x}")
        a(f"s_cbranch_scc1 {L}")
        a(f"{D}:")
    def light_test():
        a("s_and_b32 s4, s2, 63")
        a("s_cmp_ge_u32 s4, 56")
    def gu_col(d):
        if gumix:
            a("s_lshr_b32 s4, s2, 6")
            a("s_and_b32 s5, s2, 60")
            a(f"s_add_u32 s{d}, s4, s5")
            return
        a("s_lshr_b32 s4, s2, 6")
        a("s_mul_i32 s4, s4, 56")
        a("s_and_b32 s5, s2, 63")
        a("s_add_u32 s4, s4, s5")
        a(f"s_lshr_b32 s{d}, s4, 2")
    def rr_cc(srr, scc):
        a(f"s_and_b32 s{srr}, s2, 7")
        a("s_lshr_b32 s62, s2, 5")
        a("s_lshl_b32 s62, s62, 3")
        a(f"s_or_b32 s{srr}, s{srr}, s62")
        a(f"s_bfe_u32 s{scc}, s2, 0x20003")
    lgp = npool.bit_length() - 1
    def pool_id(d):
        a("s_lshr_b32 s5, s2, 3")
        a("s_add_u32 s5, s5, s2")
        a(f"s_and_b32 s5, s5, {npool-1}")
        a("s_lshr_b32 s4, s2, 6")
        a(f"s_lshl_b32 s4, s4, {lgp}")
        a(f"s_add_u32 s{d}, s4, s5")
    def pool_member(d):
        a("s_bfe_u32 s5, s2, 0x30003")
        a(f"s_lshr_b32 s5, s5, {lgp}")
        a("s_lshl_b32 s5, s5, 3")
        a("s_and_b32 s4, s2, 7")
        a(f"s_add_u32 s{d}, s5, s4")
    def tr_addr(d):
        a("v_lshrrev_b32 v12, 2, v5")
        a("v_lshl_add_u32 v13, v4, 2, v12")
        a("v_bfe_u32 v12, v13, 1, 2")
        a("v_lshlrev_b32 v12, 5, v12")
        a("v_lshl_add_u32 v12, v13, 7, v12")
        a("v_and_b32 v13, 3, v0")
        a(f"v_lshl_add_u32 v{d}, v13, 3, v12")
    def slot_base(d, slot):
        a(f"s_and_b32 s{d}, {slot}, 7")
        a(f"s_lshl_b32 s{d}, s{d}, 14")

    a("s_cmp_ge_u32 s2, 256")
    a("s_cbranch_scc1 L_end")
    a("s_load_dwordx16 s[16:31], s[0:1], 0")
    a("s_load_dwordx8 s[32:39], s[0:1], 64")
    stamp(0)
    if probe: a("s_mov_b32 s67, -1")
    if cpf:
        a("s_getpc_b64 s[4:5]")
        a("L_pc:")
        a("v_subrev_u32 v12, 64, v0")
        a("v_mov_b32 v13, 0")
        a("v_cmp_gt_u32 vcc, (L_codeend-L_pc)/128, v12")
        a("v_lshlrev_b32 v12, 7, v12")
        a("s_and_saveexec_b64 s[6:7], vcc")
        a("s_cbranch_execz L_nopf")
        a("v_lshl_add_u64 v[12:13], v[12:13], 0, s[4:5]")
        a("global_load_dword v16, v[12:13], off offset:64")
        a("L_nopf:")
        a("s_mov_b64 exec, -1")
    a("v_cmp_gt_u32 vcc, 64, v0")
    a("v_lshrrev_b32 v1, 6, v0")
    a("v_and_b32 v0, 63, v0")
    a("v_lshrrev_b32 v2, 3, v0")
    a("v_and_b32 v3, 7, v0")
    a("v_lshrrev_b32 v4, 4, v0")
    a("s_and_b32 s14, s2, 3")
    a("s_mov_b32 s43, 0x20000")
    a("s_cbranch_vccz L_others")

    role[0] = "L"
    a("s_setprio 3")
    a("v_lshrrev_b32 v12, 5, v0")
    a("v_and_b32 v13, 3, v2")
    a("v_lshl_add_u32 v12, v12, 3, v13")
    a("v_lshlrev_b32 v13, 1, v4")
    a("v_xor_b32 v13, v13, v3")
    a("v_lshlrev_b32 v13, 4, v13")
    a("v_lshl_add_u32 v16, v12, 13, v13")
    a("s_lshl_b32 s8, s14, 21")
    a("s_lshr_b32 s5, s2, 2")
    a("s_lshl_b32 s5, s5, 7")
    a("s_add_u32 s8, s8, s5")
    a("s_mov_b32 m0, 0")
    a("s_mov_b32 s42, 8388608")
    a("s_waitcnt lgkmcnt(0)")
    a("s_mov_b64 s[40:41], s[22:23]")
    def wloads(vo, stride):
        for i in range(4):
            ro = (16 * (i & 1) + 4 * (i >> 1)) * stride - 1024 * i
            if i: a(f"s_add_u32 s9, s8, {ro}")
            a(f"buffer_load_dwordx4 v{vo}, s[40:43], s{9 if i else 8} offen offset:{1024*i}{NT} lds")
        a(f"s_add_u32 s8, s8, {32*stride}")
        a("s_add_u32 m0, m0, 4096")
    a("L_ld_q:")
    wloads(16, 8192)
    a("s_cmp_lt_u32 m0, 0x8000")
    a("s_cbranch_scc1 L_ld_q")
    a("s_branch L_loader")
    a("L_others:")
    a("v_readfirstlane_b32 s3, v1")
    a("v_lshlrev_b32 v14, 5, v0")
    a("v_lshlrev_b32 v15, 3, v0")
    a("s_lshl_b32 s10, s14, 9")
    a("s_movk_i32 s42, 2048")
    a("s_xor_b32 s3, s3, 4")
    a("s_cmp_gt_u32 s3, 3")
    a("s_waitcnt lgkmcnt(0)")
    a("s_mov_b64 s[40:41], s[16:17]")
    a(f"s_load_dword s13, s[38:39], {EPOCH}")
    a("s_cbranch_scc1 L_nox")
    a("buffer_load_dwordx4 v[56:59], v14, s[40:43], 0 offen")
    a("buffer_load_dwordx4 v[60:63], v14, s[40:43], 0 offen offset:16")
    a("buffer_load_dwordx2 v[64:65], v15, s[40:43], s10 offen")
    a("L_nox:")
    a("s_barrier")
    a("s_branch L_notloader")
    a("L_loader:")
    mem = 64 // npool; reg = 1024 // npool
    nshared = reg - mem * dyn - 2 * lex
    zone = nshared - ntw * mem + empt
    assert ntw == 2 and dyn + 2 * nshared + 4 <= 512
    a("s_mov_b32 s3, 4")
    a(f"v_mov_b32 v1, {MISC}")
    for k in range(4): a(f"v_mov_b32 v{28+k}, 0")
    a("v_lshl_add_u32 v14, v0, 2, v1")
    a("v_lshl_add_u32 v15, v0, 4, v1")
    a(f"ds_write_b32 v14, v30 offset:{PROG}")
    a(f"ds_write_b128 v15, v[28:31] offset:{TQ}")
    a(f"ds_write_b128 v15, v[28:31] offset:{TQ+1024}")
    pool_id(11)
    pool_member(6)
    if kmap in "DEFGH":
        assert npool == 4
        if kmap == "H":
            a("s_add_u32 s4, s11, s6")
            a("s_and_b32 s4, s4, 3")
            a("s_and_b32 s11, s11, 12")
            a("s_or_b32 s11, s11, s4")
        if kmap == "G":
            a(f"s_mul_i32 s6, s6, {dyn}")
            a("v_add_u32 v15, s6, v0")
        else:
            a("v_lshl_add_u32 v15, v0, 4, s6")
        if lex:
            assert kmap == "E" and lex % 2 == 0
            light_test()
            a(f"s_cselect_b32 s9, {lex}, 0")
            a("s_lshl_b32 s4, s9, 4")
            a("v_subrev_u32 v15, s4, v15")
            a("s_bfe_u32 s4, s2, 0x10002")
            a(f"s_add_u32 s4, s4, {mem*dyn}")
            a("v_lshl_add_u32 v31, v0, 1, s4")
            a("v_cmp_gt_u32 vcc, s9, v0")
            a("v_cndmask_b32 v15, v15, v31, vcc")
        if kmap in "EH":
            a("v_and_b32 v31, 1, v0")
            a("v_xor_b32 v15, v15, v31")
        if kmap == "F":
            a("s_lshr_b32 s7, s11, 1")
            a("s_lshl_b32 s6, s7, 4")
            a("v_add_u32 v15, s6, v15")
            a("v_and_b32 v15, 255, v15")
            a("v_lshrrev_b32 v31, 7, v15")
            a("v_xor_b32 v31, s11, v31")
            a("v_and_b32 v31, 1, v31")
            a("v_lshl_add_u32 v15, v15, 1, v31")
            a("s_lshl_b32 s7, s7, 22")
        else:
            a("s_lshl_b32 s6, s11, 4")
            a("v_add_u32 v15, s6, v15")
            a("v_and_b32 v15, 255, v15")
            a("s_lshl_b32 s7, s11, 21")
        a("v_lshl_add_u32 v15, v15, 13, s7")
    elif kmap == "A":
        a(f"s_mul_i32 s7, s11, {reg*8192}")
        a(f"s_mul_i32 s6, s6, {dyn*8192}")
        a("s_add_u32 s7, s7, s6")
        sh = 13
    elif kmap == "B":
        a(f"s_mul_i32 s7, s11, {reg*8192}")
        a("s_lshl_b32 s6, s6, 13")
        a("s_add_u32 s7, s7, s6")
        sh = 13 + (mem.bit_length() - 1)
    else:
        a(f"s_and_b32 s7, s11, {npool-1}")
        a(f"s_lshl_b32 s6, s6, {lgp}")
        a("s_add_u32 s7, s7, s6")
        a("s_lshl_b32 s7, s7, 13")
        sh = 19
    a(f"v_mov_b32 v31, {BIG}")
    if kmap not in "DEFGH": a(f"v_lshl_add_u32 v15, v0, {sh}, s7")
    if kmap == "C":
        a("s_lshr_b32 s6, s2, 6")
        if rot:
            a(f"s_mul_i32 s7, s6, {rot*8192}")
            a("v_add_u32 v15, s7, v15")
            a("v_and_b32 v15, 0x7fffff, v15")
        a("s_lshl_b32 s6, s6, 23")
        a("v_add_u32 v15, s6, v15")
    a("v_or_b32 v15, 1, v15")
    a("v_readfirstlane_b32 s99, v15")
    a(f"ds_write_b64 v1, v[30:31] offset:{POST}")
    if lex:
        a(f"s_add_u32 s9, s9, {dyn}")
        a("s_bfm_b64 exec, s9, 0")
    else:
        a(f"s_mov_b64 exec, {(1 << dyn) - 1}")
    a(f"ds_write_b32 v14, v15 offset:{TQ}")
    a("s_mov_b64 exec, -1")
    a("s_waitcnt lgkmcnt(0)")
    a("s_barrier")
    if stamps:
        for k in range(1, 16): a(f"s_mov_b32 s{64+2*k}, 0")
    stamp(1)
    def wait_post(w):
        a("v_add_u32 v30, 1, v30")
        a(f"s_waitcnt vmcnt({w})")
        a(f"ds_write_b64 v29, v[30:31] offset:{POST}")
    def unit(vo, srdn, so):
        for i in range(4):
            if half and i == 2: a(f"s_waitcnt vmcnt({win - 4})")
            a(f"buffer_load_dwordx4 v{vo[i]}, s[{srdn}:{srdn+3}], s{so} offen offset:{1024*i}{NT} lds")
        a("s_add_u32 m0, m0, 4096")
        if pace: a(f"s_sleep {pace}")
    a("v_and_b32 v5, 15, v0")
    a("v_lshl_add_u32 v29, v0, 3, v1")
    VG, VD, VK, VV = [40, 41, 42, 43], [44, 45, 46, 47], [20, 21, 22, 23], [24, 25, 24, 25]
    a(f"v_mul_u32_u24 v{VG[0]}, 7168, v12")
    a(f"v_add_u32 v{VG[0]}, v{VG[0]}, v13")
    a(f"v_lshl_add_u32 v{VD[0]}, v12, 11, v13")
    for i in range(1, 4):
        a(f"v_add_u32 v{VG[i]}, {(16 * (i & 1) + 4 * (i >> 1)) * 7168 - 1024 * i}, v{VG[0]}")
        a(f"v_add_u32 v{VD[i]}, {(16 * (i & 1) + 4 * (i >> 1)) * 2048 - 1024 * i}, v{VD[0]}")
    gu_col(6)
    a("s_lshl_b32 s6, s6, 7")
    a(f"s_mul_i32 s7, s14, {256*7168}")
    a("s_add_u32 s12, s7, s6")
    if "w" in abl:
        a("s_lshl_b32 s12, s4, 15")
        for i in range(4):
            a(f"v_lshlrev_b32 v{VG[i]}, 4, v0")
            a(f"v_lshlrev_b32 v{VD[i]}, 4, v0")
    a("s_mov_b32 s8, s12")
    a("s_mov_b32 s42, 7340032")
    a("s_mov_b64 s[40:41], s[28:29]")
    for j in range(4):
        a(f"v_add_u32 v14, {4*j}, v4")
        a("v_xor_b32 v14, v14, v5")
        a("v_lshlrev_b32 v14, 4, v14")
        a(f"v_lshl_add_u32 v{VK[j]}, v4, 8, v14")
    for j in range(2):
        a(f"v_add_u32 v14, {4*j}, v4")
        a("v_lshlrev_b32 v14, 1, v14")
        a("v_xor_b32 v14, v14, v5")
        a("v_lshlrev_b32 v14, 4, v14")
        a(f"v_lshl_add_u32 v{VV[j]}, v4, 8, v14")
    srd(44, 18, 33554432)
    srd(48, 20, 33554432)
    srd(52, 32, 7340032)
    srd(56, 24, 8388608)
    a("s_lshr_b32 s6, s2, 4")
    a(f"s_mul_i32 s96, s6, {224*2048}")
    a("s_and_b32 s6, s2, 15")
    a("s_lshl_b32 s6, s6, 7")
    a("s_add_u32 s96, s96, s6")
    rr_cc(6, 7)
    a("s_lshl_b32 s6, s6, 17")
    a("s_lshl_b32 s7, s7, 9")
    a("s_add_u32 s97, s6, s7")
    if "w" in abl:
        a("s_mul_i32 s96, s2, 28672")
        a("s_lshl_b32 s97, s2, 15")
    a("s_mov_b32 s7, s99")
    a("s_mov_b32 s10, 0")
    a("s_mov_b32 s11, 0")
    a("s_mov_b32 s15, 0")
    a("s_mov_b32 s98, 2")
    a("s_mov_b32 s6, 0x10000")
    light_test()
    w1 = win1 or win
    assert win <= w1 <= 32
    for w in range(28, w1 - 4, -4): wait_post(w)
    a("s_cbranch_scc1 L_ld_kv")
    a("s_mov_b32 s98, 6")
    a("L_ld_gu:")
    wait_post(w1 - 4)
    unit(VG, 40, 8)
    a(f"s_add_u32 s8, s8, {4096 if 'w' in abl else 32*7168}")
    a("s_cmp_lt_u32 m0, s6")
    a("s_cbranch_scc1 L_ld_gu")
    a("s_mov_b32 s8, s12")
    a("s_mov_b64 s[40:41], s[30:31]")
    a("s_mov_b32 s6, 0x18000")
    a("s_cmp_lt_u32 m0, s6")
    a("s_cbranch_scc1 L_ld_gu")
    a("L_ld_kv:")
    stamp(2)
    leak_flag()
    if win1:
        assert n1 <= dyn - ahead
        a("L_ld_tile1:")
        a("s_and_b32 s8, s7, 0xffffe000")
        wait_post(w1 - 4)
        unit(VK, 44, 8)
        a("s_add_u32 s9, s8, 4096")
        a("s_add_u32 s11, s11, 1")
        a("v_mov_b32 v38, s11")
        wait_post(w1 - 4)
        unit(VK, 44, 9)
        a("v_lshl_add_u32 v36, v38, 2, v1")
        a("s_add_u32 s10, s10, 1")
        a("s_add_u32 s98, s98, 1")
        wait_post(w1 - 4)
        unit(VV, 48, 8)
        a(f"ds_read_b128 v[32:35], v1 offset:{PROG}")
        a(f"ds_read_b32 v37, v36 offset:{TQ}")
        wait_post(w1 - 4)
        unit(VV, 48, 9)
        a("s_and_b32 m0, m0, 0x1ffff")
        a(f"s_mov_b32 s60, {spin_limit}")
        a("L_ld_chk1:")
        a("s_waitcnt lgkmcnt(0)")
        a("v_min3_u32 v32, v32, v33, v34")
        a("v_readfirstlane_b32 s7, v37")
        a("v_min_u32 v32, v32, v35")
        a("s_sub_u32 s60, s60, 1")
        a("v_readfirstlane_b32 s4, v32")
        a("s_cselect_b32 s4, s98, s4")
        a("s_add_u32 s4, s4, 8")
        a("s_cmp_gt_u32 s4, s98")
        a("s_cbranch_scc1 L_ld_free1")
        a(f"ds_read_b128 v[32:35], v1 offset:{PROG}")
        a("s_branch L_ld_chk1")
        a("L_ld_free1:")
        a(f"s_cmp_lt_u32 s10, {n1}")
        a("s_cbranch_scc1 L_ld_tile1")
        for w in range(w1 - 4, win - 4, -4): wait_post(w)
    a("L_ld_tile:")
    a("s_and_b32 s8, s7, 0xffffe000")
    if "y" in abl:
        nst = mem * dyn
        a("s_lshr_b32 s4, s8, 21")
        a("s_bfe_u32 s5, s8, 0x8000d")
        a("s_lshl_b32 s6, s4, 4")
        a("s_sub_u32 s5, s5, s6")
        a("s_and_b32 s5, s5, 255")
        a("s_mov_b64 s[44:45], s[18:19]")
        a("s_mov_b64 s[48:49], s[20:21]")
        a(f"s_cmp_ge_u32 s5, {nst + 2*lex}")
        a("s_cbranch_scc1 L_ld_mixed")
        a(f"s_sub_u32 s12, s5, {nst // 2}")
        a(f"s_cmp_lt_u32 s12, {nst // 2}")
        a("s_cselect_b64 s[44:45], s[20:21], s[18:19]")
        a("s_cselect_b32 s5, s12, s5")
        a("s_lshl_b32 s5, s5, 1")
        a("s_add_u32 s5, s5, s6")
        a("s_and_b32 s5, s5, 254")
        a("s_lshl_b32 s5, s5, 13")
        a("s_lshl_b32 s4, s4, 21")
        a("s_add_u32 s8, s4, s5")
        a("s_add_u32 s48, s44, 8192")
        a("s_addc_u32 s49, s45, 0")
        a("L_ld_mixed:")
    if "p" in abl:
        a("s_lshr_b32 s4, s8, 21")
        a("s_bfe_u32 s5, s8, 0x8000d")
        a("s_lshl_b32 s6, s4, 4")
        a("s_sub_u32 s5, s5, s6")
        if "P" in abl:
            a("s_and_b32 s5, s5, 255")
            a(f"s_sub_u32 s12, s5, {mem*dyn}")
            a(f"s_cmp_lt_u32 s12, {2*lex}")
            a("s_cselect_b32 s12, 128, 0")
            a("s_xor_b32 s12, s12, s5")
            a("s_bitcmp1_b32 s12, 7")
        else:
            a("s_bitcmp1_b32 s5, 7")
        a("s_cselect_b64 s[44:45], s[20:21], s[18:19]")
        a("s_lshr_b32 s6, s6, 1")
        a("s_add_u32 s5, s5, s6")
        a("s_and_b32 s5, s5, 127")
        a("s_lshl_b32 s5, s5, 14")
        a("s_lshl_b32 s4, s4, 21")
        a("s_add_u32 s8, s4, s5")
        a("s_add_u32 s48, s44, 8192")
        a("s_addc_u32 s49, s45, 0")
    wait_post(win - 4)
    unit(VK, 44, 8)
    a("s_add_u32 s9, s8, 4096")
    a("s_bfe_u32 s4, s7, 0x10001")
    a("s_and_b32 s5, s11, 1")
    a("s_lshl_b32 s4, s4, s5")
    a("s_or_b32 s15, s15, s4")
    a("s_add_u32 s11, s11, 1")
    a("s_xor_b32 s5, s5, 1")
    a("s_bitcmp1_b32 s15, s5")
    a("s_addc_u32 s11, s11, 0")
    a("v_mov_b32 v38, s11")
    if spos == 0: a(f"ds_write_b32 v1, v38 offset:{STARTED}")
    wait_post(win - 4)
    unit(VK, 44, 9)
    if spos == 1: a(f"ds_write_b32 v1, v38 offset:{STARTED}")
    a("v_lshl_add_u32 v36, v38, 2, v1")
    a("s_add_u32 s10, s10, 1")
    a("s_cmp_eq_u32 s15, 3")
    a(f"s_cselect_b32 s4, s10, {BIG}")
    a("v_mov_b32 v31, s4")
    a("s_cselect_b32 s4, 4, 1")
    a("s_add_u32 s98, s98, s4")
    wait_post(win - 4)
    unit(VV, 48, 8)
    if spos == 2: a(f"ds_write_b32 v1, v38 offset:{STARTED}")
    def peek():
        a(f"ds_read_b128 v[32:35], v1 offset:{PROG}")
        a(f"ds_read_b32 v37, v36 offset:{TQ}")
    peek()
    wait_post(win - 4)
    unit(VV, 48, 9)
    if spos == 3: a(f"ds_write_b32 v1, v38 offset:{STARTED}")
    a("s_and_b32 m0, m0, 0x1ffff")
    if stamps: a("s_memrealtime s[100:101]")
    a(f"s_mov_b32 s60, {spin_limit}")
    a("L_ld_chk:")
    a("s_waitcnt lgkmcnt(0)")
    a("v_min3_u32 v32, v32, v33, v34")
    a("v_readfirstlane_b32 s5, v37")
    a("v_min_u32 v32, v32, v35")
    a("s_cmp_eq_u32 s15, 3")
    a("v_readfirstlane_b32 s4, v32")
    a("s_cbranch_scc1 L_ld_end")
    a("s_add_u32 s4, s4, 8")
    a("s_cmp_gt_u32 s4, s98")
    a("s_cselect_b32 s7, s5, 0")
    a("s_bitcmp1_b32 s7, 0")
    if stamps:
        a("s_cbranch_scc0 L_ld_again")
        a("s_memrealtime s[62:63]")
        a("s_waitcnt lgkmcnt(0)")
        a("s_sub_u32 s62, s62, s100")
        a("s_add_u32 s88, s88, s62")
        a("s_max_u32 s90, s90, s62")
        a("s_branch L_ld_tile")
    else:
        a("s_cbranch_scc1 L_ld_tile")
    a("L_ld_again:")
    if empt:
        a("s_cmp_eq_u32 s15, 3")
        a("s_cselect_b32 s5, 0, s5")
        a("s_cmp_lg_u32 s5, 2")
        a("s_cbranch_scc1 L_ld_peek")
        a("s_and_b32 s5, s11, 1")
        a("s_bitset1_b32 s15, s5")
        a("s_add_u32 s11, s11, 1")
        a("v_mov_b32 v32, s11")
        a("v_lshl_add_u32 v36, v32, 2, v1")
        a(f"ds_write_b32 v1, v32 offset:{STARTED}")
        a("s_cmp_eq_u32 s15, 3")
        a("s_cbranch_scc0 L_ld_peek")
        a("v_mov_b32 v31, s10")
        a("s_add_u32 s98, s98, 3")
        a("s_cmp_gt_u32 s4, s98")
        a("s_cbranch_scc1 L_ld_go")
        a("L_ld_peek:")
    peek()
    a("s_sub_u32 s60, s60, 1")
    a("s_cbranch_scc0 L_ld_chk")
    a("v_mov_b32 v30, 0x7fffffff")
    a("v_mov_b32 v31, s10")
    a(f"ds_write_b64 v29, v[30:31] offset:{POST}")
    a("s_endpgm")
    a("L_ld_end:")
    a("s_add_u32 s4, s4, 8")
    a("s_cmp_gt_u32 s4, s98")
    a("s_cbranch_scc0 L_ld_again")
    a("L_ld_go:")
    stamp(3)
    if stamps:
        a("s_add_u32 s92, s10, s64")
        a("s_add_u32 s88, s88, s64")
        a("s_add_u32 s90, s90, s64")
    def tail(wn, k0, k1):
        for w in range(win - 4, wn - 4, -4): wait_post(w)
        skip = max(0, (wn - win) // 4)
        for k in range(k0, k1):
            if k - k0 >= skip: wait_post(wn - 4)
            if rk and k1 < 15 and k == k1 - 1: a(f"ds_read_b32 v32, v1 offset:{GATE}")
            if k < 7:
                unit(VD, 52, 96)
                if k < 6: a(f"s_add_u32 s96, s96, {4096 if 'w' in abl else 0x10000}")
            else:
                unit(VD, 56, 97)
                if k < 14: a(f"s_add_u32 s97, s97, {4096 if 'w' in abl else 0x10000 - 384 if k == 10 else 128}")
            if k % 4 == 3: a("s_and_b32 m0, m0, 0x1ffff")
            if k == 6: stamp(4)
        if k1 < 15: return
        stamp(5)
        for w in range(min(wn, win + 4 * (k1 - k0)) - 4, -4, -4): wait_post(w)
        stamp(6)
    ws_ = wins or [win]
    if grow:
        tail(win, 0, grow[0])
        ws_ = [grow[1]]; rk0_ = grow[0]
    elif rk:
        tail(win, 0, rk0)
        a("s_waitcnt lgkmcnt(0)")
        a("v_readfirstlane_b32 s4, v32")
    elif len(ws_) > 1: a("s_bfe_u32 s4, s7, 0x40004")
    for c in range(1, len(ws_)):
        a(f"s_cmp_eq_u32 s4, {c}")
        a(f"s_cbranch_scc1 L_ld_tail{c}")
    for c, wn in enumerate(ws_):
        a(f"L_ld_tail{c}:")
        tail(wn, grow[0] if grow else rk0 if rk else 0, 15)
        if c < len(ws_) - 1: a("s_branch L_ld_done" if (stamps or probe or leak) else "s_endpgm")
    a("L_ld_done:")
    if stamps:
        srd(48, 38, 268435456)
        a("s_getreg_b32 s94, hwreg(HW_REG_XCC_ID)")
        a("s_getreg_b32 s95, hwreg(HW_REG_HW_ID)")
        a("s_and_b32 s94, s94, 15")
        a("s_lshl_b32 s94, s94, 16")
        a("s_and_b32 s95, s95, 0xffff")
        a("s_or_b32 s94, s94, s95")
        a("s_or_b32 s94, s94, 0x1000000")
    dump_stamps(12, 13)
    a("s_endpgm")

    a("L_notloader:")
    if stamps or lite:
        for k in range(1, 16): a(f"s_mov_b32 s{64+2*k}, 0")
    a(f"v_mov_b32 v1, {MISC}")
    a("v_and_b32 v5, 15, v0")
    a("v_lshlrev_b32 v6, 4, v0")
    srd(48, 38, 268435456)
    a("s_mov_b32 s96, 0")
    a(f"s_mov_b32 s97, {BIG}")
    a("s_cmp_eq_u32 s3, 5")
    a("s_cbranch_scc1 L_helper")
    a("s_cmp_gt_u32 s3, 5")
    a("s_cbranch_scc1 L_ticket")

    role[0] = "C"
    XF = 32
    AF = 64
    ACC = 80
    TA = 7
    a("s_setprio 1")
    tr_addr(TA)
    a("s_waitcnt lgkmcnt(0)")
    make_tag()
    a("s_waitcnt vmcnt(0)")
    stamp(1)
    pool_member(6)
    a("s_cmp_lg_u32 s6, 0")
    a("s_cbranch_scc1 L_nozero")
    pool_id(6)
    a("v_mov_b32 v12, 0")
    a("v_lshlrev_b32 v13, 10, v0")
    a(f"s_mul_i32 s7, s6, {cstride}")
    a(f"s_add_u32 s7, s7, {TCN}")
    a("s_mov_b64 exec, 1")
    if sig1 is not None or sig2:
        assert npool == 4
        a("s_cmp_eq_u32 s3, 0")
        a("s_cbranch_scc1 " + ("L_zeroed" if early_t else "L_dozero"))
        a("s_mov_b64 exec, 0xffff")
        a("s_lshr_b32 s4, s6, 2")
        a("s_and_b32 s5, s6, 3")
        if sig1 is not None or rk:
            a("s_lshl_b32 s7, s4, 14")
            a("s_lshl_b32 s8, s5, 8")
            a("s_add_u32 s7, s7, s8")
            a(f"s_add_u32 s7, s7, {AC1}")
            a("s_cmp_eq_u32 s3, 1")
            a("s_cbranch_scc1 L_dozero")
        a("s_lshl_b32 s7, s5, 14")
        a("s_lshl_b32 s8, s4, 8")
        a("s_add_u32 s7, s7, s8")
        a(f"s_add_u32 s7, s7, {AC2}")
        a("v_mov_b32 v12, s13")
        a("s_cmp_eq_u32 s3, 2")
    else:
        a("s_cmp_eq_u32 s3, 0")
    a("s_cbranch_scc0 L_zeroed")
    a("L_dozero:")
    a("buffer_store_dword v12, v13, s[48:51], s7 offen sc1")
    a("L_zeroed:")
    a("s_mov_b64 exec, -1")
    a("L_nozero:")
    for i in range(8):
        a(f"v_lshlrev_b32 v{32+2*i}, 16, v{56+i}")
        a(f"v_and_b32 v{33+2*i}, 0xffff0000, v{56+i}")
    a("v_add_f32 v16, v32, v33")
    a("v_add_f32 v17, v34, v35")
    for i in range(2, 8):
        a(f"v_add_f32 v16, v16, v{32+2*i}")
        a(f"v_add_f32 v17, v17, v{33+2*i}")
    a("v_add_f32 v16, v16, v17")
    emit(row_list("v_add_f32", 16) + cross_list("v_add_f32", 16, 17))
    a("v_mul_f32 v16, 0x3a800000, v16")
    for i in range(16):
        a(f"v_sub_f32 v{32+i}, v{32+i}, v16")
    a("v_mul_f32 v17, v32, v32")
    a("v_mul_f32 v18, v33, v33")
    for i in range(1, 8):
        a(f"v_fmac_f32 v17, v{32+2*i}, v{32+2*i}")
        a(f"v_fmac_f32 v18, v{33+2*i}, v{33+2*i}")
    a("v_add_f32 v17, v17, v18")
    emit(row_list("v_add_f32", 17) + cross_list("v_add_f32", 17, 18))
    a("v_mul_f32 v17, 0x3a800000, v17")
    bf16r(16, 16)
    bf16r(17, 17)
    a("v_add_f32 v17, 0x3727c5ac, v17")
    bf16r(17, 17)
    a("v_sqrt_f32 v17, v17")
    for i in range(2):
        a(f"v_lshlrev_b32 v{18+2*i}, 16, v{64+i}")
        a(f"v_and_b32 v{19+2*i}, 0xffff0000, v{64+i}")
    bf16r(17, 17)
    a("v_rcp_f32 v17, v17")
    for i in range(4): a(f"v_sub_f32 v{18+i}, v{18+i}, v16")
    for i in range(4): bf16r(18 + i, 18 + i)
    for i in range(4): a(f"v_mul_f32 v{18+i}, v{18+i}, v17")
    a("v_cvt_pk_bf16_f32 v18, v18, v19")
    a("v_cvt_pk_bf16_f32 v19, v20, v21")
    a("v_add_u32 v15, v15, v1")
    a(f"ds_write_b64 v15, v[18:19] offset:{XN}")
    a("v_lshl_add_u32 v14, v4, 4, v1")
    for s in range(8):
        a(f"ds_read_b128 v[{XF+4*s}:{XF+4*s+3}], v14 offset:{XN+64*s}")
    stamp(2)
    A1 = 27
    a(f"v_lshl_add_u32 v12, v0, 2, v1")
    a(f"v_add_u32 v12, {SCR}, v12")
    a("v_cmp_eq_u32 vcc, 0, v0")
    a(f"v_cndmask_b32 v{A1}, v12, v1, vcc")
    a("s_lshl_b32 s4, s3, 2")
    a(f"v_add_u32 v28, s4, v{A1}")
    def progress(x):
        a(f"v_mov_b32 v29, {x}")
        a(f"ds_write_b32 v28, v29 offset:{PROG}")
    a("s_lshl_b32 s4, s3, 5")
    a(f"v_xor_b32 v14, s4, v{TA}")
    a("s_lshl_b32 s8, s14, 14")
    a("s_lshl_b32 s9, s3, 6")
    a("s_add_u32 s8, s8, s9")
    gu_col(11)
    a("s_lshl_b32 s11, s11, 8")
    a("s_add_u32 s11, s11, s8")
    a("s_lshr_b32 s9, s2, 2")
    a("s_lshl_b32 s9, s9, 8")
    a("s_add_u32 s9, s9, s8")
    light_test()
    a("s_cselect_b32 s15, 2, 6")
    a("s_mov_b32 s99, 0")
    a("s_mov_b32 s10, 0")
    a("v_lshlrev_b32 v15, 6, v4")
    a("v_and_b32 v15, 3, v0")
    a("v_lshlrev_b32 v15, 6, v15")
    a("L_c_blk:")
    for (s0, s1) in [(0, 4), (4, 6), (6, 8)]:
        a(f"s_add_u32 s10, s10, {s1-s0}")
        need("s10")
        for s in range(s0, s1):
            for t in range(2):
                d = AF + 4 * (s & 3) + 2 * t
                a(f"ds_read_b64_tr_b16 v[{d}:{d+1}], v14 offset:{s*4096+t*2048}")
        a("s_waitcnt lgkmcnt(0)")
        for s in range(s0, s1):
            c = "0" if s == 0 else f"v[{ACC}:{ACC+3}]"
            a(f"v_mfma_f32_16x16x32_bf16 v[{ACC}:{ACC+3}], v[{AF+4*(s&3)}:{AF+4*(s&3)+3}], v[{XF+4*s}:{XF+4*s+3}], {c}")
        if s1 % 4 == 0:
            a("s_add_u32 s99, s99, 1")
            progress("s99")
    a("v_add_u32 v14, 0x8000, v14")
    for k in range(4): a(f"ds_bpermute_b32 v{ACC+k}, v15, v{ACC+k}")
    a("s_waitcnt vmcnt(0) lgkmcnt(0)")
    apply_tag(ACC)
    a("s_mov_b64 exec, 0xf")
    a(f"buffer_store_dwordx4 v[{ACC}:{ACC+3}], v6, s[48:51], s9 offen sc1")
    a("s_mov_b64 exec, -1")
    if stamps or probe or leak:
        a("s_cmp_lg_u32 s99, 2")
        a("s_cbranch_scc1 L_c_ns3")
        stamp(3)
        a("L_c_ns3:")
    a("s_add_u32 s11, s11, 0x10000")
    a("s_mov_b32 s9, s11")
    a("s_cmp_lt_u32 s99, s15")
    a("s_cbranch_scc1 L_c_blk")
    stamp(4)
    leak_flag()
    if qlight:
        light_test()
        a(f"s_cselect_b32 s4, {qlight}, {qstart}")
        need("s4")
    elif qstart: need(qstart)
    a("s_lshr_b32 s4, s2, 6")
    a("s_lshl_b32 s4, s4, 12")
    a("s_lshl_b32 s5, s3, 10")
    a("s_add_u32 s52, s4, s5")
    a("s_add_u32 s53, s52, 16384")
    a("s_add_u32 s54, s52, 32768")
    a("s_add_u32 s55, s52, 49152")
    def q_loads():
        for r in range(1 if "q" in abl else 4):
            a(f"buffer_load_dwordx4 v[{64+4*r}:{67+4*r}], v6, s[48:51], s{52+r} offen sc1")
    q_loads()
    KF = 32; QF = 96; SC = 64; VF = 72; AO = 80
    KA = 112; VA = 116; KC = 120; VC = 118
    S = 16; P = 20; M2, LS, AL = 24, 25, 26
    RL, LB = 30, 31
    A_OP, A_PERM, A_SH, A_G, A_OL, A_SP, A_M, SEL1, SEL2, A_QR, ONE = 128, 129, 130, 131, 132, 133, 134, 138, 139, 140, 141
    for m in range(4):
        a(f"v_add_u32 v12, {4*m}, v4")
        a("v_xor_b32 v12, v12, v5")
        a("v_lshlrev_b32 v12, 4, v12")
        a(f"v_lshl_add_u32 v{KA+m}, v5, 8, v12")
    a("v_lshrrev_b32 v12, 2, v5")
    a("v_lshl_add_u32 v12, v4, 2, v12")
    a("v_and_b32 v15, 3, v0")
    a("v_lshlrev_b32 v13, 3, v15")
    a("v_lshl_add_u32 v13, v12, 8, v13")
    a("v_add_u32 v13, 8192, v13")
    a("v_and_b32 v12, 7, v12")
    a("s_lshl_b32 s4, s3, 1")
    for n in range(2):
        a(f"s_add_u32 s5, s4, {n}")
        a("v_xor_b32 v14, s5, v12")
        a(f"v_lshl_add_u32 v{VA+n}, v14, 5, v13")
    a(f"v_mov_b32 v{M2}, 0xff7fffff")
    a(f"v_mov_b32 v{LS}, 0")
    for i in range(8): a(f"v_mov_b32 v{AO+i}, 0")
    a("v_cmp_lt_u32 s[100:101], 7, v5")
    a(f"s_mov_b32 s12, {LOG2E}")
    a(f"v_mul_u32_u24 v14, {QROW}, v3")
    a("v_lshl_add_u32 v14, v4, 4, v14")
    a(f"v_add_u32 v{A_QR}, v14, v1")
    a(f"v_mov_b32 v{ONE}, 1")
    a(f"v_lshlrev_b32 v14, {9+ow}, v2")
    if opw:
        a("v_and_b32 v13, 4, v0")
        a("v_lshl_add_u32 v14, v13, 4, v14")
    a(f"v_lshl_add_u32 v{A_OP}, v3, 4, v14")
    a("v_lshlrev_b32 v13, 4, v15")
    a("v_and_b32 v14, 4, v0")
    a("v_lshl_add_u32 v13, v14, 1, v13")
    a("v_add_u32 v13, v13, v2")
    a(f"v_lshlrev_b32 v{A_PERM}, 2, v13")
    a(f"v_lshlrev_b32 v{A_SH}, 3, v4")
    TO = 143
    a("v_bfe_i32 v12, v0, 4, 1")
    a(f"v_and_b32 v12, {TAGX}, v12")
    a(f"v_xor_b32 v{TO}, s13, v12")
    for k in range(1, 3): a(f"v_lshrrev_b32 v{TO+k}, {8*k}, v{TO}")
    a(f"s_mul_i32 s4, s2, {RSO}")
    a(f"s_lshl_b32 s5, s3, {7+ow}")
    a("s_add_u32 s4, s4, s5")
    a(f"s_add_u32 s44, s4, {OP}")
    rr_cc(4, 5)
    a(f"s_mul_i32 s8, s4, {RSS}")
    a(f"s_lshl_b32 s9, s5, {10+sw}")
    a("s_add_u32 s8, s8, s9")
    a(f"s_lshl_b32 s9, s3, {8+sw}")
    a("s_add_u32 s8, s8, s9")
    a(f"s_add_u32 s45, s8, {SP}")
    if cgate:
        a("s_lshl_b32 s8, s4, 8")
        a(f"s_add_u32 s8, s8, {OCN}")
        a("s_add_u32 s58, s38, s8")
        a("s_addc_u32 s59, s39, 0")
        a("s_lshr_b32 s8, s2, 6")
        a("s_lshl_b32 s8, s8, 12")
        a(f"s_add_u32 s46, s8, {OCN}")
        a("v_lshlrev_b32 v142, 8, v0")
    a("s_lshr_b32 s8, s4, 4")
    a(f"s_mul_i32 s8, s8, {64*RSO}")
    a("s_and_b32 s9, s4, 15")
    a(f"s_lshl_b32 s9, s9, {8+ow}")
    a("s_add_u32 s8, s8, s9")
    a(f"s_lshl_b32 s9, s3, {6+ow}")
    a("s_add_u32 s8, s8, s9")
    a(f"s_add_u32 s16, s8, {OP}")
    a(f"s_add_u32 s17, s16, {RSO}")
    a(f"s_add_u32 s18, s16, {2*RSO}")
    a(f"s_add_u32 s19, s16, {3*RSO}")
    a("v_lshrrev_b32 v13, 2, v0")
    a(f"v_mul_u32_u24 v13, {4*RSO}, v13")
    a(f"v_lshl_add_u32 v{A_G}, v15, 4, v13")
    a("v_lshl_add_u32 v12, v4, 4, v1")
    a(f"v_add_u32 v12, {OL}, v12")
    a(f"v_add_u32 v13, {ZER}, v1")
    for u in range(4):
        a(f"v_cmp_eq_u32 vcc, {u}, v15")
        a(f"v_cndmask_b32 v{A_M+u}, v13, v12, vcc")
    a("s_lshl_b32 s4, s3, 5")
    a("v_lshl_add_u32 v13, v4, 1, v1")
    a("v_lshl_add_u32 v13, v15, 3, v13")
    a(f"v_add_u32 v{A_OL}, s4, v13")
    a("v_lshlrev_b32 v13, 4, v5")
    a(f"v_lshl_add_u32 v{A_SP}, v4, {6+sw}, v13")
    a("v_and_b32 v12, 1, v0")
    a("v_cmp_eq_u32 vcc, 1, v12")
    a("v_mov_b32 v12, 0x06020400")
    a("v_mov_b32 v13, 0x03070105")
    a(f"v_cndmask_b32 v{SEL1}, v12, v13, vcc")
    a("v_and_b32 v12, 2, v0")
    a("v_cmp_eq_u32 vcc, 2, v12")
    a("v_mov_b32 v12, 0x05040100")
    a("v_mov_b32 v13, 0x03020706")
    a(f"v_cndmask_b32 v{SEL2}, v12, v13, vcc")
    a("s_mov_b32 s20, 0x0c0c0400")
    a("s_mov_b32 s21, 0x05040100")
    L = a.label("L_q"); D = a.label("L_qd")
    a(f"s_mov_b32 s60, {spin_limit}")
    a("s_branch L_q_wait")
    a(f"{L}:")
    q_loads()
    a("L_q_wait:")
    a("s_waitcnt vmcnt(0)")
    tag_check([64] if "q" in abl else [64, 68, 72, 76], 12)
    retry_masked(L, D, qsleep)
    stamp(5)
    for k in range(4): a(f"v_add_f32 v{64+k}, v{64+k}, v{68+k}")
    for k in range(4): a(f"v_add_f32 v{72+k}, v{72+k}, v{76+k}")
    for k in range(4): a(f"v_add_f32 v{64+k}, v{64+k}, v{72+k}")
    a("v_cvt_pk_bf16_f32 v64, v64, v65")
    a("v_cvt_pk_bf16_f32 v65, v66, v67")
    a("v_lshrrev_b32 v12, 5, v0")
    a("s_lshl_b32 s4, s3, 1")
    a("v_add_u32 v12, s4, v12")
    a(f"v_mul_u32_u24 v12, {QROW}, v12")
    a("v_and_b32 v13, 31, v0")
    a("v_lshl_add_u32 v12, v13, 3, v12")
    a("v_add_u32 v12, v12, v1")
    a(f"ds_write_b64 v12, v[64:65] offset:{QL}")
    a(f"ds_add_u32 v{A1}, v{ONE} offset:{QCNT}")
    lds_spin(QCNT, 7 if early_t else 5, 12, 0)
    for m in range(4):
        a(f"ds_read_b128 v[{QF+4*m}:{QF+4*m+3}], v{A_QR} offset:{QL+64*m}")
    stamp(6)
    def k_reads():
        for m in range(4): a(f"v_add_u32 v{KC+m}, s4, v{KA+m}")
        for t in range(2):
            for m in range(4):
                d = KF + 16 * t + 4 * m
                a(f"ds_read_b128 v[{d}:{d+3}], v{KC+m} offset:{4096*t}")
    def v_addr():
        for n in range(2): a(f"v_add_u32 v{VC+n}, s5, v{VA+n}")
    def v_reads():
        for n in range(2):
            for t in range(2):
                d = VF + 4 * n + 2 * t
                a(f"ds_read_b64_tr_b16 v[{d}:{d+1}], v{VC+n} offset:{4096*t}")
    def qk_list():
        out = []
        for t in range(2):
            for m in range(4):
                d = KF + 16 * t + 4 * m
                c = "0" if m == 0 else f"v[{SC+4*t}:{SC+4*t+3}]"
                out.append(f"v_mfma_f32_16x16x32_bf16 v[{SC+4*t}:{SC+4*t+3}], v[{d}:{d+3}], v[{QF+4*m}:{QF+4*m+3}], {c}")
        return out
    def softmax_list():
        o = []
        for k in range(4): o.append(f"v_cndmask_b32 v{S+k}, v{SC+k}, v{SC+4+k}, s[100:101]")
        for k in range(4): o.append(f"v_cvt_pk_bf16_f32 v{S+k}, 0, v{S+k}")
        for k in range(4): o.append(f"v_mul_f32 v{S+k}, {SCALE}, v{S+k}")
        for k in range(4): o.append(f"v_cvt_pk_bf16_f32 v{S+k}, 0, v{S+k}")
        o.append(f"v_max3_f32 v14, v{S}, v{S+1}, v{S+2}")
        o.append(f"v_max_f32 v14, v14, v{S+3}")
        o.append("MARK")
        o += row_list("v_max_f32", 14, (8,)) + cross_list("v_max_f32", 14, 15)
        o.append("v_mul_f32 v14, s12, v14")
        o.append(f"v_max_f32 v14, v14, v{M2}")
        o.append(f"v_sub_f32 v{AL}, v{M2}, v14")
        o.append(f"v_mov_b32 v{M2}, v14")
        o.append(f"v_exp_f32 v{AL}, v{AL}")
        for k in range(4): o.append(f"v_fma_f32 v{S+k}, v{S+k}, s12, -v14")
        for k in range(4): o.append(f"v_exp_f32 v{S+k}, v{S+k}")
        for i in range(4): o.append(f"v_mul_f32 v{AO+i}, v{AL}, v{AO+i}")
        o.append(f"v_cvt_pk_bf16_f32 v{P}, v{S}, v{S+1}")
        o.append(f"v_cvt_pk_bf16_f32 v{P+1}, v{S+2}, v{S+3}")
        for i in range(4, 8): o.append(f"v_mul_f32 v{AO+i}, v{AL}, v{AO+i}")
        o.append(f"v_mov_b32_dpp v{P+2}, v{P} row_ror:8 {DPP}")
        o.append(f"v_mov_b32_dpp v{P+3}, v{P+1} row_ror:8 {DPP}")
        o.append(f"v_add_f32 v14, v{S}, v{S+1}")
        o.append(f"v_add_f32 v15, v{S+2}, v{S+3}")
        o.append("v_add_f32 v14, v14, v15")
        o.append(f"v_fma_f32 v{LS}, v{LS}, v{AL}, v14")
        return o
    def pv():
        for n in range(2):
            a(f"v_mfma_f32_16x16x32_bf16 v[{AO+4*n}:{AO+4*n+3}], v[{VF+4*n}:{VF+4*n+3}], v[{P}:{P+3}], v[{AO+4*n}:{AO+4*n+3}]")
    def arrive():
        Ln = a.label("L_noarr")
        a("s_cmp_lg_u32 s3, 0")
        a(f"s_cbranch_scc1 {Ln}")
        a("s_mov_b64 exec, 0xffff")
        a(f"buffer_atomic_add v{ONE}, v142, s[48:51], s46 offen sc1")
        a("s_mov_b64 exec, -1")
        a(f"{Ln}:")
    a("s_add_u32 s10, s10, 2")
    a("s_mov_b32 s11, 0")
    a("s_branch L_c_k")
    a("L_c_fast:")
    slot_base(5, "s99")
    a("s_add_u32 s99, s99, 1")
    slot_base(4, "s99")
    v_addr()
    v_reads()
    k_reads()
    sm = softmax_list(); i = sm.index("MARK")
    emit(sm[:i])
    a("s_waitcnt lgkmcnt(0)")
    progress("s99")
    rest = sm[i + 1:]; q = qk_list()
    pos = {0: 1, 1: 0, 2: 1, 4: 0, 5: 2, 9: 1, 12: 1, 16: 1, 20: 1}
    for j, x in enumerate(rest):
        for _ in range(pos.get(j, 0)): a(q.pop(0))
        a(x)
    assert not q
    pv()
    a("L_c_top:")
    a("s_add_u32 s11, s11, 1")
    a("s_add_u32 s10, s10, 4")
    a("s_cmp_ge_u32 s11, s97")
    a("s_cbranch_scc1 L_c_slow")
    a("s_cmp_ge_u32 s96, s10")
    a("s_cbranch_scc1 L_c_fast")
    refresh()
    a("s_cmp_ge_u32 s96, s10")
    a("s_cbranch_scc1 L_c_fast")
    a("L_c_slow:")
    if stamps or probe or leak: stamp(8)
    slot_base(5, "s99")
    v_addr()
    emit([x for x in softmax_list() if x != "MARK"])
    a(f"v_mov_b32 v{RL}, v{LS}")
    emit(row_list("v_add_f32", RL, (8,)) + cross_list("v_add_f32", RL, 15))
    a(f"v_log_f32 v{LB}, v{RL}")
    a(f"v_rcp_f32 v{RL}, v{RL}")
    a("s_sub_u32 s6, s10, 2")
    a(f"v_add_f32 v{LB}, v{LB}, v{M2}")
    a(f"v_lshrrev_b32 v{LB}, v{A_SH}, v{LB}")
    if stamps or probe or leak: stamp(9)
    need("s6")
    v_reads()
    a("s_add_u32 s99, s99, 1")
    a("s_cmp_ge_u32 s11, s97")
    a("s_cbranch_scc1 L_c_last")
    a("s_waitcnt lgkmcnt(0)")
    pv()
    progress("s99")
    a("L_c_k:")
    need("s10")
    slot_base(4, "s99")
    k_reads()
    q = qk_list()
    for j in range(8):
        if not (stamps or probe or leak): a(f"s_waitcnt lgkmcnt({7-j})")
        elif j == 0: a("s_waitcnt lgkmcnt(0)")
        a(q[j])
    a("s_branch L_c_top")
    a("L_c_last:")
    if sig1 is not None and s1pos == "last": a(f"ds_add_u32 v{A1}, v{ONE} offset:{PCNT}")
    a("s_waitcnt lgkmcnt(0)")
    pv()
    progress("s99")
    for k in range(4): a(f"v_mov_b32_dpp v{AO+k}, v{AO+4+k} row_ror:8 row_mask:0xf bank_mask:0xc")
    for k in range(4):
        a(f"v_mul_f32 v{AO+k}, v{RL}, v{AO+k}")
    apply_tag(AO, [TO, TO + 1, TO + 2, LB])
    for k in range(4): a(f"ds_bpermute_b32 v{AO+k}, v{A_PERM}, v{AO+k}")
    a("s_waitcnt lgkmcnt(0)")
    a(f"buffer_store_dwordx4 v[{AO}:{AO+3}], v{A_OP}, s[48:51], s44 offen sc1")
    if sig1 is not None and s1pos == "store": a(f"ds_add_u32 v{A1}, v{ONE} offset:{PCNT}")
    stamp(10)
    PD, WF, BF, WA = 64, 32, 96, 88
    a("s_lshl_b32 s99, s99, 2")
    a("s_add_u32 s22, s99, s3")
    a("s_add_u32 s22, s22, 8")
    a("s_add_u32 s23, s22, 4")
    for st in range(2):
        a(f"s_sub_u32 s4, s{22+st}, 1")
        a("s_and_b32 s4, s4, 31")
        a("s_lshl_b32 s4, s4, 12")
        for u in range(4):
            a(f"v_xor_b32 v14, {32*u}, v{TA}")
            a(f"v_add_u32 v{WA+4*st+u}, s4, v14")
    def wo_reads(st):
        for u in range(4):
            for t in range(2):
                d = WF + 8 * u + 4 * st + 2 * t
                a(f"ds_read_b64_tr_b16 v[{d}:{d+1}], v{WA+4*st+u} offset:{t*2048}")
    stamp(11)
    assert gate >= 15 - (win // 4 - 1)
    a(f"s_add_u32 s10, s99, {gate}")
    need("s10", count=False)
    stamp(14)
    def o_loads():
        for i in range(4):
            a(f"buffer_load_dwordx4 v[{PD+4*i}:{PD+4*i+3}], v{A_G}, s[48:51], s{16+i} offen sc1")
    if sig1 is not None:
        a(f"ds_read_b32 v14, v1 offset:{GO}")
        a("s_waitcnt lgkmcnt(0)")
        a("v_readfirstlane_b32 s4, v14")
        a("s_cmp_eq_u32 s4, 0")
        a("s_cbranch_scc1 L_o_notyet")
    o_loads()
    need("s22", count=False)
    wo_reads(0)
    need("s23", count=False)
    wo_reads(1)
    a(f"s_mov_b32 s60, {spin_limit}")
    if sigpos != "chk":
        a(f"s_waitcnt vmcnt({0 if sigpos == 'arr' else 3})")
        a(f"ds_add_u32 v{A1}, v{ONE} offset:{GCNT}")
    a("L_o_chk:")
    fill = tag_list(range(PD, PD + 16, 4), 12, n=3)
    a("s_waitcnt vmcnt(2)")
    a(f"v_perm_b32 v16, v{PD+7}, v{PD+3}, s20")
    a("s_waitcnt vmcnt(0)")
    chain = [f"v_perm_b32 v17, v{PD+15}, v{PD+11}, s20", "v_perm_b32 v16, v17, v16, s21",
             f"v_mov_b32_dpp v17, v16 quad_perm:[1,0,3,2] {DPP}", f"v_perm_b32 v16, v17, v16, v{SEL1}",
             f"v_mov_b32_dpp v17, v16 quad_perm:[2,3,0,1] {DPP}", f"v_perm_b32 v18, v17, v16, v{SEL2}",
             f"v_max_f32_dpp v16, v18, v18 row_ror:1 {DPP}"] + row_list("v_max_f32", 16, (2, 4, 8)) + cross_list("v_max_f32", 16, 17)
    fill += ["s_nop 0", f"v_or_b32_dpp v12, v12, v12 quad_perm:[1,0,3,2] {DPP}", "s_nop 0", f"v_or_b32_dpp v12, v12, v12 quad_perm:[2,3,0,1] {DPP}"]
    emit(interleave(chain, fill, {1: 2, 3: 2, 5: 2, 6: 2, 7: 2, 8: 2, 10: 2, 13: 2}))
    a("v_cmp_ne_u32 vcc, 0, v12")
    a("v_sub_f32 v18, v18, v16")
    a("v_exp_f32 v18, v18")
    a("s_cbranch_vccnz L_o_again")
    a("L_o_done:")
    if sig2 and sigpos == "chk": a(f"ds_add_u32 v{A1}, v{ONE} offset:{GCNT}")
    stamp(12)
    fm = [f"v_mul_f32_dpp v{20+k}, v18, v{PD+k} quad_perm:[0,0,0,0] {DPP}" for k in range(4)]
    for i in range(1, 4):
        fm += [f"v_fmac_f32_dpp v{20+k}, v18, v{PD+4*i+k} quad_perm:[{i},{i},{i},{i}] {DPP}" for k in range(4)]
    wsum = [f"v_add_f32_dpp v16, v18, v18 row_ror:1 {DPP}"] + row_list("v_add_f32", 16, (2, 4, 8)) + cross_list("v_add_f32", 16, 17) + ["v_rcp_f32 v16, v16"]
    red = ["v_permlane32_swap_b32 v20, v22", "v_permlane32_swap_b32 v21, v23", "v_add_f32 v20, v20, v22", "v_add_f32 v21, v21, v23",
           "v_permlane16_swap_b32 v20, v21", "v_add_f32 v20, v20, v21"] + row_list("v_add_f32", 20, (4, 8))
    emit(interleave(fm + red, wsum, {3: 1, 7: 1, 11: 1, 15: 2, 19: 2, 21: 1, 22: 2}))
    a("v_mul_f32 v20, v20, v16")
    a("v_cvt_pk_bf16_f32 v20, v20, v20")
    a(f"ds_write_b16 v{A_OL}, v20 offset:{OL}")
    a(f"ds_add_u32 v{A1}, v{ONE} offset:{OCNT}")
    a(f"s_mov_b32 s60, {spin_limit}")
    a("L_x:")
    a(f"ds_read_b32 v12, v1 offset:{OCNT}")
    for u in range(4):
        for st in range(2):
            d = BF + 8 * u + 4 * st
            a(f"ds_read_b128 v[{d}:{d+3}], v{A_M+u} offset:{64*st}")
    a("s_sub_u32 s60, s60, 1")
    a("s_waitcnt lgkmcnt(0)" if (stamps or probe or leak) else "s_waitcnt lgkmcnt(8)")
    a("v_readfirstlane_b32 s61, v12")
    a("s_cselect_b32 s61, -1, s61")
    a("s_cmp_lt_u32 s61, 4")
    a("s_cbranch_scc1 L_x")
    for u in range(4):
        for st in range(2):
            if not (stamps or probe or leak): a(f"s_waitcnt lgkmcnt({7-2*u-st})")
            c = "0" if u + st == 0 else f"v[{ACC}:{ACC+3}]"
            a(f"v_mfma_f32_16x16x32_bf16 v[{ACC}:{ACC+3}], v[{WF+8*u+4*st}:{WF+8*u+4*st+3}], v[{BF+8*u+4*st}:{BF+8*u+4*st+3}], {c}")
    setexec(0x000f000f, 0x000f000f)
    apply_tag(ACC)
    a(f"buffer_store_dwordx4 v[{ACC}:{ACC+3}], v{A_SP}, s[48:51], s45 offen sc1")
    stamp(13)
    dump_stamps(12, 13)
    a("s_endpgm")
    if sig1 is not None:
        a("L_o_notyet:")
        need("s22", count=False)
        wo_reads(0)
        need("s23", count=False)
        wo_reads(1)
        lds_spin(GO, 1, 12, 0)
        o_loads()
        a(f"s_mov_b32 s60, {spin_limit}")
        a("s_branch L_o_chk")
    a("L_o_again:")
    a("s_sub_u32 s60, s60, 1")
    a("s_cbranch_scc1 L_o_done")
    if osleep: a(f"s_sleep {osleep}")
    a("s_mov_b64 exec, vcc")
    o_loads()
    a("s_mov_b64 exec, -1")
    a("s_branch L_o_chk")

    role[0] = "H"
    a("L_helper:")
    srd(56, 34, 2048)
    a("v_mov_b32 v12, 1")
    a("s_waitcnt lgkmcnt(0)")
    a("s_mov_b64 exec, 1")
    a(f"ds_add_u32 v1, v12 offset:{QCNT}")
    a("s_mov_b64 exec, -1")
    make_tag()
    a("s_lshr_b32 s4, s2, 4")
    a("s_mul_i32 s4, s4, 896")
    a(f"s_add_u32 s8, s4, {GP}")
    a("s_add_u32 s9, s8, 0x10000")
    a("v_add_u32 v14, -2, v5")
    a("v_cmp_gt_u32 vcc, 14, v5")
    a("v_cndmask_b32 v14, v14, v5, vcc")
    a("v_lshlrev_b32 v15, 4, v14")
    a("v_lshl_add_u32 v15, v4, 14, v15")
    a("v_lshlrev_b32 v14, 3, v14")
    a("v_lshl_add_u32 v14, v4, 1, v14")
    a("v_add_u32 v14, v14, v1")
    leak_flag()
    if leak:
        for x in leak:
            if x[0] == "H" and x[1]: a(f"s_mov_b32 s{64+2*x[1]}, 0")
    if hstart: need(hstart, sleep=8)
    else: lds_spin(QCNT, 7 if early_t else 5, 12, 8)
    stamp(1)
    L = a.label("L_h"); D = a.label("L_hd")
    a(f"s_mov_b32 s60, {spin_limit}")
    a(f"{L}:")
    for w in range(0 if "h" in abl else 4):
        a(f"buffer_load_dwordx4 v[{32+8*w}:{35+8*w}], v15, s[48:51], s8 offen offset:{224*w} sc1")
        a(f"buffer_load_dwordx4 v[{36+8*w}:{39+8*w}], v15, s[48:51], s9 offen offset:{224*w} sc1")
    a("s_waitcnt vmcnt(0)")
    tag_check(range(32, 64, 4), 12, quad=False)
    if "h" in abl: a("s_mov_b64 vcc, 0")
    retry_masked(L, D, 16)
    stamp(2)
    for w in range(4):
        g = 32 + 8 * w; u = g + 4
        treduce4(g)
        treduce4(u)
        bf16r(g, g)
        bf16r(u, u)
        silu_bf16(g, g, 12)
        a(f"v_mul_f32 v{g}, v{g}, v{u}")
        a(f"v_cvt_pk_bf16_f32 v{g}, v{g}, v{g}")
        a(f"ds_write_b16 v14, v{g} offset:{HL+112*w}")
    a("s_and_b32 s4, s2, 7")
    a("s_lshr_b32 s5, s2, 6")
    a("s_lshl_b32 s5, s5, 3")
    a("s_or_b32 s4, s4, s5")
    a("s_lshl_b32 s4, s4, 1")
    a("s_bfe_u32 s5, s2, 0x10005")
    a("s_add_u32 s4, s4, s5")
    if sig2:
        a("s_lshl_b32 s5, s4, 10")
        a(f"s_add_u32 s5, s5, {AC2}")
        a("s_add_u32 s52, s38, s5")
        a("s_addc_u32 s53, s39, 0")
        a("s_lshl_b32 s47, s13, 2")
        a("s_add_u32 s47, s47, 64")
    a(f"s_lshl_b32 s5, s4, {6+sw}")
    for i in range(8 if fatom else 4): a(f"s_add_u32 s{20+i}, s5, {SP + i*RSS}")
    a("s_lshl_b32 s5, s4, 6")
    a(f"s_add_u32 s45, s5, {FP}")
    a("s_lshr_b32 s46, s4, 2")
    a("s_lshl_b32 s46, s46, 7")
    a("s_and_b32 s5, s4, 3")
    a("s_lshl_b32 s5, s5, 3")
    a("s_add_u32 s46, s46, s5")
    a("v_lshrrev_b32 v12, 2, v0")
    a("v_and_b32 v13, 3, v0")
    a(f"v_mul_u32_u24 v19, {RS}, v12")
    if fatom:
        a(f"v_mul_u32_u24 v18, {8*RSS}, v2")
        a("v_lshl_add_u32 v18, v3, 3, v18")
        a("v_bfe_i32 v23, v0, 1, 1")
        a(f"v_and_b32 v23, {TAGX}, v23")
        a("v_xor_b32 v23, s13, v23")
        a("v_and_b32 v16, 1, v0")
        a("v_lshlrev_b32 v16, 4, v16")
        a("v_lshrrev_b32 v16, v16, v23")
        a("v_lshrrev_b32 v17, 8, v16")
        a("v_lshrrev_b32 v23, 5, v0")
        a("v_and_b32 v100, 1, v0")
        a("v_lshl_add_u32 v23, v100, 1, v23")
        a("v_bfe_u32 v100, v0, 1, 2")
        a("v_lshlrev_b32 v101, 6, v23")
        a("v_lshl_add_u32 v101, v100, 2, v101")
        a("v_lshlrev_b32 v23, 1, v23")
        a("v_lshl_add_u32 v23, v100, 5, v23")
    else:
        a(f"v_mul_u32_u24 v18, {4*RSS}, v12")
        a("v_lshl_add_u32 v18, v13, 4, v18")
    a("v_lshl_add_u32 v19, v13, 4, v19")
    a("v_lshlrev_b32 v20, 5, v13")
    a("v_lshl_add_u32 v20, v4, 1, v20")
    if fatom: a("v_mov_b32 v20, v23")
    a("buffer_load_ushort v22, v20, s[40:43], s46 offen")
    a("s_lshr_b32 s4, s2, 4")
    a(f"s_mul_i32 s4, s4, {RS}")
    a("s_and_b32 s5, s2, 15")
    a("s_lshl_b32 s5, s5, 8")
    a("s_add_u32 s4, s4, s5")
    a(f"s_add_u32 s15, s4, {FP}")
    a("v_lshlrev_b32 v21, 4, v5")
    a("v_lshl_add_u32 v21, v4, 6, v21")
    tr_addr(TA)
    for u in range(4): a(f"v_xor_b32 v{28+u}, {32*u}, v{TA}")
    a("v_lshl_add_u32 v14, v4, 4, v1")
    a("v_and_b32 v12, 1, v0")
    a("v_cmp_eq_u32 s[8:9], 1, v12")
    a("v_and_b32 v12, 2, v0")
    a("v_cmp_eq_u32 s[6:7], 2, v12")
    CA = 64; HF = 48
    for k in range(16): a(f"v_mov_b32 v{CA+k}, 0")
    stamp(3)
    L = a.label("L_nt"); D = a.label("L_ntd")
    a(f"s_mov_b32 s60, {spin_limit}")
    a(f"{L}:")
    refresh()
    a(f"s_cmp_lg_u32 s97, {BIG}")
    a(f"s_cbranch_scc1 {D}")
    a("s_sleep 4")
    a("s_sub_u32 s60, s60, 1")
    a(f"s_cbranch_scc0 {L}")
    a(f"{D}:")
    light_test()
    a("s_cselect_b32 s10, 2, 6")
    a("s_add_u32 s10, s10, s97")
    a("s_lshl_b32 s10, s10, 2")
    a("s_mov_b32 s11, 0")
    need("s10", sleep=2)
    a("s_setprio 2")
    a("L_h_step:")
    a("s_and_b32 s4, s10, 31")
    a("s_lshl_b32 s4, s4, 12")
    for u in range(4): a(f"v_add_u32 v{24+u}, s4, v{28+u}")
    a(f"ds_read_b128 v[{HF}:{HF+3}], v14 offset:{HL}")
    a("v_add_u32 v14, 64, v14")
    a("s_add_u32 s10, s10, 1")
    need("s10")
    stamp(4)
    for u in range(4):
        for t in range(2):
            d = 32 + 4 * u + 2 * t
            a(f"ds_read_b64_tr_b16 v[{d}:{d+1}], v{24+u} offset:{t*2048}")
    for u in range(4):
        if not (stamps or probe or leak): a(f"s_waitcnt lgkmcnt({6-2*u})")
        elif u == 0: a("s_waitcnt lgkmcnt(0)")
        a(f"v_mfma_f32_16x16x32_bf16 v[{CA+4*u}:{CA+4*u+3}], v[{32+4*u}:{35+4*u}], v[{HF}:{HF+3}], v[{CA+4*u}:{CA+4*u+3}]")
    a("s_add_u32 s11, s11, 1")
    a("s_cmp_lt_u32 s11, 7")
    a("s_cbranch_scc1 L_h_step")
    for k in range(4): a(f"v_cndmask_b32 v{CA+k}, v{CA+k}, v{CA+4+k}, s[8:9]")
    for k in range(4): a(f"v_cndmask_b32 v{CA+8+k}, v{CA+8+k}, v{CA+12+k}, s[8:9]")
    for k in range(4): a(f"v_cndmask_b32 v{CA+k}, v{CA+k}, v{CA+8+k}, s[6:7]")
    apply_tag(CA)
    setexec(0x000f000f, 0x000f000f)
    a(f"buffer_store_dwordx4 v[{CA}:{CA+3}], v21, s[48:51], s15 offen sc1")
    a("s_mov_b64 exec, -1")
    a("s_setprio 0")
    stamp(5)
    a("s_and_b32 s4, s2, 0x18")
    a("s_cbranch_scc1 L_hend")
    def f_math():
        treduce4(96)
        emit(row_list("v_add_f32", 96, (4, 8)))
        bf16r(96, 96)
        silu_bf16(96, 96, 12)
        a("v_lshlrev_b32 v22, 16, v22")
    if flate:
        lds_spin(GCNT, 4, 12, 1)
        a("buffer_load_dwordx4 v[96:99], v19, s[48:51], s45 offen sc1")
    else:
        a("s_add_u32 s10, s10, 8")
        need("s10", sleep=1)
        L = a.label("L_f"); D = a.label("L_fd")
        a(f"s_mov_b32 s60, {spin_limit}")
        a(f"{L}:")
        a("buffer_load_dwordx4 v[96:99], v19, s[48:51], s45 offen sc1")
        a("s_waitcnt vmcnt(0)")
        tag_check([96], 12)
        retry_masked(L, D, 2)
        stamp(12)
        f_math()
    if sig2:
        a(f"s_mov_b32 s60, {spin_limit}")
        a("L_h_watch:")
        for k in range(4): a(f"s_load_dword s{28+k}, s[52:53], {256*k} glc")
        a("s_sub_u32 s60, s60, 1")
        a("s_cbranch_scc1 L_h_go")
        a("s_waitcnt lgkmcnt(0)")
        a("s_add_u32 s28, s28, s29")
        a("s_add_u32 s30, s30, s31")
        a("s_add_u32 s28, s28, s30")
        a("s_cmp_lg_u32 s28, s47")
        a("s_cbranch_scc1 L_h_watch")
        a("L_h_go:")
    else:
        lds_spin(OCNT, 4, 12, 1)
    def s_loads():
        for i in range(4):
            a(f"buffer_load_dwordx4 v[{80+4*i}:{83+4*i}], v18, s[48:51], s{20+i} offen sc1")
    s_loads()
    stamp(6)
    if flate:
        L = a.label("L_f"); D = a.label("L_fd")
        a(f"s_mov_b32 s60, {spin_limit}")
        a("s_waitcnt vmcnt(4)")
        a("s_branch L_f_chk")
        a(f"{L}:")
        a("buffer_load_dwordx4 v[96:99], v19, s[48:51], s45 offen sc1")
        a("s_waitcnt vmcnt(0)")
        a("L_f_chk:")
        tag_check([96], 12)
        retry_masked(L, D, 0)
        f_math()
    a(f"s_mov_b32 s60, {spin_limit}")
    a("L_s_chk:")
    tl = tag_list([80, 84, 88, 92], 12)
    a("s_waitcnt vmcnt(3)")
    emit(tl[0:4])
    a("s_waitcnt vmcnt(2)")
    emit(tl[4:8])
    for k in range(4): a(f"v_add_f32 v{100+k}, v{80+k}, v{84+k}")
    a("s_waitcnt vmcnt(1)")
    emit(tl[8:12])
    for k in range(4): a(f"v_add_f32 v{100+k}, v{100+k}, v{88+k}")
    a("s_waitcnt vmcnt(0)")
    for k in range(4): a(f"v_add_f32 v{100+k}, v{100+k}, v{92+k}")
    red = ["v_permlane32_swap_b32 v100, v102", "v_permlane32_swap_b32 v101, v103", "v_add_f32 v100, v100, v102", "v_add_f32 v101, v101, v103",
           "v_permlane16_swap_b32 v100, v101", "v_add_f32 v100, v100, v101"] + row_list("v_add_f32", 100, (4, 8))
    a(tl[12])
    emit(interleave(red, tl[13:] + join_list(12), {3: 2, 5: 2, 6: 1}))
    a("v_cmp_ne_u32 vcc, 0, v12")
    bf16r(100, 100)
    a("v_mul_f32 v100, v100, v96")
    a("s_cbranch_vccnz L_s_again")
    a("L_s_done:")
    stamp(13)
    bf16r(100, 100)
    a("v_add_f32 v100, v100, v22")
    a("v_cvt_pk_bf16_f32 v80, v100, v100")
    setexec(0x000f000f, 0x000f000f)
    if leak:
        a("s_cmp_lg_u32 s95, 0")
        a("s_cselect_b32 s58, 0, s58")
    a(f"buffer_store_short v80, v20, s[56:59], s46 offen{outsc}")
    stamp(14)
    a("s_cmp_eq_u32 s2, 0")
    a("s_cbranch_scc0 L_hend")
    a("s_mov_b64 exec, 1")
    a(f"s_mov_b32 s4, {EPOCH}")
    a(f"buffer_store_dword v{TG}, v0, s[48:51], s4 offen{outsc}")
    if leak:
        a("v_mov_b32 v12, 0x600df00d")
        a("buffer_store_dword v12, v0, s[48:51], s4 offen offset:4")
    a("L_hend:")
    dump_stamps(12, 13)
    if late is not None:
        a("s_mov_b64 exec, 0xff")
        a("s_lshl_b32 s4, s2, 7")
        a("s_add_u32 s4, s4, 0x800000")
        a(f"buffer_store_dwordx4 v[8:11], v6, s[48:51], s4 offen {late}")
    a("s_endpgm")

    a("L_s_again:")
    a("s_sub_u32 s60, s60, 1")
    a("s_cbranch_scc1 L_s_done")
    a("s_mov_b64 exec, vcc")
    s_loads()
    a("s_mov_b64 exec, -1")
    a("s_branch L_s_chk")

    role[0] = "T"
    a("L_ticket:")
    pool_id(11)
    if kmap in "DEFGH":
        if kmap == "F":
            a("s_lshr_b32 s9, s11, 1")
            a("s_lshl_b32 s12, s9, 4")
            a("s_lshl_b32 s9, s9, 22")
            a("s_mov_b32 s8, s11")
        else:
            a("s_lshl_b32 s12, s11, 4")
            a("s_lshl_b32 s9, s11, 21")
        a(f"s_add_u32 s12, s12, {mem*dyn + 2*lex}")
        a("s_or_b32 s9, s9, 1")
        if kmap == "H":
            a("s_and_b32 s8, s11, 3")
            a("s_and_b32 s9, s11, 12")
    elif kmap == "C":
        a(f"s_and_b32 s12, s11, {npool-1}")
        a("s_lshr_b32 s9, s2, 6")
        a(f"s_mul_i32 s4, s9, {rot}")
        a("s_add_u32 s12, s12, s4")
        a("s_lshl_b32 s12, s12, 13")
        a(f"s_add_u32 s12, s12, {64*dyn*8192 + 1}")
        a("s_lshl_b32 s9, s9, 23")
    else:
        a(f"s_mul_i32 s12, s11, {reg*8192}")
        a(f"s_add_u32 s12, s12, {mem*dyn*8192 + 1}")
    a(f"s_mul_i32 s11, s11, {cstride}")
    a(f"s_add_u32 s11, s11, {TCN}")
    a("s_add_u32 s56, s38, s11")
    a("s_addc_u32 s57, s39, 0")
    a(f"s_add_u32 s10, s3, {dyn - 6}")
    if lex:
        light_test()
        a(f"s_cselect_b32 s4, {lex}, 0")
        a("s_add_u32 s10, s10, s4")
    if early_t:
        a("s_waitcnt lgkmcnt(0)")
        a("s_add_u32 s13, s13, 0x01010101")
        a(f"s_xor_b32 s14, s13, {TAGX}")
        a("v_mov_b32 v12, 1")
        a("s_mov_b64 exec, 1")
        a(f"ds_add_u32 v1, v12 offset:{QCNT}")
        pool_member(6)
        a("s_add_u32 s6, s6, s3")
        a("s_cmp_lg_u32 s6, 6")
        a("s_cbranch_scc1 L_t_noinit")
        a("v_mov_b32 v20, 0")
        a("v_mov_b32 v21, s13")
        a("v_mov_b32 v22, s14")
        a("v_mov_b32 v23, s13")
        a("buffer_store_dwordx4 v[20:23], v0, s[48:51], s11 offen sc1")
        a("L_t_noinit:")
        a("s_mov_b64 exec, -1")
        a(f"s_sub_u32 s11, s10, {ahead}")
        a("s_max_i32 s11, s11, 0")
        light_test()
        a("s_cselect_b32 s4, 4, 14")
        need("s4", sleep=4, count=False)
        a(f"s_mov_b32 s60, {spin_limit}")
        a("L_t_rdy:")
        a("s_load_dwordx4 s[28:31], s[56:57], 0 glc")
        a("s_sub_u32 s60, s60, 1")
        a("s_cbranch_scc1 L_t_next")
        a("s_waitcnt lgkmcnt(0)")
        a("s_xor_b32 s29, s29, s13")
        a("s_xor_b32 s30, s30, s14")
        a("s_xor_b32 s31, s31, s13")
        a("s_or_b32 s29, s29, s30")
        a("s_or_b32 s29, s29, s31")
        a("s_cbranch_scc0 L_t_next")
        a("s_sleep 8")
        a("s_branch L_t_rdy")
    else:
        lds_spin(QCNT, 5, 12, 8)
    if touch:
        a("s_cmp_eq_u32 s3, 6")
        a("s_cselect_b64 s[40:41], s[32:33], s[24:25]")
        a("s_cselect_b32 s42, 7340032, s43")
        a("s_cselect_b32 s42, s42, 8388608")
        a("s_cselect_b64 exec, 0x7f, 3")
        rr_cc(6, 7)
        a("s_lshl_b32 s6, s6, 17")
        a("s_lshr_b32 s7, s2, 4")
        a(f"s_mul_i32 s7, s7, {224*2048}")
        a("s_cmp_eq_u32 s3, 6")
        a("s_cselect_b32 s6, s7, s6")
        a("v_lshlrev_b32 v14, 16, v0")
        a("buffer_load_dword v17, v14, s[40:43], s6 offen nt")
        a("s_mov_b64 exec, -1")
    a("L_t_next:")
    a(f"s_sub_u32 s11, s10, {ahead - 1}")
    lds_spin(STARTED, "s11", 12, tsleep)
    a("s_mov_b32 s15, 1")
    a("s_atomic_add s15, s[56:57], 0 glc")
    a("s_lshl_b32 s4, s10, 2")
    a("v_add_u32 v14, s4, v1")
    a("s_waitcnt lgkmcnt(0)")
    if not empt: a(f"s_min_u32 s15, s15, {nshared-1}")
    if kmap in "DEFGH":
        if kmap == "H":
            a("s_add_u32 s5, s15, s8")
            a("s_and_b32 s5, s5, 3")
            a("s_or_b32 s5, s5, s9")
            a("s_and_b32 s4, s15, -4")
            a("s_add_u32 s4, s4, s8")
            a(f"s_add_u32 s4, s4, {mem*dyn}")
            a("s_lshl4_add_u32 s4, s5, s4")
        else:
            a("s_add_u32 s4, s15, s12")
        a("s_and_b32 s4, s4, 255")
        if kmap == "F":
            a("s_lshr_b32 s5, s4, 7")
            a("s_xor_b32 s5, s5, s8")
            a("s_and_b32 s5, s5, 1")
            a("s_lshl_b32 s4, s4, 1")
            a("s_add_u32 s4, s4, s5")
        a("s_lshl_b32 s4, s4, 13")
        if kmap == "H":
            a("s_lshl_b32 s5, s5, 21")
            a("s_add_u32 s4, s4, s5")
            a("s_or_b32 s4, s4, 1")
        else:
            a("s_add_u32 s4, s4, s9")
    else:
        a(f"s_lshl_b32 s4, s15, {13 + (lgp if kmap == 'C' else 0)}")
        a("s_add_u32 s4, s4, s12")
    if kmap == "C":
        a("s_and_b32 s4, s4, 0x7fffff")
        a("s_add_u32 s4, s4, s9")
    if ztab:
        tab = sum(g << (4 * i) for i, g in enumerate(ztab))
        a(f"s_sub_u32 s5, s15, {zone}")
        a("s_and_b32 s5, s5, 0x1c")
        a(f"s_lshr_b32 s5, {tab}, s5")
        a("s_and_b32 s5, s5, 15")
        a("s_lshl_b32 s5, s5, 4")
        a("s_or_b32 s4, s4, s5")
    if empt:
        a(f"s_cmp_lt_u32 s15, {nshared}")
        a("s_cselect_b32 s4, s4, 0")
    a(f"s_add_u32 s10, s10, {ntw}")
    a(f"s_cmp_lt_u32 s15, {zone}")
    a("s_cselect_b32 s5, 0, 2")
    a("v_mov_b32 v15, s4")
    a("v_or_b32 v15, s5, v15")
    a(f"ds_write_b32 v14, v15 offset:{TQ}")
    a("s_cbranch_scc1 L_t_next")
    if sig1 is not None or sig2:
        L = a.label("L_nt"); D = a.label("L_ntd")
        a(f"s_mov_b32 s60, {spin_limit}")
        a(f"{L}:")
        refresh()
        a(f"s_cmp_lg_u32 s97, {BIG}")
        a(f"s_cbranch_scc1 {D}")
        a("s_sleep 2")
        a("s_sub_u32 s60, s60, 1")
        a(f"s_cbranch_scc0 {L}")
        a(f"{D}:")
        light_test()
        a("s_cselect_b32 s10, 2, 6")
        a("s_add_u32 s10, s10, s97")
        a("s_lshl_b32 s10, s10, 2")
        a("s_cmp_eq_u32 s3, 6")
        a("s_cbranch_scc1 L_t_zero")
    if rk:
        pool_id(6)
        a("s_lshr_b32 s4, s6, 2")
        a("s_lshl_b32 s7, s4, 14")
        if not rkgrp:
            a("s_and_b32 s5, s6, 3")
            a("s_lshl_b32 s8, s5, 8")
            a("s_add_u32 s7, s7, s8")
        a(f"s_add_u32 s7, s7, {AC1}")
        a("s_add_u32 s56, s38, s7")
        a("s_addc_u32 s57, s39, 0")
        a("s_mov_b32 s15, 1")
        a(f"s_add_u32 s11, s10, {rkat & 0xffffffff}")
        need("s11", sleep=1)
        a("s_atomic_add s15, s[56:57], 0 glc")
        tab = sum(g << (2 * i) for i, g in enumerate(rk))
        a(f"s_mov_b32 s6, {tab}")
        a("s_waitcnt lgkmcnt(0)")
        if rkgrp: a("s_lshr_b32 s15, s15, 2")
        a("s_lshl_b32 s15, s15, 1")
        a("s_lshr_b32 s6, s6, s15")
        a("s_and_b32 s6, s6, 3")
        a("v_mov_b32 v15, s6")
        a(f"ds_write_b32 v1, v15 offset:{GATE}")
    if sig1 is not None:
        pool_id(6)
        a("s_lshr_b32 s4, s6, 2")
        a("s_and_b32 s5, s6, 3")
        a("s_lshl_b32 s7, s4, 14")
        a("s_lshl_b32 s8, s5, 8")
        a("s_add_u32 s7, s7, s8")
        a(f"s_add_u32 s7, s7, {AC1}")
        a("s_add_u32 s56, s38, s7")
        a("s_addc_u32 s57, s39, 0")
        a("s_mov_b32 s15, 1")
        a("s_sub_u32 s11, s10, 2")
        need("s11", sleep=1)
        lds_spin(PCNT, sig1, 12, 0)
        for i in range(16): a(f"s_atomic_add s15, s[56:57], {1024*i}")
    if sig1 is not None or sig2:
        a("s_endpgm")
        a("L_t_zero:")
        rr_cc(6, 7)
    if sig1 is not None:
        a("s_lshl_b32 s5, s6, 10")
        a(f"s_add_u32 s5, s5, {AC1}")
        a("s_add_u32 s56, s38, s5")
        a("s_addc_u32 s57, s39, 0")
        a("v_mov_b32 v15, 1")
        a(f"s_add_u32 s11, s10, {s1from}")
        need("s11", sleep=1)
        L = a.label("L_w"); D = a.label("L_wd")
        a(f"s_mov_b32 s60, {spin_limit}")
        a(f"{L}:")
        for k in range(4): a(f"s_load_dword s{28+k}, s[56:57], {256*k} glc")
        a("s_waitcnt lgkmcnt(0)")
        a("s_add_u32 s28, s28, s29")
        a("s_add_u32 s30, s30, s31")
        a("s_add_u32 s28, s28, s30")
        a("s_cmp_eq_u32 s28, 64")
        a(f"s_cbranch_scc1 {D}")
        a("s_sub_u32 s60, s60, 1")
        a(f"s_cbranch_scc0 {L}")
        a(f"{D}:")
        a(f"ds_write_b32 v1, v15 offset:{GO}")
    if sig2:
        a("s_lshl_b32 s7, s7, 14")
        a("s_lshr_b32 s5, s2, 6")
        a("s_lshl_b32 s5, s5, 8")
        a("s_add_u32 s7, s7, s5")
        a(f"s_add_u32 s7, s7, {AC2}")
        a("v_mov_b32 v15, 1")
        a("v_lshlrev_b32 v14, 10, v0")
        a("s_add_u32 s10, s10, 15")
        need("s10", sleep=1)
        lds_spin(OCNT if sig2late else GCNT, gneed, 12, 0)
        a("s_mov_b64 exec, 0xffff")
        a("buffer_atomic_add v15, v14, s[48:51], s7 offen sc1")
    a("L_end:")
    a("s_endpgm")
    a("L_codeend:")
    name = NAME + "_kernel"
    hdr = open("cdna_kernels/" + NAME + ".s.ref").read().split("; Override launch")[0]
    txt = hdr + header([f"@launch grid=(256,1,1) block=({64*(6+ntw)},1,1) lds={LDS_BYTES}"]) + kernel_begin(name) + a.text() + rodata() + \
        kernel_desc(name, 152, 102, extra="  .amdhsa_float_denorm_mode_32 3\n")
    return txt

BASE = dict(gate=13, sig2=True, dyn=11, lex=4, empt=14, flate=True, qstart=36, qlight=28, hstart=56, grow=(8, 32))
if __name__ == "__main__":
    V = {
        "k21": {},
        "k21d12": dict(dyn=12),
        "k21Ay": dict(abl="y", dyn=12),
        "k21AP": dict(abl="pP"),
    }
    for k, v in V.items():
        v = dict(BASE, **v)
        open(k + ".s", "w").write(gen(**v))
        open(k + "_st.s", "w").write(gen(stamps=True, **v))
        open(k + "_lt.s", "w").write(gen(lite=True, **v))
```

```python
import sys
from asmlib import *

QP, GP, CNT, OCN, EPOCH, SP, FP, OP, STAMP = 0, 0x10000, 0x30000, 0x34000, 0x3F000, 0x40000, 0xD0000, 0x100000, 0x400000
MISC = 0x20000
TQ, STARTED, GATE, GCNT, PCNT = 0x1100, 0x21C, 0x220, 0x224, 0x228
POST, PROG, QCNT, OCNT, GO, ZER, XN, HL, OL, QL = 0, 0x200, 0x210, 0x214, 0x218, 0x240, 0x300, 0x500, 0x700, 0x800
QROW = 272
SCR = 0x1700
SB = 0x1B00
LDS_BYTES = MISC + 0x3B00
TCN, AC1, AC2 = 0x340000, 0x390000, 0x3A0000
LOG2E = 0x3fb8aa3b
SCALE = 0x3db504f3
DPP = "row_mask:0xf bank_mask:0xf"
BIG = -1
TAGX = 0x5ac3a569

DOC = """
;
;
; Hand-offs between workgroups go through d_ws with write-through stores (sc1) and sc1 loads:
;   f partials [16][1024], all fp32. Each 16-byte granule carries this launch's tag in the low byte of its words and
;   is only accepted together with the neighbours stored by the same instruction. The tag is the word found at
;   The counters in d_ws (tickets, arrival hints) are reset inside the launch before the q hand-off that precedes their use.
"""

def interleave(chain, fill, gaps):
    out = []; fill = list(fill)
    for i, x in enumerate(chain):
        out.append(x)
        for _ in range(gaps.get(i, 0)):
            if fill: out.append(fill.pop(0))
    return out + fill

def gen(nt="nt", stamps=False, spin_limit=2000000, win=24, dyn=10, npool=4, outsc="", gate=10, skew=128, vtick=False,
        fsleep=0, osleep=1, qsleep=4, probe=None, cgate=False, early=True, ahead=2, ntw=2, cstride=256, late=None, gtab=None, ztab=None, wtab=None, spw=False, opw=False, fatom=False, leak=None, fine=False, wins=None, csleep=0, pace=0, pnop=0, cpf=True, sig1=None, sig2=False, touch=False, sig2late=False, lite=False, half=False, dup2=False, kmap='E', rot=0, early_t=False, empt=0, spos=0, abl='', win1=None, n1=9, hstart=0, qstart=0, sigpos='chk', gneed=4, flate=False, qlight=None, lex=0, gumix=False, w2=False, rk=None, rk0=4, rkgrp=False, rkat=-5, grow=None, tsleep=1, shardrd=False, s1pos='last', s1from=9, two=False, prot=16, dmap=False, fw=None, stouch=None, ofirst=True, pfn=None, comments=False, otouch=None, ost='sc1', old_='sc1', sched=None, wide=None, cmap='', ush=28, gui=False):
    a = Asm()
    a.comments = comments
    sw = 1 if spw else 0
    ow = 1 if opw else 0
    RS = 4096 + skew
    RSS = (4096 << sw) + skew
    RSO = (4096 << ow) + skew
    NT = " " + nt if nt else ""
    role = ["-"]
    def stamp(k):
        if lite and (k == 0 or (role[0], k) == ("H", 14)): a(f"s_memrealtime s[{64+2*k}:{65+2*k}]")
        if stamps or (leak and (k == 0 or (role[0], k) in [x[:2] for x in leak])): a(f"s_memrealtime s[{64+2*k}:{65+2*k}]")
        if probe and (k == 0 or (role[0], k) == probe[:2]): a(f"s_memrealtime s[{64+2*min(k,1)}:{65+2*min(k,1)}]")
    def leak_out():
        if not leak: return
        mine = [(i, x) for i, x in enumerate(leak) if x[0] == role[0]]
        Ln = a.label("L_noleak")
        a("s_waitcnt lgkmcnt(0)")
        srd(48, 38, 268435456)
        a("s_mov_b64 exec, 1")
        a("s_cmp_eq_u32 s93, 0")
        a(f"s_cbranch_scc1 {Ln}")
        for i, x in mine:
            if len(x) > 2:
                Ls = a.label("L_lk")
                a(f"s_cmp_lg_u32 s3, {x[2]}")
                a(f"s_cbranch_scc1 {Ls}")
            a(f"s_and_b32 s4, s{64+2*x[1]}, 0x3fff")
            a("v_mov_b32 v12, s4")
            a("s_lshl_b32 s4, s2, 3")
            a(f"s_add_u32 s4, s4, {2*i + 0x500000}")
            a("buffer_store_short v12, v0, s[48:51], s4 offen")
            if len(x) > 2: a(f"{Ls}:")
        a(f"{Ln}:")
        if role[0] == "H":
            Ln = a.label("L_noleak")
            a("s_cmp_eq_u32 s95, 0")
            a(f"s_cbranch_scc1 {Ln}")
            srd(52, 34, 2048)
            a("s_lshl_b32 s4, s2, 3")
            a("s_add_u32 s5, s4, 0x500000")
            a("buffer_load_dwordx2 v[12:13], v0, s[48:51], s5 offen")
            a("s_waitcnt vmcnt(0)")
            a("buffer_store_dwordx2 v[12:13], v0, s[52:55], s4 offen")
            a(f"{Ln}:")
    def leak_flag():
        if not leak: return
        a(f"s_load_dword s95, s[38:39], {EPOCH+4}")
        a("s_load_dword s94, s[16:17], 0")
        a("s_waitcnt lgkmcnt(0)")
        a("s_cmp_lg_u32 s95, 0x600df00d")
        a("s_cselect_b32 s93, 1, 0")
        a("s_cselect_b32 s95, 0, 1")
        a("s_cmp_lg_u32 s94, 0x3c6e3d96")
        a("s_cselect_b32 s95, s95, 0")
        a("s_cmp_lg_u32 s94, 0x3a3abc25")
        a("s_cselect_b32 s95, s95, 0")
    def probe_pad():
        if not probe or probe[0] != role[0]: return
        def until(base, lim):
            L = a.label("L_pp")
            a(f"{L}:")
            a("s_sleep 4")
            a("s_memrealtime s[70:71]")
            a("s_waitcnt lgkmcnt(0)")
            a(f"s_sub_u32 s70, s70, {base}")
            a(f"s_cmp_lt_u32 s70, {lim}")
            a(f"s_cbranch_scc1 {L}")
        a("s_waitcnt lgkmcnt(0)")
        a("s_cmp_eq_u32 s67, -1")
        a("s_cselect_b32 s66, s64, s66")
        a("s_cselect_b32 s69, 1, 0")
        until("s64", 2200)
        a("s_not_b32 s72, s64")
        a("s_atomic_umax s72, s[36:37], 0")
        until("s64", 3200)
        a("s_load_dword s72, s[36:37], 0 glc")
        a("s_waitcnt lgkmcnt(0)")
        a("s_not_b32 s72, s72")
        a("s_sub_u32 s66, s66, s72")
        if len(probe) > 3:
            a("s_atomic_add s66, s[36:37], 128")
            until("s64", 4400)
            a("s_load_dword s66, s[36:37], 128 glc")
            a("s_waitcnt lgkmcnt(0)")
            a("s_lshr_b32 s66, s66, 8")
        if probe[2] < 0 and probe[1]:
            a("s_cmp_eq_u32 s69, 1")
            a("s_cbranch_scc1 L_end")
        a(f"s_mul_i32 s66, s66, {probe[2]}")
        a(f"s_add_u32 s68, s66, {6000 if probe[2] >= 0 else 20000}")
        until("s72", "s68")
    def dump_stamps(vt, va):
        probe_pad()
        leak_out()
        if not (stamps or (lite and role[0] == "H")): return
        a("s_waitcnt lgkmcnt(0)")
        a("s_mov_b64 exec, -1")
        a(f"v_mov_b32 v{vt}, 0")
        for k in range(16):
            a(f"v_writelane_b32 v{vt}, s{64+2*k}, {k}")
        a("s_lshl_b32 s4, s2, 3")
        a("s_add_u32 s4, s4, s3")
        a("s_lshl_b32 s4, s4, 6")
        a(f"s_add_u32 s4, s4, {STAMP}")
        a(f"v_lshlrev_b32 v{va}, 2, v0")
        a("s_mov_b64 exec, 0xffff")
        a(f"buffer_store_dword v{vt}, v{va}, s[48:51], s4 offen")
    def srd(d, p, n):
        a(f"s_mov_b64 s[{d}:{d+1}], s[{p}:{p+1}]")
        a(f"s_mov_b32 s{d+2}, {n}")
        a(f"s_mov_b32 s{d+3}, 0x20000")
    def setexec(lo, hi):
        a(f"s_mov_b32 exec_lo, {lo:#x}")
        a(f"s_mov_b32 exec_hi, {hi:#x}")
    def row_list(op, r, steps=(1, 2, 4, 8)):
        return [f"{op}_dpp v{r}, v{r}, v{r} row_ror:{k} {DPP}" for k in steps]
    def cross_list(op, r, t):
        return [f"v_mov_b32 v{t}, v{r}", f"v_permlane16_swap_b32 v{r}, v{t}", f"{op} v{r}, v{r}, v{t}",
                f"v_mov_b32 v{t}, v{r}", f"v_permlane32_swap_b32 v{r}, v{t}", f"{op} v{r}, v{r}, v{t}"]
    def emit(l):
        for x in l: a(x)
    def bf16r(d, s):
        a(f"v_cvt_pk_bf16_f32 v{d}, 0, v{s}")
    TG = 8
    def make_tag():
        a("s_add_u32 s13, s13, 0x01010101")
        a("s_movk_i32 s63, 0xff")
        a("v_bfe_i32 v12, v0, 0, 1")
        a(f"v_and_b32 v12, {TAGX}, v12")
        a(f"v_xor_b32 v{TG}, s13, v12")
        for k in range(1, 4): a(f"v_lshrrev_b32 v{TG+k}, {8*k}, v{TG}")
    def apply_tag(r, tags=None):
        for k in range(4): a(f"v_bfi_b32 v{r+k}, s63, v{tags[k] if tags else TG+k}, v{r+k}")
    def tag_list(grans, t, n=4):
        o = []
        for g in grans:
            for k in range(n):
                if not o: o.append(f"v_xor_b32 v{t}, v{g+k}, v{TG+k}")
                else: o.append(f"v_bitop3_b32 v{t}, v{t}, v{g+k}, v{TG+k} bitop3:0xf6")
        o.append(f"v_and_b32 v{t}, 0xff, v{t}")
        return o
    def join_list(t, quad=True):
        o = [f"v_or_b32_dpp v{t}, v{t}, v{t} quad_perm:[1,0,3,2] {DPP}"]
        if quad: o.append(f"v_or_b32_dpp v{t}, v{t}, v{t} quad_perm:[2,3,0,1] {DPP}")
        return o
    def tag_check(grans, t, quad=True):
        emit(tag_list(grans, t) + join_list(t, quad))
        a(f"v_cmp_ne_u32 vcc, 0, v{t}")
    def treduce4(r):
        a(f"v_permlane32_swap_b32 v{r}, v{r+2}")
        a(f"v_permlane32_swap_b32 v{r+1}, v{r+3}")
        a(f"v_add_f32 v{r}, v{r}, v{r+2}")
        a(f"v_add_f32 v{r+1}, v{r+1}, v{r+3}")
        a(f"v_permlane16_swap_b32 v{r}, v{r+1}")
        a(f"v_add_f32 v{r}, v{r}, v{r+1}")
    def retry_masked(L, D, sleep=1):
        a("s_and_b64 exec, exec, vcc")
        a(f"s_cbranch_execz {D}")
        if sleep: a(f"s_sleep {sleep}")
        a("s_sub_u32 s60, s60, 1")
        a(f"s_cbranch_scc0 {L}")
        a(f"{D}:")
        a("s_mov_b64 exec, -1")
    def silu_bf16(d, x, t):
        a(f"v_mul_f32 v{t}, 0xbfb8aa3b, v{x}")
        a(f"v_exp_f32 v{t}, v{t}")
        a(f"v_add_f32 v{t}, 1.0, v{t}")
        a(f"v_rcp_f32 v{t}, v{t}")
        a(f"v_mul_f32 v{t}, v{t}, v{x}")
        bf16r(d, t)
    def lds_spin(off, n, vt, sleep=1):
        L = a.label("L_spin")
        a(f"s_mov_b32 s60, {spin_limit}")
        if sleep:
            E = a.label("L_spe")
            a(f"s_branch {E}")
        a(f"{L}:")
        if sleep:
            a(f"s_sleep {sleep}")
            a(f"{E}:")
        a(f"ds_read_b32 v{vt}, v1 offset:{off}")
        a("s_sub_u32 s60, s60, 1")
        a("s_waitcnt lgkmcnt(0)")
        a(f"v_readfirstlane_b32 s61, v{vt}")
        a("s_cselect_b32 s61, -1, s61")
        a(f"s_cmp_lt_u32 s61, {n}")
        a(f"s_cbranch_scc1 {L}")
    def refresh():
        a(f"ds_read_b64 v[12:13], v1 offset:{POST}")
        a("s_waitcnt lgkmcnt(0)")
        a("v_readfirstlane_b32 s96, v12")
        a("v_readfirstlane_b32 s97, v13")
    def need(x, sleep=0, count=True):
        if role[0] == "C": sleep = csleep
        L = a.label("L_need"); D = a.label("L_got")
        a(f"s_cmp_ge_u32 s96, {x}")
        a(f"s_cbranch_scc1 {D}")
        a(f"s_mov_b32 s60, {spin_limit}")
        a(f"{L}:")
        if sleep: a(f"s_sleep {sleep}")
        a(f"ds_read_b64 v[12:13], v1 offset:{POST}")
        a("s_sub_u32 s60, s60, 1")
        a("s_waitcnt lgkmcnt(0)")
        a("v_readfirstlane_b32 s96, v12")
        if count: a("v_readfirstlane_b32 s97, v13")
        a("s_cselect_b32 s96, -1, s96")
        if count: a("s_cselect_b32 s97, 0, s97")
        a(f"s_cmp_lt_u32 s96, {x}")
        a(f"s_cbranch_scc1 {L}")
        a(f"{D}:")
    def light_test():
        a("s_and_b32 s4, s2, 63")
        a("s_cmp_ge_u32 s4, 56")
    def wq_col(d):
        if "q" in cmap:
            a(f"s_lshr_b32 s{d}, s2, 3")
            a("s_lshl_b32 s4, s2, 1")
            a("s_and_b32 s4, s4, 8")
            a(f"s_xor_b32 s{d}, s{d}, s4")
            a(f"s_xor_b32 s{d}, s{d}, 4")
            a(f"s_and_b32 s{d}, s{d}, 15")
            a("s_lshr_b32 s4, s2, 6")
            a(f"s_lshl4_add_u32 s{d}, s4, s{d}")
        else: a(f"s_lshr_b32 s{d}, s2, 2")
    def up_shift(d, c, unit):
        if "u" in cmap:
            a(f"s_mov_b32 s{d}, {ush * unit}")
            a(f"s_cmp_ge_u32 s{c}, {56 - ush}")
            a(f"s_cselect_b32 s{d}, {((ush - 56) * unit) & 0xffffffff}, s{d}")
        else: a(f"s_mov_b32 s{d}, 0")
    def gu_col(d):
        if "g" in cmap:
            a("s_lshr_b32 s4, s2, 6")
            a("s_bfe_u32 s5, s2, 0x10002")
            a("s_lshl1_add_u32 s4, s4, s5")
            a("s_mul_i32 s4, s4, 7")
            a("s_bfe_u32 s5, s2, 0x30003")
            a(f"s_add_u32 s{d}, s4, s5")
            return
        if gumix:
            a("s_lshr_b32 s4, s2, 6")
            a("s_and_b32 s5, s2, 60")
            a(f"s_add_u32 s{d}, s4, s5")
            return
        a("s_lshr_b32 s4, s2, 6")
        a("s_mul_i32 s4, s4, 56")
        a("s_and_b32 s5, s2, 63")
        a("s_add_u32 s4, s4, s5")
        a(f"s_lshr_b32 s{d}, s4, 2")
    def wd_row(d):
        if dmap:
            a("s_lshr_b32 s62, s2, 7")
            a("s_lshl_b32 s62, s62, 3")
            a(f"s_and_b32 s{d}, s2, 7")
            a(f"s_or_b32 s{d}, s{d}, s62")
        else: a(f"s_lshr_b32 s{d}, s2, 4")
    def wd_col(d):
        if dmap: a(f"s_bfe_u32 s{d}, s2, 0x40003")
        else: a(f"s_and_b32 s{d}, s2, 15")
    def rr_cc(srr, scc):
        a(f"s_and_b32 s{srr}, s2, 7")
        a("s_lshr_b32 s62, s2, 5")
        a("s_lshl_b32 s62, s62, 3")
        a(f"s_or_b32 s{srr}, s{srr}, s62")
        a(f"s_bfe_u32 s{scc}, s2, 0x20003")
    lgp = npool.bit_length() - 1
    def pool_id(d):
        a("s_lshr_b32 s5, s2, 3")
        a("s_add_u32 s5, s5, s2")
        a(f"s_and_b32 s5, s5, {npool-1}")
        a("s_lshr_b32 s4, s2, 6")
        a(f"s_lshl_b32 s4, s4, {lgp}")
        a(f"s_add_u32 s{d}, s4, s5")
    def pool_member(d):
        a("s_bfe_u32 s5, s2, 0x30003")
        a(f"s_lshr_b32 s5, s5, {lgp}")
        a("s_lshl_b32 s5, s5, 3")
        a("s_and_b32 s4, s2, 7")
        a(f"s_add_u32 s{d}, s5, s4")
    def tr_addr(d):
        a("v_lshrrev_b32 v12, 2, v5")
        a("v_lshl_add_u32 v13, v4, 2, v12")
        a("v_bfe_u32 v12, v13, 1, 2")
        a("v_lshlrev_b32 v12, 5, v12")
        a("v_lshl_add_u32 v12, v13, 7, v12")
        a("v_and_b32 v13, 3, v0")
        a(f"v_lshl_add_u32 v{d}, v13, 3, v12")
    def slot_base(d, slot):
        a(f"s_and_b32 s{d}, {slot}, 7")
        a(f"s_lshl_b32 s{d}, s{d}, 14")

    a("s_cmp_ge_u32 s2, 256")
    a("s_cbranch_scc1 L_end")
    a("s_load_dwordx16 s[16:31], s[0:1], 0")
    a("s_load_dwordx8 s[32:39], s[0:1], 64")
    stamp(0)
    if probe: a("s_mov_b32 s67, -1")
    if cpf:
        a("s_getpc_b64 s[4:5]")
        a("L_pc:")
        a("v_subrev_u32 v12, 64, v0")
        a("v_mov_b32 v13, 0")
        a("v_cmp_gt_u32 vcc, (L_codeend-L_pc)/128, v12")
        a("v_lshlrev_b32 v12, 7, v12")
        a("s_and_saveexec_b64 s[6:7], vcc")
        a("s_cbranch_execz L_nopf")
        a("v_lshl_add_u64 v[12:13], v[12:13], 0, s[4:5]")
        a("global_load_dword v16, v[12:13], off offset:64")
        a("L_nopf:")
        a("s_mov_b64 exec, -1")
    a("v_cmp_gt_u32 vcc, 64, v0")
    a("v_lshrrev_b32 v1, 6, v0")
    a("v_and_b32 v0, 63, v0")
    a("v_lshrrev_b32 v2, 3, v0")
    a("v_and_b32 v3, 7, v0")
    a("v_lshrrev_b32 v4, 4, v0")
    a("s_and_b32 s14, s2, 3")
    a("s_mov_b32 s43, 0x20000")
    a("s_cbranch_vccz L_others")
    OTHERS_FIRST = ofirst
    def emit_others():
        a("L_others:")
        a("v_readfirstlane_b32 s3, v1")
        a("v_lshlrev_b32 v14, 5, v0")
        a("v_lshlrev_b32 v15, 3, v0")
        a("s_lshl_b32 s10, s14, 9")
        a("s_movk_i32 s42, 2048")
        a("s_xor_b32 s3, s3, 4")
        a("s_cmp_gt_u32 s3, 3")
        a(f"v_mov_b32 v1, {MISC}")
        for k in range(4): a(f"v_mov_b32 v{28+k}, 0")
        a("v_lshl_add_u32 v12, v0, 4, v1")
        a(f"ds_write_b128 v12, v[28:31] offset:{TQ}")
        a("v_lshl_add_u32 v13, v0, 2, v1")
        a(f"v_mov_b32 v27, {BIG}")
        a(f"ds_write_b32 v13, v30 offset:{PROG}")
        a(f"ds_write2_b32 v1, v30, v27 offset0:{POST//4} offset1:{POST//4+1}")
        a("s_waitcnt lgkmcnt(0)")
        a("s_mov_b64 s[40:41], s[16:17]")
        a(f"s_load_dword s13, s[38:39], {EPOCH}")
        a("s_cbranch_scc1 L_nox")
        a("buffer_load_dwordx4 v[56:59], v14, s[40:43], 0 offen")
        a("buffer_load_dwordx4 v[60:63], v14, s[40:43], 0 offen offset:16")
        a("buffer_load_dwordx2 v[64:65], v15, s[40:43], s10 offen")
        a("L_nox:")
        a("s_barrier")
        a("s_branch L_notloader")

    role[0] = "L"
    a("s_setprio 3")
    a("v_lshrrev_b32 v12, 5, v0")
    a("v_and_b32 v13, 3, v2")
    a("v_lshl_add_u32 v12, v12, 3, v13")
    a("v_lshlrev_b32 v13, 1, v4")
    a("v_xor_b32 v13, v13, v3")
    a("v_lshlrev_b32 v13, 4, v13")
    a("v_lshl_add_u32 v16, v12, 13, v13")
    a("s_lshl_b32 s8, s14, 21")
    wq_col(5)
    a("s_lshl_b32 s5, s5, 7")
    a("s_add_u32 s8, s8, s5")
    a("s_mov_b32 m0, 0")
    a("s_mov_b32 s42, 8388608")
    a("s_waitcnt lgkmcnt(0)")
    if fine: stamp(7)
    a("s_mov_b64 s[40:41], s[22:23]")
    def wloads(vo, stride):
        for i in range(4):
            ro = (16 * (i & 1) + 4 * (i >> 1)) * stride - 1024 * i
            if i: a(f"s_add_u32 s9, s8, {ro}")
            a(f"buffer_load_dwordx4 v{vo}, s[40:43], s{9 if i else 8} offen offset:{1024*i}{NT} lds")
        a(f"s_add_u32 s8, s8, {32*stride}")
        a("s_add_u32 m0, m0, 4096")
    a("L_ld_q:")
    wloads(16, 8192)
    a("s_cmp_lt_u32 m0, 0x8000")
    a("s_cbranch_scc1 L_ld_q")
    if fine: stamp(8)
    if ofirst:
        a("s_branch L_loader")
        emit_others()
    a("L_loader:")
    mem = 64 // npool; reg = 1024 // npool
    nshared = reg - mem * dyn - 2 * lex
    zone = nshared - ntw * mem + empt
    assert ntw == 2 and dyn + lex + 2 * (nshared + empt) + 4 <= 256
    a(f"v_mov_b32 v1, {MISC}")
    a("v_mov_b32 v30, 0")
    a(f"v_mov_b32 v31, {BIG}")
    a("s_barrier")
    if stamps:
        for k in range(1, 16):
            if not (fine and k in (7, 8)): a(f"s_mov_b32 s{64+2*k}, 0")
    stamp(1)
    pend = [None]; viamax = [False]
    def wait_post(w, defer=False):
        if defer and fw:
            pend[0] = w
            return
        if viamax[0]:
            a("v_add_u32 v39, 1, v39")
            a("v_max_i32 v30, v30, v39")
        else: a("v_add_u32 v30, 1, v30")
        a(f"s_waitcnt vmcnt({w})")
        a(f"ds_write_b64 v29, v[30:31] offset:{POST}")
    def unit(vo, srdn, so, step=4096):
        w = pend[0]; pend[0] = None
        for i in range(4):
            if w is not None and i % fw[1] == 0:
                if i == fw[0]: wait_post(w + fw[0])
                else: a(f"s_waitcnt vmcnt({w + fw[0]})")
            a(f"buffer_load_dwordx4 v{vo[i]}, s[{srdn}:{srdn+3}], s{so} offen offset:{1024*i}{NT} lds")
        a(f"s_add_u32 m0, m0, {step}" if step > 0 else f"s_sub_u32 m0, m0, {-step}")
        if pace: a(f"s_sleep {pace}")
    a("v_lshl_add_u32 v29, v0, 3, v1")
    VG, VD, VK, VV = [40, 41, 42, 43], [44, 45, 46, 47], [24, 25, 24, 25], [24, 25, 24, 25]
    a("s_movk_i32 s7, 7168")
    a(f"v_mad_u32_u24 v{VG[0]}, v12, s7, v13")
    for i in range(1, 4):
        a(f"v_add_u32 v{VG[i]}, {(16 * (i & 1) + 4 * (i >> 1)) * 7168 - 1024 * i}, v{VG[0]}")
    gu_col(6)
    if cmap: up_shift(12, 6, 128)
    a("s_lshl_b32 s6, s6, 7")
    a(f"s_mul_i32 s7, s14, {256*7168}")
    a("s_add_u32 s8, s7, s6")
    a("s_mov_b32 s42, 7340032")
    a("s_mov_b64 s[40:41], s[28:29]")
    a("s_mov_b32 s98, 2")
    a(f"s_cmp_ge_u32 s5, {7 if 'g' in cmap else 56}")
    w1 = win
    if fine: stamp(9)
    for w in range(28, w1 - 4, -4):
        wait_post(w)
        if fine: stamp(10 if w == 28 else 11)
    a("s_cbranch_scc1 L_ld_kv")
    a("s_add_u32 s12, s12, s8" if cmap else "s_mov_b32 s12, s8")
    if gui:
        srd(52, 30, 7340032)
        a("s_mov_b32 s98, 6")
        a("L_ld_gu2:")
        wait_post(w1 - 4, True)
        unit(VG, 40, 8, 0x8000)
        a(f"s_add_u32 s8, s8, {32*7168}")
        wait_post(w1 - 4, True)
        unit(VG, 52, 12, -0x7000)
        a(f"s_add_u32 s12, s12, {32*7168}")
        a("s_cmp_lt_u32 m0, 0x10000")
        a("s_cbranch_scc1 L_ld_gu2")
        a("s_mov_b32 m0, 0x18000")
    if not gui:
     a("s_mov_b32 s6, 0x10000")
     a("s_mov_b32 s98, 6")
     a("L_ld_gu:")
     wait_post(w1 - 4, True)
     unit(VG, 40, 8)
     a(f"s_add_u32 s8, s8, {32*7168}")
     a("s_cmp_lt_u32 m0, s6")
     a("s_cbranch_scc1 L_ld_gu")
     a("s_mov_b32 s8, s12")
     a("s_mov_b64 s[40:41], s[30:31]")
     a("s_mov_b32 s6, 0x18000")
     a("s_cmp_lt_u32 m0, s6")
     a("s_cbranch_scc1 L_ld_gu")
    a("L_ld_kv:")
    stamp(2)
    a(f"ds_read_b128 v[32:35], v1 offset:{PROG}")
    a(f"ds_read_b32 v37, v1 offset:{TQ}")
    a("v_mov_b32 v36, v1")
    a("v_and_b32 v5, 15, v0")
    for j in range(2):
        a(f"v_add_u32 v14, {4*j}, v4")
        a("v_lshlrev_b32 v14, 1, v14")
        a("v_xor_b32 v14, v14, v5")
        a("v_lshlrev_b32 v14, 4, v14")
        a(f"v_lshl_add_u32 v{VV[j]}, v4, 8, v14")
    srd(44, 18, 33554432)
    srd(48, 20, 33554432)
    a("s_mov_b32 s10, 0")
    a("s_mov_b32 s11, 0")
    a("s_mov_b32 s15, 0")
    if wide: a("s_mov_b32 s99, 0")
    a(f"s_mov_b32 s60, {spin_limit}")
    if stamps: a("s_memrealtime s[100:101]")
    a("s_branch L_ld_chk")
    if win1:
        assert n1 <= dyn - ahead
        a("L_ld_tile1:")
        a("s_and_b32 s8, s7, 0xffffe000")
        wait_post(w1 - 4, True)
        unit(VK, 44, 8)
        a("s_add_u32 s9, s8, 4096")
        a("s_add_u32 s11, s11, 1")
        a("v_mov_b32 v38, s11")
        wait_post(w1 - 4, True)
        unit(VK, 44, 9)
        a("v_lshl_add_u32 v36, v38, 2, v1")
        a("s_add_u32 s10, s10, 1")
        a("s_add_u32 s98, s98, 1")
        wait_post(w1 - 4, True)
        unit(VV, 48, 8)
        a(f"ds_read_b128 v[32:35], v1 offset:{PROG}")
        a(f"ds_read_b32 v37, v36 offset:{TQ}")
        wait_post(w1 - 4, True)
        unit(VV, 48, 9)
        a("s_and_b32 m0, m0, 0x1ffff")
        a(f"s_mov_b32 s60, {spin_limit}")
        a("L_ld_chk1:")
        a("s_waitcnt lgkmcnt(0)")
        a("v_min3_u32 v32, v32, v33, v34")
        a("v_readfirstlane_b32 s7, v37")
        a("v_min_u32 v32, v32, v35")
        a("s_sub_u32 s60, s60, 1")
        a("v_readfirstlane_b32 s4, v32")
        a("s_cselect_b32 s4, s98, s4")
        a("s_add_u32 s4, s4, 8")
        a("s_cmp_gt_u32 s4, s98")
        a("s_cbranch_scc1 L_ld_free1")
        a(f"ds_read_b128 v[32:35], v1 offset:{PROG}")
        a("s_branch L_ld_chk1")
        a("L_ld_free1:")
        a(f"s_cmp_lt_u32 s10, {n1}")
        a("s_cbranch_scc1 L_ld_tile1")
        for w in range(w1 - 4, win - 4, -4): wait_post(w)
    def peek():
        a(f"ds_read_b128 v[32:35], v1 offset:{PROG}")
        a(f"ds_read_b32 v37, v36 offset:{TQ}")
    def slot_body(wn):
        a("s_and_b32 s8, s7, 0xffffe000")
        if two:
            a("s_bitcmp1_b32 s7, 2")
            a("s_cselect_b64 s[44:45], s[20:21], s[18:19]")
        wait_post(wn - 4, True)
        unit(VK, 44, 8)
        a("s_add_u32 s9, s8, 4096")
        a("s_bfe_u32 s4, s7, 0x10001")
        a("s_and_b32 s5, s11, 1")
        a("s_lshl_b32 s4, s4, s5")
        a("s_or_b32 s15, s15, s4")
        a("s_add_u32 s11, s11, 1")
        a("s_xor_b32 s5, s5, 1")
        a("s_bitcmp1_b32 s15, s5")
        a("s_addc_u32 s11, s11, 0")
        a("v_mov_b32 v38, s11")
        if spos == 0: a(f"ds_write_b32 v1, v38 offset:{STARTED}")
        wait_post(wn - 4, True)
        unit(VK, 44, 9)
        if spos == 1: a(f"ds_write_b32 v1, v38 offset:{STARTED}")
        a("v_lshl_add_u32 v36, v38, 2, v1")
        a("s_add_u32 s10, s10, 1")
        a("s_cmp_eq_u32 s15, 3")
        a(f"s_cselect_b32 s4, s10, {BIG}")
        a("v_mov_b32 v31, s4")
        a("s_cselect_b32 s4, 4, 1")
        a("s_add_u32 s98, s98, s4")
        if two:
            a("s_bitcmp1_b32 s7, 3")
            a("s_cselect_b64 s[48:49], s[18:19], s[20:21]")
            a("s_and_b32 s4, s7, 12")
            a("s_cselect_b32 s4, 0x2000, 0")
            a("s_add_u32 s8, s8, s4")
            a("s_add_u32 s9, s9, s4")
        wait_post(wn - 4, True)
        unit(VV, 48, 8)
        if spos == 2: a(f"ds_write_b32 v1, v38 offset:{STARTED}")
        peek()
        wait_post(wn - 4, True)
        unit(VV, 48, 9)
        if spos == 3: a(f"ds_write_b32 v1, v38 offset:{STARTED}")
        a("s_and_b32 m0, m0, 0x1ffff")
        if stamps: a("s_memrealtime s[100:101]")
        a(f"s_mov_b32 s60, {spin_limit}")
    if wide:
        a("L_ld_wide0:")
        a(f"v_subrev_u32 v39, {wide[0] // 4}, v30")
        a("s_mov_b32 s99, 16")
        a("L_ld_wide:")
        viamax[0] = True
        slot_body(win + wide[0])
        viamax[0] = False
        a("s_branch L_ld_chk")
    a("L_ld_tile:")
    if wide:
        a("s_cmp_lg_u32 s99, 0")
        a("s_cbranch_scc1 L_ld_wide")
        a("s_bitcmp1_b32 s7, 4")
        a("s_cbranch_scc1 L_ld_wide0")
    slot_body(win)
    a("L_ld_chk:")
    a("s_waitcnt lgkmcnt(0)")
    a("v_min3_u32 v32, v32, v33, v34")
    a("v_readfirstlane_b32 s5, v37")
    a("v_min_u32 v32, v32, v35")
    a("s_cmp_eq_u32 s15, 3")
    a("v_readfirstlane_b32 s4, v32")
    a("s_cbranch_scc1 L_ld_end")
    a("s_add_u32 s4, s4, 8")
    a("s_cmp_gt_u32 s4, s98")
    a("s_cselect_b32 s7, s5, 0")
    a("s_bitcmp1_b32 s7, 0")
    if stamps:
        a("s_cbranch_scc0 L_ld_again")
        a("s_memrealtime s[62:63]")
        a("s_waitcnt lgkmcnt(0)")
        a("s_sub_u32 s62, s62, s100")
        a("s_add_u32 s88, s88, s62")
        a("s_max_u32 s90, s90, s62")
        a(f"s_cmp_eq_u32 s10, {dyn // 2}")
        a("s_cselect_b32 s78, s100, s78")
        a(f"s_cmp_eq_u32 s10, {dyn}")
        a("s_cselect_b32 s80, s100, s80")
        a("s_branch L_ld_tile")
    else:
        a("s_cbranch_scc1 L_ld_tile")
    a("L_ld_again:")
    if empt:
        a("s_cmp_eq_u32 s15, 3")
        a("s_cselect_b32 s5, 0, s5")
        a("s_cmp_lg_u32 s5, 2")
        a("s_cbranch_scc1 L_ld_peek")
        a("s_and_b32 s5, s11, 1")
        a("s_bitset1_b32 s15, s5")
        a("s_add_u32 s11, s11, 1")
        a("v_mov_b32 v32, s11")
        a("v_lshl_add_u32 v36, v32, 2, v1")
        a(f"ds_write_b32 v1, v32 offset:{STARTED}")
        a("s_cmp_eq_u32 s15, 3")
        a("s_cbranch_scc0 L_ld_peek")
        a("v_mov_b32 v31, s10")
        a("s_add_u32 s98, s98, 3")
        a("s_cmp_gt_u32 s4, s98")
        a("s_cbranch_scc1 L_ld_go")
        a("L_ld_peek:")
    peek()
    a("s_sub_u32 s60, s60, 1")
    a("s_cbranch_scc0 L_ld_chk")
    a("v_mov_b32 v30, 0x7fffffff")
    a("v_mov_b32 v31, s10")
    a(f"ds_write_b64 v29, v[30:31] offset:{POST}")
    a("s_endpgm")
    a("L_ld_end:")
    a("s_add_u32 s4, s4, 8")
    a("s_cmp_gt_u32 s4, s98")
    a("s_cbranch_scc0 L_ld_again")
    a("L_ld_go:")
    stamp(3)
    a(f"v_lshl_add_u32 v{VD[0]}, v12, 11, v13")
    for i in range(1, 4):
        a(f"v_add_u32 v{VD[i]}, {(16 * (i & 1) + 4 * (i >> 1)) * 2048 - 1024 * i}, v{VD[0]}")
    srd(52, 32, 7340032)
    wd_row(6)
    a(f"s_mul_i32 s96, s6, {224*2048}")
    wd_col(6)
    a("s_lshl_b32 s6, s6, 7")
    a("s_add_u32 s96, s96, s6")
    if stamps:
        a("s_add_u32 s92, s10, s64")
        a("s_add_u32 s88, s88, s64")
        a("s_add_u32 s90, s90, s64")
    if wide:
        a("s_cmp_eq_u32 s99, 0")
        a("s_cbranch_scc1 L_ld_narrow")
        for w in range(win + wide[0] - 4, win - 4, -4): wait_post(w)
        a("L_ld_narrow:")
    sch = dict(sched or ([(0, win), grow] if grow else [(0, win)]))
    infl = win // 4
    wn = win
    for k in range(15):
        wn = sch.get(k, wn)
        while infl > wn // 4:
            infl -= 1; wait_post(4 * infl)
        if infl == wn // 4: wait_post(wn - 4, True)
        else: infl += 1
        if k < 7:
            unit(VD, 52, 96)
            if k < 6: a("s_add_u32 s96, s96, 0x10000")
        else:
            unit(VD, 56, 97)
            if k < 14: a(f"s_add_u32 s97, s97, {0x10000 - 384 if k == 10 else 128}")
        if k % 4 == 3: a("s_and_b32 m0, m0, 0x1ffff")
        if k == 1: srd(56, 24, 8388608)
        if k == 2: rr_cc(6, 7)
        if k == 4:
            a("s_lshl_b32 s6, s6, 17")
            a("s_lshl_b32 s7, s7, 9")
            a("s_add_u32 s97, s6, s7")
        if k == 6: stamp(4)
    stamp(5)
    while infl > 0:
        infl -= 1; wait_post(4 * infl)
    stamp(6)
    a("L_ld_done:")
    if stamps:
        a("s_mov_b32 s3, 4")
        srd(48, 38, 268435456)
        a("s_getreg_b32 s94, hwreg(HW_REG_XCC_ID)")
        a("s_getreg_b32 s95, hwreg(HW_REG_HW_ID)")
        a("s_and_b32 s94, s94, 15")
        a("s_lshl_b32 s94, s94, 16")
        a("s_and_b32 s95, s95, 0xffff")
        a("s_or_b32 s94, s94, s95")
        a("s_or_b32 s94, s94, 0x1000000")
    dump_stamps(12, 13)
    a("s_endpgm")

    if not ofirst: emit_others()
    a("L_notloader:")
    if stamps or lite:
        for k in range(1, 16): a(f"s_mov_b32 s{64+2*k}, 0")
    a("v_and_b32 v5, 15, v0")
    a("v_lshlrev_b32 v6, 4, v0")
    srd(48, 38, 268435456)
    a("s_mov_b32 s96, 0")
    a(f"s_mov_b32 s97, {BIG}")
    a("s_cmp_eq_u32 s3, 5")
    a("s_cbranch_scc1 L_helper")
    a("s_cmp_gt_u32 s3, 5")
    a("s_cbranch_scc1 L_ticket")

    role[0] = "C"
    XF = 32
    AF = 64
    ACC = 80
    TA = 7
    a("s_setprio 1")
    tr_addr(TA)
    a("s_waitcnt lgkmcnt(0)")
    make_tag()
    a("s_waitcnt vmcnt(0)")
    stamp(1)
    pool_member(6)
    a("s_cmp_lg_u32 s6, 0")
    a("s_cbranch_scc1 L_nozero")
    pool_id(6)
    a("v_mov_b32 v12, 0")
    a("v_lshlrev_b32 v13, 10, v0")
    a(f"s_mul_i32 s7, s6, {cstride}")
    a(f"s_add_u32 s7, s7, {TCN}")
    a("s_mov_b64 exec, 1")
    if sig1 is not None or sig2:
        assert npool == 4
        a("s_cmp_eq_u32 s3, 0")
        a("s_cbranch_scc1 " + ("L_zeroed" if early_t else "L_dozero"))
        a("s_mov_b64 exec, 0xffff")
        a("s_lshr_b32 s4, s6, 2")
        a("s_and_b32 s5, s6, 3")
        if sig1 is not None or rk:
            a("s_lshl_b32 s7, s4, 14")
            a("s_lshl_b32 s8, s5, 8")
            a("s_add_u32 s7, s7, s8")
            a(f"s_add_u32 s7, s7, {AC1}")
            a("s_cmp_eq_u32 s3, 1")
            a("s_cbranch_scc1 L_dozero")
        a("s_lshl_b32 s7, s5, 14")
        a("s_lshl_b32 s8, s4, 8")
        a("s_add_u32 s7, s7, s8")
        a(f"s_add_u32 s7, s7, {AC2}")
        a("v_mov_b32 v12, s13")
        a("s_cmp_eq_u32 s3, 2")
    else:
        a("s_cmp_eq_u32 s3, 0")
    a("s_cbranch_scc0 L_zeroed")
    a("L_dozero:")
    a("buffer_store_dword v12, v13, s[48:51], s7 offen sc1")
    a("L_zeroed:")
    a("s_mov_b64 exec, -1")
    a("L_nozero:")
    for i in range(8):
        a(f"v_lshlrev_b32 v{32+2*i}, 16, v{56+i}")
        a(f"v_and_b32 v{33+2*i}, 0xffff0000, v{56+i}")
    a("v_add_f32 v16, v32, v33")
    a("v_add_f32 v17, v34, v35")
    for i in range(2, 8):
        a(f"v_add_f32 v16, v16, v{32+2*i}")
        a(f"v_add_f32 v17, v17, v{33+2*i}")
    a("v_add_f32 v16, v16, v17")
    emit(row_list("v_add_f32", 16) + cross_list("v_add_f32", 16, 17))
    a("v_mul_f32 v16, 0x3a800000, v16")
    for i in range(16):
        a(f"v_sub_f32 v{32+i}, v{32+i}, v16")
    a("v_mul_f32 v17, v32, v32")
    a("v_mul_f32 v18, v33, v33")
    for i in range(1, 8):
        a(f"v_fmac_f32 v17, v{32+2*i}, v{32+2*i}")
        a(f"v_fmac_f32 v18, v{33+2*i}, v{33+2*i}")
    a("v_add_f32 v17, v17, v18")
    emit(row_list("v_add_f32", 17) + cross_list("v_add_f32", 17, 18))
    a("v_mul_f32 v17, 0x3a800000, v17")
    bf16r(16, 16)
    bf16r(17, 17)
    a("v_add_f32 v17, 0x3727c5ac, v17")
    bf16r(17, 17)
    a("v_sqrt_f32 v17, v17")
    for i in range(2):
        a(f"v_lshlrev_b32 v{18+2*i}, 16, v{64+i}")
        a(f"v_and_b32 v{19+2*i}, 0xffff0000, v{64+i}")
    bf16r(17, 17)
    a("v_rcp_f32 v17, v17")
    for i in range(4): a(f"v_sub_f32 v{18+i}, v{18+i}, v16")
    for i in range(4): bf16r(18 + i, 18 + i)
    for i in range(4): a(f"v_mul_f32 v{18+i}, v{18+i}, v17")
    a("v_cvt_pk_bf16_f32 v18, v18, v19")
    a("v_cvt_pk_bf16_f32 v19, v20, v21")
    a("v_add_u32 v15, v15, v1")
    a(f"ds_write_b64 v15, v[18:19] offset:{XN}")
    a("v_lshl_add_u32 v14, v4, 4, v1")
    for s in range(8):
        a(f"ds_read_b128 v[{XF+4*s}:{XF+4*s+3}], v14 offset:{XN+64*s}")
    stamp(2)
    A1 = 27
    a(f"v_lshl_add_u32 v12, v0, 2, v1")
    a(f"v_add_u32 v12, {SCR}, v12")
    a("v_cmp_eq_u32 vcc, 0, v0")
    a(f"v_cndmask_b32 v{A1}, v12, v1, vcc")
    a("s_lshl_b32 s4, s3, 2")
    a(f"v_add_u32 v28, s4, v{A1}")
    def progress(x):
        a(f"v_mov_b32 v29, {x}")
        a(f"ds_write_b32 v28, v29 offset:{PROG}")
    a("s_lshl_b32 s4, s3, 5")
    a(f"v_xor_b32 v14, s4, v{TA}")
    a("s_lshl_b32 s8, s14, 14")
    a("s_lshl_b32 s9, s3, 6")
    a("s_add_u32 s8, s8, s9")
    gu_col(11)
    if cmap:
        up_shift(27, 11, 256)
        a("s_add_u32 s27, s27, 0x10000")
    a("s_lshl_b32 s11, s11, 8")
    a("s_add_u32 s11, s11, s8")
    if cmap: a(f"s_add_u32 s11, s11, {GP}")
    wq_col(9)
    a("s_lshl_b32 s9, s9, 8")
    a("s_add_u32 s9, s9, s8")
    light_test()
    a("s_cselect_b32 s15, 2, 6")
    a("s_mov_b32 s99, 0")
    a("s_mov_b32 s10, 0")
    a("v_lshlrev_b32 v15, 6, v4")
    a("v_and_b32 v15, 3, v0")
    a("v_lshlrev_b32 v15, 6, v15")
    if gui: a("s_mov_b32 s24, 1")
    a("L_c_blk:")
    for (s0, s1) in [(0, 4), (4, 6), (6, 8)]:
        if gui: a(f"s_lshl{(s1-s0)//2}_add_u32 s10, s24, s10")
        else: a(f"s_add_u32 s10, s10, {s1-s0}")
        need("s10")
        for s in range(s0, s1):
            for t in range(2):
                d = AF + 4 * (s & 3) + 2 * t
                a(f"ds_read_b64_tr_b16 v[{d}:{d+1}], v14 offset:{s*4096+t*2048}")
        a("s_waitcnt lgkmcnt(0)")
        for s in range(s0, s1):
            c = "0" if s == 0 else f"v[{ACC}:{ACC+3}]"
            a(f"v_mfma_f32_16x16x32_bf16 v[{ACC}:{ACC+3}], v[{AF+4*(s&3)}:{AF+4*(s&3)+3}], v[{XF+4*s}:{XF+4*s+3}], {c}")
        if s1 % 4 == 0:
            a("s_add_u32 s99, s99, 1")
            progress("s99")
    a("v_add_u32 v14, 0x8000, v14")
    for k in range(4): a(f"ds_bpermute_b32 v{ACC+k}, v15, v{ACC+k}")
    a("s_waitcnt vmcnt(0) lgkmcnt(0)")
    apply_tag(ACC)
    a("s_mov_b64 exec, 0xf")
    a(f"buffer_store_dwordx4 v[{ACC}:{ACC+3}], v6, s[48:51], s9 offen sc1")
    a("s_mov_b64 exec, -1")
    if stamps or probe or leak:
        a("s_cmp_lg_u32 s99, 2")
        a("s_cbranch_scc1 L_c_ns3")
        stamp(3)
        a("L_c_ns3:")
    if cmap:
        a("s_mov_b32 s9, s11")
        a("s_add_u32 s11, s11, s27")
    else:
        a("s_add_u32 s11, s11, 0x10000")
        a("s_mov_b32 s9, s11")
    if gui:
        a("s_lshl_b32 s24, s24, 1")
        a("s_and_b32 s24, s24, 3")
    a("s_cmp_lt_u32 s99, s15")
    a("s_cbranch_scc1 L_c_blk")
    stamp(4)
    leak_flag()
    if qlight:
        light_test()
        a(f"s_cselect_b32 s4, {qlight}, {qstart}")
        need("s4")
    elif qstart: need(qstart)
    a("s_lshr_b32 s4, s2, 6")
    a("s_lshl_b32 s4, s4, 12")
    a("s_lshl_b32 s5, s3, 10")
    a("s_add_u32 s52, s4, s5")
    a("s_add_u32 s53, s52, 16384")
    a("s_add_u32 s54, s52, 32768")
    a("s_add_u32 s55, s52, 49152")
    def q_loads():
        for r in range(1 if "q" in abl else 4):
            a(f"buffer_load_dwordx4 v[{64+4*r}:{67+4*r}], v6, s[48:51], s{52+r} offen sc1")
    q_loads()
    KF = 32; QF = 96; SC = 64; VF = 72; AO = 80
    KA = 112; VA = 116; KC = 120; VC = 118
    S = 16; P = 20; M2, LS, AL = 24, 25, 26
    RL, LB = 30, 31
    A_OP, A_PERM, A_SH, A_G, A_OL, A_SP, A_M, SEL1, SEL2, A_QR, ONE = 128, 129, 130, 131, 132, 133, 134, 138, 139, 140, 141
    a("v_lshlrev_b32 v13, 1, v3")
    for m in range(4):
        a(f"v_add_u32 v12, {4*m}, v4")
        a("v_xor_b32 v12, v12, v13")
        a("v_lshlrev_b32 v12, 4, v12")
        a(f"v_lshl_add_u32 v{KA+m}, v5, 8, v12")
    a("v_lshrrev_b32 v12, 2, v5")
    a("v_lshl_add_u32 v12, v4, 2, v12")
    a("v_and_b32 v15, 3, v0")
    a("v_lshlrev_b32 v13, 3, v15")
    a("v_lshl_add_u32 v13, v12, 8, v13")
    a("v_add_u32 v13, 8192, v13")
    a("v_and_b32 v12, 7, v12")
    a("s_lshl_b32 s4, s3, 1")
    for n in range(2):
        a(f"s_add_u32 s5, s4, {n}")
        a("v_xor_b32 v14, s5, v12")
        a(f"v_lshl_add_u32 v{VA+n}, v14, 5, v13")
    a(f"v_mov_b32 v{M2}, 0xff7fffff")
    a(f"v_mov_b32 v{LS}, 0")
    for i in range(8): a(f"v_mov_b32 v{AO+i}, 0")
    a("v_cmp_lt_u32 s[100:101], 7, v5")
    a(f"s_mov_b32 s12, {LOG2E}")
    a(f"v_mul_u32_u24 v14, {QROW}, v3")
    a("v_lshl_add_u32 v14, v4, 4, v14")
    a(f"v_add_u32 v{A_QR}, v14, v1")
    a(f"v_mov_b32 v{ONE}, 1")
    a(f"v_lshlrev_b32 v14, {9+ow}, v2")
    if opw:
        a("v_and_b32 v13, 4, v0")
        a("v_lshl_add_u32 v14, v13, 4, v14")
    a(f"v_lshl_add_u32 v{A_OP}, v3, 4, v14")
    a("v_lshlrev_b32 v13, 4, v15")
    a("v_and_b32 v14, 4, v0")
    a("v_lshl_add_u32 v13, v14, 1, v13")
    a("v_add_u32 v13, v13, v2")
    a(f"v_lshlrev_b32 v{A_PERM}, 2, v13")
    a(f"v_lshlrev_b32 v{A_SH}, 3, v4")
    TO = 143
    a("v_bfe_i32 v12, v0, 4, 1")
    a(f"v_and_b32 v12, {TAGX}, v12")
    a(f"v_xor_b32 v{TO}, s13, v12")
    for k in range(1, 3): a(f"v_lshrrev_b32 v{TO+k}, {8*k}, v{TO}")
    a(f"s_mul_i32 s4, s2, {RSO}")
    a(f"s_lshl_b32 s5, s3, {7+ow}")
    a("s_add_u32 s4, s4, s5")
    a(f"s_add_u32 s44, s4, {OP}")
    rr_cc(4, 5)
    a(f"s_mul_i32 s8, s4, {RSS}")
    a(f"s_lshl_b32 s9, s5, {10+sw}")
    a("s_add_u32 s8, s8, s9")
    a(f"s_lshl_b32 s9, s3, {8+sw}")
    a("s_add_u32 s8, s8, s9")
    a(f"s_add_u32 s45, s8, {SP}")
    if cgate:
        a("s_lshl_b32 s8, s4, 8")
        a(f"s_add_u32 s8, s8, {OCN}")
        a("s_add_u32 s58, s38, s8")
        a("s_addc_u32 s59, s39, 0")
        a("s_lshr_b32 s8, s2, 6")
        a("s_lshl_b32 s8, s8, 12")
        a(f"s_add_u32 s46, s8, {OCN}")
        a("v_lshlrev_b32 v142, 8, v0")
    a("s_lshr_b32 s8, s4, 4")
    a(f"s_mul_i32 s8, s8, {64*RSO}")
    a("s_and_b32 s9, s4, 15")
    a(f"s_lshl_b32 s9, s9, {8+ow}")
    a("s_add_u32 s8, s8, s9")
    a(f"s_lshl_b32 s9, s3, {6+ow}")
    a("s_add_u32 s8, s8, s9")
    a(f"s_add_u32 s16, s8, {OP}")
    a(f"s_add_u32 s17, s16, {RSO}")
    a(f"s_add_u32 s18, s16, {2*RSO}")
    a(f"s_add_u32 s19, s16, {3*RSO}")
    a("v_lshrrev_b32 v13, 2, v0")
    a(f"v_mul_u32_u24 v13, {4*RSO}, v13")
    a(f"v_lshl_add_u32 v{A_G}, v15, 4, v13")
    a("v_lshl_add_u32 v12, v4, 4, v1")
    a(f"v_add_u32 v12, {OL}, v12")
    a(f"v_add_u32 v13, {ZER}, v1")
    for u in range(4):
        a(f"v_cmp_eq_u32 vcc, {u}, v15")
        a(f"v_cndmask_b32 v{A_M+u}, v13, v12, vcc")
    a("s_lshl_b32 s4, s3, 5")
    a("v_lshl_add_u32 v13, v4, 1, v1")
    a("v_lshl_add_u32 v13, v15, 3, v13")
    a(f"v_add_u32 v{A_OL}, s4, v13")
    a("v_lshlrev_b32 v13, 4, v5")
    a(f"v_lshl_add_u32 v{A_SP}, v4, {6+sw}, v13")
    a("v_and_b32 v12, 1, v0")
    a("v_cmp_eq_u32 vcc, 1, v12")
    a("v_mov_b32 v12, 0x06020400")
    a("v_mov_b32 v13, 0x03070105")
    a(f"v_cndmask_b32 v{SEL1}, v12, v13, vcc")
    a("v_and_b32 v12, 2, v0")
    a("v_cmp_eq_u32 vcc, 2, v12")
    a("v_mov_b32 v12, 0x05040100")
    a("v_mov_b32 v13, 0x03020706")
    a(f"v_cndmask_b32 v{SEL2}, v12, v13, vcc")
    a("s_mov_b32 s20, 0x0c0c0400")
    a("s_mov_b32 s21, 0x05040100")
    L = a.label("L_q"); D = a.label("L_qd")
    a(f"s_mov_b32 s60, {spin_limit}")
    a("s_branch L_q_wait")
    a(f"{L}:")
    q_loads()
    a("L_q_wait:")
    a("s_waitcnt vmcnt(0)")
    tag_check([64] if "q" in abl else [64, 68, 72, 76], 12)
    retry_masked(L, D, qsleep)
    stamp(5)
    for k in range(4): a(f"v_add_f32 v{64+k}, v{64+k}, v{68+k}")
    for k in range(4): a(f"v_add_f32 v{72+k}, v{72+k}, v{76+k}")
    for k in range(4): a(f"v_add_f32 v{64+k}, v{64+k}, v{72+k}")
    a("v_cvt_pk_bf16_f32 v64, v64, v65")
    a("v_cvt_pk_bf16_f32 v65, v66, v67")
    a("v_lshrrev_b32 v12, 5, v0")
    a("s_lshl_b32 s4, s3, 1")
    a("v_add_u32 v12, s4, v12")
    a(f"v_mul_u32_u24 v12, {QROW}, v12")
    a("v_and_b32 v13, 31, v0")
    a("v_lshl_add_u32 v12, v13, 3, v12")
    a("v_add_u32 v12, v12, v1")
    a(f"ds_write_b64 v12, v[64:65] offset:{QL}")
    a(f"ds_add_u32 v{A1}, v{ONE} offset:{QCNT}")
    lds_spin(QCNT, 7 if early_t else 5, 12, 0)
    for m in range(4):
        a(f"ds_read_b128 v[{QF+4*m}:{QF+4*m+3}], v{A_QR} offset:{QL+64*m}")
    stamp(6)
    def k_reads():
        for m in range(4): a(f"v_add_u32 v{KC+m}, s4, v{KA+m}")
        for t in range(2):
            for m in range(4):
                d = KF + 16 * t + 4 * m
                a(f"ds_read_b128 v[{d}:{d+3}], v{KC+m} offset:{4096*t}")
    def v_addr():
        for n in range(2): a(f"v_add_u32 v{VC+n}, s5, v{VA+n}")
    def v_reads(VF=VF, off=0):
        for n in range(2):
            for t in range(2):
                d = VF + 4 * n + 2 * t
                a(f"ds_read_b64_tr_b16 v[{d}:{d+1}], v{VC+n} offset:{off+4096*t}")
    def qk_list(KF=KF, SC=SC):
        out = []
        for t in range(2):
            for m in range(4):
                d = KF + 16 * t + 4 * m
                c = "0" if m == 0 else f"v[{SC+4*t}:{SC+4*t+3}]"
                out.append(f"v_mfma_f32_16x16x32_bf16 v[{SC+4*t}:{SC+4*t+3}], v[{d}:{d+3}], v[{QF+4*m}:{QF+4*m+3}], {c}")
        return out
    def softmax_list():
        o = []
        for k in range(4): o.append(f"v_cndmask_b32 v{S+k}, v{SC+k}, v{SC+4+k}, s[100:101]")
        for k in range(4): o.append(f"v_cvt_pk_bf16_f32 v{S+k}, 0, v{S+k}")
        for k in range(4): o.append(f"v_mul_f32 v{S+k}, {SCALE}, v{S+k}")
        for k in range(4): o.append(f"v_cvt_pk_bf16_f32 v{S+k}, 0, v{S+k}")
        o.append(f"v_max3_f32 v14, v{S}, v{S+1}, v{S+2}")
        o.append(f"v_max_f32 v14, v14, v{S+3}")
        o.append("MARK")
        o += row_list("v_max_f32", 14, (8,)) + cross_list("v_max_f32", 14, 15)
        o.append("v_mul_f32 v14, s12, v14")
        o.append(f"v_max_f32 v14, v14, v{M2}")
        o.append(f"v_sub_f32 v{AL}, v{M2}, v14")
        o.append(f"v_mov_b32 v{M2}, v14")
        o.append(f"v_exp_f32 v{AL}, v{AL}")
        for k in range(4): o.append(f"v_fma_f32 v{S+k}, v{S+k}, s12, -v14")
        for k in range(4): o.append(f"v_exp_f32 v{S+k}, v{S+k}")
        for i in range(4): o.append(f"v_mul_f32 v{AO+i}, v{AL}, v{AO+i}")
        o.append(f"v_cvt_pk_bf16_f32 v{P}, v{S}, v{S+1}")
        o.append(f"v_cvt_pk_bf16_f32 v{P+1}, v{S+2}, v{S+3}")
        for i in range(4, 8): o.append(f"v_mul_f32 v{AO+i}, v{AL}, v{AO+i}")
        o.append(f"v_mov_b32_dpp v{P+2}, v{P} row_ror:8 {DPP}")
        o.append(f"v_mov_b32_dpp v{P+3}, v{P+1} row_ror:8 {DPP}")
        o.append(f"v_add_f32 v14, v{S}, v{S+1}")
        o.append(f"v_add_f32 v15, v{S+2}, v{S+3}")
        o.append("v_add_f32 v14, v14, v15")
        o.append(f"v_fma_f32 v{LS}, v{LS}, v{AL}, v14")
        return o
    def pv(VF=VF, P=P):
        for n in range(2):
            a(f"v_mfma_f32_16x16x32_bf16 v[{AO+4*n}:{AO+4*n+3}], v[{VF+4*n}:{VF+4*n+3}], v[{P}:{P+3}], v[{AO+4*n}:{AO+4*n+3}]")
    def arrive():
        Ln = a.label("L_noarr")
        a("s_cmp_lg_u32 s3, 0")
        a(f"s_cbranch_scc1 {Ln}")
        a("s_mov_b64 exec, 0xffff")
        a(f"buffer_atomic_add v{ONE}, v142, s[48:51], s46 offen sc1")
        a("s_mov_b64 exec, -1")
        a(f"{Ln}:")
    def stats():
        a(f"v_mov_b32 v{RL}, v{LS}")
        emit(row_list("v_add_f32", RL, (8,)) + cross_list("v_add_f32", RL, 15))
        a(f"v_log_f32 v{LB}, v{RL}")
        a(f"v_rcp_f32 v{RL}, v{RL}")
        a("s_sub_u32 s6, s10, 2")
        a(f"v_add_f32 v{LB}, v{LB}, v{M2}")
        a(f"v_lshrrev_b32 v{LB}, v{A_SH}, v{LB}")
    cnt = not (stamps or probe or leak)
    if two:
        KF2, SC2, S2, PK, A_SB, VF2, P2 = 152, 72, 88, 92, 146, 152, 160
        light_test()
        a(f"s_cselect_b32 s25, {(dyn + lex) // 2}, {dyn // 2}")
        a("s_mov_b32 s11, 0")
        a("s_mov_b32 s26, 0x07060302")
        a(f"v_add_u32 v{A_SB}, v6, v1")
        a("L_c_kk:")
        a("s_add_u32 s10, s10, 4")
        need("s10")
        slot_base(4, "s99")
        k_reads()
        for t in range(2):
            for m in range(4):
                d = KF2 + 16 * t + 4 * m
                a(f"ds_read_b128 v[{d}:{d+3}], v{KC+m} offset:{8192+4096*t}")
        a("s_add_u32 s99, s99, 1")
        a("s_add_u32 s11, s11, 1")
        qa = qk_list(); qb = qk_list(KF2, SC2)
        a("s_waitcnt lgkmcnt(8)" if cnt else "s_waitcnt lgkmcnt(0)")
        emit(qa)
        a("s_waitcnt lgkmcnt(0)")
        progress("s99")
        def pre(sc, sv, pk):
            o = [f"v_cndmask_b32 v{sv+k}, v{sc+k}, v{sc+4+k}, s[100:101]" for k in range(4)]
            o += [f"v_cvt_pk_bf16_f32 v{sv+k}, 0, v{sv+k}" for k in range(4)]
            o += [f"v_mul_f32 v{sv+k}, {SCALE}, v{sv+k}" for k in range(4)]
            o += [f"v_cvt_pk_bf16_f32 v{sv+k}, 0, v{sv+k}" for k in range(4)]
            o += [f"v_max3_f32 v{M2}, v{M2}, v{sv}, v{sv+1}", f"v_perm_b32 v{pk}, v{sv+1}, v{sv}, s26",
                  f"v_max3_f32 v{M2}, v{M2}, v{sv+2}, v{sv+3}", f"v_perm_b32 v{pk+1}, v{sv+3}, v{sv+2}, s26"]
            return o
        emit(interleave(qb, pre(SC, S, PK), {3: 1, 4: 3, 5: 3, 6: 3}))
        emit(pre(SC2, S2, PK + 2))
        a(f"ds_write_b128 v{A_SB}, v[{PK}:{PK+3}] offset:{SB}")
        a(f"v_add_u32 v{A_SB}, 1024, v{A_SB}")
        a("s_cmp_lt_u32 s11, s25")
        a("s_cbranch_scc1 L_c_kk")
        stamp(7)
        emit(row_list("v_max_f32", M2, (8,)) + cross_list("v_max_f32", M2, 15))
        a(f"v_mul_f32 v{M2}, s12, v{M2}")
        a(f"v_add_u32 v{A_SB}, v6, v1")
        a("s_lshl_b32 s25, s25, 1")
        a("L_c_vv:")
        a(f"ds_read_b128 v[{PK}:{PK+3}], v{A_SB} offset:{SB}")
        a(f"v_add_u32 v{A_SB}, 1024, v{A_SB}")
        slot_base(5, "s99")
        a("s_sub_u32 s5, s5, 8192")
        v_addr()
        a("s_add_u32 s10, s10, 4")
        a("s_add_u32 s99, s99, 1")
        a("s_add_u32 s11, s11, 1")
        a("s_waitcnt lgkmcnt(0)")
        for h, sv in enumerate((S, S2)):
            for k in range(2):
                a(f"v_lshlrev_b32 v{sv+2*k}, 16, v{PK+2*h+k}")
                a(f"v_and_b32 v{sv+2*k+1}, 0xffff0000, v{PK+2*h+k}")
        for sv in (S, S2):
            for k in range(4): a(f"v_fma_f32 v{sv+k}, v{sv+k}, s12, -v{M2}")
        need("s10")
        v_reads()
        v_reads(VF2, 8192)
        for sv in (S, S2):
            for k in range(4): a(f"v_exp_f32 v{sv+k}, v{sv+k}")
        for sv, pp in ((S, P), (S2, P2)):
            a(f"v_cvt_pk_bf16_f32 v{pp}, v{sv}, v{sv+1}")
            a(f"v_cvt_pk_bf16_f32 v{pp+1}, v{sv+2}, v{sv+3}")
        for k in range(4): a(f"v_add_f32 v{S+k}, v{S+k}, v{S2+k}")
        for pp in (P, P2):
            a(f"v_mov_b32_dpp v{pp+2}, v{pp} row_ror:8 {DPP}")
            a(f"v_mov_b32_dpp v{pp+3}, v{pp+1} row_ror:8 {DPP}")
        a(f"v_add_f32 v{S}, v{S}, v{S+1}")
        a(f"v_add_f32 v{S+2}, v{S+2}, v{S+3}")
        a("s_waitcnt lgkmcnt(0)")
        progress("s99")
        pv()
        pv(VF2, P2)
        a(f"v_add_f32 v{S}, v{S}, v{S+2}")
        a(f"v_add_f32 v{LS}, v{LS}, v{S}")
        a("s_cmp_lt_u32 s11, s25")
        a("s_cbranch_scc1 L_c_vv")
        a("s_add_u32 s10, s10, 2")
        a("s_cmp_lt_u32 s11, s97")
        a("s_cbranch_scc1 L_c_k")
        stats()
        a("s_branch L_c_pub")
    else:
        a("s_add_u32 s10, s10, 2")
        a("s_mov_b32 s11, 0")
        a("s_branch L_c_k")
    a("L_c_fast:")
    slot_base(5, "s99")
    a("s_add_u32 s99, s99, 1")
    slot_base(4, "s99")
    v_addr()
    v_reads()
    k_reads()
    sm = softmax_list(); i = sm.index("MARK")
    emit(sm[:i])
    a("s_waitcnt lgkmcnt(0)")
    progress("s99")
    rest = sm[i + 1:]; q = qk_list()
    pos = {0: 1, 1: 0, 2: 1, 4: 0, 5: 2, 9: 1, 12: 1, 16: 1, 20: 1}
    for j, x in enumerate(rest):
        for _ in range(pos.get(j, 0)): a(q.pop(0))
        a(x)
    assert not q
    pv()
    a("L_c_top:")
    a("s_add_u32 s11, s11, 1")
    a("s_add_u32 s10, s10, 4")
    a("s_cmp_ge_u32 s11, s97")
    a("s_cbranch_scc1 L_c_slow")
    a("s_cmp_ge_u32 s96, s10")
    a("s_cbranch_scc1 L_c_fast")
    refresh()
    a("s_cmp_ge_u32 s96, s10")
    a("s_cbranch_scc1 L_c_fast")
    a("L_c_slow:")
    if stamps or probe or leak: stamp(8)
    slot_base(5, "s99")
    v_addr()
    emit([x for x in softmax_list() if x != "MARK"])
    stats()
    if stamps or probe or leak: stamp(9)
    need("s6")
    v_reads()
    a("s_add_u32 s99, s99, 1")
    a("s_cmp_ge_u32 s11, s97")
    a("s_cbranch_scc1 L_c_last")
    a("s_waitcnt lgkmcnt(0)")
    pv()
    progress("s99")
    a("L_c_k:")
    need("s10")
    slot_base(4, "s99")
    k_reads()
    q = qk_list()
    for j in range(8):
        if not (stamps or probe or leak): a(f"s_waitcnt lgkmcnt({7-j})")
        elif j == 0: a("s_waitcnt lgkmcnt(0)")
        a(q[j])
    a("s_branch L_c_top")
    a("L_c_last:")
    if sig1 is not None and s1pos == "last": a(f"ds_add_u32 v{A1}, v{ONE} offset:{PCNT}")
    a("s_waitcnt lgkmcnt(0)")
    pv()
    progress("s99")
    a("L_c_pub:")
    for k in range(4): a(f"v_mov_b32_dpp v{AO+k}, v{AO+4+k} row_ror:8 row_mask:0xf bank_mask:0xc")
    for k in range(4):
        a(f"v_mul_f32 v{AO+k}, v{RL}, v{AO+k}")
    apply_tag(AO, [TO, TO + 1, TO + 2, LB])
    for k in range(4): a(f"ds_bpermute_b32 v{AO+k}, v{A_PERM}, v{AO+k}")
    a("s_waitcnt lgkmcnt(0)")
    if "o" not in abl: a(f"buffer_store_dwordx4 v[{AO}:{AO+3}], v{A_OP}, s[48:51], s44 offen {ost}")
    if sig1 is not None and s1pos == "store": a(f"ds_add_u32 v{A1}, v{ONE} offset:{PCNT}")
    stamp(10)
    PD, WF, BF, WA = 64, 32, 96, 88
    a("s_lshl_b32 s99, s99, 2")
    a("s_add_u32 s22, s99, s3")
    a("s_add_u32 s22, s22, 8")
    a("s_add_u32 s23, s22, 4")
    for st in range(2):
        a(f"s_sub_u32 s4, s{22+st}, 1")
        a("s_and_b32 s4, s4, 31")
        a("s_lshl_b32 s4, s4, 12")
        for u in range(4):
            a(f"v_xor_b32 v14, {32*u}, v{TA}")
            a(f"v_add_u32 v{WA+4*st+u}, s4, v14")
    def wo_reads(st):
        for u in range(4):
            for t in range(2):
                d = WF + 8 * u + 4 * st + 2 * t
                a(f"ds_read_b64_tr_b16 v[{d}:{d+1}], v{WA+4*st+u} offset:{t*2048}")
    stamp(11)
    assert gate >= 15 - (win // 4 - 1)
    a(f"s_add_u32 s10, s99, {gate}")
    need("s10", count=False)
    stamp(14)
    def o_loads():
        for i in range(0 if "g" in abl else 4):
            a(f"buffer_load_dwordx4 v[{PD+4*i}:{PD+4*i+3}], v{A_G}, s[48:51], s{16+i} offen {old_}")
    if sig1 is not None:
        a(f"ds_read_b32 v14, v1 offset:{GO}")
        a("s_waitcnt lgkmcnt(0)")
        a("v_readfirstlane_b32 s4, v14")
        a("s_cmp_eq_u32 s4, 0")
        a("s_cbranch_scc1 L_o_notyet")
    o_loads()
    need("s22", count=False)
    wo_reads(0)
    need("s23", count=False)
    wo_reads(1)
    a(f"s_mov_b32 s60, {spin_limit}")
    if sigpos != "chk":
        a(f"s_waitcnt vmcnt({0 if sigpos == 'arr' else 3})")
        a(f"ds_add_u32 v{A1}, v{ONE} offset:{GCNT}")
    a("L_o_chk:")
    fill = tag_list(range(PD, PD + 16, 4), 12, n=3)
    a("s_waitcnt vmcnt(2)")
    a(f"v_perm_b32 v16, v{PD+7}, v{PD+3}, s20")
    a("s_waitcnt vmcnt(0)")
    chain = [f"v_perm_b32 v17, v{PD+15}, v{PD+11}, s20", "v_perm_b32 v16, v17, v16, s21",
             f"v_mov_b32_dpp v17, v16 quad_perm:[1,0,3,2] {DPP}", f"v_perm_b32 v16, v17, v16, v{SEL1}",
             f"v_mov_b32_dpp v17, v16 quad_perm:[2,3,0,1] {DPP}", f"v_perm_b32 v18, v17, v16, v{SEL2}",
             f"v_max_f32_dpp v16, v18, v18 row_ror:1 {DPP}"] + row_list("v_max_f32", 16, (2, 4, 8)) + cross_list("v_max_f32", 16, 17)
    fill += ["s_nop 0", f"v_or_b32_dpp v12, v12, v12 quad_perm:[1,0,3,2] {DPP}", "s_nop 0", f"v_or_b32_dpp v12, v12, v12 quad_perm:[2,3,0,1] {DPP}"]
    emit(interleave(chain, fill, {1: 2, 3: 2, 5: 2, 6: 2, 7: 2, 8: 2, 10: 2, 13: 2}))
    a("v_cmp_ne_u32 vcc, 0, v12")
    a("v_sub_f32 v18, v18, v16")
    a("v_exp_f32 v18, v18")
    if "o" not in abl and "c" not in abl: a("s_cbranch_vccnz L_o_again")
    a("L_o_done:")
    if sig2 and sigpos == "chk": a(f"ds_add_u32 v{A1}, v{ONE} offset:{GCNT}")
    stamp(12)
    fm = [f"v_mul_f32_dpp v{20+k}, v18, v{PD+k} quad_perm:[0,0,0,0] {DPP}" for k in range(4)]
    for i in range(1, 4):
        fm += [f"v_fmac_f32_dpp v{20+k}, v18, v{PD+4*i+k} quad_perm:[{i},{i},{i},{i}] {DPP}" for k in range(4)]
    wsum = [f"v_add_f32_dpp v16, v18, v18 row_ror:1 {DPP}"] + row_list("v_add_f32", 16, (2, 4, 8)) + cross_list("v_add_f32", 16, 17) + ["v_rcp_f32 v16, v16"]
    red = ["v_permlane32_swap_b32 v20, v22", "v_permlane32_swap_b32 v21, v23", "v_add_f32 v20, v20, v22", "v_add_f32 v21, v21, v23",
           "v_permlane16_swap_b32 v20, v21", "v_add_f32 v20, v20, v21"] + row_list("v_add_f32", 20, (4, 8))
    emit(interleave(fm + red, wsum, {3: 1, 7: 1, 11: 1, 15: 2, 19: 2, 21: 1, 22: 2}))
    a("v_mul_f32 v20, v20, v16")
    a("v_cvt_pk_bf16_f32 v20, v20, v20")
    a(f"ds_write_b16 v{A_OL}, v20 offset:{OL}")
    a(f"ds_add_u32 v{A1}, v{ONE} offset:{OCNT}")
    a(f"s_mov_b32 s60, {spin_limit}")
    a("L_x:")
    a(f"ds_read_b32 v12, v1 offset:{OCNT}")
    for u in range(4):
        for st in range(2):
            d = BF + 8 * u + 4 * st
            a(f"ds_read_b128 v[{d}:{d+3}], v{A_M+u} offset:{64*st}")
    a("s_sub_u32 s60, s60, 1")
    a("s_waitcnt lgkmcnt(0)" if (stamps or probe or leak) else "s_waitcnt lgkmcnt(8)")
    a("v_readfirstlane_b32 s61, v12")
    a("s_cselect_b32 s61, -1, s61")
    a("s_cmp_lt_u32 s61, 4")
    a("s_cbranch_scc1 L_x")
    for u in range(4):
        for st in range(2):
            if not (stamps or probe or leak): a(f"s_waitcnt lgkmcnt({7-2*u-st})")
            c = "0" if u + st == 0 else f"v[{ACC}:{ACC+3}]"
            a(f"v_mfma_f32_16x16x32_bf16 v[{ACC}:{ACC+3}], v[{WF+8*u+4*st}:{WF+8*u+4*st+3}], v[{BF+8*u+4*st}:{BF+8*u+4*st+3}], {c}")
    setexec(0x000f000f, 0x000f000f)
    apply_tag(ACC)
    a(f"buffer_store_dwordx4 v[{ACC}:{ACC+3}], v{A_SP}, s[48:51], s45 offen sc1")
    stamp(13)
    dump_stamps(12, 13)
    a("s_endpgm")
    if sig1 is not None:
        a("L_o_notyet:")
        need("s22", count=False)
        wo_reads(0)
        need("s23", count=False)
        wo_reads(1)
        lds_spin(GO, 1, 12, 0)
        o_loads()
        a(f"s_mov_b32 s60, {spin_limit}")
        a("s_branch L_o_chk")
    a("L_o_again:")
    a("s_sub_u32 s60, s60, 1")
    a("s_cbranch_scc1 L_o_done")
    if osleep: a(f"s_sleep {osleep}")
    a("s_mov_b64 exec, vcc")
    o_loads()
    a("s_mov_b64 exec, -1")
    a("s_branch L_o_chk")

    role[0] = "H"
    a("L_helper:")
    srd(56, 34, 2048)
    a("v_mov_b32 v12, 1")
    a("s_waitcnt lgkmcnt(0)")
    a("s_mov_b64 exec, 1")
    a(f"ds_add_u32 v1, v12 offset:{QCNT}")
    a("s_mov_b64 exec, -1")
    make_tag()
    wd_row(4)
    a("s_mul_i32 s4, s4, 896")
    a(f"s_add_u32 s8, s4, {GP}")
    a("s_add_u32 s9, s8, 0x10000")
    a("v_add_u32 v14, -2, v5")
    a("v_cmp_gt_u32 vcc, 14, v5")
    a("v_cndmask_b32 v14, v14, v5, vcc")
    a("v_lshlrev_b32 v15, 4, v14")
    a("v_lshl_add_u32 v15, v4, 14, v15")
    a("v_lshlrev_b32 v14, 3, v14")
    a("v_lshl_add_u32 v14, v4, 1, v14")
    a("v_add_u32 v14, v14, v1")
    leak_flag()
    if leak:
        for x in leak:
            if x[0] == "H" and x[1]: a(f"s_mov_b32 s{64+2*x[1]}, 0")
    if hstart: need(hstart, sleep=8)
    else: lds_spin(QCNT, 7 if early_t else 5, 12, 8)
    stamp(1)
    L = a.label("L_h"); D = a.label("L_hd")
    a(f"s_mov_b32 s60, {spin_limit}")
    a(f"{L}:")
    for w in range(0 if "h" in abl else 4):
        a(f"buffer_load_dwordx4 v[{32+8*w}:{35+8*w}], v15, s[48:51], s8 offen offset:{224*w} sc1")
        a(f"buffer_load_dwordx4 v[{36+8*w}:{39+8*w}], v15, s[48:51], s9 offen offset:{224*w} sc1")
    a("s_waitcnt vmcnt(0)")
    tag_check(range(32, 64, 4), 12, quad=False)
    if "h" in abl: a("s_mov_b64 vcc, 0")
    retry_masked(L, D, 16)
    stamp(2)
    G8 = list(range(32, 64, 4)); G4 = G8[::2]
    for step in ("v_permlane32_swap_b32 v{r}, v{r2}", "v_permlane32_swap_b32 v{r1}, v{r3}", "v_add_f32 v{r}, v{r}, v{r2}",
                 "v_add_f32 v{r1}, v{r1}, v{r3}", "v_permlane16_swap_b32 v{r}, v{r1}", "v_add_f32 v{r}, v{r}, v{r1}",
                 "v_cvt_pk_bf16_f32 v{r}, 0, v{r}"):
        for r in G8: a(step.format(r=r, r1=r + 1, r2=r + 2, r3=r + 3))
    for step in ("v_mul_f32 v{t}, 0xbfb8aa3b, v{g}", "v_exp_f32 v{t}, v{t}", "v_add_f32 v{t}, 1.0, v{t}", "v_rcp_f32 v{t}, v{t}",
                 "v_mul_f32 v{t}, v{t}, v{g}", "v_cvt_pk_bf16_f32 v{g}, 0, v{t}", "v_mul_f32 v{g}, v{g}, v{u}",
                 "v_cvt_pk_bf16_f32 v{g}, v{g}, v{g}"):
        for g in G4: a(step.format(g=g, t=g + 1, u=g + 4))
    for w, g in enumerate(G4): a(f"ds_write_b16 v14, v{g} offset:{HL+112*w}")
    a("s_and_b32 s4, s2, 7")
    a("s_lshr_b32 s5, s2, 6")
    a("s_lshl_b32 s5, s5, 3")
    a("s_or_b32 s4, s4, s5")
    a("s_lshl_b32 s4, s4, 1")
    a("s_bfe_u32 s5, s2, 0x10005")
    a("s_add_u32 s4, s4, s5")
    if sig2:
        a("s_lshl_b32 s5, s4, 10")
        a(f"s_add_u32 s5, s5, {AC2}")
        a("s_add_u32 s52, s38, s5")
        a("s_addc_u32 s53, s39, 0")
        a("s_lshl_b32 s47, s13, 2")
        a("s_add_u32 s47, s47, 64")
    a(f"s_lshl_b32 s5, s4, {6+sw}")
    for i in range(8 if fatom else 4): a(f"s_add_u32 s{20+i}, s5, {SP + i*RSS}")
    a("s_lshl_b32 s5, s4, 6")
    a(f"s_add_u32 s45, s5, {FP}")
    a("s_lshr_b32 s46, s4, 2")
    a("s_lshl_b32 s46, s46, 7")
    a("s_and_b32 s5, s4, 3")
    a("s_lshl_b32 s5, s5, 3")
    a("s_add_u32 s46, s46, s5")
    a("v_lshrrev_b32 v12, 2, v0")
    a("v_and_b32 v13, 3, v0")
    a(f"v_mul_u32_u24 v19, {RS}, v12")
    if fatom:
        a(f"v_mul_u32_u24 v18, {8*RSS}, v2")
        a("v_lshl_add_u32 v18, v3, 3, v18")
        a("v_bfe_i32 v23, v0, 1, 1")
        a(f"v_and_b32 v23, {TAGX}, v23")
        a("v_xor_b32 v23, s13, v23")
        a("v_and_b32 v16, 1, v0")
        a("v_lshlrev_b32 v16, 4, v16")
        a("v_lshrrev_b32 v16, v16, v23")
        a("v_lshrrev_b32 v17, 8, v16")
        a("v_lshrrev_b32 v23, 5, v0")
        a("v_and_b32 v100, 1, v0")
        a("v_lshl_add_u32 v23, v100, 1, v23")
        a("v_bfe_u32 v100, v0, 1, 2")
        a("v_lshlrev_b32 v101, 6, v23")
        a("v_lshl_add_u32 v101, v100, 2, v101")
        a("v_lshlrev_b32 v23, 1, v23")
        a("v_lshl_add_u32 v23, v100, 5, v23")
    else:
        a(f"v_mul_u32_u24 v18, {4*RSS}, v12")
        a("v_lshl_add_u32 v18, v13, 4, v18")
    a("v_lshl_add_u32 v19, v13, 4, v19")
    a("v_lshlrev_b32 v20, 5, v13")
    a("v_lshl_add_u32 v20, v4, 1, v20")
    if fatom: a("v_mov_b32 v20, v23")
    a("buffer_load_ushort v22, v20, s[40:43], s46 offen")
    wd_row(4)
    a(f"s_mul_i32 s4, s4, {RS}")
    wd_col(5)
    a("s_lshl_b32 s5, s5, 8")
    a("s_add_u32 s4, s4, s5")
    a(f"s_add_u32 s15, s4, {FP}")
    a("v_lshlrev_b32 v21, 4, v5")
    a("v_lshl_add_u32 v21, v4, 6, v21")
    tr_addr(TA)
    for u in range(4): a(f"v_xor_b32 v{28+u}, {32*u}, v{TA}")
    a("v_lshl_add_u32 v14, v4, 4, v1")
    a("v_and_b32 v12, 1, v0")
    a("v_cmp_eq_u32 s[8:9], 1, v12")
    a("v_and_b32 v12, 2, v0")
    a("v_cmp_eq_u32 s[6:7], 2, v12")
    CA = 64; HF = 48
    for k in range(16): a(f"v_mov_b32 v{CA+k}, 0")
    stamp(3)
    L = a.label("L_nt"); D = a.label("L_ntd")
    a(f"s_mov_b32 s60, {spin_limit}")
    a(f"{L}:")
    refresh()
    a(f"s_cmp_lg_u32 s97, {BIG}")
    a(f"s_cbranch_scc1 {D}")
    a("s_sleep 4")
    a("s_sub_u32 s60, s60, 1")
    a(f"s_cbranch_scc0 {L}")
    a(f"{D}:")
    light_test()
    a("s_cselect_b32 s10, 2, 6")
    a("s_add_u32 s10, s10, s97")
    a("s_lshl_b32 s10, s10, 2")
    a("s_mov_b32 s11, 0")
    need("s10", sleep=2)
    a("s_setprio 2")
    a("L_h_step:")
    a("s_and_b32 s4, s10, 31")
    a("s_lshl_b32 s4, s4, 12")
    for u in range(4): a(f"v_add_u32 v{24+u}, s4, v{28+u}")
    a(f"ds_read_b128 v[{HF}:{HF+3}], v14 offset:{HL}")
    a("v_add_u32 v14, 64, v14")
    a("s_add_u32 s10, s10, 1")
    need("s10")
    stamp(4)
    for u in range(4):
        for t in range(2):
            d = 32 + 4 * u + 2 * t
            a(f"ds_read_b64_tr_b16 v[{d}:{d+1}], v{24+u} offset:{t*2048}")
    for u in range(4):
        if not (stamps or probe or leak): a(f"s_waitcnt lgkmcnt({6-2*u})")
        elif u == 0: a("s_waitcnt lgkmcnt(0)")
        a(f"v_mfma_f32_16x16x32_bf16 v[{CA+4*u}:{CA+4*u+3}], v[{32+4*u}:{35+4*u}], v[{HF}:{HF+3}], v[{CA+4*u}:{CA+4*u+3}]")
    a("s_add_u32 s11, s11, 1")
    a("s_cmp_lt_u32 s11, 7")
    a("s_cbranch_scc1 L_h_step")
    for k in range(4): a(f"v_cndmask_b32 v{CA+k}, v{CA+k}, v{CA+4+k}, s[8:9]")
    for k in range(4): a(f"v_cndmask_b32 v{CA+8+k}, v{CA+8+k}, v{CA+12+k}, s[8:9]")
    for k in range(4): a(f"v_cndmask_b32 v{CA+k}, v{CA+k}, v{CA+8+k}, s[6:7]")
    apply_tag(CA)
    setexec(0x000f000f, 0x000f000f)
    a(f"buffer_store_dwordx4 v[{CA}:{CA+3}], v21, s[48:51], s15 offen sc1")
    a("s_mov_b64 exec, -1")
    a("s_setprio 0")
    stamp(5)
    a("s_and_b32 s4, s2, 0x18")
    a("s_cbranch_scc1 L_hend")
    def f_math():
        treduce4(96)
        emit(row_list("v_add_f32", 96, (4, 8)))
        bf16r(96, 96)
        silu_bf16(96, 96, 12)
        a("v_lshlrev_b32 v22, 16, v22")
    if flate:
        lds_spin(GCNT, 4, 12, 1)
        a("buffer_load_dwordx4 v[96:99], v19, s[48:51], s45 offen sc1")
    else:
        a("s_add_u32 s10, s10, 8")
        need("s10", sleep=1)
        L = a.label("L_f"); D = a.label("L_fd")
        a(f"s_mov_b32 s60, {spin_limit}")
        a(f"{L}:")
        a("buffer_load_dwordx4 v[96:99], v19, s[48:51], s45 offen sc1")
        a("s_waitcnt vmcnt(0)")
        tag_check([96], 12)
        retry_masked(L, D, 2)
        stamp(12)
        f_math()
    if sig2:
        a(f"s_mov_b32 s60, {spin_limit}")
        a("L_h_watch:")
        for k in range(4): a(f"s_load_dword s{28+k}, s[52:53], {256*k} glc")
        a("s_sub_u32 s60, s60, 1")
        a("s_cbranch_scc1 L_h_go")
        a("s_waitcnt lgkmcnt(0)")
        a("s_add_u32 s28, s28, s29")
        a("s_add_u32 s30, s30, s31")
        a("s_add_u32 s28, s28, s30")
        a("s_cmp_lg_u32 s28, s47")
        a("s_cbranch_scc1 L_h_watch")
        a("L_h_go:")
    else:
        lds_spin(OCNT, 4, 12, 1)
    def s_loads():
        for i in range(4):
            a(f"buffer_load_dwordx4 v[{80+4*i}:{83+4*i}], v18, s[48:51], s{20+i} offen sc1")
    s_loads()
    stamp(6)
    if flate:
        L = a.label("L_f"); D = a.label("L_fd")
        a(f"s_mov_b32 s60, {spin_limit}")
        a("s_waitcnt vmcnt(4)")
        a("s_branch L_f_chk")
        a(f"{L}:")
        a("buffer_load_dwordx4 v[96:99], v19, s[48:51], s45 offen sc1")
        a("s_waitcnt vmcnt(0)")
        a("L_f_chk:")
        tag_check([96], 12)
        retry_masked(L, D, 0)
        f_math()
    a(f"s_mov_b32 s60, {spin_limit}")
    a("L_s_chk:")
    tl = tag_list([80, 84, 88, 92], 12)
    a("s_waitcnt vmcnt(3)")
    emit(tl[0:4])
    a("s_waitcnt vmcnt(2)")
    emit(tl[4:8])
    for k in range(4): a(f"v_add_f32 v{100+k}, v{80+k}, v{84+k}")
    a("s_waitcnt vmcnt(1)")
    emit(tl[8:12])
    for k in range(4): a(f"v_add_f32 v{100+k}, v{100+k}, v{88+k}")
    a("s_waitcnt vmcnt(0)")
    for k in range(4): a(f"v_add_f32 v{100+k}, v{100+k}, v{92+k}")
    red = ["v_permlane32_swap_b32 v100, v102", "v_permlane32_swap_b32 v101, v103", "v_add_f32 v100, v100, v102", "v_add_f32 v101, v101, v103",
           "v_permlane16_swap_b32 v100, v101", "v_add_f32 v100, v100, v101"] + row_list("v_add_f32", 100, (4, 8))
    a(tl[12])
    emit(interleave(red, tl[13:] + join_list(12), {3: 2, 5: 2, 6: 1}))
    a("v_cmp_ne_u32 vcc, 0, v12")
    bf16r(100, 100)
    a("v_mul_f32 v100, v100, v96")
    a("s_cbranch_vccnz L_s_again")
    a("L_s_done:")
    stamp(13)
    bf16r(100, 100)
    a("v_add_f32 v100, v100, v22")
    a("v_cvt_pk_bf16_f32 v80, v100, v100")
    setexec(0x000f000f, 0x000f000f)
    if leak:
        a("s_cmp_lg_u32 s95, 0")
        a("s_cselect_b32 s58, 0, s58")
    a(f"buffer_store_short v80, v20, s[56:59], s46 offen{outsc}")
    stamp(14)
    a("s_cmp_eq_u32 s2, 0")
    a("s_cbranch_scc0 L_hend")
    a("s_mov_b64 exec, 1")
    a(f"s_mov_b32 s4, {EPOCH}")
    a(f"buffer_store_dword v{TG}, v0, s[48:51], s4 offen{outsc}")
    if leak:
        a("v_mov_b32 v12, 0x600df00d")
        a("buffer_store_dword v12, v0, s[48:51], s4 offen offset:4")
    a("L_hend:")
    dump_stamps(12, 13)
    if late is not None:
        a("s_mov_b64 exec, 0xff")
        a("s_lshl_b32 s4, s2, 7")
        a("s_add_u32 s4, s4, 0x800000")
        a(f"buffer_store_dwordx4 v[8:11], v6, s[48:51], s4 offen {late}")
    a("s_endpgm")

    a("L_s_again:")
    a("s_sub_u32 s60, s60, 1")
    a("s_cbranch_scc1 L_s_done")
    a("s_mov_b64 exec, vcc")
    s_loads()
    a("s_mov_b64 exec, -1")
    a("s_branch L_s_chk")

    role[0] = "T"
    a("L_ticket:")
    assert two
    a("s_cmp_lg_u32 s3, 6")
    a("s_cbranch_scc1 L_t_noent")
    pool_id(11)
    pool_member(6)
    if two:
        assert npool == 4 and dyn % 2 == 0 and lex % 2 == 0
        light_test()
        a(f"s_cselect_b32 s9, {lex // 2}, 0")
        a(f"s_add_u32 s8, s9, {dyn // 2}")
        a("v_subrev_u32 v15, s8, v0")
        a("v_cmp_gt_u32 s[100:101], s8, v0")
        a("v_cndmask_b32 v28, v15, v0, s[100:101]")
        a("s_lshl_b32 s4, s9, 4")
        a("s_sub_u32 s6, s6, s4")
        a("v_lshl_add_u32 v15, v28, 4, s6")
        a("s_bfe_u32 s4, s2, 0x10002")
        a(f"s_add_u32 s4, s4, {mem * dyn // 2}")
        a("v_lshl_add_u32 v31, v28, 1, s4")
        a("v_cmp_gt_u32 vcc, s9, v28")
        a("v_cndmask_b32 v15, v15, v31, vcc")
        a(f"s_mul_i32 s6, s11, {prot}")
        a("v_lshl_add_u32 v15, v15, 1, s6")
        a("v_and_b32 v15, 255, v15")
        a("s_lshl_b32 s7, s11, 21")
        a("v_lshl_add_u32 v15, v15, 13, s7")
        a("v_cndmask_b32 v28, 4, 8, s[100:101]")
        a("v_or_b32 v15, v15, v28")
        a("s_lshl_b32 s9, s9, 1")
    a("v_or_b32 v15, 1, v15")
    a("v_lshl_add_u32 v14, v0, 2, v1")
    if lex:
        a(f"s_add_u32 s9, s9, {dyn}")
        a("s_bfm_b64 exec, s9, 0")
    else:
        a(f"s_mov_b64 exec, {(1 << dyn) - 1}")
    a(f"ds_write_b32 v14, v15 offset:{TQ}")
    a("s_mov_b64 exec, -1")
    a("L_t_noent:")
    if otouch:
        a("s_cmp_lg_u32 s3, 7")
        a("s_cbranch_scc1 L_t_notouch2")
        need(otouch[0], sleep=8, count=False)
        a(f"s_mul_i32 s4, s2, {RSO}")
        a(f"s_add_u32 s4, s4, {OP}")
        if otouch[1] == "r":
            a("v_lshlrev_b32 v14, 7, v0")
            a("s_mov_b32 exec_hi, 0")
            a("buffer_load_dword v17, v14, s[48:51], s4 offen")
            a("s_mov_b64 exec, -1")
        else:
            for k in range(4): a(f"v_not_b32 v{20+k}, s13")
            for k in range(4): a(f"buffer_store_dwordx4 v[20:23], v6, s[48:51], s4 offen offset:{1024*k} sc1")
        a("L_t_notouch2:")
    pool_id(11)
    if stouch:
        a("s_cmp_lg_u32 s3, 7")
        a("s_cbranch_scc1 L_t_notouch")
        k = [64]
        def tch(p, off, imm=0):
            if imm: a(f"s_add_u32 s{off}, s{off}, {imm}")
            a(f"s_load_dword s{k[0]}, s[{p}:{p+1}], s{off}")
            k[0] += 1
        if "g" in stouch:
            a(f"s_mul_i32 s6, s14, {256*7168}")
            tch(28, 6); tch(30, 6); tch(28, 6, 255 * 7168); tch(30, 6)
        if "k" in stouch:
            a("s_lshl_b32 s6, s11, 21")
            tch(18, 6); tch(20, 6)
        if "t" in stouch:
            if "d" in stouch: need(40, sleep=8, count=False)
            wd_row(6)
            a(f"s_mul_i32 s6, s6, {224*2048}")
            tch(32, 6); tch(32, 6, 223 * 2048)
            rr_cc(6, 7)
            a("s_lshl_b32 s6, s6, 17")
            tch(24, 6)
        if "w" in stouch:
            a(f"s_mov_b32 s6, {0x280000}")
            tch(38, 6)
        a("s_waitcnt lgkmcnt(0)")
        a("L_t_notouch:")
    if kmap in "DEFGH":
        if kmap == "F":
            a("s_lshr_b32 s9, s11, 1")
            a("s_lshl_b32 s12, s9, 4")
            a("s_lshl_b32 s9, s9, 22")
            a("s_mov_b32 s8, s11")
        else:
            a(f"s_mul_i32 s12, s11, {prot}")
            a("s_lshl_b32 s9, s11, 21")
        a(f"s_add_u32 s12, s12, {mem*dyn + 2*lex}")
        a("s_or_b32 s9, s9, 1")
        if kmap == "H":
            a("s_and_b32 s8, s11, 3")
            a("s_and_b32 s9, s11, 12")
    elif kmap == "C":
        a(f"s_and_b32 s12, s11, {npool-1}")
        a("s_lshr_b32 s9, s2, 6")
        a(f"s_mul_i32 s4, s9, {rot}")
        a("s_add_u32 s12, s12, s4")
        a("s_lshl_b32 s12, s12, 13")
        a(f"s_add_u32 s12, s12, {64*dyn*8192 + 1}")
        a("s_lshl_b32 s9, s9, 23")
    else:
        a(f"s_mul_i32 s12, s11, {reg*8192}")
        a(f"s_add_u32 s12, s12, {mem*dyn*8192 + 1}")
    a(f"s_mul_i32 s11, s11, {cstride}")
    a(f"s_add_u32 s11, s11, {TCN}")
    a("s_add_u32 s56, s38, s11")
    a("s_addc_u32 s57, s39, 0")
    a(f"s_add_u32 s10, s3, {dyn - 6}")
    if lex:
        light_test()
        a(f"s_cselect_b32 s4, {lex}, 0")
        a("s_add_u32 s10, s10, s4")
    if early_t:
        a("s_waitcnt lgkmcnt(0)")
        a("s_add_u32 s13, s13, 0x01010101")
        a(f"s_xor_b32 s14, s13, {TAGX}")
        a("v_mov_b32 v12, 1")
        a("s_mov_b64 exec, 1")
        a(f"ds_add_u32 v1, v12 offset:{QCNT}")
        pool_member(6)
        a("s_add_u32 s6, s6, s3")
        a("s_cmp_lg_u32 s6, 6")
        a("s_cbranch_scc1 L_t_noinit")
        a("v_mov_b32 v20, 0")
        a("v_mov_b32 v21, s13")
        a("v_mov_b32 v22, s14")
        a("v_mov_b32 v23, s13")
        a("buffer_store_dwordx4 v[20:23], v0, s[48:51], s11 offen sc1")
        a("L_t_noinit:")
        a("s_mov_b64 exec, -1")
        a(f"s_sub_u32 s11, s10, {ahead}")
        a("s_max_i32 s11, s11, 0")
        light_test()
        a("s_cselect_b32 s4, 4, 14")
        need("s4", sleep=4, count=False)
        a(f"s_mov_b32 s60, {spin_limit}")
        a("L_t_rdy:")
        a("s_load_dwordx4 s[28:31], s[56:57], 0 glc")
        a("s_sub_u32 s60, s60, 1")
        a("s_cbranch_scc1 L_t_next")
        a("s_waitcnt lgkmcnt(0)")
        a("s_xor_b32 s29, s29, s13")
        a("s_xor_b32 s30, s30, s14")
        a("s_xor_b32 s31, s31, s13")
        a("s_or_b32 s29, s29, s30")
        a("s_or_b32 s29, s29, s31")
        a("s_cbranch_scc0 L_t_next")
        a("s_sleep 8")
        a("s_branch L_t_rdy")
    else:
        lds_spin(QCNT, 5, 12, 8)
    if touch:
        a("s_cmp_eq_u32 s3, 6")
        a("s_cselect_b64 s[40:41], s[32:33], s[24:25]")
        a("s_cselect_b32 s42, 7340032, s43")
        a("s_cselect_b32 s42, s42, 8388608")
        a("s_cselect_b64 exec, 0x7f, 3")
        rr_cc(6, 7)
        a("s_lshl_b32 s6, s6, 17")
        a("s_lshr_b32 s7, s2, 4")
        a(f"s_mul_i32 s7, s7, {224*2048}")
        a("s_cmp_eq_u32 s3, 6")
        a("s_cselect_b32 s6, s7, s6")
        a("v_lshlrev_b32 v14, 16, v0")
        a("buffer_load_dword v17, v14, s[40:43], s6 offen nt")
        a("s_mov_b64 exec, -1")
    a("L_t_next:")
    a(f"s_sub_u32 s11, s10, {ahead - 1}")
    lds_spin(STARTED, "s11", 12, tsleep)
    a("s_mov_b32 s15, 1")
    a("s_atomic_add s15, s[56:57], 0 glc")
    a("s_lshl_b32 s4, s10, 2")
    a("v_add_u32 v14, s4, v1")
    a("s_waitcnt lgkmcnt(0)")
    if not empt: a(f"s_min_u32 s15, s15, {nshared-1}")
    if kmap in "DEFGH":
        if kmap == "H":
            a("s_add_u32 s5, s15, s8")
            a("s_and_b32 s5, s5, 3")
            a("s_or_b32 s5, s5, s9")
            a("s_and_b32 s4, s15, -4")
            a("s_add_u32 s4, s4, s8")
            a(f"s_add_u32 s4, s4, {mem*dyn}")
            a("s_lshl4_add_u32 s4, s5, s4")
        else:
            a("s_add_u32 s4, s15, s12")
        a("s_and_b32 s4, s4, 255")
        if kmap == "F":
            a("s_lshr_b32 s5, s4, 7")
            a("s_xor_b32 s5, s5, s8")
            a("s_and_b32 s5, s5, 1")
            a("s_lshl_b32 s4, s4, 1")
            a("s_add_u32 s4, s4, s5")
        a("s_lshl_b32 s4, s4, 13")
        if kmap == "H":
            a("s_lshl_b32 s5, s5, 21")
            a("s_add_u32 s4, s4, s5")
            a("s_or_b32 s4, s4, 1")
        else:
            a("s_add_u32 s4, s4, s9")
    else:
        a(f"s_lshl_b32 s4, s15, {13 + (lgp if kmap == 'C' else 0)}")
        a("s_add_u32 s4, s4, s12")
    if kmap == "C":
        a("s_and_b32 s4, s4, 0x7fffff")
        a("s_add_u32 s4, s4, s9")
    if ztab:
        tab = sum(g << (4 * i) for i, g in enumerate(ztab))
        a(f"s_sub_u32 s5, s15, {zone}")
        a("s_and_b32 s5, s5, 0x1c")
        a(f"s_lshr_b32 s5, {tab}, s5")
        a("s_and_b32 s5, s5, 15")
        a("s_lshl_b32 s5, s5, 4")
        a("s_or_b32 s4, s4, s5")
    if wide:
        a(f"s_cmp_ge_u32 s15, {max(0, zone - wide[1])}")
        a("s_cselect_b32 s5, 16, 0")
        a("s_or_b32 s4, s4, s5")
    if empt:
        a(f"s_cmp_lt_u32 s15, {nshared}")
        a("s_cselect_b32 s4, s4, 0")
    a(f"s_add_u32 s10, s10, {ntw}")
    a(f"s_cmp_lt_u32 s15, {zone}")
    a("s_cselect_b32 s5, 0, 2")
    a("v_mov_b32 v15, s4")
    a("v_or_b32 v15, s5, v15")
    a(f"ds_write_b32 v14, v15 offset:{TQ}")
    a("s_cbranch_scc1 L_t_next")
    if sig1 is not None or sig2:
        L = a.label("L_nt"); D = a.label("L_ntd")
        a(f"s_mov_b32 s60, {spin_limit}")
        a(f"{L}:")
        refresh()
        a(f"s_cmp_lg_u32 s97, {BIG}")
        a(f"s_cbranch_scc1 {D}")
        a("s_sleep 2")
        a("s_sub_u32 s60, s60, 1")
        a(f"s_cbranch_scc0 {L}")
        a(f"{D}:")
        light_test()
        a("s_cselect_b32 s10, 2, 6")
        a("s_add_u32 s10, s10, s97")
        a("s_lshl_b32 s10, s10, 2")
        a("s_cmp_eq_u32 s3, 6")
        a("s_cbranch_scc1 L_t_zero")
    if rk:
        pool_id(6)
        a("s_lshr_b32 s4, s6, 2")
        a("s_lshl_b32 s7, s4, 14")
        if not rkgrp:
            a("s_and_b32 s5, s6, 3")
            a("s_lshl_b32 s8, s5, 8")
            a("s_add_u32 s7, s7, s8")
        a(f"s_add_u32 s7, s7, {AC1}")
        a("s_add_u32 s56, s38, s7")
        a("s_addc_u32 s57, s39, 0")
        a("s_mov_b32 s15, 1")
        a(f"s_add_u32 s11, s10, {rkat & 0xffffffff}")
        need("s11", sleep=1)
        a("s_atomic_add s15, s[56:57], 0 glc")
        tab = sum(g << (2 * i) for i, g in enumerate(rk))
        a(f"s_mov_b32 s6, {tab}")
        a("s_waitcnt lgkmcnt(0)")
        if rkgrp: a("s_lshr_b32 s15, s15, 2")
        a("s_lshl_b32 s15, s15, 1")
        a("s_lshr_b32 s6, s6, s15")
        a("s_and_b32 s6, s6, 3")
        a("v_mov_b32 v15, s6")
        a(f"ds_write_b32 v1, v15 offset:{GATE}")
    if sig1 is not None:
        pool_id(6)
        a("s_lshr_b32 s4, s6, 2")
        a("s_and_b32 s5, s6, 3")
        a("s_lshl_b32 s7, s4, 14")
        a("s_lshl_b32 s8, s5, 8")
        a("s_add_u32 s7, s7, s8")
        a(f"s_add_u32 s7, s7, {AC1}")
        a("s_add_u32 s56, s38, s7")
        a("s_addc_u32 s57, s39, 0")
        a("s_mov_b32 s15, 1")
        a("s_sub_u32 s11, s10, 2")
        need("s11", sleep=1)
        lds_spin(PCNT, sig1, 12, 0)
        for i in range(16): a(f"s_atomic_add s15, s[56:57], {1024*i}")
    if sig1 is not None or sig2:
        a("s_endpgm")
        a("L_t_zero:")
        rr_cc(6, 7)
    if sig1 is not None:
        a("s_lshl_b32 s5, s6, 10")
        a(f"s_add_u32 s5, s5, {AC1}")
        a("s_add_u32 s56, s38, s5")
        a("s_addc_u32 s57, s39, 0")
        a("v_mov_b32 v15, 1")
        a(f"s_add_u32 s11, s10, {s1from}")
        need("s11", sleep=1)
        L = a.label("L_w"); D = a.label("L_wd")
        a(f"s_mov_b32 s60, {spin_limit}")
        a(f"{L}:")
        for k in range(4): a(f"s_load_dword s{28+k}, s[56:57], {256*k} glc")
        a("s_waitcnt lgkmcnt(0)")
        a("s_add_u32 s28, s28, s29")
        a("s_add_u32 s30, s30, s31")
        a("s_add_u32 s28, s28, s30")
        a("s_cmp_eq_u32 s28, 64")
        a(f"s_cbranch_scc1 {D}")
        a("s_sub_u32 s60, s60, 1")
        a(f"s_cbranch_scc0 {L}")
        a(f"{D}:")
        a(f"ds_write_b32 v1, v15 offset:{GO}")
    if sig2:
        a("s_lshl_b32 s7, s7, 14")
        a("s_lshr_b32 s5, s2, 6")
        a("s_lshl_b32 s5, s5, 8")
        a("s_add_u32 s7, s7, s5")
        a(f"s_add_u32 s7, s7, {AC2}")
        a("v_mov_b32 v15, 1")
        a("v_lshlrev_b32 v14, 10, v0")
        a("s_add_u32 s10, s10, 15")
        need("s10", sleep=1)
        lds_spin(OCNT if sig2late else GCNT, gneed, 12, 0)
        a("s_mov_b64 exec, 0xffff")
        a("buffer_atomic_add v15, v14, s[48:51], s7 offen sc1")
    a("L_end:")
    a("s_endpgm")
    a("L_codeend:")
    name = NAME + "_kernel"
    hdr = open("cdna_kernels/" + NAME + ".s.ref").read().split("; Override launch")[0]
    txt = hdr + header([f"@launch grid=(256,1,1) block=({64*(6+ntw)},1,1) lds={LDS_BYTES}"]) + (DOC if comments else "") + kernel_begin(name) + a.text() + rodata() + \
        kernel_desc(name, 184, 102, extra="  .amdhsa_float_denorm_mode_32 3\n")
    return txt

BASE = dict(gate=13, sig2=True, dyn=12, lex=2, empt=12, flate=True, qstart=32, qlight=24, hstart=64, grow=(8, 32), two=True, dmap=True, fw=(1, 1), cmap="qu")
if __name__ == "__main__":
    open("final.s", "w").write(gen(comments=True, **BASE))
    open("k34.s", "w").write(gen(**BASE))
    V = {"k34": {}, "k34b": {}, "k35a": dict(sig1=4, s1pos="store", s1from=9), "k35ab": dict(sig1=4, s1pos="store", s1from=9),
         "k35l": dict(sig1=4, s1pos="last", s1from=9), "k35f11": dict(sig1=4, s1pos="store", s1from=11), "k35g11": dict(sig1=4, s1pos="store", s1from=7, gate=11),
         "k35ai": dict(sig1=4, s1pos="store", s1from=9, gui=True, ush=1, lex=4, empt=16)}
    for k, v in V.items():
        v = dict(BASE, **v)
        open(k + "_lt.s", "w").write(gen(lite=True, **v))
        open(k + "_st.s", "w").write(gen(stamps=True, **v))
    open("z_pl.s", "w").write(gen(probe=("L", 0, 0), **BASE))
    open("z_sc.s", "w").write(gen(probe=("L", 0, 0), outsc=" sc1", **BASE))
```

```python
import sys
from asmlib import *

QP, GP, CNT, OCN, EPOCH, SP, FP, OP, STAMP = 0, 0x10000, 0x30000, 0x34000, 0x3F000, 0x40000, 0xD0000, 0x100000, 0x400000
MISC = 0x20000
TQ, STARTED, GATE, GCNT, PCNT = 0x1100, 0x21C, 0x220, 0x224, 0x228
POST, PROG, QCNT, OCNT, GO, ZER, XN, HL, OL, QL = 0, 0x200, 0x210, 0x214, 0x218, 0x240, 0x300, 0x500, 0x700, 0x800
QROW = 272
SCR = 0x1700
SB = 0x1B00
LDS_BYTES = MISC + 0x3B00
TCN, AC1, AC2 = 0x340000, 0x390000, 0x3A0000
LOG2E = 0x3fb8aa3b
SCALE = 0x3db504f3
DPP = "row_mask:0xf bank_mask:0xf"
BIG = -1
TAGX = 0x5ac3a569

DOC = """
; out = x + (attn(LN(x)) @ wo) * silu(swiglu(LN(x))), one launch, one 8-wave workgroup per CU (all 256 are resident).
;
;
; Hand-offs between workgroups go through d_ws with write-through stores (sc1) and sc1 loads:
;   f partials [16][1024], all fp32. Each 16-byte granule carries this launch's tag in the low byte of its words and
;   is only accepted together with the neighbours stored by the same instruction. The tag is the word found at
;   The counters in d_ws (tickets, arrival hints) are reset inside the launch before the q hand-off that precedes their use.
"""

def interleave(chain, fill, gaps):
    out = []; fill = list(fill)
    for i, x in enumerate(chain):
        out.append(x)
        for _ in range(gaps.get(i, 0)):
            if fill: out.append(fill.pop(0))
    return out + fill

def gen(nt="nt", stamps=False, spin_limit=2000000, win=24, dyn=10, npool=4, outsc="", gate=10, skew=128, vtick=False,
        fsleep=0, osleep=1, qsleep=4, probe=None, cgate=False, early=True, ahead=2, ntw=2, cstride=256, late=None, gtab=None, ztab=None, wtab=None, spw=False, opw=False, fatom=False, leak=None, fine=False, wins=None, csleep=0, pace=0, pnop=0, cpf=True, sig1=None, sig2=False, touch=False, sig2late=False, lite=False, half=False, dup2=False, kmap='E', rot=0, early_t=False, empt=0, spos=0, abl='', win1=None, n1=9, hstart=0, qstart=0, sigpos='chk', gneed=4, flate=False, qlight=None, lex=0, gumix=False, w2=False, rk=None, rk0=4, rkgrp=False, rkat=-5, grow=None, tsleep=1, shardrd=False, s1pos='last', s1from=9, two=False, prot=16, dmap=False, fw=None, stouch=None, ofirst=True, pfn=None, comments=False, otouch=None, ost='sc1', old_='sc1', sched=None, wide=None, cmap='', ush=28, gui=False, lv=None):
    a = Asm()
    a.comments = comments
    sw = 1 if spw else 0
    ow = 1 if opw else 0
    RS = 4096 + skew
    RSS = (4096 << sw) + skew
    RSO = (4096 << ow) + skew
    NT = " " + nt if nt else ""
    role = ["-"]
    def stamp(k):
        if lite and (k == 0 or (role[0], k) == ("H", 14)): a(f"s_memrealtime s[{64+2*k}:{65+2*k}]")
        if stamps or (leak and (k == 0 or (role[0], k) in [x[:2] for x in leak])): a(f"s_memrealtime s[{64+2*k}:{65+2*k}]")
        if probe and (k == 0 or (role[0], k) == probe[:2]): a(f"s_memrealtime s[{64+2*min(k,1)}:{65+2*min(k,1)}]")
    def leak_out():
        if not leak: return
        mine = [(i, x) for i, x in enumerate(leak) if x[0] == role[0]]
        Ln = a.label("L_noleak")
        a("s_waitcnt lgkmcnt(0)")
        srd(48, 38, 268435456)
        a("s_mov_b64 exec, 1")
        a("s_cmp_eq_u32 s93, 0")
        a(f"s_cbranch_scc1 {Ln}")
        for i, x in mine:
            if len(x) > 2:
                Ls = a.label("L_lk")
                a(f"s_cmp_lg_u32 s3, {x[2]}")
                a(f"s_cbranch_scc1 {Ls}")
            a(f"s_and_b32 s4, s{64+2*x[1]}, 0x3fff")
            a("v_mov_b32 v12, s4")
            a("s_lshl_b32 s4, s2, 3")
            a(f"s_add_u32 s4, s4, {2*i + 0x500000}")
            a("buffer_store_short v12, v0, s[48:51], s4 offen")
            if len(x) > 2: a(f"{Ls}:")
        a(f"{Ln}:")
        if role[0] == "H":
            Ln = a.label("L_noleak")
            a("s_cmp_eq_u32 s95, 0")
            a(f"s_cbranch_scc1 {Ln}")
            srd(52, 34, 2048)
            a("s_lshl_b32 s4, s2, 3")
            a("s_add_u32 s5, s4, 0x500000")
            a("buffer_load_dwordx2 v[12:13], v0, s[48:51], s5 offen")
            a("s_waitcnt vmcnt(0)")
            a("buffer_store_dwordx2 v[12:13], v0, s[52:55], s4 offen")
            a(f"{Ln}:")
    def leak_flag():
        if not leak: return
        a(f"s_load_dword s95, s[38:39], {EPOCH+4}")
        a("s_load_dword s94, s[16:17], 0")
        a("s_waitcnt lgkmcnt(0)")
        a("s_cmp_lg_u32 s95, 0x600df00d")
        a("s_cselect_b32 s93, 1, 0")
        a("s_cselect_b32 s95, 0, 1")
        a("s_cmp_lg_u32 s94, 0x3c6e3d96")
        a("s_cselect_b32 s95, s95, 0")
        a("s_cmp_lg_u32 s94, 0x3a3abc25")
        a("s_cselect_b32 s95, s95, 0")
    def probe_pad():
        if not probe or probe[0] != role[0]: return
        def until(base, lim):
            L = a.label("L_pp")
            a(f"{L}:")
            a("s_sleep 1")
            a("s_memrealtime s[70:71]")
            a("s_waitcnt lgkmcnt(0)")
            a(f"s_sub_u32 s70, s70, {base}")
            a(f"s_cmp_lt_u32 s70, {lim}")
            a(f"s_cbranch_scc1 {L}")
        a("s_waitcnt lgkmcnt(0)")
        a("s_cmp_eq_u32 s67, -1")
        a("s_cselect_b32 s66, s64, s66")
        a("s_cselect_b32 s69, 1, 0")
        until("s64", 2200)
        a("s_not_b32 s72, s64")
        a("s_atomic_umax s72, s[36:37], 0")
        until("s64", 3200)
        a("s_load_dword s72, s[36:37], 0 glc")
        a("s_waitcnt lgkmcnt(0)")
        a("s_not_b32 s72, s72")
        a("s_sub_u32 s66, s66, s72")
        if len(probe) > 3:
            a("s_atomic_add s66, s[36:37], 128")
            until("s64", 4400)
            a("s_load_dword s66, s[36:37], 128 glc")
            a("s_waitcnt lgkmcnt(0)")
            a("s_lshr_b32 s66, s66, 8")
        if probe[2] < 0 and probe[1]:
            a("s_cmp_eq_u32 s69, 1")
            a("s_cbranch_scc1 L_end")
        a(f"s_mul_i32 s66, s66, {probe[2]}")
        a(f"s_add_u32 s68, s66, {6000 if probe[2] >= 0 else 20000}")
        if lv:
            srd(48, 38, 268435456)
            kind, sc = lv
            a("s_and_b32 s4, s2, 7"); a("s_lshr_b32 s5, s2, 5")
            if kind in ("cur",):
                a("s_lshr_b32 s6, s5, 1"); a("s_lshl_b32 s6, s6, 3"); a("s_or_b32 s6, s6, s4"); a("s_lshl_b32 s6, s6, 1")
                a("s_and_b32 s5, s5, 1"); a("s_add_u32 s6, s6, s5")
            else:
                a("s_lshr_b32 s6, s5, 2"); a("s_lshl_b32 s6, s6, 3"); a("s_or_b32 s6, s6, s4"); a("s_lshl_b32 s6, s6, 2")
                a("s_and_b32 s5, s5, 3"); a("s_add_u32 s6, s6, s5")
            a("s_lshr_b32 s7, s6, 2"); a("s_lshl_b32 s7, s7, 7"); a("s_and_b32 s6, s6, 3")
            a(f"s_lshl_b32 s8, s6, {3 if kind in ('cur', 'one') else 5}")
            a("s_add_u32 s7, s7, s8"); a("s_add_u32 s7, s7, 0x800000")
            a("v_and_b32 v13, 3, v0"); a("v_lshlrev_b32 v20, 5, v13"); a("v_lshl_add_u32 v20, v4, 1, v20")
            a("v_lshlrev_b32 v21, 2, v0"); a("v_lshlrev_b32 v22, 1, v0")
        until("s72", "s68")
        if lv:
            a("s_and_b32 s4, s2, 0x18")
            a("s_cbranch_scc1 L_end")
            if kind in ("cur", "one"):
                setexec(0x000f000f, 0x000f000f)
                a(f"buffer_store_short v0, v20, s[48:51], s7 offen {sc}")
            elif kind == "c32":
                a("s_mov_b64 exec, 0xff")
                a(f"buffer_store_dword v0, v21, s[48:51], s7 offen {sc}")
            elif kind == "s32":
                a("s_mov_b64 exec, 0xffff")
                a(f"buffer_store_short v0, v22, s[48:51], s7 offen {sc}")
            elif kind == "full":
                a("s_cmp_lg_u32 s6, 0")
                a("s_cbranch_scc1 L_end")
                a("s_mov_b32 exec_hi, 0")
                a(f"buffer_store_dword v0, v21, s[48:51], s7 offen {sc}")
    def dump_stamps(vt, va):
        probe_pad()
        leak_out()
        if not (stamps or (lite and role[0] == "H")): return
        a("s_waitcnt lgkmcnt(0)")
        a("s_mov_b64 exec, -1")
        a(f"v_mov_b32 v{vt}, 0")
        for k in range(16):
            a(f"v_writelane_b32 v{vt}, s{64+2*k}, {k}")
        a("s_lshl_b32 s4, s2, 3")
        a("s_add_u32 s4, s4, s3")
        a("s_lshl_b32 s4, s4, 6")
        a(f"s_add_u32 s4, s4, {STAMP}")
        a(f"v_lshlrev_b32 v{va}, 2, v0")
        a("s_mov_b64 exec, 0xffff")
        a(f"buffer_store_dword v{vt}, v{va}, s[48:51], s4 offen")
    def srd(d, p, n):
        a(f"s_mov_b64 s[{d}:{d+1}], s[{p}:{p+1}]")
        a(f"s_mov_b32 s{d+2}, {n}")
        a(f"s_mov_b32 s{d+3}, 0x20000")
    def setexec(lo, hi):
        a(f"s_mov_b32 exec_lo, {lo:#x}")
        a(f"s_mov_b32 exec_hi, {hi:#x}")
    def row_list(op, r, steps=(1, 2, 4, 8)):
        return [f"{op}_dpp v{r}, v{r}, v{r} row_ror:{k} {DPP}" for k in steps]
    def cross_list(op, r, t):
        return [f"v_mov_b32 v{t}, v{r}", f"v_permlane16_swap_b32 v{r}, v{t}", f"{op} v{r}, v{r}, v{t}",
                f"v_mov_b32 v{t}, v{r}", f"v_permlane32_swap_b32 v{r}, v{t}", f"{op} v{r}, v{r}, v{t}"]
    def emit(l):
        for x in l: a(x)
    def bf16r(d, s):
        a(f"v_cvt_pk_bf16_f32 v{d}, 0, v{s}")
    TG = 8
    def make_tag():
        a("s_add_u32 s13, s13, 0x01010101")
        a("s_movk_i32 s63, 0xff")
        a("v_bfe_i32 v12, v0, 0, 1")
        a(f"v_and_b32 v12, {TAGX}, v12")
        a(f"v_xor_b32 v{TG}, s13, v12")
        for k in range(1, 4): a(f"v_lshrrev_b32 v{TG+k}, {8*k}, v{TG}")
    def apply_tag(r, tags=None):
        for k in range(4): a(f"v_bfi_b32 v{r+k}, s63, v{tags[k] if tags else TG+k}, v{r+k}")
    def tag_list(grans, t, n=4):
        o = []
        for g in grans:
            for k in range(n):
                if not o: o.append(f"v_xor_b32 v{t}, v{g+k}, v{TG+k}")
                else: o.append(f"v_bitop3_b32 v{t}, v{t}, v{g+k}, v{TG+k} bitop3:0xf6")
        o.append(f"v_and_b32 v{t}, 0xff, v{t}")
        return o
    def join_list(t, quad=True):
        o = [f"v_or_b32_dpp v{t}, v{t}, v{t} quad_perm:[1,0,3,2] {DPP}"]
        if quad: o.append(f"v_or_b32_dpp v{t}, v{t}, v{t} quad_perm:[2,3,0,1] {DPP}")
        return o
    def tag_check(grans, t, quad=True):
        emit(tag_list(grans, t) + join_list(t, quad))
        a(f"v_cmp_ne_u32 vcc, 0, v{t}")
    def treduce4(r):
        a(f"v_permlane32_swap_b32 v{r}, v{r+2}")
        a(f"v_permlane32_swap_b32 v{r+1}, v{r+3}")
        a(f"v_add_f32 v{r}, v{r}, v{r+2}")
        a(f"v_add_f32 v{r+1}, v{r+1}, v{r+3}")
        a(f"v_permlane16_swap_b32 v{r}, v{r+1}")
        a(f"v_add_f32 v{r}, v{r}, v{r+1}")
    def retry_masked(L, D, sleep=1):
        a("s_and_b64 exec, exec, vcc")
        a(f"s_cbranch_execz {D}")
        if sleep: a(f"s_sleep {sleep}")
        a("s_sub_u32 s60, s60, 1")
        a(f"s_cbranch_scc0 {L}")
        a(f"{D}:")
        a("s_mov_b64 exec, -1")
    def silu_bf16(d, x, t):
        a(f"v_mul_f32 v{t}, 0xbfb8aa3b, v{x}")
        a(f"v_exp_f32 v{t}, v{t}")
        a(f"v_add_f32 v{t}, 1.0, v{t}")
        a(f"v_rcp_f32 v{t}, v{t}")
        a(f"v_mul_f32 v{t}, v{t}, v{x}")
        bf16r(d, t)
    def lds_spin(off, n, vt, sleep=1):
        L = a.label("L_spin")
        a(f"s_mov_b32 s60, {spin_limit}")
        if sleep:
            E = a.label("L_spe")
            a(f"s_branch {E}")
        a(f"{L}:")
        if sleep:
            a(f"s_sleep {sleep}")
            a(f"{E}:")
        a(f"ds_read_b32 v{vt}, v1 offset:{off}")
        a("s_sub_u32 s60, s60, 1")
        a("s_waitcnt lgkmcnt(0)")
        a(f"v_readfirstlane_b32 s61, v{vt}")
        a("s_cselect_b32 s61, -1, s61")
        a(f"s_cmp_lt_u32 s61, {n}")
        a(f"s_cbranch_scc1 {L}")
    def refresh():
        a(f"ds_read_b64 v[12:13], v1 offset:{POST}")
        a("s_waitcnt lgkmcnt(0)")
        a("v_readfirstlane_b32 s96, v12")
        a("v_readfirstlane_b32 s97, v13")
    def need(x, sleep=0, count=True):
        if role[0] == "C": sleep = csleep
        L = a.label("L_need"); D = a.label("L_got")
        a(f"s_cmp_ge_u32 s96, {x}")
        a(f"s_cbranch_scc1 {D}")
        a(f"s_mov_b32 s60, {spin_limit}")
        a(f"{L}:")
        if sleep: a(f"s_sleep {sleep}")
        a(f"ds_read_b64 v[12:13], v1 offset:{POST}")
        a("s_sub_u32 s60, s60, 1")
        a("s_waitcnt lgkmcnt(0)")
        a("v_readfirstlane_b32 s96, v12")
        if count: a("v_readfirstlane_b32 s97, v13")
        a("s_cselect_b32 s96, -1, s96")
        if count: a("s_cselect_b32 s97, 0, s97")
        a(f"s_cmp_lt_u32 s96, {x}")
        a(f"s_cbranch_scc1 {L}")
        a(f"{D}:")
    def light_test():
        a("s_and_b32 s4, s2, 63")
        a("s_cmp_ge_u32 s4, 56")
    def wq_col(d):
        if "q" in cmap:
            a(f"s_lshr_b32 s{d}, s2, 3")
            a("s_lshl_b32 s4, s2, 1")
            a("s_and_b32 s4, s4, 8")
            a(f"s_xor_b32 s{d}, s{d}, s4")
            a(f"s_xor_b32 s{d}, s{d}, 4")
            a(f"s_and_b32 s{d}, s{d}, 15")
            a("s_lshr_b32 s4, s2, 6")
            a(f"s_lshl4_add_u32 s{d}, s4, s{d}")
        else: a(f"s_lshr_b32 s{d}, s2, 2")
    def up_shift(d, c, unit):
        if "u" in cmap:
            a(f"s_mov_b32 s{d}, {ush * unit}")
            a(f"s_cmp_ge_u32 s{c}, {56 - ush}")
            a(f"s_cselect_b32 s{d}, {((ush - 56) * unit) & 0xffffffff}, s{d}")
        else: a(f"s_mov_b32 s{d}, 0")
    def gu_col(d):
        if "g" in cmap:
            a("s_lshr_b32 s4, s2, 6")
            a("s_bfe_u32 s5, s2, 0x10002")
            a("s_lshl1_add_u32 s4, s4, s5")
            a("s_mul_i32 s4, s4, 7")
            a("s_bfe_u32 s5, s2, 0x30003")
            a(f"s_add_u32 s{d}, s4, s5")
            return
        if gumix:
            a("s_lshr_b32 s4, s2, 6")
            a("s_and_b32 s5, s2, 60")
            a(f"s_add_u32 s{d}, s4, s5")
            return
        a("s_lshr_b32 s4, s2, 6")
        a("s_mul_i32 s4, s4, 56")
        a("s_and_b32 s5, s2, 63")
        a("s_add_u32 s4, s4, s5")
        a(f"s_lshr_b32 s{d}, s4, 2")
    def wd_row(d):
        if dmap:
            a("s_lshr_b32 s62, s2, 7")
            a("s_lshl_b32 s62, s62, 3")
            a(f"s_and_b32 s{d}, s2, 7")
            a(f"s_or_b32 s{d}, s{d}, s62")
        else: a(f"s_lshr_b32 s{d}, s2, 4")
    def wd_col(d):
        if dmap: a(f"s_bfe_u32 s{d}, s2, 0x40003")
        else: a(f"s_and_b32 s{d}, s2, 15")
    def rr_cc(srr, scc):
        a(f"s_and_b32 s{srr}, s2, 7")
        a("s_lshr_b32 s62, s2, 5")
        a("s_lshl_b32 s62, s62, 3")
        a(f"s_or_b32 s{srr}, s{srr}, s62")
        a(f"s_bfe_u32 s{scc}, s2, 0x20003")
    lgp = npool.bit_length() - 1
    def pool_id(d):
        a("s_lshr_b32 s5, s2, 3")
        a("s_add_u32 s5, s5, s2")
        a(f"s_and_b32 s5, s5, {npool-1}")
        a("s_lshr_b32 s4, s2, 6")
        a(f"s_lshl_b32 s4, s4, {lgp}")
        a(f"s_add_u32 s{d}, s4, s5")
    def pool_member(d):
        a("s_bfe_u32 s5, s2, 0x30003")
        a(f"s_lshr_b32 s5, s5, {lgp}")
        a("s_lshl_b32 s5, s5, 3")
        a("s_and_b32 s4, s2, 7")
        a(f"s_add_u32 s{d}, s5, s4")
    def tr_addr(d):
        a("v_lshrrev_b32 v12, 2, v5")
        a("v_lshl_add_u32 v13, v4, 2, v12")
        a("v_bfe_u32 v12, v13, 1, 2")
        a("v_lshlrev_b32 v12, 5, v12")
        a("v_lshl_add_u32 v12, v13, 7, v12")
        a("v_and_b32 v13, 3, v0")
        a(f"v_lshl_add_u32 v{d}, v13, 3, v12")
    def slot_base(d, slot):
        a(f"s_and_b32 s{d}, {slot}, 7")
        a(f"s_lshl_b32 s{d}, s{d}, 14")

    a("s_cmp_ge_u32 s2, 256")
    a("s_cbranch_scc1 L_end")
    a("s_load_dwordx16 s[16:31], s[0:1], 0")
    a("s_load_dwordx8 s[32:39], s[0:1], 64")
    stamp(0)
    if probe: a("s_mov_b32 s67, -1")
    if cpf:
        a("s_getpc_b64 s[4:5]")
        a("L_pc:")
        a("v_subrev_u32 v12, 64, v0")
        a("v_mov_b32 v13, 0")
        a("v_cmp_gt_u32 vcc, (L_codeend-L_pc)/128, v12")
        a("v_lshlrev_b32 v12, 7, v12")
        a("s_and_saveexec_b64 s[6:7], vcc")
        a("s_cbranch_execz L_nopf")
        a("v_lshl_add_u64 v[12:13], v[12:13], 0, s[4:5]")
        a("global_load_dword v16, v[12:13], off offset:64")
        a("L_nopf:")
        a("s_mov_b64 exec, -1")
    a("v_cmp_gt_u32 vcc, 64, v0")
    a("v_lshrrev_b32 v1, 6, v0")
    a("v_and_b32 v0, 63, v0")
    a("v_lshrrev_b32 v2, 3, v0")
    a("v_and_b32 v3, 7, v0")
    a("v_lshrrev_b32 v4, 4, v0")
    a("s_and_b32 s14, s2, 3")
    a("s_mov_b32 s43, 0x20000")
    a("s_cbranch_vccz L_others")
    OTHERS_FIRST = ofirst
    def emit_others():
        a("L_others:")
        a("v_readfirstlane_b32 s3, v1")
        a("v_lshlrev_b32 v14, 5, v0")
        a("v_lshlrev_b32 v15, 3, v0")
        a("s_lshl_b32 s10, s14, 9")
        a("s_movk_i32 s42, 2048")
        a("s_xor_b32 s3, s3, 4")
        a("s_cmp_gt_u32 s3, 3")
        a(f"v_mov_b32 v1, {MISC}")
        for k in range(4): a(f"v_mov_b32 v{28+k}, 0")
        a("v_lshl_add_u32 v12, v0, 4, v1")
        a(f"ds_write_b128 v12, v[28:31] offset:{TQ}")
        a("v_lshl_add_u32 v13, v0, 2, v1")
        a(f"v_mov_b32 v27, {BIG}")
        a(f"ds_write_b32 v13, v30 offset:{PROG}")
        a(f"ds_write2_b32 v1, v30, v27 offset0:{POST//4} offset1:{POST//4+1}")
        a("s_waitcnt lgkmcnt(0)")
        a("s_mov_b64 s[40:41], s[16:17]")
        a(f"s_load_dword s13, s[38:39], {EPOCH}")
        a("s_cbranch_scc1 L_nox")
        a("buffer_load_dwordx4 v[56:59], v14, s[40:43], 0 offen")
        a("buffer_load_dwordx4 v[60:63], v14, s[40:43], 0 offen offset:16")
        a("buffer_load_dwordx2 v[64:65], v15, s[40:43], s10 offen")
        a("L_nox:")
        a("s_barrier")
        a("s_branch L_notloader")

    role[0] = "L"
    a("s_setprio 3")
    a("v_lshrrev_b32 v12, 5, v0")
    a("v_and_b32 v13, 3, v2")
    a("v_lshl_add_u32 v12, v12, 3, v13")
    a("v_lshlrev_b32 v13, 1, v4")
    a("v_xor_b32 v13, v13, v3")
    a("v_lshlrev_b32 v13, 4, v13")
    a("v_lshl_add_u32 v16, v12, 13, v13")
    a("s_lshl_b32 s8, s14, 21")
    wq_col(5)
    a("s_lshl_b32 s5, s5, 7")
    a("s_add_u32 s8, s8, s5")
    a("s_mov_b32 m0, 0")
    a("s_mov_b32 s42, 8388608")
    a("s_waitcnt lgkmcnt(0)")
    if fine: stamp(7)
    a("s_mov_b64 s[40:41], s[22:23]")
    def wloads(vo, stride):
        for i in range(4):
            ro = (16 * (i & 1) + 4 * (i >> 1)) * stride - 1024 * i
            if i: a(f"s_add_u32 s9, s8, {ro}")
            a(f"buffer_load_dwordx4 v{vo}, s[40:43], s{9 if i else 8} offen offset:{1024*i}{NT} lds")
        a(f"s_add_u32 s8, s8, {32*stride}")
        a("s_add_u32 m0, m0, 4096")
    a("L_ld_q:")
    wloads(16, 8192)
    a("s_cmp_lt_u32 m0, 0x8000")
    a("s_cbranch_scc1 L_ld_q")
    if fine: stamp(8)
    if ofirst:
        a("s_branch L_loader")
        emit_others()
    a("L_loader:")
    mem = 64 // npool; reg = 1024 // npool
    nshared = reg - mem * dyn - 2 * lex
    zone = nshared - ntw * mem + empt
    assert ntw == 2 and dyn + lex + 2 * (nshared + empt) + 4 <= 256
    a(f"v_mov_b32 v1, {MISC}")
    a("v_mov_b32 v30, 0")
    a(f"v_mov_b32 v31, {BIG}")
    a("s_barrier")
    if stamps:
        for k in range(1, 16):
            if not (fine and k in (7, 8)): a(f"s_mov_b32 s{64+2*k}, 0")
    stamp(1)
    pend = [None]; viamax = [False]
    def wait_post(w, defer=False):
        if defer and fw:
            pend[0] = w
            return
        if viamax[0]:
            a("v_add_u32 v39, 1, v39")
            a("v_max_i32 v30, v30, v39")
        else: a("v_add_u32 v30, 1, v30")
        a(f"s_waitcnt vmcnt({w})")
        a(f"ds_write_b64 v29, v[30:31] offset:{POST}")
    def unit(vo, srdn, so, step=4096):
        w = pend[0]; pend[0] = None
        for i in range(4):
            if w is not None and i % fw[1] == 0:
                if i == fw[0]: wait_post(w + fw[0])
                else: a(f"s_waitcnt vmcnt({w + fw[0]})")
            a(f"buffer_load_dwordx4 v{vo[i]}, s[{srdn}:{srdn+3}], s{so} offen offset:{1024*i}{NT} lds")
        a(f"s_add_u32 m0, m0, {step}" if step > 0 else f"s_sub_u32 m0, m0, {-step}")
        if pace: a(f"s_sleep {pace}")
    a("v_lshl_add_u32 v29, v0, 3, v1")
    VG, VD, VK, VV = [40, 41, 42, 43], [44, 45, 46, 47], [24, 25, 24, 25], [24, 25, 24, 25]
    a("s_movk_i32 s7, 7168")
    a(f"v_mad_u32_u24 v{VG[0]}, v12, s7, v13")
    for i in range(1, 4):
        a(f"v_add_u32 v{VG[i]}, {(16 * (i & 1) + 4 * (i >> 1)) * 7168 - 1024 * i}, v{VG[0]}")
    gu_col(6)
    if cmap: up_shift(12, 6, 128)
    a("s_lshl_b32 s6, s6, 7")
    a(f"s_mul_i32 s7, s14, {256*7168}")
    a("s_add_u32 s8, s7, s6")
    a("s_mov_b32 s42, 7340032")
    a("s_mov_b64 s[40:41], s[28:29]")
    a("s_mov_b32 s98, 2")
    a(f"s_cmp_ge_u32 s5, {7 if 'g' in cmap else 56}")
    w1 = win
    if fine: stamp(9)
    for w in range(28, w1 - 4, -4):
        wait_post(w)
        if fine: stamp(10 if w == 28 else 11)
    a("s_cbranch_scc1 L_ld_kv")
    a("s_add_u32 s12, s12, s8" if cmap else "s_mov_b32 s12, s8")
    if gui:
        srd(52, 30, 7340032)
        a("s_mov_b32 s98, 6")
        a("L_ld_gu2:")
        wait_post(w1 - 4, True)
        unit(VG, 40, 8, 0x8000)
        a(f"s_add_u32 s8, s8, {32*7168}")
        wait_post(w1 - 4, True)
        unit(VG, 52, 12, -0x7000)
        a(f"s_add_u32 s12, s12, {32*7168}")
        a("s_cmp_lt_u32 m0, 0x10000")
        a("s_cbranch_scc1 L_ld_gu2")
        a("s_mov_b32 m0, 0x18000")
    if not gui:
     a("s_mov_b32 s6, 0x10000")
     a("s_mov_b32 s98, 6")
     a("L_ld_gu:")
     wait_post(w1 - 4, True)
     unit(VG, 40, 8)
     a(f"s_add_u32 s8, s8, {32*7168}")
     a("s_cmp_lt_u32 m0, s6")
     a("s_cbranch_scc1 L_ld_gu")
     a("s_mov_b32 s8, s12")
     a("s_mov_b64 s[40:41], s[30:31]")
     a("s_mov_b32 s6, 0x18000")
     a("s_cmp_lt_u32 m0, s6")
     a("s_cbranch_scc1 L_ld_gu")
    a("L_ld_kv:")
    stamp(2)
    a(f"ds_read_b128 v[32:35], v1 offset:{PROG}")
    a(f"ds_read_b32 v37, v1 offset:{TQ}")
    a("v_mov_b32 v36, v1")
    a("v_and_b32 v5, 15, v0")
    for j in range(2):
        a(f"v_add_u32 v14, {4*j}, v4")
        a("v_lshlrev_b32 v14, 1, v14")
        a("v_xor_b32 v14, v14, v5")
        a("v_lshlrev_b32 v14, 4, v14")
        a(f"v_lshl_add_u32 v{VV[j]}, v4, 8, v14")
    srd(44, 18, 33554432)
    srd(48, 20, 33554432)
    a("s_mov_b32 s10, 0")
    a("s_mov_b32 s11, 0")
    a("s_mov_b32 s15, 0")
    if wide: a("s_mov_b32 s99, 0")
    a(f"s_mov_b32 s60, {spin_limit}")
    if stamps: a("s_memrealtime s[100:101]")
    a("s_branch L_ld_chk")
    if win1:
        assert n1 <= dyn - ahead
        a("L_ld_tile1:")
        a("s_and_b32 s8, s7, 0xffffe000")
        wait_post(w1 - 4, True)
        unit(VK, 44, 8)
        a("s_add_u32 s9, s8, 4096")
        a("s_add_u32 s11, s11, 1")
        a("v_mov_b32 v38, s11")
        wait_post(w1 - 4, True)
        unit(VK, 44, 9)
        a("v_lshl_add_u32 v36, v38, 2, v1")
        a("s_add_u32 s10, s10, 1")
        a("s_add_u32 s98, s98, 1")
        wait_post(w1 - 4, True)
        unit(VV, 48, 8)
        a(f"ds_read_b128 v[32:35], v1 offset:{PROG}")
        a(f"ds_read_b32 v37, v36 offset:{TQ}")
        wait_post(w1 - 4, True)
        unit(VV, 48, 9)
        a("s_and_b32 m0, m0, 0x1ffff")
        a(f"s_mov_b32 s60, {spin_limit}")
        a("L_ld_chk1:")
        a("s_waitcnt lgkmcnt(0)")
        a("v_min3_u32 v32, v32, v33, v34")
        a("v_readfirstlane_b32 s7, v37")
        a("v_min_u32 v32, v32, v35")
        a("s_sub_u32 s60, s60, 1")
        a("v_readfirstlane_b32 s4, v32")
        a("s_cselect_b32 s4, s98, s4")
        a("s_add_u32 s4, s4, 8")
        a("s_cmp_gt_u32 s4, s98")
        a("s_cbranch_scc1 L_ld_free1")
        a(f"ds_read_b128 v[32:35], v1 offset:{PROG}")
        a("s_branch L_ld_chk1")
        a("L_ld_free1:")
        a(f"s_cmp_lt_u32 s10, {n1}")
        a("s_cbranch_scc1 L_ld_tile1")
        for w in range(w1 - 4, win - 4, -4): wait_post(w)
    def peek():
        a(f"ds_read_b128 v[32:35], v1 offset:{PROG}")
        a(f"ds_read_b32 v37, v36 offset:{TQ}")
    def slot_body(wn):
        a("s_and_b32 s8, s7, 0xffffe000")
        if two:
            a("s_bitcmp1_b32 s7, 2")
            a("s_cselect_b64 s[44:45], s[20:21], s[18:19]")
        wait_post(wn - 4, True)
        unit(VK, 44, 8)
        a("s_add_u32 s9, s8, 4096")
        a("s_bfe_u32 s4, s7, 0x10001")
        a("s_and_b32 s5, s11, 1")
        a("s_lshl_b32 s4, s4, s5")
        a("s_or_b32 s15, s15, s4")
        a("s_add_u32 s11, s11, 1")
        a("s_xor_b32 s5, s5, 1")
        a("s_bitcmp1_b32 s15, s5")
        a("s_addc_u32 s11, s11, 0")
        a("v_mov_b32 v38, s11")
        if spos == 0: a(f"ds_write_b32 v1, v38 offset:{STARTED}")
        wait_post(wn - 4, True)
        unit(VK, 44, 9)
        if spos == 1: a(f"ds_write_b32 v1, v38 offset:{STARTED}")
        a("v_lshl_add_u32 v36, v38, 2, v1")
        a("s_add_u32 s10, s10, 1")
        a("s_cmp_eq_u32 s15, 3")
        a(f"s_cselect_b32 s4, s10, {BIG}")
        a("v_mov_b32 v31, s4")
        a("s_cselect_b32 s4, 4, 1")
        a("s_add_u32 s98, s98, s4")
        if two:
            a("s_bitcmp1_b32 s7, 3")
            a("s_cselect_b64 s[48:49], s[18:19], s[20:21]")
            a("s_and_b32 s4, s7, 12")
            a("s_cselect_b32 s4, 0x2000, 0")
            a("s_add_u32 s8, s8, s4")
            a("s_add_u32 s9, s9, s4")
        wait_post(wn - 4, True)
        unit(VV, 48, 8)
        if spos == 2: a(f"ds_write_b32 v1, v38 offset:{STARTED}")
        peek()
        wait_post(wn - 4, True)
        unit(VV, 48, 9)
        if spos == 3: a(f"ds_write_b32 v1, v38 offset:{STARTED}")
        a("s_and_b32 m0, m0, 0x1ffff")
        if stamps: a("s_memrealtime s[100:101]")
        a(f"s_mov_b32 s60, {spin_limit}")
    if wide:
        a("L_ld_wide0:")
        a(f"v_subrev_u32 v39, {wide[0] // 4}, v30")
        a("s_mov_b32 s99, 16")
        a("L_ld_wide:")
        viamax[0] = True
        slot_body(win + wide[0])
        viamax[0] = False
        a("s_branch L_ld_chk")
    a("L_ld_tile:")
    if wide:
        a("s_cmp_lg_u32 s99, 0")
        a("s_cbranch_scc1 L_ld_wide")
        a("s_bitcmp1_b32 s7, 4")
        a("s_cbranch_scc1 L_ld_wide0")
    slot_body(win)
    a("L_ld_chk:")
    a("s_waitcnt lgkmcnt(0)")
    a("v_min3_u32 v32, v32, v33, v34")
    a("v_readfirstlane_b32 s5, v37")
    a("v_min_u32 v32, v32, v35")
    a("s_cmp_eq_u32 s15, 3")
    a("v_readfirstlane_b32 s4, v32")
    a("s_cbranch_scc1 L_ld_end")
    a("s_add_u32 s4, s4, 8")
    a("s_cmp_gt_u32 s4, s98")
    a("s_cselect_b32 s7, s5, 0")
    a("s_bitcmp1_b32 s7, 0")
    if stamps:
        a("s_cbranch_scc0 L_ld_again")
        a("s_memrealtime s[62:63]")
        a("s_waitcnt lgkmcnt(0)")
        a("s_sub_u32 s62, s62, s100")
        a("s_add_u32 s88, s88, s62")
        a("s_max_u32 s90, s90, s62")
        a(f"s_cmp_eq_u32 s10, {dyn // 2}")
        a("s_cselect_b32 s78, s100, s78")
        a(f"s_cmp_eq_u32 s10, {dyn}")
        a("s_cselect_b32 s80, s100, s80")
        a("s_branch L_ld_tile")
    else:
        a("s_cbranch_scc1 L_ld_tile")
    a("L_ld_again:")
    if empt:
        a("s_cmp_eq_u32 s15, 3")
        a("s_cselect_b32 s5, 0, s5")
        a("s_cmp_lg_u32 s5, 2")
        a("s_cbranch_scc1 L_ld_peek")
        a("s_and_b32 s5, s11, 1")
        a("s_bitset1_b32 s15, s5")
        a("s_add_u32 s11, s11, 1")
        a("v_mov_b32 v32, s11")
        a("v_lshl_add_u32 v36, v32, 2, v1")
        a(f"ds_write_b32 v1, v32 offset:{STARTED}")
        a("s_cmp_eq_u32 s15, 3")
        a("s_cbranch_scc0 L_ld_peek")
        a("v_mov_b32 v31, s10")
        a("s_add_u32 s98, s98, 3")
        a("s_cmp_gt_u32 s4, s98")
        a("s_cbranch_scc1 L_ld_go")
        a("L_ld_peek:")
    peek()
    a("s_sub_u32 s60, s60, 1")
    a("s_cbranch_scc0 L_ld_chk")
    a("v_mov_b32 v30, 0x7fffffff")
    a("v_mov_b32 v31, s10")
    a(f"ds_write_b64 v29, v[30:31] offset:{POST}")
    a("s_endpgm")
    a("L_ld_end:")
    a("s_add_u32 s4, s4, 8")
    a("s_cmp_gt_u32 s4, s98")
    a("s_cbranch_scc0 L_ld_again")
    a("L_ld_go:")
    stamp(3)
    a(f"v_lshl_add_u32 v{VD[0]}, v12, 11, v13")
    for i in range(1, 4):
        a(f"v_add_u32 v{VD[i]}, {(16 * (i & 1) + 4 * (i >> 1)) * 2048 - 1024 * i}, v{VD[0]}")
    srd(52, 32, 7340032)
    wd_row(6)
    a(f"s_mul_i32 s96, s6, {224*2048}")
    wd_col(6)
    a("s_lshl_b32 s6, s6, 7")
    a("s_add_u32 s96, s96, s6")
    if stamps:
        a("s_add_u32 s92, s10, s64")
        a("s_add_u32 s88, s88, s64")
        a("s_add_u32 s90, s90, s64")
    if wide:
        a("s_cmp_eq_u32 s99, 0")
        a("s_cbranch_scc1 L_ld_narrow")
        for w in range(win + wide[0] - 4, win - 4, -4): wait_post(w)
        a("L_ld_narrow:")
    sch = dict(sched or ([(0, win), grow] if grow else [(0, win)]))
    infl = win // 4
    wn = win
    for k in range(15):
        wn = sch.get(k, wn)
        while infl > wn // 4:
            infl -= 1; wait_post(4 * infl)
        if infl == wn // 4: wait_post(wn - 4, True)
        else: infl += 1
        if k < 7:
            unit(VD, 52, 96)
            if k < 6: a("s_add_u32 s96, s96, 0x10000")
        else:
            unit(VD, 56, 97)
            if k < 14: a(f"s_add_u32 s97, s97, {0x10000 - 384 if k == 10 else 128}")
        if k % 4 == 3: a("s_and_b32 m0, m0, 0x1ffff")
        if k == 1: srd(56, 24, 8388608)
        if k == 2: rr_cc(6, 7)
        if k == 4:
            a("s_lshl_b32 s6, s6, 17")
            a("s_lshl_b32 s7, s7, 9")
            a("s_add_u32 s97, s6, s7")
        if k == 6: stamp(4)
    stamp(5)
    while infl > 0:
        infl -= 1; wait_post(4 * infl)
    stamp(6)
    a("L_ld_done:")
    if stamps:
        a("s_mov_b32 s3, 4")
        srd(48, 38, 268435456)
        a("s_getreg_b32 s94, hwreg(HW_REG_XCC_ID)")
        a("s_getreg_b32 s95, hwreg(HW_REG_HW_ID)")
        a("s_and_b32 s94, s94, 15")
        a("s_lshl_b32 s94, s94, 16")
        a("s_and_b32 s95, s95, 0xffff")
        a("s_or_b32 s94, s94, s95")
        a("s_or_b32 s94, s94, 0x1000000")
    dump_stamps(12, 13)
    a("s_endpgm")

    if not ofirst: emit_others()
    a("L_notloader:")
    if stamps or lite:
        for k in range(1, 16): a(f"s_mov_b32 s{64+2*k}, 0")
    a("v_and_b32 v5, 15, v0")
    a("v_lshlrev_b32 v6, 4, v0")
    srd(48, 38, 268435456)
    a("s_mov_b32 s96, 0")
    a(f"s_mov_b32 s97, {BIG}")
    a("s_cmp_eq_u32 s3, 5")
    a("s_cbranch_scc1 L_helper")
    a("s_cmp_gt_u32 s3, 5")
    a("s_cbranch_scc1 L_ticket")

    role[0] = "C"
    XF = 32
    AF = 64
    ACC = 80
    TA = 7
    a("s_setprio 1")
    tr_addr(TA)
    a("s_waitcnt lgkmcnt(0)")
    make_tag()
    a("s_waitcnt vmcnt(0)")
    stamp(1)
    pool_member(6)
    a("s_cmp_lg_u32 s6, 0")
    a("s_cbranch_scc1 L_nozero")
    pool_id(6)
    a("v_mov_b32 v12, 0")
    a("v_lshlrev_b32 v13, 10, v0")
    a(f"s_mul_i32 s7, s6, {cstride}")
    a(f"s_add_u32 s7, s7, {TCN}")
    a("s_mov_b64 exec, 1")
    if sig1 is not None or sig2:
        assert npool == 4
        a("s_cmp_eq_u32 s3, 0")
        a("s_cbranch_scc1 " + ("L_zeroed" if early_t else "L_dozero"))
        a("s_mov_b64 exec, 0xffff")
        a("s_lshr_b32 s4, s6, 2")
        a("s_and_b32 s5, s6, 3")
        if sig1 is not None or rk:
            a("s_lshl_b32 s7, s4, 14")
            a("s_lshl_b32 s8, s5, 8")
            a("s_add_u32 s7, s7, s8")
            a(f"s_add_u32 s7, s7, {AC1}")
            a("s_cmp_eq_u32 s3, 1")
            a("s_cbranch_scc1 L_dozero")
        a("s_lshl_b32 s7, s5, 14")
        a("s_lshl_b32 s8, s4, 8")
        a("s_add_u32 s7, s7, s8")
        a(f"s_add_u32 s7, s7, {AC2}")
        a("v_mov_b32 v12, s13")
        a("s_cmp_eq_u32 s3, 2")
    else:
        a("s_cmp_eq_u32 s3, 0")
    a("s_cbranch_scc0 L_zeroed")
    a("L_dozero:")
    a("buffer_store_dword v12, v13, s[48:51], s7 offen sc1")
    a("L_zeroed:")
    a("s_mov_b64 exec, -1")
    a("L_nozero:")
    for i in range(8):
        a(f"v_lshlrev_b32 v{32+2*i}, 16, v{56+i}")
        a(f"v_and_b32 v{33+2*i}, 0xffff0000, v{56+i}")
    a("v_add_f32 v16, v32, v33")
    a("v_add_f32 v17, v34, v35")
    for i in range(2, 8):
        a(f"v_add_f32 v16, v16, v{32+2*i}")
        a(f"v_add_f32 v17, v17, v{33+2*i}")
    a("v_add_f32 v16, v16, v17")
    emit(row_list("v_add_f32", 16) + cross_list("v_add_f32", 16, 17))
    a("v_mul_f32 v16, 0x3a800000, v16")
    for i in range(16):
        a(f"v_sub_f32 v{32+i}, v{32+i}, v16")
    a("v_mul_f32 v17, v32, v32")
    a("v_mul_f32 v18, v33, v33")
    for i in range(1, 8):
        a(f"v_fmac_f32 v17, v{32+2*i}, v{32+2*i}")
        a(f"v_fmac_f32 v18, v{33+2*i}, v{33+2*i}")
    a("v_add_f32 v17, v17, v18")
    emit(row_list("v_add_f32", 17) + cross_list("v_add_f32", 17, 18))
    a("v_mul_f32 v17, 0x3a800000, v17")
    bf16r(16, 16)
    bf16r(17, 17)
    a("v_add_f32 v17, 0x3727c5ac, v17")
    bf16r(17, 17)
    a("v_sqrt_f32 v17, v17")
    for i in range(2):
        a(f"v_lshlrev_b32 v{18+2*i}, 16, v{64+i}")
        a(f"v_and_b32 v{19+2*i}, 0xffff0000, v{64+i}")
    bf16r(17, 17)
    a("v_rcp_f32 v17, v17")
    for i in range(4): a(f"v_sub_f32 v{18+i}, v{18+i}, v16")
    for i in range(4): bf16r(18 + i, 18 + i)
    for i in range(4): a(f"v_mul_f32 v{18+i}, v{18+i}, v17")
    a("v_cvt_pk_bf16_f32 v18, v18, v19")
    a("v_cvt_pk_bf16_f32 v19, v20, v21")
    a("v_add_u32 v15, v15, v1")
    a(f"ds_write_b64 v15, v[18:19] offset:{XN}")
    a("v_lshl_add_u32 v14, v4, 4, v1")
    for s in range(8):
        a(f"ds_read_b128 v[{XF+4*s}:{XF+4*s+3}], v14 offset:{XN+64*s}")
    stamp(2)
    A1 = 27
    a(f"v_lshl_add_u32 v12, v0, 2, v1")
    a(f"v_add_u32 v12, {SCR}, v12")
    a("v_cmp_eq_u32 vcc, 0, v0")
    a(f"v_cndmask_b32 v{A1}, v12, v1, vcc")
    a("s_lshl_b32 s4, s3, 2")
    a(f"v_add_u32 v28, s4, v{A1}")
    def progress(x):
        a(f"v_mov_b32 v29, {x}")
        a(f"ds_write_b32 v28, v29 offset:{PROG}")
    a("s_lshl_b32 s4, s3, 5")
    a(f"v_xor_b32 v14, s4, v{TA}")
    a("s_lshl_b32 s8, s14, 14")
    a("s_lshl_b32 s9, s3, 6")
    a("s_add_u32 s8, s8, s9")
    gu_col(11)
    if cmap:
        up_shift(27, 11, 256)
        a("s_add_u32 s27, s27, 0x10000")
    a("s_lshl_b32 s11, s11, 8")
    a("s_add_u32 s11, s11, s8")
    if cmap: a(f"s_add_u32 s11, s11, {GP}")
    wq_col(9)
    a("s_lshl_b32 s9, s9, 8")
    a("s_add_u32 s9, s9, s8")
    light_test()
    a("s_cselect_b32 s15, 2, 6")
    a("s_mov_b32 s99, 0")
    a("s_mov_b32 s10, 0")
    a("v_lshlrev_b32 v15, 6, v4")
    a("v_and_b32 v15, 3, v0")
    a("v_lshlrev_b32 v15, 6, v15")
    if gui: a("s_mov_b32 s24, 1")
    a("L_c_blk:")
    for (s0, s1) in [(0, 4), (4, 6), (6, 8)]:
        if gui: a(f"s_lshl{(s1-s0)//2}_add_u32 s10, s24, s10")
        else: a(f"s_add_u32 s10, s10, {s1-s0}")
        need("s10")
        for s in range(s0, s1):
            for t in range(2):
                d = AF + 4 * (s & 3) + 2 * t
                a(f"ds_read_b64_tr_b16 v[{d}:{d+1}], v14 offset:{s*4096+t*2048}")
        a("s_waitcnt lgkmcnt(0)")
        for s in range(s0, s1):
            c = "0" if s == 0 else f"v[{ACC}:{ACC+3}]"
            a(f"v_mfma_f32_16x16x32_bf16 v[{ACC}:{ACC+3}], v[{AF+4*(s&3)}:{AF+4*(s&3)+3}], v[{XF+4*s}:{XF+4*s+3}], {c}")
        if s1 % 4 == 0:
            a("s_add_u32 s99, s99, 1")
            progress("s99")
    a("v_add_u32 v14, 0x8000, v14")
    for k in range(4): a(f"ds_bpermute_b32 v{ACC+k}, v15, v{ACC+k}")
    a("s_waitcnt vmcnt(0) lgkmcnt(0)")
    apply_tag(ACC)
    a("s_mov_b64 exec, 0xf")
    a(f"buffer_store_dwordx4 v[{ACC}:{ACC+3}], v6, s[48:51], s9 offen sc1")
    a("s_mov_b64 exec, -1")
    if stamps or probe or leak:
        a("s_cmp_lg_u32 s99, 2")
        a("s_cbranch_scc1 L_c_ns3")
        stamp(3)
        a("L_c_ns3:")
    if cmap:
        a("s_mov_b32 s9, s11")
        a("s_add_u32 s11, s11, s27")
    else:
        a("s_add_u32 s11, s11, 0x10000")
        a("s_mov_b32 s9, s11")
    if gui:
        a("s_lshl_b32 s24, s24, 1")
        a("s_and_b32 s24, s24, 3")
    a("s_cmp_lt_u32 s99, s15")
    a("s_cbranch_scc1 L_c_blk")
    stamp(4)
    leak_flag()
    if qlight:
        light_test()
        a(f"s_cselect_b32 s4, {qlight}, {qstart}")
        need("s4")
    elif qstart: need(qstart)
    a("s_lshr_b32 s4, s2, 6")
    a("s_lshl_b32 s4, s4, 12")
    a("s_lshl_b32 s5, s3, 10")
    a("s_add_u32 s52, s4, s5")
    a("s_add_u32 s53, s52, 16384")
    a("s_add_u32 s54, s52, 32768")
    a("s_add_u32 s55, s52, 49152")
    def q_loads():
        for r in range(1 if "q" in abl else 4):
            a(f"buffer_load_dwordx4 v[{64+4*r}:{67+4*r}], v6, s[48:51], s{52+r} offen sc1")
    q_loads()
    KF = 32; QF = 96; SC = 64; VF = 72; AO = 80
    KA = 112; VA = 116; KC = 120; VC = 118
    S = 16; P = 20; M2, LS, AL = 24, 25, 26
    RL, LB = 30, 31
    A_OP, A_PERM, A_SH, A_G, A_OL, A_SP, A_M, SEL1, SEL2, A_QR, ONE = 128, 129, 130, 131, 132, 133, 134, 138, 139, 140, 141
    a("v_lshlrev_b32 v13, 1, v3")
    for m in range(4):
        a(f"v_add_u32 v12, {4*m}, v4")
        a("v_xor_b32 v12, v12, v13")
        a("v_lshlrev_b32 v12, 4, v12")
        a(f"v_lshl_add_u32 v{KA+m}, v5, 8, v12")
    a("v_lshrrev_b32 v12, 2, v5")
    a("v_lshl_add_u32 v12, v4, 2, v12")
    a("v_and_b32 v15, 3, v0")
    a("v_lshlrev_b32 v13, 3, v15")
    a("v_lshl_add_u32 v13, v12, 8, v13")
    a("v_add_u32 v13, 8192, v13")
    a("v_and_b32 v12, 7, v12")
    a("s_lshl_b32 s4, s3, 1")
    for n in range(2):
        a(f"s_add_u32 s5, s4, {n}")
        a("v_xor_b32 v14, s5, v12")
        a(f"v_lshl_add_u32 v{VA+n}, v14, 5, v13")
    a(f"v_mov_b32 v{M2}, 0xff7fffff")
    a(f"v_mov_b32 v{LS}, 0")
    for i in range(8): a(f"v_mov_b32 v{AO+i}, 0")
    a("v_cmp_lt_u32 s[100:101], 7, v5")
    a(f"s_mov_b32 s12, {LOG2E}")
    a(f"v_mul_u32_u24 v14, {QROW}, v3")
    a("v_lshl_add_u32 v14, v4, 4, v14")
    a(f"v_add_u32 v{A_QR}, v14, v1")
    a(f"v_mov_b32 v{ONE}, 1")
    a(f"v_lshlrev_b32 v14, {9+ow}, v2")
    if opw:
        a("v_and_b32 v13, 4, v0")
        a("v_lshl_add_u32 v14, v13, 4, v14")
    a(f"v_lshl_add_u32 v{A_OP}, v3, 4, v14")
    a("v_lshlrev_b32 v13, 4, v15")
    a("v_and_b32 v14, 4, v0")
    a("v_lshl_add_u32 v13, v14, 1, v13")
    a("v_add_u32 v13, v13, v2")
    a(f"v_lshlrev_b32 v{A_PERM}, 2, v13")
    a(f"v_lshlrev_b32 v{A_SH}, 3, v4")
    TO = 143
    a("v_bfe_i32 v12, v0, 4, 1")
    a(f"v_and_b32 v12, {TAGX}, v12")
    a(f"v_xor_b32 v{TO}, s13, v12")
    for k in range(1, 3): a(f"v_lshrrev_b32 v{TO+k}, {8*k}, v{TO}")
    a(f"s_mul_i32 s4, s2, {RSO}")
    a(f"s_lshl_b32 s5, s3, {7+ow}")
    a("s_add_u32 s4, s4, s5")
    a(f"s_add_u32 s44, s4, {OP}")
    rr_cc(4, 5)
    a(f"s_mul_i32 s8, s4, {RSS}")
    a(f"s_lshl_b32 s9, s5, {10+sw}")
    a("s_add_u32 s8, s8, s9")
    a(f"s_lshl_b32 s9, s3, {8+sw}")
    a("s_add_u32 s8, s8, s9")
    a(f"s_add_u32 s45, s8, {SP}")
    if cgate:
        a("s_lshl_b32 s8, s4, 8")
        a(f"s_add_u32 s8, s8, {OCN}")
        a("s_add_u32 s58, s38, s8")
        a("s_addc_u32 s59, s39, 0")
        a("s_lshr_b32 s8, s2, 6")
        a("s_lshl_b32 s8, s8, 12")
        a(f"s_add_u32 s46, s8, {OCN}")
        a("v_lshlrev_b32 v142, 8, v0")
    a("s_lshr_b32 s8, s4, 4")
    a(f"s_mul_i32 s8, s8, {64*RSO}")
    a("s_and_b32 s9, s4, 15")
    a(f"s_lshl_b32 s9, s9, {8+ow}")
    a("s_add_u32 s8, s8, s9")
    a(f"s_lshl_b32 s9, s3, {6+ow}")
    a("s_add_u32 s8, s8, s9")
    a(f"s_add_u32 s16, s8, {OP}")
    a(f"s_add_u32 s17, s16, {RSO}")
    a(f"s_add_u32 s18, s16, {2*RSO}")
    a(f"s_add_u32 s19, s16, {3*RSO}")
    a("v_lshrrev_b32 v13, 2, v0")
    a(f"v_mul_u32_u24 v13, {4*RSO}, v13")
    a(f"v_lshl_add_u32 v{A_G}, v15, 4, v13")
    a("v_lshl_add_u32 v12, v4, 4, v1")
    a(f"v_add_u32 v12, {OL}, v12")
    a(f"v_add_u32 v13, {ZER}, v1")
    for u in range(4):
        a(f"v_cmp_eq_u32 vcc, {u}, v15")
        a(f"v_cndmask_b32 v{A_M+u}, v13, v12, vcc")
    a("s_lshl_b32 s4, s3, 5")
    a("v_lshl_add_u32 v13, v4, 1, v1")
    a("v_lshl_add_u32 v13, v15, 3, v13")
    a(f"v_add_u32 v{A_OL}, s4, v13")
    a("v_lshlrev_b32 v13, 4, v5")
    a(f"v_lshl_add_u32 v{A_SP}, v4, {6+sw}, v13")
    a("v_and_b32 v12, 1, v0")
    a("v_cmp_eq_u32 vcc, 1, v12")
    a("v_mov_b32 v12, 0x06020400")
    a("v_mov_b32 v13, 0x03070105")
    a(f"v_cndmask_b32 v{SEL1}, v12, v13, vcc")
    a("v_and_b32 v12, 2, v0")
    a("v_cmp_eq_u32 vcc, 2, v12")
    a("v_mov_b32 v12, 0x05040100")
    a("v_mov_b32 v13, 0x03020706")
    a(f"v_cndmask_b32 v{SEL2}, v12, v13, vcc")
    a("s_mov_b32 s20, 0x0c0c0400")
    a("s_mov_b32 s21, 0x05040100")
    L = a.label("L_q"); D = a.label("L_qd")
    a(f"s_mov_b32 s60, {spin_limit}")
    a("s_branch L_q_wait")
    a(f"{L}:")
    q_loads()
    a("L_q_wait:")
    a("s_waitcnt vmcnt(0)")
    tag_check([64] if "q" in abl else [64, 68, 72, 76], 12)
    retry_masked(L, D, qsleep)
    stamp(5)
    for k in range(4): a(f"v_add_f32 v{64+k}, v{64+k}, v{68+k}")
    for k in range(4): a(f"v_add_f32 v{72+k}, v{72+k}, v{76+k}")
    for k in range(4): a(f"v_add_f32 v{64+k}, v{64+k}, v{72+k}")
    a("v_cvt_pk_bf16_f32 v64, v64, v65")
    a("v_cvt_pk_bf16_f32 v65, v66, v67")
    a("v_lshrrev_b32 v12, 5, v0")
    a("s_lshl_b32 s4, s3, 1")
    a("v_add_u32 v12, s4, v12")
    a(f"v_mul_u32_u24 v12, {QROW}, v12")
    a("v_and_b32 v13, 31, v0")
    a("v_lshl_add_u32 v12, v13, 3, v12")
    a("v_add_u32 v12, v12, v1")
    a(f"ds_write_b64 v12, v[64:65] offset:{QL}")
    a(f"ds_add_u32 v{A1}, v{ONE} offset:{QCNT}")
    lds_spin(QCNT, 7 if early_t else 5, 12, 0)
    for m in range(4):
        a(f"ds_read_b128 v[{QF+4*m}:{QF+4*m+3}], v{A_QR} offset:{QL+64*m}")
    stamp(6)
    def k_reads():
        for m in range(4): a(f"v_add_u32 v{KC+m}, s4, v{KA+m}")
        for t in range(2):
            for m in range(4):
                d = KF + 16 * t + 4 * m
                a(f"ds_read_b128 v[{d}:{d+3}], v{KC+m} offset:{4096*t}")
    def v_addr():
        for n in range(2): a(f"v_add_u32 v{VC+n}, s5, v{VA+n}")
    def v_reads(VF=VF, off=0):
        for n in range(2):
            for t in range(2):
                d = VF + 4 * n + 2 * t
                a(f"ds_read_b64_tr_b16 v[{d}:{d+1}], v{VC+n} offset:{off+4096*t}")
    def qk_list(KF=KF, SC=SC):
        out = []
        for t in range(2):
            for m in range(4):
                d = KF + 16 * t + 4 * m
                c = "0" if m == 0 else f"v[{SC+4*t}:{SC+4*t+3}]"
                out.append(f"v_mfma_f32_16x16x32_bf16 v[{SC+4*t}:{SC+4*t+3}], v[{d}:{d+3}], v[{QF+4*m}:{QF+4*m+3}], {c}")
        return out
    def softmax_list():
        o = []
        for k in range(4): o.append(f"v_cndmask_b32 v{S+k}, v{SC+k}, v{SC+4+k}, s[100:101]")
        for k in range(4): o.append(f"v_cvt_pk_bf16_f32 v{S+k}, 0, v{S+k}")
        for k in range(4): o.append(f"v_mul_f32 v{S+k}, {SCALE}, v{S+k}")
        for k in range(4): o.append(f"v_cvt_pk_bf16_f32 v{S+k}, 0, v{S+k}")
        o.append(f"v_max3_f32 v14, v{S}, v{S+1}, v{S+2}")
        o.append(f"v_max_f32 v14, v14, v{S+3}")
        o.append("MARK")
        o += row_list("v_max_f32", 14, (8,)) + cross_list("v_max_f32", 14, 15)
        o.append("v_mul_f32 v14, s12, v14")
        o.append(f"v_max_f32 v14, v14, v{M2}")
        o.append(f"v_sub_f32 v{AL}, v{M2}, v14")
        o.append(f"v_mov_b32 v{M2}, v14")
        o.append(f"v_exp_f32 v{AL}, v{AL}")
        for k in range(4): o.append(f"v_fma_f32 v{S+k}, v{S+k}, s12, -v14")
        for k in range(4): o.append(f"v_exp_f32 v{S+k}, v{S+k}")
        for i in range(4): o.append(f"v_mul_f32 v{AO+i}, v{AL}, v{AO+i}")
        o.append(f"v_cvt_pk_bf16_f32 v{P}, v{S}, v{S+1}")
        o.append(f"v_cvt_pk_bf16_f32 v{P+1}, v{S+2}, v{S+3}")
        for i in range(4, 8): o.append(f"v_mul_f32 v{AO+i}, v{AL}, v{AO+i}")
        o.append(f"v_mov_b32_dpp v{P+2}, v{P} row_ror:8 {DPP}")
        o.append(f"v_mov_b32_dpp v{P+3}, v{P+1} row_ror:8 {DPP}")
        o.append(f"v_add_f32 v14, v{S}, v{S+1}")
        o.append(f"v_add_f32 v15, v{S+2}, v{S+3}")
        o.append("v_add_f32 v14, v14, v15")
        o.append(f"v_fma_f32 v{LS}, v{LS}, v{AL}, v14")
        return o
    def pv(VF=VF, P=P):
        for n in range(2):
            a(f"v_mfma_f32_16x16x32_bf16 v[{AO+4*n}:{AO+4*n+3}], v[{VF+4*n}:{VF+4*n+3}], v[{P}:{P+3}], v[{AO+4*n}:{AO+4*n+3}]")
    def arrive():
        Ln = a.label("L_noarr")
        a("s_cmp_lg_u32 s3, 0")
        a(f"s_cbranch_scc1 {Ln}")
        a("s_mov_b64 exec, 0xffff")
        a(f"buffer_atomic_add v{ONE}, v142, s[48:51], s46 offen sc1")
        a("s_mov_b64 exec, -1")
        a(f"{Ln}:")
    def stats():
        a(f"v_mov_b32 v{RL}, v{LS}")
        emit(row_list("v_add_f32", RL, (8,)) + cross_list("v_add_f32", RL, 15))
        a(f"v_log_f32 v{LB}, v{RL}")
        a(f"v_rcp_f32 v{RL}, v{RL}")
        a("s_sub_u32 s6, s10, 2")
        a(f"v_add_f32 v{LB}, v{LB}, v{M2}")
        a(f"v_lshrrev_b32 v{LB}, v{A_SH}, v{LB}")
    cnt = not (stamps or probe or leak)
    if two:
        KF2, SC2, S2, PK, A_SB, VF2, P2 = 152, 72, 88, 92, 146, 152, 160
        light_test()
        a(f"s_cselect_b32 s25, {(dyn + lex) // 2}, {dyn // 2}")
        a("s_mov_b32 s11, 0")
        a("s_mov_b32 s26, 0x07060302")
        a(f"v_add_u32 v{A_SB}, v6, v1")
        a("L_c_kk:")
        a("s_add_u32 s10, s10, 4")
        need("s10")
        slot_base(4, "s99")
        k_reads()
        for t in range(2):
            for m in range(4):
                d = KF2 + 16 * t + 4 * m
                a(f"ds_read_b128 v[{d}:{d+3}], v{KC+m} offset:{8192+4096*t}")
        a("s_add_u32 s99, s99, 1")
        a("s_add_u32 s11, s11, 1")
        qa = qk_list(); qb = qk_list(KF2, SC2)
        a("s_waitcnt lgkmcnt(8)" if cnt else "s_waitcnt lgkmcnt(0)")
        emit(qa)
        a("s_waitcnt lgkmcnt(0)")
        progress("s99")
        def pre(sc, sv, pk):
            o = [f"v_cndmask_b32 v{sv+k}, v{sc+k}, v{sc+4+k}, s[100:101]" for k in range(4)]
            o += [f"v_cvt_pk_bf16_f32 v{sv+k}, 0, v{sv+k}" for k in range(4)]
            o += [f"v_mul_f32 v{sv+k}, {SCALE}, v{sv+k}" for k in range(4)]
            o += [f"v_cvt_pk_bf16_f32 v{sv+k}, 0, v{sv+k}" for k in range(4)]
            o += [f"v_max3_f32 v{M2}, v{M2}, v{sv}, v{sv+1}", f"v_perm_b32 v{pk}, v{sv+1}, v{sv}, s26",
                  f"v_max3_f32 v{M2}, v{M2}, v{sv+2}, v{sv+3}", f"v_perm_b32 v{pk+1}, v{sv+3}, v{sv+2}, s26"]
            return o
        emit(interleave(qb, pre(SC, S, PK), {3: 1, 4: 3, 5: 3, 6: 3}))
        emit(pre(SC2, S2, PK + 2))
        a(f"ds_write_b128 v{A_SB}, v[{PK}:{PK+3}] offset:{SB}")
        a(f"v_add_u32 v{A_SB}, 1024, v{A_SB}")
        a("s_cmp_lt_u32 s11, s25")
        a("s_cbranch_scc1 L_c_kk")
        stamp(7)
        emit(row_list("v_max_f32", M2, (8,)) + cross_list("v_max_f32", M2, 15))
        a(f"v_mul_f32 v{M2}, s12, v{M2}")
        a(f"v_add_u32 v{A_SB}, v6, v1")
        a("s_lshl_b32 s25, s25, 1")
        a("L_c_vv:")
        a(f"ds_read_b128 v[{PK}:{PK+3}], v{A_SB} offset:{SB}")
        a(f"v_add_u32 v{A_SB}, 1024, v{A_SB}")
        slot_base(5, "s99")
        a("s_sub_u32 s5, s5, 8192")
        v_addr()
        a("s_add_u32 s10, s10, 4")
        a("s_add_u32 s99, s99, 1")
        a("s_add_u32 s11, s11, 1")
        a("s_waitcnt lgkmcnt(0)")
        for h, sv in enumerate((S, S2)):
            for k in range(2):
                a(f"v_lshlrev_b32 v{sv+2*k}, 16, v{PK+2*h+k}")
                a(f"v_and_b32 v{sv+2*k+1}, 0xffff0000, v{PK+2*h+k}")
        for sv in (S, S2):
            for k in range(4): a(f"v_fma_f32 v{sv+k}, v{sv+k}, s12, -v{M2}")
        need("s10")
        v_reads()
        v_reads(VF2, 8192)
        for sv in (S, S2):
            for k in range(4): a(f"v_exp_f32 v{sv+k}, v{sv+k}")
        for sv, pp in ((S, P), (S2, P2)):
            a(f"v_cvt_pk_bf16_f32 v{pp}, v{sv}, v{sv+1}")
            a(f"v_cvt_pk_bf16_f32 v{pp+1}, v{sv+2}, v{sv+3}")
        for k in range(4): a(f"v_add_f32 v{S+k}, v{S+k}, v{S2+k}")
        for pp in (P, P2):
            a(f"v_mov_b32_dpp v{pp+2}, v{pp} row_ror:8 {DPP}")
            a(f"v_mov_b32_dpp v{pp+3}, v{pp+1} row_ror:8 {DPP}")
        a(f"v_add_f32 v{S}, v{S}, v{S+1}")
        a(f"v_add_f32 v{S+2}, v{S+2}, v{S+3}")
        a("s_waitcnt lgkmcnt(0)")
        progress("s99")
        pv()
        pv(VF2, P2)
        a(f"v_add_f32 v{S}, v{S}, v{S+2}")
        a(f"v_add_f32 v{LS}, v{LS}, v{S}")
        a("s_cmp_lt_u32 s11, s25")
        a("s_cbranch_scc1 L_c_vv")
        a("s_add_u32 s10, s10, 2")
        a("s_cmp_lt_u32 s11, s97")
        a("s_cbranch_scc1 L_c_k")
        stats()
        a("s_branch L_c_pub")
    else:
        a("s_add_u32 s10, s10, 2")
        a("s_mov_b32 s11, 0")
        a("s_branch L_c_k")
    a("L_c_fast:")
    slot_base(5, "s99")
    a("s_add_u32 s99, s99, 1")
    slot_base(4, "s99")
    v_addr()
    v_reads()
    k_reads()
    sm = softmax_list(); i = sm.index("MARK")
    emit(sm[:i])
    a("s_waitcnt lgkmcnt(0)")
    progress("s99")
    rest = sm[i + 1:]; q = qk_list()
    pos = {0: 1, 1: 0, 2: 1, 4: 0, 5: 2, 9: 1, 12: 1, 16: 1, 20: 1}
    for j, x in enumerate(rest):
        for _ in range(pos.get(j, 0)): a(q.pop(0))
        a(x)
    assert not q
    pv()
    a("L_c_top:")
    a("s_add_u32 s11, s11, 1")
    a("s_add_u32 s10, s10, 4")
    a("s_cmp_ge_u32 s11, s97")
    a("s_cbranch_scc1 L_c_slow")
    a("s_cmp_ge_u32 s96, s10")
    a("s_cbranch_scc1 L_c_fast")
    refresh()
    a("s_cmp_ge_u32 s96, s10")
    a("s_cbranch_scc1 L_c_fast")
    a("L_c_slow:")
    if stamps or probe or leak: stamp(8)
    slot_base(5, "s99")
    v_addr()
    emit([x for x in softmax_list() if x != "MARK"])
    stats()
    if stamps or probe or leak: stamp(9)
    need("s6")
    v_reads()
    a("s_add_u32 s99, s99, 1")
    a("s_cmp_ge_u32 s11, s97")
    a("s_cbranch_scc1 L_c_last")
    a("s_waitcnt lgkmcnt(0)")
    pv()
    progress("s99")
    a("L_c_k:")
    need("s10")
    slot_base(4, "s99")
    k_reads()
    q = qk_list()
    for j in range(8):
        if not (stamps or probe or leak): a(f"s_waitcnt lgkmcnt({7-j})")
        elif j == 0: a("s_waitcnt lgkmcnt(0)")
        a(q[j])
    a("s_branch L_c_top")
    a("L_c_last:")
    if sig1 is not None and s1pos == "last": a(f"ds_add_u32 v{A1}, v{ONE} offset:{PCNT}")
    a("s_waitcnt lgkmcnt(0)")
    pv()
    progress("s99")
    a("L_c_pub:")
    for k in range(4): a(f"v_mov_b32_dpp v{AO+k}, v{AO+4+k} row_ror:8 row_mask:0xf bank_mask:0xc")
    for k in range(4):
        a(f"v_mul_f32 v{AO+k}, v{RL}, v{AO+k}")
    apply_tag(AO, [TO, TO + 1, TO + 2, LB])
    for k in range(4): a(f"ds_bpermute_b32 v{AO+k}, v{A_PERM}, v{AO+k}")
    a("s_waitcnt lgkmcnt(0)")
    if "o" not in abl: a(f"buffer_store_dwordx4 v[{AO}:{AO+3}], v{A_OP}, s[48:51], s44 offen {ost}")
    if sig1 is not None and s1pos == "store": a(f"ds_add_u32 v{A1}, v{ONE} offset:{PCNT}")
    stamp(10)
    PD, WF, BF, WA = 64, 32, 96, 88
    a("s_lshl_b32 s99, s99, 2")
    a("s_add_u32 s22, s99, s3")
    a("s_add_u32 s22, s22, 8")
    a("s_add_u32 s23, s22, 4")
    for st in range(2):
        a(f"s_sub_u32 s4, s{22+st}, 1")
        a("s_and_b32 s4, s4, 31")
        a("s_lshl_b32 s4, s4, 12")
        for u in range(4):
            a(f"v_xor_b32 v14, {32*u}, v{TA}")
            a(f"v_add_u32 v{WA+4*st+u}, s4, v14")
    def wo_reads(st):
        for u in range(4):
            for t in range(2):
                d = WF + 8 * u + 4 * st + 2 * t
                a(f"ds_read_b64_tr_b16 v[{d}:{d+1}], v{WA+4*st+u} offset:{t*2048}")
    stamp(11)
    assert gate >= 15 - (win // 4 - 1)
    a(f"s_add_u32 s10, s99, {gate}")
    need("s10", count=False)
    stamp(14)
    def o_loads():
        for i in range(0 if "g" in abl else 4):
            a(f"buffer_load_dwordx4 v[{PD+4*i}:{PD+4*i+3}], v{A_G}, s[48:51], s{16+i} offen {old_}")
    if sig1 is not None:
        a(f"ds_read_b32 v14, v1 offset:{GO}")
        a("s_waitcnt lgkmcnt(0)")
        a("v_readfirstlane_b32 s4, v14")
        a("s_cmp_eq_u32 s4, 0")
        a("s_cbranch_scc1 L_o_notyet")
    o_loads()
    need("s22", count=False)
    wo_reads(0)
    need("s23", count=False)
    wo_reads(1)
    a(f"s_mov_b32 s60, {spin_limit}")
    if sigpos != "chk":
        a(f"s_waitcnt vmcnt({0 if sigpos == 'arr' else 3})")
        a(f"ds_add_u32 v{A1}, v{ONE} offset:{GCNT}")
    a("L_o_chk:")
    fill = tag_list(range(PD, PD + 16, 4), 12, n=3)
    a("s_waitcnt vmcnt(2)")
    a(f"v_perm_b32 v16, v{PD+7}, v{PD+3}, s20")
    a("s_waitcnt vmcnt(0)")
    chain = [f"v_perm_b32 v17, v{PD+15}, v{PD+11}, s20", "v_perm_b32 v16, v17, v16, s21",
             f"v_mov_b32_dpp v17, v16 quad_perm:[1,0,3,2] {DPP}", f"v_perm_b32 v16, v17, v16, v{SEL1}",
             f"v_mov_b32_dpp v17, v16 quad_perm:[2,3,0,1] {DPP}", f"v_perm_b32 v18, v17, v16, v{SEL2}",
             f"v_max_f32_dpp v16, v18, v18 row_ror:1 {DPP}"] + row_list("v_max_f32", 16, (2, 4, 8)) + cross_list("v_max_f32", 16, 17)
    fill += ["s_nop 0", f"v_or_b32_dpp v12, v12, v12 quad_perm:[1,0,3,2] {DPP}", "s_nop 0", f"v_or_b32_dpp v12, v12, v12 quad_perm:[2,3,0,1] {DPP}"]
    emit(interleave(chain, fill, {1: 2, 3: 2, 5: 2, 6: 2, 7: 2, 8: 2, 10: 2, 13: 2}))
    a("v_cmp_ne_u32 vcc, 0, v12")
    a("v_sub_f32 v18, v18, v16")
    a("v_exp_f32 v18, v18")
    if "o" not in abl and "c" not in abl: a("s_cbranch_vccnz L_o_again")
    a("L_o_done:")
    if sig2 and sigpos == "chk": a(f"ds_add_u32 v{A1}, v{ONE} offset:{GCNT}")
    stamp(12)
    fm = [f"v_mul_f32_dpp v{20+k}, v18, v{PD+k} quad_perm:[0,0,0,0] {DPP}" for k in range(4)]
    for i in range(1, 4):
        fm += [f"v_fmac_f32_dpp v{20+k}, v18, v{PD+4*i+k} quad_perm:[{i},{i},{i},{i}] {DPP}" for k in range(4)]
    wsum = [f"v_add_f32_dpp v16, v18, v18 row_ror:1 {DPP}"] + row_list("v_add_f32", 16, (2, 4, 8)) + cross_list("v_add_f32", 16, 17) + ["v_rcp_f32 v16, v16"]
    red = ["v_permlane32_swap_b32 v20, v22", "v_permlane32_swap_b32 v21, v23", "v_add_f32 v20, v20, v22", "v_add_f32 v21, v21, v23",
           "v_permlane16_swap_b32 v20, v21", "v_add_f32 v20, v20, v21"] + row_list("v_add_f32", 20, (4, 8))
    emit(interleave(fm + red, wsum, {3: 1, 7: 1, 11: 1, 15: 2, 19: 2, 21: 1, 22: 2}))
    a("v_mul_f32 v20, v20, v16")
    a("v_cvt_pk_bf16_f32 v20, v20, v20")
    a(f"ds_write_b16 v{A_OL}, v20 offset:{OL}")
    a(f"ds_add_u32 v{A1}, v{ONE} offset:{OCNT}")
    a(f"s_mov_b32 s60, {spin_limit}")
    a("L_x:")
    a(f"ds_read_b32 v12, v1 offset:{OCNT}")
    for u in range(4):
        for st in range(2):
            d = BF + 8 * u + 4 * st
            a(f"ds_read_b128 v[{d}:{d+3}], v{A_M+u} offset:{64*st}")
    a("s_sub_u32 s60, s60, 1")
    a("s_waitcnt lgkmcnt(0)" if (stamps or probe or leak) else "s_waitcnt lgkmcnt(8)")
    a("v_readfirstlane_b32 s61, v12")
    a("s_cselect_b32 s61, -1, s61")
    a("s_cmp_lt_u32 s61, 4")
    a("s_cbranch_scc1 L_x")
    for u in range(4):
        for st in range(2):
            if not (stamps or probe or leak): a(f"s_waitcnt lgkmcnt({7-2*u-st})")
            c = "0" if u + st == 0 else f"v[{ACC}:{ACC+3}]"
            a(f"v_mfma_f32_16x16x32_bf16 v[{ACC}:{ACC+3}], v[{WF+8*u+4*st}:{WF+8*u+4*st+3}], v[{BF+8*u+4*st}:{BF+8*u+4*st+3}], {c}")
    setexec(0x000f000f, 0x000f000f)
    apply_tag(ACC)
    a(f"buffer_store_dwordx4 v[{ACC}:{ACC+3}], v{A_SP}, s[48:51], s45 offen sc1")
    stamp(13)
    dump_stamps(12, 13)
    a("s_endpgm")
    if sig1 is not None:
        a("L_o_notyet:")
        need("s22", count=False)
        wo_reads(0)
        need("s23", count=False)
        wo_reads(1)
        lds_spin(GO, 1, 12, 0)
        o_loads()
        a(f"s_mov_b32 s60, {spin_limit}")
        a("s_branch L_o_chk")
    a("L_o_again:")
    a("s_sub_u32 s60, s60, 1")
    a("s_cbranch_scc1 L_o_done")
    if osleep: a(f"s_sleep {osleep}")
    a("s_mov_b64 exec, vcc")
    o_loads()
    a("s_mov_b64 exec, -1")
    a("s_branch L_o_chk")

    role[0] = "H"
    a("L_helper:")
    srd(56, 34, 2048)
    a("v_mov_b32 v12, 1")
    a("s_waitcnt lgkmcnt(0)")
    a("s_mov_b64 exec, 1")
    a(f"ds_add_u32 v1, v12 offset:{QCNT}")
    a("s_mov_b64 exec, -1")
    make_tag()
    wd_row(4)
    a("s_mul_i32 s4, s4, 896")
    a(f"s_add_u32 s8, s4, {GP}")
    a("s_add_u32 s9, s8, 0x10000")
    a("v_add_u32 v14, -2, v5")
    a("v_cmp_gt_u32 vcc, 14, v5")
    a("v_cndmask_b32 v14, v14, v5, vcc")
    a("v_lshlrev_b32 v15, 4, v14")
    a("v_lshl_add_u32 v15, v4, 14, v15")
    a("v_lshlrev_b32 v14, 3, v14")
    a("v_lshl_add_u32 v14, v4, 1, v14")
    a("v_add_u32 v14, v14, v1")
    leak_flag()
    if leak:
        for x in leak:
            if x[0] == "H" and x[1]: a(f"s_mov_b32 s{64+2*x[1]}, 0")
    if hstart: need(hstart, sleep=8)
    else: lds_spin(QCNT, 7 if early_t else 5, 12, 8)
    stamp(1)
    L = a.label("L_h"); D = a.label("L_hd")
    a(f"s_mov_b32 s60, {spin_limit}")
    a(f"{L}:")
    for w in range(0 if "h" in abl else 4):
        a(f"buffer_load_dwordx4 v[{32+8*w}:{35+8*w}], v15, s[48:51], s8 offen offset:{224*w} sc1")
        a(f"buffer_load_dwordx4 v[{36+8*w}:{39+8*w}], v15, s[48:51], s9 offen offset:{224*w} sc1")
    a("s_waitcnt vmcnt(0)")
    tag_check(range(32, 64, 4), 12, quad=False)
    if "h" in abl: a("s_mov_b64 vcc, 0")
    retry_masked(L, D, 16)
    stamp(2)
    G8 = list(range(32, 64, 4)); G4 = G8[::2]
    for step in ("v_permlane32_swap_b32 v{r}, v{r2}", "v_permlane32_swap_b32 v{r1}, v{r3}", "v_add_f32 v{r}, v{r}, v{r2}",
                 "v_add_f32 v{r1}, v{r1}, v{r3}", "v_permlane16_swap_b32 v{r}, v{r1}", "v_add_f32 v{r}, v{r}, v{r1}",
                 "v_cvt_pk_bf16_f32 v{r}, 0, v{r}"):
        for r in G8: a(step.format(r=r, r1=r + 1, r2=r + 2, r3=r + 3))
    for step in ("v_mul_f32 v{t}, 0xbfb8aa3b, v{g}", "v_exp_f32 v{t}, v{t}", "v_add_f32 v{t}, 1.0, v{t}", "v_rcp_f32 v{t}, v{t}",
                 "v_mul_f32 v{t}, v{t}, v{g}", "v_cvt_pk_bf16_f32 v{g}, 0, v{t}", "v_mul_f32 v{g}, v{g}, v{u}",
                 "v_cvt_pk_bf16_f32 v{g}, v{g}, v{g}"):
        for g in G4: a(step.format(g=g, t=g + 1, u=g + 4))
    for w, g in enumerate(G4): a(f"ds_write_b16 v14, v{g} offset:{HL+112*w}")
    a("s_and_b32 s4, s2, 7")
    a("s_lshr_b32 s5, s2, 6")
    a("s_lshl_b32 s5, s5, 3")
    a("s_or_b32 s4, s4, s5")
    a("s_lshl_b32 s4, s4, 1")
    a("s_bfe_u32 s5, s2, 0x10005")
    a("s_add_u32 s4, s4, s5")
    if sig2:
        a("s_lshl_b32 s5, s4, 10")
        a(f"s_add_u32 s5, s5, {AC2}")
        a("s_add_u32 s52, s38, s5")
        a("s_addc_u32 s53, s39, 0")
        a("s_lshl_b32 s47, s13, 2")
        a("s_add_u32 s47, s47, 64")
    a(f"s_lshl_b32 s5, s4, {6+sw}")
    for i in range(8 if fatom else 4): a(f"s_add_u32 s{20+i}, s5, {SP + i*RSS}")
    a("s_lshl_b32 s5, s4, 6")
    a(f"s_add_u32 s45, s5, {FP}")
    a("s_lshr_b32 s46, s4, 2")
    a("s_lshl_b32 s46, s46, 7")
    a("s_and_b32 s5, s4, 3")
    a("s_lshl_b32 s5, s5, 3")
    a("s_add_u32 s46, s46, s5")
    a("v_lshrrev_b32 v12, 2, v0")
    a("v_and_b32 v13, 3, v0")
    a(f"v_mul_u32_u24 v19, {RS}, v12")
    if fatom:
        a(f"v_mul_u32_u24 v18, {8*RSS}, v2")
        a("v_lshl_add_u32 v18, v3, 3, v18")
        a("v_bfe_i32 v23, v0, 1, 1")
        a(f"v_and_b32 v23, {TAGX}, v23")
        a("v_xor_b32 v23, s13, v23")
        a("v_and_b32 v16, 1, v0")
        a("v_lshlrev_b32 v16, 4, v16")
        a("v_lshrrev_b32 v16, v16, v23")
        a("v_lshrrev_b32 v17, 8, v16")
        a("v_lshrrev_b32 v23, 5, v0")
        a("v_and_b32 v100, 1, v0")
        a("v_lshl_add_u32 v23, v100, 1, v23")
        a("v_bfe_u32 v100, v0, 1, 2")
        a("v_lshlrev_b32 v101, 6, v23")
        a("v_lshl_add_u32 v101, v100, 2, v101")
        a("v_lshlrev_b32 v23, 1, v23")
        a("v_lshl_add_u32 v23, v100, 5, v23")
    else:
        a(f"v_mul_u32_u24 v18, {4*RSS}, v12")
        a("v_lshl_add_u32 v18, v13, 4, v18")
    a("v_lshl_add_u32 v19, v13, 4, v19")
    a("v_lshlrev_b32 v20, 5, v13")
    a("v_lshl_add_u32 v20, v4, 1, v20")
    if fatom: a("v_mov_b32 v20, v23")
    a("buffer_load_ushort v22, v20, s[40:43], s46 offen")
    wd_row(4)
    a(f"s_mul_i32 s4, s4, {RS}")
    wd_col(5)
    a("s_lshl_b32 s5, s5, 8")
    a("s_add_u32 s4, s4, s5")
    a(f"s_add_u32 s15, s4, {FP}")
    a("v_lshlrev_b32 v21, 4, v5")
    a("v_lshl_add_u32 v21, v4, 6, v21")
    tr_addr(TA)
    for u in range(4): a(f"v_xor_b32 v{28+u}, {32*u}, v{TA}")
    a("v_lshl_add_u32 v14, v4, 4, v1")
    a("v_and_b32 v12, 1, v0")
    a("v_cmp_eq_u32 s[8:9], 1, v12")
    a("v_and_b32 v12, 2, v0")
    a("v_cmp_eq_u32 s[6:7], 2, v12")
    CA = 64; HF = 48
    for k in range(16): a(f"v_mov_b32 v{CA+k}, 0")
    stamp(3)
    L = a.label("L_nt"); D = a.label("L_ntd")
    a(f"s_mov_b32 s60, {spin_limit}")
    a(f"{L}:")
    refresh()
    a(f"s_cmp_lg_u32 s97, {BIG}")
    a(f"s_cbranch_scc1 {D}")
    a("s_sleep 4")
    a("s_sub_u32 s60, s60, 1")
    a(f"s_cbranch_scc0 {L}")
    a(f"{D}:")
    light_test()
    a("s_cselect_b32 s10, 2, 6")
    a("s_add_u32 s10, s10, s97")
    a("s_lshl_b32 s10, s10, 2")
    a("s_mov_b32 s11, 0")
    need("s10", sleep=2)
    a("s_setprio 2")
    a("L_h_step:")
    a("s_and_b32 s4, s10, 31")
    a("s_lshl_b32 s4, s4, 12")
    for u in range(4): a(f"v_add_u32 v{24+u}, s4, v{28+u}")
    a(f"ds_read_b128 v[{HF}:{HF+3}], v14 offset:{HL}")
    a("v_add_u32 v14, 64, v14")
    a("s_add_u32 s10, s10, 1")
    need("s10")
    stamp(4)
    for u in range(4):
        for t in range(2):
            d = 32 + 4 * u + 2 * t
            a(f"ds_read_b64_tr_b16 v[{d}:{d+1}], v{24+u} offset:{t*2048}")
    for u in range(4):
        if not (stamps or probe or leak): a(f"s_waitcnt lgkmcnt({6-2*u})")
        elif u == 0: a("s_waitcnt lgkmcnt(0)")
        a(f"v_mfma_f32_16x16x32_bf16 v[{CA+4*u}:{CA+4*u+3}], v[{32+4*u}:{35+4*u}], v[{HF}:{HF+3}], v[{CA+4*u}:{CA+4*u+3}]")
    a("s_add_u32 s11, s11, 1")
    a("s_cmp_lt_u32 s11, 7")
    a("s_cbranch_scc1 L_h_step")
    for k in range(4): a(f"v_cndmask_b32 v{CA+k}, v{CA+k}, v{CA+4+k}, s[8:9]")
    for k in range(4): a(f"v_cndmask_b32 v{CA+8+k}, v{CA+8+k}, v{CA+12+k}, s[8:9]")
    for k in range(4): a(f"v_cndmask_b32 v{CA+k}, v{CA+k}, v{CA+8+k}, s[6:7]")
    apply_tag(CA)
    setexec(0x000f000f, 0x000f000f)
    a(f"buffer_store_dwordx4 v[{CA}:{CA+3}], v21, s[48:51], s15 offen sc1")
    a("s_mov_b64 exec, -1")
    a("s_setprio 0")
    stamp(5)
    a("s_and_b32 s4, s2, 0x18")
    a("s_cbranch_scc1 L_hend")
    def f_math():
        treduce4(96)
        emit(row_list("v_add_f32", 96, (4, 8)))
        bf16r(96, 96)
        silu_bf16(96, 96, 12)
        a("v_lshlrev_b32 v22, 16, v22")
    if flate:
        lds_spin(GCNT, 4, 12, 1)
        a("buffer_load_dwordx4 v[96:99], v19, s[48:51], s45 offen sc1")
    else:
        a("s_add_u32 s10, s10, 8")
        need("s10", sleep=1)
        L = a.label("L_f"); D = a.label("L_fd")
        a(f"s_mov_b32 s60, {spin_limit}")
        a(f"{L}:")
        a("buffer_load_dwordx4 v[96:99], v19, s[48:51], s45 offen sc1")
        a("s_waitcnt vmcnt(0)")
        tag_check([96], 12)
        retry_masked(L, D, 2)
        stamp(12)
        f_math()
    if sig2:
        a(f"s_mov_b32 s60, {spin_limit}")
        a("L_h_watch:")
        for k in range(4): a(f"s_load_dword s{28+k}, s[52:53], {256*k} glc")
        a("s_sub_u32 s60, s60, 1")
        a("s_cbranch_scc1 L_h_go")
        a("s_waitcnt lgkmcnt(0)")
        a("s_add_u32 s28, s28, s29")
        a("s_add_u32 s30, s30, s31")
        a("s_add_u32 s28, s28, s30")
        a("s_cmp_lg_u32 s28, s47")
        a("s_cbranch_scc1 L_h_watch")
        a("L_h_go:")
    else:
        lds_spin(OCNT, 4, 12, 1)
    def s_loads():
        for i in range(4):
            a(f"buffer_load_dwordx4 v[{80+4*i}:{83+4*i}], v18, s[48:51], s{20+i} offen sc1")
    s_loads()
    stamp(6)
    if flate:
        L = a.label("L_f"); D = a.label("L_fd")
        a(f"s_mov_b32 s60, {spin_limit}")
        a("s_waitcnt vmcnt(4)")
        a("s_branch L_f_chk")
        a(f"{L}:")
        a("buffer_load_dwordx4 v[96:99], v19, s[48:51], s45 offen sc1")
        a("s_waitcnt vmcnt(0)")
        a("L_f_chk:")
        tag_check([96], 12)
        retry_masked(L, D, 0)
        f_math()
    a(f"s_mov_b32 s60, {spin_limit}")
    a("L_s_chk:")
    tl = tag_list([80, 84, 88, 92], 12)
    a("s_waitcnt vmcnt(3)")
    emit(tl[0:4])
    a("s_waitcnt vmcnt(2)")
    emit(tl[4:8])
    for k in range(4): a(f"v_add_f32 v{100+k}, v{80+k}, v{84+k}")
    a("s_waitcnt vmcnt(1)")
    emit(tl[8:12])
    for k in range(4): a(f"v_add_f32 v{100+k}, v{100+k}, v{88+k}")
    a("s_waitcnt vmcnt(0)")
    for k in range(4): a(f"v_add_f32 v{100+k}, v{100+k}, v{92+k}")
    red = ["v_permlane32_swap_b32 v100, v102", "v_permlane32_swap_b32 v101, v103", "v_add_f32 v100, v100, v102", "v_add_f32 v101, v101, v103",
           "v_permlane16_swap_b32 v100, v101", "v_add_f32 v100, v100, v101"] + row_list("v_add_f32", 100, (4, 8))
    a(tl[12])
    emit(interleave(red, tl[13:] + join_list(12), {3: 2, 5: 2, 6: 1}))
    a("v_cmp_ne_u32 vcc, 0, v12")
    bf16r(100, 100)
    a("v_mul_f32 v100, v100, v96")
    a("s_cbranch_vccnz L_s_again")
    a("L_s_done:")
    stamp(13)
    bf16r(100, 100)
    a("v_add_f32 v100, v100, v22")
    a("v_cvt_pk_bf16_f32 v80, v100, v100")
    setexec(0x000f000f, 0x000f000f)
    if leak:
        a("s_cmp_lg_u32 s95, 0")
        a("s_cselect_b32 s58, 0, s58")
    a(f"buffer_store_short v80, v20, s[56:59], s46 offen{outsc}")
    stamp(14)
    a("s_cmp_eq_u32 s2, 0")
    a("s_cbranch_scc0 L_hend")
    a("s_mov_b64 exec, 1")
    a(f"s_mov_b32 s4, {EPOCH}")
    a(f"buffer_store_dword v{TG}, v0, s[48:51], s4 offen{outsc}")
    if leak:
        a("v_mov_b32 v12, 0x600df00d")
        a("buffer_store_dword v12, v0, s[48:51], s4 offen offset:4")
    a("L_hend:")
    dump_stamps(12, 13)
    if late is not None:
        a("s_mov_b64 exec, 0xff")
        a("s_lshl_b32 s4, s2, 7")
        a("s_add_u32 s4, s4, 0x800000")
        a(f"buffer_store_dwordx4 v[8:11], v6, s[48:51], s4 offen {late}")
    a("s_endpgm")

    a("L_s_again:")
    a("s_sub_u32 s60, s60, 1")
    a("s_cbranch_scc1 L_s_done")
    a("s_mov_b64 exec, vcc")
    s_loads()
    a("s_mov_b64 exec, -1")
    a("s_branch L_s_chk")

    role[0] = "T"
    a("L_ticket:")
    assert two
    a("s_cmp_lg_u32 s3, 6")
    a("s_cbranch_scc1 L_t_noent")
    pool_id(11)
    pool_member(6)
    if two:
        assert npool == 4 and dyn % 2 == 0 and lex % 2 == 0
        light_test()
        a(f"s_cselect_b32 s9, {lex // 2}, 0")
        a(f"s_add_u32 s8, s9, {dyn // 2}")
        a("v_subrev_u32 v15, s8, v0")
        a("v_cmp_gt_u32 s[100:101], s8, v0")
        a("v_cndmask_b32 v28, v15, v0, s[100:101]")
        a("s_lshl_b32 s4, s9, 4")
        a("s_sub_u32 s6, s6, s4")
        a("v_lshl_add_u32 v15, v28, 4, s6")
        a("s_bfe_u32 s4, s2, 0x10002")
        a(f"s_add_u32 s4, s4, {mem * dyn // 2}")
        a("v_lshl_add_u32 v31, v28, 1, s4")
        a("v_cmp_gt_u32 vcc, s9, v28")
        a("v_cndmask_b32 v15, v15, v31, vcc")
        a(f"s_mul_i32 s6, s11, {prot}")
        a("v_lshl_add_u32 v15, v15, 1, s6")
        a("v_and_b32 v15, 255, v15")
        a("s_lshl_b32 s7, s11, 21")
        a("v_lshl_add_u32 v15, v15, 13, s7")
        a("v_cndmask_b32 v28, 4, 8, s[100:101]")
        a("v_or_b32 v15, v15, v28")
        a("s_lshl_b32 s9, s9, 1")
    a("v_or_b32 v15, 1, v15")
    a("v_lshl_add_u32 v14, v0, 2, v1")
    if lex:
        a(f"s_add_u32 s9, s9, {dyn}")
        a("s_bfm_b64 exec, s9, 0")
    else:
        a(f"s_mov_b64 exec, {(1 << dyn) - 1}")
    a(f"ds_write_b32 v14, v15 offset:{TQ}")
    a("s_mov_b64 exec, -1")
    a("L_t_noent:")
    if otouch:
        a("s_cmp_lg_u32 s3, 7")
        a("s_cbranch_scc1 L_t_notouch2")
        need(otouch[0], sleep=8, count=False)
        a(f"s_mul_i32 s4, s2, {RSO}")
        a(f"s_add_u32 s4, s4, {OP}")
        if otouch[1] == "r":
            a("v_lshlrev_b32 v14, 7, v0")
            a("s_mov_b32 exec_hi, 0")
            a("buffer_load_dword v17, v14, s[48:51], s4 offen")
            a("s_mov_b64 exec, -1")
        else:
            for k in range(4): a(f"v_not_b32 v{20+k}, s13")
            for k in range(4): a(f"buffer_store_dwordx4 v[20:23], v6, s[48:51], s4 offen offset:{1024*k} sc1")
        a("L_t_notouch2:")
    pool_id(11)
    if stouch:
        a("s_cmp_lg_u32 s3, 7")
        a("s_cbranch_scc1 L_t_notouch")
        k = [64]
        def tch(p, off, imm=0):
            if imm: a(f"s_add_u32 s{off}, s{off}, {imm}")
            a(f"s_load_dword s{k[0]}, s[{p}:{p+1}], s{off}")
            k[0] += 1
        if "g" in stouch:
            a(f"s_mul_i32 s6, s14, {256*7168}")
            tch(28, 6); tch(30, 6); tch(28, 6, 255 * 7168); tch(30, 6)
        if "k" in stouch:
            a("s_lshl_b32 s6, s11, 21")
            tch(18, 6); tch(20, 6)
        if "t" in stouch:
            if "d" in stouch: need(40, sleep=8, count=False)
            wd_row(6)
            a(f"s_mul_i32 s6, s6, {224*2048}")
            tch(32, 6); tch(32, 6, 223 * 2048)
            rr_cc(6, 7)
            a("s_lshl_b32 s6, s6, 17")
            tch(24, 6)
        if "w" in stouch:
            a(f"s_mov_b32 s6, {0x280000}")
            tch(38, 6)
        a("s_waitcnt lgkmcnt(0)")
        a("L_t_notouch:")
    if kmap in "DEFGH":
        if kmap == "F":
            a("s_lshr_b32 s9, s11, 1")
            a("s_lshl_b32 s12, s9, 4")
            a("s_lshl_b32 s9, s9, 22")
            a("s_mov_b32 s8, s11")
        else:
            a(f"s_mul_i32 s12, s11, {prot}")
            a("s_lshl_b32 s9, s11, 21")
        a(f"s_add_u32 s12, s12, {mem*dyn + 2*lex}")
        a("s_or_b32 s9, s9, 1")
        if kmap == "H":
            a("s_and_b32 s8, s11, 3")
            a("s_and_b32 s9, s11, 12")
    elif kmap == "C":
        a(f"s_and_b32 s12, s11, {npool-1}")
        a("s_lshr_b32 s9, s2, 6")
        a(f"s_mul_i32 s4, s9, {rot}")
        a("s_add_u32 s12, s12, s4")
        a("s_lshl_b32 s12, s12, 13")
        a(f"s_add_u32 s12, s12, {64*dyn*8192 + 1}")
        a("s_lshl_b32 s9, s9, 23")
    else:
        a(f"s_mul_i32 s12, s11, {reg*8192}")
        a(f"s_add_u32 s12, s12, {mem*dyn*8192 + 1}")
    a(f"s_mul_i32 s11, s11, {cstride}")
    a(f"s_add_u32 s11, s11, {TCN}")
    a("s_add_u32 s56, s38, s11")
    a("s_addc_u32 s57, s39, 0")
    a(f"s_add_u32 s10, s3, {dyn - 6}")
    if lex:
        light_test()
        a(f"s_cselect_b32 s4, {lex}, 0")
        a("s_add_u32 s10, s10, s4")
    if early_t:
        a("s_waitcnt lgkmcnt(0)")
        a("s_add_u32 s13, s13, 0x01010101")
        a(f"s_xor_b32 s14, s13, {TAGX}")
        a("v_mov_b32 v12, 1")
        a("s_mov_b64 exec, 1")
        a(f"ds_add_u32 v1, v12 offset:{QCNT}")
        pool_member(6)
        a("s_add_u32 s6, s6, s3")
        a("s_cmp_lg_u32 s6, 6")
        a("s_cbranch_scc1 L_t_noinit")
        a("v_mov_b32 v20, 0")
        a("v_mov_b32 v21, s13")
        a("v_mov_b32 v22, s14")
        a("v_mov_b32 v23, s13")
        a("buffer_store_dwordx4 v[20:23], v0, s[48:51], s11 offen sc1")
        a("L_t_noinit:")
        a("s_mov_b64 exec, -1")
        a(f"s_sub_u32 s11, s10, {ahead}")
        a("s_max_i32 s11, s11, 0")
        light_test()
        a("s_cselect_b32 s4, 4, 14")
        need("s4", sleep=4, count=False)
        a(f"s_mov_b32 s60, {spin_limit}")
        a("L_t_rdy:")
        a("s_load_dwordx4 s[28:31], s[56:57], 0 glc")
        a("s_sub_u32 s60, s60, 1")
        a("s_cbranch_scc1 L_t_next")
        a("s_waitcnt lgkmcnt(0)")
        a("s_xor_b32 s29, s29, s13")
        a("s_xor_b32 s30, s30, s14")
        a("s_xor_b32 s31, s31, s13")
        a("s_or_b32 s29, s29, s30")
        a("s_or_b32 s29, s29, s31")
        a("s_cbranch_scc0 L_t_next")
        a("s_sleep 8")
        a("s_branch L_t_rdy")
    else:
        lds_spin(QCNT, 5, 12, 8)
    if touch:
        a("s_cmp_eq_u32 s3, 6")
        a("s_cselect_b64 s[40:41], s[32:33], s[24:25]")
        a("s_cselect_b32 s42, 7340032, s43")
        a("s_cselect_b32 s42, s42, 8388608")
        a("s_cselect_b64 exec, 0x7f, 3")
        rr_cc(6, 7)
        a("s_lshl_b32 s6, s6, 17")
        a("s_lshr_b32 s7, s2, 4")
        a(f"s_mul_i32 s7, s7, {224*2048}")
        a("s_cmp_eq_u32 s3, 6")
        a("s_cselect_b32 s6, s7, s6")
        a("v_lshlrev_b32 v14, 16, v0")
        a("buffer_load_dword v17, v14, s[40:43], s6 offen nt")
        a("s_mov_b64 exec, -1")
    a("L_t_next:")
    a(f"s_sub_u32 s11, s10, {ahead - 1}")
    lds_spin(STARTED, "s11", 12, tsleep)
    a("s_mov_b32 s15, 1")
    a("s_atomic_add s15, s[56:57], 0 glc")
    a("s_lshl_b32 s4, s10, 2")
    a("v_add_u32 v14, s4, v1")
    a("s_waitcnt lgkmcnt(0)")
    if not empt: a(f"s_min_u32 s15, s15, {nshared-1}")
    if kmap in "DEFGH":
        if kmap == "H":
            a("s_add_u32 s5, s15, s8")
            a("s_and_b32 s5, s5, 3")
            a("s_or_b32 s5, s5, s9")
            a("s_and_b32 s4, s15, -4")
            a("s_add_u32 s4, s4, s8")
            a(f"s_add_u32 s4, s4, {mem*dyn}")
            a("s_lshl4_add_u32 s4, s5, s4")
        else:
            a("s_add_u32 s4, s15, s12")
        a("s_and_b32 s4, s4, 255")
        if kmap == "F":
            a("s_lshr_b32 s5, s4, 7")
            a("s_xor_b32 s5, s5, s8")
            a("s_and_b32 s5, s5, 1")
            a("s_lshl_b32 s4, s4, 1")
            a("s_add_u32 s4, s4, s5")
        a("s_lshl_b32 s4, s4, 13")
        if kmap == "H":
            a("s_lshl_b32 s5, s5, 21")
            a("s_add_u32 s4, s4, s5")
            a("s_or_b32 s4, s4, 1")
        else:
            a("s_add_u32 s4, s4, s9")
    else:
        a(f"s_lshl_b32 s4, s15, {13 + (lgp if kmap == 'C' else 0)}")
        a("s_add_u32 s4, s4, s12")
    if kmap == "C":
        a("s_and_b32 s4, s4, 0x7fffff")
        a("s_add_u32 s4, s4, s9")
    if ztab:
        tab = sum(g << (4 * i) for i, g in enumerate(ztab))
        a(f"s_sub_u32 s5, s15, {zone}")
        a("s_and_b32 s5, s5, 0x1c")
        a(f"s_lshr_b32 s5, {tab}, s5")
        a("s_and_b32 s5, s5, 15")
        a("s_lshl_b32 s5, s5, 4")
        a("s_or_b32 s4, s4, s5")
    if wide:
        a(f"s_cmp_ge_u32 s15, {max(0, zone - wide[1])}")
        a("s_cselect_b32 s5, 16, 0")
        a("s_or_b32 s4, s4, s5")
    if empt:
        a(f"s_cmp_lt_u32 s15, {nshared}")
        a("s_cselect_b32 s4, s4, 0")
    a(f"s_add_u32 s10, s10, {ntw}")
    a(f"s_cmp_lt_u32 s15, {zone}")
    a("s_cselect_b32 s5, 0, 2")
    a("v_mov_b32 v15, s4")
    a("v_or_b32 v15, s5, v15")
    a(f"ds_write_b32 v14, v15 offset:{TQ}")
    a("s_cbranch_scc1 L_t_next")
    if sig1 is not None or sig2:
        L = a.label("L_nt"); D = a.label("L_ntd")
        a(f"s_mov_b32 s60, {spin_limit}")
        a(f"{L}:")
        refresh()
        a(f"s_cmp_lg_u32 s97, {BIG}")
        a(f"s_cbranch_scc1 {D}")
        a("s_sleep 2")
        a("s_sub_u32 s60, s60, 1")
        a(f"s_cbranch_scc0 {L}")
        a(f"{D}:")
        light_test()
        a("s_cselect_b32 s10, 2, 6")
        a("s_add_u32 s10, s10, s97")
        a("s_lshl_b32 s10, s10, 2")
        a("s_cmp_eq_u32 s3, 6")
        a("s_cbranch_scc1 L_t_zero")
    if rk:
        pool_id(6)
        a("s_lshr_b32 s4, s6, 2")
        a("s_lshl_b32 s7, s4, 14")
        if not rkgrp:
            a("s_and_b32 s5, s6, 3")
            a("s_lshl_b32 s8, s5, 8")
            a("s_add_u32 s7, s7, s8")
        a(f"s_add_u32 s7, s7, {AC1}")
        a("s_add_u32 s56, s38, s7")
        a("s_addc_u32 s57, s39, 0")
        a("s_mov_b32 s15, 1")
        a(f"s_add_u32 s11, s10, {rkat & 0xffffffff}")
        need("s11", sleep=1)
        a("s_atomic_add s15, s[56:57], 0 glc")
        tab = sum(g << (2 * i) for i, g in enumerate(rk))
        a(f"s_mov_b32 s6, {tab}")
        a("s_waitcnt lgkmcnt(0)")
        if rkgrp: a("s_lshr_b32 s15, s15, 2")
        a("s_lshl_b32 s15, s15, 1")
        a("s_lshr_b32 s6, s6, s15")
        a("s_and_b32 s6, s6, 3")
        a("v_mov_b32 v15, s6")
        a(f"ds_write_b32 v1, v15 offset:{GATE}")
    if sig1 is not None:
        pool_id(6)
        a("s_lshr_b32 s4, s6, 2")
        a("s_and_b32 s5, s6, 3")
        a("s_lshl_b32 s7, s4, 14")
        a("s_lshl_b32 s8, s5, 8")
        a("s_add_u32 s7, s7, s8")
        a(f"s_add_u32 s7, s7, {AC1}")
        a("s_add_u32 s56, s38, s7")
        a("s_addc_u32 s57, s39, 0")
        a("s_mov_b32 s15, 1")
        a("s_sub_u32 s11, s10, 2")
        need("s11", sleep=1)
        lds_spin(PCNT, sig1, 12, 0)
        for i in range(16): a(f"s_atomic_add s15, s[56:57], {1024*i}")
    if sig1 is not None or sig2:
        a("s_endpgm")
        a("L_t_zero:")
        rr_cc(6, 7)
    if sig1 is not None:
        a("s_lshl_b32 s5, s6, 10")
        a(f"s_add_u32 s5, s5, {AC1}")
        a("s_add_u32 s56, s38, s5")
        a("s_addc_u32 s57, s39, 0")
        a("v_mov_b32 v15, 1")
        a(f"s_add_u32 s11, s10, {s1from}")
        need("s11", sleep=1)
        L = a.label("L_w"); D = a.label("L_wd")
        a(f"s_mov_b32 s60, {spin_limit}")
        a(f"{L}:")
        for k in range(4): a(f"s_load_dword s{28+k}, s[56:57], {256*k} glc")
        a("s_waitcnt lgkmcnt(0)")
        a("s_add_u32 s28, s28, s29")
        a("s_add_u32 s30, s30, s31")
        a("s_add_u32 s28, s28, s30")
        a("s_cmp_eq_u32 s28, 64")
        a(f"s_cbranch_scc1 {D}")
        a("s_sub_u32 s60, s60, 1")
        a(f"s_cbranch_scc0 {L}")
        a(f"{D}:")
        a(f"ds_write_b32 v1, v15 offset:{GO}")
    if sig2:
        a("s_lshl_b32 s7, s7, 14")
        a("s_lshr_b32 s5, s2, 6")
        a("s_lshl_b32 s5, s5, 8")
        a("s_add_u32 s7, s7, s5")
        a(f"s_add_u32 s7, s7, {AC2}")
        a("v_mov_b32 v15, 1")
        a("v_lshlrev_b32 v14, 10, v0")
        a("s_add_u32 s10, s10, 15")
        need("s10", sleep=1)
        lds_spin(OCNT if sig2late else GCNT, gneed, 12, 0)
        a("s_mov_b64 exec, 0xffff")
        a("buffer_atomic_add v15, v14, s[48:51], s7 offen sc1")
    a("L_end:")
    a("s_endpgm")
    a("L_codeend:")
    name = NAME + "_kernel"
    hdr = open("cdna_kernels/" + NAME + ".s.ref").read().split("; Override launch")[0]
    txt = hdr + header([f"@launch grid=(256,1,1) block=({64*(6+ntw)},1,1) lds={LDS_BYTES}"]) + (DOC if comments else "") + kernel_begin(name) + a.text() + rodata() + \
        kernel_desc(name, 184, 102, extra="  .amdhsa_float_denorm_mode_32 3\n")
    return txt

BASE = dict(gate=13, sig2=True, dyn=12, lex=2, empt=12, flate=True, qstart=32, qlight=24, hstart=64, grow=(8, 32), two=True, dmap=True, fw=(1, 1), cmap="qu")
if __name__ == "__main__":
    open("final.s", "w").write(gen(comments=True, **BASE))
    open("k34.s", "w").write(gen(**BASE))
    V = {"k34": {}, "k34b": {}, "k35a": dict(sig1=4, s1pos="store", s1from=9), "k35ab": dict(sig1=4, s1pos="store", s1from=9),
         "k35l": dict(sig1=4, s1pos="last", s1from=9), "k35f11": dict(sig1=4, s1pos="store", s1from=11), "k35g11": dict(sig1=4, s1pos="store", s1from=7, gate=11),
         "k35ai": dict(sig1=4, s1pos="store", s1from=9, gui=True, ush=1, lex=4, empt=16)}
    for k, v in V.items():
        v = dict(BASE, **v)
        open(k + "_lt.s", "w").write(gen(lite=True, **v))
        open(k + "_st.s", "w").write(gen(stamps=True, **v))
    open("z_pl.s", "w").write(gen(probe=("L", 0, 0), **BASE))
    open("z_sc.s", "w").write(gen(probe=("L", 0, 0), outsc=" sc1", **BASE))
    for kind in ("cur", "one", "c32", "s32", "full"):
        for nm, sc in (("pl", ""), ("sc", "sc1")):
            open(f"z_{kind}_{nm}.s", "w").write(gen(probe=("L", 0, 0), outsc=" sc1", lv=(kind, sc), **BASE))
```

```python
import sys
from asmlib import *

QP, GP, CNT, OCN, EPOCH, SP, FP, OP, STAMP = 0, 0x10000, 0x30000, 0x34000, 0x3F000, 0x40000, 0xD0000, 0x100000, 0x400000
MISC = 0x20000
TQ, STARTED, GATE, GCNT, PCNT = 0x1100, 0x21C, 0x220, 0x224, 0x228
POST, PROG, QCNT, OCNT, GO, ZER, XN, HL, OL, QL = 0, 0x200, 0x210, 0x214, 0x218, 0x240, 0x300, 0x500, 0x700, 0x800
QROW = 272
SCR = 0x1700
SB = 0x1B00
LDS_BYTES = MISC + 0x3B00
TCN, AC1, AC2 = 0x340000, 0x390000, 0x3A0000
LOG2E = 0x3fb8aa3b
SCALE = 0x3db504f3
DPP = "row_mask:0xf bank_mask:0xf"
BIG = -1
TAGX = 0x5ac3a569

DOC = """
; out = x + (attn(LN(x)) @ wo) * silu(swiglu(LN(x))), one launch, one 8-wave workgroup per CU (all 256 are resident).
;
; Every input byte is streamed once, HBM -> LDS ring (8 slots x 16 KB), by wave 0 in this order:
;
; Hand-offs between workgroups go through d_ws with write-through stores (sc1) and sc1 loads:
;   f partials [16][1024], all fp32. Each 16-byte granule carries this launch's tag in the low byte of its words and
;   is only accepted together with the neighbours stored by the same instruction. The tag is the word found at
;   d_ws + 0x3f000 plus 0x01010101; workgroup 0 leaves it there at the end, so stale hand-offs never match.
;   The counters in d_ws (tickets, arrival hints) are reset inside the launch before the q hand-off that precedes their use.
"""

def interleave(chain, fill, gaps):
    out = []; fill = list(fill)
    for i, x in enumerate(chain):
        out.append(x)
        for _ in range(gaps.get(i, 0)):
            if fill: out.append(fill.pop(0))
    return out + fill

def gen(nt="nt", stamps=False, spin_limit=2000000, win=24, dyn=10, npool=4, outsc="", gate=10, skew=128, vtick=False,
        fsleep=0, osleep=1, qsleep=4, probe=None, cgate=False, early=True, ahead=2, ntw=2, cstride=256, late=None, gtab=None, ztab=None, wtab=None, spw=False, opw=False, fatom=False, leak=None, fine=False, wins=None, csleep=0, pace=0, pnop=0, cpf=True, sig1=None, sig2=False, touch=False, sig2late=False, lite=False, half=False, dup2=False, kmap='E', rot=0, early_t=False, empt=0, spos=0, abl='', win1=None, n1=9, hstart=0, qstart=0, sigpos='chk', gneed=4, flate=False, qlight=None, lex=0, gumix=False, w2=False, rk=None, rk0=4, rkgrp=False, rkat=-5, grow=None, tsleep=1, shardrd=False, s1pos='last', s1from=9, two=False, prot=16, dmap=False, fw=None, stouch=None, ofirst=True, pfn=None, comments=False, otouch=None, ost='sc1', old_='sc1', sched=None, wide=None, cmap='', ush=28, gui=False, lv=None, pre=None, ackst=False, delta=None):
    a = Asm()
    a.comments = comments
    sw = 1 if spw else 0
    ow = 1 if opw else 0
    RS = 4096 + skew
    RSS = (4096 << sw) + skew
    RSO = (4096 << ow) + skew
    NT = " " + nt if nt else ""
    role = ["-"]
    def stamp(k):
        if delta is not None and probe and (role[0], k) == (probe[0], delta): a("s_memrealtime s[74:75]")
        if lite and (k == 0 or (role[0], k) == ("H", 14)): a(f"s_memrealtime s[{64+2*k}:{65+2*k}]")
        if stamps or (leak and (k == 0 or (role[0], k) in [x[:2] for x in leak])): a(f"s_memrealtime s[{64+2*k}:{65+2*k}]")
        if probe and (k == 0 or (role[0], k) == probe[:2]): a(f"s_memrealtime s[{64+2*min(k,1)}:{65+2*min(k,1)}]")
    def leak_out():
        if not leak: return
        mine = [(i, x) for i, x in enumerate(leak) if x[0] == role[0]]
        Ln = a.label("L_noleak")
        a("s_waitcnt lgkmcnt(0)")
        srd(48, 38, 268435456)
        a("s_mov_b64 exec, 1")
        a("s_cmp_eq_u32 s93, 0")
        a(f"s_cbranch_scc1 {Ln}")
        for i, x in mine:
            if len(x) > 2:
                Ls = a.label("L_lk")
                a(f"s_cmp_lg_u32 s3, {x[2]}")
                a(f"s_cbranch_scc1 {Ls}")
            a(f"s_and_b32 s4, s{64+2*x[1]}, 0x3fff")
            a("v_mov_b32 v12, s4")
            a("s_lshl_b32 s4, s2, 3")
            a(f"s_add_u32 s4, s4, {2*i + 0x500000}")
            a("buffer_store_short v12, v0, s[48:51], s4 offen")
            if len(x) > 2: a(f"{Ls}:")
        a(f"{Ln}:")
        if role[0] == "H":
            Ln = a.label("L_noleak")
            a("s_cmp_eq_u32 s95, 0")
            a(f"s_cbranch_scc1 {Ln}")
            srd(52, 34, 2048)
            a("s_lshl_b32 s4, s2, 3")
            a("s_add_u32 s5, s4, 0x500000")
            a("buffer_load_dwordx2 v[12:13], v0, s[48:51], s5 offen")
            a("s_waitcnt vmcnt(0)")
            a("buffer_store_dwordx2 v[12:13], v0, s[52:55], s4 offen")
            a(f"{Ln}:")
    def leak_flag():
        if not leak: return
        a(f"s_load_dword s95, s[38:39], {EPOCH+4}")
        a("s_load_dword s94, s[16:17], 0")
        a("s_waitcnt lgkmcnt(0)")
        a("s_cmp_lg_u32 s95, 0x600df00d")
        a("s_cselect_b32 s93, 1, 0")
        a("s_cselect_b32 s95, 0, 1")
        a("s_cmp_lg_u32 s94, 0x3c6e3d96")
        a("s_cselect_b32 s95, s95, 0")
        a("s_cmp_lg_u32 s94, 0x3a3abc25")
        a("s_cselect_b32 s95, s95, 0")
    def probe_pad():
        if not probe or probe[0] != role[0]: return
        def until(base, lim):
            L = a.label("L_pp")
            a(f"{L}:")
            a("s_sleep 1")
            a("s_memrealtime s[70:71]")
            a("s_waitcnt lgkmcnt(0)")
            a(f"s_sub_u32 s70, s70, {base}")
            a(f"s_cmp_lt_u32 s70, {lim}")
            a(f"s_cbranch_scc1 {L}")
        a("s_waitcnt lgkmcnt(0)")
        a("s_cmp_eq_u32 s67, -1")
        a("s_cselect_b32 s66, s64, s66")
        a("s_cselect_b32 s69, 1, 0")
        until("s64", 2200)
        a("s_not_b32 s72, s64")
        a("s_atomic_umax s72, s[36:37], 0")
        until("s64", 3200)
        a("s_load_dword s72, s[36:37], 0 glc")
        a("s_waitcnt lgkmcnt(0)")
        a("s_not_b32 s72, s72")
        if delta is None: a("s_sub_u32 s66, s66, s72")
        else:
            a("s_sub_u32 s66, s66, " + ("s74" if delta else "s64"))
            a("s_cmp_eq_u32 s69, 1")
            a("s_cselect_b32 s66, 0, s66")
        if len(probe) > 3:
            a("s_atomic_add s66, s[36:37], 128")
            until("s64", 4400)
            a("s_load_dword s66, s[36:37], 128 glc")
            a("s_waitcnt lgkmcnt(0)")
            a("s_lshr_b32 s66, s66, 8")
        if probe[2] < 0 and probe[1]:
            a("s_cmp_eq_u32 s69, 1")
            a("s_cbranch_scc1 L_end")
        a(f"s_mul_i32 s66, s66, {probe[2]}")
        a(f"s_add_u32 s68, s66, {6000 if probe[2] >= 0 else 20000}")
        if lv:
            srd(48, 38, 268435456)
            kind, sc = lv
            a("s_and_b32 s4, s2, 7"); a("s_lshr_b32 s5, s2, 5")
            if kind in ("cur",):
                a("s_lshr_b32 s6, s5, 1"); a("s_lshl_b32 s6, s6, 3"); a("s_or_b32 s6, s6, s4"); a("s_lshl_b32 s6, s6, 1")
                a("s_and_b32 s5, s5, 1"); a("s_add_u32 s6, s6, s5")
            else:
                a("s_lshr_b32 s6, s5, 2"); a("s_lshl_b32 s6, s6, 3"); a("s_or_b32 s6, s6, s4"); a("s_lshl_b32 s6, s6, 2")
                a("s_and_b32 s5, s5, 3"); a("s_add_u32 s6, s6, s5")
            a("s_lshr_b32 s7, s6, 2"); a("s_lshl_b32 s7, s7, 7"); a("s_and_b32 s6, s6, 3")
            a(f"s_lshl_b32 s8, s6, {3 if kind in ('cur', 'one') else 5}")
            a("s_add_u32 s7, s7, s8"); a("s_add_u32 s7, s7, 0x800000")
            a("v_and_b32 v13, 3, v0"); a("v_lshlrev_b32 v20, 5, v13"); a("v_lshl_add_u32 v20, v4, 1, v20")
            a("v_lshlrev_b32 v21, 2, v0"); a("v_lshlrev_b32 v22, 1, v0")
        until("s72", "s68")
        if lv:
            a("s_and_b32 s4, s2, 0x18")
            a("s_cbranch_scc1 L_end")
            if kind in ("cur", "one"):
                setexec(0x000f000f, 0x000f000f)
                a(f"buffer_store_short v0, v20, s[48:51], s7 offen {sc}")
            elif kind == "c32":
                a("s_mov_b64 exec, 0xff")
                a(f"buffer_store_dword v0, v21, s[48:51], s7 offen {sc}")
            elif kind == "s32":
                a("s_mov_b64 exec, 0xffff")
                a(f"buffer_store_short v0, v22, s[48:51], s7 offen {sc}")
            elif kind == "full":
                a("s_cmp_lg_u32 s6, 0")
                a("s_cbranch_scc1 L_end")
                a("s_mov_b32 exec_hi, 0")
                a(f"buffer_store_dword v0, v21, s[48:51], s7 offen {sc}")
    def dump_stamps(vt, va):
        probe_pad()
        leak_out()
        if not (stamps or (lite and role[0] == "H")): return
        a("s_waitcnt lgkmcnt(0)")
        a("s_mov_b64 exec, -1")
        a(f"v_mov_b32 v{vt}, 0")
        for k in range(16):
            a(f"v_writelane_b32 v{vt}, s{64+2*k}, {k}")
        a("s_lshl_b32 s4, s2, 3")
        a("s_add_u32 s4, s4, s3")
        a("s_lshl_b32 s4, s4, 6")
        a(f"s_add_u32 s4, s4, {STAMP}")
        a(f"v_lshlrev_b32 v{va}, 2, v0")
        a("s_mov_b64 exec, 0xffff")
        a(f"buffer_store_dword v{vt}, v{va}, s[48:51], s4 offen")
    def srd(d, p, n):
        a(f"s_mov_b64 s[{d}:{d+1}], s[{p}:{p+1}]")
        a(f"s_mov_b32 s{d+2}, {n}")
        a(f"s_mov_b32 s{d+3}, 0x20000")
    def setexec(lo, hi):
        a(f"s_mov_b32 exec_lo, {lo:#x}")
        a(f"s_mov_b32 exec_hi, {hi:#x}")
    def row_list(op, r, steps=(1, 2, 4, 8)):
        return [f"{op}_dpp v{r}, v{r}, v{r} row_ror:{k} {DPP}" for k in steps]
    def cross_list(op, r, t):
        return [f"v_mov_b32 v{t}, v{r}", f"v_permlane16_swap_b32 v{r}, v{t}", f"{op} v{r}, v{r}, v{t}",
                f"v_mov_b32 v{t}, v{r}", f"v_permlane32_swap_b32 v{r}, v{t}", f"{op} v{r}, v{r}, v{t}"]
    def emit(l):
        for x in l: a(x)
    def bf16r(d, s):
        a(f"v_cvt_pk_bf16_f32 v{d}, 0, v{s}")
    TG = 8
    def make_tag():
        a("s_add_u32 s13, s13, 0x01010101")
        a("s_movk_i32 s63, 0xff")
        a("v_bfe_i32 v12, v0, 0, 1")
        a(f"v_and_b32 v12, {TAGX}, v12")
        a(f"v_xor_b32 v{TG}, s13, v12")
        for k in range(1, 4): a(f"v_lshrrev_b32 v{TG+k}, {8*k}, v{TG}")
    def apply_tag(r, tags=None):
        for k in range(4): a(f"v_bfi_b32 v{r+k}, s63, v{tags[k] if tags else TG+k}, v{r+k}")
    def tag_list(grans, t, n=4):
        o = []
        for g in grans:
            for k in range(n):
                if not o: o.append(f"v_xor_b32 v{t}, v{g+k}, v{TG+k}")
                else: o.append(f"v_bitop3_b32 v{t}, v{t}, v{g+k}, v{TG+k} bitop3:0xf6")
        o.append(f"v_and_b32 v{t}, 0xff, v{t}")
        return o
    def join_list(t, quad=True):
        o = [f"v_or_b32_dpp v{t}, v{t}, v{t} quad_perm:[1,0,3,2] {DPP}"]
        if quad: o.append(f"v_or_b32_dpp v{t}, v{t}, v{t} quad_perm:[2,3,0,1] {DPP}")
        return o
    def tag_check(grans, t, quad=True):
        emit(tag_list(grans, t) + join_list(t, quad))
        a(f"v_cmp_ne_u32 vcc, 0, v{t}")
    def treduce4(r):
        a(f"v_permlane32_swap_b32 v{r}, v{r+2}")
        a(f"v_permlane32_swap_b32 v{r+1}, v{r+3}")
        a(f"v_add_f32 v{r}, v{r}, v{r+2}")
        a(f"v_add_f32 v{r+1}, v{r+1}, v{r+3}")
        a(f"v_permlane16_swap_b32 v{r}, v{r+1}")
        a(f"v_add_f32 v{r}, v{r}, v{r+1}")
    def retry_masked(L, D, sleep=1):
        a("s_and_b64 exec, exec, vcc")
        a(f"s_cbranch_execz {D}")
        if sleep: a(f"s_sleep {sleep}")
        a("s_sub_u32 s60, s60, 1")
        a(f"s_cbranch_scc0 {L}")
        a(f"{D}:")
        a("s_mov_b64 exec, -1")
    def silu_bf16(d, x, t):
        a(f"v_mul_f32 v{t}, 0xbfb8aa3b, v{x}")
        a(f"v_exp_f32 v{t}, v{t}")
        a(f"v_add_f32 v{t}, 1.0, v{t}")
        a(f"v_rcp_f32 v{t}, v{t}")
        a(f"v_mul_f32 v{t}, v{t}, v{x}")
        bf16r(d, t)
    def lds_spin(off, n, vt, sleep=1):
        L = a.label("L_spin")
        a(f"s_mov_b32 s60, {spin_limit}")
        if sleep:
            E = a.label("L_spe")
            a(f"s_branch {E}")
        a(f"{L}:")
        if sleep:
            a(f"s_sleep {sleep}")
            a(f"{E}:")
        a(f"ds_read_b32 v{vt}, v1 offset:{off}")
        a("s_sub_u32 s60, s60, 1")
        a("s_waitcnt lgkmcnt(0)")
        a(f"v_readfirstlane_b32 s61, v{vt}")
        a("s_cselect_b32 s61, -1, s61")
        a(f"s_cmp_lt_u32 s61, {n}")
        a(f"s_cbranch_scc1 {L}")
    def refresh():
        a(f"ds_read_b64 v[12:13], v1 offset:{POST}")
        a("s_waitcnt lgkmcnt(0)")
        a("v_readfirstlane_b32 s96, v12")
        a("v_readfirstlane_b32 s97, v13")
    def need(x, sleep=0, count=True):
        if role[0] == "C": sleep = csleep
        L = a.label("L_need"); D = a.label("L_got")
        a(f"s_cmp_ge_u32 s96, {x}")
        a(f"s_cbranch_scc1 {D}")
        a(f"s_mov_b32 s60, {spin_limit}")
        a(f"{L}:")
        if sleep: a(f"s_sleep {sleep}")
        a(f"ds_read_b64 v[12:13], v1 offset:{POST}")
        a("s_sub_u32 s60, s60, 1")
        a("s_waitcnt lgkmcnt(0)")
        a("v_readfirstlane_b32 s96, v12")
        if count: a("v_readfirstlane_b32 s97, v13")
        a("s_cselect_b32 s96, -1, s96")
        if count: a("s_cselect_b32 s97, 0, s97")
        a(f"s_cmp_lt_u32 s96, {x}")
        a(f"s_cbranch_scc1 {L}")
        a(f"{D}:")
    def light_test():
        a("s_and_b32 s4, s2, 63")
        a("s_cmp_ge_u32 s4, 56")
    def wq_col(d):
        if "q" in cmap:
            a(f"s_lshr_b32 s{d}, s2, 3")
            a("s_lshl_b32 s4, s2, 1")
            a("s_and_b32 s4, s4, 8")
            a(f"s_xor_b32 s{d}, s{d}, s4")
            a(f"s_xor_b32 s{d}, s{d}, 4")
            a(f"s_and_b32 s{d}, s{d}, 15")
            a("s_lshr_b32 s4, s2, 6")
            a(f"s_lshl4_add_u32 s{d}, s4, s{d}")
        else: a(f"s_lshr_b32 s{d}, s2, 2")
    def up_shift(d, c, unit):
        if "u" in cmap:
            a(f"s_mov_b32 s{d}, {ush * unit}")
            a(f"s_cmp_ge_u32 s{c}, {56 - ush}")
            a(f"s_cselect_b32 s{d}, {((ush - 56) * unit) & 0xffffffff}, s{d}")
        else: a(f"s_mov_b32 s{d}, 0")
    def gu_col(d):
        if "g" in cmap:
            a("s_lshr_b32 s4, s2, 6")
            a("s_bfe_u32 s5, s2, 0x10002")
            a("s_lshl1_add_u32 s4, s4, s5")
            a("s_mul_i32 s4, s4, 7")
            a("s_bfe_u32 s5, s2, 0x30003")
            a(f"s_add_u32 s{d}, s4, s5")
            return
        if gumix:
            a("s_lshr_b32 s4, s2, 6")
            a("s_and_b32 s5, s2, 60")
            a(f"s_add_u32 s{d}, s4, s5")
            return
        a("s_lshr_b32 s4, s2, 6")
        a("s_mul_i32 s4, s4, 56")
        a("s_and_b32 s5, s2, 63")
        a("s_add_u32 s4, s4, s5")
        a(f"s_lshr_b32 s{d}, s4, 2")
    def wd_row(d):
        if dmap:
            a("s_lshr_b32 s62, s2, 7")
            a("s_lshl_b32 s62, s62, 3")
            a(f"s_and_b32 s{d}, s2, 7")
            a(f"s_or_b32 s{d}, s{d}, s62")
        else: a(f"s_lshr_b32 s{d}, s2, 4")
    def wd_col(d):
        if dmap: a(f"s_bfe_u32 s{d}, s2, 0x40003")
        else: a(f"s_and_b32 s{d}, s2, 15")
    def rr_cc(srr, scc):
        a(f"s_and_b32 s{srr}, s2, 7")
        a("s_lshr_b32 s62, s2, 5")
        a("s_lshl_b32 s62, s62, 3")
        a(f"s_or_b32 s{srr}, s{srr}, s62")
        a(f"s_bfe_u32 s{scc}, s2, 0x20003")
    lgp = npool.bit_length() - 1
    def pool_id(d):
        a("s_lshr_b32 s5, s2, 3")
        a("s_add_u32 s5, s5, s2")
        a(f"s_and_b32 s5, s5, {npool-1}")
        a("s_lshr_b32 s4, s2, 6")
        a(f"s_lshl_b32 s4, s4, {lgp}")
        a(f"s_add_u32 s{d}, s4, s5")
    def pool_member(d):
        a("s_bfe_u32 s5, s2, 0x30003")
        a(f"s_lshr_b32 s5, s5, {lgp}")
        a("s_lshl_b32 s5, s5, 3")
        a("s_and_b32 s4, s2, 7")
        a(f"s_add_u32 s{d}, s5, s4")
    def tr_addr(d):
        a("v_lshrrev_b32 v12, 2, v5")
        a("v_lshl_add_u32 v13, v4, 2, v12")
        a("v_bfe_u32 v12, v13, 1, 2")
        a("v_lshlrev_b32 v12, 5, v12")
        a("v_lshl_add_u32 v12, v13, 7, v12")
        a("v_and_b32 v13, 3, v0")
        a(f"v_lshl_add_u32 v{d}, v13, 3, v12")
    def slot_base(d, slot):
        a(f"s_and_b32 s{d}, {slot}, 7")
        a(f"s_lshl_b32 s{d}, s{d}, 14")

    a("s_cmp_ge_u32 s2, 256")
    a("s_cbranch_scc1 L_end")
    a("s_load_dwordx16 s[16:31], s[0:1], 0")
    a("s_load_dwordx8 s[32:39], s[0:1], 64")
    stamp(0)
    if probe: a("s_mov_b32 s67, -1")
    if cpf:
        a("s_getpc_b64 s[4:5]")
        a("L_pc:")
        a("v_subrev_u32 v12, 64, v0")
        a("v_mov_b32 v13, 0")
        a("v_cmp_gt_u32 vcc, (L_codeend-L_pc)/128, v12")
        a("v_lshlrev_b32 v12, 7, v12")
        a("s_and_saveexec_b64 s[6:7], vcc")
        a("s_cbranch_execz L_nopf")
        a("v_lshl_add_u64 v[12:13], v[12:13], 0, s[4:5]")
        a("global_load_dword v16, v[12:13], off offset:64")
        a("L_nopf:")
        a("s_mov_b64 exec, -1")
    a("v_cmp_gt_u32 vcc, 64, v0")
    a("v_lshrrev_b32 v1, 6, v0")
    a("v_and_b32 v0, 63, v0")
    a("v_lshrrev_b32 v2, 3, v0")
    a("v_and_b32 v3, 7, v0")
    a("v_lshrrev_b32 v4, 4, v0")
    a("s_and_b32 s14, s2, 3")
    a("s_mov_b32 s43, 0x20000")
    a("s_cbranch_vccz L_others")
    OTHERS_FIRST = ofirst
    def emit_others():
        a("L_others:")
        a("v_readfirstlane_b32 s3, v1")
        a("v_lshlrev_b32 v14, 5, v0")
        a("v_lshlrev_b32 v15, 3, v0")
        a("s_lshl_b32 s10, s14, 9")
        a("s_movk_i32 s42, 2048")
        a("s_xor_b32 s3, s3, 4")
        a("s_cmp_gt_u32 s3, 3")
        a(f"v_mov_b32 v1, {MISC}")
        for k in range(4): a(f"v_mov_b32 v{28+k}, 0")
        a("v_lshl_add_u32 v12, v0, 4, v1")
        a(f"ds_write_b128 v12, v[28:31] offset:{TQ}")
        a("v_lshl_add_u32 v13, v0, 2, v1")
        a(f"v_mov_b32 v27, {BIG}")
        a(f"ds_write_b32 v13, v30 offset:{PROG}")
        a(f"ds_write2_b32 v1, v30, v27 offset0:{POST//4} offset1:{POST//4+1}")
        a("s_waitcnt lgkmcnt(0)")
        a("s_mov_b64 s[40:41], s[16:17]")
        a(f"s_load_dword s13, s[38:39], {EPOCH}")
        a("s_cbranch_scc1 L_nox")
        a("buffer_load_dwordx4 v[56:59], v14, s[40:43], 0 offen")
        a("buffer_load_dwordx4 v[60:63], v14, s[40:43], 0 offen offset:16")
        a("buffer_load_dwordx2 v[64:65], v15, s[40:43], s10 offen")
        a("L_nox:")
        a("s_barrier")
        a("s_branch L_notloader")

    role[0] = "L"
    a("s_setprio 3")
    a("v_lshrrev_b32 v12, 5, v0")
    a("v_and_b32 v13, 3, v2")
    a("v_lshl_add_u32 v12, v12, 3, v13")
    a("v_lshlrev_b32 v13, 1, v4")
    a("v_xor_b32 v13, v13, v3")
    a("v_lshlrev_b32 v13, 4, v13")
    a("v_lshl_add_u32 v16, v12, 13, v13")
    a("s_lshl_b32 s8, s14, 21")
    wq_col(5)
    a("s_lshl_b32 s5, s5, 7")
    a("s_add_u32 s8, s8, s5")
    a("s_mov_b32 m0, 0")
    a("s_mov_b32 s42, 8388608")
    a("s_waitcnt lgkmcnt(0)")
    if fine: stamp(7)
    a("s_mov_b64 s[40:41], s[22:23]")
    def wloads(vo, stride):
        for i in range(4):
            ro = (16 * (i & 1) + 4 * (i >> 1)) * stride - 1024 * i
            if i: a(f"s_add_u32 s9, s8, {ro}")
            a(f"buffer_load_dwordx4 v{vo}, s[40:43], s{9 if i else 8} offen offset:{1024*i}{NT} lds")
        a(f"s_add_u32 s8, s8, {32*stride}")
        a("s_add_u32 m0, m0, 4096")
    a("L_ld_q:")
    wloads(16, 8192)
    a("s_cmp_lt_u32 m0, 0x8000")
    a("s_cbranch_scc1 L_ld_q")
    if fine: stamp(8)
    if ofirst:
        a("s_branch L_loader")
        emit_others()
    a("L_loader:")
    mem = 64 // npool; reg = 1024 // npool
    nshared = reg - mem * dyn - 2 * lex
    zone = nshared - ntw * mem + empt
    assert ntw == 2 and dyn + lex + 2 * (nshared + empt) + 4 <= 256
    a(f"v_mov_b32 v1, {MISC}")
    a("v_mov_b32 v30, 0")
    a(f"v_mov_b32 v31, {BIG}")
    a("s_barrier")
    if stamps:
        for k in range(1, 16):
            if not (fine and k in (7, 8)): a(f"s_mov_b32 s{64+2*k}, 0")
    stamp(1)
    pend = [None]; viamax = [False]
    def wait_post(w, defer=False):
        if defer and fw:
            pend[0] = w
            return
        if viamax[0]:
            a("v_add_u32 v39, 1, v39")
            a("v_max_i32 v30, v30, v39")
        else: a("v_add_u32 v30, 1, v30")
        a(f"s_waitcnt vmcnt({w})")
        a(f"ds_write_b64 v29, v[30:31] offset:{POST}")
    def unit(vo, srdn, so, step=4096):
        w = pend[0]; pend[0] = None
        for i in range(4):
            if w is not None and i % fw[1] == 0:
                if i == fw[0]: wait_post(w + fw[0])
                else: a(f"s_waitcnt vmcnt({w + fw[0]})")
            a(f"buffer_load_dwordx4 v{vo[i]}, s[{srdn}:{srdn+3}], s{so} offen offset:{1024*i}{NT} lds")
        a(f"s_add_u32 m0, m0, {step}" if step > 0 else f"s_sub_u32 m0, m0, {-step}")
        if pace: a(f"s_sleep {pace}")
    a("v_lshl_add_u32 v29, v0, 3, v1")
    VG, VD, VK, VV = [40, 41, 42, 43], [44, 45, 46, 47], [24, 25, 24, 25], [24, 25, 24, 25]
    a("s_movk_i32 s7, 7168")
    a(f"v_mad_u32_u24 v{VG[0]}, v12, s7, v13")
    for i in range(1, 4):
        a(f"v_add_u32 v{VG[i]}, {(16 * (i & 1) + 4 * (i >> 1)) * 7168 - 1024 * i}, v{VG[0]}")
    gu_col(6)
    if cmap: up_shift(12, 6, 128)
    a("s_lshl_b32 s6, s6, 7")
    a(f"s_mul_i32 s7, s14, {256*7168}")
    a("s_add_u32 s8, s7, s6")
    a("s_mov_b32 s42, 7340032")
    a("s_mov_b64 s[40:41], s[28:29]")
    a("s_mov_b32 s98, 2")
    a(f"s_cmp_ge_u32 s5, {7 if 'g' in cmap else 56}")
    w1 = win
    if fine: stamp(9)
    for w in range(28, w1 - 4, -4):
        wait_post(w)
        if fine: stamp(10 if w == 28 else 11)
    a("s_cbranch_scc1 L_ld_kv")
    a("s_add_u32 s12, s12, s8" if cmap else "s_mov_b32 s12, s8")
    if gui:
        srd(52, 30, 7340032)
        a("s_mov_b32 s98, 6")
        a("L_ld_gu2:")
        wait_post(w1 - 4, True)
        unit(VG, 40, 8, 0x8000)
        a(f"s_add_u32 s8, s8, {32*7168}")
        wait_post(w1 - 4, True)
        unit(VG, 52, 12, -0x7000)
        a(f"s_add_u32 s12, s12, {32*7168}")
        a("s_cmp_lt_u32 m0, 0x10000")
        a("s_cbranch_scc1 L_ld_gu2")
        a("s_mov_b32 m0, 0x18000")
    if not gui:
     a("s_mov_b32 s6, 0x10000")
     a("s_mov_b32 s98, 6")
     a("L_ld_gu:")
     wait_post(w1 - 4, True)
     unit(VG, 40, 8)
     a(f"s_add_u32 s8, s8, {32*7168}")
     a("s_cmp_lt_u32 m0, s6")
     a("s_cbranch_scc1 L_ld_gu")
     a("s_mov_b32 s8, s12")
     a("s_mov_b64 s[40:41], s[30:31]")
     a("s_mov_b32 s6, 0x18000")
     a("s_cmp_lt_u32 m0, s6")
     a("s_cbranch_scc1 L_ld_gu")
    a("L_ld_kv:")
    stamp(2)
    a(f"ds_read_b128 v[32:35], v1 offset:{PROG}")
    a(f"ds_read_b32 v37, v1 offset:{TQ}")
    a("v_mov_b32 v36, v1")
    a("v_and_b32 v5, 15, v0")
    for j in range(2):
        a(f"v_add_u32 v14, {4*j}, v4")
        a("v_lshlrev_b32 v14, 1, v14")
        a("v_xor_b32 v14, v14, v5")
        a("v_lshlrev_b32 v14, 4, v14")
        a(f"v_lshl_add_u32 v{VV[j]}, v4, 8, v14")
    srd(44, 18, 33554432)
    srd(48, 20, 33554432)
    a("s_mov_b32 s10, 0")
    a("s_mov_b32 s11, 0")
    a("s_mov_b32 s15, 0")
    if wide: a("s_mov_b32 s99, 0")
    a(f"s_mov_b32 s60, {spin_limit}")
    if stamps: a("s_memrealtime s[100:101]")
    a("s_branch L_ld_chk")
    if win1:
        assert n1 <= dyn - ahead
        a("L_ld_tile1:")
        a("s_and_b32 s8, s7, 0xffffe000")
        wait_post(w1 - 4, True)
        unit(VK, 44, 8)
        a("s_add_u32 s9, s8, 4096")
        a("s_add_u32 s11, s11, 1")
        a("v_mov_b32 v38, s11")
        wait_post(w1 - 4, True)
        unit(VK, 44, 9)
        a("v_lshl_add_u32 v36, v38, 2, v1")
        a("s_add_u32 s10, s10, 1")
        a("s_add_u32 s98, s98, 1")
        wait_post(w1 - 4, True)
        unit(VV, 48, 8)
        a(f"ds_read_b128 v[32:35], v1 offset:{PROG}")
        a(f"ds_read_b32 v37, v36 offset:{TQ}")
        wait_post(w1 - 4, True)
        unit(VV, 48, 9)
        a("s_and_b32 m0, m0, 0x1ffff")
        a(f"s_mov_b32 s60, {spin_limit}")
        a("L_ld_chk1:")
        a("s_waitcnt lgkmcnt(0)")
        a("v_min3_u32 v32, v32, v33, v34")
        a("v_readfirstlane_b32 s7, v37")
        a("v_min_u32 v32, v32, v35")
        a("s_sub_u32 s60, s60, 1")
        a("v_readfirstlane_b32 s4, v32")
        a("s_cselect_b32 s4, s98, s4")
        a("s_add_u32 s4, s4, 8")
        a("s_cmp_gt_u32 s4, s98")
        a("s_cbranch_scc1 L_ld_free1")
        a(f"ds_read_b128 v[32:35], v1 offset:{PROG}")
        a("s_branch L_ld_chk1")
        a("L_ld_free1:")
        a(f"s_cmp_lt_u32 s10, {n1}")
        a("s_cbranch_scc1 L_ld_tile1")
        for w in range(w1 - 4, win - 4, -4): wait_post(w)
    def peek():
        a(f"ds_read_b128 v[32:35], v1 offset:{PROG}")
        a(f"ds_read_b32 v37, v36 offset:{TQ}")
    def slot_body(wn):
        a("s_and_b32 s8, s7, 0xffffe000")
        if two:
            a("s_bitcmp1_b32 s7, 2")
            a("s_cselect_b64 s[44:45], s[20:21], s[18:19]")
        wait_post(wn - 4, True)
        unit(VK, 44, 8)
        a("s_add_u32 s9, s8, 4096")
        a("s_bfe_u32 s4, s7, 0x10001")
        a("s_and_b32 s5, s11, 1")
        a("s_lshl_b32 s4, s4, s5")
        a("s_or_b32 s15, s15, s4")
        a("s_add_u32 s11, s11, 1")
        a("s_xor_b32 s5, s5, 1")
        a("s_bitcmp1_b32 s15, s5")
        a("s_addc_u32 s11, s11, 0")
        a("v_mov_b32 v38, s11")
        if spos == 0: a(f"ds_write_b32 v1, v38 offset:{STARTED}")
        wait_post(wn - 4, True)
        unit(VK, 44, 9)
        if spos == 1: a(f"ds_write_b32 v1, v38 offset:{STARTED}")
        a("v_lshl_add_u32 v36, v38, 2, v1")
        a("s_add_u32 s10, s10, 1")
        a("s_cmp_eq_u32 s15, 3")
        a(f"s_cselect_b32 s4, s10, {BIG}")
        a("v_mov_b32 v31, s4")
        a("s_cselect_b32 s4, 4, 1")
        a("s_add_u32 s98, s98, s4")
        if two:
            a("s_bitcmp1_b32 s7, 3")
            a("s_cselect_b64 s[48:49], s[18:19], s[20:21]")
            a("s_and_b32 s4, s7, 12")
            a("s_cselect_b32 s4, 0x2000, 0")
            a("s_add_u32 s8, s8, s4")
            a("s_add_u32 s9, s9, s4")
        wait_post(wn - 4, True)
        unit(VV, 48, 8)
        if spos == 2: a(f"ds_write_b32 v1, v38 offset:{STARTED}")
        peek()
        wait_post(wn - 4, True)
        unit(VV, 48, 9)
        if spos == 3: a(f"ds_write_b32 v1, v38 offset:{STARTED}")
        a("s_and_b32 m0, m0, 0x1ffff")
        if stamps: a("s_memrealtime s[100:101]")
        a(f"s_mov_b32 s60, {spin_limit}")
    if wide:
        a("L_ld_wide0:")
        a(f"v_subrev_u32 v39, {wide[0] // 4}, v30")
        a("s_mov_b32 s99, 16")
        a("L_ld_wide:")
        viamax[0] = True
        slot_body(win + wide[0])
        viamax[0] = False
        a("s_branch L_ld_chk")
    a("L_ld_tile:")
    if wide:
        a("s_cmp_lg_u32 s99, 0")
        a("s_cbranch_scc1 L_ld_wide")
        a("s_bitcmp1_b32 s7, 4")
        a("s_cbranch_scc1 L_ld_wide0")
    slot_body(win)
    a("L_ld_chk:")
    a("s_waitcnt lgkmcnt(0)")
    a("v_min3_u32 v32, v32, v33, v34")
    a("v_readfirstlane_b32 s5, v37")
    a("v_min_u32 v32, v32, v35")
    a("s_cmp_eq_u32 s15, 3")
    a("v_readfirstlane_b32 s4, v32")
    a("s_cbranch_scc1 L_ld_end")
    a("s_add_u32 s4, s4, 8")
    a("s_cmp_gt_u32 s4, s98")
    a("s_cselect_b32 s7, s5, 0")
    a("s_bitcmp1_b32 s7, 0")
    if stamps:
        a("s_cbranch_scc0 L_ld_again")
        a("s_memrealtime s[62:63]")
        a("s_waitcnt lgkmcnt(0)")
        a("s_sub_u32 s62, s62, s100")
        a("s_add_u32 s88, s88, s62")
        a("s_max_u32 s90, s90, s62")
        a(f"s_cmp_eq_u32 s10, {dyn // 2}")
        a("s_cselect_b32 s78, s100, s78")
        a(f"s_cmp_eq_u32 s10, {dyn}")
        a("s_cselect_b32 s80, s100, s80")
        a("s_branch L_ld_tile")
    else:
        a("s_cbranch_scc1 L_ld_tile")
    a("L_ld_again:")
    if empt:
        a("s_cmp_eq_u32 s15, 3")
        a("s_cselect_b32 s5, 0, s5")
        a("s_cmp_lg_u32 s5, 2")
        a("s_cbranch_scc1 L_ld_peek")
        a("s_and_b32 s5, s11, 1")
        a("s_bitset1_b32 s15, s5")
        a("s_add_u32 s11, s11, 1")
        a("v_mov_b32 v32, s11")
        a("v_lshl_add_u32 v36, v32, 2, v1")
        a(f"ds_write_b32 v1, v32 offset:{STARTED}")
        a("s_cmp_eq_u32 s15, 3")
        a("s_cbranch_scc0 L_ld_peek")
        a("v_mov_b32 v31, s10")
        a("s_add_u32 s98, s98, 3")
        a("s_cmp_gt_u32 s4, s98")
        a("s_cbranch_scc1 L_ld_go")
        a("L_ld_peek:")
    peek()
    a("s_sub_u32 s60, s60, 1")
    a("s_cbranch_scc0 L_ld_chk")
    a("v_mov_b32 v30, 0x7fffffff")
    a("v_mov_b32 v31, s10")
    a(f"ds_write_b64 v29, v[30:31] offset:{POST}")
    a("s_endpgm")
    a("L_ld_end:")
    a("s_add_u32 s4, s4, 8")
    a("s_cmp_gt_u32 s4, s98")
    a("s_cbranch_scc0 L_ld_again")
    a("L_ld_go:")
    stamp(3)
    a(f"v_lshl_add_u32 v{VD[0]}, v12, 11, v13")
    for i in range(1, 4):
        a(f"v_add_u32 v{VD[i]}, {(16 * (i & 1) + 4 * (i >> 1)) * 2048 - 1024 * i}, v{VD[0]}")
    srd(52, 32, 7340032)
    wd_row(6)
    a(f"s_mul_i32 s96, s6, {224*2048}")
    wd_col(6)
    a("s_lshl_b32 s6, s6, 7")
    a("s_add_u32 s96, s96, s6")
    if stamps:
        a("s_add_u32 s92, s10, s64")
        a("s_add_u32 s88, s88, s64")
        a("s_add_u32 s90, s90, s64")
    if wide:
        a("s_cmp_eq_u32 s99, 0")
        a("s_cbranch_scc1 L_ld_narrow")
        for w in range(win + wide[0] - 4, win - 4, -4): wait_post(w)
        a("L_ld_narrow:")
    sch = dict(sched or ([(0, win), grow] if grow else [(0, win)]))
    infl = win // 4
    wn = win
    for k in range(15):
        wn = sch.get(k, wn)
        while infl > wn // 4:
            infl -= 1; wait_post(4 * infl)
        if infl == wn // 4: wait_post(wn - 4, True)
        else: infl += 1
        if k < 7:
            unit(VD, 52, 96)
            if k < 6: a("s_add_u32 s96, s96, 0x10000")
        else:
            unit(VD, 56, 97)
            if k < 14: a(f"s_add_u32 s97, s97, {0x10000 - 384 if k == 10 else 128}")
        if k % 4 == 3: a("s_and_b32 m0, m0, 0x1ffff")
        if k == 1: srd(56, 24, 8388608)
        if k == 2: rr_cc(6, 7)
        if k == 4:
            a("s_lshl_b32 s6, s6, 17")
            a("s_lshl_b32 s7, s7, 9")
            a("s_add_u32 s97, s6, s7")
        if k == 6: stamp(4)
    stamp(5)
    while infl > 0:
        infl -= 1; wait_post(4 * infl)
    stamp(6)
    a("L_ld_done:")
    if stamps:
        a("s_mov_b32 s3, 4")
        srd(48, 38, 268435456)
        a("s_getreg_b32 s94, hwreg(HW_REG_XCC_ID)")
        a("s_getreg_b32 s95, hwreg(HW_REG_HW_ID)")
        a("s_and_b32 s94, s94, 15")
        a("s_lshl_b32 s94, s94, 16")
        a("s_and_b32 s95, s95, 0xffff")
        a("s_or_b32 s94, s94, s95")
        a("s_or_b32 s94, s94, 0x1000000")
    dump_stamps(12, 13)
    a("s_endpgm")

    if not ofirst: emit_others()
    a("L_notloader:")
    if stamps or lite:
        for k in range(1, 16): a(f"s_mov_b32 s{64+2*k}, 0")
    a("v_and_b32 v5, 15, v0")
    a("v_lshlrev_b32 v6, 4, v0")
    srd(48, 38, 268435456)
    a("s_mov_b32 s96, 0")
    a(f"s_mov_b32 s97, {BIG}")
    a("s_cmp_eq_u32 s3, 5")
    a("s_cbranch_scc1 L_helper")
    a("s_cmp_gt_u32 s3, 5")
    a("s_cbranch_scc1 L_ticket")

    role[0] = "C"
    XF = 32
    AF = 64
    ACC = 80
    TA = 7
    a("s_setprio 1")
    tr_addr(TA)
    a("s_waitcnt lgkmcnt(0)")
    make_tag()
    a("s_waitcnt vmcnt(0)")
    stamp(1)
    pool_member(6)
    a("s_cmp_lg_u32 s6, 0")
    a("s_cbranch_scc1 L_nozero")
    pool_id(6)
    a("v_mov_b32 v12, 0")
    a("v_lshlrev_b32 v13, 10, v0")
    a(f"s_mul_i32 s7, s6, {cstride}")
    a(f"s_add_u32 s7, s7, {TCN}")
    a("s_mov_b64 exec, 1")
    if sig1 is not None or sig2:
        assert npool == 4
        a("s_cmp_eq_u32 s3, 0")
        a("s_cbranch_scc1 " + ("L_zeroed" if early_t else "L_dozero"))
        a("s_mov_b64 exec, 0xffff")
        a("s_lshr_b32 s4, s6, 2")
        a("s_and_b32 s5, s6, 3")
        if sig1 is not None or rk:
            a("s_lshl_b32 s7, s4, 14")
            a("s_lshl_b32 s8, s5, 8")
            a("s_add_u32 s7, s7, s8")
            a(f"s_add_u32 s7, s7, {AC1}")
            a("s_cmp_eq_u32 s3, 1")
            a("s_cbranch_scc1 L_dozero")
        a("s_lshl_b32 s7, s5, 14")
        a("s_lshl_b32 s8, s4, 8")
        a("s_add_u32 s7, s7, s8")
        a(f"s_add_u32 s7, s7, {AC2}")
        a("v_mov_b32 v12, s13")
        a("s_cmp_eq_u32 s3, 2")
    else:
        a("s_cmp_eq_u32 s3, 0")
    a("s_cbranch_scc0 L_zeroed")
    a("L_dozero:")
    a("buffer_store_dword v12, v13, s[48:51], s7 offen sc1")
    a("L_zeroed:")
    a("s_mov_b64 exec, -1")
    a("L_nozero:")
    for i in range(8):
        a(f"v_lshlrev_b32 v{32+2*i}, 16, v{56+i}")
        a(f"v_and_b32 v{33+2*i}, 0xffff0000, v{56+i}")
    a("v_add_f32 v16, v32, v33")
    a("v_add_f32 v17, v34, v35")
    for i in range(2, 8):
        a(f"v_add_f32 v16, v16, v{32+2*i}")
        a(f"v_add_f32 v17, v17, v{33+2*i}")
    a("v_add_f32 v16, v16, v17")
    emit(row_list("v_add_f32", 16) + cross_list("v_add_f32", 16, 17))
    a("v_mul_f32 v16, 0x3a800000, v16")
    for i in range(16):
        a(f"v_sub_f32 v{32+i}, v{32+i}, v16")
    a("v_mul_f32 v17, v32, v32")
    a("v_mul_f32 v18, v33, v33")
    for i in range(1, 8):
        a(f"v_fmac_f32 v17, v{32+2*i}, v{32+2*i}")
        a(f"v_fmac_f32 v18, v{33+2*i}, v{33+2*i}")
    a("v_add_f32 v17, v17, v18")
    emit(row_list("v_add_f32", 17) + cross_list("v_add_f32", 17, 18))
    a("v_mul_f32 v17, 0x3a800000, v17")
    bf16r(16, 16)
    bf16r(17, 17)
    a("v_add_f32 v17, 0x3727c5ac, v17")
    bf16r(17, 17)
    a("v_sqrt_f32 v17, v17")
    for i in range(2):
        a(f"v_lshlrev_b32 v{18+2*i}, 16, v{64+i}")
        a(f"v_and_b32 v{19+2*i}, 0xffff0000, v{64+i}")
    bf16r(17, 17)
    a("v_rcp_f32 v17, v17")
    for i in range(4): a(f"v_sub_f32 v{18+i}, v{18+i}, v16")
    for i in range(4): bf16r(18 + i, 18 + i)
    for i in range(4): a(f"v_mul_f32 v{18+i}, v{18+i}, v17")
    a("v_cvt_pk_bf16_f32 v18, v18, v19")
    a("v_cvt_pk_bf16_f32 v19, v20, v21")
    a("v_add_u32 v15, v15, v1")
    a(f"ds_write_b64 v15, v[18:19] offset:{XN}")
    a("v_lshl_add_u32 v14, v4, 4, v1")
    for s in range(8):
        a(f"ds_read_b128 v[{XF+4*s}:{XF+4*s+3}], v14 offset:{XN+64*s}")
    stamp(2)
    A1 = 27
    a(f"v_lshl_add_u32 v12, v0, 2, v1")
    a(f"v_add_u32 v12, {SCR}, v12")
    a("v_cmp_eq_u32 vcc, 0, v0")
    a(f"v_cndmask_b32 v{A1}, v12, v1, vcc")
    a("s_lshl_b32 s4, s3, 2")
    a(f"v_add_u32 v28, s4, v{A1}")
    def progress(x):
        a(f"v_mov_b32 v29, {x}")
        a(f"ds_write_b32 v28, v29 offset:{PROG}")
    a("s_lshl_b32 s4, s3, 5")
    a(f"v_xor_b32 v14, s4, v{TA}")
    a("s_lshl_b32 s8, s14, 14")
    a("s_lshl_b32 s9, s3, 6")
    a("s_add_u32 s8, s8, s9")
    gu_col(11)
    if cmap:
        up_shift(27, 11, 256)
        a("s_add_u32 s27, s27, 0x10000")
    a("s_lshl_b32 s11, s11, 8")
    a("s_add_u32 s11, s11, s8")
    if cmap: a(f"s_add_u32 s11, s11, {GP}")
    wq_col(9)
    a("s_lshl_b32 s9, s9, 8")
    a("s_add_u32 s9, s9, s8")
    light_test()
    a("s_cselect_b32 s15, 2, 6")
    a("s_mov_b32 s99, 0")
    a("s_mov_b32 s10, 0")
    a("v_lshlrev_b32 v15, 6, v4")
    a("v_and_b32 v15, 3, v0")
    a("v_lshlrev_b32 v15, 6, v15")
    if gui: a("s_mov_b32 s24, 1")
    a("L_c_blk:")
    for (s0, s1) in [(0, 4), (4, 6), (6, 8)]:
        if gui: a(f"s_lshl{(s1-s0)//2}_add_u32 s10, s24, s10")
        else: a(f"s_add_u32 s10, s10, {s1-s0}")
        need("s10")
        for s in range(s0, s1):
            for t in range(2):
                d = AF + 4 * (s & 3) + 2 * t
                a(f"ds_read_b64_tr_b16 v[{d}:{d+1}], v14 offset:{s*4096+t*2048}")
        a("s_waitcnt lgkmcnt(0)")
        for s in range(s0, s1):
            c = "0" if s == 0 else f"v[{ACC}:{ACC+3}]"
            a(f"v_mfma_f32_16x16x32_bf16 v[{ACC}:{ACC+3}], v[{AF+4*(s&3)}:{AF+4*(s&3)+3}], v[{XF+4*s}:{XF+4*s+3}], {c}")
        if s1 % 4 == 0:
            a("s_add_u32 s99, s99, 1")
            progress("s99")
    a("v_add_u32 v14, 0x8000, v14")
    for k in range(4): a(f"ds_bpermute_b32 v{ACC+k}, v15, v{ACC+k}")
    a("s_waitcnt vmcnt(0) lgkmcnt(0)")
    apply_tag(ACC)
    a("s_mov_b64 exec, 0xf")
    a(f"buffer_store_dwordx4 v[{ACC}:{ACC+3}], v6, s[48:51], s9 offen sc1")
    a("s_mov_b64 exec, -1")
    if stamps or probe or leak:
        a("s_cmp_lg_u32 s99, 2")
        a("s_cbranch_scc1 L_c_ns3")
        stamp(3)
        a("L_c_ns3:")
    if cmap:
        a("s_mov_b32 s9, s11")
        a("s_add_u32 s11, s11, s27")
    else:
        a("s_add_u32 s11, s11, 0x10000")
        a("s_mov_b32 s9, s11")
    if gui:
        a("s_lshl_b32 s24, s24, 1")
        a("s_and_b32 s24, s24, 3")
    a("s_cmp_lt_u32 s99, s15")
    a("s_cbranch_scc1 L_c_blk")
    stamp(4)
    leak_flag()
    if qlight:
        light_test()
        a(f"s_cselect_b32 s4, {qlight}, {qstart}")
        need("s4")
    elif qstart: need(qstart)
    a("s_lshr_b32 s4, s2, 6")
    a("s_lshl_b32 s4, s4, 12")
    a("s_lshl_b32 s5, s3, 10")
    a("s_add_u32 s52, s4, s5")
    a("s_add_u32 s53, s52, 16384")
    a("s_add_u32 s54, s52, 32768")
    a("s_add_u32 s55, s52, 49152")
    def q_loads():
        for r in range(1 if "q" in abl else 4):
            a(f"buffer_load_dwordx4 v[{64+4*r}:{67+4*r}], v6, s[48:51], s{52+r} offen sc1")
    q_loads()
    KF = 32; QF = 96; SC = 64; VF = 72; AO = 80
    KA = 112; VA = 116; KC = 120; VC = 118
    S = 16; P = 20; M2, LS, AL = 24, 25, 26
    RL, LB = 30, 31
    A_OP, A_PERM, A_SH, A_G, A_OL, A_SP, A_M, SEL1, SEL2, A_QR, ONE = 128, 129, 130, 131, 132, 133, 134, 138, 139, 140, 141
    a("v_lshlrev_b32 v13, 1, v3")
    for m in range(4):
        a(f"v_add_u32 v12, {4*m}, v4")
        a("v_xor_b32 v12, v12, v13")
        a("v_lshlrev_b32 v12, 4, v12")
        a(f"v_lshl_add_u32 v{KA+m}, v5, 8, v12")
    a("v_lshrrev_b32 v12, 2, v5")
    a("v_lshl_add_u32 v12, v4, 2, v12")
    a("v_and_b32 v15, 3, v0")
    a("v_lshlrev_b32 v13, 3, v15")
    a("v_lshl_add_u32 v13, v12, 8, v13")
    a("v_add_u32 v13, 8192, v13")
    a("v_and_b32 v12, 7, v12")
    a("s_lshl_b32 s4, s3, 1")
    for n in range(2):
        a(f"s_add_u32 s5, s4, {n}")
        a("v_xor_b32 v14, s5, v12")
        a(f"v_lshl_add_u32 v{VA+n}, v14, 5, v13")
    a(f"v_mov_b32 v{M2}, 0xff7fffff")
    a(f"v_mov_b32 v{LS}, 0")
    for i in range(8): a(f"v_mov_b32 v{AO+i}, 0")
    a("v_cmp_lt_u32 s[100:101], 7, v5")
    a(f"s_mov_b32 s12, {LOG2E}")
    a(f"v_mul_u32_u24 v14, {QROW}, v3")
    a("v_lshl_add_u32 v14, v4, 4, v14")
    a(f"v_add_u32 v{A_QR}, v14, v1")
    a(f"v_mov_b32 v{ONE}, 1")
    a(f"v_lshlrev_b32 v14, {9+ow}, v2")
    if opw:
        a("v_and_b32 v13, 4, v0")
        a("v_lshl_add_u32 v14, v13, 4, v14")
    a(f"v_lshl_add_u32 v{A_OP}, v3, 4, v14")
    a("v_lshlrev_b32 v13, 4, v15")
    a("v_and_b32 v14, 4, v0")
    a("v_lshl_add_u32 v13, v14, 1, v13")
    a("v_add_u32 v13, v13, v2")
    a(f"v_lshlrev_b32 v{A_PERM}, 2, v13")
    a(f"v_lshlrev_b32 v{A_SH}, 3, v4")
    TO = 143
    a("v_bfe_i32 v12, v0, 4, 1")
    a(f"v_and_b32 v12, {TAGX}, v12")
    a(f"v_xor_b32 v{TO}, s13, v12")
    for k in range(1, 3): a(f"v_lshrrev_b32 v{TO+k}, {8*k}, v{TO}")
    a(f"s_mul_i32 s4, s2, {RSO}")
    a(f"s_lshl_b32 s5, s3, {7+ow}")
    a("s_add_u32 s4, s4, s5")
    a(f"s_add_u32 s44, s4, {OP}")
    rr_cc(4, 5)
    a(f"s_mul_i32 s8, s4, {RSS}")
    a(f"s_lshl_b32 s9, s5, {10+sw}")
    a("s_add_u32 s8, s8, s9")
    a(f"s_lshl_b32 s9, s3, {8+sw}")
    a("s_add_u32 s8, s8, s9")
    a(f"s_add_u32 s45, s8, {SP}")
    if cgate:
        a("s_lshl_b32 s8, s4, 8")
        a(f"s_add_u32 s8, s8, {OCN}")
        a("s_add_u32 s58, s38, s8")
        a("s_addc_u32 s59, s39, 0")
        a("s_lshr_b32 s8, s2, 6")
        a("s_lshl_b32 s8, s8, 12")
        a(f"s_add_u32 s46, s8, {OCN}")
        a("v_lshlrev_b32 v142, 8, v0")
    a("s_lshr_b32 s8, s4, 4")
    a(f"s_mul_i32 s8, s8, {64*RSO}")
    a("s_and_b32 s9, s4, 15")
    a(f"s_lshl_b32 s9, s9, {8+ow}")
    a("s_add_u32 s8, s8, s9")
    a(f"s_lshl_b32 s9, s3, {6+ow}")
    a("s_add_u32 s8, s8, s9")
    a(f"s_add_u32 s16, s8, {OP}")
    a(f"s_add_u32 s17, s16, {RSO}")
    a(f"s_add_u32 s18, s16, {2*RSO}")
    a(f"s_add_u32 s19, s16, {3*RSO}")
    a("v_lshrrev_b32 v13, 2, v0")
    a(f"v_mul_u32_u24 v13, {4*RSO}, v13")
    a(f"v_lshl_add_u32 v{A_G}, v15, 4, v13")
    a("v_lshl_add_u32 v12, v4, 4, v1")
    a(f"v_add_u32 v12, {OL}, v12")
    a(f"v_add_u32 v13, {ZER}, v1")
    for u in range(4):
        a(f"v_cmp_eq_u32 vcc, {u}, v15")
        a(f"v_cndmask_b32 v{A_M+u}, v13, v12, vcc")
    a("s_lshl_b32 s4, s3, 5")
    a("v_lshl_add_u32 v13, v4, 1, v1")
    a("v_lshl_add_u32 v13, v15, 3, v13")
    a(f"v_add_u32 v{A_OL}, s4, v13")
    a("v_lshlrev_b32 v13, 4, v5")
    a(f"v_lshl_add_u32 v{A_SP}, v4, {6+sw}, v13")
    a("v_and_b32 v12, 1, v0")
    a("v_cmp_eq_u32 vcc, 1, v12")
    a("v_mov_b32 v12, 0x06020400")
    a("v_mov_b32 v13, 0x03070105")
    a(f"v_cndmask_b32 v{SEL1}, v12, v13, vcc")
    a("v_and_b32 v12, 2, v0")
    a("v_cmp_eq_u32 vcc, 2, v12")
    a("v_mov_b32 v12, 0x05040100")
    a("v_mov_b32 v13, 0x03020706")
    a(f"v_cndmask_b32 v{SEL2}, v12, v13, vcc")
    a("s_mov_b32 s20, 0x0c0c0400")
    a("s_mov_b32 s21, 0x05040100")
    L = a.label("L_q"); D = a.label("L_qd")
    a(f"s_mov_b32 s60, {spin_limit}")
    a("s_branch L_q_wait")
    a(f"{L}:")
    q_loads()
    a("L_q_wait:")
    a("s_waitcnt vmcnt(0)")
    tag_check([64] if "q" in abl else [64, 68, 72, 76], 12)
    retry_masked(L, D, qsleep)
    stamp(5)
    for k in range(4): a(f"v_add_f32 v{64+k}, v{64+k}, v{68+k}")
    for k in range(4): a(f"v_add_f32 v{72+k}, v{72+k}, v{76+k}")
    for k in range(4): a(f"v_add_f32 v{64+k}, v{64+k}, v{72+k}")
    a("v_cvt_pk_bf16_f32 v64, v64, v65")
    a("v_cvt_pk_bf16_f32 v65, v66, v67")
    a("v_lshrrev_b32 v12, 5, v0")
    a("s_lshl_b32 s4, s3, 1")
    a("v_add_u32 v12, s4, v12")
    a(f"v_mul_u32_u24 v12, {QROW}, v12")
    a("v_and_b32 v13, 31, v0")
    a("v_lshl_add_u32 v12, v13, 3, v12")
    a("v_add_u32 v12, v12, v1")
    a(f"ds_write_b64 v12, v[64:65] offset:{QL}")
    a(f"ds_add_u32 v{A1}, v{ONE} offset:{QCNT}")
    lds_spin(QCNT, 7 if early_t else 5, 12, 0)
    for m in range(4):
        a(f"ds_read_b128 v[{QF+4*m}:{QF+4*m+3}], v{A_QR} offset:{QL+64*m}")
    stamp(6)
    def k_reads():
        for m in range(4): a(f"v_add_u32 v{KC+m}, s4, v{KA+m}")
        for t in range(2):
            for m in range(4):
                d = KF + 16 * t + 4 * m
                a(f"ds_read_b128 v[{d}:{d+3}], v{KC+m} offset:{4096*t}")
    def v_addr():
        for n in range(2): a(f"v_add_u32 v{VC+n}, s5, v{VA+n}")
    def v_reads(VF=VF, off=0):
        for n in range(2):
            for t in range(2):
                d = VF + 4 * n + 2 * t
                a(f"ds_read_b64_tr_b16 v[{d}:{d+1}], v{VC+n} offset:{off+4096*t}")
    def qk_list(KF=KF, SC=SC):
        out = []
        for t in range(2):
            for m in range(4):
                d = KF + 16 * t + 4 * m
                c = "0" if m == 0 else f"v[{SC+4*t}:{SC+4*t+3}]"
                out.append(f"v_mfma_f32_16x16x32_bf16 v[{SC+4*t}:{SC+4*t+3}], v[{d}:{d+3}], v[{QF+4*m}:{QF+4*m+3}], {c}")
        return out
    def softmax_list():
        o = []
        for k in range(4): o.append(f"v_cndmask_b32 v{S+k}, v{SC+k}, v{SC+4+k}, s[100:101]")
        for k in range(4): o.append(f"v_cvt_pk_bf16_f32 v{S+k}, 0, v{S+k}")
        for k in range(4): o.append(f"v_mul_f32 v{S+k}, {SCALE}, v{S+k}")
        for k in range(4): o.append(f"v_cvt_pk_bf16_f32 v{S+k}, 0, v{S+k}")
        o.append(f"v_max3_f32 v14, v{S}, v{S+1}, v{S+2}")
        o.append(f"v_max_f32 v14, v14, v{S+3}")
        o.append("MARK")
        o += row_list("v_max_f32", 14, (8,)) + cross_list("v_max_f32", 14, 15)
        o.append("v_mul_f32 v14, s12, v14")
        o.append(f"v_max_f32 v14, v14, v{M2}")
        o.append(f"v_sub_f32 v{AL}, v{M2}, v14")
        o.append(f"v_mov_b32 v{M2}, v14")
        o.append(f"v_exp_f32 v{AL}, v{AL}")
        for k in range(4): o.append(f"v_fma_f32 v{S+k}, v{S+k}, s12, -v14")
        for k in range(4): o.append(f"v_exp_f32 v{S+k}, v{S+k}")
        for i in range(4): o.append(f"v_mul_f32 v{AO+i}, v{AL}, v{AO+i}")
        o.append(f"v_cvt_pk_bf16_f32 v{P}, v{S}, v{S+1}")
        o.append(f"v_cvt_pk_bf16_f32 v{P+1}, v{S+2}, v{S+3}")
        for i in range(4, 8): o.append(f"v_mul_f32 v{AO+i}, v{AL}, v{AO+i}")
        o.append(f"v_mov_b32_dpp v{P+2}, v{P} row_ror:8 {DPP}")
        o.append(f"v_mov_b32_dpp v{P+3}, v{P+1} row_ror:8 {DPP}")
        o.append(f"v_add_f32 v14, v{S}, v{S+1}")
        o.append(f"v_add_f32 v15, v{S+2}, v{S+3}")
        o.append("v_add_f32 v14, v14, v15")
        o.append(f"v_fma_f32 v{LS}, v{LS}, v{AL}, v14")
        return o
    def pv(VF=VF, P=P):
        for n in range(2):
            a(f"v_mfma_f32_16x16x32_bf16 v[{AO+4*n}:{AO+4*n+3}], v[{VF+4*n}:{VF+4*n+3}], v[{P}:{P+3}], v[{AO+4*n}:{AO+4*n+3}]")
    def arrive():
        Ln = a.label("L_noarr")
        a("s_cmp_lg_u32 s3, 0")
        a(f"s_cbranch_scc1 {Ln}")
        a("s_mov_b64 exec, 0xffff")
        a(f"buffer_atomic_add v{ONE}, v142, s[48:51], s46 offen sc1")
        a("s_mov_b64 exec, -1")
        a(f"{Ln}:")
    def stats():
        a(f"v_mov_b32 v{RL}, v{LS}")
        emit(row_list("v_add_f32", RL, (8,)) + cross_list("v_add_f32", RL, 15))
        a(f"v_log_f32 v{LB}, v{RL}")
        a(f"v_rcp_f32 v{RL}, v{RL}")
        a("s_sub_u32 s6, s10, 2")
        a(f"v_add_f32 v{LB}, v{LB}, v{M2}")
        a(f"v_lshrrev_b32 v{LB}, v{A_SH}, v{LB}")
    cnt = not (stamps or probe or leak)
    if two:
        KF2, SC2, S2, PK, A_SB, VF2, P2 = 152, 72, 88, 92, 146, 152, 160
        light_test()
        a(f"s_cselect_b32 s25, {(dyn + lex) // 2}, {dyn // 2}")
        a("s_mov_b32 s11, 0")
        a("s_mov_b32 s26, 0x07060302")
        a(f"v_add_u32 v{A_SB}, v6, v1")
        a("L_c_kk:")
        a("s_add_u32 s10, s10, 4")
        need("s10")
        slot_base(4, "s99")
        k_reads()
        for t in range(2):
            for m in range(4):
                d = KF2 + 16 * t + 4 * m
                a(f"ds_read_b128 v[{d}:{d+3}], v{KC+m} offset:{8192+4096*t}")
        a("s_add_u32 s99, s99, 1")
        a("s_add_u32 s11, s11, 1")
        qa = qk_list(); qb = qk_list(KF2, SC2)
        a("s_waitcnt lgkmcnt(8)" if cnt else "s_waitcnt lgkmcnt(0)")
        emit(qa)
        a("s_waitcnt lgkmcnt(0)")
        progress("s99")
        def pre(sc, sv, pk):
            o = [f"v_cndmask_b32 v{sv+k}, v{sc+k}, v{sc+4+k}, s[100:101]" for k in range(4)]
            o += [f"v_cvt_pk_bf16_f32 v{sv+k}, 0, v{sv+k}" for k in range(4)]
            o += [f"v_mul_f32 v{sv+k}, {SCALE}, v{sv+k}" for k in range(4)]
            o += [f"v_cvt_pk_bf16_f32 v{sv+k}, 0, v{sv+k}" for k in range(4)]
            o += [f"v_max3_f32 v{M2}, v{M2}, v{sv}, v{sv+1}", f"v_perm_b32 v{pk}, v{sv+1}, v{sv}, s26",
                  f"v_max3_f32 v{M2}, v{M2}, v{sv+2}, v{sv+3}", f"v_perm_b32 v{pk+1}, v{sv+3}, v{sv+2}, s26"]
            return o
        emit(interleave(qb, pre(SC, S, PK), {3: 1, 4: 3, 5: 3, 6: 3}))
        emit(pre(SC2, S2, PK + 2))
        a(f"ds_write_b128 v{A_SB}, v[{PK}:{PK+3}] offset:{SB}")
        a(f"v_add_u32 v{A_SB}, 1024, v{A_SB}")
        a("s_cmp_lt_u32 s11, s25")
        a("s_cbranch_scc1 L_c_kk")
        stamp(7)
        emit(row_list("v_max_f32", M2, (8,)) + cross_list("v_max_f32", M2, 15))
        a(f"v_mul_f32 v{M2}, s12, v{M2}")
        a(f"v_add_u32 v{A_SB}, v6, v1")
        a("s_lshl_b32 s25, s25, 1")
        a("L_c_vv:")
        a(f"ds_read_b128 v[{PK}:{PK+3}], v{A_SB} offset:{SB}")
        a(f"v_add_u32 v{A_SB}, 1024, v{A_SB}")
        slot_base(5, "s99")
        a("s_sub_u32 s5, s5, 8192")
        v_addr()
        a("s_add_u32 s10, s10, 4")
        a("s_add_u32 s99, s99, 1")
        a("s_add_u32 s11, s11, 1")
        a("s_waitcnt lgkmcnt(0)")
        for h, sv in enumerate((S, S2)):
            for k in range(2):
                a(f"v_lshlrev_b32 v{sv+2*k}, 16, v{PK+2*h+k}")
                a(f"v_and_b32 v{sv+2*k+1}, 0xffff0000, v{PK+2*h+k}")
        for sv in (S, S2):
            for k in range(4): a(f"v_fma_f32 v{sv+k}, v{sv+k}, s12, -v{M2}")
        need("s10")
        v_reads()
        v_reads(VF2, 8192)
        for sv in (S, S2):
            for k in range(4): a(f"v_exp_f32 v{sv+k}, v{sv+k}")
        for sv, pp in ((S, P), (S2, P2)):
            a(f"v_cvt_pk_bf16_f32 v{pp}, v{sv}, v{sv+1}")
            a(f"v_cvt_pk_bf16_f32 v{pp+1}, v{sv+2}, v{sv+3}")
        for k in range(4): a(f"v_add_f32 v{S+k}, v{S+k}, v{S2+k}")
        for pp in (P, P2):
            a(f"v_mov_b32_dpp v{pp+2}, v{pp} row_ror:8 {DPP}")
            a(f"v_mov_b32_dpp v{pp+3}, v{pp+1} row_ror:8 {DPP}")
        a(f"v_add_f32 v{S}, v{S}, v{S+1}")
        a(f"v_add_f32 v{S+2}, v{S+2}, v{S+3}")
        a("s_waitcnt lgkmcnt(0)")
        progress("s99")
        pv()
        pv(VF2, P2)
        a(f"v_add_f32 v{S}, v{S}, v{S+2}")
        a(f"v_add_f32 v{LS}, v{LS}, v{S}")
        a("s_cmp_lt_u32 s11, s25")
        a("s_cbranch_scc1 L_c_vv")
        a("s_add_u32 s10, s10, 2")
        a("s_cmp_lt_u32 s11, s97")
        a("s_cbranch_scc1 L_c_k")
        stats()
        a("s_branch L_c_pub")
    else:
        a("s_add_u32 s10, s10, 2")
        a("s_mov_b32 s11, 0")
        a("s_branch L_c_k")
    a("L_c_fast:")
    slot_base(5, "s99")
    a("s_add_u32 s99, s99, 1")
    slot_base(4, "s99")
    v_addr()
    v_reads()
    k_reads()
    sm = softmax_list(); i = sm.index("MARK")
    emit(sm[:i])
    a("s_waitcnt lgkmcnt(0)")
    progress("s99")
    rest = sm[i + 1:]; q = qk_list()
    pos = {0: 1, 1: 0, 2: 1, 4: 0, 5: 2, 9: 1, 12: 1, 16: 1, 20: 1}
    for j, x in enumerate(rest):
        for _ in range(pos.get(j, 0)): a(q.pop(0))
        a(x)
    assert not q
    pv()
    a("L_c_top:")
    a("s_add_u32 s11, s11, 1")
    a("s_add_u32 s10, s10, 4")
    a("s_cmp_ge_u32 s11, s97")
    a("s_cbranch_scc1 L_c_slow")
    a("s_cmp_ge_u32 s96, s10")
    a("s_cbranch_scc1 L_c_fast")
    refresh()
    a("s_cmp_ge_u32 s96, s10")
    a("s_cbranch_scc1 L_c_fast")
    a("L_c_slow:")
    if stamps or probe or leak: stamp(8)
    slot_base(5, "s99")
    v_addr()
    emit([x for x in softmax_list() if x != "MARK"])
    stats()
    if stamps or probe or leak: stamp(9)
    need("s6")
    v_reads()
    a("s_add_u32 s99, s99, 1")
    a("s_cmp_ge_u32 s11, s97")
    a("s_cbranch_scc1 L_c_last")
    a("s_waitcnt lgkmcnt(0)")
    pv()
    progress("s99")
    a("L_c_k:")
    need("s10")
    slot_base(4, "s99")
    k_reads()
    q = qk_list()
    for j in range(8):
        if not (stamps or probe or leak): a(f"s_waitcnt lgkmcnt({7-j})")
        elif j == 0: a("s_waitcnt lgkmcnt(0)")
        a(q[j])
    a("s_branch L_c_top")
    a("L_c_last:")
    if sig1 is not None and s1pos == "last": a(f"ds_add_u32 v{A1}, v{ONE} offset:{PCNT}")
    a("s_waitcnt lgkmcnt(0)")
    pv()
    progress("s99")
    a("L_c_pub:")
    for k in range(4): a(f"v_mov_b32_dpp v{AO+k}, v{AO+4+k} row_ror:8 row_mask:0xf bank_mask:0xc")
    for k in range(4):
        a(f"v_mul_f32 v{AO+k}, v{RL}, v{AO+k}")
    apply_tag(AO, [TO, TO + 1, TO + 2, LB])
    for k in range(4): a(f"ds_bpermute_b32 v{AO+k}, v{A_PERM}, v{AO+k}")
    a("s_waitcnt lgkmcnt(0)")
    if "o" not in abl: a(f"buffer_store_dwordx4 v[{AO}:{AO+3}], v{A_OP}, s[48:51], s44 offen {ost}")
    if sig1 is not None and s1pos == "store": a(f"ds_add_u32 v{A1}, v{ONE} offset:{PCNT}")
    stamp(10)
    PD, WF, BF, WA = 64, 32, 96, 88
    a("s_lshl_b32 s99, s99, 2")
    a("s_add_u32 s22, s99, s3")
    a("s_add_u32 s22, s22, 8")
    a("s_add_u32 s23, s22, 4")
    for st in range(2):
        a(f"s_sub_u32 s4, s{22+st}, 1")
        a("s_and_b32 s4, s4, 31")
        a("s_lshl_b32 s4, s4, 12")
        for u in range(4):
            a(f"v_xor_b32 v14, {32*u}, v{TA}")
            a(f"v_add_u32 v{WA+4*st+u}, s4, v14")
    def wo_reads(st):
        for u in range(4):
            for t in range(2):
                d = WF + 8 * u + 4 * st + 2 * t
                a(f"ds_read_b64_tr_b16 v[{d}:{d+1}], v{WA+4*st+u} offset:{t*2048}")
    stamp(11)
    assert gate >= 15 - (win // 4 - 1)
    a(f"s_add_u32 s10, s99, {gate}")
    need("s10", count=False)
    stamp(14)
    def o_loads():
        for i in range(0 if "g" in abl else 4):
            a(f"buffer_load_dwordx4 v[{PD+4*i}:{PD+4*i+3}], v{A_G}, s[48:51], s{16+i} offen {old_}")
    if sig1 is not None:
        a(f"ds_read_b32 v14, v1 offset:{GO}")
        a("s_waitcnt lgkmcnt(0)")
        a("v_readfirstlane_b32 s4, v14")
        a("s_cmp_eq_u32 s4, 0")
        a("s_cbranch_scc1 L_o_notyet")
    o_loads()
    need("s22", count=False)
    wo_reads(0)
    need("s23", count=False)
    wo_reads(1)
    a(f"s_mov_b32 s60, {spin_limit}")
    if sigpos != "chk":
        a(f"s_waitcnt vmcnt({0 if sigpos == 'arr' else 3})")
        a(f"ds_add_u32 v{A1}, v{ONE} offset:{GCNT}")
    a("L_o_chk:")
    fill = tag_list(range(PD, PD + 16, 4), 12, n=3)
    a("s_waitcnt vmcnt(2)")
    a(f"v_perm_b32 v16, v{PD+7}, v{PD+3}, s20")
    a("s_waitcnt vmcnt(0)")
    chain = [f"v_perm_b32 v17, v{PD+15}, v{PD+11}, s20", "v_perm_b32 v16, v17, v16, s21",
             f"v_mov_b32_dpp v17, v16 quad_perm:[1,0,3,2] {DPP}", f"v_perm_b32 v16, v17, v16, v{SEL1}",
             f"v_mov_b32_dpp v17, v16 quad_perm:[2,3,0,1] {DPP}", f"v_perm_b32 v18, v17, v16, v{SEL2}",
             f"v_max_f32_dpp v16, v18, v18 row_ror:1 {DPP}"] + row_list("v_max_f32", 16, (2, 4, 8)) + cross_list("v_max_f32", 16, 17)
    fill += ["s_nop 0", f"v_or_b32_dpp v12, v12, v12 quad_perm:[1,0,3,2] {DPP}", "s_nop 0", f"v_or_b32_dpp v12, v12, v12 quad_perm:[2,3,0,1] {DPP}"]
    emit(interleave(chain, fill, {1: 2, 3: 2, 5: 2, 6: 2, 7: 2, 8: 2, 10: 2, 13: 2}))
    a("v_cmp_ne_u32 vcc, 0, v12")
    a("v_sub_f32 v18, v18, v16")
    a("v_exp_f32 v18, v18")
    if "o" not in abl and "c" not in abl: a("s_cbranch_vccnz L_o_again")
    a("L_o_done:")
    if sig2 and sigpos == "chk": a(f"ds_add_u32 v{A1}, v{ONE} offset:{GCNT}")
    stamp(12)
    fm = [f"v_mul_f32_dpp v{20+k}, v18, v{PD+k} quad_perm:[0,0,0,0] {DPP}" for k in range(4)]
    for i in range(1, 4):
        fm += [f"v_fmac_f32_dpp v{20+k}, v18, v{PD+4*i+k} quad_perm:[{i},{i},{i},{i}] {DPP}" for k in range(4)]
    wsum = [f"v_add_f32_dpp v16, v18, v18 row_ror:1 {DPP}"] + row_list("v_add_f32", 16, (2, 4, 8)) + cross_list("v_add_f32", 16, 17) + ["v_rcp_f32 v16, v16"]
    red = ["v_permlane32_swap_b32 v20, v22", "v_permlane32_swap_b32 v21, v23", "v_add_f32 v20, v20, v22", "v_add_f32 v21, v21, v23",
           "v_permlane16_swap_b32 v20, v21", "v_add_f32 v20, v20, v21"] + row_list("v_add_f32", 20, (4, 8))
    emit(interleave(fm + red, wsum, {3: 1, 7: 1, 11: 1, 15: 2, 19: 2, 21: 1, 22: 2}))
    a("v_mul_f32 v20, v20, v16")
    a("v_cvt_pk_bf16_f32 v20, v20, v20")
    a(f"ds_write_b16 v{A_OL}, v20 offset:{OL}")
    a(f"ds_add_u32 v{A1}, v{ONE} offset:{OCNT}")
    a(f"s_mov_b32 s60, {spin_limit}")
    a("L_x:")
    a(f"ds_read_b32 v12, v1 offset:{OCNT}")
    for u in range(4):
        for st in range(2):
            d = BF + 8 * u + 4 * st
            a(f"ds_read_b128 v[{d}:{d+3}], v{A_M+u} offset:{64*st}")
    a("s_sub_u32 s60, s60, 1")
    a("s_waitcnt lgkmcnt(0)" if (stamps or probe or leak) else "s_waitcnt lgkmcnt(8)")
    a("v_readfirstlane_b32 s61, v12")
    a("s_cselect_b32 s61, -1, s61")
    a("s_cmp_lt_u32 s61, 4")
    a("s_cbranch_scc1 L_x")
    for u in range(4):
        for st in range(2):
            if not (stamps or probe or leak): a(f"s_waitcnt lgkmcnt({7-2*u-st})")
            c = "0" if u + st == 0 else f"v[{ACC}:{ACC+3}]"
            a(f"v_mfma_f32_16x16x32_bf16 v[{ACC}:{ACC+3}], v[{WF+8*u+4*st}:{WF+8*u+4*st+3}], v[{BF+8*u+4*st}:{BF+8*u+4*st+3}], {c}")
    setexec(0x000f000f, 0x000f000f)
    apply_tag(ACC)
    a(f"buffer_store_dwordx4 v[{ACC}:{ACC+3}], v{A_SP}, s[48:51], s45 offen sc1")
    stamp(13)
    dump_stamps(12, 13)
    a("s_endpgm")
    if sig1 is not None:
        a("L_o_notyet:")
        need("s22", count=False)
        wo_reads(0)
        need("s23", count=False)
        wo_reads(1)
        lds_spin(GO, 1, 12, 0)
        o_loads()
        a(f"s_mov_b32 s60, {spin_limit}")
        a("s_branch L_o_chk")
    a("L_o_again:")
    a("s_sub_u32 s60, s60, 1")
    a("s_cbranch_scc1 L_o_done")
    if osleep: a(f"s_sleep {osleep}")
    a("s_mov_b64 exec, vcc")
    o_loads()
    a("s_mov_b64 exec, -1")
    a("s_branch L_o_chk")

    role[0] = "H"
    a("L_helper:")
    srd(56, 34, 2048)
    a("v_mov_b32 v12, 1")
    a("s_waitcnt lgkmcnt(0)")
    a("s_mov_b64 exec, 1")
    a(f"ds_add_u32 v1, v12 offset:{QCNT}")
    a("s_mov_b64 exec, -1")
    make_tag()
    wd_row(4)
    a("s_mul_i32 s4, s4, 896")
    a(f"s_add_u32 s8, s4, {GP}")
    a("s_add_u32 s9, s8, 0x10000")
    a("v_add_u32 v14, -2, v5")
    a("v_cmp_gt_u32 vcc, 14, v5")
    a("v_cndmask_b32 v14, v14, v5, vcc")
    a("v_lshlrev_b32 v15, 4, v14")
    a("v_lshl_add_u32 v15, v4, 14, v15")
    a("v_lshlrev_b32 v14, 3, v14")
    a("v_lshl_add_u32 v14, v4, 1, v14")
    a("v_add_u32 v14, v14, v1")
    leak_flag()
    if leak:
        for x in leak:
            if x[0] == "H" and x[1]: a(f"s_mov_b32 s{64+2*x[1]}, 0")
    if hstart: need(hstart, sleep=8)
    else: lds_spin(QCNT, 7 if early_t else 5, 12, 8)
    stamp(1)
    L = a.label("L_h"); D = a.label("L_hd")
    a(f"s_mov_b32 s60, {spin_limit}")
    a(f"{L}:")
    for w in range(0 if "h" in abl else 4):
        a(f"buffer_load_dwordx4 v[{32+8*w}:{35+8*w}], v15, s[48:51], s8 offen offset:{224*w} sc1")
        a(f"buffer_load_dwordx4 v[{36+8*w}:{39+8*w}], v15, s[48:51], s9 offen offset:{224*w} sc1")
    a("s_waitcnt vmcnt(0)")
    tag_check(range(32, 64, 4), 12, quad=False)
    if "h" in abl: a("s_mov_b64 vcc, 0")
    retry_masked(L, D, 16)
    stamp(2)
    G8 = list(range(32, 64, 4)); G4 = G8[::2]
    for step in ("v_permlane32_swap_b32 v{r}, v{r2}", "v_permlane32_swap_b32 v{r1}, v{r3}", "v_add_f32 v{r}, v{r}, v{r2}",
                 "v_add_f32 v{r1}, v{r1}, v{r3}", "v_permlane16_swap_b32 v{r}, v{r1}", "v_add_f32 v{r}, v{r}, v{r1}",
                 "v_cvt_pk_bf16_f32 v{r}, 0, v{r}"):
        for r in G8: a(step.format(r=r, r1=r + 1, r2=r + 2, r3=r + 3))
    for step in ("v_mul_f32 v{t}, 0xbfb8aa3b, v{g}", "v_exp_f32 v{t}, v{t}", "v_add_f32 v{t}, 1.0, v{t}", "v_rcp_f32 v{t}, v{t}",
                 "v_mul_f32 v{t}, v{t}, v{g}", "v_cvt_pk_bf16_f32 v{g}, 0, v{t}", "v_mul_f32 v{g}, v{g}, v{u}",
                 "v_cvt_pk_bf16_f32 v{g}, v{g}, v{g}"):
        for g in G4: a(step.format(g=g, t=g + 1, u=g + 4))
    for w, g in enumerate(G4): a(f"ds_write_b16 v14, v{g} offset:{HL+112*w}")
    a("s_and_b32 s4, s2, 7")
    a("s_lshr_b32 s5, s2, 6")
    a("s_lshl_b32 s5, s5, 3")
    a("s_or_b32 s4, s4, s5")
    a("s_lshl_b32 s4, s4, 1")
    a("s_bfe_u32 s5, s2, 0x10005")
    a("s_add_u32 s4, s4, s5")
    if sig2:
        a("s_lshl_b32 s5, s4, 10")
        a(f"s_add_u32 s5, s5, {AC2}")
        a("s_add_u32 s52, s38, s5")
        a("s_addc_u32 s53, s39, 0")
        a("s_lshl_b32 s47, s13, 2")
        a("s_add_u32 s47, s47, 64")
    a(f"s_lshl_b32 s5, s4, {6+sw}")
    for i in range(8 if fatom else 4): a(f"s_add_u32 s{20+i}, s5, {SP + i*RSS}")
    a("s_lshl_b32 s5, s4, 6")
    a(f"s_add_u32 s45, s5, {FP}")
    a("s_lshr_b32 s46, s4, 2")
    a("s_lshl_b32 s46, s46, 7")
    a("s_and_b32 s5, s4, 3")
    a("s_lshl_b32 s5, s5, 3")
    a("s_add_u32 s46, s46, s5")
    a("v_lshrrev_b32 v12, 2, v0")
    a("v_and_b32 v13, 3, v0")
    a(f"v_mul_u32_u24 v19, {RS}, v12")
    if fatom:
        a(f"v_mul_u32_u24 v18, {8*RSS}, v2")
        a("v_lshl_add_u32 v18, v3, 3, v18")
        a("v_bfe_i32 v23, v0, 1, 1")
        a(f"v_and_b32 v23, {TAGX}, v23")
        a("v_xor_b32 v23, s13, v23")
        a("v_and_b32 v16, 1, v0")
        a("v_lshlrev_b32 v16, 4, v16")
        a("v_lshrrev_b32 v16, v16, v23")
        a("v_lshrrev_b32 v17, 8, v16")
        a("v_lshrrev_b32 v23, 5, v0")
        a("v_and_b32 v100, 1, v0")
        a("v_lshl_add_u32 v23, v100, 1, v23")
        a("v_bfe_u32 v100, v0, 1, 2")
        a("v_lshlrev_b32 v101, 6, v23")
        a("v_lshl_add_u32 v101, v100, 2, v101")
        a("v_lshlrev_b32 v23, 1, v23")
        a("v_lshl_add_u32 v23, v100, 5, v23")
    else:
        a(f"v_mul_u32_u24 v18, {4*RSS}, v12")
        a("v_lshl_add_u32 v18, v13, 4, v18")
    a("v_lshl_add_u32 v19, v13, 4, v19")
    a("v_lshlrev_b32 v20, 5, v13")
    a("v_lshl_add_u32 v20, v4, 1, v20")
    if fatom: a("v_mov_b32 v20, v23")
    a("buffer_load_ushort v22, v20, s[40:43], s46 offen")
    wd_row(4)
    a(f"s_mul_i32 s4, s4, {RS}")
    wd_col(5)
    a("s_lshl_b32 s5, s5, 8")
    a("s_add_u32 s4, s4, s5")
    a(f"s_add_u32 s15, s4, {FP}")
    a("v_lshlrev_b32 v21, 4, v5")
    a("v_lshl_add_u32 v21, v4, 6, v21")
    tr_addr(TA)
    for u in range(4): a(f"v_xor_b32 v{28+u}, {32*u}, v{TA}")
    a("v_lshl_add_u32 v14, v4, 4, v1")
    a("v_and_b32 v12, 1, v0")
    a("v_cmp_eq_u32 s[8:9], 1, v12")
    a("v_and_b32 v12, 2, v0")
    a("v_cmp_eq_u32 s[6:7], 2, v12")
    CA = 64; HF = 48
    for k in range(16): a(f"v_mov_b32 v{CA+k}, 0")
    if pre == "st0":
        a("s_and_b32 s4, s2, 0x18")
        a("s_cbranch_scc1 L_h_nopre")
        a("s_waitcnt vmcnt(0)")
        setexec(0x000f000f, 0x000f000f)
        a("buffer_store_short v22, v20, s[56:59], s46 offen")
        a("s_mov_b64 exec, -1")
        a("L_h_nopre:")
    stamp(3)
    L = a.label("L_nt"); D = a.label("L_ntd")
    a(f"s_mov_b32 s60, {spin_limit}")
    a(f"{L}:")
    refresh()
    a(f"s_cmp_lg_u32 s97, {BIG}")
    a(f"s_cbranch_scc1 {D}")
    a("s_sleep 4")
    a("s_sub_u32 s60, s60, 1")
    a(f"s_cbranch_scc0 {L}")
    a(f"{D}:")
    light_test()
    a("s_cselect_b32 s10, 2, 6")
    a("s_add_u32 s10, s10, s97")
    a("s_lshl_b32 s10, s10, 2")
    a("s_mov_b32 s11, 0")
    need("s10", sleep=2)
    a("s_setprio 2")
    a("L_h_step:")
    a("s_and_b32 s4, s10, 31")
    a("s_lshl_b32 s4, s4, 12")
    for u in range(4): a(f"v_add_u32 v{24+u}, s4, v{28+u}")
    a(f"ds_read_b128 v[{HF}:{HF+3}], v14 offset:{HL}")
    a("v_add_u32 v14, 64, v14")
    a("s_add_u32 s10, s10, 1")
    need("s10")
    stamp(4)
    for u in range(4):
        for t in range(2):
            d = 32 + 4 * u + 2 * t
            a(f"ds_read_b64_tr_b16 v[{d}:{d+1}], v{24+u} offset:{t*2048}")
    for u in range(4):
        if not (stamps or probe or leak): a(f"s_waitcnt lgkmcnt({6-2*u})")
        elif u == 0: a("s_waitcnt lgkmcnt(0)")
        a(f"v_mfma_f32_16x16x32_bf16 v[{CA+4*u}:{CA+4*u+3}], v[{32+4*u}:{35+4*u}], v[{HF}:{HF+3}], v[{CA+4*u}:{CA+4*u+3}]")
    a("s_add_u32 s11, s11, 1")
    a("s_cmp_lt_u32 s11, 7")
    a("s_cbranch_scc1 L_h_step")
    for k in range(4): a(f"v_cndmask_b32 v{CA+k}, v{CA+k}, v{CA+4+k}, s[8:9]")
    for k in range(4): a(f"v_cndmask_b32 v{CA+8+k}, v{CA+8+k}, v{CA+12+k}, s[8:9]")
    for k in range(4): a(f"v_cndmask_b32 v{CA+k}, v{CA+k}, v{CA+8+k}, s[6:7]")
    apply_tag(CA)
    setexec(0x000f000f, 0x000f000f)
    a(f"buffer_store_dwordx4 v[{CA}:{CA+3}], v21, s[48:51], s15 offen sc1")
    a("s_mov_b64 exec, -1")
    a("s_setprio 0")
    stamp(5)
    a("s_and_b32 s4, s2, 0x18")
    a("s_cbranch_scc1 L_hend")
    if pre == "st":
        a("s_waitcnt vmcnt(0)")
        setexec(0x000f000f, 0x000f000f)
        a("buffer_store_short v22, v20, s[56:59], s46 offen")
        a("s_mov_b64 exec, -1")
    def f_math():
        treduce4(96)
        emit(row_list("v_add_f32", 96, (4, 8)))
        bf16r(96, 96)
        silu_bf16(96, 96, 12)
        a("v_lshlrev_b32 v22, 16, v22")
    if flate:
        lds_spin(GCNT, 4, 12, 1)
        if pre == "st2":
            a("s_waitcnt vmcnt(0)")
            setexec(0x000f000f, 0x000f000f)
            a("buffer_store_short v22, v20, s[56:59], s46 offen")
            a("s_mov_b64 exec, -1")
        a("buffer_load_dwordx4 v[96:99], v19, s[48:51], s45 offen sc1")
    else:
        a("s_add_u32 s10, s10, 8")
        need("s10", sleep=1)
        L = a.label("L_f"); D = a.label("L_fd")
        a(f"s_mov_b32 s60, {spin_limit}")
        a(f"{L}:")
        a("buffer_load_dwordx4 v[96:99], v19, s[48:51], s45 offen sc1")
        a("s_waitcnt vmcnt(0)")
        tag_check([96], 12)
        retry_masked(L, D, 2)
        stamp(12)
        f_math()
    if sig2:
        a(f"s_mov_b32 s60, {spin_limit}")
        a("L_h_watch:")
        for k in range(4): a(f"s_load_dword s{28+k}, s[52:53], {256*k} glc")
        a("s_sub_u32 s60, s60, 1")
        a("s_cbranch_scc1 L_h_go")
        a("s_waitcnt lgkmcnt(0)")
        a("s_add_u32 s28, s28, s29")
        a("s_add_u32 s30, s30, s31")
        a("s_add_u32 s28, s28, s30")
        a("s_cmp_lg_u32 s28, s47")
        a("s_cbranch_scc1 L_h_watch")
        a("L_h_go:")
    else:
        lds_spin(OCNT, 4, 12, 1)
    def s_loads():
        for i in range(4):
            a(f"buffer_load_dwordx4 v[{80+4*i}:{83+4*i}], v18, s[48:51], s{20+i} offen sc1")
    s_loads()
    stamp(6)
    if flate:
        L = a.label("L_f"); D = a.label("L_fd")
        a(f"s_mov_b32 s60, {spin_limit}")
        a("s_waitcnt vmcnt(4)")
        a("s_branch L_f_chk")
        a(f"{L}:")
        a("buffer_load_dwordx4 v[96:99], v19, s[48:51], s45 offen sc1")
        a("s_waitcnt vmcnt(0)")
        a("L_f_chk:")
        tag_check([96], 12)
        retry_masked(L, D, 0)
        f_math()
    a(f"s_mov_b32 s60, {spin_limit}")
    a("L_s_chk:")
    tl = tag_list([80, 84, 88, 92], 12)
    a("s_waitcnt vmcnt(3)")
    emit(tl[0:4])
    a("s_waitcnt vmcnt(2)")
    emit(tl[4:8])
    for k in range(4): a(f"v_add_f32 v{100+k}, v{80+k}, v{84+k}")
    a("s_waitcnt vmcnt(1)")
    emit(tl[8:12])
    for k in range(4): a(f"v_add_f32 v{100+k}, v{100+k}, v{88+k}")
    a("s_waitcnt vmcnt(0)")
    for k in range(4): a(f"v_add_f32 v{100+k}, v{100+k}, v{92+k}")
    red = ["v_permlane32_swap_b32 v100, v102", "v_permlane32_swap_b32 v101, v103", "v_add_f32 v100, v100, v102", "v_add_f32 v101, v101, v103",
           "v_permlane16_swap_b32 v100, v101", "v_add_f32 v100, v100, v101"] + row_list("v_add_f32", 100, (4, 8))
    a(tl[12])
    emit(interleave(red, tl[13:] + join_list(12), {3: 2, 5: 2, 6: 1}))
    a("v_cmp_ne_u32 vcc, 0, v12")
    bf16r(100, 100)
    a("v_mul_f32 v100, v100, v96")
    a("s_cbranch_vccnz L_s_again")
    a("L_s_done:")
    stamp(13)
    bf16r(100, 100)
    a("v_add_f32 v100, v100, v22")
    a("v_cvt_pk_bf16_f32 v80, v100, v100")
    setexec(0x000f000f, 0x000f000f)
    if leak:
        a("s_cmp_lg_u32 s95, 0")
        a("s_cselect_b32 s58, 0, s58")
    a(f"buffer_store_short v80, v20, s[56:59], s46 offen{outsc}")
    if ackst: a("s_waitcnt vmcnt(0)")
    stamp(14)
    a("s_cmp_eq_u32 s2, 0")
    a("s_cbranch_scc0 L_hend")
    a("s_mov_b64 exec, 1")
    a(f"s_mov_b32 s4, {EPOCH}")
    a(f"buffer_store_dword v{TG}, v0, s[48:51], s4 offen{outsc}")
    if leak:
        a("v_mov_b32 v12, 0x600df00d")
        a("buffer_store_dword v12, v0, s[48:51], s4 offen offset:4")
    a("L_hend:")
    dump_stamps(12, 13)
    if late is not None:
        a("s_mov_b64 exec, 0xff")
        a("s_lshl_b32 s4, s2, 7")
        a("s_add_u32 s4, s4, 0x800000")
        a(f"buffer_store_dwordx4 v[8:11], v6, s[48:51], s4 offen {late}")
    a("s_endpgm")

    a("L_s_again:")
    a("s_sub_u32 s60, s60, 1")
    a("s_cbranch_scc1 L_s_done")
    a("s_mov_b64 exec, vcc")
    s_loads()
    a("s_mov_b64 exec, -1")
    a("s_branch L_s_chk")

    role[0] = "T"
    a("L_ticket:")
    assert two
    a("s_cmp_lg_u32 s3, 6")
    a("s_cbranch_scc1 L_t_noent")
    pool_id(11)
    pool_member(6)
    if two:
        assert npool == 4 and dyn % 2 == 0 and lex % 2 == 0
        light_test()
        a(f"s_cselect_b32 s9, {lex // 2}, 0")
        a(f"s_add_u32 s8, s9, {dyn // 2}")
        a("v_subrev_u32 v15, s8, v0")
        a("v_cmp_gt_u32 s[100:101], s8, v0")
        a("v_cndmask_b32 v28, v15, v0, s[100:101]")
        a("s_lshl_b32 s4, s9, 4")
        a("s_sub_u32 s6, s6, s4")
        a("v_lshl_add_u32 v15, v28, 4, s6")
        a("s_bfe_u32 s4, s2, 0x10002")
        a(f"s_add_u32 s4, s4, {mem * dyn // 2}")
        a("v_lshl_add_u32 v31, v28, 1, s4")
        a("v_cmp_gt_u32 vcc, s9, v28")
        a("v_cndmask_b32 v15, v15, v31, vcc")
        a(f"s_mul_i32 s6, s11, {prot}")
        a("v_lshl_add_u32 v15, v15, 1, s6")
        a("v_and_b32 v15, 255, v15")
        a("s_lshl_b32 s7, s11, 21")
        a("v_lshl_add_u32 v15, v15, 13, s7")
        a("v_cndmask_b32 v28, 4, 8, s[100:101]")
        a("v_or_b32 v15, v15, v28")
        a("s_lshl_b32 s9, s9, 1")
    a("v_or_b32 v15, 1, v15")
    a("v_lshl_add_u32 v14, v0, 2, v1")
    if lex:
        a(f"s_add_u32 s9, s9, {dyn}")
        a("s_bfm_b64 exec, s9, 0")
    else:
        a(f"s_mov_b64 exec, {(1 << dyn) - 1}")
    a(f"ds_write_b32 v14, v15 offset:{TQ}")
    a("s_mov_b64 exec, -1")
    a("L_t_noent:")
    if otouch:
        a("s_cmp_lg_u32 s3, 7")
        a("s_cbranch_scc1 L_t_notouch2")
        need(otouch[0], sleep=8, count=False)
        a(f"s_mul_i32 s4, s2, {RSO}")
        a(f"s_add_u32 s4, s4, {OP}")
        if otouch[1] == "r":
            a("v_lshlrev_b32 v14, 7, v0")
            a("s_mov_b32 exec_hi, 0")
            a("buffer_load_dword v17, v14, s[48:51], s4 offen")
            a("s_mov_b64 exec, -1")
        else:
            for k in range(4): a(f"v_not_b32 v{20+k}, s13")
            for k in range(4): a(f"buffer_store_dwordx4 v[20:23], v6, s[48:51], s4 offen offset:{1024*k} sc1")
        a("L_t_notouch2:")
    pool_id(11)
    if stouch:
        a("s_cmp_lg_u32 s3, 7")
        a("s_cbranch_scc1 L_t_notouch")
        k = [64]
        def tch(p, off, imm=0):
            if imm: a(f"s_add_u32 s{off}, s{off}, {imm}")
            a(f"s_load_dword s{k[0]}, s[{p}:{p+1}], s{off}")
            k[0] += 1
        if "g" in stouch:
            a(f"s_mul_i32 s6, s14, {256*7168}")
            tch(28, 6); tch(30, 6); tch(28, 6, 255 * 7168); tch(30, 6)
        if "k" in stouch:
            a("s_lshl_b32 s6, s11, 21")
            tch(18, 6); tch(20, 6)
        if "t" in stouch:
            if "d" in stouch: need(40, sleep=8, count=False)
            wd_row(6)
            a(f"s_mul_i32 s6, s6, {224*2048}")
            tch(32, 6); tch(32, 6, 223 * 2048)
            rr_cc(6, 7)
            a("s_lshl_b32 s6, s6, 17")
            tch(24, 6)
        if "w" in stouch:
            a(f"s_mov_b32 s6, {0x280000}")
            tch(38, 6)
        a("s_waitcnt lgkmcnt(0)")
        a("L_t_notouch:")
    if kmap in "DEFGH":
        if kmap == "F":
            a("s_lshr_b32 s9, s11, 1")
            a("s_lshl_b32 s12, s9, 4")
            a("s_lshl_b32 s9, s9, 22")
            a("s_mov_b32 s8, s11")
        else:
            a(f"s_mul_i32 s12, s11, {prot}")
            a("s_lshl_b32 s9, s11, 21")
        a(f"s_add_u32 s12, s12, {mem*dyn + 2*lex}")
        a("s_or_b32 s9, s9, 1")
        if kmap == "H":
            a("s_and_b32 s8, s11, 3")
            a("s_and_b32 s9, s11, 12")
    elif kmap == "C":
        a(f"s_and_b32 s12, s11, {npool-1}")
        a("s_lshr_b32 s9, s2, 6")
        a(f"s_mul_i32 s4, s9, {rot}")
        a("s_add_u32 s12, s12, s4")
        a("s_lshl_b32 s12, s12, 13")
        a(f"s_add_u32 s12, s12, {64*dyn*8192 + 1}")
        a("s_lshl_b32 s9, s9, 23")
    else:
        a(f"s_mul_i32 s12, s11, {reg*8192}")
        a(f"s_add_u32 s12, s12, {mem*dyn*8192 + 1}")
    a(f"s_mul_i32 s11, s11, {cstride}")
    a(f"s_add_u32 s11, s11, {TCN}")
    a("s_add_u32 s56, s38, s11")
    a("s_addc_u32 s57, s39, 0")
    a(f"s_add_u32 s10, s3, {dyn - 6}")
    if lex:
        light_test()
        a(f"s_cselect_b32 s4, {lex}, 0")
        a("s_add_u32 s10, s10, s4")
    if early_t:
        a("s_waitcnt lgkmcnt(0)")
        a("s_add_u32 s13, s13, 0x01010101")
        a(f"s_xor_b32 s14, s13, {TAGX}")
        a("v_mov_b32 v12, 1")
        a("s_mov_b64 exec, 1")
        a(f"ds_add_u32 v1, v12 offset:{QCNT}")
        pool_member(6)
        a("s_add_u32 s6, s6, s3")
        a("s_cmp_lg_u32 s6, 6")
        a("s_cbranch_scc1 L_t_noinit")
        a("v_mov_b32 v20, 0")
        a("v_mov_b32 v21, s13")
        a("v_mov_b32 v22, s14")
        a("v_mov_b32 v23, s13")
        a("buffer_store_dwordx4 v[20:23], v0, s[48:51], s11 offen sc1")
        a("L_t_noinit:")
        a("s_mov_b64 exec, -1")
        a(f"s_sub_u32 s11, s10, {ahead}")
        a("s_max_i32 s11, s11, 0")
        light_test()
        a("s_cselect_b32 s4, 4, 14")
        need("s4", sleep=4, count=False)
        a(f"s_mov_b32 s60, {spin_limit}")
        a("L_t_rdy:")
        a("s_load_dwordx4 s[28:31], s[56:57], 0 glc")
        a("s_sub_u32 s60, s60, 1")
        a("s_cbranch_scc1 L_t_next")
        a("s_waitcnt lgkmcnt(0)")
        a("s_xor_b32 s29, s29, s13")
        a("s_xor_b32 s30, s30, s14")
        a("s_xor_b32 s31, s31, s13")
        a("s_or_b32 s29, s29, s30")
        a("s_or_b32 s29, s29, s31")
        a("s_cbranch_scc0 L_t_next")
        a("s_sleep 8")
        a("s_branch L_t_rdy")
    else:
        lds_spin(QCNT, 5, 12, 8)
    if touch:
        a("s_cmp_eq_u32 s3, 6")
        a("s_cselect_b64 s[40:41], s[32:33], s[24:25]")
        a("s_cselect_b32 s42, 7340032, s43")
        a("s_cselect_b32 s42, s42, 8388608")
        a("s_cselect_b64 exec, 0x7f, 3")
        rr_cc(6, 7)
        a("s_lshl_b32 s6, s6, 17")
        a("s_lshr_b32 s7, s2, 4")
        a(f"s_mul_i32 s7, s7, {224*2048}")
        a("s_cmp_eq_u32 s3, 6")
        a("s_cselect_b32 s6, s7, s6")
        a("v_lshlrev_b32 v14, 16, v0")
        a("buffer_load_dword v17, v14, s[40:43], s6 offen nt")
        a("s_mov_b64 exec, -1")
    a("L_t_next:")
    a(f"s_sub_u32 s11, s10, {ahead - 1}")
    lds_spin(STARTED, "s11", 12, tsleep)
    a("s_mov_b32 s15, 1")
    a("s_atomic_add s15, s[56:57], 0 glc")
    a("s_lshl_b32 s4, s10, 2")
    a("v_add_u32 v14, s4, v1")
    a("s_waitcnt lgkmcnt(0)")
    if not empt: a(f"s_min_u32 s15, s15, {nshared-1}")
    if kmap in "DEFGH":
        if kmap == "H":
            a("s_add_u32 s5, s15, s8")
            a("s_and_b32 s5, s5, 3")
            a("s_or_b32 s5, s5, s9")
            a("s_and_b32 s4, s15, -4")
            a("s_add_u32 s4, s4, s8")
            a(f"s_add_u32 s4, s4, {mem*dyn}")
            a("s_lshl4_add_u32 s4, s5, s4")
        else:
            a("s_add_u32 s4, s15, s12")
        a("s_and_b32 s4, s4, 255")
        if kmap == "F":
            a("s_lshr_b32 s5, s4, 7")
            a("s_xor_b32 s5, s5, s8")
            a("s_and_b32 s5, s5, 1")
            a("s_lshl_b32 s4, s4, 1")
            a("s_add_u32 s4, s4, s5")
        a("s_lshl_b32 s4, s4, 13")
        if kmap == "H":
            a("s_lshl_b32 s5, s5, 21")
            a("s_add_u32 s4, s4, s5")
            a("s_or_b32 s4, s4, 1")
        else:
            a("s_add_u32 s4, s4, s9")
    else:
        a(f"s_lshl_b32 s4, s15, {13 + (lgp if kmap == 'C' else 0)}")
        a("s_add_u32 s4, s4, s12")
    if kmap == "C":
        a("s_and_b32 s4, s4, 0x7fffff")
        a("s_add_u32 s4, s4, s9")
    if ztab:
        tab = sum(g << (4 * i) for i, g in enumerate(ztab))
        a(f"s_sub_u32 s5, s15, {zone}")
        a("s_and_b32 s5, s5, 0x1c")
        a(f"s_lshr_b32 s5, {tab}, s5")
        a("s_and_b32 s5, s5, 15")
        a("s_lshl_b32 s5, s5, 4")
        a("s_or_b32 s4, s4, s5")
    if wide:
        a(f"s_cmp_ge_u32 s15, {max(0, zone - wide[1])}")
        a("s_cselect_b32 s5, 16, 0")
        a("s_or_b32 s4, s4, s5")
    if empt:
        a(f"s_cmp_lt_u32 s15, {nshared}")
        a("s_cselect_b32 s4, s4, 0")
    a(f"s_add_u32 s10, s10, {ntw}")
    a(f"s_cmp_lt_u32 s15, {zone}")
    a("s_cselect_b32 s5, 0, 2")
    a("v_mov_b32 v15, s4")
    a("v_or_b32 v15, s5, v15")
    a(f"ds_write_b32 v14, v15 offset:{TQ}")
    a("s_cbranch_scc1 L_t_next")
    if sig1 is not None or sig2:
        L = a.label("L_nt"); D = a.label("L_ntd")
        a(f"s_mov_b32 s60, {spin_limit}")
        a(f"{L}:")
        refresh()
        a(f"s_cmp_lg_u32 s97, {BIG}")
        a(f"s_cbranch_scc1 {D}")
        a("s_sleep 2")
        a("s_sub_u32 s60, s60, 1")
        a(f"s_cbranch_scc0 {L}")
        a(f"{D}:")
        light_test()
        a("s_cselect_b32 s10, 2, 6")
        a("s_add_u32 s10, s10, s97")
        a("s_lshl_b32 s10, s10, 2")
        a("s_cmp_eq_u32 s3, 6")
        a("s_cbranch_scc1 L_t_zero")
    if rk:
        pool_id(6)
        a("s_lshr_b32 s4, s6, 2")
        a("s_lshl_b32 s7, s4, 14")
        if not rkgrp:
            a("s_and_b32 s5, s6, 3")
            a("s_lshl_b32 s8, s5, 8")
            a("s_add_u32 s7, s7, s8")
        a(f"s_add_u32 s7, s7, {AC1}")
        a("s_add_u32 s56, s38, s7")
        a("s_addc_u32 s57, s39, 0")
        a("s_mov_b32 s15, 1")
        a(f"s_add_u32 s11, s10, {rkat & 0xffffffff}")
        need("s11", sleep=1)
        a("s_atomic_add s15, s[56:57], 0 glc")
        tab = sum(g << (2 * i) for i, g in enumerate(rk))
        a(f"s_mov_b32 s6, {tab}")
        a("s_waitcnt lgkmcnt(0)")
        if rkgrp: a("s_lshr_b32 s15, s15, 2")
        a("s_lshl_b32 s15, s15, 1")
        a("s_lshr_b32 s6, s6, s15")
        a("s_and_b32 s6, s6, 3")
        a("v_mov_b32 v15, s6")
        a(f"ds_write_b32 v1, v15 offset:{GATE}")
    if sig1 is not None:
        pool_id(6)
        a("s_lshr_b32 s4, s6, 2")
        a("s_and_b32 s5, s6, 3")
        a("s_lshl_b32 s7, s4, 14")
        a("s_lshl_b32 s8, s5, 8")
        a("s_add_u32 s7, s7, s8")
        a(f"s_add_u32 s7, s7, {AC1}")
        a("s_add_u32 s56, s38, s7")
        a("s_addc_u32 s57, s39, 0")
        a("s_mov_b32 s15, 1")
        a("s_sub_u32 s11, s10, 2")
        need("s11", sleep=1)
        lds_spin(PCNT, sig1, 12, 0)
        for i in range(16): a(f"s_atomic_add s15, s[56:57], {1024*i}")
    if sig1 is not None or sig2:
        a("s_endpgm")
        a("L_t_zero:")
        rr_cc(6, 7)
    if sig1 is not None:
        a("s_lshl_b32 s5, s6, 10")
        a(f"s_add_u32 s5, s5, {AC1}")
        a("s_add_u32 s56, s38, s5")
        a("s_addc_u32 s57, s39, 0")
        a("v_mov_b32 v15, 1")
        a(f"s_add_u32 s11, s10, {s1from}")
        need("s11", sleep=1)
        L = a.label("L_w"); D = a.label("L_wd")
        a(f"s_mov_b32 s60, {spin_limit}")
        a(f"{L}:")
        for k in range(4): a(f"s_load_dword s{28+k}, s[56:57], {256*k} glc")
        a("s_waitcnt lgkmcnt(0)")
        a("s_add_u32 s28, s28, s29")
        a("s_add_u32 s30, s30, s31")
        a("s_add_u32 s28, s28, s30")
        a("s_cmp_eq_u32 s28, 64")
        a(f"s_cbranch_scc1 {D}")
        a("s_sub_u32 s60, s60, 1")
        a(f"s_cbranch_scc0 {L}")
        a(f"{D}:")
        a(f"ds_write_b32 v1, v15 offset:{GO}")
    if sig2:
        a("s_lshl_b32 s7, s7, 14")
        a("s_lshr_b32 s5, s2, 6")
        a("s_lshl_b32 s5, s5, 8")
        a("s_add_u32 s7, s7, s5")
        a(f"s_add_u32 s7, s7, {AC2}")
        a("v_mov_b32 v15, 1")
        a("v_lshlrev_b32 v14, 10, v0")
        a("s_add_u32 s10, s10, 15")
        need("s10", sleep=1)
        lds_spin(OCNT if sig2late else GCNT, gneed, 12, 0)
        a("s_mov_b64 exec, 0xffff")
        a("buffer_atomic_add v15, v14, s[48:51], s7 offen sc1")
    a("L_end:")
    a("s_endpgm")
    a("L_codeend:")
    name = NAME + "_kernel"
    hdr = open("cdna_kernels/" + NAME + ".s.ref").read().split("; Override launch")[0]
    txt = hdr + header([f"@launch grid=(256,1,1) block=({64*(6+ntw)},1,1) lds={LDS_BYTES}"]) + (DOC if comments else "") + kernel_begin(name) + a.text() + rodata() + \
        kernel_desc(name, 184, 102, extra="  .amdhsa_float_denorm_mode_32 3\n")
    return txt

BASE = dict(gate=13, sig2=True, dyn=12, lex=2, empt=12, flate=True, qstart=32, qlight=24, hstart=64, grow=(8, 32), two=True, dmap=True, fw=(1, 1), cmap="qu")
if __name__ == "__main__":
    open("final.s", "w").write(gen(comments=True, **BASE))
    open("k34.s", "w").write(gen(**BASE))
    V = {"k36": {}, "k36a": dict(ackst=True), "k36ap": dict(ackst=True, pre="st"), "k36ap2": dict(ackst=True, pre="st2"), "k36ap0": dict(ackst=True, pre="st0")}
    for k, v in V.items():
        v = dict(BASE, **v)
        open(k + "_lt.s", "w").write(gen(lite=True, **v))
    for k, v in {"k36p": dict(pre="st"), "k36p2": dict(pre="st2"), "k36p0": dict(pre="st0")}.items():
        open(k + ".s", "w").write(gen(**dict(BASE, **v)))
    open("y_z.s", "w").write(gen(probe=("H", 0, 0), **BASE))
    open("y_ack.s", "w").write(gen(probe=("H", 14, 16), delta=13, ackst=True, **BASE))
    open("y_ackp.s", "w").write(gen(probe=("H", 14, 16), delta=13, ackst=True, pre="st0", **BASE))
    open("y_u1.s", "w").write(gen(probe=("L", 10, 16, "mean"), delta=0, fine=True, **BASE))
    open("y_L2.s", "w").write(gen(probe=("L", 2, 16, "mean"), delta=0, **BASE))
    open("y_L2t.s", "w").write(gen(probe=("L", 2, 16, "mean"), delta=0, stouch="gktw", **BASE))
    open("y_rd.s", "w").write(gen(probe=("H", 13, 16), delta=6, **BASE))
```

```python
import sys
from asmlib import *

QP, GP, CNT, OCN, EPOCH, SP, FP, OP, STAMP = 0, 0x10000, 0x30000, 0x34000, 0x3F000, 0x40000, 0xD0000, 0x100000, 0x400000
MISC = 0x20000
TQ, STARTED, GATE, GCNT, PCNT = 0x1100, 0x21C, 0x220, 0x224, 0x228
POST, PROG, QCNT, OCNT, GO, ZER, XN, HL, OL, QL = 0, 0x200, 0x210, 0x214, 0x218, 0x240, 0x300, 0x500, 0x700, 0x800
QROW = 272
SCR = 0x1700
SB = 0x1B00
LDS_BYTES = MISC + 0x3B00
TCN, AC1, AC2 = 0x340000, 0x390000, 0x3A0000
LOG2E = 0x3fb8aa3b
SCALE = 0x3db504f3
DPP = "row_mask:0xf bank_mask:0xf"
BIG = -1
TAGX = 0x5ac3a569

DOC = """
; out = x + (attn(LN(x)) @ wo) * silu(swiglu(LN(x))), one launch, one 8-wave workgroup per CU (all 256 are resident).
;
; Every input byte is streamed once, HBM -> LDS ring (8 slots x 16 KB), by wave 0 in this order:
;
; Hand-offs between workgroups go through d_ws with write-through stores (sc1) and sc1 loads:
;   f partials [16][1024], all fp32. Each 16-byte granule carries this launch's tag in the low byte of its words and
;   is only accepted together with the neighbours stored by the same instruction. The tag is the word found at
;   d_ws + 0x3f000 plus 0x01010101; it replaces that word once every workgroup has read it, so stale hand-offs never match.
;   The counters in d_ws (tickets, arrival hints) are reset inside the launch before the q hand-off that precedes their use.
"""

def interleave(chain, fill, gaps):
    out = []; fill = list(fill)
    for i, x in enumerate(chain):
        out.append(x)
        for _ in range(gaps.get(i, 0)):
            if fill: out.append(fill.pop(0))
    return out + fill

def gen(nt="nt", stamps=False, spin_limit=2000000, win=24, dyn=10, npool=4, outsc="", gate=10, skew=128, vtick=False,
        fsleep=0, osleep=1, qsleep=4, probe=None, cgate=False, early=True, ahead=2, ntw=2, cstride=256, late=None, gtab=None, ztab=None, wtab=None, spw=False, opw=False, fatom=False, leak=None, fine=False, wins=None, csleep=0, pace=0, pnop=0, cpf=True, sig1=None, sig2=False, touch=False, sig2late=False, lite=False, half=False, dup2=False, kmap='E', rot=0, early_t=False, empt=0, spos=0, abl='', win1=None, n1=9, hstart=0, qstart=0, sigpos='chk', gneed=4, flate=False, qlight=None, lex=0, gumix=False, w2=False, rk=None, rk0=4, rkgrp=False, rkat=-5, grow=None, tsleep=1, shardrd=False, s1pos='last', s1from=9, two=False, prot=16, dmap=False, fw=None, stouch=None, ofirst=True, pfn=None, comments=False, otouch=None, ost='sc1', old_='sc1', sched=None, wide=None, cmap='', ush=28, gui=False, lv=None, pre=None, ackst=False, delta=None, oneline=False, eearly=False, padend=0):
    a = Asm()
    a.comments = comments
    sw = 1 if spw else 0
    ow = 1 if opw else 0
    RS = 4096 + skew
    RSS = (4096 << sw) + skew
    RSO = (4096 << ow) + skew
    NT = " " + nt if nt else ""
    role = ["-"]
    def stamp(k):
        if delta is not None and probe and (role[0], k) == (probe[0], delta): a("s_memrealtime s[74:75]")
        if lite and (k == 0 or (role[0], k) == ("H", 14)): a(f"s_memrealtime s[{64+2*k}:{65+2*k}]")
        if stamps or (leak and (k == 0 or (role[0], k) in [x[:2] for x in leak])): a(f"s_memrealtime s[{64+2*k}:{65+2*k}]")
        if probe and (k == 0 or (role[0], k) == probe[:2]): a(f"s_memrealtime s[{64+2*min(k,1)}:{65+2*min(k,1)}]")
    def leak_out():
        if not leak: return
        mine = [(i, x) for i, x in enumerate(leak) if x[0] == role[0]]
        Ln = a.label("L_noleak")
        a("s_waitcnt lgkmcnt(0)")
        srd(48, 38, 268435456)
        a("s_mov_b64 exec, 1")
        a("s_cmp_eq_u32 s93, 0")
        a(f"s_cbranch_scc1 {Ln}")
        for i, x in mine:
            if len(x) > 2:
                Ls = a.label("L_lk")
                a(f"s_cmp_lg_u32 s3, {x[2]}")
                a(f"s_cbranch_scc1 {Ls}")
            a(f"s_and_b32 s4, s{64+2*x[1]}, 0x3fff")
            a("v_mov_b32 v12, s4")
            a("s_lshl_b32 s4, s2, 3")
            a(f"s_add_u32 s4, s4, {2*i + 0x500000}")
            a("buffer_store_short v12, v0, s[48:51], s4 offen")
            if len(x) > 2: a(f"{Ls}:")
        a(f"{Ln}:")
        if role[0] == "H":
            Ln = a.label("L_noleak")
            a("s_cmp_eq_u32 s95, 0")
            a(f"s_cbranch_scc1 {Ln}")
            srd(52, 34, 2048)
            a("s_lshl_b32 s4, s2, 3")
            a("s_add_u32 s5, s4, 0x500000")
            a("buffer_load_dwordx2 v[12:13], v0, s[48:51], s5 offen")
            a("s_waitcnt vmcnt(0)")
            a("buffer_store_dwordx2 v[12:13], v0, s[52:55], s4 offen")
            a(f"{Ln}:")
    def leak_flag():
        if not leak: return
        a(f"s_load_dword s95, s[38:39], {EPOCH+4}")
        a("s_load_dword s94, s[16:17], 0")
        a("s_waitcnt lgkmcnt(0)")
        a("s_cmp_lg_u32 s95, 0x600df00d")
        a("s_cselect_b32 s93, 1, 0")
        a("s_cselect_b32 s95, 0, 1")
        a("s_cmp_lg_u32 s94, 0x3c6e3d96")
        a("s_cselect_b32 s95, s95, 0")
        a("s_cmp_lg_u32 s94, 0x3a3abc25")
        a("s_cselect_b32 s95, s95, 0")
    def probe_pad():
        if not probe or probe[0] != role[0]: return
        def until(base, lim):
            L = a.label("L_pp")
            a(f"{L}:")
            a("s_sleep 1")
            a("s_memrealtime s[70:71]")
            a("s_waitcnt lgkmcnt(0)")
            a(f"s_sub_u32 s70, s70, {base}")
            a(f"s_cmp_lt_u32 s70, {lim}")
            a(f"s_cbranch_scc1 {L}")
        a("s_waitcnt lgkmcnt(0)")
        a("s_cmp_eq_u32 s67, -1")
        a("s_cselect_b32 s66, s64, s66")
        a("s_cselect_b32 s69, 1, 0")
        until("s64", 2200)
        a("s_not_b32 s72, s64")
        a("s_atomic_umax s72, s[36:37], 0")
        until("s64", 3200)
        a("s_load_dword s72, s[36:37], 0 glc")
        a("s_waitcnt lgkmcnt(0)")
        a("s_not_b32 s72, s72")
        if delta is None: a("s_sub_u32 s66, s66, s72")
        else:
            a("s_sub_u32 s66, s66, " + ("s74" if delta else "s64"))
            a("s_cmp_eq_u32 s69, 1")
            a("s_cselect_b32 s66, 0, s66")
        if len(probe) > 3:
            a("s_atomic_add s66, s[36:37], 128")
            until("s64", 4400)
            a("s_load_dword s66, s[36:37], 128 glc")
            a("s_waitcnt lgkmcnt(0)")
            a("s_lshr_b32 s66, s66, 8")
        if probe[2] < 0 and probe[1]:
            a("s_cmp_eq_u32 s69, 1")
            a("s_cbranch_scc1 L_end")
        a(f"s_mul_i32 s66, s66, {probe[2]}")
        a(f"s_add_u32 s68, s66, {6000 if probe[2] >= 0 else 20000}")
        if lv:
            srd(48, 38, 268435456)
            kind, sc = lv[:2]
            a("s_and_b32 s4, s2, 7"); a("s_lshr_b32 s5, s2, 5")
            if kind in ("cur",):
                a("s_lshr_b32 s6, s5, 1"); a("s_lshl_b32 s6, s6, 3"); a("s_or_b32 s6, s6, s4"); a("s_lshl_b32 s6, s6, 1")
                a("s_and_b32 s5, s5, 1"); a("s_add_u32 s6, s6, s5")
            else:
                a("s_lshr_b32 s6, s5, 2"); a("s_lshl_b32 s6, s6, 3"); a("s_or_b32 s6, s6, s4"); a("s_lshl_b32 s6, s6, 2")
                a("s_and_b32 s5, s5, 3"); a("s_add_u32 s6, s6, s5")
            a("s_lshr_b32 s7, s6, 2"); a("s_lshl_b32 s7, s7, 7"); a("s_and_b32 s6, s6, 3")
            a(f"s_lshl_b32 s8, s6, {3 if kind in ('cur', 'one') else 5}")
            a("s_add_u32 s7, s7, s8"); a("s_add_u32 s7, s7, 0x800000")
            a("v_and_b32 v13, 3, v0"); a("v_lshlrev_b32 v20, 5, v13"); a("v_lshl_add_u32 v20, v4, 1, v20")
            a("v_lshlrev_b32 v21, 2, v0"); a("v_lshlrev_b32 v22, 1, v0")
        until("s72", "s68")
        if lv:
            a("s_and_b32 s4, s2, 0x18")
            a("s_cbranch_scc1 L_end")
            if kind in ("cur", "one"):
                setexec(0x000f000f, 0x000f000f)
                a(f"buffer_store_short v0, v20, s[48:51], s7 offen {sc}")
                if len(lv) > 2:
                    a("s_cmp_lg_u32 s2, 0")
                    a("s_cbranch_scc1 L_end")
                    a(f"s_mov_b32 s7, {EPOCH + 0x80}")
                    a("s_mov_b32 exec_hi, 0")
                    a(f"s_mov_b32 exec_lo, {1 if lv[2] == 'p' else -1}")
                    a(f"buffer_store_dword v0, v21, s[48:51], s7 offen {lv[3]}")
            elif kind == "c32":
                a("s_mov_b64 exec, 0xff")
                a(f"buffer_store_dword v0, v21, s[48:51], s7 offen {sc}")
            elif kind == "s32":
                a("s_mov_b64 exec, 0xffff")
                a(f"buffer_store_short v0, v22, s[48:51], s7 offen {sc}")
            elif kind == "full":
                a("s_cmp_lg_u32 s6, 0")
                a("s_cbranch_scc1 L_end")
                a("s_mov_b32 exec_hi, 0")
                a(f"buffer_store_dword v0, v21, s[48:51], s7 offen {sc}")
    def dump_stamps(vt, va):
        probe_pad()
        leak_out()
        if not (stamps or (lite and role[0] == "H")): return
        a("s_waitcnt lgkmcnt(0)")
        a("s_mov_b64 exec, -1")
        a(f"v_mov_b32 v{vt}, 0")
        for k in range(16):
            a(f"v_writelane_b32 v{vt}, s{64+2*k}, {k}")
        a("s_lshl_b32 s4, s2, 3")
        a("s_add_u32 s4, s4, s3")
        a("s_lshl_b32 s4, s4, 6")
        a(f"s_add_u32 s4, s4, {STAMP}")
        a(f"v_lshlrev_b32 v{va}, 2, v0")
        a("s_mov_b64 exec, 0xffff")
        a(f"buffer_store_dword v{vt}, v{va}, s[48:51], s4 offen")
    def srd(d, p, n):
        a(f"s_mov_b64 s[{d}:{d+1}], s[{p}:{p+1}]")
        a(f"s_mov_b32 s{d+2}, {n}")
        a(f"s_mov_b32 s{d+3}, 0x20000")
    def setexec(lo, hi):
        a(f"s_mov_b32 exec_lo, {lo:#x}")
        a(f"s_mov_b32 exec_hi, {hi:#x}")
    def row_list(op, r, steps=(1, 2, 4, 8)):
        return [f"{op}_dpp v{r}, v{r}, v{r} row_ror:{k} {DPP}" for k in steps]
    def cross_list(op, r, t):
        return [f"v_mov_b32 v{t}, v{r}", f"v_permlane16_swap_b32 v{r}, v{t}", f"{op} v{r}, v{r}, v{t}",
                f"v_mov_b32 v{t}, v{r}", f"v_permlane32_swap_b32 v{r}, v{t}", f"{op} v{r}, v{r}, v{t}"]
    def emit(l):
        for x in l: a(x)
    def bf16r(d, s):
        a(f"v_cvt_pk_bf16_f32 v{d}, 0, v{s}")
    TG = 8
    def make_tag():
        a("s_add_u32 s13, s13, 0x01010101")
        a("s_movk_i32 s63, 0xff")
        a("v_bfe_i32 v12, v0, 0, 1")
        a(f"v_and_b32 v12, {TAGX}, v12")
        a(f"v_xor_b32 v{TG}, s13, v12")
        for k in range(1, 4): a(f"v_lshrrev_b32 v{TG+k}, {8*k}, v{TG}")
    def apply_tag(r, tags=None):
        for k in range(4): a(f"v_bfi_b32 v{r+k}, s63, v{tags[k] if tags else TG+k}, v{r+k}")
    def tag_list(grans, t, n=4):
        o = []
        for g in grans:
            for k in range(n):
                if not o: o.append(f"v_xor_b32 v{t}, v{g+k}, v{TG+k}")
                else: o.append(f"v_bitop3_b32 v{t}, v{t}, v{g+k}, v{TG+k} bitop3:0xf6")
        o.append(f"v_and_b32 v{t}, 0xff, v{t}")
        return o
    def join_list(t, quad=True):
        o = [f"v_or_b32_dpp v{t}, v{t}, v{t} quad_perm:[1,0,3,2] {DPP}"]
        if quad: o.append(f"v_or_b32_dpp v{t}, v{t}, v{t} quad_perm:[2,3,0,1] {DPP}")
        return o
    def tag_check(grans, t, quad=True):
        emit(tag_list(grans, t) + join_list(t, quad))
        a(f"v_cmp_ne_u32 vcc, 0, v{t}")
    def treduce4(r):
        a(f"v_permlane32_swap_b32 v{r}, v{r+2}")
        a(f"v_permlane32_swap_b32 v{r+1}, v{r+3}")
        a(f"v_add_f32 v{r}, v{r}, v{r+2}")
        a(f"v_add_f32 v{r+1}, v{r+1}, v{r+3}")
        a(f"v_permlane16_swap_b32 v{r}, v{r+1}")
        a(f"v_add_f32 v{r}, v{r}, v{r+1}")
    def retry_masked(L, D, sleep=1):
        a("s_and_b64 exec, exec, vcc")
        a(f"s_cbranch_execz {D}")
        if sleep: a(f"s_sleep {sleep}")
        a("s_sub_u32 s60, s60, 1")
        a(f"s_cbranch_scc0 {L}")
        a(f"{D}:")
        a("s_mov_b64 exec, -1")
    def silu_bf16(d, x, t):
        a(f"v_mul_f32 v{t}, 0xbfb8aa3b, v{x}")
        a(f"v_exp_f32 v{t}, v{t}")
        a(f"v_add_f32 v{t}, 1.0, v{t}")
        a(f"v_rcp_f32 v{t}, v{t}")
        a(f"v_mul_f32 v{t}, v{t}, v{x}")
        bf16r(d, t)
    def lds_spin(off, n, vt, sleep=1):
        L = a.label("L_spin")
        a(f"s_mov_b32 s60, {spin_limit}")
        if sleep:
            E = a.label("L_spe")
            a(f"s_branch {E}")
        a(f"{L}:")
        if sleep:
            a(f"s_sleep {sleep}")
            a(f"{E}:")
        a(f"ds_read_b32 v{vt}, v1 offset:{off}")
        a("s_sub_u32 s60, s60, 1")
        a("s_waitcnt lgkmcnt(0)")
        a(f"v_readfirstlane_b32 s61, v{vt}")
        a("s_cselect_b32 s61, -1, s61")
        a(f"s_cmp_lt_u32 s61, {n}")
        a(f"s_cbranch_scc1 {L}")
    def refresh():
        a(f"ds_read_b64 v[12:13], v1 offset:{POST}")
        a("s_waitcnt lgkmcnt(0)")
        a("v_readfirstlane_b32 s96, v12")
        a("v_readfirstlane_b32 s97, v13")
    def need(x, sleep=0, count=True):
        if role[0] == "C": sleep = csleep
        L = a.label("L_need"); D = a.label("L_got")
        a(f"s_cmp_ge_u32 s96, {x}")
        a(f"s_cbranch_scc1 {D}")
        a(f"s_mov_b32 s60, {spin_limit}")
        a(f"{L}:")
        if sleep: a(f"s_sleep {sleep}")
        a(f"ds_read_b64 v[12:13], v1 offset:{POST}")
        a("s_sub_u32 s60, s60, 1")
        a("s_waitcnt lgkmcnt(0)")
        a("v_readfirstlane_b32 s96, v12")
        if count: a("v_readfirstlane_b32 s97, v13")
        a("s_cselect_b32 s96, -1, s96")
        if count: a("s_cselect_b32 s97, 0, s97")
        a(f"s_cmp_lt_u32 s96, {x}")
        a(f"s_cbranch_scc1 {L}")
        a(f"{D}:")
    def light_test():
        a("s_and_b32 s4, s2, 63")
        a("s_cmp_ge_u32 s4, 56")
    def wq_col(d):
        if "q" in cmap:
            a(f"s_lshr_b32 s{d}, s2, 3")
            a("s_lshl_b32 s4, s2, 1")
            a("s_and_b32 s4, s4, 8")
            a(f"s_xor_b32 s{d}, s{d}, s4")
            a(f"s_xor_b32 s{d}, s{d}, 4")
            a(f"s_and_b32 s{d}, s{d}, 15")
            a("s_lshr_b32 s4, s2, 6")
            a(f"s_lshl4_add_u32 s{d}, s4, s{d}")
        else: a(f"s_lshr_b32 s{d}, s2, 2")
    def up_shift(d, c, unit):
        if "u" in cmap:
            a(f"s_mov_b32 s{d}, {ush * unit}")
            a(f"s_cmp_ge_u32 s{c}, {56 - ush}")
            a(f"s_cselect_b32 s{d}, {((ush - 56) * unit) & 0xffffffff}, s{d}")
        else: a(f"s_mov_b32 s{d}, 0")
    def gu_col(d):
        if "g" in cmap:
            a("s_lshr_b32 s4, s2, 6")
            a("s_bfe_u32 s5, s2, 0x10002")
            a("s_lshl1_add_u32 s4, s4, s5")
            a("s_mul_i32 s4, s4, 7")
            a("s_bfe_u32 s5, s2, 0x30003")
            a(f"s_add_u32 s{d}, s4, s5")
            return
        if gumix:
            a("s_lshr_b32 s4, s2, 6")
            a("s_and_b32 s5, s2, 60")
            a(f"s_add_u32 s{d}, s4, s5")
            return
        a("s_lshr_b32 s4, s2, 6")
        a("s_mul_i32 s4, s4, 56")
        a("s_and_b32 s5, s2, 63")
        a("s_add_u32 s4, s4, s5")
        a(f"s_lshr_b32 s{d}, s4, 2")
    def wd_row(d):
        if dmap:
            a("s_lshr_b32 s62, s2, 7")
            a("s_lshl_b32 s62, s62, 3")
            a(f"s_and_b32 s{d}, s2, 7")
            a(f"s_or_b32 s{d}, s{d}, s62")
        else: a(f"s_lshr_b32 s{d}, s2, 4")
    def wd_col(d):
        if dmap: a(f"s_bfe_u32 s{d}, s2, 0x40003")
        else: a(f"s_and_b32 s{d}, s2, 15")
    def rr_cc(srr, scc):
        a(f"s_and_b32 s{srr}, s2, 7")
        a("s_lshr_b32 s62, s2, 5")
        a("s_lshl_b32 s62, s62, 3")
        a(f"s_or_b32 s{srr}, s{srr}, s62")
        a(f"s_bfe_u32 s{scc}, s2, 0x20003")
    lgp = npool.bit_length() - 1
    def pool_id(d):
        a("s_lshr_b32 s5, s2, 3")
        a("s_add_u32 s5, s5, s2")
        a(f"s_and_b32 s5, s5, {npool-1}")
        a("s_lshr_b32 s4, s2, 6")
        a(f"s_lshl_b32 s4, s4, {lgp}")
        a(f"s_add_u32 s{d}, s4, s5")
    def pool_member(d):
        a("s_bfe_u32 s5, s2, 0x30003")
        a(f"s_lshr_b32 s5, s5, {lgp}")
        a("s_lshl_b32 s5, s5, 3")
        a("s_and_b32 s4, s2, 7")
        a(f"s_add_u32 s{d}, s5, s4")
    def tr_addr(d):
        a("v_lshrrev_b32 v12, 2, v5")
        a("v_lshl_add_u32 v13, v4, 2, v12")
        a("v_bfe_u32 v12, v13, 1, 2")
        a("v_lshlrev_b32 v12, 5, v12")
        a("v_lshl_add_u32 v12, v13, 7, v12")
        a("v_and_b32 v13, 3, v0")
        a(f"v_lshl_add_u32 v{d}, v13, 3, v12")
    def slot_base(d, slot):
        a(f"s_and_b32 s{d}, {slot}, 7")
        a(f"s_lshl_b32 s{d}, s{d}, 14")

    a("s_cmp_ge_u32 s2, 256")
    a("s_cbranch_scc1 L_end")
    a("s_load_dwordx16 s[16:31], s[0:1], 0")
    a("s_load_dwordx8 s[32:39], s[0:1], 64")
    stamp(0)
    if probe: a("s_mov_b32 s67, -1")
    if padend: a("s_memrealtime s[64:65]")
    if cpf:
        a("s_getpc_b64 s[4:5]")
        a("L_pc:")
        a("v_subrev_u32 v12, 64, v0")
        a("v_mov_b32 v13, 0")
        a("v_cmp_gt_u32 vcc, (L_codeend-L_pc)/128, v12")
        a("v_lshlrev_b32 v12, 7, v12")
        a("s_and_saveexec_b64 s[6:7], vcc")
        a("s_cbranch_execz L_nopf")
        a("v_lshl_add_u64 v[12:13], v[12:13], 0, s[4:5]")
        a("global_load_dword v16, v[12:13], off offset:64")
        a("L_nopf:")
        a("s_mov_b64 exec, -1")
    a("v_cmp_gt_u32 vcc, 64, v0")
    a("v_lshrrev_b32 v1, 6, v0")
    a("v_and_b32 v0, 63, v0")
    a("v_lshrrev_b32 v2, 3, v0")
    a("v_and_b32 v3, 7, v0")
    a("v_lshrrev_b32 v4, 4, v0")
    a("s_and_b32 s14, s2, 3")
    a("s_mov_b32 s43, 0x20000")
    a("s_cbranch_vccz L_others")
    OTHERS_FIRST = ofirst
    def emit_others():
        a("L_others:")
        a("v_readfirstlane_b32 s3, v1")
        a("v_lshlrev_b32 v14, 5, v0")
        a("v_lshlrev_b32 v15, 3, v0")
        a("s_lshl_b32 s10, s14, 9")
        a("s_movk_i32 s42, 2048")
        a("s_xor_b32 s3, s3, 4")
        a("s_cmp_gt_u32 s3, 3")
        a(f"v_mov_b32 v1, {MISC}")
        for k in range(4): a(f"v_mov_b32 v{28+k}, 0")
        a("v_lshl_add_u32 v12, v0, 4, v1")
        a(f"ds_write_b128 v12, v[28:31] offset:{TQ}")
        a("v_lshl_add_u32 v13, v0, 2, v1")
        a(f"v_mov_b32 v27, {BIG}")
        a(f"ds_write_b32 v13, v30 offset:{PROG}")
        a(f"ds_write2_b32 v1, v30, v27 offset0:{POST//4} offset1:{POST//4+1}")
        a("s_waitcnt lgkmcnt(0)")
        a("s_mov_b64 s[40:41], s[16:17]")
        a(f"s_load_dword s13, s[38:39], {EPOCH}")
        a("s_cbranch_scc1 L_nox")
        a("buffer_load_dwordx4 v[56:59], v14, s[40:43], 0 offen")
        a("buffer_load_dwordx4 v[60:63], v14, s[40:43], 0 offen offset:16")
        a("buffer_load_dwordx2 v[64:65], v15, s[40:43], s10 offen")
        a("L_nox:")
        if eearly: a("s_waitcnt lgkmcnt(0)")
        a("s_barrier")
        a("s_branch L_notloader")

    role[0] = "L"
    a("s_setprio 3")
    a("v_lshrrev_b32 v12, 5, v0")
    a("v_and_b32 v13, 3, v2")
    a("v_lshl_add_u32 v12, v12, 3, v13")
    a("v_lshlrev_b32 v13, 1, v4")
    a("v_xor_b32 v13, v13, v3")
    a("v_lshlrev_b32 v13, 4, v13")
    a("v_lshl_add_u32 v16, v12, 13, v13")
    a("s_lshl_b32 s8, s14, 21")
    wq_col(5)
    a("s_lshl_b32 s5, s5, 7")
    a("s_add_u32 s8, s8, s5")
    a("s_mov_b32 m0, 0")
    a("s_mov_b32 s42, 8388608")
    a("s_waitcnt lgkmcnt(0)")
    if fine: stamp(7)
    a("s_mov_b64 s[40:41], s[22:23]")
    def wloads(vo, stride):
        for i in range(4):
            ro = (16 * (i & 1) + 4 * (i >> 1)) * stride - 1024 * i
            if i: a(f"s_add_u32 s9, s8, {ro}")
            a(f"buffer_load_dwordx4 v{vo}, s[40:43], s{9 if i else 8} offen offset:{1024*i}{NT} lds")
        a(f"s_add_u32 s8, s8, {32*stride}")
        a("s_add_u32 m0, m0, 4096")
    a("L_ld_q:")
    wloads(16, 8192)
    a("s_cmp_lt_u32 m0, 0x8000")
    a("s_cbranch_scc1 L_ld_q")
    if fine: stamp(8)
    if ofirst:
        a("s_branch L_loader")
        emit_others()
    a("L_loader:")
    mem = 64 // npool; reg = 1024 // npool
    nshared = reg - mem * dyn - 2 * lex
    zone = nshared - ntw * mem + empt
    assert ntw == 2 and dyn + lex + 2 * (nshared + empt) + 4 <= 256
    a(f"v_mov_b32 v1, {MISC}")
    a("v_mov_b32 v30, 0")
    a(f"v_mov_b32 v31, {BIG}")
    a("s_barrier")
    if stamps:
        for k in range(1, 16):
            if not (fine and k in (7, 8)): a(f"s_mov_b32 s{64+2*k}, 0")
    stamp(1)
    pend = [None]; viamax = [False]
    def wait_post(w, defer=False):
        if defer and fw:
            pend[0] = w
            return
        if viamax[0]:
            a("v_add_u32 v39, 1, v39")
            a("v_max_i32 v30, v30, v39")
        else: a("v_add_u32 v30, 1, v30")
        a(f"s_waitcnt vmcnt({w})")
        a(f"ds_write_b64 v29, v[30:31] offset:{POST}")
    def unit(vo, srdn, so, step=4096):
        w = pend[0]; pend[0] = None
        for i in range(4):
            if w is not None and i % fw[1] == 0:
                if i == fw[0]: wait_post(w + fw[0])
                else: a(f"s_waitcnt vmcnt({w + fw[0]})")
            a(f"buffer_load_dwordx4 v{vo[i]}, s[{srdn}:{srdn+3}], s{so} offen offset:{1024*i}{NT} lds")
        a(f"s_add_u32 m0, m0, {step}" if step > 0 else f"s_sub_u32 m0, m0, {-step}")
        if pace: a(f"s_sleep {pace}")
    a("v_lshl_add_u32 v29, v0, 3, v1")
    VG, VD, VK, VV = [40, 41, 42, 43], [44, 45, 46, 47], [24, 25, 24, 25], [24, 25, 24, 25]
    a("s_movk_i32 s7, 7168")
    a(f"v_mad_u32_u24 v{VG[0]}, v12, s7, v13")
    for i in range(1, 4):
        a(f"v_add_u32 v{VG[i]}, {(16 * (i & 1) + 4 * (i >> 1)) * 7168 - 1024 * i}, v{VG[0]}")
    gu_col(6)
    if cmap: up_shift(12, 6, 128)
    a("s_lshl_b32 s6, s6, 7")
    a(f"s_mul_i32 s7, s14, {256*7168}")
    a("s_add_u32 s8, s7, s6")
    a("s_mov_b32 s42, 7340032")
    a("s_mov_b64 s[40:41], s[28:29]")
    a("s_mov_b32 s98, 2")
    a(f"s_cmp_ge_u32 s5, {7 if 'g' in cmap else 56}")
    w1 = win
    if fine: stamp(9)
    for w in range(28, w1 - 4, -4):
        wait_post(w)
        if fine: stamp(10 if w == 28 else 11)
    a("s_cbranch_scc1 L_ld_kv")
    a("s_add_u32 s12, s12, s8" if cmap else "s_mov_b32 s12, s8")
    if gui:
        srd(52, 30, 7340032)
        a("s_mov_b32 s98, 6")
        a("L_ld_gu2:")
        wait_post(w1 - 4, True)
        unit(VG, 40, 8, 0x8000)
        a(f"s_add_u32 s8, s8, {32*7168}")
        wait_post(w1 - 4, True)
        unit(VG, 52, 12, -0x7000)
        a(f"s_add_u32 s12, s12, {32*7168}")
        a("s_cmp_lt_u32 m0, 0x10000")
        a("s_cbranch_scc1 L_ld_gu2")
        a("s_mov_b32 m0, 0x18000")
    if not gui:
     a("s_mov_b32 s6, 0x10000")
     a("s_mov_b32 s98, 6")
     a("L_ld_gu:")
     wait_post(w1 - 4, True)
     unit(VG, 40, 8)
     a(f"s_add_u32 s8, s8, {32*7168}")
     a("s_cmp_lt_u32 m0, s6")
     a("s_cbranch_scc1 L_ld_gu")
     a("s_mov_b32 s8, s12")
     a("s_mov_b64 s[40:41], s[30:31]")
     a("s_mov_b32 s6, 0x18000")
     a("s_cmp_lt_u32 m0, s6")
     a("s_cbranch_scc1 L_ld_gu")
    a("L_ld_kv:")
    stamp(2)
    a(f"ds_read_b128 v[32:35], v1 offset:{PROG}")
    a(f"ds_read_b32 v37, v1 offset:{TQ}")
    a("v_mov_b32 v36, v1")
    a("v_and_b32 v5, 15, v0")
    for j in range(2):
        a(f"v_add_u32 v14, {4*j}, v4")
        a("v_lshlrev_b32 v14, 1, v14")
        a("v_xor_b32 v14, v14, v5")
        a("v_lshlrev_b32 v14, 4, v14")
        a(f"v_lshl_add_u32 v{VV[j]}, v4, 8, v14")
    srd(44, 18, 33554432)
    srd(48, 20, 33554432)
    a("s_mov_b32 s10, 0")
    a("s_mov_b32 s11, 0")
    a("s_mov_b32 s15, 0")
    if wide: a("s_mov_b32 s99, 0")
    a(f"s_mov_b32 s60, {spin_limit}")
    if stamps: a("s_memrealtime s[100:101]")
    a("s_branch L_ld_chk")
    if win1:
        assert n1 <= dyn - ahead
        a("L_ld_tile1:")
        a("s_and_b32 s8, s7, 0xffffe000")
        wait_post(w1 - 4, True)
        unit(VK, 44, 8)
        a("s_add_u32 s9, s8, 4096")
        a("s_add_u32 s11, s11, 1")
        a("v_mov_b32 v38, s11")
        wait_post(w1 - 4, True)
        unit(VK, 44, 9)
        a("v_lshl_add_u32 v36, v38, 2, v1")
        a("s_add_u32 s10, s10, 1")
        a("s_add_u32 s98, s98, 1")
        wait_post(w1 - 4, True)
        unit(VV, 48, 8)
        a(f"ds_read_b128 v[32:35], v1 offset:{PROG}")
        a(f"ds_read_b32 v37, v36 offset:{TQ}")
        wait_post(w1 - 4, True)
        unit(VV, 48, 9)
        a("s_and_b32 m0, m0, 0x1ffff")
        a(f"s_mov_b32 s60, {spin_limit}")
        a("L_ld_chk1:")
        a("s_waitcnt lgkmcnt(0)")
        a("v_min3_u32 v32, v32, v33, v34")
        a("v_readfirstlane_b32 s7, v37")
        a("v_min_u32 v32, v32, v35")
        a("s_sub_u32 s60, s60, 1")
        a("v_readfirstlane_b32 s4, v32")
        a("s_cselect_b32 s4, s98, s4")
        a("s_add_u32 s4, s4, 8")
        a("s_cmp_gt_u32 s4, s98")
        a("s_cbranch_scc1 L_ld_free1")
        a(f"ds_read_b128 v[32:35], v1 offset:{PROG}")
        a("s_branch L_ld_chk1")
        a("L_ld_free1:")
        a(f"s_cmp_lt_u32 s10, {n1}")
        a("s_cbranch_scc1 L_ld_tile1")
        for w in range(w1 - 4, win - 4, -4): wait_post(w)
    def peek():
        a(f"ds_read_b128 v[32:35], v1 offset:{PROG}")
        a(f"ds_read_b32 v37, v36 offset:{TQ}")
    def slot_body(wn):
        a("s_and_b32 s8, s7, 0xffffe000")
        if two:
            a("s_bitcmp1_b32 s7, 2")
            a("s_cselect_b64 s[44:45], s[20:21], s[18:19]")
        wait_post(wn - 4, True)
        unit(VK, 44, 8)
        a("s_add_u32 s9, s8, 4096")
        a("s_bfe_u32 s4, s7, 0x10001")
        a("s_and_b32 s5, s11, 1")
        a("s_lshl_b32 s4, s4, s5")
        a("s_or_b32 s15, s15, s4")
        a("s_add_u32 s11, s11, 1")
        a("s_xor_b32 s5, s5, 1")
        a("s_bitcmp1_b32 s15, s5")
        a("s_addc_u32 s11, s11, 0")
        a("v_mov_b32 v38, s11")
        if spos == 0: a(f"ds_write_b32 v1, v38 offset:{STARTED}")
        wait_post(wn - 4, True)
        unit(VK, 44, 9)
        if spos == 1: a(f"ds_write_b32 v1, v38 offset:{STARTED}")
        a("v_lshl_add_u32 v36, v38, 2, v1")
        a("s_add_u32 s10, s10, 1")
        a("s_cmp_eq_u32 s15, 3")
        a(f"s_cselect_b32 s4, s10, {BIG}")
        a("v_mov_b32 v31, s4")
        a("s_cselect_b32 s4, 4, 1")
        a("s_add_u32 s98, s98, s4")
        if two:
            a("s_bitcmp1_b32 s7, 3")
            a("s_cselect_b64 s[48:49], s[18:19], s[20:21]")
            a("s_and_b32 s4, s7, 12")
            a("s_cselect_b32 s4, 0x2000, 0")
            a("s_add_u32 s8, s8, s4")
            a("s_add_u32 s9, s9, s4")
        wait_post(wn - 4, True)
        unit(VV, 48, 8)
        if spos == 2: a(f"ds_write_b32 v1, v38 offset:{STARTED}")
        peek()
        wait_post(wn - 4, True)
        unit(VV, 48, 9)
        if spos == 3: a(f"ds_write_b32 v1, v38 offset:{STARTED}")
        a("s_and_b32 m0, m0, 0x1ffff")
        if stamps: a("s_memrealtime s[100:101]")
        a(f"s_mov_b32 s60, {spin_limit}")
    if wide:
        a("L_ld_wide0:")
        a(f"v_subrev_u32 v39, {wide[0] // 4}, v30")
        a("s_mov_b32 s99, 16")
        a("L_ld_wide:")
        viamax[0] = True
        slot_body(win + wide[0])
        viamax[0] = False
        a("s_branch L_ld_chk")
    a("L_ld_tile:")
    if wide:
        a("s_cmp_lg_u32 s99, 0")
        a("s_cbranch_scc1 L_ld_wide")
        a("s_bitcmp1_b32 s7, 4")
        a("s_cbranch_scc1 L_ld_wide0")
    slot_body(win)
    a("L_ld_chk:")
    a("s_waitcnt lgkmcnt(0)")
    a("v_min3_u32 v32, v32, v33, v34")
    a("v_readfirstlane_b32 s5, v37")
    a("v_min_u32 v32, v32, v35")
    a("s_cmp_eq_u32 s15, 3")
    a("v_readfirstlane_b32 s4, v32")
    a("s_cbranch_scc1 L_ld_end")
    a("s_add_u32 s4, s4, 8")
    a("s_cmp_gt_u32 s4, s98")
    a("s_cselect_b32 s7, s5, 0")
    a("s_bitcmp1_b32 s7, 0")
    if stamps:
        a("s_cbranch_scc0 L_ld_again")
        a("s_memrealtime s[62:63]")
        a("s_waitcnt lgkmcnt(0)")
        a("s_sub_u32 s62, s62, s100")
        a("s_add_u32 s88, s88, s62")
        a("s_max_u32 s90, s90, s62")
        a(f"s_cmp_eq_u32 s10, {dyn // 2}")
        a("s_cselect_b32 s78, s100, s78")
        a(f"s_cmp_eq_u32 s10, {dyn}")
        a("s_cselect_b32 s80, s100, s80")
        a("s_branch L_ld_tile")
    else:
        a("s_cbranch_scc1 L_ld_tile")
    a("L_ld_again:")
    if empt:
        a("s_cmp_eq_u32 s15, 3")
        a("s_cselect_b32 s5, 0, s5")
        a("s_cmp_lg_u32 s5, 2")
        a("s_cbranch_scc1 L_ld_peek")
        a("s_and_b32 s5, s11, 1")
        a("s_bitset1_b32 s15, s5")
        a("s_add_u32 s11, s11, 1")
        a("v_mov_b32 v32, s11")
        a("v_lshl_add_u32 v36, v32, 2, v1")
        a(f"ds_write_b32 v1, v32 offset:{STARTED}")
        a("s_cmp_eq_u32 s15, 3")
        a("s_cbranch_scc0 L_ld_peek")
        a("v_mov_b32 v31, s10")
        a("s_add_u32 s98, s98, 3")
        a("s_cmp_gt_u32 s4, s98")
        a("s_cbranch_scc1 L_ld_go")
        a("L_ld_peek:")
    peek()
    a("s_sub_u32 s60, s60, 1")
    a("s_cbranch_scc0 L_ld_chk")
    a("v_mov_b32 v30, 0x7fffffff")
    a("v_mov_b32 v31, s10")
    a(f"ds_write_b64 v29, v[30:31] offset:{POST}")
    a("s_endpgm")
    a("L_ld_end:")
    a("s_add_u32 s4, s4, 8")
    a("s_cmp_gt_u32 s4, s98")
    a("s_cbranch_scc0 L_ld_again")
    a("L_ld_go:")
    stamp(3)
    a(f"v_lshl_add_u32 v{VD[0]}, v12, 11, v13")
    for i in range(1, 4):
        a(f"v_add_u32 v{VD[i]}, {(16 * (i & 1) + 4 * (i >> 1)) * 2048 - 1024 * i}, v{VD[0]}")
    srd(52, 32, 7340032)
    wd_row(6)
    a(f"s_mul_i32 s96, s6, {224*2048}")
    wd_col(6)
    a("s_lshl_b32 s6, s6, 7")
    a("s_add_u32 s96, s96, s6")
    if stamps:
        a("s_add_u32 s92, s10, s64")
        a("s_add_u32 s88, s88, s64")
        a("s_add_u32 s90, s90, s64")
    if wide:
        a("s_cmp_eq_u32 s99, 0")
        a("s_cbranch_scc1 L_ld_narrow")
        for w in range(win + wide[0] - 4, win - 4, -4): wait_post(w)
        a("L_ld_narrow:")
    sch = dict(sched or ([(0, win), grow] if grow else [(0, win)]))
    infl = win // 4
    wn = win
    for k in range(15):
        wn = sch.get(k, wn)
        while infl > wn // 4:
            infl -= 1; wait_post(4 * infl)
        if infl == wn // 4: wait_post(wn - 4, True)
        else: infl += 1
        if k < 7:
            unit(VD, 52, 96)
            if k < 6: a("s_add_u32 s96, s96, 0x10000")
        else:
            unit(VD, 56, 97)
            if k < 14: a(f"s_add_u32 s97, s97, {0x10000 - 384 if k == 10 else 128}")
        if k % 4 == 3: a("s_and_b32 m0, m0, 0x1ffff")
        if k == 1: srd(56, 24, 8388608)
        if k == 2: rr_cc(6, 7)
        if k == 4:
            a("s_lshl_b32 s6, s6, 17")
            a("s_lshl_b32 s7, s7, 9")
            a("s_add_u32 s97, s6, s7")
        if k == 6: stamp(4)
    stamp(5)
    while infl > 0:
        infl -= 1; wait_post(4 * infl)
    stamp(6)
    a("L_ld_done:")
    if stamps:
        a("s_mov_b32 s3, 4")
        srd(48, 38, 268435456)
        a("s_getreg_b32 s94, hwreg(HW_REG_XCC_ID)")
        a("s_getreg_b32 s95, hwreg(HW_REG_HW_ID)")
        a("s_and_b32 s94, s94, 15")
        a("s_lshl_b32 s94, s94, 16")
        a("s_and_b32 s95, s95, 0xffff")
        a("s_or_b32 s94, s94, s95")
        a("s_or_b32 s94, s94, 0x1000000")
    dump_stamps(12, 13)
    a("s_endpgm")

    if not ofirst: emit_others()
    a("L_notloader:")
    if stamps or lite:
        for k in range(1, 16): a(f"s_mov_b32 s{64+2*k}, 0")
    a("v_and_b32 v5, 15, v0")
    a("v_lshlrev_b32 v6, 4, v0")
    srd(48, 38, 268435456)
    a("s_mov_b32 s96, 0")
    a(f"s_mov_b32 s97, {BIG}")
    a("s_cmp_eq_u32 s3, 5")
    a("s_cbranch_scc1 L_helper")
    a("s_cmp_gt_u32 s3, 5")
    a("s_cbranch_scc1 L_ticket")

    role[0] = "C"
    XF = 32
    AF = 64
    ACC = 80
    TA = 7
    a("s_setprio 1")
    tr_addr(TA)
    a("s_waitcnt lgkmcnt(0)")
    make_tag()
    a("s_waitcnt vmcnt(0)")
    stamp(1)
    pool_member(6)
    a("s_cmp_lg_u32 s6, 0")
    a("s_cbranch_scc1 L_nozero")
    pool_id(6)
    a("v_mov_b32 v12, 0")
    a("v_lshlrev_b32 v13, 10, v0")
    a(f"s_mul_i32 s7, s6, {cstride}")
    a(f"s_add_u32 s7, s7, {TCN}")
    a("s_mov_b64 exec, 1")
    if sig1 is not None or sig2:
        assert npool == 4
        a("s_cmp_eq_u32 s3, 0")
        a("s_cbranch_scc1 " + ("L_zeroed" if early_t else "L_dozero"))
        a("s_mov_b64 exec, 0xffff")
        a("s_lshr_b32 s4, s6, 2")
        a("s_and_b32 s5, s6, 3")
        if sig1 is not None or rk:
            a("s_lshl_b32 s7, s4, 14")
            a("s_lshl_b32 s8, s5, 8")
            a("s_add_u32 s7, s7, s8")
            a(f"s_add_u32 s7, s7, {AC1}")
            a("s_cmp_eq_u32 s3, 1")
            a("s_cbranch_scc1 L_dozero")
        a("s_lshl_b32 s7, s5, 14")
        a("s_lshl_b32 s8, s4, 8")
        a("s_add_u32 s7, s7, s8")
        a(f"s_add_u32 s7, s7, {AC2}")
        a("v_mov_b32 v12, s13")
        a("s_cmp_eq_u32 s3, 2")
    else:
        a("s_cmp_eq_u32 s3, 0")
    a("s_cbranch_scc0 L_zeroed")
    a("L_dozero:")
    a("buffer_store_dword v12, v13, s[48:51], s7 offen sc1")
    a("L_zeroed:")
    a("s_mov_b64 exec, -1")
    a("L_nozero:")
    for i in range(8):
        a(f"v_lshlrev_b32 v{32+2*i}, 16, v{56+i}")
        a(f"v_and_b32 v{33+2*i}, 0xffff0000, v{56+i}")
    a("v_add_f32 v16, v32, v33")
    a("v_add_f32 v17, v34, v35")
    for i in range(2, 8):
        a(f"v_add_f32 v16, v16, v{32+2*i}")
        a(f"v_add_f32 v17, v17, v{33+2*i}")
    a("v_add_f32 v16, v16, v17")
    emit(row_list("v_add_f32", 16) + cross_list("v_add_f32", 16, 17))
    a("v_mul_f32 v16, 0x3a800000, v16")
    for i in range(16):
        a(f"v_sub_f32 v{32+i}, v{32+i}, v16")
    a("v_mul_f32 v17, v32, v32")
    a("v_mul_f32 v18, v33, v33")
    for i in range(1, 8):
        a(f"v_fmac_f32 v17, v{32+2*i}, v{32+2*i}")
        a(f"v_fmac_f32 v18, v{33+2*i}, v{33+2*i}")
    a("v_add_f32 v17, v17, v18")
    emit(row_list("v_add_f32", 17) + cross_list("v_add_f32", 17, 18))
    a("v_mul_f32 v17, 0x3a800000, v17")
    bf16r(16, 16)
    bf16r(17, 17)
    a("v_add_f32 v17, 0x3727c5ac, v17")
    bf16r(17, 17)
    a("v_sqrt_f32 v17, v17")
    for i in range(2):
        a(f"v_lshlrev_b32 v{18+2*i}, 16, v{64+i}")
        a(f"v_and_b32 v{19+2*i}, 0xffff0000, v{64+i}")
    bf16r(17, 17)
    a("v_rcp_f32 v17, v17")
    for i in range(4): a(f"v_sub_f32 v{18+i}, v{18+i}, v16")
    for i in range(4): bf16r(18 + i, 18 + i)
    for i in range(4): a(f"v_mul_f32 v{18+i}, v{18+i}, v17")
    a("v_cvt_pk_bf16_f32 v18, v18, v19")
    a("v_cvt_pk_bf16_f32 v19, v20, v21")
    a("v_add_u32 v15, v15, v1")
    a(f"ds_write_b64 v15, v[18:19] offset:{XN}")
    a("v_lshl_add_u32 v14, v4, 4, v1")
    for s in range(8):
        a(f"ds_read_b128 v[{XF+4*s}:{XF+4*s+3}], v14 offset:{XN+64*s}")
    stamp(2)
    A1 = 27
    a(f"v_lshl_add_u32 v12, v0, 2, v1")
    a(f"v_add_u32 v12, {SCR}, v12")
    a("v_cmp_eq_u32 vcc, 0, v0")
    a(f"v_cndmask_b32 v{A1}, v12, v1, vcc")
    a("s_lshl_b32 s4, s3, 2")
    a(f"v_add_u32 v28, s4, v{A1}")
    def progress(x):
        a(f"v_mov_b32 v29, {x}")
        a(f"ds_write_b32 v28, v29 offset:{PROG}")
    a("s_lshl_b32 s4, s3, 5")
    a(f"v_xor_b32 v14, s4, v{TA}")
    a("s_lshl_b32 s8, s14, 14")
    a("s_lshl_b32 s9, s3, 6")
    a("s_add_u32 s8, s8, s9")
    gu_col(11)
    if cmap:
        up_shift(27, 11, 256)
        a("s_add_u32 s27, s27, 0x10000")
    a("s_lshl_b32 s11, s11, 8")
    a("s_add_u32 s11, s11, s8")
    if cmap: a(f"s_add_u32 s11, s11, {GP}")
    wq_col(9)
    a("s_lshl_b32 s9, s9, 8")
    a("s_add_u32 s9, s9, s8")
    light_test()
    a("s_cselect_b32 s15, 2, 6")
    a("s_mov_b32 s99, 0")
    a("s_mov_b32 s10, 0")
    a("v_lshlrev_b32 v15, 6, v4")
    a("v_and_b32 v15, 3, v0")
    a("v_lshlrev_b32 v15, 6, v15")
    if gui: a("s_mov_b32 s24, 1")
    a("L_c_blk:")
    for (s0, s1) in [(0, 4), (4, 6), (6, 8)]:
        if gui: a(f"s_lshl{(s1-s0)//2}_add_u32 s10, s24, s10")
        else: a(f"s_add_u32 s10, s10, {s1-s0}")
        need("s10")
        for s in range(s0, s1):
            for t in range(2):
                d = AF + 4 * (s & 3) + 2 * t
                a(f"ds_read_b64_tr_b16 v[{d}:{d+1}], v14 offset:{s*4096+t*2048}")
        a("s_waitcnt lgkmcnt(0)")
        for s in range(s0, s1):
            c = "0" if s == 0 else f"v[{ACC}:{ACC+3}]"
            a(f"v_mfma_f32_16x16x32_bf16 v[{ACC}:{ACC+3}], v[{AF+4*(s&3)}:{AF+4*(s&3)+3}], v[{XF+4*s}:{XF+4*s+3}], {c}")
        if s1 % 4 == 0:
            a("s_add_u32 s99, s99, 1")
            progress("s99")
    a("v_add_u32 v14, 0x8000, v14")
    for k in range(4): a(f"ds_bpermute_b32 v{ACC+k}, v15, v{ACC+k}")
    a("s_waitcnt vmcnt(0) lgkmcnt(0)")
    apply_tag(ACC)
    a("s_mov_b64 exec, 0xf")
    a(f"buffer_store_dwordx4 v[{ACC}:{ACC+3}], v6, s[48:51], s9 offen sc1")
    a("s_mov_b64 exec, -1")
    if stamps or probe or leak:
        a("s_cmp_lg_u32 s99, 2")
        a("s_cbranch_scc1 L_c_ns3")
        stamp(3)
        a("L_c_ns3:")
    if cmap:
        a("s_mov_b32 s9, s11")
        a("s_add_u32 s11, s11, s27")
    else:
        a("s_add_u32 s11, s11, 0x10000")
        a("s_mov_b32 s9, s11")
    if gui:
        a("s_lshl_b32 s24, s24, 1")
        a("s_and_b32 s24, s24, 3")
    a("s_cmp_lt_u32 s99, s15")
    a("s_cbranch_scc1 L_c_blk")
    stamp(4)
    leak_flag()
    if qlight:
        light_test()
        a(f"s_cselect_b32 s4, {qlight}, {qstart}")
        need("s4")
    elif qstart: need(qstart)
    a("s_lshr_b32 s4, s2, 6")
    a("s_lshl_b32 s4, s4, 12")
    a("s_lshl_b32 s5, s3, 10")
    a("s_add_u32 s52, s4, s5")
    a("s_add_u32 s53, s52, 16384")
    a("s_add_u32 s54, s52, 32768")
    a("s_add_u32 s55, s52, 49152")
    def q_loads():
        for r in range(1 if "q" in abl else 4):
            a(f"buffer_load_dwordx4 v[{64+4*r}:{67+4*r}], v6, s[48:51], s{52+r} offen sc1")
    q_loads()
    KF = 32; QF = 96; SC = 64; VF = 72; AO = 80
    KA = 112; VA = 116; KC = 120; VC = 118
    S = 16; P = 20; M2, LS, AL = 24, 25, 26
    RL, LB = 30, 31
    A_OP, A_PERM, A_SH, A_G, A_OL, A_SP, A_M, SEL1, SEL2, A_QR, ONE = 128, 129, 130, 131, 132, 133, 134, 138, 139, 140, 141
    a("v_lshlrev_b32 v13, 1, v3")
    for m in range(4):
        a(f"v_add_u32 v12, {4*m}, v4")
        a("v_xor_b32 v12, v12, v13")
        a("v_lshlrev_b32 v12, 4, v12")
        a(f"v_lshl_add_u32 v{KA+m}, v5, 8, v12")
    a("v_lshrrev_b32 v12, 2, v5")
    a("v_lshl_add_u32 v12, v4, 2, v12")
    a("v_and_b32 v15, 3, v0")
    a("v_lshlrev_b32 v13, 3, v15")
    a("v_lshl_add_u32 v13, v12, 8, v13")
    a("v_add_u32 v13, 8192, v13")
    a("v_and_b32 v12, 7, v12")
    a("s_lshl_b32 s4, s3, 1")
    for n in range(2):
        a(f"s_add_u32 s5, s4, {n}")
        a("v_xor_b32 v14, s5, v12")
        a(f"v_lshl_add_u32 v{VA+n}, v14, 5, v13")
    a(f"v_mov_b32 v{M2}, 0xff7fffff")
    a(f"v_mov_b32 v{LS}, 0")
    for i in range(8): a(f"v_mov_b32 v{AO+i}, 0")
    a("v_cmp_lt_u32 s[100:101], 7, v5")
    a(f"s_mov_b32 s12, {LOG2E}")
    a(f"v_mul_u32_u24 v14, {QROW}, v3")
    a("v_lshl_add_u32 v14, v4, 4, v14")
    a(f"v_add_u32 v{A_QR}, v14, v1")
    a(f"v_mov_b32 v{ONE}, 1")
    a(f"v_lshlrev_b32 v14, {9+ow}, v2")
    if opw:
        a("v_and_b32 v13, 4, v0")
        a("v_lshl_add_u32 v14, v13, 4, v14")
    a(f"v_lshl_add_u32 v{A_OP}, v3, 4, v14")
    a("v_lshlrev_b32 v13, 4, v15")
    a("v_and_b32 v14, 4, v0")
    a("v_lshl_add_u32 v13, v14, 1, v13")
    a("v_add_u32 v13, v13, v2")
    a(f"v_lshlrev_b32 v{A_PERM}, 2, v13")
    a(f"v_lshlrev_b32 v{A_SH}, 3, v4")
    TO = 143
    a("v_bfe_i32 v12, v0, 4, 1")
    a(f"v_and_b32 v12, {TAGX}, v12")
    a(f"v_xor_b32 v{TO}, s13, v12")
    for k in range(1, 3): a(f"v_lshrrev_b32 v{TO+k}, {8*k}, v{TO}")
    a(f"s_mul_i32 s4, s2, {RSO}")
    a(f"s_lshl_b32 s5, s3, {7+ow}")
    a("s_add_u32 s4, s4, s5")
    a(f"s_add_u32 s44, s4, {OP}")
    rr_cc(4, 5)
    a(f"s_mul_i32 s8, s4, {RSS}")
    a(f"s_lshl_b32 s9, s5, {10+sw}")
    a("s_add_u32 s8, s8, s9")
    a(f"s_lshl_b32 s9, s3, {8+sw}")
    a("s_add_u32 s8, s8, s9")
    a(f"s_add_u32 s45, s8, {SP}")
    if cgate:
        a("s_lshl_b32 s8, s4, 8")
        a(f"s_add_u32 s8, s8, {OCN}")
        a("s_add_u32 s58, s38, s8")
        a("s_addc_u32 s59, s39, 0")
        a("s_lshr_b32 s8, s2, 6")
        a("s_lshl_b32 s8, s8, 12")
        a(f"s_add_u32 s46, s8, {OCN}")
        a("v_lshlrev_b32 v142, 8, v0")
    a("s_lshr_b32 s8, s4, 4")
    a(f"s_mul_i32 s8, s8, {64*RSO}")
    a("s_and_b32 s9, s4, 15")
    a(f"s_lshl_b32 s9, s9, {8+ow}")
    a("s_add_u32 s8, s8, s9")
    a(f"s_lshl_b32 s9, s3, {6+ow}")
    a("s_add_u32 s8, s8, s9")
    a(f"s_add_u32 s16, s8, {OP}")
    a(f"s_add_u32 s17, s16, {RSO}")
    a(f"s_add_u32 s18, s16, {2*RSO}")
    a(f"s_add_u32 s19, s16, {3*RSO}")
    a("v_lshrrev_b32 v13, 2, v0")
    a(f"v_mul_u32_u24 v13, {4*RSO}, v13")
    a(f"v_lshl_add_u32 v{A_G}, v15, 4, v13")
    a("v_lshl_add_u32 v12, v4, 4, v1")
    a(f"v_add_u32 v12, {OL}, v12")
    a(f"v_add_u32 v13, {ZER}, v1")
    for u in range(4):
        a(f"v_cmp_eq_u32 vcc, {u}, v15")
        a(f"v_cndmask_b32 v{A_M+u}, v13, v12, vcc")
    a("s_lshl_b32 s4, s3, 5")
    a("v_lshl_add_u32 v13, v4, 1, v1")
    a("v_lshl_add_u32 v13, v15, 3, v13")
    a(f"v_add_u32 v{A_OL}, s4, v13")
    a("v_lshlrev_b32 v13, 4, v5")
    a(f"v_lshl_add_u32 v{A_SP}, v4, {6+sw}, v13")
    a("v_and_b32 v12, 1, v0")
    a("v_cmp_eq_u32 vcc, 1, v12")
    a("v_mov_b32 v12, 0x06020400")
    a("v_mov_b32 v13, 0x03070105")
    a(f"v_cndmask_b32 v{SEL1}, v12, v13, vcc")
    a("v_and_b32 v12, 2, v0")
    a("v_cmp_eq_u32 vcc, 2, v12")
    a("v_mov_b32 v12, 0x05040100")
    a("v_mov_b32 v13, 0x03020706")
    a(f"v_cndmask_b32 v{SEL2}, v12, v13, vcc")
    a("s_mov_b32 s20, 0x0c0c0400")
    a("s_mov_b32 s21, 0x05040100")
    L = a.label("L_q"); D = a.label("L_qd")
    a(f"s_mov_b32 s60, {spin_limit}")
    a("s_branch L_q_wait")
    a(f"{L}:")
    q_loads()
    a("L_q_wait:")
    a("s_waitcnt vmcnt(0)")
    tag_check([64] if "q" in abl else [64, 68, 72, 76], 12)
    retry_masked(L, D, qsleep)
    stamp(5)
    for k in range(4): a(f"v_add_f32 v{64+k}, v{64+k}, v{68+k}")
    for k in range(4): a(f"v_add_f32 v{72+k}, v{72+k}, v{76+k}")
    for k in range(4): a(f"v_add_f32 v{64+k}, v{64+k}, v{72+k}")
    a("v_cvt_pk_bf16_f32 v64, v64, v65")
    a("v_cvt_pk_bf16_f32 v65, v66, v67")
    a("v_lshrrev_b32 v12, 5, v0")
    a("s_lshl_b32 s4, s3, 1")
    a("v_add_u32 v12, s4, v12")
    a(f"v_mul_u32_u24 v12, {QROW}, v12")
    a("v_and_b32 v13, 31, v0")
    a("v_lshl_add_u32 v12, v13, 3, v12")
    a("v_add_u32 v12, v12, v1")
    a(f"ds_write_b64 v12, v[64:65] offset:{QL}")
    a(f"ds_add_u32 v{A1}, v{ONE} offset:{QCNT}")
    lds_spin(QCNT, 4 if eearly else 5, 12, 0)
    for m in range(4):
        a(f"ds_read_b128 v[{QF+4*m}:{QF+4*m+3}], v{A_QR} offset:{QL+64*m}")
    stamp(6)
    def k_reads():
        for m in range(4): a(f"v_add_u32 v{KC+m}, s4, v{KA+m}")
        for t in range(2):
            for m in range(4):
                d = KF + 16 * t + 4 * m
                a(f"ds_read_b128 v[{d}:{d+3}], v{KC+m} offset:{4096*t}")
    def v_addr():
        for n in range(2): a(f"v_add_u32 v{VC+n}, s5, v{VA+n}")
    def v_reads(VF=VF, off=0):
        for n in range(2):
            for t in range(2):
                d = VF + 4 * n + 2 * t
                a(f"ds_read_b64_tr_b16 v[{d}:{d+1}], v{VC+n} offset:{off+4096*t}")
    def qk_list(KF=KF, SC=SC):
        out = []
        for t in range(2):
            for m in range(4):
                d = KF + 16 * t + 4 * m
                c = "0" if m == 0 else f"v[{SC+4*t}:{SC+4*t+3}]"
                out.append(f"v_mfma_f32_16x16x32_bf16 v[{SC+4*t}:{SC+4*t+3}], v[{d}:{d+3}], v[{QF+4*m}:{QF+4*m+3}], {c}")
        return out
    def softmax_list():
        o = []
        for k in range(4): o.append(f"v_cndmask_b32 v{S+k}, v{SC+k}, v{SC+4+k}, s[100:101]")
        for k in range(4): o.append(f"v_cvt_pk_bf16_f32 v{S+k}, 0, v{S+k}")
        for k in range(4): o.append(f"v_mul_f32 v{S+k}, {SCALE}, v{S+k}")
        for k in range(4): o.append(f"v_cvt_pk_bf16_f32 v{S+k}, 0, v{S+k}")
        o.append(f"v_max3_f32 v14, v{S}, v{S+1}, v{S+2}")
        o.append(f"v_max_f32 v14, v14, v{S+3}")
        o.append("MARK")
        o += row_list("v_max_f32", 14, (8,)) + cross_list("v_max_f32", 14, 15)
        o.append("v_mul_f32 v14, s12, v14")
        o.append(f"v_max_f32 v14, v14, v{M2}")
        o.append(f"v_sub_f32 v{AL}, v{M2}, v14")
        o.append(f"v_mov_b32 v{M2}, v14")
        o.append(f"v_exp_f32 v{AL}, v{AL}")
        for k in range(4): o.append(f"v_fma_f32 v{S+k}, v{S+k}, s12, -v14")
        for k in range(4): o.append(f"v_exp_f32 v{S+k}, v{S+k}")
        for i in range(4): o.append(f"v_mul_f32 v{AO+i}, v{AL}, v{AO+i}")
        o.append(f"v_cvt_pk_bf16_f32 v{P}, v{S}, v{S+1}")
        o.append(f"v_cvt_pk_bf16_f32 v{P+1}, v{S+2}, v{S+3}")
        for i in range(4, 8): o.append(f"v_mul_f32 v{AO+i}, v{AL}, v{AO+i}")
        o.append(f"v_mov_b32_dpp v{P+2}, v{P} row_ror:8 {DPP}")
        o.append(f"v_mov_b32_dpp v{P+3}, v{P+1} row_ror:8 {DPP}")
        o.append(f"v_add_f32 v14, v{S}, v{S+1}")
        o.append(f"v_add_f32 v15, v{S+2}, v{S+3}")
        o.append("v_add_f32 v14, v14, v15")
        o.append(f"v_fma_f32 v{LS}, v{LS}, v{AL}, v14")
        return o
    def pv(VF=VF, P=P):
        for n in range(2):
            a(f"v_mfma_f32_16x16x32_bf16 v[{AO+4*n}:{AO+4*n+3}], v[{VF+4*n}:{VF+4*n+3}], v[{P}:{P+3}], v[{AO+4*n}:{AO+4*n+3}]")
    def arrive():
        Ln = a.label("L_noarr")
        a("s_cmp_lg_u32 s3, 0")
        a(f"s_cbranch_scc1 {Ln}")
        a("s_mov_b64 exec, 0xffff")
        a(f"buffer_atomic_add v{ONE}, v142, s[48:51], s46 offen sc1")
        a("s_mov_b64 exec, -1")
        a(f"{Ln}:")
    def stats():
        a(f"v_mov_b32 v{RL}, v{LS}")
        emit(row_list("v_add_f32", RL, (8,)) + cross_list("v_add_f32", RL, 15))
        a(f"v_log_f32 v{LB}, v{RL}")
        a(f"v_rcp_f32 v{RL}, v{RL}")
        a("s_sub_u32 s6, s10, 2")
        a(f"v_add_f32 v{LB}, v{LB}, v{M2}")
        a(f"v_lshrrev_b32 v{LB}, v{A_SH}, v{LB}")
    cnt = not (stamps or probe or leak)
    if two:
        KF2, SC2, S2, PK, A_SB, VF2, P2 = 152, 72, 88, 92, 146, 152, 160
        light_test()
        a(f"s_cselect_b32 s25, {(dyn + lex) // 2}, {dyn // 2}")
        a("s_mov_b32 s11, 0")
        a("s_mov_b32 s26, 0x07060302")
        a(f"v_add_u32 v{A_SB}, v6, v1")
        a("L_c_kk:")
        a("s_add_u32 s10, s10, 4")
        need("s10")
        slot_base(4, "s99")
        k_reads()
        for t in range(2):
            for m in range(4):
                d = KF2 + 16 * t + 4 * m
                a(f"ds_read_b128 v[{d}:{d+3}], v{KC+m} offset:{8192+4096*t}")
        a("s_add_u32 s99, s99, 1")
        a("s_add_u32 s11, s11, 1")
        qa = qk_list(); qb = qk_list(KF2, SC2)
        a("s_waitcnt lgkmcnt(8)" if cnt else "s_waitcnt lgkmcnt(0)")
        emit(qa)
        a("s_waitcnt lgkmcnt(0)")
        progress("s99")
        def pre(sc, sv, pk):
            o = [f"v_cndmask_b32 v{sv+k}, v{sc+k}, v{sc+4+k}, s[100:101]" for k in range(4)]
            o += [f"v_cvt_pk_bf16_f32 v{sv+k}, 0, v{sv+k}" for k in range(4)]
            o += [f"v_mul_f32 v{sv+k}, {SCALE}, v{sv+k}" for k in range(4)]
            o += [f"v_cvt_pk_bf16_f32 v{sv+k}, 0, v{sv+k}" for k in range(4)]
            o += [f"v_max3_f32 v{M2}, v{M2}, v{sv}, v{sv+1}", f"v_perm_b32 v{pk}, v{sv+1}, v{sv}, s26",
                  f"v_max3_f32 v{M2}, v{M2}, v{sv+2}, v{sv+3}", f"v_perm_b32 v{pk+1}, v{sv+3}, v{sv+2}, s26"]
            return o
        emit(interleave(qb, pre(SC, S, PK), {3: 1, 4: 3, 5: 3, 6: 3}))
        emit(pre(SC2, S2, PK + 2))
        a(f"ds_write_b128 v{A_SB}, v[{PK}:{PK+3}] offset:{SB}")
        a(f"v_add_u32 v{A_SB}, 1024, v{A_SB}")
        a("s_cmp_lt_u32 s11, s25")
        a("s_cbranch_scc1 L_c_kk")
        stamp(7)
        emit(row_list("v_max_f32", M2, (8,)) + cross_list("v_max_f32", M2, 15))
        a(f"v_mul_f32 v{M2}, s12, v{M2}")
        a(f"v_add_u32 v{A_SB}, v6, v1")
        a("s_lshl_b32 s25, s25, 1")
        a("L_c_vv:")
        a(f"ds_read_b128 v[{PK}:{PK+3}], v{A_SB} offset:{SB}")
        a(f"v_add_u32 v{A_SB}, 1024, v{A_SB}")
        slot_base(5, "s99")
        a("s_sub_u32 s5, s5, 8192")
        v_addr()
        a("s_add_u32 s10, s10, 4")
        a("s_add_u32 s99, s99, 1")
        a("s_add_u32 s11, s11, 1")
        a("s_waitcnt lgkmcnt(0)")
        for h, sv in enumerate((S, S2)):
            for k in range(2):
                a(f"v_lshlrev_b32 v{sv+2*k}, 16, v{PK+2*h+k}")
                a(f"v_and_b32 v{sv+2*k+1}, 0xffff0000, v{PK+2*h+k}")
        for sv in (S, S2):
            for k in range(4): a(f"v_fma_f32 v{sv+k}, v{sv+k}, s12, -v{M2}")
        need("s10")
        v_reads()
        v_reads(VF2, 8192)
        for sv in (S, S2):
            for k in range(4): a(f"v_exp_f32 v{sv+k}, v{sv+k}")
        for sv, pp in ((S, P), (S2, P2)):
            a(f"v_cvt_pk_bf16_f32 v{pp}, v{sv}, v{sv+1}")
            a(f"v_cvt_pk_bf16_f32 v{pp+1}, v{sv+2}, v{sv+3}")
        for k in range(4): a(f"v_add_f32 v{S+k}, v{S+k}, v{S2+k}")
        for pp in (P, P2):
            a(f"v_mov_b32_dpp v{pp+2}, v{pp} row_ror:8 {DPP}")
            a(f"v_mov_b32_dpp v{pp+3}, v{pp+1} row_ror:8 {DPP}")
        a(f"v_add_f32 v{S}, v{S}, v{S+1}")
        a(f"v_add_f32 v{S+2}, v{S+2}, v{S+3}")
        a("s_waitcnt lgkmcnt(0)")
        progress("s99")
        pv()
        pv(VF2, P2)
        a(f"v_add_f32 v{S}, v{S}, v{S+2}")
        a(f"v_add_f32 v{LS}, v{LS}, v{S}")
        a("s_cmp_lt_u32 s11, s25")
        a("s_cbranch_scc1 L_c_vv")
        a("s_add_u32 s10, s10, 2")
        a("s_cmp_lt_u32 s11, s97")
        a("s_cbranch_scc1 L_c_k")
        stats()
        a("s_branch L_c_pub")
    else:
        a("s_add_u32 s10, s10, 2")
        a("s_mov_b32 s11, 0")
        a("s_branch L_c_k")
    a("L_c_fast:")
    slot_base(5, "s99")
    a("s_add_u32 s99, s99, 1")
    slot_base(4, "s99")
    v_addr()
    v_reads()
    k_reads()
    sm = softmax_list(); i = sm.index("MARK")
    emit(sm[:i])
    a("s_waitcnt lgkmcnt(0)")
    progress("s99")
    rest = sm[i + 1:]; q = qk_list()
    pos = {0: 1, 1: 0, 2: 1, 4: 0, 5: 2, 9: 1, 12: 1, 16: 1, 20: 1}
    for j, x in enumerate(rest):
        for _ in range(pos.get(j, 0)): a(q.pop(0))
        a(x)
    assert not q
    pv()
    a("L_c_top:")
    a("s_add_u32 s11, s11, 1")
    a("s_add_u32 s10, s10, 4")
    a("s_cmp_ge_u32 s11, s97")
    a("s_cbranch_scc1 L_c_slow")
    a("s_cmp_ge_u32 s96, s10")
    a("s_cbranch_scc1 L_c_fast")
    refresh()
    a("s_cmp_ge_u32 s96, s10")
    a("s_cbranch_scc1 L_c_fast")
    a("L_c_slow:")
    if stamps or probe or leak: stamp(8)
    slot_base(5, "s99")
    v_addr()
    emit([x for x in softmax_list() if x != "MARK"])
    stats()
    if stamps or probe or leak: stamp(9)
    need("s6")
    v_reads()
    a("s_add_u32 s99, s99, 1")
    a("s_cmp_ge_u32 s11, s97")
    a("s_cbranch_scc1 L_c_last")
    a("s_waitcnt lgkmcnt(0)")
    pv()
    progress("s99")
    a("L_c_k:")
    need("s10")
    slot_base(4, "s99")
    k_reads()
    q = qk_list()
    for j in range(8):
        if not (stamps or probe or leak): a(f"s_waitcnt lgkmcnt({7-j})")
        elif j == 0: a("s_waitcnt lgkmcnt(0)")
        a(q[j])
    a("s_branch L_c_top")
    a("L_c_last:")
    if sig1 is not None and s1pos == "last": a(f"ds_add_u32 v{A1}, v{ONE} offset:{PCNT}")
    a("s_waitcnt lgkmcnt(0)")
    pv()
    progress("s99")
    a("L_c_pub:")
    for k in range(4): a(f"v_mov_b32_dpp v{AO+k}, v{AO+4+k} row_ror:8 row_mask:0xf bank_mask:0xc")
    for k in range(4):
        a(f"v_mul_f32 v{AO+k}, v{RL}, v{AO+k}")
    apply_tag(AO, [TO, TO + 1, TO + 2, LB])
    for k in range(4): a(f"ds_bpermute_b32 v{AO+k}, v{A_PERM}, v{AO+k}")
    a("s_waitcnt lgkmcnt(0)")
    if "o" not in abl: a(f"buffer_store_dwordx4 v[{AO}:{AO+3}], v{A_OP}, s[48:51], s44 offen {ost}")
    if sig1 is not None and s1pos == "store": a(f"ds_add_u32 v{A1}, v{ONE} offset:{PCNT}")
    stamp(10)
    PD, WF, BF, WA = 64, 32, 96, 88
    a("s_lshl_b32 s99, s99, 2")
    a("s_add_u32 s22, s99, s3")
    a("s_add_u32 s22, s22, 8")
    a("s_add_u32 s23, s22, 4")
    for st in range(2):
        a(f"s_sub_u32 s4, s{22+st}, 1")
        a("s_and_b32 s4, s4, 31")
        a("s_lshl_b32 s4, s4, 12")
        for u in range(4):
            a(f"v_xor_b32 v14, {32*u}, v{TA}")
            a(f"v_add_u32 v{WA+4*st+u}, s4, v14")
    def wo_reads(st):
        for u in range(4):
            for t in range(2):
                d = WF + 8 * u + 4 * st + 2 * t
                a(f"ds_read_b64_tr_b16 v[{d}:{d+1}], v{WA+4*st+u} offset:{t*2048}")
    stamp(11)
    assert gate >= 15 - (win // 4 - 1)
    a(f"s_add_u32 s10, s99, {gate}")
    need("s10", count=False)
    stamp(14)
    def o_loads():
        for i in range(0 if "g" in abl else 4):
            a(f"buffer_load_dwordx4 v[{PD+4*i}:{PD+4*i+3}], v{A_G}, s[48:51], s{16+i} offen {old_}")
    if sig1 is not None:
        a(f"ds_read_b32 v14, v1 offset:{GO}")
        a("s_waitcnt lgkmcnt(0)")
        a("v_readfirstlane_b32 s4, v14")
        a("s_cmp_eq_u32 s4, 0")
        a("s_cbranch_scc1 L_o_notyet")
    o_loads()
    need("s22", count=False)
    wo_reads(0)
    need("s23", count=False)
    wo_reads(1)
    a(f"s_mov_b32 s60, {spin_limit}")
    if sigpos != "chk":
        a(f"s_waitcnt vmcnt({0 if sigpos == 'arr' else 3})")
        a(f"ds_add_u32 v{A1}, v{ONE} offset:{GCNT}")
    a("L_o_chk:")
    fill = tag_list(range(PD, PD + 16, 4), 12, n=3)
    a("s_waitcnt vmcnt(2)")
    a(f"v_perm_b32 v16, v{PD+7}, v{PD+3}, s20")
    a("s_waitcnt vmcnt(0)")
    chain = [f"v_perm_b32 v17, v{PD+15}, v{PD+11}, s20", "v_perm_b32 v16, v17, v16, s21",
             f"v_mov_b32_dpp v17, v16 quad_perm:[1,0,3,2] {DPP}", f"v_perm_b32 v16, v17, v16, v{SEL1}",
             f"v_mov_b32_dpp v17, v16 quad_perm:[2,3,0,1] {DPP}", f"v_perm_b32 v18, v17, v16, v{SEL2}",
             f"v_max_f32_dpp v16, v18, v18 row_ror:1 {DPP}"] + row_list("v_max_f32", 16, (2, 4, 8)) + cross_list("v_max_f32", 16, 17)
    fill += ["s_nop 0", f"v_or_b32_dpp v12, v12, v12 quad_perm:[1,0,3,2] {DPP}", "s_nop 0", f"v_or_b32_dpp v12, v12, v12 quad_perm:[2,3,0,1] {DPP}"]
    emit(interleave(chain, fill, {1: 2, 3: 2, 5: 2, 6: 2, 7: 2, 8: 2, 10: 2, 13: 2}))
    a("v_cmp_ne_u32 vcc, 0, v12")
    a("v_sub_f32 v18, v18, v16")
    a("v_exp_f32 v18, v18")
    if "o" not in abl and "c" not in abl: a("s_cbranch_vccnz L_o_again")
    a("L_o_done:")
    if sig2 and sigpos == "chk": a(f"ds_add_u32 v{A1}, v{ONE} offset:{GCNT}")
    stamp(12)
    fm = [f"v_mul_f32_dpp v{20+k}, v18, v{PD+k} quad_perm:[0,0,0,0] {DPP}" for k in range(4)]
    for i in range(1, 4):
        fm += [f"v_fmac_f32_dpp v{20+k}, v18, v{PD+4*i+k} quad_perm:[{i},{i},{i},{i}] {DPP}" for k in range(4)]
    wsum = [f"v_add_f32_dpp v16, v18, v18 row_ror:1 {DPP}"] + row_list("v_add_f32", 16, (2, 4, 8)) + cross_list("v_add_f32", 16, 17) + ["v_rcp_f32 v16, v16"]
    red = ["v_permlane32_swap_b32 v20, v22", "v_permlane32_swap_b32 v21, v23", "v_add_f32 v20, v20, v22", "v_add_f32 v21, v21, v23",
           "v_permlane16_swap_b32 v20, v21", "v_add_f32 v20, v20, v21"] + row_list("v_add_f32", 20, (4, 8))
    emit(interleave(fm + red, wsum, {3: 1, 7: 1, 11: 1, 15: 2, 19: 2, 21: 1, 22: 2}))
    a("v_mul_f32 v20, v20, v16")
    a("v_cvt_pk_bf16_f32 v20, v20, v20")
    a(f"ds_write_b16 v{A_OL}, v20 offset:{OL}")
    a(f"ds_add_u32 v{A1}, v{ONE} offset:{OCNT}")
    a(f"s_mov_b32 s60, {spin_limit}")
    a("L_x:")
    a(f"ds_read_b32 v12, v1 offset:{OCNT}")
    for u in range(4):
        for st in range(2):
            d = BF + 8 * u + 4 * st
            a(f"ds_read_b128 v[{d}:{d+3}], v{A_M+u} offset:{64*st}")
    a("s_sub_u32 s60, s60, 1")
    a("s_waitcnt lgkmcnt(0)" if (stamps or probe or leak) else "s_waitcnt lgkmcnt(8)")
    a("v_readfirstlane_b32 s61, v12")
    a("s_cselect_b32 s61, -1, s61")
    a("s_cmp_lt_u32 s61, 4")
    a("s_cbranch_scc1 L_x")
    for u in range(4):
        for st in range(2):
            if not (stamps or probe or leak): a(f"s_waitcnt lgkmcnt({7-2*u-st})")
            c = "0" if u + st == 0 else f"v[{ACC}:{ACC+3}]"
            a(f"v_mfma_f32_16x16x32_bf16 v[{ACC}:{ACC+3}], v[{WF+8*u+4*st}:{WF+8*u+4*st+3}], v[{BF+8*u+4*st}:{BF+8*u+4*st+3}], {c}")
    setexec(0x000f000f, 0x000f000f)
    apply_tag(ACC)
    a(f"buffer_store_dwordx4 v[{ACC}:{ACC+3}], v{A_SP}, s[48:51], s45 offen sc1")
    stamp(13)
    dump_stamps(12, 13)
    a("s_endpgm")
    if sig1 is not None:
        a("L_o_notyet:")
        need("s22", count=False)
        wo_reads(0)
        need("s23", count=False)
        wo_reads(1)
        lds_spin(GO, 1, 12, 0)
        o_loads()
        a(f"s_mov_b32 s60, {spin_limit}")
        a("s_branch L_o_chk")
    a("L_o_again:")
    a("s_sub_u32 s60, s60, 1")
    a("s_cbranch_scc1 L_o_done")
    if osleep: a(f"s_sleep {osleep}")
    a("s_mov_b64 exec, vcc")
    o_loads()
    a("s_mov_b64 exec, -1")
    a("s_branch L_o_chk")

    role[0] = "H"
    a("L_helper:")
    srd(56, 34, 2048)
    if not eearly:
        a("v_mov_b32 v12, 1")
        a("s_waitcnt lgkmcnt(0)")
        a("s_mov_b64 exec, 1")
        a(f"ds_add_u32 v1, v12 offset:{QCNT}")
        a("s_mov_b64 exec, -1")
    make_tag()
    wd_row(4)
    a("s_mul_i32 s4, s4, 896")
    a(f"s_add_u32 s8, s4, {GP}")
    a("s_add_u32 s9, s8, 0x10000")
    a("v_add_u32 v14, -2, v5")
    a("v_cmp_gt_u32 vcc, 14, v5")
    a("v_cndmask_b32 v14, v14, v5, vcc")
    a("v_lshlrev_b32 v15, 4, v14")
    a("v_lshl_add_u32 v15, v4, 14, v15")
    a("v_lshlrev_b32 v14, 3, v14")
    a("v_lshl_add_u32 v14, v4, 1, v14")
    a("v_add_u32 v14, v14, v1")
    leak_flag()
    if leak:
        for x in leak:
            if x[0] == "H" and x[1]: a(f"s_mov_b32 s{64+2*x[1]}, 0")
    if hstart: need(hstart, sleep=8)
    else: lds_spin(QCNT, 7 if early_t else 5, 12, 8)
    stamp(1)
    L = a.label("L_h"); D = a.label("L_hd")
    a(f"s_mov_b32 s60, {spin_limit}")
    a(f"{L}:")
    for w in range(0 if "h" in abl else 4):
        a(f"buffer_load_dwordx4 v[{32+8*w}:{35+8*w}], v15, s[48:51], s8 offen offset:{224*w} sc1")
        a(f"buffer_load_dwordx4 v[{36+8*w}:{39+8*w}], v15, s[48:51], s9 offen offset:{224*w} sc1")
    a("s_waitcnt vmcnt(0)")
    tag_check(range(32, 64, 4), 12, quad=False)
    if "h" in abl: a("s_mov_b64 vcc, 0")
    retry_masked(L, D, 16)
    stamp(2)
    G8 = list(range(32, 64, 4)); G4 = G8[::2]
    for step in ("v_permlane32_swap_b32 v{r}, v{r2}", "v_permlane32_swap_b32 v{r1}, v{r3}", "v_add_f32 v{r}, v{r}, v{r2}",
                 "v_add_f32 v{r1}, v{r1}, v{r3}", "v_permlane16_swap_b32 v{r}, v{r1}", "v_add_f32 v{r}, v{r}, v{r1}",
                 "v_cvt_pk_bf16_f32 v{r}, 0, v{r}"):
        for r in G8: a(step.format(r=r, r1=r + 1, r2=r + 2, r3=r + 3))
    for step in ("v_mul_f32 v{t}, 0xbfb8aa3b, v{g}", "v_exp_f32 v{t}, v{t}", "v_add_f32 v{t}, 1.0, v{t}", "v_rcp_f32 v{t}, v{t}",
                 "v_mul_f32 v{t}, v{t}, v{g}", "v_cvt_pk_bf16_f32 v{g}, 0, v{t}", "v_mul_f32 v{g}, v{g}, v{u}",
                 "v_cvt_pk_bf16_f32 v{g}, v{g}, v{g}"):
        for g in G4: a(step.format(g=g, t=g + 1, u=g + 4))
    for w, g in enumerate(G4): a(f"ds_write_b16 v14, v{g} offset:{HL+112*w}")
    a("s_and_b32 s4, s2, 7")
    a(f"s_lshr_b32 s5, s2, {7 if oneline else 6}")
    a("s_lshl_b32 s5, s5, 3")
    a("s_or_b32 s4, s4, s5")
    a(f"s_lshl_b32 s4, s4, {2 if oneline else 1}")
    a(f"s_bfe_u32 s5, s2, {0x20005 if oneline else 0x10005}")
    a("s_add_u32 s4, s4, s5")
    if sig2:
        a("s_lshl_b32 s5, s4, 10")
        a(f"s_add_u32 s5, s5, {AC2}")
        a("s_add_u32 s52, s38, s5")
        a("s_addc_u32 s53, s39, 0")
        a("s_lshl_b32 s47, s13, 2")
        a("s_add_u32 s47, s47, 64")
    a(f"s_lshl_b32 s5, s4, {6+sw}")
    for i in range(8 if fatom else 4): a(f"s_add_u32 s{20+i}, s5, {SP + i*RSS}")
    a("s_lshl_b32 s5, s4, 6")
    a(f"s_add_u32 s45, s5, {FP}")
    a("s_lshr_b32 s46, s4, 2")
    a("s_lshl_b32 s46, s46, 7")
    a("s_and_b32 s5, s4, 3")
    a("s_lshl_b32 s5, s5, 3")
    a("s_add_u32 s46, s46, s5")
    a("v_lshrrev_b32 v12, 2, v0")
    a("v_and_b32 v13, 3, v0")
    a(f"v_mul_u32_u24 v19, {RS}, v12")
    if fatom:
        a(f"v_mul_u32_u24 v18, {8*RSS}, v2")
        a("v_lshl_add_u32 v18, v3, 3, v18")
        a("v_bfe_i32 v23, v0, 1, 1")
        a(f"v_and_b32 v23, {TAGX}, v23")
        a("v_xor_b32 v23, s13, v23")
        a("v_and_b32 v16, 1, v0")
        a("v_lshlrev_b32 v16, 4, v16")
        a("v_lshrrev_b32 v16, v16, v23")
        a("v_lshrrev_b32 v17, 8, v16")
        a("v_lshrrev_b32 v23, 5, v0")
        a("v_and_b32 v100, 1, v0")
        a("v_lshl_add_u32 v23, v100, 1, v23")
        a("v_bfe_u32 v100, v0, 1, 2")
        a("v_lshlrev_b32 v101, 6, v23")
        a("v_lshl_add_u32 v101, v100, 2, v101")
        a("v_lshlrev_b32 v23, 1, v23")
        a("v_lshl_add_u32 v23, v100, 5, v23")
    else:
        a(f"v_mul_u32_u24 v18, {4*RSS}, v12")
        a("v_lshl_add_u32 v18, v13, 4, v18")
    a("v_lshl_add_u32 v19, v13, 4, v19")
    a("v_lshlrev_b32 v20, 5, v13")
    a("v_lshl_add_u32 v20, v4, 1, v20")
    if fatom: a("v_mov_b32 v20, v23")
    a("buffer_load_ushort v22, v20, s[40:43], s46 offen")
    wd_row(4)
    a(f"s_mul_i32 s4, s4, {RS}")
    wd_col(5)
    a("s_lshl_b32 s5, s5, 8")
    a("s_add_u32 s4, s4, s5")
    a(f"s_add_u32 s15, s4, {FP}")
    a("v_lshlrev_b32 v21, 4, v5")
    a("v_lshl_add_u32 v21, v4, 6, v21")
    tr_addr(TA)
    for u in range(4): a(f"v_xor_b32 v{28+u}, {32*u}, v{TA}")
    a("v_lshl_add_u32 v14, v4, 4, v1")
    a("v_and_b32 v12, 1, v0")
    a("v_cmp_eq_u32 s[8:9], 1, v12")
    a("v_and_b32 v12, 2, v0")
    a("v_cmp_eq_u32 s[6:7], 2, v12")
    CA = 64; HF = 48
    for k in range(16): a(f"v_mov_b32 v{CA+k}, 0")
    if pre in ("full", "ld"):
        a("s_and_b32 s4, s2, 0x78")
        a("s_cbranch_scc1 L_h_nopre")
        a("v_lshlrev_b32 v12, 2, v0")
        a("v_mov_b32 v13, 0")
        a("s_mov_b32 exec_hi, 0")
        if pre == "full": a("buffer_store_dword v13, v12, s[56:59], s46 offen sc1")
        else: a("buffer_load_dword v23, v12, s[56:59], s46 offen")
        a("s_mov_b64 exec, -1")
        a("L_h_nopre:")
    if pre == "st0":
        a("s_and_b32 s4, s2, 0x18")
        a("s_cbranch_scc1 L_h_nopre")
        a("s_waitcnt vmcnt(0)")
        setexec(0x000f000f, 0x000f000f)
        a("buffer_store_short v22, v20, s[56:59], s46 offen")
        a("s_mov_b64 exec, -1")
        a("L_h_nopre:")
    stamp(3)
    L = a.label("L_nt"); D = a.label("L_ntd")
    a(f"s_mov_b32 s60, {spin_limit}")
    a(f"{L}:")
    refresh()
    a(f"s_cmp_lg_u32 s97, {BIG}")
    a(f"s_cbranch_scc1 {D}")
    a("s_sleep 4")
    a("s_sub_u32 s60, s60, 1")
    a(f"s_cbranch_scc0 {L}")
    a(f"{D}:")
    light_test()
    a("s_cselect_b32 s10, 2, 6")
    a("s_add_u32 s10, s10, s97")
    a("s_lshl_b32 s10, s10, 2")
    a("s_mov_b32 s11, 0")
    need("s10", sleep=2)
    a("s_setprio 2")
    a("L_h_step:")
    a("s_and_b32 s4, s10, 31")
    a("s_lshl_b32 s4, s4, 12")
    for u in range(4): a(f"v_add_u32 v{24+u}, s4, v{28+u}")
    a(f"ds_read_b128 v[{HF}:{HF+3}], v14 offset:{HL}")
    a("v_add_u32 v14, 64, v14")
    a("s_add_u32 s10, s10, 1")
    need("s10")
    stamp(4)
    for u in range(4):
        for t in range(2):
            d = 32 + 4 * u + 2 * t
            a(f"ds_read_b64_tr_b16 v[{d}:{d+1}], v{24+u} offset:{t*2048}")
    for u in range(4):
        if not (stamps or probe or leak): a(f"s_waitcnt lgkmcnt({6-2*u})")
        elif u == 0: a("s_waitcnt lgkmcnt(0)")
        a(f"v_mfma_f32_16x16x32_bf16 v[{CA+4*u}:{CA+4*u+3}], v[{32+4*u}:{35+4*u}], v[{HF}:{HF+3}], v[{CA+4*u}:{CA+4*u+3}]")
    a("s_add_u32 s11, s11, 1")
    a("s_cmp_lt_u32 s11, 7")
    a("s_cbranch_scc1 L_h_step")
    for k in range(4): a(f"v_cndmask_b32 v{CA+k}, v{CA+k}, v{CA+4+k}, s[8:9]")
    for k in range(4): a(f"v_cndmask_b32 v{CA+8+k}, v{CA+8+k}, v{CA+12+k}, s[8:9]")
    for k in range(4): a(f"v_cndmask_b32 v{CA+k}, v{CA+k}, v{CA+8+k}, s[6:7]")
    apply_tag(CA)
    setexec(0x000f000f, 0x000f000f)
    a(f"buffer_store_dwordx4 v[{CA}:{CA+3}], v21, s[48:51], s15 offen sc1")
    a("s_mov_b64 exec, -1")
    a("s_setprio 0")
    stamp(5)
    a("s_and_b32 s4, s2, 0x18")
    a("s_cbranch_scc1 L_hend")
    if pre == "st":
        a("s_waitcnt vmcnt(0)")
        setexec(0x000f000f, 0x000f000f)
        a("buffer_store_short v22, v20, s[56:59], s46 offen")
        a("s_mov_b64 exec, -1")
    def f_math():
        treduce4(96)
        emit(row_list("v_add_f32", 96, (4, 8)))
        bf16r(96, 96)
        silu_bf16(96, 96, 12)
        a("v_lshlrev_b32 v22, 16, v22")
    if flate:
        lds_spin(GCNT, 4, 12, 1)
        if pre == "st2":
            a("s_waitcnt vmcnt(0)")
            setexec(0x000f000f, 0x000f000f)
            a("buffer_store_short v22, v20, s[56:59], s46 offen")
            a("s_mov_b64 exec, -1")
        a("buffer_load_dwordx4 v[96:99], v19, s[48:51], s45 offen sc1")
    else:
        a("s_add_u32 s10, s10, 8")
        need("s10", sleep=1)
        L = a.label("L_f"); D = a.label("L_fd")
        a(f"s_mov_b32 s60, {spin_limit}")
        a(f"{L}:")
        a("buffer_load_dwordx4 v[96:99], v19, s[48:51], s45 offen sc1")
        a("s_waitcnt vmcnt(0)")
        tag_check([96], 12)
        retry_masked(L, D, 2)
        stamp(12)
        f_math()
    if sig2:
        a(f"s_mov_b32 s60, {spin_limit}")
        a("L_h_watch:")
        for k in range(4): a(f"s_load_dword s{28+k}, s[52:53], {256*k} glc")
        a("s_sub_u32 s60, s60, 1")
        a("s_cbranch_scc1 L_h_go")
        a("s_waitcnt lgkmcnt(0)")
        a("s_add_u32 s28, s28, s29")
        a("s_add_u32 s30, s30, s31")
        a("s_add_u32 s28, s28, s30")
        a("s_cmp_lg_u32 s28, s47")
        a("s_cbranch_scc1 L_h_watch")
        a("L_h_go:")
    else:
        lds_spin(OCNT, 4, 12, 1)
    def s_loads():
        for i in range(4):
            a(f"buffer_load_dwordx4 v[{80+4*i}:{83+4*i}], v18, s[48:51], s{20+i} offen sc1")
    s_loads()
    stamp(6)
    if flate:
        L = a.label("L_f"); D = a.label("L_fd")
        a(f"s_mov_b32 s60, {spin_limit}")
        a("s_waitcnt vmcnt(4)")
        a("s_branch L_f_chk")
        a(f"{L}:")
        a("buffer_load_dwordx4 v[96:99], v19, s[48:51], s45 offen sc1")
        a("s_waitcnt vmcnt(0)")
        a("L_f_chk:")
        tag_check([96], 12)
        retry_masked(L, D, 0)
        f_math()
    a(f"s_mov_b32 s60, {spin_limit}")
    a("L_s_chk:")
    tl = tag_list([80, 84, 88, 92], 12)
    a("s_waitcnt vmcnt(3)")
    emit(tl[0:4])
    a("s_waitcnt vmcnt(2)")
    emit(tl[4:8])
    for k in range(4): a(f"v_add_f32 v{100+k}, v{80+k}, v{84+k}")
    a("s_waitcnt vmcnt(1)")
    emit(tl[8:12])
    for k in range(4): a(f"v_add_f32 v{100+k}, v{100+k}, v{88+k}")
    a("s_waitcnt vmcnt(0)")
    for k in range(4): a(f"v_add_f32 v{100+k}, v{100+k}, v{92+k}")
    red = ["v_permlane32_swap_b32 v100, v102", "v_permlane32_swap_b32 v101, v103", "v_add_f32 v100, v100, v102", "v_add_f32 v101, v101, v103",
           "v_permlane16_swap_b32 v100, v101", "v_add_f32 v100, v100, v101"] + row_list("v_add_f32", 100, (4, 8))
    a(tl[12])
    emit(interleave(red, tl[13:] + join_list(12), {3: 2, 5: 2, 6: 1}))
    a("v_cmp_ne_u32 vcc, 0, v12")
    bf16r(100, 100)
    a("v_mul_f32 v100, v100, v96")
    a("s_cbranch_vccnz L_s_again")
    a("L_s_done:")
    if padend:
        a("L_padend:")
        a("s_memrealtime s[70:71]")
        a("s_waitcnt lgkmcnt(0)")
        a("s_sub_u32 s70, s70, s64")
        a(f"s_cmp_lt_u32 s70, {padend}")
        a("s_cbranch_scc1 L_padend")
    stamp(13)
    bf16r(100, 100)
    a("v_add_f32 v100, v100, v22")
    a("v_cvt_pk_bf16_f32 v80, v100, v100")
    setexec(0x000f000f, 0x000f000f)
    if leak:
        a("s_cmp_lg_u32 s95, 0")
        a("s_cselect_b32 s58, 0, s58")
    a(f"buffer_store_short v80, v20, s[56:59], s46 offen{outsc}")
    if ackst: a("s_waitcnt vmcnt(0)")
    stamp(14)
    if not eearly:
        a("s_cmp_eq_u32 s2, 0")
        a("s_cbranch_scc0 L_hend")
        a("s_mov_b64 exec, 1")
        a(f"s_mov_b32 s4, {EPOCH}")
        a(f"buffer_store_dword v{TG}, v0, s[48:51], s4 offen{outsc}")
    if leak:
        a("v_mov_b32 v12, 0x600df00d")
        a("buffer_store_dword v12, v0, s[48:51], s4 offen offset:4")
    a("L_hend:")
    dump_stamps(12, 13)
    if late is not None:
        a("s_mov_b64 exec, 0xff")
        a("s_lshl_b32 s4, s2, 7")
        a("s_add_u32 s4, s4, 0x800000")
        a(f"buffer_store_dwordx4 v[8:11], v6, s[48:51], s4 offen {late}")
    a("s_endpgm")

    a("L_s_again:")
    a("s_sub_u32 s60, s60, 1")
    a("s_cbranch_scc1 L_s_done")
    a("s_mov_b64 exec, vcc")
    s_loads()
    a("s_mov_b64 exec, -1")
    a("s_branch L_s_chk")

    role[0] = "T"
    a("L_ticket:")
    assert two
    a("s_cmp_lg_u32 s3, 6")
    a("s_cbranch_scc1 L_t_noent")
    pool_id(11)
    pool_member(6)
    if two:
        assert npool == 4 and dyn % 2 == 0 and lex % 2 == 0
        light_test()
        a(f"s_cselect_b32 s9, {lex // 2}, 0")
        a(f"s_add_u32 s8, s9, {dyn // 2}")
        a("v_subrev_u32 v15, s8, v0")
        a("v_cmp_gt_u32 s[100:101], s8, v0")
        a("v_cndmask_b32 v28, v15, v0, s[100:101]")
        a("s_lshl_b32 s4, s9, 4")
        a("s_sub_u32 s6, s6, s4")
        a("v_lshl_add_u32 v15, v28, 4, s6")
        a("s_bfe_u32 s4, s2, 0x10002")
        a(f"s_add_u32 s4, s4, {mem * dyn // 2}")
        a("v_lshl_add_u32 v31, v28, 1, s4")
        a("v_cmp_gt_u32 vcc, s9, v28")
        a("v_cndmask_b32 v15, v15, v31, vcc")
        a(f"s_mul_i32 s6, s11, {prot}")
        a("v_lshl_add_u32 v15, v15, 1, s6")
        a("v_and_b32 v15, 255, v15")
        a("s_lshl_b32 s7, s11, 21")
        a("v_lshl_add_u32 v15, v15, 13, s7")
        a("v_cndmask_b32 v28, 4, 8, s[100:101]")
        a("v_or_b32 v15, v15, v28")
        a("s_lshl_b32 s9, s9, 1")
    a("v_or_b32 v15, 1, v15")
    a("v_lshl_add_u32 v14, v0, 2, v1")
    if lex:
        a(f"s_add_u32 s9, s9, {dyn}")
        a("s_bfm_b64 exec, s9, 0")
    else:
        a(f"s_mov_b64 exec, {(1 << dyn) - 1}")
    a(f"ds_write_b32 v14, v15 offset:{TQ}")
    a("s_mov_b64 exec, -1")
    a("L_t_noent:")
    if otouch:
        a("s_cmp_lg_u32 s3, 7")
        a("s_cbranch_scc1 L_t_notouch2")
        need(otouch[0], sleep=8, count=False)
        a(f"s_mul_i32 s4, s2, {RSO}")
        a(f"s_add_u32 s4, s4, {OP}")
        if otouch[1] == "r":
            a("v_lshlrev_b32 v14, 7, v0")
            a("s_mov_b32 exec_hi, 0")
            a("buffer_load_dword v17, v14, s[48:51], s4 offen")
            a("s_mov_b64 exec, -1")
        else:
            for k in range(4): a(f"v_not_b32 v{20+k}, s13")
            for k in range(4): a(f"buffer_store_dwordx4 v[20:23], v6, s[48:51], s4 offen offset:{1024*k} sc1")
        a("L_t_notouch2:")
    pool_id(11)
    if stouch:
        a("s_cmp_lg_u32 s3, 7")
        a("s_cbranch_scc1 L_t_notouch")
        k = [64]
        def tch(p, off, imm=0):
            if imm: a(f"s_add_u32 s{off}, s{off}, {imm}")
            a(f"s_load_dword s{k[0]}, s[{p}:{p+1}], s{off}")
            k[0] += 1
        if "g" in stouch:
            a(f"s_mul_i32 s6, s14, {256*7168}")
            tch(28, 6); tch(30, 6); tch(28, 6, 255 * 7168); tch(30, 6)
        if "k" in stouch:
            a("s_lshl_b32 s6, s11, 21")
            tch(18, 6); tch(20, 6)
        if "t" in stouch:
            if "d" in stouch: need(40, sleep=8, count=False)
            wd_row(6)
            a(f"s_mul_i32 s6, s6, {224*2048}")
            tch(32, 6); tch(32, 6, 223 * 2048)
            rr_cc(6, 7)
            a("s_lshl_b32 s6, s6, 17")
            tch(24, 6)
        if "w" in stouch:
            a(f"s_mov_b32 s6, {0x280000}")
            tch(38, 6)
        a("s_waitcnt lgkmcnt(0)")
        a("L_t_notouch:")
    if kmap in "DEFGH":
        if kmap == "F":
            a("s_lshr_b32 s9, s11, 1")
            a("s_lshl_b32 s12, s9, 4")
            a("s_lshl_b32 s9, s9, 22")
            a("s_mov_b32 s8, s11")
        else:
            a(f"s_mul_i32 s12, s11, {prot}")
            a("s_lshl_b32 s9, s11, 21")
        a(f"s_add_u32 s12, s12, {mem*dyn + 2*lex}")
        a("s_or_b32 s9, s9, 1")
        if kmap == "H":
            a("s_and_b32 s8, s11, 3")
            a("s_and_b32 s9, s11, 12")
    elif kmap == "C":
        a(f"s_and_b32 s12, s11, {npool-1}")
        a("s_lshr_b32 s9, s2, 6")
        a(f"s_mul_i32 s4, s9, {rot}")
        a("s_add_u32 s12, s12, s4")
        a("s_lshl_b32 s12, s12, 13")
        a(f"s_add_u32 s12, s12, {64*dyn*8192 + 1}")
        a("s_lshl_b32 s9, s9, 23")
    else:
        a(f"s_mul_i32 s12, s11, {reg*8192}")
        a(f"s_add_u32 s12, s12, {mem*dyn*8192 + 1}")
    a(f"s_mul_i32 s11, s11, {cstride}")
    a(f"s_add_u32 s11, s11, {TCN}")
    a("s_add_u32 s56, s38, s11")
    a("s_addc_u32 s57, s39, 0")
    a(f"s_add_u32 s10, s3, {dyn - 6}")
    if lex:
        light_test()
        a(f"s_cselect_b32 s4, {lex}, 0")
        a("s_add_u32 s10, s10, s4")
    if early_t:
        a("s_waitcnt lgkmcnt(0)")
        a("s_add_u32 s13, s13, 0x01010101")
        a(f"s_xor_b32 s14, s13, {TAGX}")
        a("v_mov_b32 v12, 1")
        a("s_mov_b64 exec, 1")
        a(f"ds_add_u32 v1, v12 offset:{QCNT}")
        pool_member(6)
        a("s_add_u32 s6, s6, s3")
        a("s_cmp_lg_u32 s6, 6")
        a("s_cbranch_scc1 L_t_noinit")
        a("v_mov_b32 v20, 0")
        a("v_mov_b32 v21, s13")
        a("v_mov_b32 v22, s14")
        a("v_mov_b32 v23, s13")
        a("buffer_store_dwordx4 v[20:23], v0, s[48:51], s11 offen sc1")
        a("L_t_noinit:")
        a("s_mov_b64 exec, -1")
        a(f"s_sub_u32 s11, s10, {ahead}")
        a("s_max_i32 s11, s11, 0")
        light_test()
        a("s_cselect_b32 s4, 4, 14")
        need("s4", sleep=4, count=False)
        a(f"s_mov_b32 s60, {spin_limit}")
        a("L_t_rdy:")
        a("s_load_dwordx4 s[28:31], s[56:57], 0 glc")
        a("s_sub_u32 s60, s60, 1")
        a("s_cbranch_scc1 L_t_next")
        a("s_waitcnt lgkmcnt(0)")
        a("s_xor_b32 s29, s29, s13")
        a("s_xor_b32 s30, s30, s14")
        a("s_xor_b32 s31, s31, s13")
        a("s_or_b32 s29, s29, s30")
        a("s_or_b32 s29, s29, s31")
        a("s_cbranch_scc0 L_t_next")
        a("s_sleep 8")
        a("s_branch L_t_rdy")
    else:
        lds_spin(QCNT, 4 if eearly else 5, 12, 8)
    if eearly:
        a("s_and_b32 s4, s2, 63")
        a("s_lshl_b32 s4, s4, 3")
        a("s_or_b32 s4, s4, s3")
        a("s_cmp_lg_u32 s4, 7")
        a("s_cbranch_scc1 L_t_next")
        a("s_mov_b32 s15, 1")
        a("s_atomic_add s15, s[36:37], 64 glc")
        a("s_add_u32 s13, s13, 0x01010101")
        a("v_mov_b32 v15, s13")
        a(f"s_mov_b32 s4, {EPOCH}")
        a("s_waitcnt lgkmcnt(0)")
        a("s_and_b32 s15, s15, 3")
        a("s_cmp_lg_u32 s15, 3")
        a("s_cbranch_scc1 L_t_next")
        a("s_mov_b64 exec, 1")
        a("buffer_store_dword v15, v0, s[48:51], s4 offen sc1")
        a("s_mov_b64 exec, -1")
    if touch:
        a("s_cmp_eq_u32 s3, 6")
        a("s_cselect_b64 s[40:41], s[32:33], s[24:25]")
        a("s_cselect_b32 s42, 7340032, s43")
        a("s_cselect_b32 s42, s42, 8388608")
        a("s_cselect_b64 exec, 0x7f, 3")
        rr_cc(6, 7)
        a("s_lshl_b32 s6, s6, 17")
        a("s_lshr_b32 s7, s2, 4")
        a(f"s_mul_i32 s7, s7, {224*2048}")
        a("s_cmp_eq_u32 s3, 6")
        a("s_cselect_b32 s6, s7, s6")
        a("v_lshlrev_b32 v14, 16, v0")
        a("buffer_load_dword v17, v14, s[40:43], s6 offen nt")
        a("s_mov_b64 exec, -1")
    a("L_t_next:")
    a(f"s_sub_u32 s11, s10, {ahead - 1}")
    lds_spin(STARTED, "s11", 12, tsleep)
    a("s_mov_b32 s15, 1")
    a("s_atomic_add s15, s[56:57], 0 glc")
    a("s_lshl_b32 s4, s10, 2")
    a("v_add_u32 v14, s4, v1")
    a("s_waitcnt lgkmcnt(0)")
    if not empt: a(f"s_min_u32 s15, s15, {nshared-1}")
    if kmap in "DEFGH":
        if kmap == "H":
            a("s_add_u32 s5, s15, s8")
            a("s_and_b32 s5, s5, 3")
            a("s_or_b32 s5, s5, s9")
            a("s_and_b32 s4, s15, -4")
            a("s_add_u32 s4, s4, s8")
            a(f"s_add_u32 s4, s4, {mem*dyn}")
            a("s_lshl4_add_u32 s4, s5, s4")
        else:
            a("s_add_u32 s4, s15, s12")
        a("s_and_b32 s4, s4, 255")
        if kmap == "F":
            a("s_lshr_b32 s5, s4, 7")
            a("s_xor_b32 s5, s5, s8")
            a("s_and_b32 s5, s5, 1")
            a("s_lshl_b32 s4, s4, 1")
            a("s_add_u32 s4, s4, s5")
        a("s_lshl_b32 s4, s4, 13")
        if kmap == "H":
            a("s_lshl_b32 s5, s5, 21")
            a("s_add_u32 s4, s4, s5")
            a("s_or_b32 s4, s4, 1")
        else:
            a("s_add_u32 s4, s4, s9")
    else:
        a(f"s_lshl_b32 s4, s15, {13 + (lgp if kmap == 'C' else 0)}")
        a("s_add_u32 s4, s4, s12")
    if kmap == "C":
        a("s_and_b32 s4, s4, 0x7fffff")
        a("s_add_u32 s4, s4, s9")
    if ztab:
        tab = sum(g << (4 * i) for i, g in enumerate(ztab))
        a(f"s_sub_u32 s5, s15, {zone}")
        a("s_and_b32 s5, s5, 0x1c")
        a(f"s_lshr_b32 s5, {tab}, s5")
        a("s_and_b32 s5, s5, 15")
        a("s_lshl_b32 s5, s5, 4")
        a("s_or_b32 s4, s4, s5")
    if wide:
        a(f"s_cmp_ge_u32 s15, {max(0, zone - wide[1])}")
        a("s_cselect_b32 s5, 16, 0")
        a("s_or_b32 s4, s4, s5")
    if empt:
        a(f"s_cmp_lt_u32 s15, {nshared}")
        a("s_cselect_b32 s4, s4, 0")
    a(f"s_add_u32 s10, s10, {ntw}")
    a(f"s_cmp_lt_u32 s15, {zone}")
    a("s_cselect_b32 s5, 0, 2")
    a("v_mov_b32 v15, s4")
    a("v_or_b32 v15, s5, v15")
    a(f"ds_write_b32 v14, v15 offset:{TQ}")
    a("s_cbranch_scc1 L_t_next")
    if sig1 is not None or sig2:
        L = a.label("L_nt"); D = a.label("L_ntd")
        a(f"s_mov_b32 s60, {spin_limit}")
        a(f"{L}:")
        refresh()
        a(f"s_cmp_lg_u32 s97, {BIG}")
        a(f"s_cbranch_scc1 {D}")
        a("s_sleep 2")
        a("s_sub_u32 s60, s60, 1")
        a(f"s_cbranch_scc0 {L}")
        a(f"{D}:")
        light_test()
        a("s_cselect_b32 s10, 2, 6")
        a("s_add_u32 s10, s10, s97")
        a("s_lshl_b32 s10, s10, 2")
        a("s_cmp_eq_u32 s3, 6")
        a("s_cbranch_scc1 L_t_zero")
    if rk:
        pool_id(6)
        a("s_lshr_b32 s4, s6, 2")
        a("s_lshl_b32 s7, s4, 14")
        if not rkgrp:
            a("s_and_b32 s5, s6, 3")
            a("s_lshl_b32 s8, s5, 8")
            a("s_add_u32 s7, s7, s8")
        a(f"s_add_u32 s7, s7, {AC1}")
        a("s_add_u32 s56, s38, s7")
        a("s_addc_u32 s57, s39, 0")
        a("s_mov_b32 s15, 1")
        a(f"s_add_u32 s11, s10, {rkat & 0xffffffff}")
        need("s11", sleep=1)
        a("s_atomic_add s15, s[56:57], 0 glc")
        tab = sum(g << (2 * i) for i, g in enumerate(rk))
        a(f"s_mov_b32 s6, {tab}")
        a("s_waitcnt lgkmcnt(0)")
        if rkgrp: a("s_lshr_b32 s15, s15, 2")
        a("s_lshl_b32 s15, s15, 1")
        a("s_lshr_b32 s6, s6, s15")
        a("s_and_b32 s6, s6, 3")
        a("v_mov_b32 v15, s6")
        a(f"ds_write_b32 v1, v15 offset:{GATE}")
    if sig1 is not None:
        pool_id(6)
        a("s_lshr_b32 s4, s6, 2")
        a("s_and_b32 s5, s6, 3")
        a("s_lshl_b32 s7, s4, 14")
        a("s_lshl_b32 s8, s5, 8")
        a("s_add_u32 s7, s7, s8")
        a(f"s_add_u32 s7, s7, {AC1}")
        a("s_add_u32 s56, s38, s7")
        a("s_addc_u32 s57, s39, 0")
        a("s_mov_b32 s15, 1")
        a("s_sub_u32 s11, s10, 2")
        need("s11", sleep=1)
        lds_spin(PCNT, sig1, 12, 0)
        for i in range(16): a(f"s_atomic_add s15, s[56:57], {1024*i}")
    if sig1 is not None or sig2:
        a("s_endpgm")
        a("L_t_zero:")
        rr_cc(6, 7)
    if sig1 is not None:
        a("s_lshl_b32 s5, s6, 10")
        a(f"s_add_u32 s5, s5, {AC1}")
        a("s_add_u32 s56, s38, s5")
        a("s_addc_u32 s57, s39, 0")
        a("v_mov_b32 v15, 1")
        a(f"s_add_u32 s11, s10, {s1from}")
        need("s11", sleep=1)
        L = a.label("L_w"); D = a.label("L_wd")
        a(f"s_mov_b32 s60, {spin_limit}")
        a(f"{L}:")
        for k in range(4): a(f"s_load_dword s{28+k}, s[56:57], {256*k} glc")
        a("s_waitcnt lgkmcnt(0)")
        a("s_add_u32 s28, s28, s29")
        a("s_add_u32 s30, s30, s31")
        a("s_add_u32 s28, s28, s30")
        a("s_cmp_eq_u32 s28, 64")
        a(f"s_cbranch_scc1 {D}")
        a("s_sub_u32 s60, s60, 1")
        a(f"s_cbranch_scc0 {L}")
        a(f"{D}:")
        a(f"ds_write_b32 v1, v15 offset:{GO}")
    if sig2:
        a("s_lshl_b32 s7, s7, 14")
        a("s_lshr_b32 s5, s2, 6")
        a("s_lshl_b32 s5, s5, 8")
        a("s_add_u32 s7, s7, s5")
        a(f"s_add_u32 s7, s7, {AC2}")
        a("v_mov_b32 v15, 1")
        a("v_lshlrev_b32 v14, 10, v0")
        a("s_add_u32 s10, s10, 15")
        need("s10", sleep=1)
        lds_spin(OCNT if sig2late else GCNT, gneed, 12, 0)
        a("s_mov_b64 exec, 0xffff")
        a("buffer_atomic_add v15, v14, s[48:51], s7 offen sc1")
    a("L_end:")
    a("s_endpgm")
    a("L_codeend:")
    name = NAME + "_kernel"
    hdr = open("cdna_kernels/" + NAME + ".s.ref").read().split("; Override launch")[0]
    txt = hdr + header([f"@launch grid=(256,1,1) block=({64*(6+ntw)},1,1) lds={LDS_BYTES}"]) + (DOC if comments else "") + kernel_begin(name) + a.text() + rodata() + \
        kernel_desc(name, 184, 102, extra="  .amdhsa_float_denorm_mode_32 3\n")
    return txt

BASE = dict(gate=13, sig2=True, dyn=12, lex=2, empt=12, flate=True, qstart=32, qlight=24, hstart=64, grow=(8, 32), two=True, dmap=True, fw=(1, 1), cmap="qu", oneline=True, eearly=True)
if __name__ == "__main__":
    open("final.s", "w").write(gen(comments=True, **BASE))
    V = {"k38": {}, "k38f": dict(pre="full"), "k38l": dict(pre="ld"), "k38s": dict(pre="st0"), "k38nt": dict(outsc=" nt"), "k38s0": dict(outsc=" sc0"), "k38s1": dict(outsc=" sc1"), "k38fs1": dict(outsc=" sc1", pre="full")}
    for k, v in V.items():
        v = dict(BASE, **v)
        open(k + ".s", "w").write(gen(**v))
        open(k + "_pe.s", "w").write(gen(padend=3000, **v))
```

```python
import sys
from asmlib import *

QP, GP, CNT, OCN, EPOCH, SP, FP, OP, STAMP = 0, 0x10000, 0x30000, 0x34000, 0x3F000, 0x40000, 0xD0000, 0x100000, 0x400000
MISC = 0x20000
TQ, STARTED, GATE, GCNT, PCNT = 0x1100, 0x21C, 0x220, 0x224, 0x228
POST, PROG, QCNT, OCNT, GO, ZER, XN, HL, OL, QL = 0, 0x200, 0x210, 0x214, 0x218, 0x240, 0x300, 0x500, 0x700, 0x800
QROW = 272
SCR = 0x1700
SB = 0x1B00
LDS_BYTES = MISC + 0x3B00
TCN, AC1, AC2 = 0x340000, 0x390000, 0x3A0000
LOG2E = 0x3fb8aa3b
SCALE = 0x3db504f3
DPP = "row_mask:0xf bank_mask:0xf"
BIG = -1
TAGX = 0x5ac3a569

DOC = """
; out = x + (attn(LN(x)) @ wo) * silu(swiglu(LN(x))), one launch, one 8-wave workgroup per CU (all 256 are resident).
;
; Every input byte is streamed once, HBM -> LDS ring (8 slots x 16 KB), by wave 0 in this order:
;
; Hand-offs between workgroups go through d_ws with write-through stores (sc1) and sc1 loads:
;   f partials [16][1024], all fp32. Each 16-byte granule carries this launch's tag in the low byte of its words and
;   is only accepted together with the neighbours stored by the same instruction. The tag is the word found at
;   d_ws + 0x3f000 plus 0x01010101; it replaces that word once every workgroup has read it, so stale hand-offs never match.
;   The counters in d_ws (tickets, arrival hints) are reset inside the launch before the q hand-off that precedes their use.
"""

def interleave(chain, fill, gaps):
    out = []; fill = list(fill)
    for i, x in enumerate(chain):
        out.append(x)
        for _ in range(gaps.get(i, 0)):
            if fill: out.append(fill.pop(0))
    return out + fill

def gen(nt="nt", stamps=False, spin_limit=2000000, win=24, dyn=10, npool=4, outsc="", gate=10, skew=128, vtick=False,
        fsleep=0, osleep=1, qsleep=4, probe=None, cgate=False, early=True, ahead=2, ntw=2, cstride=256, late=None, gtab=None, ztab=None, wtab=None, spw=False, opw=False, fatom=False, leak=None, fine=False, wins=None, csleep=0, pace=0, pnop=0, cpf=True, sig1=None, sig2=False, touch=False, sig2late=False, lite=False, half=False, dup2=False, kmap='E', rot=0, early_t=False, empt=0, spos=0, abl='', win1=None, n1=9, hstart=0, qstart=0, sigpos='chk', gneed=4, flate=False, qlight=None, lex=0, gumix=False, w2=False, rk=None, rk0=4, rkgrp=False, rkat=-5, grow=None, tsleep=1, shardrd=False, s1pos='last', s1from=9, two=False, prot=16, dmap=False, fw=None, stouch=None, ofirst=True, pfn=None, comments=False, otouch=None, ost='sc1', old_='sc1', sched=None, wide=None, cmap='', ush=28, gui=False, lv=None, pre=None, ackst=False, delta=None, oneline=False, eearly=False, padend=0, w2s=0, fat=0, tprio=0, echk=False, ssend=False, direct=False, side=None, apar=None, spar=None):
    a = Asm()
    a.comments = comments
    sw = 1 if spw else 0
    ow = 1 if opw else 0
    RS = 4096 + skew
    RSS = (4096 << sw) + skew
    SP, AC2 = globals()["SP"], globals()["AC2"]
    if spar is not None: SP = 0x600000 + 8192 * spar; RSS = 16384 + 128
    if apar is not None: AC2 += 8192 * apar
    ash = 15 if apar is not None else 14
    def ac_lane(d):
        a(f"v_lshlrev_b32 v{d}, 10, v0")
        if apar is not None:
            a(f"v_and_b32 v12, 0x2000, v{d}")
            a(f"v_add_u32 v{d}, v{d}, v12")
    RSO = (4096 << ow) + skew
    NT = " " + nt if nt else ""
    role = ["-"]
    def stamp(k):
        if delta is not None and probe and (role[0], k) == (probe[0], delta): a("s_memrealtime s[74:75]")
        if lite and (k == 0 or (role[0], k) == ("H", 14) or (lite == 2 and (role[0], k) in (("C", 13), ("L", 6), ("H", 6), ("H", 13), ("T", 1), ("H", 11)))): a(f"s_memrealtime s[{64+2*k}:{65+2*k}]")
        if stamps or (leak and (k == 0 or (role[0], k) in [x[:2] for x in leak])): a(f"s_memrealtime s[{64+2*k}:{65+2*k}]")
        if probe and (k == 0 or (role[0], k) == probe[:2]): a(f"s_memrealtime s[{64+2*min(k,1)}:{65+2*min(k,1)}]")
    def leak_out():
        if not leak: return
        mine = [(i, x) for i, x in enumerate(leak) if x[0] == role[0]]
        Ln = a.label("L_noleak")
        a("s_waitcnt lgkmcnt(0)")
        srd(48, 38, 268435456)
        a("s_mov_b64 exec, 1")
        a("s_cmp_eq_u32 s93, 0")
        a(f"s_cbranch_scc1 {Ln}")
        for i, x in mine:
            if len(x) > 2:
                Ls = a.label("L_lk")
                a(f"s_cmp_lg_u32 s3, {x[2]}")
                a(f"s_cbranch_scc1 {Ls}")
            a(f"s_and_b32 s4, s{64+2*x[1]}, 0x3fff")
            a("v_mov_b32 v12, s4")
            a("s_lshl_b32 s4, s2, 3")
            a(f"s_add_u32 s4, s4, {2*i + 0x500000}")
            a("buffer_store_short v12, v0, s[48:51], s4 offen")
            if len(x) > 2: a(f"{Ls}:")
        a(f"{Ln}:")
        if role[0] == "H":
            Ln = a.label("L_noleak")
            a("s_cmp_eq_u32 s95, 0")
            a(f"s_cbranch_scc1 {Ln}")
            srd(52, 34, 2048)
            a("s_lshl_b32 s4, s2, 3")
            a("s_add_u32 s5, s4, 0x500000")
            a("buffer_load_dwordx2 v[12:13], v0, s[48:51], s5 offen")
            a("s_waitcnt vmcnt(0)")
            a("buffer_store_dwordx2 v[12:13], v0, s[52:55], s4 offen")
            a(f"{Ln}:")
    def leak_flag():
        if not leak: return
        a(f"s_load_dword s95, s[38:39], {EPOCH+4}")
        a("s_load_dword s94, s[16:17], 0")
        a("s_waitcnt lgkmcnt(0)")
        a("s_cmp_lg_u32 s95, 0x600df00d")
        a("s_cselect_b32 s93, 1, 0")
        a("s_cselect_b32 s95, 0, 1")
        a("s_cmp_lg_u32 s94, 0x3c6e3d96")
        a("s_cselect_b32 s95, s95, 0")
        a("s_cmp_lg_u32 s94, 0x3a3abc25")
        a("s_cselect_b32 s95, s95, 0")
    def probe_pad():
        if not probe or probe[0] != role[0]: return
        def until(base, lim):
            L = a.label("L_pp")
            a(f"{L}:")
            a("s_sleep 1")
            a("s_memrealtime s[70:71]")
            a("s_waitcnt lgkmcnt(0)")
            a(f"s_sub_u32 s70, s70, {base}")
            a(f"s_cmp_lt_u32 s70, {lim}")
            a(f"s_cbranch_scc1 {L}")
        a("s_waitcnt lgkmcnt(0)")
        a("s_cmp_eq_u32 s67, -1")
        a("s_cselect_b32 s66, s64, s66")
        a("s_cselect_b32 s69, 1, 0")
        until("s64", 2200)
        a("s_not_b32 s72, s64")
        a("s_atomic_umax s72, s[36:37], 0")
        until("s64", 3200)
        a("s_load_dword s72, s[36:37], 0 glc")
        a("s_waitcnt lgkmcnt(0)")
        a("s_not_b32 s72, s72")
        if delta is None: a("s_sub_u32 s66, s66, s72")
        else:
            a("s_sub_u32 s66, s66, " + ("s74" if delta else "s64"))
            a("s_cmp_eq_u32 s69, 1")
            a("s_cselect_b32 s66, 0, s66")
        if len(probe) > 3:
            a("s_atomic_add s66, s[36:37], 128")
            until("s64", 4400)
            a("s_load_dword s66, s[36:37], 128 glc")
            a("s_waitcnt lgkmcnt(0)")
            a("s_lshr_b32 s66, s66, 8")
        if probe[2] < 0 and probe[1]:
            a("s_cmp_eq_u32 s69, 1")
            a("s_cbranch_scc1 L_end")
        a(f"s_mul_i32 s66, s66, {probe[2]}")
        a(f"s_add_u32 s68, s66, {6000 if probe[2] >= 0 else 20000}")
        if lv:
            srd(48, 38, 268435456)
            kind, sc = lv[:2]
            a("s_and_b32 s4, s2, 7"); a("s_lshr_b32 s5, s2, 5")
            if kind in ("cur",):
                a("s_lshr_b32 s6, s5, 1"); a("s_lshl_b32 s6, s6, 3"); a("s_or_b32 s6, s6, s4"); a("s_lshl_b32 s6, s6, 1")
                a("s_and_b32 s5, s5, 1"); a("s_add_u32 s6, s6, s5")
            else:
                a("s_lshr_b32 s6, s5, 2"); a("s_lshl_b32 s6, s6, 3"); a("s_or_b32 s6, s6, s4"); a("s_lshl_b32 s6, s6, 2")
                a("s_and_b32 s5, s5, 3"); a("s_add_u32 s6, s6, s5")
            a("s_lshr_b32 s7, s6, 2"); a("s_lshl_b32 s7, s7, 7"); a("s_and_b32 s6, s6, 3")
            a(f"s_lshl_b32 s8, s6, {3 if kind in ('cur', 'one') else 5}")
            a("s_add_u32 s7, s7, s8"); a("s_add_u32 s7, s7, 0x800000")
            a("v_and_b32 v13, 3, v0"); a("v_lshlrev_b32 v20, 5, v13"); a("v_lshl_add_u32 v20, v4, 1, v20")
            a("v_lshlrev_b32 v21, 2, v0"); a("v_lshlrev_b32 v22, 1, v0")
        until("s72", "s68")
        if lv:
            a("s_and_b32 s4, s2, 0x18")
            a("s_cbranch_scc1 L_end")
            if kind in ("cur", "one"):
                setexec(0x000f000f, 0x000f000f)
                a(f"buffer_store_short v0, v20, s[48:51], s7 offen {sc}")
                if len(lv) > 2:
                    a("s_cmp_lg_u32 s2, 0")
                    a("s_cbranch_scc1 L_end")
                    a(f"s_mov_b32 s7, {EPOCH + 0x80}")
                    a("s_mov_b32 exec_hi, 0")
                    a(f"s_mov_b32 exec_lo, {1 if lv[2] == 'p' else -1}")
                    a(f"buffer_store_dword v0, v21, s[48:51], s7 offen {lv[3]}")
            elif kind == "c32":
                a("s_mov_b64 exec, 0xff")
                a(f"buffer_store_dword v0, v21, s[48:51], s7 offen {sc}")
            elif kind == "s32":
                a("s_mov_b64 exec, 0xffff")
                a(f"buffer_store_short v0, v22, s[48:51], s7 offen {sc}")
            elif kind == "full":
                a("s_cmp_lg_u32 s6, 0")
                a("s_cbranch_scc1 L_end")
                a("s_mov_b32 exec_hi, 0")
                a(f"buffer_store_dword v0, v21, s[48:51], s7 offen {sc}")
    def dump_stamps(vt, va):
        probe_pad()
        leak_out()
        if not (stamps or (lite and role[0] == "H") or lite == 2): return
        if lite == 2 and role[0] != "H":
            a("s_sleep 127")
            if role[0] == "L":
                a("s_mov_b32 s3, 4")
                srd(48, 38, 268435456)
        a("s_waitcnt lgkmcnt(0)")
        a("s_mov_b64 exec, -1")
        a(f"v_mov_b32 v{vt}, 0")
        for k in range(16):
            a(f"v_writelane_b32 v{vt}, s{64+2*k}, {k}")
        a("s_lshl_b32 s4, s2, 3")
        a("s_add_u32 s4, s4, s3")
        a("s_lshl_b32 s4, s4, 6")
        a(f"s_add_u32 s4, s4, {STAMP}")
        a(f"v_lshlrev_b32 v{va}, 2, v0")
        a("s_mov_b64 exec, 0xffff")
        a(f"buffer_store_dword v{vt}, v{va}, s[48:51], s4 offen")
    def srd(d, p, n):
        a(f"s_mov_b64 s[{d}:{d+1}], s[{p}:{p+1}]")
        a(f"s_mov_b32 s{d+2}, {n}")
        a(f"s_mov_b32 s{d+3}, 0x20000")
    def setexec(lo, hi):
        a(f"s_mov_b32 exec_lo, {lo:#x}")
        a(f"s_mov_b32 exec_hi, {hi:#x}")
    def row_list(op, r, steps=(1, 2, 4, 8)):
        return [f"{op}_dpp v{r}, v{r}, v{r} row_ror:{k} {DPP}" for k in steps]
    def cross_list(op, r, t):
        return [f"v_mov_b32 v{t}, v{r}", f"v_permlane16_swap_b32 v{r}, v{t}", f"{op} v{r}, v{r}, v{t}",
                f"v_mov_b32 v{t}, v{r}", f"v_permlane32_swap_b32 v{r}, v{t}", f"{op} v{r}, v{r}, v{t}"]
    def emit(l):
        for x in l: a(x)
    def bf16r(d, s):
        a(f"v_cvt_pk_bf16_f32 v{d}, 0, v{s}")
    TG = 8
    def make_tag():
        a("s_add_u32 s13, s13, 0x01010101")
        a("s_movk_i32 s63, 0xff")
        a("v_bfe_i32 v12, v0, 0, 1")
        a(f"v_and_b32 v12, {TAGX}, v12")
        a(f"v_xor_b32 v{TG}, s13, v12")
        for k in range(1, 4): a(f"v_lshrrev_b32 v{TG+k}, {8*k}, v{TG}")
    def apply_tag(r, tags=None):
        for k in range(4): a(f"v_bfi_b32 v{r+k}, s63, v{tags[k] if tags else TG+k}, v{r+k}")
    def tag_list(grans, t, n=4):
        o = []
        for g in grans:
            for k in range(n):
                if not o: o.append(f"v_xor_b32 v{t}, v{g+k}, v{TG+k}")
                else: o.append(f"v_bitop3_b32 v{t}, v{t}, v{g+k}, v{TG+k} bitop3:0xf6")
        o.append(f"v_and_b32 v{t}, 0xff, v{t}")
        return o
    def join_list(t, quad=True):
        o = [f"v_or_b32_dpp v{t}, v{t}, v{t} quad_perm:[1,0,3,2] {DPP}"]
        if quad: o.append(f"v_or_b32_dpp v{t}, v{t}, v{t} quad_perm:[2,3,0,1] {DPP}")
        return o
    def tag_check(grans, t, quad=True):
        emit(tag_list(grans, t) + join_list(t, quad))
        a(f"v_cmp_ne_u32 vcc, 0, v{t}")
    def treduce4(r):
        a(f"v_permlane32_swap_b32 v{r}, v{r+2}")
        a(f"v_permlane32_swap_b32 v{r+1}, v{r+3}")
        a(f"v_add_f32 v{r}, v{r}, v{r+2}")
        a(f"v_add_f32 v{r+1}, v{r+1}, v{r+3}")
        a(f"v_permlane16_swap_b32 v{r}, v{r+1}")
        a(f"v_add_f32 v{r}, v{r}, v{r+1}")
    def retry_masked(L, D, sleep=1):
        a("s_and_b64 exec, exec, vcc")
        a(f"s_cbranch_execz {D}")
        if sleep: a(f"s_sleep {sleep}")
        a("s_sub_u32 s60, s60, 1")
        a(f"s_cbranch_scc0 {L}")
        a(f"{D}:")
        a("s_mov_b64 exec, -1")
    def silu_bf16(d, x, t):
        a(f"v_mul_f32 v{t}, 0xbfb8aa3b, v{x}")
        a(f"v_exp_f32 v{t}, v{t}")
        a(f"v_add_f32 v{t}, 1.0, v{t}")
        a(f"v_rcp_f32 v{t}, v{t}")
        a(f"v_mul_f32 v{t}, v{t}, v{x}")
        bf16r(d, t)
    def lds_spin(off, n, vt, sleep=1):
        L = a.label("L_spin")
        a(f"s_mov_b32 s60, {spin_limit}")
        if sleep:
            E = a.label("L_spe")
            a(f"s_branch {E}")
        a(f"{L}:")
        if sleep:
            a(f"s_sleep {sleep}")
            a(f"{E}:")
        a(f"ds_read_b32 v{vt}, v1 offset:{off}")
        a("s_sub_u32 s60, s60, 1")
        a("s_waitcnt lgkmcnt(0)")
        a(f"v_readfirstlane_b32 s61, v{vt}")
        a("s_cselect_b32 s61, -1, s61")
        a(f"s_cmp_lt_u32 s61, {n}")
        a(f"s_cbranch_scc1 {L}")
    def refresh():
        a(f"ds_read_b64 v[12:13], v1 offset:{POST}")
        a("s_waitcnt lgkmcnt(0)")
        a("v_readfirstlane_b32 s96, v12")
        a("v_readfirstlane_b32 s97, v13")
    def need(x, sleep=0, count=True):
        if role[0] == "C": sleep = csleep
        L = a.label("L_need"); D = a.label("L_got")
        a(f"s_cmp_ge_u32 s96, {x}")
        a(f"s_cbranch_scc1 {D}")
        a(f"s_mov_b32 s60, {spin_limit}")
        a(f"{L}:")
        if sleep: a(f"s_sleep {sleep}")
        a(f"ds_read_b64 v[12:13], v1 offset:{POST}")
        a("s_sub_u32 s60, s60, 1")
        a("s_waitcnt lgkmcnt(0)")
        a("v_readfirstlane_b32 s96, v12")
        if count: a("v_readfirstlane_b32 s97, v13")
        a("s_cselect_b32 s96, -1, s96")
        if count: a("s_cselect_b32 s97, 0, s97")
        a(f"s_cmp_lt_u32 s96, {x}")
        a(f"s_cbranch_scc1 {L}")
        a(f"{D}:")
    def light_test():
        a("s_and_b32 s4, s2, 63")
        a("s_cmp_ge_u32 s4, 56")
    def wq_col(d):
        if "q" in cmap:
            a(f"s_lshr_b32 s{d}, s2, 3")
            a("s_lshl_b32 s4, s2, 1")
            a("s_and_b32 s4, s4, 8")
            a(f"s_xor_b32 s{d}, s{d}, s4")
            a(f"s_xor_b32 s{d}, s{d}, 4")
            a(f"s_and_b32 s{d}, s{d}, 15")
            a("s_lshr_b32 s4, s2, 6")
            a(f"s_lshl4_add_u32 s{d}, s4, s{d}")
        else: a(f"s_lshr_b32 s{d}, s2, 2")
    def up_shift(d, c, unit):
        if "u" in cmap:
            a(f"s_mov_b32 s{d}, {ush * unit}")
            a(f"s_cmp_ge_u32 s{c}, {56 - ush}")
            a(f"s_cselect_b32 s{d}, {((ush - 56) * unit) & 0xffffffff}, s{d}")
        else: a(f"s_mov_b32 s{d}, 0")
    def gu_col(d):
        if "g" in cmap:
            a("s_lshr_b32 s4, s2, 6")
            a("s_bfe_u32 s5, s2, 0x10002")
            a("s_lshl1_add_u32 s4, s4, s5")
            a("s_mul_i32 s4, s4, 7")
            a("s_bfe_u32 s5, s2, 0x30003")
            a(f"s_add_u32 s{d}, s4, s5")
            return
        if gumix:
            a("s_lshr_b32 s4, s2, 6")
            a("s_and_b32 s5, s2, 60")
            a(f"s_add_u32 s{d}, s4, s5")
            return
        a("s_lshr_b32 s4, s2, 6")
        a("s_mul_i32 s4, s4, 56")
        a("s_and_b32 s5, s2, 63")
        a("s_add_u32 s4, s4, s5")
        a(f"s_lshr_b32 s{d}, s4, 2")
    def wd_row(d):
        if dmap:
            a("s_lshr_b32 s62, s2, 7")
            a("s_lshl_b32 s62, s62, 3")
            a(f"s_and_b32 s{d}, s2, 7")
            a(f"s_or_b32 s{d}, s{d}, s62")
        else: a(f"s_lshr_b32 s{d}, s2, 4")
    def wd_col(d):
        if dmap: a(f"s_bfe_u32 s{d}, s2, 0x40003")
        else: a(f"s_and_b32 s{d}, s2, 15")
    def rr_cc(srr, scc):
        a(f"s_and_b32 s{srr}, s2, 7")
        a("s_lshr_b32 s62, s2, 5")
        a("s_lshl_b32 s62, s62, 3")
        a(f"s_or_b32 s{srr}, s{srr}, s62")
        a(f"s_bfe_u32 s{scc}, s2, 0x20003")
    lgp = npool.bit_length() - 1
    def pool_id(d):
        a("s_lshr_b32 s5, s2, 3")
        a("s_add_u32 s5, s5, s2")
        a(f"s_and_b32 s5, s5, {npool-1}")
        a("s_lshr_b32 s4, s2, 6")
        a(f"s_lshl_b32 s4, s4, {lgp}")
        a(f"s_add_u32 s{d}, s4, s5")
    def pool_member(d):
        a("s_bfe_u32 s5, s2, 0x30003")
        a(f"s_lshr_b32 s5, s5, {lgp}")
        a("s_lshl_b32 s5, s5, 3")
        a("s_and_b32 s4, s2, 7")
        a(f"s_add_u32 s{d}, s5, s4")
    def tr_addr(d):
        a("v_lshrrev_b32 v12, 2, v5")
        a("v_lshl_add_u32 v13, v4, 2, v12")
        a("v_bfe_u32 v12, v13, 1, 2")
        a("v_lshlrev_b32 v12, 5, v12")
        a("v_lshl_add_u32 v12, v13, 7, v12")
        a("v_and_b32 v13, 3, v0")
        a(f"v_lshl_add_u32 v{d}, v13, 3, v12")
    def slot_base(d, slot):
        a(f"s_and_b32 s{d}, {slot}, 7")
        a(f"s_lshl_b32 s{d}, s{d}, 14")

    a("s_cmp_ge_u32 s2, 256")
    a("s_cbranch_scc1 L_end")
    a("s_load_dwordx16 s[16:31], s[0:1], 0")
    a("s_load_dwordx8 s[32:39], s[0:1], 64")
    stamp(0)
    if probe: a("s_mov_b32 s67, -1")
    if padend: a("s_memrealtime s[64:65]")
    if cpf:
        a("s_getpc_b64 s[4:5]")
        a("L_pc:")
        a("v_subrev_u32 v12, 64, v0")
        a("v_mov_b32 v13, 0")
        a("v_cmp_gt_u32 vcc, (L_codeend-L_pc)/128, v12")
        a("v_lshlrev_b32 v12, 7, v12")
        a("s_and_saveexec_b64 s[6:7], vcc")
        a("s_cbranch_execz L_nopf")
        a("v_lshl_add_u64 v[12:13], v[12:13], 0, s[4:5]")
        a("global_load_dword v16, v[12:13], off offset:64")
        a("L_nopf:")
        a("s_mov_b64 exec, -1")
    a("v_cmp_gt_u32 vcc, 64, v0")
    a("v_lshrrev_b32 v1, 6, v0")
    a("v_and_b32 v0, 63, v0")
    a("v_lshrrev_b32 v2, 3, v0")
    a("v_and_b32 v3, 7, v0")
    a("v_lshrrev_b32 v4, 4, v0")
    a("s_and_b32 s14, s2, 3")
    a("s_mov_b32 s43, 0x20000")
    a("s_cbranch_vccz L_others")
    OTHERS_FIRST = ofirst
    def emit_others():
        a("L_others:")
        a("v_readfirstlane_b32 s3, v1")
        a("v_lshlrev_b32 v14, 5, v0")
        a("v_lshlrev_b32 v15, 3, v0")
        a("s_lshl_b32 s10, s14, 9")
        a("s_movk_i32 s42, 2048")
        a("s_xor_b32 s3, s3, 4")
        a("s_cmp_gt_u32 s3, 3")
        a(f"v_mov_b32 v1, {MISC}")
        for k in range(4): a(f"v_mov_b32 v{28+k}, 0")
        a("v_lshl_add_u32 v12, v0, 4, v1")
        a(f"ds_write_b128 v12, v[28:31] offset:{TQ}")
        a("v_lshl_add_u32 v13, v0, 2, v1")
        a(f"v_mov_b32 v27, {BIG}")
        a(f"ds_write_b32 v13, v30 offset:{PROG}")
        a(f"ds_write2_b32 v1, v30, v27 offset0:{POST//4} offset1:{POST//4+1}")
        a("s_waitcnt lgkmcnt(0)")
        a("s_mov_b64 s[40:41], s[16:17]")
        a(f"s_load_dword s13, s[38:39], {EPOCH}")
        a("s_cbranch_scc1 L_nox")
        a("buffer_load_dwordx4 v[56:59], v14, s[40:43], 0 offen")
        a("buffer_load_dwordx4 v[60:63], v14, s[40:43], 0 offen offset:16")
        a("buffer_load_dwordx2 v[64:65], v15, s[40:43], s10 offen")
        a("L_nox:")
        if eearly: a("s_waitcnt lgkmcnt(0)")
        a("s_barrier")
        a("s_branch L_notloader")

    role[0] = "L"
    a("s_setprio 3")
    a("v_lshrrev_b32 v12, 5, v0")
    a("v_and_b32 v13, 3, v2")
    a("v_lshl_add_u32 v12, v12, 3, v13")
    a("v_lshlrev_b32 v13, 1, v4")
    a("v_xor_b32 v13, v13, v3")
    a("v_lshlrev_b32 v13, 4, v13")
    a("v_lshl_add_u32 v16, v12, 13, v13")
    a("s_lshl_b32 s8, s14, 21")
    wq_col(5)
    a("s_lshl_b32 s5, s5, 7")
    a("s_add_u32 s8, s8, s5")
    a("s_mov_b32 m0, 0")
    a("s_mov_b32 s42, 8388608")
    a("s_waitcnt lgkmcnt(0)")
    if fine: stamp(7)
    a("s_mov_b64 s[40:41], s[22:23]")
    def wloads(vo, stride):
        for i in range(4):
            ro = (16 * (i & 1) + 4 * (i >> 1)) * stride - 1024 * i
            if i: a(f"s_add_u32 s9, s8, {ro}")
            a(f"buffer_load_dwordx4 v{vo}, s[40:43], s{9 if i else 8} offen offset:{1024*i}{NT} lds")
        a(f"s_add_u32 s8, s8, {32*stride}")
        a("s_add_u32 m0, m0, 4096")
    a("L_ld_q:")
    wloads(16, 8192)
    a("s_cmp_lt_u32 m0, 0x8000")
    a("s_cbranch_scc1 L_ld_q")
    if fine: stamp(8)
    if ofirst:
        a("s_branch L_loader")
        emit_others()
    a("L_loader:")
    mem = 64 // npool; reg = 1024 // npool
    nshared = reg - mem * dyn - 2 * lex
    zone = nshared - ntw * mem + empt
    assert ntw == 2 and dyn + lex + 2 * (nshared + empt) + 4 <= 256
    a(f"v_mov_b32 v1, {MISC}")
    a("v_mov_b32 v30, 0")
    a(f"v_mov_b32 v31, {BIG}")
    a("s_barrier")
    if stamps:
        for k in range(1, 16):
            if not (fine and k in (7, 8)): a(f"s_mov_b32 s{64+2*k}, 0")
    stamp(1)
    pend = [None]; viamax = [False]
    def wait_post(w, defer=False):
        if defer and fw:
            pend[0] = w
            return
        if viamax[0]:
            a("v_add_u32 v39, 1, v39")
            a("v_max_i32 v30, v30, v39")
        else: a("v_add_u32 v30, 1, v30")
        a(f"s_waitcnt vmcnt({w})")
        a(f"ds_write_b64 v29, v[30:31] offset:{POST}")
    def unit(vo, srdn, so, step=4096):
        w = pend[0]; pend[0] = None
        for i in range(4):
            if w is not None and i % fw[1] == 0:
                if i == fw[0]: wait_post(w + fw[0])
                else: a(f"s_waitcnt vmcnt({w + fw[0]})")
            a(f"buffer_load_dwordx4 v{vo[i]}, s[{srdn}:{srdn+3}], s{so} offen offset:{1024*i}{NT} lds")
        a(f"s_add_u32 m0, m0, {step}" if step > 0 else f"s_sub_u32 m0, m0, {-step}")
        if pace: a(f"s_sleep {pace}")
    a("v_lshl_add_u32 v29, v0, 3, v1")
    VG, VD, VK, VV = [40, 41, 42, 43], [44, 45, 46, 47], [24, 25, 24, 25], [24, 25, 24, 25]
    a("s_movk_i32 s7, 7168")
    a(f"v_mad_u32_u24 v{VG[0]}, v12, s7, v13")
    for i in range(1, 4):
        a(f"v_add_u32 v{VG[i]}, {(16 * (i & 1) + 4 * (i >> 1)) * 7168 - 1024 * i}, v{VG[0]}")
    gu_col(6)
    if cmap: up_shift(12, 6, 128)
    a("s_lshl_b32 s6, s6, 7")
    a(f"s_mul_i32 s7, s14, {256*7168}")
    a("s_add_u32 s8, s7, s6")
    a("s_mov_b32 s42, 7340032")
    a("s_mov_b64 s[40:41], s[28:29]")
    a("s_mov_b32 s98, 2")
    a(f"s_cmp_ge_u32 s5, {7 if 'g' in cmap else 56}")
    w1 = win
    if fine: stamp(9)
    for w in range(28, w1 - 4, -4):
        wait_post(w)
        if fine: stamp(10 if w == 28 else 11)
    a("s_cbranch_scc1 L_ld_kv")
    a("s_add_u32 s12, s12, s8" if cmap else "s_mov_b32 s12, s8")
    if gui:
        srd(52, 30, 7340032)
        a("s_mov_b32 s98, 6")
        a("L_ld_gu2:")
        wait_post(w1 - 4, True)
        unit(VG, 40, 8, 0x8000)
        a(f"s_add_u32 s8, s8, {32*7168}")
        wait_post(w1 - 4, True)
        unit(VG, 52, 12, -0x7000)
        a(f"s_add_u32 s12, s12, {32*7168}")
        a("s_cmp_lt_u32 m0, 0x10000")
        a("s_cbranch_scc1 L_ld_gu2")
        a("s_mov_b32 m0, 0x18000")
    if not gui:
     a("s_mov_b32 s6, 0x10000")
     a("s_mov_b32 s98, 6")
     a("L_ld_gu:")
     wait_post(w1 - 4, True)
     unit(VG, 40, 8)
     a(f"s_add_u32 s8, s8, {32*7168}")
     a("s_cmp_lt_u32 m0, s6")
     a("s_cbranch_scc1 L_ld_gu")
     a("s_mov_b32 s8, s12")
     a("s_mov_b64 s[40:41], s[30:31]")
     a("s_mov_b32 s6, 0x18000")
     a("s_cmp_lt_u32 m0, s6")
     a("s_cbranch_scc1 L_ld_gu")
    a("L_ld_kv:")
    stamp(2)
    a(f"ds_read_b128 v[32:35], v1 offset:{PROG}")
    a(f"ds_read_b32 v37, v1 offset:{TQ}")
    a("v_mov_b32 v36, v1")
    a("v_and_b32 v5, 15, v0")
    for j in range(2):
        a(f"v_add_u32 v14, {4*j}, v4")
        a("v_lshlrev_b32 v14, 1, v14")
        a("v_xor_b32 v14, v14, v5")
        a("v_lshlrev_b32 v14, 4, v14")
        a(f"v_lshl_add_u32 v{VV[j]}, v4, 8, v14")
    srd(44, 18, 33554432)
    srd(48, 20, 33554432)
    a("s_mov_b32 s10, 0")
    a("s_mov_b32 s11, 0")
    a("s_mov_b32 s15, 0")
    if wide: a("s_mov_b32 s99, 0")
    a(f"s_mov_b32 s60, {spin_limit}")
    if stamps: a("s_memrealtime s[100:101]")
    a("s_branch L_ld_chk")
    if win1:
        assert n1 <= dyn - ahead
        a("L_ld_tile1:")
        a("s_and_b32 s8, s7, 0xffffe000")
        wait_post(w1 - 4, True)
        unit(VK, 44, 8)
        a("s_add_u32 s9, s8, 4096")
        a("s_add_u32 s11, s11, 1")
        a("v_mov_b32 v38, s11")
        wait_post(w1 - 4, True)
        unit(VK, 44, 9)
        a("v_lshl_add_u32 v36, v38, 2, v1")
        a("s_add_u32 s10, s10, 1")
        a("s_add_u32 s98, s98, 1")
        wait_post(w1 - 4, True)
        unit(VV, 48, 8)
        a(f"ds_read_b128 v[32:35], v1 offset:{PROG}")
        a(f"ds_read_b32 v37, v36 offset:{TQ}")
        wait_post(w1 - 4, True)
        unit(VV, 48, 9)
        a("s_and_b32 m0, m0, 0x1ffff")
        a(f"s_mov_b32 s60, {spin_limit}")
        a("L_ld_chk1:")
        a("s_waitcnt lgkmcnt(0)")
        a("v_min3_u32 v32, v32, v33, v34")
        a("v_readfirstlane_b32 s7, v37")
        a("v_min_u32 v32, v32, v35")
        a("s_sub_u32 s60, s60, 1")
        a("v_readfirstlane_b32 s4, v32")
        a("s_cselect_b32 s4, s98, s4")
        a("s_add_u32 s4, s4, 8")
        a("s_cmp_gt_u32 s4, s98")
        a("s_cbranch_scc1 L_ld_free1")
        a(f"ds_read_b128 v[32:35], v1 offset:{PROG}")
        a("s_branch L_ld_chk1")
        a("L_ld_free1:")
        a(f"s_cmp_lt_u32 s10, {n1}")
        a("s_cbranch_scc1 L_ld_tile1")
        for w in range(w1 - 4, win - 4, -4): wait_post(w)
    def peek():
        a(f"ds_read_b128 v[32:35], v1 offset:{PROG}")
        a(f"ds_read_b32 v37, v36 offset:{TQ}")
    def slot_body(wn):
        a("s_and_b32 s8, s7, 0xffffe000")
        if two:
            a("s_bitcmp1_b32 s7, 2")
            a("s_cselect_b64 s[44:45], s[20:21], s[18:19]")
        wait_post(wn - 4, True)
        unit(VK, 44, 8)
        a("s_add_u32 s9, s8, 4096")
        a("s_bfe_u32 s4, s7, 0x10001")
        a("s_and_b32 s5, s11, 1")
        a("s_lshl_b32 s4, s4, s5")
        a("s_or_b32 s15, s15, s4")
        a("s_add_u32 s11, s11, 1")
        a("s_xor_b32 s5, s5, 1")
        a("s_bitcmp1_b32 s15, s5")
        a("s_addc_u32 s11, s11, 0")
        a("v_mov_b32 v38, s11")
        if spos == 0: a(f"ds_write_b32 v1, v38 offset:{STARTED}")
        wait_post(wn - 4, True)
        unit(VK, 44, 9)
        if spos == 1: a(f"ds_write_b32 v1, v38 offset:{STARTED}")
        a("v_lshl_add_u32 v36, v38, 2, v1")
        a("s_add_u32 s10, s10, 1")
        a("s_cmp_eq_u32 s15, 3")
        a(f"s_cselect_b32 s4, s10, {BIG}")
        a("v_mov_b32 v31, s4")
        a("s_cselect_b32 s4, 4, 1")
        a("s_add_u32 s98, s98, s4")
        if two:
            a("s_bitcmp1_b32 s7, 3")
            a("s_cselect_b64 s[48:49], s[18:19], s[20:21]")
            a("s_and_b32 s4, s7, 12")
            a("s_cselect_b32 s4, 0x2000, 0")
            a("s_add_u32 s8, s8, s4")
            a("s_add_u32 s9, s9, s4")
        wait_post(wn - 4, True)
        unit(VV, 48, 8)
        if spos == 2: a(f"ds_write_b32 v1, v38 offset:{STARTED}")
        peek()
        wait_post(wn - 4, True)
        unit(VV, 48, 9)
        if spos == 3: a(f"ds_write_b32 v1, v38 offset:{STARTED}")
        a("s_and_b32 m0, m0, 0x1ffff")
        if stamps: a("s_memrealtime s[100:101]")
        a(f"s_mov_b32 s60, {spin_limit}")
    if wide:
        a("L_ld_wide0:")
        a(f"v_subrev_u32 v39, {wide[0] // 4}, v30")
        a("s_mov_b32 s99, 16")
        a("L_ld_wide:")
        viamax[0] = True
        slot_body(win + wide[0])
        viamax[0] = False
        a("s_branch L_ld_chk")
    a("L_ld_tile:")
    if wide:
        a("s_cmp_lg_u32 s99, 0")
        a("s_cbranch_scc1 L_ld_wide")
        a("s_bitcmp1_b32 s7, 4")
        a("s_cbranch_scc1 L_ld_wide0")
    slot_body(win)
    a("L_ld_chk:")
    a("s_waitcnt lgkmcnt(0)")
    a("v_min3_u32 v32, v32, v33, v34")
    a("v_readfirstlane_b32 s5, v37")
    a("v_min_u32 v32, v32, v35")
    a("s_cmp_eq_u32 s15, 3")
    a("v_readfirstlane_b32 s4, v32")
    a("s_cbranch_scc1 L_ld_end")
    a("s_add_u32 s4, s4, 8")
    a("s_cmp_gt_u32 s4, s98")
    a("s_cselect_b32 s7, s5, 0")
    a("s_bitcmp1_b32 s7, 0")
    if stamps:
        a("s_cbranch_scc0 L_ld_again")
        a("s_memrealtime s[62:63]")
        a("s_waitcnt lgkmcnt(0)")
        a("s_sub_u32 s62, s62, s100")
        a("s_add_u32 s88, s88, s62")
        a("s_max_u32 s90, s90, s62")
        a(f"s_cmp_eq_u32 s10, {dyn // 2}")
        a("s_cselect_b32 s78, s100, s78")
        a(f"s_cmp_eq_u32 s10, {dyn}")
        a("s_cselect_b32 s80, s100, s80")
        a("s_branch L_ld_tile")
    else:
        a("s_cbranch_scc1 L_ld_tile")
    a("L_ld_again:")
    if empt:
        a("s_cmp_eq_u32 s15, 3")
        a("s_cselect_b32 s5, 0, s5")
        a("s_cmp_lg_u32 s5, 2")
        a("s_cbranch_scc1 L_ld_peek")
        a("s_and_b32 s5, s11, 1")
        a("s_bitset1_b32 s15, s5")
        a("s_add_u32 s11, s11, 1")
        a("v_mov_b32 v32, s11")
        a("v_lshl_add_u32 v36, v32, 2, v1")
        a(f"ds_write_b32 v1, v32 offset:{STARTED}")
        a("s_cmp_eq_u32 s15, 3")
        a("s_cbranch_scc0 L_ld_peek")
        a("v_mov_b32 v31, s10")
        a("s_add_u32 s98, s98, 3")
        a("s_cmp_gt_u32 s4, s98")
        a("s_cbranch_scc1 L_ld_go")
        a("L_ld_peek:")
    peek()
    a("s_sub_u32 s60, s60, 1")
    a("s_cbranch_scc0 L_ld_chk")
    a("v_mov_b32 v30, 0x7fffffff")
    a("v_mov_b32 v31, s10")
    a(f"ds_write_b64 v29, v[30:31] offset:{POST}")
    a("s_endpgm")
    a("L_ld_end:")
    a("s_add_u32 s4, s4, 8")
    a("s_cmp_gt_u32 s4, s98")
    a("s_cbranch_scc0 L_ld_again")
    a("L_ld_go:")
    stamp(3)
    a(f"v_lshl_add_u32 v{VD[0]}, v12, 11, v13")
    for i in range(1, 4):
        a(f"v_add_u32 v{VD[i]}, {(16 * (i & 1) + 4 * (i >> 1)) * 2048 - 1024 * i}, v{VD[0]}")
    srd(52, 32, 7340032)
    wd_row(6)
    a(f"s_mul_i32 s96, s6, {224*2048}")
    wd_col(6)
    a("s_lshl_b32 s6, s6, 7")
    a("s_add_u32 s96, s96, s6")
    if stamps:
        a("s_add_u32 s92, s10, s64")
        a("s_add_u32 s88, s88, s64")
        a("s_add_u32 s90, s90, s64")
    if wide:
        a("s_cmp_eq_u32 s99, 0")
        a("s_cbranch_scc1 L_ld_narrow")
        for w in range(win + wide[0] - 4, win - 4, -4): wait_post(w)
        a("L_ld_narrow:")
    sch = dict(sched or ([(0, win), grow] if grow else [(0, win)]))
    infl = win // 4
    wn = win
    for k in range(15):
        wn = sch.get(k, wn)
        while infl > wn // 4:
            infl -= 1; wait_post(4 * infl)
        if infl == wn // 4: wait_post(wn - 4, True)
        else: infl += 1
        if k < 7:
            unit(VD, 52, 96)
            if k < 6: a("s_add_u32 s96, s96, 0x10000")
        else:
            unit(VD, 56, 97)
            if k < 14: a(f"s_add_u32 s97, s97, {0x10000 - 384 if k == 10 else 128}")
        if k % 4 == 3: a("s_and_b32 m0, m0, 0x1ffff")
        if k == 1: srd(56, 24, 8388608)
        if k == 2: rr_cc(6, 7)
        if k == 4:
            a("s_lshl_b32 s6, s6, 17")
            a("s_lshl_b32 s7, s7, 9")
            a("s_add_u32 s97, s6, s7")
        if k == 6: stamp(4)
    stamp(5)
    while infl > 0:
        infl -= 1; wait_post(4 * infl)
    stamp(6)
    a("L_ld_done:")
    if stamps:
        a("s_mov_b32 s3, 4")
        srd(48, 38, 268435456)
        a("s_getreg_b32 s94, hwreg(HW_REG_XCC_ID)")
        a("s_getreg_b32 s95, hwreg(HW_REG_HW_ID)")
        a("s_and_b32 s94, s94, 15")
        a("s_lshl_b32 s94, s94, 16")
        a("s_and_b32 s95, s95, 0xffff")
        a("s_or_b32 s94, s94, s95")
        a("s_or_b32 s94, s94, 0x1000000")
    dump_stamps(12, 13)
    a("s_endpgm")

    if not ofirst: emit_others()
    a("L_notloader:")
    if stamps or lite:
        for k in range(1, 16): a(f"s_mov_b32 s{64+2*k}, 0")
    a("v_and_b32 v5, 15, v0")
    a("v_lshlrev_b32 v6, 4, v0")
    srd(48, 38, 268435456)
    a("s_mov_b32 s96, 0")
    a(f"s_mov_b32 s97, {BIG}")
    a("s_cmp_eq_u32 s3, 5")
    a("s_cbranch_scc1 L_helper")
    a("s_cmp_gt_u32 s3, 5")
    a("s_cbranch_scc1 L_ticket")

    role[0] = "C"
    XF = 32
    AF = 64
    ACC = 80
    TA = 7
    a("s_setprio 1")
    tr_addr(TA)
    a("s_waitcnt lgkmcnt(0)")
    make_tag()
    a("s_waitcnt vmcnt(0)")
    stamp(1)
    pool_member(6)
    a("s_cmp_lg_u32 s6, 0")
    a("s_cbranch_scc1 L_nozero")
    pool_id(6)
    ac_lane(13)
    a("v_mov_b32 v12, 0")
    a(f"s_mul_i32 s7, s6, {cstride}")
    a(f"s_add_u32 s7, s7, {TCN}")
    a("s_mov_b64 exec, 1")
    if sig1 is not None or sig2:
        assert npool == 4
        a("s_cmp_eq_u32 s3, 0")
        a("s_cbranch_scc1 " + ("L_zeroed" if early_t else "L_dozero"))
        a("s_mov_b64 exec, 0xffff")
        a("s_lshr_b32 s4, s6, 2")
        a("s_and_b32 s5, s6, 3")
        if sig1 is not None or rk:
            a("s_lshl_b32 s7, s4, 14")
            a("s_lshl_b32 s8, s5, 8")
            a("s_add_u32 s7, s7, s8")
            a(f"s_add_u32 s7, s7, {AC1}")
            a("s_cmp_eq_u32 s3, 1")
            a("s_cbranch_scc1 L_dozero")
        a(f"s_lshl_b32 s7, s5, {ash}")
        a("s_lshl_b32 s8, s4, 8")
        a("s_add_u32 s7, s7, s8")
        a(f"s_add_u32 s7, s7, {AC2}")
        a("v_mov_b32 v12, s13")
        a("s_cmp_eq_u32 s3, 2")
    else:
        a("s_cmp_eq_u32 s3, 0")
    a("s_cbranch_scc0 L_zeroed")
    a("L_dozero:")
    a("buffer_store_dword v12, v13, s[48:51], s7 offen sc1")
    a("L_zeroed:")
    a("s_mov_b64 exec, -1")
    a("L_nozero:")
    for i in range(8):
        a(f"v_lshlrev_b32 v{32+2*i}, 16, v{56+i}")
        a(f"v_and_b32 v{33+2*i}, 0xffff0000, v{56+i}")
    a("v_add_f32 v16, v32, v33")
    a("v_add_f32 v17, v34, v35")
    for i in range(2, 8):
        a(f"v_add_f32 v16, v16, v{32+2*i}")
        a(f"v_add_f32 v17, v17, v{33+2*i}")
    a("v_add_f32 v16, v16, v17")
    emit(row_list("v_add_f32", 16) + cross_list("v_add_f32", 16, 17))
    a("v_mul_f32 v16, 0x3a800000, v16")
    for i in range(16):
        a(f"v_sub_f32 v{32+i}, v{32+i}, v16")
    a("v_mul_f32 v17, v32, v32")
    a("v_mul_f32 v18, v33, v33")
    for i in range(1, 8):
        a(f"v_fmac_f32 v17, v{32+2*i}, v{32+2*i}")
        a(f"v_fmac_f32 v18, v{33+2*i}, v{33+2*i}")
    a("v_add_f32 v17, v17, v18")
    emit(row_list("v_add_f32", 17) + cross_list("v_add_f32", 17, 18))
    a("v_mul_f32 v17, 0x3a800000, v17")
    bf16r(16, 16)
    bf16r(17, 17)
    a("v_add_f32 v17, 0x3727c5ac, v17")
    bf16r(17, 17)
    a("v_sqrt_f32 v17, v17")
    for i in range(2):
        a(f"v_lshlrev_b32 v{18+2*i}, 16, v{64+i}")
        a(f"v_and_b32 v{19+2*i}, 0xffff0000, v{64+i}")
    bf16r(17, 17)
    a("v_rcp_f32 v17, v17")
    for i in range(4): a(f"v_sub_f32 v{18+i}, v{18+i}, v16")
    for i in range(4): bf16r(18 + i, 18 + i)
    for i in range(4): a(f"v_mul_f32 v{18+i}, v{18+i}, v17")
    a("v_cvt_pk_bf16_f32 v18, v18, v19")
    a("v_cvt_pk_bf16_f32 v19, v20, v21")
    a("v_add_u32 v15, v15, v1")
    a(f"ds_write_b64 v15, v[18:19] offset:{XN}")
    a("v_lshl_add_u32 v14, v4, 4, v1")
    for s in range(8):
        a(f"ds_read_b128 v[{XF+4*s}:{XF+4*s+3}], v14 offset:{XN+64*s}")
    stamp(2)
    A1 = 27
    a(f"v_lshl_add_u32 v12, v0, 2, v1")
    a(f"v_add_u32 v12, {SCR}, v12")
    a("v_cmp_eq_u32 vcc, 0, v0")
    a(f"v_cndmask_b32 v{A1}, v12, v1, vcc")
    a("s_lshl_b32 s4, s3, 2")
    a(f"v_add_u32 v28, s4, v{A1}")
    def progress(x):
        a(f"v_mov_b32 v29, {x}")
        a(f"ds_write_b32 v28, v29 offset:{PROG}")
    a("s_lshl_b32 s4, s3, 5")
    a(f"v_xor_b32 v14, s4, v{TA}")
    a("s_lshl_b32 s8, s14, 14")
    a("s_lshl_b32 s9, s3, 6")
    a("s_add_u32 s8, s8, s9")
    gu_col(11)
    if cmap:
        up_shift(27, 11, 256)
        a("s_add_u32 s27, s27, 0x10000")
    a("s_lshl_b32 s11, s11, 8")
    a("s_add_u32 s11, s11, s8")
    if cmap: a(f"s_add_u32 s11, s11, {GP}")
    wq_col(9)
    a("s_lshl_b32 s9, s9, 8")
    a("s_add_u32 s9, s9, s8")
    light_test()
    a("s_cselect_b32 s15, 2, 6")
    a("s_mov_b32 s99, 0")
    a("s_mov_b32 s10, 0")
    a("v_lshlrev_b32 v15, 6, v4")
    a("v_and_b32 v15, 3, v0")
    a("v_lshlrev_b32 v15, 6, v15")
    if gui: a("s_mov_b32 s24, 1")
    a("L_c_blk:")
    for (s0, s1) in [(0, 4), (4, 6), (6, 8)]:
        if gui: a(f"s_lshl{(s1-s0)//2}_add_u32 s10, s24, s10")
        else: a(f"s_add_u32 s10, s10, {s1-s0}")
        need("s10")
        for s in range(s0, s1):
            for t in range(2):
                d = AF + 4 * (s & 3) + 2 * t
                a(f"ds_read_b64_tr_b16 v[{d}:{d+1}], v14 offset:{s*4096+t*2048}")
        a("s_waitcnt lgkmcnt(0)")
        for s in range(s0, s1):
            c = "0" if s == 0 else f"v[{ACC}:{ACC+3}]"
            a(f"v_mfma_f32_16x16x32_bf16 v[{ACC}:{ACC+3}], v[{AF+4*(s&3)}:{AF+4*(s&3)+3}], v[{XF+4*s}:{XF+4*s+3}], {c}")
        if s1 % 4 == 0:
            a("s_add_u32 s99, s99, 1")
            progress("s99")
    a("v_add_u32 v14, 0x8000, v14")
    for k in range(4): a(f"ds_bpermute_b32 v{ACC+k}, v15, v{ACC+k}")
    a("s_waitcnt vmcnt(0) lgkmcnt(0)")
    apply_tag(ACC)
    a("s_mov_b64 exec, 0xf")
    a(f"buffer_store_dwordx4 v[{ACC}:{ACC+3}], v6, s[48:51], s9 offen sc1")
    a("s_mov_b64 exec, -1")
    if stamps or probe or leak:
        a("s_cmp_lg_u32 s99, 2")
        a("s_cbranch_scc1 L_c_ns3")
        stamp(3)
        a("L_c_ns3:")
    if cmap:
        a("s_mov_b32 s9, s11")
        a("s_add_u32 s11, s11, s27")
    else:
        a("s_add_u32 s11, s11, 0x10000")
        a("s_mov_b32 s9, s11")
    if gui:
        a("s_lshl_b32 s24, s24, 1")
        a("s_and_b32 s24, s24, 3")
    a("s_cmp_lt_u32 s99, s15")
    a("s_cbranch_scc1 L_c_blk")
    stamp(4)
    leak_flag()
    if qlight:
        light_test()
        a(f"s_cselect_b32 s4, {qlight}, {qstart}")
        need("s4")
    elif qstart: need(qstart)
    a("s_lshr_b32 s4, s2, 6")
    a("s_lshl_b32 s4, s4, 12")
    a("s_lshl_b32 s5, s3, 10")
    a("s_add_u32 s52, s4, s5")
    a("s_add_u32 s53, s52, 16384")
    a("s_add_u32 s54, s52, 32768")
    a("s_add_u32 s55, s52, 49152")
    def q_loads():
        for r in range(1 if "q" in abl else 4):
            a(f"buffer_load_dwordx4 v[{64+4*r}:{67+4*r}], v6, s[48:51], s{52+r} offen sc1")
    q_loads()
    KF = 32; QF = 96; SC = 64; VF = 72; AO = 80
    KA = 112; VA = 116; KC = 120; VC = 118
    S = 16; P = 20; M2, LS, AL = 24, 25, 26
    RL, LB = 30, 31
    A_OP, A_PERM, A_SH, A_G, A_OL, A_SP, A_M, SEL1, SEL2, A_QR, ONE = 128, 129, 130, 131, 132, 133, 134, 138, 139, 140, 141
    a("v_lshlrev_b32 v13, 1, v3")
    for m in range(4):
        a(f"v_add_u32 v12, {4*m}, v4")
        a("v_xor_b32 v12, v12, v13")
        a("v_lshlrev_b32 v12, 4, v12")
        a(f"v_lshl_add_u32 v{KA+m}, v5, 8, v12")
    a("v_lshrrev_b32 v12, 2, v5")
    a("v_lshl_add_u32 v12, v4, 2, v12")
    a("v_and_b32 v15, 3, v0")
    a("v_lshlrev_b32 v13, 3, v15")
    a("v_lshl_add_u32 v13, v12, 8, v13")
    a("v_add_u32 v13, 8192, v13")
    a("v_and_b32 v12, 7, v12")
    a("s_lshl_b32 s4, s3, 1")
    for n in range(2):
        a(f"s_add_u32 s5, s4, {n}")
        a("v_xor_b32 v14, s5, v12")
        a(f"v_lshl_add_u32 v{VA+n}, v14, 5, v13")
    a(f"v_mov_b32 v{M2}, 0xff7fffff")
    a(f"v_mov_b32 v{LS}, 0")
    for i in range(8): a(f"v_mov_b32 v{AO+i}, 0")
    a("v_cmp_lt_u32 s[100:101], 7, v5")
    a(f"s_mov_b32 s12, {LOG2E}")
    a(f"v_mul_u32_u24 v14, {QROW}, v3")
    a("v_lshl_add_u32 v14, v4, 4, v14")
    a(f"v_add_u32 v{A_QR}, v14, v1")
    a(f"v_mov_b32 v{ONE}, 1")
    a(f"v_lshlrev_b32 v14, {9+ow}, v2")
    if opw:
        a("v_and_b32 v13, 4, v0")
        a("v_lshl_add_u32 v14, v13, 4, v14")
    a(f"v_lshl_add_u32 v{A_OP}, v3, 4, v14")
    a("v_lshlrev_b32 v13, 4, v15")
    a("v_and_b32 v14, 4, v0")
    a("v_lshl_add_u32 v13, v14, 1, v13")
    a("v_add_u32 v13, v13, v2")
    a(f"v_lshlrev_b32 v{A_PERM}, 2, v13")
    a(f"v_lshlrev_b32 v{A_SH}, 3, v4")
    TO = 143
    a("v_bfe_i32 v12, v0, 4, 1")
    a(f"v_and_b32 v12, {TAGX}, v12")
    a(f"v_xor_b32 v{TO}, s13, v12")
    for k in range(1, 3): a(f"v_lshrrev_b32 v{TO+k}, {8*k}, v{TO}")
    a(f"s_mul_i32 s4, s2, {RSO}")
    a(f"s_lshl_b32 s5, s3, {7+ow}")
    a("s_add_u32 s4, s4, s5")
    a(f"s_add_u32 s44, s4, {OP}")
    rr_cc(4, 5)
    a(f"s_mul_i32 s8, s4, {RSS}")
    if spar is not None: a("s_and_b32 s8, s8, 0xffffcfff")
    a(f"s_lshl_b32 s9, s5, {10+sw}")
    a("s_add_u32 s8, s8, s9")
    a(f"s_lshl_b32 s9, s3, {8+sw}")
    a("s_add_u32 s8, s8, s9")
    a(f"s_add_u32 s45, s8, {SP}")
    if direct:
        a("s_lshl_b32 s8, s5, 14")
        a("s_lshr_b32 s9, s2, 6")
        a("s_lshl_b32 s9, s9, 8")
        a("s_add_u32 s8, s8, s9")
        a(f"s_add_u32 s46, s8, {AC2}")
        a("v_lshlrev_b32 v142, 10, v0")
    if cgate:
        a("s_lshl_b32 s8, s4, 8")
        a(f"s_add_u32 s8, s8, {OCN}")
        a("s_add_u32 s58, s38, s8")
        a("s_addc_u32 s59, s39, 0")
        a("s_lshr_b32 s8, s2, 6")
        a("s_lshl_b32 s8, s8, 12")
        a(f"s_add_u32 s46, s8, {OCN}")
        a("v_lshlrev_b32 v142, 8, v0")
    a("s_lshr_b32 s8, s4, 4")
    a(f"s_mul_i32 s8, s8, {64*RSO}")
    a("s_and_b32 s9, s4, 15")
    a(f"s_lshl_b32 s9, s9, {8+ow}")
    a("s_add_u32 s8, s8, s9")
    a(f"s_lshl_b32 s9, s3, {6+ow}")
    a("s_add_u32 s8, s8, s9")
    a(f"s_add_u32 s16, s8, {OP}")
    a(f"s_add_u32 s17, s16, {RSO}")
    a(f"s_add_u32 s18, s16, {2*RSO}")
    a(f"s_add_u32 s19, s16, {3*RSO}")
    a("v_lshrrev_b32 v13, 2, v0")
    a(f"v_mul_u32_u24 v13, {4*RSO}, v13")
    a(f"v_lshl_add_u32 v{A_G}, v15, 4, v13")
    a("v_lshl_add_u32 v12, v4, 4, v1")
    a(f"v_add_u32 v12, {OL}, v12")
    a(f"v_add_u32 v13, {ZER}, v1")
    for u in range(4):
        a(f"v_cmp_eq_u32 vcc, {u}, v15")
        a(f"v_cndmask_b32 v{A_M+u}, v13, v12, vcc")
    a("s_lshl_b32 s4, s3, 5")
    a("v_lshl_add_u32 v13, v4, 1, v1")
    a("v_lshl_add_u32 v13, v15, 3, v13")
    a(f"v_add_u32 v{A_OL}, s4, v13")
    a("v_lshlrev_b32 v13, 4, v5")
    a(f"v_lshl_add_u32 v{A_SP}, v4, {6+sw}, v13")
    a("v_and_b32 v12, 1, v0")
    a("v_cmp_eq_u32 vcc, 1, v12")
    a("v_mov_b32 v12, 0x06020400")
    a("v_mov_b32 v13, 0x03070105")
    a(f"v_cndmask_b32 v{SEL1}, v12, v13, vcc")
    a("v_and_b32 v12, 2, v0")
    a("v_cmp_eq_u32 vcc, 2, v12")
    a("v_mov_b32 v12, 0x05040100")
    a("v_mov_b32 v13, 0x03020706")
    a(f"v_cndmask_b32 v{SEL2}, v12, v13, vcc")
    a("s_mov_b32 s20, 0x0c0c0400")
    a("s_mov_b32 s21, 0x05040100")
    L = a.label("L_q"); D = a.label("L_qd")
    a(f"s_mov_b32 s60, {spin_limit}")
    a("s_branch L_q_wait")
    a(f"{L}:")
    q_loads()
    a("L_q_wait:")
    a("s_waitcnt vmcnt(0)")
    tag_check([64] if "q" in abl else [64, 68, 72, 76], 12)
    retry_masked(L, D, qsleep)
    stamp(5)
    for k in range(4): a(f"v_add_f32 v{64+k}, v{64+k}, v{68+k}")
    for k in range(4): a(f"v_add_f32 v{72+k}, v{72+k}, v{76+k}")
    for k in range(4): a(f"v_add_f32 v{64+k}, v{64+k}, v{72+k}")
    a("v_cvt_pk_bf16_f32 v64, v64, v65")
    a("v_cvt_pk_bf16_f32 v65, v66, v67")
    a("v_lshrrev_b32 v12, 5, v0")
    a("s_lshl_b32 s4, s3, 1")
    a("v_add_u32 v12, s4, v12")
    a(f"v_mul_u32_u24 v12, {QROW}, v12")
    a("v_and_b32 v13, 31, v0")
    a("v_lshl_add_u32 v12, v13, 3, v12")
    a("v_add_u32 v12, v12, v1")
    a(f"ds_write_b64 v12, v[64:65] offset:{QL}")
    a(f"ds_add_u32 v{A1}, v{ONE} offset:{QCNT}")
    lds_spin(QCNT, 4 if eearly else 5, 12, 0)
    for m in range(4):
        a(f"ds_read_b128 v[{QF+4*m}:{QF+4*m+3}], v{A_QR} offset:{QL+64*m}")
    stamp(6)
    def k_reads():
        for m in range(4): a(f"v_add_u32 v{KC+m}, s4, v{KA+m}")
        for t in range(2):
            for m in range(4):
                d = KF + 16 * t + 4 * m
                a(f"ds_read_b128 v[{d}:{d+3}], v{KC+m} offset:{4096*t}")
    def v_addr():
        for n in range(2): a(f"v_add_u32 v{VC+n}, s5, v{VA+n}")
    def v_reads(VF=VF, off=0):
        for n in range(2):
            for t in range(2):
                d = VF + 4 * n + 2 * t
                a(f"ds_read_b64_tr_b16 v[{d}:{d+1}], v{VC+n} offset:{off+4096*t}")
    def qk_list(KF=KF, SC=SC):
        out = []
        for t in range(2):
            for m in range(4):
                d = KF + 16 * t + 4 * m
                c = "0" if m == 0 else f"v[{SC+4*t}:{SC+4*t+3}]"
                out.append(f"v_mfma_f32_16x16x32_bf16 v[{SC+4*t}:{SC+4*t+3}], v[{d}:{d+3}], v[{QF+4*m}:{QF+4*m+3}], {c}")
        return out
    def softmax_list():
        o = []
        for k in range(4): o.append(f"v_cndmask_b32 v{S+k}, v{SC+k}, v{SC+4+k}, s[100:101]")
        for k in range(4): o.append(f"v_cvt_pk_bf16_f32 v{S+k}, 0, v{S+k}")
        for k in range(4): o.append(f"v_mul_f32 v{S+k}, {SCALE}, v{S+k}")
        for k in range(4): o.append(f"v_cvt_pk_bf16_f32 v{S+k}, 0, v{S+k}")
        o.append(f"v_max3_f32 v14, v{S}, v{S+1}, v{S+2}")
        o.append(f"v_max_f32 v14, v14, v{S+3}")
        o.append("MARK")
        o += row_list("v_max_f32", 14, (8,)) + cross_list("v_max_f32", 14, 15)
        o.append("v_mul_f32 v14, s12, v14")
        o.append(f"v_max_f32 v14, v14, v{M2}")
        o.append(f"v_sub_f32 v{AL}, v{M2}, v14")
        o.append(f"v_mov_b32 v{M2}, v14")
        o.append(f"v_exp_f32 v{AL}, v{AL}")
        for k in range(4): o.append(f"v_fma_f32 v{S+k}, v{S+k}, s12, -v14")
        for k in range(4): o.append(f"v_exp_f32 v{S+k}, v{S+k}")
        for i in range(4): o.append(f"v_mul_f32 v{AO+i}, v{AL}, v{AO+i}")
        o.append(f"v_cvt_pk_bf16_f32 v{P}, v{S}, v{S+1}")
        o.append(f"v_cvt_pk_bf16_f32 v{P+1}, v{S+2}, v{S+3}")
        for i in range(4, 8): o.append(f"v_mul_f32 v{AO+i}, v{AL}, v{AO+i}")
        o.append(f"v_mov_b32_dpp v{P+2}, v{P} row_ror:8 {DPP}")
        o.append(f"v_mov_b32_dpp v{P+3}, v{P+1} row_ror:8 {DPP}")
        o.append(f"v_add_f32 v14, v{S}, v{S+1}")
        o.append(f"v_add_f32 v15, v{S+2}, v{S+3}")
        o.append("v_add_f32 v14, v14, v15")
        o.append(f"v_fma_f32 v{LS}, v{LS}, v{AL}, v14")
        return o
    def pv(VF=VF, P=P):
        for n in range(2):
            a(f"v_mfma_f32_16x16x32_bf16 v[{AO+4*n}:{AO+4*n+3}], v[{VF+4*n}:{VF+4*n+3}], v[{P}:{P+3}], v[{AO+4*n}:{AO+4*n+3}]")
    def arrive():
        Ln = a.label("L_noarr")
        a("s_cmp_lg_u32 s3, 0")
        a(f"s_cbranch_scc1 {Ln}")
        a("s_mov_b64 exec, 0xffff")
        a(f"buffer_atomic_add v{ONE}, v142, s[48:51], s46 offen sc1")
        a("s_mov_b64 exec, -1")
        a(f"{Ln}:")
    def stats():
        a(f"v_mov_b32 v{RL}, v{LS}")
        emit(row_list("v_add_f32", RL, (8,)) + cross_list("v_add_f32", RL, 15))
        a(f"v_log_f32 v{LB}, v{RL}")
        a(f"v_rcp_f32 v{RL}, v{RL}")
        a("s_sub_u32 s6, s10, 2")
        a(f"v_add_f32 v{LB}, v{LB}, v{M2}")
        a(f"v_lshrrev_b32 v{LB}, v{A_SH}, v{LB}")
    cnt = not (stamps or probe or leak)
    if two:
        KF2, SC2, S2, PK, A_SB, VF2, P2 = 152, 72, 88, 92, 146, 152, 160
        light_test()
        a(f"s_cselect_b32 s25, {(dyn + lex) // 2}, {dyn // 2}")
        a("s_mov_b32 s11, 0")
        a("s_mov_b32 s26, 0x07060302")
        a(f"v_add_u32 v{A_SB}, v6, v1")
        a("L_c_kk:")
        a("s_add_u32 s10, s10, 4")
        need("s10")
        slot_base(4, "s99")
        k_reads()
        for t in range(2):
            for m in range(4):
                d = KF2 + 16 * t + 4 * m
                a(f"ds_read_b128 v[{d}:{d+3}], v{KC+m} offset:{8192+4096*t}")
        a("s_add_u32 s99, s99, 1")
        a("s_add_u32 s11, s11, 1")
        qa = qk_list(); qb = qk_list(KF2, SC2)
        a("s_waitcnt lgkmcnt(8)" if cnt else "s_waitcnt lgkmcnt(0)")
        emit(qa)
        a("s_waitcnt lgkmcnt(0)")
        progress("s99")
        def pre(sc, sv, pk):
            o = [f"v_cndmask_b32 v{sv+k}, v{sc+k}, v{sc+4+k}, s[100:101]" for k in range(4)]
            o += [f"v_cvt_pk_bf16_f32 v{sv+k}, 0, v{sv+k}" for k in range(4)]
            o += [f"v_mul_f32 v{sv+k}, {SCALE}, v{sv+k}" for k in range(4)]
            o += [f"v_cvt_pk_bf16_f32 v{sv+k}, 0, v{sv+k}" for k in range(4)]
            o += [f"v_max3_f32 v{M2}, v{M2}, v{sv}, v{sv+1}", f"v_perm_b32 v{pk}, v{sv+1}, v{sv}, s26",
                  f"v_max3_f32 v{M2}, v{M2}, v{sv+2}, v{sv+3}", f"v_perm_b32 v{pk+1}, v{sv+3}, v{sv+2}, s26"]
            return o
        emit(interleave(qb, pre(SC, S, PK), {3: 1, 4: 3, 5: 3, 6: 3}))
        emit(pre(SC2, S2, PK + 2))
        a(f"ds_write_b128 v{A_SB}, v[{PK}:{PK+3}] offset:{SB}")
        a(f"v_add_u32 v{A_SB}, 1024, v{A_SB}")
        a("s_cmp_lt_u32 s11, s25")
        a("s_cbranch_scc1 L_c_kk")
        stamp(7)
        emit(row_list("v_max_f32", M2, (8,)) + cross_list("v_max_f32", M2, 15))
        a(f"v_mul_f32 v{M2}, s12, v{M2}")
        a(f"v_add_u32 v{A_SB}, v6, v1")
        a("s_lshl_b32 s25, s25, 1")
        a("L_c_vv:")
        a(f"ds_read_b128 v[{PK}:{PK+3}], v{A_SB} offset:{SB}")
        a(f"v_add_u32 v{A_SB}, 1024, v{A_SB}")
        slot_base(5, "s99")
        a("s_sub_u32 s5, s5, 8192")
        v_addr()
        a("s_add_u32 s10, s10, 4")
        a("s_add_u32 s99, s99, 1")
        a("s_add_u32 s11, s11, 1")
        a("s_waitcnt lgkmcnt(0)")
        for h, sv in enumerate((S, S2)):
            for k in range(2):
                a(f"v_lshlrev_b32 v{sv+2*k}, 16, v{PK+2*h+k}")
                a(f"v_and_b32 v{sv+2*k+1}, 0xffff0000, v{PK+2*h+k}")
        for sv in (S, S2):
            for k in range(4): a(f"v_fma_f32 v{sv+k}, v{sv+k}, s12, -v{M2}")
        need("s10")
        v_reads()
        v_reads(VF2, 8192)
        for sv in (S, S2):
            for k in range(4): a(f"v_exp_f32 v{sv+k}, v{sv+k}")
        for sv, pp in ((S, P), (S2, P2)):
            a(f"v_cvt_pk_bf16_f32 v{pp}, v{sv}, v{sv+1}")
            a(f"v_cvt_pk_bf16_f32 v{pp+1}, v{sv+2}, v{sv+3}")
        for k in range(4): a(f"v_add_f32 v{S+k}, v{S+k}, v{S2+k}")
        for pp in (P, P2):
            a(f"v_mov_b32_dpp v{pp+2}, v{pp} row_ror:8 {DPP}")
            a(f"v_mov_b32_dpp v{pp+3}, v{pp+1} row_ror:8 {DPP}")
        a(f"v_add_f32 v{S}, v{S}, v{S+1}")
        a(f"v_add_f32 v{S+2}, v{S+2}, v{S+3}")
        a("s_waitcnt lgkmcnt(0)")
        progress("s99")
        pv()
        pv(VF2, P2)
        a(f"v_add_f32 v{S}, v{S}, v{S+2}")
        a(f"v_add_f32 v{LS}, v{LS}, v{S}")
        a("s_cmp_lt_u32 s11, s25")
        a("s_cbranch_scc1 L_c_vv")
        a("s_add_u32 s10, s10, 2")
        a("s_cmp_lt_u32 s11, s97")
        a("s_cbranch_scc1 L_c_k")
        stats()
        a("s_branch L_c_pub")
    else:
        a("s_add_u32 s10, s10, 2")
        a("s_mov_b32 s11, 0")
        a("s_branch L_c_k")
    a("L_c_fast:")
    slot_base(5, "s99")
    a("s_add_u32 s99, s99, 1")
    slot_base(4, "s99")
    v_addr()
    v_reads()
    k_reads()
    sm = softmax_list(); i = sm.index("MARK")
    emit(sm[:i])
    a("s_waitcnt lgkmcnt(0)")
    progress("s99")
    rest = sm[i + 1:]; q = qk_list()
    pos = {0: 1, 1: 0, 2: 1, 4: 0, 5: 2, 9: 1, 12: 1, 16: 1, 20: 1}
    for j, x in enumerate(rest):
        for _ in range(pos.get(j, 0)): a(q.pop(0))
        a(x)
    assert not q
    pv()
    a("L_c_top:")
    a("s_add_u32 s11, s11, 1")
    a("s_add_u32 s10, s10, 4")
    a("s_cmp_ge_u32 s11, s97")
    a("s_cbranch_scc1 L_c_slow")
    a("s_cmp_ge_u32 s96, s10")
    a("s_cbranch_scc1 L_c_fast")
    refresh()
    a("s_cmp_ge_u32 s96, s10")
    a("s_cbranch_scc1 L_c_fast")
    a("L_c_slow:")
    if stamps or probe or leak: stamp(8)
    slot_base(5, "s99")
    v_addr()
    emit([x for x in softmax_list() if x != "MARK"])
    stats()
    if stamps or probe or leak: stamp(9)
    need("s6")
    v_reads()
    a("s_add_u32 s99, s99, 1")
    a("s_cmp_ge_u32 s11, s97")
    a("s_cbranch_scc1 L_c_last")
    a("s_waitcnt lgkmcnt(0)")
    pv()
    progress("s99")
    a("L_c_k:")
    need("s10")
    slot_base(4, "s99")
    k_reads()
    q = qk_list()
    for j in range(8):
        if not (stamps or probe or leak): a(f"s_waitcnt lgkmcnt({7-j})")
        elif j == 0: a("s_waitcnt lgkmcnt(0)")
        a(q[j])
    a("s_branch L_c_top")
    a("L_c_last:")
    if sig1 is not None and s1pos == "last": a(f"ds_add_u32 v{A1}, v{ONE} offset:{PCNT}")
    a("s_waitcnt lgkmcnt(0)")
    pv()
    progress("s99")
    a("L_c_pub:")
    for k in range(4): a(f"v_mov_b32_dpp v{AO+k}, v{AO+4+k} row_ror:8 row_mask:0xf bank_mask:0xc")
    for k in range(4):
        a(f"v_mul_f32 v{AO+k}, v{RL}, v{AO+k}")
    apply_tag(AO, [TO, TO + 1, TO + 2, LB])
    for k in range(4): a(f"ds_bpermute_b32 v{AO+k}, v{A_PERM}, v{AO+k}")
    a("s_waitcnt lgkmcnt(0)")
    if "o" not in abl: a(f"buffer_store_dwordx4 v[{AO}:{AO+3}], v{A_OP}, s[48:51], s44 offen {ost}")
    if sig1 is not None and s1pos == "store": a(f"ds_add_u32 v{A1}, v{ONE} offset:{PCNT}")
    stamp(10)
    PD, WF, BF, WA = 64, 32, 96, 88
    a("s_lshl_b32 s99, s99, 2")
    a("s_add_u32 s22, s99, s3")
    a("s_add_u32 s22, s22, 8")
    a("s_add_u32 s23, s22, 4")
    for st in range(2):
        a(f"s_sub_u32 s4, s{22+st}, 1")
        a("s_and_b32 s4, s4, 31")
        a("s_lshl_b32 s4, s4, 12")
        for u in range(4):
            a(f"v_xor_b32 v14, {32*u}, v{TA}")
            a(f"v_add_u32 v{WA+4*st+u}, s4, v14")
    def wo_reads(st):
        for u in range(4):
            for t in range(2):
                d = WF + 8 * u + 4 * st + 2 * t
                a(f"ds_read_b64_tr_b16 v[{d}:{d+1}], v{WA+4*st+u} offset:{t*2048}")
    stamp(11)
    assert gate >= 15 - (win // 4 - 1)
    a(f"s_add_u32 s10, s99, {gate}")
    need("s10", count=False)
    stamp(14)
    def o_loads():
        for i in range(0 if "g" in abl else 4):
            a(f"buffer_load_dwordx4 v[{PD+4*i}:{PD+4*i+3}], v{A_G}, s[48:51], s{16+i} offen {old_}")
    if sig1 is not None:
        a(f"ds_read_b32 v14, v1 offset:{GO}")
        a("s_waitcnt lgkmcnt(0)")
        a("v_readfirstlane_b32 s4, v14")
        a("s_cmp_eq_u32 s4, 0")
        a("s_cbranch_scc1 L_o_notyet")
    o_loads()
    need("s22", count=False)
    wo_reads(0)
    need("s23", count=False)
    wo_reads(1)
    a(f"s_mov_b32 s60, {spin_limit}")
    if sigpos in ("arr", "arr0"):
        a(f"s_waitcnt vmcnt({0 if sigpos == 'arr' else 3})")
        a(f"ds_add_u32 v{A1}, v{ONE} offset:{GCNT}")
    a("L_o_chk:")
    fill = tag_list(range(PD, PD + 16, 4), 12, n=3)
    chain = [f"v_perm_b32 v17, v{PD+15}, v{PD+11}, s20", "v_perm_b32 v16, v17, v16, s21",
             f"v_mov_b32_dpp v17, v16 quad_perm:[1,0,3,2] {DPP}", f"v_perm_b32 v16, v17, v16, v{SEL1}",
             f"v_mov_b32_dpp v17, v16 quad_perm:[2,3,0,1] {DPP}", f"v_perm_b32 v18, v17, v16, v{SEL2}",
             f"v_max_f32_dpp v16, v18, v18 row_ror:1 {DPP}"] + row_list("v_max_f32", 16, (2, 4, 8)) + cross_list("v_max_f32", 16, 17)
    if echk:
        for i in range(3):
            a(f"s_waitcnt vmcnt({3-i})")
            emit(fill[3*i:3*i+3])
            if i == 1: a(f"v_perm_b32 v16, v{PD+7}, v{PD+3}, s20")
        a("s_waitcnt vmcnt(0)")
        j1, j2 = join_list(12)
        emit(chain[0:2] + fill[9:11] + chain[2:4] + fill[11:13] + chain[4:6] + [j1] + chain[6:7] + [j2] + chain[7:8])
        a("v_cmp_ne_u32 vcc, 0, v12")
        a(chain[8])
        a("s_cbranch_vccnz L_o_again")
        a("L_o_done:")
        if direct: a(f"ds_add_rtn_u32 v19, v{A1}, v{ONE} offset:{GCNT}")
        else: a(f"ds_add_u32 v{A1}, v{ONE} offset:{GCNT}")
        emit(chain[9:])
        a("v_sub_f32 v18, v18, v16")
        if direct: a("s_waitcnt lgkmcnt(0)")
        if direct: a("v_readfirstlane_b32 s4, v19")
        a("v_exp_f32 v18, v18")
        if direct:
            a("s_cmp_lg_u32 s4, 3")
            a("s_cbranch_scc1 L_o_quiet")
            a("s_mov_b64 exec, 0xffff")
            a(f"buffer_atomic_add v{ONE}, v142, s[48:51], s46 offen sc1")
            a("s_mov_b64 exec, -1")
            if lite == 2: a("s_memrealtime s[66:67]")
            a("L_o_quiet:")
    else:
        a("s_waitcnt vmcnt(2)")
        a(f"v_perm_b32 v16, v{PD+7}, v{PD+3}, s20")
        a("s_waitcnt vmcnt(0)")
        fill += ["s_nop 0", f"v_or_b32_dpp v12, v12, v12 quad_perm:[1,0,3,2] {DPP}", "s_nop 0", f"v_or_b32_dpp v12, v12, v12 quad_perm:[2,3,0,1] {DPP}"]
        emit(interleave(chain, fill, {1: 2, 3: 2, 5: 2, 6: 2, 7: 2, 8: 2, 10: 2, 13: 2}))
        a("v_cmp_ne_u32 vcc, 0, v12")
        a("v_sub_f32 v18, v18, v16")
        a("v_exp_f32 v18, v18")
        if "o" not in abl and "c" not in abl: a("s_cbranch_vccnz L_o_again")
        a("L_o_done:")
        if sig2 and sigpos == "chk": a(f"ds_add_u32 v{A1}, v{ONE} offset:{GCNT}")
    stamp(12)
    fm = [f"v_mul_f32_dpp v{20+k}, v18, v{PD+k} quad_perm:[0,0,0,0] {DPP}" for k in range(4)]
    for i in range(1, 4):
        fm += [f"v_fmac_f32_dpp v{20+k}, v18, v{PD+4*i+k} quad_perm:[{i},{i},{i},{i}] {DPP}" for k in range(4)]
    wsum = [f"v_add_f32_dpp v16, v18, v18 row_ror:1 {DPP}"] + row_list("v_add_f32", 16, (2, 4, 8)) + cross_list("v_add_f32", 16, 17) + ["v_rcp_f32 v16, v16"]
    red = ["v_permlane32_swap_b32 v20, v22", "v_permlane32_swap_b32 v21, v23", "v_add_f32 v20, v20, v22", "v_add_f32 v21, v21, v23",
           "v_permlane16_swap_b32 v20, v21", "v_add_f32 v20, v20, v21"] + row_list("v_add_f32", 20, (4, 8))
    seq = interleave(fm + red, wsum, {3: 1, 7: 1, 11: 1, 15: 2, 19: 2, 21: 1, 22: 2})
    if isinstance(sigpos, int): seq.insert(sigpos, f"ds_add_u32 v{A1}, v{ONE} offset:{GCNT}")
    emit(seq)
    a("v_mul_f32 v20, v20, v16")
    a("v_cvt_pk_bf16_f32 v20, v20, v20")
    a(f"ds_write_b16 v{A_OL}, v20 offset:{OL}")
    a(f"ds_add_u32 v{A1}, v{ONE} offset:{OCNT}")
    a(f"s_mov_b32 s60, {spin_limit}")
    a("L_x:")
    a(f"ds_read_b32 v12, v1 offset:{OCNT}")
    for u in range(4):
        for st in range(2):
            d = BF + 8 * u + 4 * st
            a(f"ds_read_b128 v[{d}:{d+3}], v{A_M+u} offset:{64*st}")
    a("s_sub_u32 s60, s60, 1")
    a("s_waitcnt lgkmcnt(0)" if (stamps or probe or leak) else "s_waitcnt lgkmcnt(8)")
    a("v_readfirstlane_b32 s61, v12")
    a("s_cselect_b32 s61, -1, s61")
    a("s_cmp_lt_u32 s61, 4")
    a("s_cbranch_scc1 L_x")
    for u in range(4):
        for st in range(2):
            if not (stamps or probe or leak): a(f"s_waitcnt lgkmcnt({7-2*u-st})")
            c = "0" if u + st == 0 else f"v[{ACC}:{ACC+3}]"
            a(f"v_mfma_f32_16x16x32_bf16 v[{ACC}:{ACC+3}], v[{WF+8*u+4*st}:{WF+8*u+4*st+3}], v[{BF+8*u+4*st}:{BF+8*u+4*st+3}], {c}")
    setexec(0x000f000f, 0x000f000f)
    apply_tag(ACC)
    a(f"buffer_store_dwordx4 v[{ACC}:{ACC+3}], v{A_SP}, s[48:51], s45 offen sc1")
    stamp(13)
    dump_stamps(12, 13)
    a("s_endpgm")
    if sig1 is not None:
        a("L_o_notyet:")
        need("s22", count=False)
        wo_reads(0)
        need("s23", count=False)
        wo_reads(1)
        lds_spin(GO, 1, 12, 0)
        o_loads()
        a(f"s_mov_b32 s60, {spin_limit}")
        a("s_branch L_o_chk")
    a("L_o_again:")
    a("s_sub_u32 s60, s60, 1")
    a("s_cbranch_scc1 L_o_done")
    if osleep: a(f"s_sleep {osleep}")
    a("s_mov_b64 exec, vcc")
    o_loads()
    a("s_mov_b64 exec, -1")
    a("s_branch L_o_chk")

    role[0] = "H"
    a("L_helper:")
    srd(56, 34, 2048)
    if not eearly:
        a("v_mov_b32 v12, 1")
        a("s_waitcnt lgkmcnt(0)")
        a("s_mov_b64 exec, 1")
        a(f"ds_add_u32 v1, v12 offset:{QCNT}")
        a("s_mov_b64 exec, -1")
    make_tag()
    wd_row(4)
    a("s_mul_i32 s4, s4, 896")
    a(f"s_add_u32 s8, s4, {GP}")
    a("s_add_u32 s9, s8, 0x10000")
    a("v_add_u32 v14, -2, v5")
    a("v_cmp_gt_u32 vcc, 14, v5")
    a("v_cndmask_b32 v14, v14, v5, vcc")
    a("v_lshlrev_b32 v15, 4, v14")
    a("v_lshl_add_u32 v15, v4, 14, v15")
    a("v_lshlrev_b32 v14, 3, v14")
    a("v_lshl_add_u32 v14, v4, 1, v14")
    a("v_add_u32 v14, v14, v1")
    leak_flag()
    if leak:
        for x in leak:
            if x[0] == "H" and x[1]: a(f"s_mov_b32 s{64+2*x[1]}, 0")
    if hstart: need(hstart, sleep=8)
    else: lds_spin(QCNT, 7 if early_t else 5, 12, 8)
    stamp(1)
    L = a.label("L_h"); D = a.label("L_hd")
    a(f"s_mov_b32 s60, {spin_limit}")
    a(f"{L}:")
    for w in range(0 if "h" in abl else 4):
        a(f"buffer_load_dwordx4 v[{32+8*w}:{35+8*w}], v15, s[48:51], s8 offen offset:{224*w} sc1")
        a(f"buffer_load_dwordx4 v[{36+8*w}:{39+8*w}], v15, s[48:51], s9 offen offset:{224*w} sc1")
    a("s_waitcnt vmcnt(0)")
    tag_check(range(32, 64, 4), 12, quad=False)
    if "h" in abl: a("s_mov_b64 vcc, 0")
    retry_masked(L, D, 16)
    stamp(2)
    G8 = list(range(32, 64, 4)); G4 = G8[::2]
    for step in ("v_permlane32_swap_b32 v{r}, v{r2}", "v_permlane32_swap_b32 v{r1}, v{r3}", "v_add_f32 v{r}, v{r}, v{r2}",
                 "v_add_f32 v{r1}, v{r1}, v{r3}", "v_permlane16_swap_b32 v{r}, v{r1}", "v_add_f32 v{r}, v{r}, v{r1}",
                 "v_cvt_pk_bf16_f32 v{r}, 0, v{r}"):
        for r in G8: a(step.format(r=r, r1=r + 1, r2=r + 2, r3=r + 3))
    for step in ("v_mul_f32 v{t}, 0xbfb8aa3b, v{g}", "v_exp_f32 v{t}, v{t}", "v_add_f32 v{t}, 1.0, v{t}", "v_rcp_f32 v{t}, v{t}",
                 "v_mul_f32 v{t}, v{t}, v{g}", "v_cvt_pk_bf16_f32 v{g}, 0, v{t}", "v_mul_f32 v{g}, v{g}, v{u}",
                 "v_cvt_pk_bf16_f32 v{g}, v{g}, v{g}"):
        for g in G4: a(step.format(g=g, t=g + 1, u=g + 4))
    for w, g in enumerate(G4): a(f"ds_write_b16 v14, v{g} offset:{HL+112*w}")
    if side is None:
        a("s_and_b32 s4, s2, 7")
        a(f"s_lshr_b32 s5, s2, {7 if oneline else 6}")
        a("s_lshl_b32 s5, s5, 3")
        a("s_or_b32 s4, s4, s5")
        a(f"s_lshl_b32 s4, s4, {2 if oneline else 1}")
        a(f"s_bfe_u32 s5, s2, {0x20005 if oneline else 0x10005}")
        a("s_add_u32 s4, s4, s5")
    if side is not None:
        a("s_and_b32 s4, s2, 3")
        a("s_lshr_b32 s5, s2, 6")
        a("s_lshl2_add_u32 s4, s5, s4")
        a("s_bfe_u32 s5, s2, 0x20004")
        a("s_lshl2_add_u32 s4, s4, s5")
    if sig2:
        a("s_lshl_b32 s5, s4, 10")
        if apar is not None:
            a("s_and_b32 s6, s5, 0xe000")
            a("s_add_u32 s5, s5, s6")
        a(f"s_add_u32 s5, s5, {AC2}")
        a("s_add_u32 s52, s38, s5")
        a("s_addc_u32 s53, s39, 0")
        a("s_lshl_b32 s47, s13, 2")
        a("s_add_u32 s47, s47, 64")
    a(f"s_lshl_b32 s5, s4, {6+sw}")
    for i in range(8 if fatom else 4): a(f"s_add_u32 s{20+i}, s5, {SP + i*RSS}")
    a("s_lshl_b32 s5, s4, 6")
    a(f"s_add_u32 s45, s5, {FP}")
    a("s_lshr_b32 s46, s4, 2")
    a("s_lshl_b32 s46, s46, 7")
    a("s_and_b32 s5, s4, 3")
    a("s_lshl_b32 s5, s5, 3")
    a("s_add_u32 s46, s46, s5")
    a("v_lshrrev_b32 v12, 2, v0")
    a("v_and_b32 v13, 3, v0")
    a(f"v_mul_u32_u24 v19, {RS}, v12")
    if fatom:
        a(f"v_mul_u32_u24 v18, {8*RSS}, v2")
        a("v_lshl_add_u32 v18, v3, 3, v18")
        a("v_bfe_i32 v23, v0, 1, 1")
        a(f"v_and_b32 v23, {TAGX}, v23")
        a("v_xor_b32 v23, s13, v23")
        a("v_and_b32 v16, 1, v0")
        a("v_lshlrev_b32 v16, 4, v16")
        a("v_lshrrev_b32 v16, v16, v23")
        a("v_lshrrev_b32 v17, 8, v16")
        a("v_lshrrev_b32 v23, 5, v0")
        a("v_and_b32 v100, 1, v0")
        a("v_lshl_add_u32 v23, v100, 1, v23")
        a("v_bfe_u32 v100, v0, 1, 2")
        a("v_lshlrev_b32 v101, 6, v23")
        a("v_lshl_add_u32 v101, v100, 2, v101")
        a("v_lshlrev_b32 v23, 1, v23")
        a("v_lshl_add_u32 v23, v100, 5, v23")
    else:
        a(f"v_mul_u32_u24 v18, {4*RSS}, v12")
        if spar is not None: a("v_and_b32 v18, 0xffffcfff, v18")
        a("v_lshl_add_u32 v18, v13, 4, v18")
    a("v_lshl_add_u32 v19, v13, 4, v19")
    a("v_lshlrev_b32 v20, 5, v13")
    a("v_lshl_add_u32 v20, v4, 1, v20")
    if fatom: a("v_mov_b32 v20, v23")
    a("buffer_load_ushort v22, v20, s[40:43], s46 offen")
    wd_row(4)
    a(f"s_mul_i32 s4, s4, {RS}")
    wd_col(5)
    a("s_lshl_b32 s5, s5, 8")
    a("s_add_u32 s4, s4, s5")
    a(f"s_add_u32 s15, s4, {FP}")
    a("v_lshlrev_b32 v21, 4, v5")
    a("v_lshl_add_u32 v21, v4, 6, v21")
    tr_addr(TA)
    for u in range(4): a(f"v_xor_b32 v{28+u}, {32*u}, v{TA}")
    a("v_lshl_add_u32 v14, v4, 4, v1")
    a("v_and_b32 v12, 1, v0")
    a("v_cmp_eq_u32 s[8:9], 1, v12")
    a("v_and_b32 v12, 2, v0")
    a("v_cmp_eq_u32 s[6:7], 2, v12")
    CA = 64; HF = 48
    for k in range(16): a(f"v_mov_b32 v{CA+k}, 0")
    if pre in ("full", "ld"):
        a("s_and_b32 s4, s2, 0x78")
        a("s_cbranch_scc1 L_h_nopre")
        a("v_lshlrev_b32 v12, 2, v0")
        a("v_mov_b32 v13, 0")
        a("s_mov_b32 exec_hi, 0")
        if pre == "full": a("buffer_store_dword v13, v12, s[56:59], s46 offen sc1")
        else: a("buffer_load_dword v23, v12, s[56:59], s46 offen")
        a("s_mov_b64 exec, -1")
        a("L_h_nopre:")
    if pre == "st0":
        a("s_and_b32 s4, s2, 0x18")
        a("s_cbranch_scc1 L_h_nopre")
        a("s_waitcnt vmcnt(0)")
        setexec(0x000f000f, 0x000f000f)
        a("buffer_store_short v22, v20, s[56:59], s46 offen")
        a("s_mov_b64 exec, -1")
        a("L_h_nopre:")
    stamp(3)
    L = a.label("L_nt"); D = a.label("L_ntd")
    a(f"s_mov_b32 s60, {spin_limit}")
    a(f"{L}:")
    refresh()
    a(f"s_cmp_lg_u32 s97, {BIG}")
    a(f"s_cbranch_scc1 {D}")
    a("s_sleep 4")
    a("s_sub_u32 s60, s60, 1")
    a(f"s_cbranch_scc0 {L}")
    a(f"{D}:")
    light_test()
    a("s_cselect_b32 s10, 2, 6")
    a("s_add_u32 s10, s10, s97")
    a("s_lshl_b32 s10, s10, 2")
    a("s_mov_b32 s11, 0")
    need("s10", sleep=2)
    a("s_setprio 2")
    a("L_h_step:")
    a("s_and_b32 s4, s10, 31")
    a("s_lshl_b32 s4, s4, 12")
    for u in range(4): a(f"v_add_u32 v{24+u}, s4, v{28+u}")
    a(f"ds_read_b128 v[{HF}:{HF+3}], v14 offset:{HL}")
    a("v_add_u32 v14, 64, v14")
    a("s_add_u32 s10, s10, 1")
    need("s10")
    stamp(4)
    for u in range(4):
        for t in range(2):
            d = 32 + 4 * u + 2 * t
            a(f"ds_read_b64_tr_b16 v[{d}:{d+1}], v{24+u} offset:{t*2048}")
    for u in range(4):
        if not (stamps or probe or leak): a(f"s_waitcnt lgkmcnt({6-2*u})")
        elif u == 0: a("s_waitcnt lgkmcnt(0)")
        a(f"v_mfma_f32_16x16x32_bf16 v[{CA+4*u}:{CA+4*u+3}], v[{32+4*u}:{35+4*u}], v[{HF}:{HF+3}], v[{CA+4*u}:{CA+4*u+3}]")
    a("s_add_u32 s11, s11, 1")
    a("s_cmp_lt_u32 s11, 7")
    a("s_cbranch_scc1 L_h_step")
    for k in range(4): a(f"v_cndmask_b32 v{CA+k}, v{CA+k}, v{CA+4+k}, s[8:9]")
    for k in range(4): a(f"v_cndmask_b32 v{CA+8+k}, v{CA+8+k}, v{CA+12+k}, s[8:9]")
    for k in range(4): a(f"v_cndmask_b32 v{CA+k}, v{CA+k}, v{CA+8+k}, s[6:7]")
    apply_tag(CA)
    setexec(0x000f000f, 0x000f000f)
    a(f"buffer_store_dwordx4 v[{CA}:{CA+3}], v21, s[48:51], s15 offen sc1")
    a("s_mov_b64 exec, -1")
    a("s_setprio 0")
    stamp(5)
    if side is None: a("s_and_b32 s4, s2, 0x18")
    else:
        a(f"s_xor_b32 s4, s2, {4 * side}")
        a("s_and_b32 s4, s4, 12")
    a("s_cbranch_scc1 L_hend")
    if pre == "st":
        a("s_waitcnt vmcnt(0)")
        setexec(0x000f000f, 0x000f000f)
        a("buffer_store_short v22, v20, s[56:59], s46 offen")
        a("s_mov_b64 exec, -1")
    def f_math():
        treduce4(96)
        emit(row_list("v_add_f32", 96, (4, 8)))
        bf16r(96, 96)
        silu_bf16(96, 96, 12)
        a("v_lshlrev_b32 v22, 16, v22")
    if fat:
        a("s_add_u32 s10, s10, 8")
        need("s10", sleep=1, count=False)
        a(f"s_mov_b32 s60, {spin_limit}")
        def watch(L, lim):
            a(f"{L}:")
            for k in range(4): a(f"s_load_dword s{28+k}, s[52:53], {256*k} glc")
            a("s_sub_u32 s60, s60, 1")
            a("s_cselect_b32 s5, 0, -1")
            a("s_waitcnt lgkmcnt(0)")
            a("s_add_u32 s28, s28, s29")
            a("s_add_u32 s30, s30, s31")
            a("s_sub_u32 s28, s47, s28")
            a("s_sub_u32 s28, s28, s30")
            a("s_and_b32 s28, s28, s5")
            if lim: a(f"s_cmp_gt_u32 s28, {lim}")
            a(f"s_cbranch_scc1 {L}")
        watch("L_h_most", 64 - fat)
        a("buffer_load_dwordx4 v[96:99], v19, s[48:51], s45 offen sc1")
        a("s_cmp_eq_u32 s28, 0")
        a("s_cbranch_scc1 L_h_go")
        watch("L_h_all", 0)
        a("L_h_go:")
    elif flate:
        lds_spin(GCNT, 4, 12, 1)
        if pre == "st2":
            a("s_waitcnt vmcnt(0)")
            setexec(0x000f000f, 0x000f000f)
            a("buffer_store_short v22, v20, s[56:59], s46 offen")
            a("s_mov_b64 exec, -1")
        a("buffer_load_dwordx4 v[96:99], v19, s[48:51], s45 offen sc1")
    else:
        a("s_add_u32 s10, s10, 8")
        need("s10", sleep=1)
        L = a.label("L_f"); D = a.label("L_fd")
        a(f"s_mov_b32 s60, {spin_limit}")
        a(f"{L}:")
        a("buffer_load_dwordx4 v[96:99], v19, s[48:51], s45 offen sc1")
        a("s_waitcnt vmcnt(0)")
        tag_check([96], 12)
        retry_masked(L, D, 2)
        stamp(12)
        f_math()
    if fat: pass
    elif sig2:
        a(f"s_mov_b32 s60, {spin_limit}")
        if w2s:
            def wset(r):
                for k in range(4): a(f"s_load_dword s{r+k}, s[52:53], {256*k} glc")
            def wsum(r):
                a("s_waitcnt lgkmcnt(4)")
                a(f"s_add_u32 s4, s{r}, s{r+1}")
                a(f"s_add_u32 s5, s{r+2}, s{r+3}")
                a("s_add_u32 s4, s4, s5")
            wset(28)
            a(f"s_sleep {w2s}")
            a("L_h_watch2:")
            wset(24)
            wsum(28)
            a("s_cmp_eq_u32 s4, s47")
            a("s_cbranch_scc1 L_h_go")
            wset(28)
            a("s_sub_u32 s60, s60, 1")
            a("s_cbranch_scc1 L_h_go")
            wsum(24)
            a("s_cmp_lg_u32 s4, s47")
            a("s_cbranch_scc1 L_h_watch2")
            a("s_branch L_h_go")
        a("L_h_watch:")
        for k in range(4): a(f"s_load_dword s{28+k}, s[52:53], {256*k} glc")
        a("s_sub_u32 s60, s60, 1")
        a("s_cbranch_scc1 L_h_go")
        a("s_waitcnt lgkmcnt(0)")
        a("s_add_u32 s28, s28, s29")
        a("s_add_u32 s30, s30, s31")
        a("s_add_u32 s28, s28, s30")
        a("s_cmp_lg_u32 s28, s47")
        a("s_cbranch_scc1 L_h_watch")
        a("L_h_go:")
    else:
        lds_spin(OCNT, 4, 12, 1)
    def s_loads():
        for i in range(4):
            a(f"buffer_load_dwordx4 v[{80+4*i}:{83+4*i}], v18, s[48:51], s{20+i} offen sc1")
    s_loads()
    stamp(6)
    if flate:
        L = a.label("L_f"); D = a.label("L_fd")
        a(f"s_mov_b32 s60, {spin_limit}")
        a("s_waitcnt vmcnt(4)")
        a("s_branch L_f_chk")
        a(f"{L}:")
        a("buffer_load_dwordx4 v[96:99], v19, s[48:51], s45 offen sc1")
        a("s_waitcnt vmcnt(0)")
        a("L_f_chk:")
        tag_check([96], 12)
        retry_masked(L, D, 0)
        if lite == 2: a(f"s_sub_u32 s82, {spin_limit + 1}, s60")
        f_math()
        stamp(11)
    a(f"s_mov_b32 s60, {spin_limit}")
    a("L_s_chk:")
    tl = tag_list([80, 84, 88, 92], 12)
    a("s_waitcnt vmcnt(3)")
    emit(tl[0:4])
    a("s_waitcnt vmcnt(2)")
    emit(tl[4:8])
    for k in range(4): a(f"v_add_f32 v{100+k}, v{80+k}, v{84+k}")
    a("s_waitcnt vmcnt(1)")
    emit(tl[8:12])
    for k in range(4): a(f"v_add_f32 v{100+k}, v{100+k}, v{88+k}")
    a("s_waitcnt vmcnt(0)")
    for k in range(4): a(f"v_add_f32 v{100+k}, v{100+k}, v{92+k}")
    red = ["v_permlane32_swap_b32 v100, v102", "v_permlane32_swap_b32 v101, v103", "v_add_f32 v100, v100, v102", "v_add_f32 v101, v101, v103",
           "v_permlane16_swap_b32 v100, v101", "v_add_f32 v100, v100, v101"] + row_list("v_add_f32", 100, (4, 8))
    a(tl[12])
    emit(interleave(red, tl[13:] + join_list(12), {3: 2, 5: 2, 6: 1}))
    a("v_cmp_ne_u32 vcc, 0, v12")
    bf16r(100, 100)
    a("v_mul_f32 v100, v100, v96")
    a("s_cbranch_vccnz L_s_again")
    a("L_s_done:")
    if lite == 2: a(f"s_sub_u32 s84, {spin_limit + 1}, s60")
    if padend:
        a("L_padend:")
        a("s_memrealtime s[70:71]")
        a("s_waitcnt lgkmcnt(0)")
        a("s_sub_u32 s70, s70, s64")
        a(f"s_cmp_lt_u32 s70, {padend}")
        a("s_cbranch_scc1 L_padend")
    stamp(13)
    bf16r(100, 100)
    a("v_add_f32 v100, v100, v22")
    a("v_cvt_pk_bf16_f32 v80, v100, v100")
    setexec(0x000f000f, 0x000f000f)
    if leak:
        a("s_cmp_lg_u32 s95, 0")
        a("s_cselect_b32 s58, 0, s58")
    a(f"buffer_store_short v80, v20, s[56:59], s46 offen{outsc}")
    if ackst: a("s_waitcnt vmcnt(0)")
    stamp(14)
    if not eearly:
        a("s_cmp_eq_u32 s2, 0")
        a("s_cbranch_scc0 L_hend")
        a("s_mov_b64 exec, 1")
        a(f"s_mov_b32 s4, {EPOCH}")
        a(f"buffer_store_dword v{TG}, v0, s[48:51], s4 offen{outsc}")
    if leak:
        a("v_mov_b32 v12, 0x600df00d")
        a("buffer_store_dword v12, v0, s[48:51], s4 offen offset:4")
    a("L_hend:")
    dump_stamps(12, 13)
    if late is not None:
        a("s_mov_b64 exec, 0xff")
        a("s_lshl_b32 s4, s2, 7")
        a("s_add_u32 s4, s4, 0x800000")
        a(f"buffer_store_dwordx4 v[8:11], v6, s[48:51], s4 offen {late}")
    a("s_endpgm")

    a("L_s_again:")
    a("s_sub_u32 s60, s60, 1")
    a("s_cbranch_scc1 L_s_done")
    a("s_mov_b64 exec, vcc")
    s_loads()
    a("s_mov_b64 exec, -1")
    a("s_branch L_s_chk")

    role[0] = "T"
    a("L_ticket:")
    assert two
    a("s_cmp_lg_u32 s3, 6")
    a("s_cbranch_scc1 L_t_noent")
    pool_id(11)
    pool_member(6)
    if two:
        assert npool == 4 and dyn % 2 == 0 and lex % 2 == 0
        light_test()
        a(f"s_cselect_b32 s9, {lex // 2}, 0")
        a(f"s_add_u32 s8, s9, {dyn // 2}")
        a("v_subrev_u32 v15, s8, v0")
        a("v_cmp_gt_u32 s[100:101], s8, v0")
        a("v_cndmask_b32 v28, v15, v0, s[100:101]")
        a("s_lshl_b32 s4, s9, 4")
        a("s_sub_u32 s6, s6, s4")
        a("v_lshl_add_u32 v15, v28, 4, s6")
        a("s_bfe_u32 s4, s2, 0x10002")
        a(f"s_add_u32 s4, s4, {mem * dyn // 2}")
        a("v_lshl_add_u32 v31, v28, 1, s4")
        a("v_cmp_gt_u32 vcc, s9, v28")
        a("v_cndmask_b32 v15, v15, v31, vcc")
        a(f"s_mul_i32 s6, s11, {prot}")
        a("v_lshl_add_u32 v15, v15, 1, s6")
        a("v_and_b32 v15, 255, v15")
        a("s_lshl_b32 s7, s11, 21")
        a("v_lshl_add_u32 v15, v15, 13, s7")
        a("v_cndmask_b32 v28, 4, 8, s[100:101]")
        a("v_or_b32 v15, v15, v28")
        a("s_lshl_b32 s9, s9, 1")
    a("v_or_b32 v15, 1, v15")
    a("v_lshl_add_u32 v14, v0, 2, v1")
    if lex:
        a(f"s_add_u32 s9, s9, {dyn}")
        a("s_bfm_b64 exec, s9, 0")
    else:
        a(f"s_mov_b64 exec, {(1 << dyn) - 1}")
    a(f"ds_write_b32 v14, v15 offset:{TQ}")
    a("s_mov_b64 exec, -1")
    a("L_t_noent:")
    if otouch:
        a("s_cmp_lg_u32 s3, 7")
        a("s_cbranch_scc1 L_t_notouch2")
        need(otouch[0], sleep=8, count=False)
        a(f"s_mul_i32 s4, s2, {RSO}")
        a(f"s_add_u32 s4, s4, {OP}")
        if otouch[1] == "r":
            a("v_lshlrev_b32 v14, 7, v0")
            a("s_mov_b32 exec_hi, 0")
            a("buffer_load_dword v17, v14, s[48:51], s4 offen")
            a("s_mov_b64 exec, -1")
        else:
            for k in range(4): a(f"v_not_b32 v{20+k}, s13")
            for k in range(4): a(f"buffer_store_dwordx4 v[20:23], v6, s[48:51], s4 offen offset:{1024*k} sc1")
        a("L_t_notouch2:")
    pool_id(11)
    if stouch:
        a("s_cmp_lg_u32 s3, 7")
        a("s_cbranch_scc1 L_t_notouch")
        k = [64]
        def tch(p, off, imm=0):
            if imm: a(f"s_add_u32 s{off}, s{off}, {imm}")
            a(f"s_load_dword s{k[0]}, s[{p}:{p+1}], s{off}")
            k[0] += 1
        if "g" in stouch:
            a(f"s_mul_i32 s6, s14, {256*7168}")
            tch(28, 6); tch(30, 6); tch(28, 6, 255 * 7168); tch(30, 6)
        if "k" in stouch:
            a("s_lshl_b32 s6, s11, 21")
            tch(18, 6); tch(20, 6)
        if "t" in stouch:
            if "d" in stouch: need(40, sleep=8, count=False)
            wd_row(6)
            a(f"s_mul_i32 s6, s6, {224*2048}")
            tch(32, 6); tch(32, 6, 223 * 2048)
            rr_cc(6, 7)
            a("s_lshl_b32 s6, s6, 17")
            tch(24, 6)
        if "w" in stouch:
            a(f"s_mov_b32 s6, {0x280000}")
            tch(38, 6)
        a("s_waitcnt lgkmcnt(0)")
        a("L_t_notouch:")
    if kmap in "DEFGH":
        if kmap == "F":
            a("s_lshr_b32 s9, s11, 1")
            a("s_lshl_b32 s12, s9, 4")
            a("s_lshl_b32 s9, s9, 22")
            a("s_mov_b32 s8, s11")
        else:
            a(f"s_mul_i32 s12, s11, {prot}")
            a("s_lshl_b32 s9, s11, 21")
        a(f"s_add_u32 s12, s12, {mem*dyn + 2*lex}")
        a("s_or_b32 s9, s9, 1")
        if kmap == "H":
            a("s_and_b32 s8, s11, 3")
            a("s_and_b32 s9, s11, 12")
    elif kmap == "C":
        a(f"s_and_b32 s12, s11, {npool-1}")
        a("s_lshr_b32 s9, s2, 6")
        a(f"s_mul_i32 s4, s9, {rot}")
        a("s_add_u32 s12, s12, s4")
        a("s_lshl_b32 s12, s12, 13")
        a(f"s_add_u32 s12, s12, {64*dyn*8192 + 1}")
        a("s_lshl_b32 s9, s9, 23")
    else:
        a(f"s_mul_i32 s12, s11, {reg*8192}")
        a(f"s_add_u32 s12, s12, {mem*dyn*8192 + 1}")
    a(f"s_mul_i32 s11, s11, {cstride}")
    a(f"s_add_u32 s11, s11, {TCN}")
    a("s_add_u32 s56, s38, s11")
    a("s_addc_u32 s57, s39, 0")
    a(f"s_add_u32 s10, s3, {dyn - 6}")
    if lex:
        light_test()
        a(f"s_cselect_b32 s4, {lex}, 0")
        a("s_add_u32 s10, s10, s4")
    if early_t:
        a("s_waitcnt lgkmcnt(0)")
        a("s_add_u32 s13, s13, 0x01010101")
        a(f"s_xor_b32 s14, s13, {TAGX}")
        a("v_mov_b32 v12, 1")
        a("s_mov_b64 exec, 1")
        a(f"ds_add_u32 v1, v12 offset:{QCNT}")
        pool_member(6)
        a("s_add_u32 s6, s6, s3")
        a("s_cmp_lg_u32 s6, 6")
        a("s_cbranch_scc1 L_t_noinit")
        a("v_mov_b32 v20, 0")
        a("v_mov_b32 v21, s13")
        a("v_mov_b32 v22, s14")
        a("v_mov_b32 v23, s13")
        a("buffer_store_dwordx4 v[20:23], v0, s[48:51], s11 offen sc1")
        a("L_t_noinit:")
        a("s_mov_b64 exec, -1")
        a(f"s_sub_u32 s11, s10, {ahead}")
        a("s_max_i32 s11, s11, 0")
        light_test()
        a("s_cselect_b32 s4, 4, 14")
        need("s4", sleep=4, count=False)
        a(f"s_mov_b32 s60, {spin_limit}")
        a("L_t_rdy:")
        a("s_load_dwordx4 s[28:31], s[56:57], 0 glc")
        a("s_sub_u32 s60, s60, 1")
        a("s_cbranch_scc1 L_t_next")
        a("s_waitcnt lgkmcnt(0)")
        a("s_xor_b32 s29, s29, s13")
        a("s_xor_b32 s30, s30, s14")
        a("s_xor_b32 s31, s31, s13")
        a("s_or_b32 s29, s29, s30")
        a("s_or_b32 s29, s29, s31")
        a("s_cbranch_scc0 L_t_next")
        a("s_sleep 8")
        a("s_branch L_t_rdy")
    else:
        lds_spin(QCNT, 4 if eearly else 5, 12, 8)
    if eearly:
        a("s_and_b32 s4, s2, 63")
        a("s_lshl_b32 s4, s4, 3")
        a("s_or_b32 s4, s4, s3")
        a("s_cmp_lg_u32 s4, 7")
        a("s_cbranch_scc1 L_t_next")
        a("s_mov_b32 s15, 1")
        a("s_atomic_add s15, s[36:37], 64 glc")
        a("s_add_u32 s13, s13, 0x01010101")
        a("v_mov_b32 v15, s13")
        a(f"s_mov_b32 s4, {EPOCH}")
        a("s_waitcnt lgkmcnt(0)")
        a("s_and_b32 s15, s15, 3")
        a("s_cmp_lg_u32 s15, 3")
        a("s_cbranch_scc1 L_t_next")
        a("s_mov_b64 exec, 1")
        a("buffer_store_dword v15, v0, s[48:51], s4 offen sc1")
        a("s_mov_b64 exec, -1")
    if touch:
        a("s_cmp_eq_u32 s3, 6")
        a("s_cselect_b64 s[40:41], s[32:33], s[24:25]")
        a("s_cselect_b32 s42, 7340032, s43")
        a("s_cselect_b32 s42, s42, 8388608")
        a("s_cselect_b64 exec, 0x7f, 3")
        rr_cc(6, 7)
        a("s_lshl_b32 s6, s6, 17")
        a("s_lshr_b32 s7, s2, 4")
        a(f"s_mul_i32 s7, s7, {224*2048}")
        a("s_cmp_eq_u32 s3, 6")
        a("s_cselect_b32 s6, s7, s6")
        a("v_lshlrev_b32 v14, 16, v0")
        a("buffer_load_dword v17, v14, s[40:43], s6 offen nt")
        a("s_mov_b64 exec, -1")
    a("L_t_next:")
    a(f"s_sub_u32 s11, s10, {ahead - 1}")
    lds_spin(STARTED, "s11", 12, tsleep)
    a("s_mov_b32 s15, 1")
    a("s_atomic_add s15, s[56:57], 0 glc")
    a("s_lshl_b32 s4, s10, 2")
    a("v_add_u32 v14, s4, v1")
    a("s_waitcnt lgkmcnt(0)")
    if not empt: a(f"s_min_u32 s15, s15, {nshared-1}")
    if kmap in "DEFGH":
        if kmap == "H":
            a("s_add_u32 s5, s15, s8")
            a("s_and_b32 s5, s5, 3")
            a("s_or_b32 s5, s5, s9")
            a("s_and_b32 s4, s15, -4")
            a("s_add_u32 s4, s4, s8")
            a(f"s_add_u32 s4, s4, {mem*dyn}")
            a("s_lshl4_add_u32 s4, s5, s4")
        else:
            a("s_add_u32 s4, s15, s12")
        a("s_and_b32 s4, s4, 255")
        if kmap == "F":
            a("s_lshr_b32 s5, s4, 7")
            a("s_xor_b32 s5, s5, s8")
            a("s_and_b32 s5, s5, 1")
            a("s_lshl_b32 s4, s4, 1")
            a("s_add_u32 s4, s4, s5")
        a("s_lshl_b32 s4, s4, 13")
        if kmap == "H":
            a("s_lshl_b32 s5, s5, 21")
            a("s_add_u32 s4, s4, s5")
            a("s_or_b32 s4, s4, 1")
        else:
            a("s_add_u32 s4, s4, s9")
    else:
        a(f"s_lshl_b32 s4, s15, {13 + (lgp if kmap == 'C' else 0)}")
        a("s_add_u32 s4, s4, s12")
    if kmap == "C":
        a("s_and_b32 s4, s4, 0x7fffff")
        a("s_add_u32 s4, s4, s9")
    if ztab:
        tab = sum(g << (4 * i) for i, g in enumerate(ztab))
        a(f"s_sub_u32 s5, s15, {zone}")
        a("s_and_b32 s5, s5, 0x1c")
        a(f"s_lshr_b32 s5, {tab}, s5")
        a("s_and_b32 s5, s5, 15")
        a("s_lshl_b32 s5, s5, 4")
        a("s_or_b32 s4, s4, s5")
    if wide:
        a(f"s_cmp_ge_u32 s15, {max(0, zone - wide[1])}")
        a("s_cselect_b32 s5, 16, 0")
        a("s_or_b32 s4, s4, s5")
    if empt:
        a(f"s_cmp_lt_u32 s15, {nshared}")
        a("s_cselect_b32 s4, s4, 0")
    a(f"s_add_u32 s10, s10, {ntw}")
    a(f"s_cmp_lt_u32 s15, {zone}")
    a("s_cselect_b32 s5, 0, 2")
    a("v_mov_b32 v15, s4")
    a("v_or_b32 v15, s5, v15")
    a(f"ds_write_b32 v14, v15 offset:{TQ}")
    a("s_cbranch_scc1 L_t_next")
    if direct: sig2 = False
    if sig1 is not None or sig2:
        L = a.label("L_nt"); D = a.label("L_ntd")
        a(f"s_mov_b32 s60, {spin_limit}")
        a(f"{L}:")
        refresh()
        a(f"s_cmp_lg_u32 s97, {BIG}")
        a(f"s_cbranch_scc1 {D}")
        a("s_sleep 2")
        a("s_sub_u32 s60, s60, 1")
        a(f"s_cbranch_scc0 {L}")
        a(f"{D}:")
        light_test()
        a("s_cselect_b32 s10, 2, 6")
        a("s_add_u32 s10, s10, s97")
        a("s_lshl_b32 s10, s10, 2")
        a("s_cmp_eq_u32 s3, 6")
        a("s_cbranch_scc1 L_t_zero")
    if rk:
        pool_id(6)
        a("s_lshr_b32 s4, s6, 2")
        a("s_lshl_b32 s7, s4, 14")
        if not rkgrp:
            a("s_and_b32 s5, s6, 3")
            a("s_lshl_b32 s8, s5, 8")
            a("s_add_u32 s7, s7, s8")
        a(f"s_add_u32 s7, s7, {AC1}")
        a("s_add_u32 s56, s38, s7")
        a("s_addc_u32 s57, s39, 0")
        a("s_mov_b32 s15, 1")
        a(f"s_add_u32 s11, s10, {rkat & 0xffffffff}")
        need("s11", sleep=1)
        a("s_atomic_add s15, s[56:57], 0 glc")
        tab = sum(g << (2 * i) for i, g in enumerate(rk))
        a(f"s_mov_b32 s6, {tab}")
        a("s_waitcnt lgkmcnt(0)")
        if rkgrp: a("s_lshr_b32 s15, s15, 2")
        a("s_lshl_b32 s15, s15, 1")
        a("s_lshr_b32 s6, s6, s15")
        a("s_and_b32 s6, s6, 3")
        a("v_mov_b32 v15, s6")
        a(f"ds_write_b32 v1, v15 offset:{GATE}")
    if sig1 is not None:
        pool_id(6)
        a("s_lshr_b32 s4, s6, 2")
        a("s_and_b32 s5, s6, 3")
        a("s_lshl_b32 s7, s4, 14")
        a("s_lshl_b32 s8, s5, 8")
        a("s_add_u32 s7, s7, s8")
        a(f"s_add_u32 s7, s7, {AC1}")
        a("s_add_u32 s56, s38, s7")
        a("s_addc_u32 s57, s39, 0")
        a("s_mov_b32 s15, 1")
        a("s_sub_u32 s11, s10, 2")
        need("s11", sleep=1)
        lds_spin(PCNT, sig1, 12, 0)
        for i in range(16): a(f"s_atomic_add s15, s[56:57], {1024*i}")
    if sig1 is not None or sig2:
        a("s_endpgm")
        a("L_t_zero:")
        rr_cc(6, 7)
    if sig1 is not None:
        a("s_lshl_b32 s5, s6, 10")
        a(f"s_add_u32 s5, s5, {AC1}")
        a("s_add_u32 s56, s38, s5")
        a("s_addc_u32 s57, s39, 0")
        a("v_mov_b32 v15, 1")
        a(f"s_add_u32 s11, s10, {s1from}")
        need("s11", sleep=1)
        L = a.label("L_w"); D = a.label("L_wd")
        a(f"s_mov_b32 s60, {spin_limit}")
        a(f"{L}:")
        for k in range(4): a(f"s_load_dword s{28+k}, s[56:57], {256*k} glc")
        a("s_waitcnt lgkmcnt(0)")
        a("s_add_u32 s28, s28, s29")
        a("s_add_u32 s30, s30, s31")
        a("s_add_u32 s28, s28, s30")
        a("s_cmp_eq_u32 s28, 64")
        a(f"s_cbranch_scc1 {D}")
        a("s_sub_u32 s60, s60, 1")
        a(f"s_cbranch_scc0 {L}")
        a(f"{D}:")
        a(f"ds_write_b32 v1, v15 offset:{GO}")
    if sig2:
        a(f"s_lshl_b32 s7, s7, {ash}")
        a("s_lshr_b32 s5, s2, 6")
        a("s_lshl_b32 s5, s5, 8")
        a("s_add_u32 s7, s7, s5")
        a(f"s_add_u32 s7, s7, {AC2}")
        a("v_mov_b32 v15, 1")
        ac_lane(14)
        if ssend:
            a("s_add_u32 s56, s38, s7")
            a("s_addc_u32 s57, s39, 0")
            a("s_mov_b32 s15, 1")
        a("s_add_u32 s10, s10, 15")
        need("s10", sleep=1)
        if tprio: a(f"s_setprio {tprio}")
        lds_spin(OCNT if sig2late else GCNT, gneed, 12, 0)
        if ssend:
            for i in range(16): a(f"s_atomic_add s15, s[56:57], {1024*i}")
        else:
            a("s_mov_b64 exec, 0xffff")
            a("buffer_atomic_add v15, v14, s[48:51], s7 offen sc1")
        if lite == 2:
            stamp(1)
            dump_stamps(12, 13)
    a("L_end:")
    a("s_endpgm")
    a("L_codeend:")
    name = NAME + "_kernel"
    hdr = open("cdna_kernels/" + NAME + ".s.ref").read().split("; Override launch")[0]
    txt = hdr + header([f"@launch grid=(256,1,1) block=({64*(6+ntw)},1,1) lds={LDS_BYTES}"]) + (DOC if comments else "") + kernel_begin(name) + a.text() + rodata() + \
        kernel_desc(name, 184, 102, extra="  .amdhsa_float_denorm_mode_32 3\n")
    return txt

BASE = dict(gate=13, sig2=True, dyn=12, lex=2, empt=12, flate=True, qstart=32, qlight=24, hstart=64, grow=(8, 32), two=True, dmap=True, fw=(1, 1), cmap="qu",
            oneline=True, eearly=True, fat=48, tprio=3, side=0, apar=0)
if __name__ == "__main__":
    open("final.s", "w").write(gen(comments=True, **BASE))
    V = {"k44": {}, "k44g12": dict(gate=12), "k44g11": dict(gate=11), "k44g14": dict(gate=14), "k44e": dict(echk=True), "k44o0": dict(osleep=0), "k44g3": dict(gneed=3)}
    for k, v in V.items():
        v = dict(BASE, **v)
        open(k + ".s", "w").write(gen(**v))
        open(k + "_l2.s", "w").write(gen(lite=2, **v))
        open(k + "_lt.s", "w").write(gen(lite=True, **v))
```

```python
import sys
from asmlib import *

QP, GP, CNT, OCN, EPOCH, SP, FP, OP, STAMP = 0, 0x10000, 0x30000, 0x34000, 0x3F000, 0x40000, 0xD0000, 0x100000, 0x400000
MISC = 0x20000
TQ, STARTED, GATE, GCNT, PCNT = 0x1100, 0x21C, 0x220, 0x224, 0x228
POST, PROG, QCNT, OCNT, GO, ZER, XN, HL, OL, QL = 0, 0x200, 0x210, 0x214, 0x218, 0x240, 0x300, 0x500, 0x700, 0x800
QROW = 272
SCR = 0x1700
SB = 0x1B00
LDS_BYTES = MISC + 0x3B00
TCN, AC1, AC2 = 0x340000, 0x390000, 0x3A0000
LOG2E = 0x3fb8aa3b
SCALE = 0x3db504f3
DPP = "row_mask:0xf bank_mask:0xf"
BIG = -1
TAGX = 0x5ac3a569

DOC = """
; out = x + (attn(LN(x)) @ wo) * silu(swiglu(LN(x))), one launch, one 8-wave workgroup per CU (all 256 are resident).
;
; Every input byte is streamed once, HBM -> LDS ring (8 slots x 16 KB), by wave 0 in this order:
;
; Hand-offs between workgroups go through d_ws with write-through stores (sc1) and sc1 loads:
;   f partials [16][1024], all fp32. Each 16-byte granule carries this launch's tag in the low byte of its words and
;   is only accepted together with the neighbours stored by the same instruction. The tag is the word found at
;   d_ws + 0x3f000 plus 0x01010101; it replaces that word once every workgroup has read it, so stale hand-offs never match.
;   The counters in d_ws (tickets, arrival hints) are reset inside the launch before the q hand-off that precedes their use.
"""

def interleave(chain, fill, gaps):
    out = []; fill = list(fill)
    for i, x in enumerate(chain):
        out.append(x)
        for _ in range(gaps.get(i, 0)):
            if fill: out.append(fill.pop(0))
    return out + fill

def gen(nt="nt", stamps=False, spin_limit=2000000, win=24, dyn=10, npool=4, outsc="", gate=10, skew=128, vtick=False,
        fsleep=0, osleep=1, qsleep=4, probe=None, cgate=False, early=True, ahead=2, ntw=2, cstride=256, late=None, gtab=None, ztab=None, wtab=None, spw=False, opw=False, fatom=False, leak=None, fine=False, wins=None, csleep=0, pace=0, pnop=0, cpf=True, sig1=None, sig2=False, touch=False, sig2late=False, lite=False, half=False, dup2=False, kmap='E', rot=0, early_t=False, empt=0, spos=0, abl='', win1=None, n1=9, hstart=0, qstart=0, sigpos='chk', gneed=4, flate=False, qlight=None, lex=0, gumix=False, w2=False, rk=None, rk0=4, rkgrp=False, rkat=-5, grow=None, tsleep=1, shardrd=False, s1pos='last', s1from=9, two=False, prot=16, dmap=False, fw=None, stouch=None, ofirst=True, pfn=None, comments=False, otouch=None, ost='sc1', old_='sc1', sched=None, wide=None, cmap='', ush=28, gui=False, lv=None, pre=None, ackst=False, delta=None, oneline=False, eearly=False, padend=0, w2s=0, fat=0, tprio=0, echk=False, ssend=False, direct=False, side=None, apar=None, spar=None, split=False, kdyn=None, kahead=2, first3=0, tp0=0, hp=0):
    a = Asm()
    a.comments = comments
    sw = 1 if spw else 0
    ow = 1 if opw else 0
    RS = 4096 + skew
    RSS = (4096 << sw) + skew
    SP, AC2 = globals()["SP"], globals()["AC2"]
    if spar is not None: SP = 0x600000 + 8192 * spar; RSS = 16384 + 128
    if apar is not None: AC2 += 8192 * apar
    ash = 15 if apar is not None else 14
    def ac_lane(d):
        a(f"v_lshlrev_b32 v{d}, 10, v0")
        if apar is not None:
            a(f"v_and_b32 v12, 0x2000, v{d}")
            a(f"v_add_u32 v{d}, v{d}, v12")
    RSO = (4096 << ow) + skew
    NT = " " + nt if nt else ""
    role = ["-"]
    def stamp(k):
        if delta is not None and probe and (role[0], k) == (probe[0], delta): a("s_memrealtime s[74:75]")
        if lite and (k == 0 or (role[0], k) == ("H", 14) or (lite == 2 and (role[0], k) in (("C", 13), ("L", 6), ("H", 6), ("H", 13), ("T", 1), ("H", 11)))): a(f"s_memrealtime s[{64+2*k}:{65+2*k}]")
        if stamps or (leak and (k == 0 or (role[0], k) in [x[:2] for x in leak])): a(f"s_memrealtime s[{64+2*k}:{65+2*k}]")
        if probe and (k == 0 or (role[0], k) == probe[:2]): a(f"s_memrealtime s[{64+2*min(k,1)}:{65+2*min(k,1)}]")
    def leak_out():
        if not leak: return
        mine = [(i, x) for i, x in enumerate(leak) if x[0] == role[0]]
        Ln = a.label("L_noleak")
        a("s_waitcnt lgkmcnt(0)")
        srd(48, 38, 268435456)
        a("s_mov_b64 exec, 1")
        a("s_cmp_eq_u32 s93, 0")
        a(f"s_cbranch_scc1 {Ln}")
        for i, x in mine:
            if len(x) > 2:
                Ls = a.label("L_lk")
                a(f"s_cmp_lg_u32 s3, {x[2]}")
                a(f"s_cbranch_scc1 {Ls}")
            a(f"s_and_b32 s4, s{64+2*x[1]}, 0x3fff")
            a("v_mov_b32 v12, s4")
            a("s_lshl_b32 s4, s2, 3")
            a(f"s_add_u32 s4, s4, {2*i + 0x500000}")
            a("buffer_store_short v12, v0, s[48:51], s4 offen")
            if len(x) > 2: a(f"{Ls}:")
        a(f"{Ln}:")
        if role[0] == "H":
            Ln = a.label("L_noleak")
            a("s_cmp_eq_u32 s95, 0")
            a(f"s_cbranch_scc1 {Ln}")
            srd(52, 34, 2048)
            a("s_lshl_b32 s4, s2, 3")
            a("s_add_u32 s5, s4, 0x500000")
            a("buffer_load_dwordx2 v[12:13], v0, s[48:51], s5 offen")
            a("s_waitcnt vmcnt(0)")
            a("buffer_store_dwordx2 v[12:13], v0, s[52:55], s4 offen")
            a(f"{Ln}:")
    def leak_flag():
        if not leak: return
        a(f"s_load_dword s95, s[38:39], {EPOCH+4}")
        a("s_load_dword s94, s[16:17], 0")
        a("s_waitcnt lgkmcnt(0)")
        a("s_cmp_lg_u32 s95, 0x600df00d")
        a("s_cselect_b32 s93, 1, 0")
        a("s_cselect_b32 s95, 0, 1")
        a("s_cmp_lg_u32 s94, 0x3c6e3d96")
        a("s_cselect_b32 s95, s95, 0")
        a("s_cmp_lg_u32 s94, 0x3a3abc25")
        a("s_cselect_b32 s95, s95, 0")
    def probe_pad():
        if not probe or probe[0] != role[0]: return
        def until(base, lim):
            L = a.label("L_pp")
            a(f"{L}:")
            a("s_sleep 1")
            a("s_memrealtime s[70:71]")
            a("s_waitcnt lgkmcnt(0)")
            a(f"s_sub_u32 s70, s70, {base}")
            a(f"s_cmp_lt_u32 s70, {lim}")
            a(f"s_cbranch_scc1 {L}")
        a("s_waitcnt lgkmcnt(0)")
        a("s_cmp_eq_u32 s67, -1")
        a("s_cselect_b32 s66, s64, s66")
        a("s_cselect_b32 s69, 1, 0")
        until("s64", 2200)
        a("s_not_b32 s72, s64")
        a("s_atomic_umax s72, s[36:37], 0")
        until("s64", 3200)
        a("s_load_dword s72, s[36:37], 0 glc")
        a("s_waitcnt lgkmcnt(0)")
        a("s_not_b32 s72, s72")
        if delta is None: a("s_sub_u32 s66, s66, s72")
        else:
            a("s_sub_u32 s66, s66, " + ("s74" if delta else "s64"))
            a("s_cmp_eq_u32 s69, 1")
            a("s_cselect_b32 s66, 0, s66")
        if len(probe) > 3:
            a("s_atomic_add s66, s[36:37], 128")
            until("s64", 4400)
            a("s_load_dword s66, s[36:37], 128 glc")
            a("s_waitcnt lgkmcnt(0)")
            a("s_lshr_b32 s66, s66, 8")
        if probe[2] < 0 and probe[1]:
            a("s_cmp_eq_u32 s69, 1")
            a("s_cbranch_scc1 L_end")
        a(f"s_mul_i32 s66, s66, {probe[2]}")
        a(f"s_add_u32 s68, s66, {6000 if probe[2] >= 0 else 20000}")
        if lv:
            srd(48, 38, 268435456)
            kind, sc = lv[:2]
            a("s_and_b32 s4, s2, 7"); a("s_lshr_b32 s5, s2, 5")
            if kind in ("cur",):
                a("s_lshr_b32 s6, s5, 1"); a("s_lshl_b32 s6, s6, 3"); a("s_or_b32 s6, s6, s4"); a("s_lshl_b32 s6, s6, 1")
                a("s_and_b32 s5, s5, 1"); a("s_add_u32 s6, s6, s5")
            else:
                a("s_lshr_b32 s6, s5, 2"); a("s_lshl_b32 s6, s6, 3"); a("s_or_b32 s6, s6, s4"); a("s_lshl_b32 s6, s6, 2")
                a("s_and_b32 s5, s5, 3"); a("s_add_u32 s6, s6, s5")
            a("s_lshr_b32 s7, s6, 2"); a("s_lshl_b32 s7, s7, 7"); a("s_and_b32 s6, s6, 3")
            a(f"s_lshl_b32 s8, s6, {3 if kind in ('cur', 'one') else 5}")
            a("s_add_u32 s7, s7, s8"); a("s_add_u32 s7, s7, 0x800000")
            a("v_and_b32 v13, 3, v0"); a("v_lshlrev_b32 v20, 5, v13"); a("v_lshl_add_u32 v20, v4, 1, v20")
            a("v_lshlrev_b32 v21, 2, v0"); a("v_lshlrev_b32 v22, 1, v0")
        until("s72", "s68")
        if lv:
            a("s_and_b32 s4, s2, 0x18")
            a("s_cbranch_scc1 L_end")
            if kind in ("cur", "one"):
                setexec(0x000f000f, 0x000f000f)
                a(f"buffer_store_short v0, v20, s[48:51], s7 offen {sc}")
                if len(lv) > 2:
                    a("s_cmp_lg_u32 s2, 0")
                    a("s_cbranch_scc1 L_end")
                    a(f"s_mov_b32 s7, {EPOCH + 0x80}")
                    a("s_mov_b32 exec_hi, 0")
                    a(f"s_mov_b32 exec_lo, {1 if lv[2] == 'p' else -1}")
                    a(f"buffer_store_dword v0, v21, s[48:51], s7 offen {lv[3]}")
            elif kind == "c32":
                a("s_mov_b64 exec, 0xff")
                a(f"buffer_store_dword v0, v21, s[48:51], s7 offen {sc}")
            elif kind == "s32":
                a("s_mov_b64 exec, 0xffff")
                a(f"buffer_store_short v0, v22, s[48:51], s7 offen {sc}")
            elif kind == "full":
                a("s_cmp_lg_u32 s6, 0")
                a("s_cbranch_scc1 L_end")
                a("s_mov_b32 exec_hi, 0")
                a(f"buffer_store_dword v0, v21, s[48:51], s7 offen {sc}")
    def dump_stamps(vt, va):
        probe_pad()
        leak_out()
        if not (stamps or (lite and role[0] == "H") or lite == 2): return
        if lite == 2 and role[0] != "H":
            a("s_sleep 127")
            if role[0] == "L":
                a("s_mov_b32 s3, 4")
                srd(48, 38, 268435456)
        a("s_waitcnt lgkmcnt(0)")
        a("s_mov_b64 exec, -1")
        a(f"v_mov_b32 v{vt}, 0")
        for k in range(16):
            a(f"v_writelane_b32 v{vt}, s{64+2*k}, {k}")
        a("s_lshl_b32 s4, s2, 3")
        a("s_add_u32 s4, s4, s3")
        a("s_lshl_b32 s4, s4, 6")
        a(f"s_add_u32 s4, s4, {STAMP}")
        a(f"v_lshlrev_b32 v{va}, 2, v0")
        a("s_mov_b64 exec, 0xffff")
        a(f"buffer_store_dword v{vt}, v{va}, s[48:51], s4 offen")
    def srd(d, p, n):
        a(f"s_mov_b64 s[{d}:{d+1}], s[{p}:{p+1}]")
        a(f"s_mov_b32 s{d+2}, {n}")
        a(f"s_mov_b32 s{d+3}, 0x20000")
    def setexec(lo, hi):
        a(f"s_mov_b32 exec_lo, {lo:#x}")
        a(f"s_mov_b32 exec_hi, {hi:#x}")
    def row_list(op, r, steps=(1, 2, 4, 8)):
        return [f"{op}_dpp v{r}, v{r}, v{r} row_ror:{k} {DPP}" for k in steps]
    def cross_list(op, r, t):
        return [f"v_mov_b32 v{t}, v{r}", f"v_permlane16_swap_b32 v{r}, v{t}", f"{op} v{r}, v{r}, v{t}",
                f"v_mov_b32 v{t}, v{r}", f"v_permlane32_swap_b32 v{r}, v{t}", f"{op} v{r}, v{r}, v{t}"]
    def emit(l):
        for x in l: a(x)
    def bf16r(d, s):
        a(f"v_cvt_pk_bf16_f32 v{d}, 0, v{s}")
    TG = 8
    def make_tag():
        a("s_add_u32 s13, s13, 0x01010101")
        a("s_movk_i32 s63, 0xff")
        a("v_bfe_i32 v12, v0, 0, 1")
        a(f"v_and_b32 v12, {TAGX}, v12")
        a(f"v_xor_b32 v{TG}, s13, v12")
        for k in range(1, 4): a(f"v_lshrrev_b32 v{TG+k}, {8*k}, v{TG}")
    def apply_tag(r, tags=None):
        for k in range(4): a(f"v_bfi_b32 v{r+k}, s63, v{tags[k] if tags else TG+k}, v{r+k}")
    def tag_list(grans, t, n=4):
        o = []
        for g in grans:
            for k in range(n):
                if not o: o.append(f"v_xor_b32 v{t}, v{g+k}, v{TG+k}")
                else: o.append(f"v_bitop3_b32 v{t}, v{t}, v{g+k}, v{TG+k} bitop3:0xf6")
        o.append(f"v_and_b32 v{t}, 0xff, v{t}")
        return o
    def join_list(t, quad=True):
        o = [f"v_or_b32_dpp v{t}, v{t}, v{t} quad_perm:[1,0,3,2] {DPP}"]
        if quad: o.append(f"v_or_b32_dpp v{t}, v{t}, v{t} quad_perm:[2,3,0,1] {DPP}")
        return o
    def tag_check(grans, t, quad=True):
        emit(tag_list(grans, t) + join_list(t, quad))
        a(f"v_cmp_ne_u32 vcc, 0, v{t}")
    def treduce4(r):
        a(f"v_permlane32_swap_b32 v{r}, v{r+2}")
        a(f"v_permlane32_swap_b32 v{r+1}, v{r+3}")
        a(f"v_add_f32 v{r}, v{r}, v{r+2}")
        a(f"v_add_f32 v{r+1}, v{r+1}, v{r+3}")
        a(f"v_permlane16_swap_b32 v{r}, v{r+1}")
        a(f"v_add_f32 v{r}, v{r}, v{r+1}")
    def retry_masked(L, D, sleep=1):
        a("s_and_b64 exec, exec, vcc")
        a(f"s_cbranch_execz {D}")
        if sleep: a(f"s_sleep {sleep}")
        a("s_sub_u32 s60, s60, 1")
        a(f"s_cbranch_scc0 {L}")
        a(f"{D}:")
        a("s_mov_b64 exec, -1")
    def silu_bf16(d, x, t):
        a(f"v_mul_f32 v{t}, 0xbfb8aa3b, v{x}")
        a(f"v_exp_f32 v{t}, v{t}")
        a(f"v_add_f32 v{t}, 1.0, v{t}")
        a(f"v_rcp_f32 v{t}, v{t}")
        a(f"v_mul_f32 v{t}, v{t}, v{x}")
        bf16r(d, t)
    def lds_spin(off, n, vt, sleep=1):
        L = a.label("L_spin")
        a(f"s_mov_b32 s60, {spin_limit}")
        if sleep:
            E = a.label("L_spe")
            a(f"s_branch {E}")
        a(f"{L}:")
        if sleep:
            a(f"s_sleep {sleep}")
            a(f"{E}:")
        a(f"ds_read_b32 v{vt}, v1 offset:{off}")
        a("s_sub_u32 s60, s60, 1")
        a("s_waitcnt lgkmcnt(0)")
        a(f"v_readfirstlane_b32 s61, v{vt}")
        a("s_cselect_b32 s61, -1, s61")
        a(f"s_cmp_lt_u32 s61, {n}")
        a(f"s_cbranch_scc1 {L}")
    def refresh():
        a(f"ds_read_b64 v[12:13], v1 offset:{POST}")
        a("s_waitcnt lgkmcnt(0)")
        a("v_readfirstlane_b32 s96, v12")
        a("v_readfirstlane_b32 s97, v13")
    def need(x, sleep=0, count=True):
        if role[0] == "C": sleep = csleep
        L = a.label("L_need"); D = a.label("L_got")
        a(f"s_cmp_ge_u32 s96, {x}")
        a(f"s_cbranch_scc1 {D}")
        a(f"s_mov_b32 s60, {spin_limit}")
        a(f"{L}:")
        if sleep: a(f"s_sleep {sleep}")
        a(f"ds_read_b64 v[12:13], v1 offset:{POST}")
        a("s_sub_u32 s60, s60, 1")
        a("s_waitcnt lgkmcnt(0)")
        a("v_readfirstlane_b32 s96, v12")
        if count: a("v_readfirstlane_b32 s97, v13")
        a("s_cselect_b32 s96, -1, s96")
        if count: a("s_cselect_b32 s97, 0, s97")
        a(f"s_cmp_lt_u32 s96, {x}")
        a(f"s_cbranch_scc1 {L}")
        a(f"{D}:")
    def light_test():
        a("s_and_b32 s4, s2, 63")
        a("s_cmp_ge_u32 s4, 56")
    def wq_col(d):
        if "q" in cmap:
            a(f"s_lshr_b32 s{d}, s2, 3")
            a("s_lshl_b32 s4, s2, 1")
            a("s_and_b32 s4, s4, 8")
            a(f"s_xor_b32 s{d}, s{d}, s4")
            a(f"s_xor_b32 s{d}, s{d}, 4")
            a(f"s_and_b32 s{d}, s{d}, 15")
            a("s_lshr_b32 s4, s2, 6")
            a(f"s_lshl4_add_u32 s{d}, s4, s{d}")
        else: a(f"s_lshr_b32 s{d}, s2, 2")
    def up_shift(d, c, unit):
        if "u" in cmap:
            a(f"s_mov_b32 s{d}, {ush * unit}")
            a(f"s_cmp_ge_u32 s{c}, {56 - ush}")
            a(f"s_cselect_b32 s{d}, {((ush - 56) * unit) & 0xffffffff}, s{d}")
        else: a(f"s_mov_b32 s{d}, 0")
    def gu_col(d):
        if "g" in cmap:
            a("s_lshr_b32 s4, s2, 6")
            a("s_bfe_u32 s5, s2, 0x10002")
            a("s_lshl1_add_u32 s4, s4, s5")
            a("s_mul_i32 s4, s4, 7")
            a("s_bfe_u32 s5, s2, 0x30003")
            a(f"s_add_u32 s{d}, s4, s5")
            return
        if gumix:
            a("s_lshr_b32 s4, s2, 6")
            a("s_and_b32 s5, s2, 60")
            a(f"s_add_u32 s{d}, s4, s5")
            return
        a("s_lshr_b32 s4, s2, 6")
        a("s_mul_i32 s4, s4, 56")
        a("s_and_b32 s5, s2, 63")
        a("s_add_u32 s4, s4, s5")
        a(f"s_lshr_b32 s{d}, s4, 2")
    def wd_row(d):
        if dmap:
            a("s_lshr_b32 s62, s2, 7")
            a("s_lshl_b32 s62, s62, 3")
            a(f"s_and_b32 s{d}, s2, 7")
            a(f"s_or_b32 s{d}, s{d}, s62")
        else: a(f"s_lshr_b32 s{d}, s2, 4")
    def wd_col(d):
        if dmap: a(f"s_bfe_u32 s{d}, s2, 0x40003")
        else: a(f"s_and_b32 s{d}, s2, 15")
    def rr_cc(srr, scc):
        a(f"s_and_b32 s{srr}, s2, 7")
        a("s_lshr_b32 s62, s2, 5")
        a("s_lshl_b32 s62, s62, 3")
        a(f"s_or_b32 s{srr}, s{srr}, s62")
        a(f"s_bfe_u32 s{scc}, s2, 0x20003")
    lgp = npool.bit_length() - 1
    def pool_id(d):
        a("s_lshr_b32 s5, s2, 3")
        a("s_add_u32 s5, s5, s2")
        a(f"s_and_b32 s5, s5, {npool-1}")
        a("s_lshr_b32 s4, s2, 6")
        a(f"s_lshl_b32 s4, s4, {lgp}")
        a(f"s_add_u32 s{d}, s4, s5")
    def pool_member(d):
        a("s_bfe_u32 s5, s2, 0x30003")
        a(f"s_lshr_b32 s5, s5, {lgp}")
        a("s_lshl_b32 s5, s5, 3")
        a("s_and_b32 s4, s2, 7")
        a(f"s_add_u32 s{d}, s5, s4")
    def tr_addr(d):
        a("v_lshrrev_b32 v12, 2, v5")
        a("v_lshl_add_u32 v13, v4, 2, v12")
        a("v_bfe_u32 v12, v13, 1, 2")
        a("v_lshlrev_b32 v12, 5, v12")
        a("v_lshl_add_u32 v12, v13, 7, v12")
        a("v_and_b32 v13, 3, v0")
        a(f"v_lshl_add_u32 v{d}, v13, 3, v12")
    def slot_base(d, slot):
        a(f"s_and_b32 s{d}, {slot}, 7")
        a(f"s_lshl_b32 s{d}, s{d}, 14")

    a("s_cmp_ge_u32 s2, 256")
    a("s_cbranch_scc1 L_end")
    a("s_load_dwordx16 s[16:31], s[0:1], 0")
    a("s_load_dwordx8 s[32:39], s[0:1], 64")
    stamp(0)
    if probe: a("s_mov_b32 s67, -1")
    if padend: a("s_memrealtime s[64:65]")
    if cpf:
        a("s_getpc_b64 s[4:5]")
        a("L_pc:")
        a("v_subrev_u32 v12, 64, v0")
        a("v_mov_b32 v13, 0")
        a("v_cmp_gt_u32 vcc, (L_codeend-L_pc)/128, v12")
        a("v_lshlrev_b32 v12, 7, v12")
        a("s_and_saveexec_b64 s[6:7], vcc")
        a("s_cbranch_execz L_nopf")
        a("v_lshl_add_u64 v[12:13], v[12:13], 0, s[4:5]")
        a("global_load_dword v16, v[12:13], off offset:64")
        a("L_nopf:")
        a("s_mov_b64 exec, -1")
    a("v_cmp_gt_u32 vcc, 64, v0")
    a("v_lshrrev_b32 v1, 6, v0")
    a("v_and_b32 v0, 63, v0")
    a("v_lshrrev_b32 v2, 3, v0")
    a("v_and_b32 v3, 7, v0")
    a("v_lshrrev_b32 v4, 4, v0")
    a("s_and_b32 s14, s2, 3")
    a("s_mov_b32 s43, 0x20000")
    a("s_cbranch_vccz L_others")
    OTHERS_FIRST = ofirst
    def emit_others():
        a("L_others:")
        a("v_readfirstlane_b32 s3, v1")
        a("v_lshlrev_b32 v14, 5, v0")
        a("v_lshlrev_b32 v15, 3, v0")
        a("s_lshl_b32 s10, s14, 9")
        a("s_movk_i32 s42, 2048")
        a("s_xor_b32 s3, s3, 4")
        a("s_cmp_gt_u32 s3, 3")
        a(f"v_mov_b32 v1, {MISC}")
        for k in range(4): a(f"v_mov_b32 v{28+k}, 0")
        a("v_lshl_add_u32 v12, v0, 4, v1")
        a(f"ds_write_b128 v12, v[28:31] offset:{TQ}")
        a("v_lshl_add_u32 v13, v0, 2, v1")
        a(f"v_mov_b32 v27, {BIG}")
        a(f"ds_write_b32 v13, v30 offset:{PROG}")
        a(f"ds_write2_b32 v1, v30, v27 offset0:{POST//4} offset1:{POST//4+1}")
        a("s_waitcnt lgkmcnt(0)")
        a("s_mov_b64 s[40:41], s[16:17]")
        a(f"s_load_dword s13, s[38:39], {EPOCH}")
        a("s_cbranch_scc1 L_nox")
        a("buffer_load_dwordx4 v[56:59], v14, s[40:43], 0 offen")
        a("buffer_load_dwordx4 v[60:63], v14, s[40:43], 0 offen offset:16")
        a("buffer_load_dwordx2 v[64:65], v15, s[40:43], s10 offen")
        a("L_nox:")
        if eearly: a("s_waitcnt lgkmcnt(0)")
        a("s_barrier")
        a("s_branch L_notloader")

    role[0] = "L"
    a("s_setprio 3")
    a("v_lshrrev_b32 v12, 5, v0")
    a("v_and_b32 v13, 3, v2")
    a("v_lshl_add_u32 v12, v12, 3, v13")
    a("v_lshlrev_b32 v13, 1, v4")
    a("v_xor_b32 v13, v13, v3")
    a("v_lshlrev_b32 v13, 4, v13")
    a("v_lshl_add_u32 v16, v12, 13, v13")
    a("s_lshl_b32 s8, s14, 21")
    wq_col(5)
    a("s_lshl_b32 s5, s5, 7")
    a("s_add_u32 s8, s8, s5")
    a("s_mov_b32 m0, 0")
    a("s_mov_b32 s42, 8388608")
    a("s_waitcnt lgkmcnt(0)")
    if fine: stamp(7)
    a("s_mov_b64 s[40:41], s[22:23]")
    def wloads(vo, stride):
        for i in range(4):
            ro = (16 * (i & 1) + 4 * (i >> 1)) * stride - 1024 * i
            if i: a(f"s_add_u32 s9, s8, {ro}")
            a(f"buffer_load_dwordx4 v{vo}, s[40:43], s{9 if i else 8} offen offset:{1024*i}{NT} lds")
        a(f"s_add_u32 s8, s8, {32*stride}")
        a("s_add_u32 m0, m0, 4096")
    a("L_ld_q:")
    wloads(16, 8192)
    a("s_cmp_lt_u32 m0, 0x8000")
    a("s_cbranch_scc1 L_ld_q")
    if fine: stamp(8)
    if ofirst:
        a("s_branch L_loader")
        emit_others()
    a("L_loader:")
    mem = 64 // npool; reg = 1024 // npool
    nshared = reg - mem * dyn - 2 * lex - (2 * kdyn[0] if kdyn else 0)
    zone = nshared - ntw * mem + empt
    assert ntw == 2 and 16 + 2 * (nshared + empt) + 4 <= (256 if not stamps else 999)
    a(f"v_mov_b32 v1, {MISC}")
    a("v_mov_b32 v30, 0")
    a(f"v_mov_b32 v31, {BIG}")
    a("s_barrier")
    if stamps:
        for k in range(1, 16):
            if not (fine and k in (7, 8)): a(f"s_mov_b32 s{64+2*k}, 0")
    stamp(1)
    pend = [None]; viamax = [False]
    def wait_post(w, defer=False):
        if defer and fw:
            pend[0] = w
            return
        if viamax[0]:
            a("v_add_u32 v39, 1, v39")
            a("v_max_i32 v30, v30, v39")
        else: a("v_add_u32 v30, 1, v30")
        a(f"s_waitcnt vmcnt({w})")
        a(f"ds_write_b64 v29, v[30:31] offset:{POST}")
    def unit(vo, srdn, so, step=4096):
        w = pend[0]; pend[0] = None
        for i in range(4):
            if w is not None and i % fw[1] == 0:
                if i == fw[0]: wait_post(w + fw[0])
                else: a(f"s_waitcnt vmcnt({w + fw[0]})")
            a(f"buffer_load_dwordx4 v{vo[i]}, s[{srdn}:{srdn+3}], s{so} offen offset:{1024*i}{NT} lds")
        a(f"s_add_u32 m0, m0, {step}" if step > 0 else f"s_sub_u32 m0, m0, {-step}")
        if pace: a(f"s_sleep {pace}")
    a("v_lshl_add_u32 v29, v0, 3, v1")
    VG, VD, VK, VV = [40, 41, 42, 43], [44, 45, 46, 47], [24, 25, 24, 25], [24, 25, 24, 25]
    a("s_movk_i32 s7, 7168")
    a(f"v_mad_u32_u24 v{VG[0]}, v12, s7, v13")
    for i in range(1, 4):
        a(f"v_add_u32 v{VG[i]}, {(16 * (i & 1) + 4 * (i >> 1)) * 7168 - 1024 * i}, v{VG[0]}")
    gu_col(6)
    if cmap: up_shift(12, 6, 128)
    a("s_lshl_b32 s6, s6, 7")
    a(f"s_mul_i32 s7, s14, {256*7168}")
    a("s_add_u32 s8, s7, s6")
    a("s_mov_b32 s42, 7340032")
    a("s_mov_b64 s[40:41], s[28:29]")
    a("s_mov_b32 s98, 2")
    a(f"s_cmp_ge_u32 s5, {7 if 'g' in cmap else 56}")
    w1 = win
    if fine: stamp(9)
    for w in range(28, w1 - 4, -4):
        wait_post(w)
        if fine: stamp(10 if w == 28 else 11)
    a("s_cbranch_scc1 L_ld_kv")
    a("s_add_u32 s12, s12, s8" if cmap else "s_mov_b32 s12, s8")
    if gui:
        srd(52, 30, 7340032)
        a("s_mov_b32 s98, 6")
        a("L_ld_gu2:")
        wait_post(w1 - 4, True)
        unit(VG, 40, 8, 0x8000)
        a(f"s_add_u32 s8, s8, {32*7168}")
        wait_post(w1 - 4, True)
        unit(VG, 52, 12, -0x7000)
        a(f"s_add_u32 s12, s12, {32*7168}")
        a("s_cmp_lt_u32 m0, 0x10000")
        a("s_cbranch_scc1 L_ld_gu2")
        a("s_mov_b32 m0, 0x18000")
    if not gui:
     a("s_mov_b32 s6, 0x10000")
     a("s_mov_b32 s98, 6")
     a("L_ld_gu:")
     wait_post(w1 - 4, True)
     unit(VG, 40, 8)
     a(f"s_add_u32 s8, s8, {32*7168}")
     a("s_cmp_lt_u32 m0, s6")
     a("s_cbranch_scc1 L_ld_gu")
     a("s_mov_b32 s8, s12")
     a("s_mov_b64 s[40:41], s[30:31]")
     a("s_mov_b32 s6, 0x18000")
     a("s_cmp_lt_u32 m0, s6")
     a("s_cbranch_scc1 L_ld_gu")
    a("L_ld_kv:")
    stamp(2)
    a(f"ds_read_b128 v[32:35], v1 offset:{PROG}")
    a(f"ds_read_b32 v37, v1 offset:{TQ}")
    a("v_mov_b32 v36, v1")
    a("v_and_b32 v5, 15, v0")
    for j in range(2):
        a(f"v_add_u32 v14, {4*j}, v4")
        a("v_lshlrev_b32 v14, 1, v14")
        a("v_xor_b32 v14, v14, v5")
        a("v_lshlrev_b32 v14, 4, v14")
        a(f"v_lshl_add_u32 v{VV[j]}, v4, 8, v14")
    srd(44, 18, 33554432)
    srd(48, 20, 33554432)
    a("s_mov_b32 s10, 0")
    a("s_mov_b32 s11, 0")
    a("s_mov_b32 s15, 0")
    if wide: a("s_mov_b32 s99, 0")
    a(f"s_mov_b32 s60, {spin_limit}")
    if stamps: a("s_memrealtime s[100:101]")
    a("s_branch L_ld_chk")
    if win1:
        assert n1 <= dyn - ahead
        a("L_ld_tile1:")
        a("s_and_b32 s8, s7, 0xffffe000")
        wait_post(w1 - 4, True)
        unit(VK, 44, 8)
        a("s_add_u32 s9, s8, 4096")
        a("s_add_u32 s11, s11, 1")
        a("v_mov_b32 v38, s11")
        wait_post(w1 - 4, True)
        unit(VK, 44, 9)
        a("v_lshl_add_u32 v36, v38, 2, v1")
        a("s_add_u32 s10, s10, 1")
        a("s_add_u32 s98, s98, 1")
        wait_post(w1 - 4, True)
        unit(VV, 48, 8)
        a(f"ds_read_b128 v[32:35], v1 offset:{PROG}")
        a(f"ds_read_b32 v37, v36 offset:{TQ}")
        wait_post(w1 - 4, True)
        unit(VV, 48, 9)
        a("s_and_b32 m0, m0, 0x1ffff")
        a(f"s_mov_b32 s60, {spin_limit}")
        a("L_ld_chk1:")
        a("s_waitcnt lgkmcnt(0)")
        a("v_min3_u32 v32, v32, v33, v34")
        a("v_readfirstlane_b32 s7, v37")
        a("v_min_u32 v32, v32, v35")
        a("s_sub_u32 s60, s60, 1")
        a("v_readfirstlane_b32 s4, v32")
        a("s_cselect_b32 s4, s98, s4")
        a("s_add_u32 s4, s4, 8")
        a("s_cmp_gt_u32 s4, s98")
        a("s_cbranch_scc1 L_ld_free1")
        a(f"ds_read_b128 v[32:35], v1 offset:{PROG}")
        a("s_branch L_ld_chk1")
        a("L_ld_free1:")
        a(f"s_cmp_lt_u32 s10, {n1}")
        a("s_cbranch_scc1 L_ld_tile1")
        for w in range(w1 - 4, win - 4, -4): wait_post(w)
    def peek():
        a(f"ds_read_b128 v[32:35], v1 offset:{PROG}")
        a(f"ds_read_b32 v37, v36 offset:{TQ}")
    def slot_body(wn):
        a(f"s_and_b32 s8, s7, {0xfffff000 if split else 0xffffe000:#x}")
        if two:
            a("s_bitcmp1_b32 s7, 2")
            a("s_cselect_b64 s[44:45], s[20:21], s[18:19]")
        wait_post(wn - 4, True)
        unit(VK, 44, 8)
        a(f"s_add_u32 s9, s8, {8192 if split else 4096}")
        a("s_bfe_u32 s4, s7, 0x10001")
        a("s_and_b32 s5, s11, 1")
        a("s_lshl_b32 s4, s4, s5")
        a("s_or_b32 s15, s15, s4")
        a("s_add_u32 s11, s11, 1")
        a("s_xor_b32 s5, s5, 1")
        a("s_bitcmp1_b32 s15, s5")
        a("s_addc_u32 s11, s11, 0")
        a("v_mov_b32 v38, s11")
        if spos == 0: a(f"ds_write_b32 v1, v38 offset:{STARTED}")
        wait_post(wn - 4, True)
        unit(VK, 44, 9)
        if spos == 1: a(f"ds_write_b32 v1, v38 offset:{STARTED}")
        a("v_lshl_add_u32 v36, v38, 2, v1")
        a("s_add_u32 s10, s10, 1")
        a("s_cmp_eq_u32 s15, 3")
        a(f"s_cselect_b32 s4, s10, {BIG}")
        a("v_mov_b32 v31, s4")
        a("s_cselect_b32 s4, 4, 1")
        a("s_add_u32 s98, s98, s4")
        if two:
            a("s_bitcmp1_b32 s7, 3")
            a("s_cselect_b64 s[48:49], s[18:19], s[20:21]")
            a("s_and_b32 s4, s7, 12")
            a(f"s_cselect_b32 s4, {0x1000 if split else 0x2000}, 0")
            a("s_add_u32 s8, s8, s4")
            a("s_add_u32 s9, s9, s4")
        wait_post(wn - 4, True)
        unit(VV, 48, 8)
        if spos == 2: a(f"ds_write_b32 v1, v38 offset:{STARTED}")
        peek()
        wait_post(wn - 4, True)
        unit(VV, 48, 9)
        if spos == 3: a(f"ds_write_b32 v1, v38 offset:{STARTED}")
        a("s_and_b32 m0, m0, 0x1ffff")
        if stamps: a("s_memrealtime s[100:101]")
        a(f"s_mov_b32 s60, {spin_limit}")
    if wide:
        a("L_ld_wide0:")
        a(f"v_subrev_u32 v39, {wide[0] // 4}, v30")
        a("s_mov_b32 s99, 16")
        a("L_ld_wide:")
        viamax[0] = True
        slot_body(win + wide[0])
        viamax[0] = False
        a("s_branch L_ld_chk")
    a("L_ld_tile:")
    if wide:
        a("s_cmp_lg_u32 s99, 0")
        a("s_cbranch_scc1 L_ld_wide")
        a("s_bitcmp1_b32 s7, 4")
        a("s_cbranch_scc1 L_ld_wide0")
    slot_body(win)
    a("L_ld_chk:")
    a("s_waitcnt lgkmcnt(0)")
    a("v_min3_u32 v32, v32, v33, v34")
    a("v_readfirstlane_b32 s5, v37")
    a("v_min_u32 v32, v32, v35")
    a("s_cmp_eq_u32 s15, 3")
    a("v_readfirstlane_b32 s4, v32")
    a("s_cbranch_scc1 L_ld_end")
    a("s_add_u32 s4, s4, 8")
    a("s_cmp_gt_u32 s4, s98")
    a("s_cselect_b32 s7, s5, 0")
    a("s_bitcmp1_b32 s7, 0")
    if stamps:
        a("s_cbranch_scc0 L_ld_again")
        a("s_memrealtime s[62:63]")
        a("s_waitcnt lgkmcnt(0)")
        a("s_sub_u32 s62, s62, s100")
        a("s_add_u32 s88, s88, s62")
        a("s_max_u32 s90, s90, s62")
        a(f"s_cmp_eq_u32 s10, {dyn // 2}")
        a("s_cselect_b32 s78, s100, s78")
        a(f"s_cmp_eq_u32 s10, {dyn}")
        a("s_cselect_b32 s80, s100, s80")
        a("s_branch L_ld_tile")
    else:
        a("s_cbranch_scc1 L_ld_tile")
    a("L_ld_again:")
    if empt:
        a("s_cmp_eq_u32 s15, 3")
        a("s_cselect_b32 s5, 0, s5")
        a("s_cmp_lg_u32 s5, 2")
        a("s_cbranch_scc1 L_ld_peek")
        a("s_and_b32 s5, s11, 1")
        a("s_bitset1_b32 s15, s5")
        a("s_add_u32 s11, s11, 1")
        a("v_mov_b32 v32, s11")
        a("v_lshl_add_u32 v36, v32, 2, v1")
        a(f"ds_write_b32 v1, v32 offset:{STARTED}")
        a("s_cmp_eq_u32 s15, 3")
        a("s_cbranch_scc0 L_ld_peek")
        a("v_mov_b32 v31, s10")
        a("s_add_u32 s98, s98, 3")
        a("s_cmp_gt_u32 s4, s98")
        a("s_cbranch_scc1 L_ld_go")
        a("L_ld_peek:")
    peek()
    a("s_sub_u32 s60, s60, 1")
    a("s_cbranch_scc0 L_ld_chk")
    a("v_mov_b32 v30, 0x7fffffff")
    a("v_mov_b32 v31, s10")
    a(f"ds_write_b64 v29, v[30:31] offset:{POST}")
    a("s_endpgm")
    a("L_ld_end:")
    a("s_add_u32 s4, s4, 8")
    a("s_cmp_gt_u32 s4, s98")
    a("s_cbranch_scc0 L_ld_again")
    a("L_ld_go:")
    stamp(3)
    a(f"v_lshl_add_u32 v{VD[0]}, v12, 11, v13")
    for i in range(1, 4):
        a(f"v_add_u32 v{VD[i]}, {(16 * (i & 1) + 4 * (i >> 1)) * 2048 - 1024 * i}, v{VD[0]}")
    srd(52, 32, 7340032)
    wd_row(6)
    a(f"s_mul_i32 s96, s6, {224*2048}")
    wd_col(6)
    a("s_lshl_b32 s6, s6, 7")
    a("s_add_u32 s96, s96, s6")
    if stamps:
        a("s_add_u32 s92, s10, s64")
        a("s_add_u32 s88, s88, s64")
        a("s_add_u32 s90, s90, s64")
    if wide:
        a("s_cmp_eq_u32 s99, 0")
        a("s_cbranch_scc1 L_ld_narrow")
        for w in range(win + wide[0] - 4, win - 4, -4): wait_post(w)
        a("L_ld_narrow:")
    sch = dict(sched or ([(0, win), grow] if grow else [(0, win)]))
    infl = win // 4
    wn = win
    for k in range(15):
        wn = sch.get(k, wn)
        while infl > wn // 4:
            infl -= 1; wait_post(4 * infl)
        if infl == wn // 4: wait_post(wn - 4, True)
        else: infl += 1
        if k < 7:
            unit(VD, 52, 96)
            if k < 6: a("s_add_u32 s96, s96, 0x10000")
        else:
            unit(VD, 56, 97)
            if k < 14: a(f"s_add_u32 s97, s97, {0x10000 - 384 if k == 10 else 128}")
        if k % 4 == 3: a("s_and_b32 m0, m0, 0x1ffff")
        if k == 1: srd(56, 24, 8388608)
        if k == 2: rr_cc(6, 7)
        if k == 4:
            a("s_lshl_b32 s6, s6, 17")
            a("s_lshl_b32 s7, s7, 9")
            a("s_add_u32 s97, s6, s7")
        if k == 6: stamp(4)
    stamp(5)
    while infl > 0:
        infl -= 1; wait_post(4 * infl)
    stamp(6)
    a("L_ld_done:")
    if stamps:
        a("s_mov_b32 s3, 4")
        srd(48, 38, 268435456)
        a("s_getreg_b32 s94, hwreg(HW_REG_XCC_ID)")
        a("s_getreg_b32 s95, hwreg(HW_REG_HW_ID)")
        a("s_and_b32 s94, s94, 15")
        a("s_lshl_b32 s94, s94, 16")
        a("s_and_b32 s95, s95, 0xffff")
        a("s_or_b32 s94, s94, s95")
        a("s_or_b32 s94, s94, 0x1000000")
    dump_stamps(12, 13)
    a("s_endpgm")

    if not ofirst: emit_others()
    a("L_notloader:")
    if stamps or lite:
        for k in range(1, 16): a(f"s_mov_b32 s{64+2*k}, 0")
    a("v_and_b32 v5, 15, v0")
    a("v_lshlrev_b32 v6, 4, v0")
    srd(48, 38, 268435456)
    a("s_mov_b32 s96, 0")
    a(f"s_mov_b32 s97, {BIG}")
    a("s_cmp_eq_u32 s3, 5")
    a("s_cbranch_scc1 L_helper")
    a("s_cmp_gt_u32 s3, 5")
    a("s_cbranch_scc1 L_ticket")

    role[0] = "C"
    XF = 32
    AF = 64
    ACC = 80
    TA = 7
    a("s_setprio 1")
    tr_addr(TA)
    a("s_waitcnt lgkmcnt(0)")
    make_tag()
    a("s_waitcnt vmcnt(0)")
    stamp(1)
    pool_member(6)
    a("s_cmp_lg_u32 s6, 0")
    a("s_cbranch_scc1 L_nozero")
    pool_id(6)
    ac_lane(13)
    a("v_mov_b32 v12, 0")
    a(f"s_mul_i32 s7, s6, {cstride}")
    a(f"s_add_u32 s7, s7, {TCN}")
    a("s_mov_b64 exec, 1")
    if sig1 is not None or sig2:
        assert npool == 4
        a("s_cmp_eq_u32 s3, 0")
        a("s_cbranch_scc1 " + ("L_zeroed" if early_t else "L_dozero"))
        a("s_mov_b64 exec, 0xffff")
        a("s_lshr_b32 s4, s6, 2")
        a("s_and_b32 s5, s6, 3")
        if sig1 is not None or rk:
            a("s_lshl_b32 s7, s4, 14")
            a("s_lshl_b32 s8, s5, 8")
            a("s_add_u32 s7, s7, s8")
            a(f"s_add_u32 s7, s7, {AC1}")
            a("s_cmp_eq_u32 s3, 1")
            a("s_cbranch_scc1 L_dozero")
        a(f"s_lshl_b32 s7, s5, {ash}")
        a("s_lshl_b32 s8, s4, 8")
        a("s_add_u32 s7, s7, s8")
        a(f"s_add_u32 s7, s7, {AC2}")
        a("v_mov_b32 v12, s13")
        a("s_cmp_eq_u32 s3, 2")
    else:
        a("s_cmp_eq_u32 s3, 0")
    a("s_cbranch_scc0 L_zeroed")
    a("L_dozero:")
    a("buffer_store_dword v12, v13, s[48:51], s7 offen sc1")
    a("L_zeroed:")
    a("s_mov_b64 exec, -1")
    a("L_nozero:")
    for i in range(8):
        a(f"v_lshlrev_b32 v{32+2*i}, 16, v{56+i}")
        a(f"v_and_b32 v{33+2*i}, 0xffff0000, v{56+i}")
    a("v_add_f32 v16, v32, v33")
    a("v_add_f32 v17, v34, v35")
    for i in range(2, 8):
        a(f"v_add_f32 v16, v16, v{32+2*i}")
        a(f"v_add_f32 v17, v17, v{33+2*i}")
    a("v_add_f32 v16, v16, v17")
    emit(row_list("v_add_f32", 16) + cross_list("v_add_f32", 16, 17))
    a("v_mul_f32 v16, 0x3a800000, v16")
    for i in range(16):
        a(f"v_sub_f32 v{32+i}, v{32+i}, v16")
    a("v_mul_f32 v17, v32, v32")
    a("v_mul_f32 v18, v33, v33")
    for i in range(1, 8):
        a(f"v_fmac_f32 v17, v{32+2*i}, v{32+2*i}")
        a(f"v_fmac_f32 v18, v{33+2*i}, v{33+2*i}")
    a("v_add_f32 v17, v17, v18")
    emit(row_list("v_add_f32", 17) + cross_list("v_add_f32", 17, 18))
    a("v_mul_f32 v17, 0x3a800000, v17")
    bf16r(16, 16)
    bf16r(17, 17)
    a("v_add_f32 v17, 0x3727c5ac, v17")
    bf16r(17, 17)
    a("v_sqrt_f32 v17, v17")
    for i in range(2):
        a(f"v_lshlrev_b32 v{18+2*i}, 16, v{64+i}")
        a(f"v_and_b32 v{19+2*i}, 0xffff0000, v{64+i}")
    bf16r(17, 17)
    a("v_rcp_f32 v17, v17")
    for i in range(4): a(f"v_sub_f32 v{18+i}, v{18+i}, v16")
    for i in range(4): bf16r(18 + i, 18 + i)
    for i in range(4): a(f"v_mul_f32 v{18+i}, v{18+i}, v17")
    a("v_cvt_pk_bf16_f32 v18, v18, v19")
    a("v_cvt_pk_bf16_f32 v19, v20, v21")
    a("v_add_u32 v15, v15, v1")
    a(f"ds_write_b64 v15, v[18:19] offset:{XN}")
    a("v_lshl_add_u32 v14, v4, 4, v1")
    for s in range(8):
        a(f"ds_read_b128 v[{XF+4*s}:{XF+4*s+3}], v14 offset:{XN+64*s}")
    stamp(2)
    A1 = 27
    a(f"v_lshl_add_u32 v12, v0, 2, v1")
    a(f"v_add_u32 v12, {SCR}, v12")
    a("v_cmp_eq_u32 vcc, 0, v0")
    a(f"v_cndmask_b32 v{A1}, v12, v1, vcc")
    a("s_lshl_b32 s4, s3, 2")
    a(f"v_add_u32 v28, s4, v{A1}")
    def progress(x):
        a(f"v_mov_b32 v29, {x}")
        a(f"ds_write_b32 v28, v29 offset:{PROG}")
    a("s_lshl_b32 s4, s3, 5")
    a(f"v_xor_b32 v14, s4, v{TA}")
    a("s_lshl_b32 s8, s14, 14")
    a("s_lshl_b32 s9, s3, 6")
    a("s_add_u32 s8, s8, s9")
    gu_col(11)
    if cmap:
        up_shift(27, 11, 256)
        a("s_add_u32 s27, s27, 0x10000")
    a("s_lshl_b32 s11, s11, 8")
    a("s_add_u32 s11, s11, s8")
    if cmap: a(f"s_add_u32 s11, s11, {GP}")
    wq_col(9)
    a("s_lshl_b32 s9, s9, 8")
    a("s_add_u32 s9, s9, s8")
    light_test()
    a("s_cselect_b32 s15, 2, 6")
    a("s_mov_b32 s99, 0")
    a("s_mov_b32 s10, 0")
    a("v_lshlrev_b32 v15, 6, v4")
    a("v_and_b32 v15, 3, v0")
    a("v_lshlrev_b32 v15, 6, v15")
    if gui: a("s_mov_b32 s24, 1")
    a("L_c_blk:")
    for (s0, s1) in [(0, 4), (4, 6), (6, 8)]:
        if gui: a(f"s_lshl{(s1-s0)//2}_add_u32 s10, s24, s10")
        else: a(f"s_add_u32 s10, s10, {s1-s0}")
        need("s10")
        for s in range(s0, s1):
            for t in range(2):
                d = AF + 4 * (s & 3) + 2 * t
                a(f"ds_read_b64_tr_b16 v[{d}:{d+1}], v14 offset:{s*4096+t*2048}")
        a("s_waitcnt lgkmcnt(0)")
        for s in range(s0, s1):
            c = "0" if s == 0 else f"v[{ACC}:{ACC+3}]"
            a(f"v_mfma_f32_16x16x32_bf16 v[{ACC}:{ACC+3}], v[{AF+4*(s&3)}:{AF+4*(s&3)+3}], v[{XF+4*s}:{XF+4*s+3}], {c}")
        if s1 % 4 == 0:
            a("s_add_u32 s99, s99, 1")
            progress("s99")
    a("v_add_u32 v14, 0x8000, v14")
    for k in range(4): a(f"ds_bpermute_b32 v{ACC+k}, v15, v{ACC+k}")
    a("s_waitcnt vmcnt(0) lgkmcnt(0)")
    apply_tag(ACC)
    a("s_mov_b64 exec, 0xf")
    a(f"buffer_store_dwordx4 v[{ACC}:{ACC+3}], v6, s[48:51], s9 offen sc1")
    a("s_mov_b64 exec, -1")
    if stamps or probe or leak:
        a("s_cmp_lg_u32 s99, 2")
        a("s_cbranch_scc1 L_c_ns3")
        stamp(3)
        a("L_c_ns3:")
    if cmap:
        a("s_mov_b32 s9, s11")
        a("s_add_u32 s11, s11, s27")
    else:
        a("s_add_u32 s11, s11, 0x10000")
        a("s_mov_b32 s9, s11")
    if gui:
        a("s_lshl_b32 s24, s24, 1")
        a("s_and_b32 s24, s24, 3")
    a("s_cmp_lt_u32 s99, s15")
    a("s_cbranch_scc1 L_c_blk")
    stamp(4)
    leak_flag()
    if qlight:
        light_test()
        a(f"s_cselect_b32 s4, {qlight}, {qstart}")
        need("s4")
    elif qstart: need(qstart)
    a("s_lshr_b32 s4, s2, 6")
    a("s_lshl_b32 s4, s4, 12")
    a("s_lshl_b32 s5, s3, 10")
    a("s_add_u32 s52, s4, s5")
    a("s_add_u32 s53, s52, 16384")
    a("s_add_u32 s54, s52, 32768")
    a("s_add_u32 s55, s52, 49152")
    def q_loads():
        for r in range(1 if "q" in abl else 4):
            a(f"buffer_load_dwordx4 v[{64+4*r}:{67+4*r}], v6, s[48:51], s{52+r} offen sc1")
    q_loads()
    KF = 32; QF = 96; SC = 64; VF = 72; AO = 80
    KA = 112; VA = 116; KC = 120; VC = 118
    S = 16; P = 20; M2, LS, AL = 24, 25, 26
    RL, LB = 30, 31
    A_OP, A_PERM, A_SH, A_G, A_OL, A_SP, A_M, SEL1, SEL2, A_QR, ONE = 128, 129, 130, 131, 132, 133, 134, 138, 139, 140, 141
    a("v_lshlrev_b32 v13, 1, v3")
    for m in range(4):
        a(f"v_add_u32 v12, {4*m}, v4")
        a("v_xor_b32 v12, v12, v13")
        a("v_lshlrev_b32 v12, 4, v12")
        a(f"v_lshl_add_u32 v{KA+m}, v5, 8, v12")
    a("v_lshrrev_b32 v12, 2, v5")
    a("v_lshl_add_u32 v12, v4, 2, v12")
    a("v_and_b32 v15, 3, v0")
    a("v_lshlrev_b32 v13, 3, v15")
    a("v_lshl_add_u32 v13, v12, 8, v13")
    a("v_add_u32 v13, 8192, v13")
    a("v_and_b32 v12, 7, v12")
    a("s_lshl_b32 s4, s3, 1")
    for n in range(2):
        a(f"s_add_u32 s5, s4, {n}")
        a("v_xor_b32 v14, s5, v12")
        a(f"v_lshl_add_u32 v{VA+n}, v14, 5, v13")
    a(f"v_mov_b32 v{M2}, 0xff7fffff")
    a(f"v_mov_b32 v{LS}, 0")
    for i in range(8): a(f"v_mov_b32 v{AO+i}, 0")
    a("v_cmp_lt_u32 s[100:101], 7, v5")
    a(f"s_mov_b32 s12, {LOG2E}")
    a(f"v_mul_u32_u24 v14, {QROW}, v3")
    a("v_lshl_add_u32 v14, v4, 4, v14")
    a(f"v_add_u32 v{A_QR}, v14, v1")
    a(f"v_mov_b32 v{ONE}, 1")
    a(f"v_lshlrev_b32 v14, {9+ow}, v2")
    if opw:
        a("v_and_b32 v13, 4, v0")
        a("v_lshl_add_u32 v14, v13, 4, v14")
    a(f"v_lshl_add_u32 v{A_OP}, v3, 4, v14")
    a("v_lshlrev_b32 v13, 4, v15")
    a("v_and_b32 v14, 4, v0")
    a("v_lshl_add_u32 v13, v14, 1, v13")
    a("v_add_u32 v13, v13, v2")
    a(f"v_lshlrev_b32 v{A_PERM}, 2, v13")
    a(f"v_lshlrev_b32 v{A_SH}, 3, v4")
    TO = 143
    a("v_bfe_i32 v12, v0, 4, 1")
    a(f"v_and_b32 v12, {TAGX}, v12")
    a(f"v_xor_b32 v{TO}, s13, v12")
    for k in range(1, 3): a(f"v_lshrrev_b32 v{TO+k}, {8*k}, v{TO}")
    a(f"s_mul_i32 s4, s2, {RSO}")
    a(f"s_lshl_b32 s5, s3, {7+ow}")
    a("s_add_u32 s4, s4, s5")
    a(f"s_add_u32 s44, s4, {OP}")
    rr_cc(4, 5)
    a(f"s_mul_i32 s8, s4, {RSS}")
    if spar is not None: a("s_and_b32 s8, s8, 0xffffcfff")
    a(f"s_lshl_b32 s9, s5, {10+sw}")
    a("s_add_u32 s8, s8, s9")
    a(f"s_lshl_b32 s9, s3, {8+sw}")
    a("s_add_u32 s8, s8, s9")
    a(f"s_add_u32 s45, s8, {SP}")
    if direct:
        a("s_lshl_b32 s8, s5, 14")
        a("s_lshr_b32 s9, s2, 6")
        a("s_lshl_b32 s9, s9, 8")
        a("s_add_u32 s8, s8, s9")
        a(f"s_add_u32 s46, s8, {AC2}")
        a("v_lshlrev_b32 v142, 10, v0")
    if cgate:
        a("s_lshl_b32 s8, s4, 8")
        a(f"s_add_u32 s8, s8, {OCN}")
        a("s_add_u32 s58, s38, s8")
        a("s_addc_u32 s59, s39, 0")
        a("s_lshr_b32 s8, s2, 6")
        a("s_lshl_b32 s8, s8, 12")
        a(f"s_add_u32 s46, s8, {OCN}")
        a("v_lshlrev_b32 v142, 8, v0")
    a("s_lshr_b32 s8, s4, 4")
    a(f"s_mul_i32 s8, s8, {64*RSO}")
    a("s_and_b32 s9, s4, 15")
    a(f"s_lshl_b32 s9, s9, {8+ow}")
    a("s_add_u32 s8, s8, s9")
    a(f"s_lshl_b32 s9, s3, {6+ow}")
    a("s_add_u32 s8, s8, s9")
    a(f"s_add_u32 s16, s8, {OP}")
    a(f"s_add_u32 s17, s16, {RSO}")
    a(f"s_add_u32 s18, s16, {2*RSO}")
    a(f"s_add_u32 s19, s16, {3*RSO}")
    a("v_lshrrev_b32 v13, 2, v0")
    a(f"v_mul_u32_u24 v13, {4*RSO}, v13")
    a(f"v_lshl_add_u32 v{A_G}, v15, 4, v13")
    a("v_lshl_add_u32 v12, v4, 4, v1")
    a(f"v_add_u32 v12, {OL}, v12")
    a(f"v_add_u32 v13, {ZER}, v1")
    for u in range(4):
        a(f"v_cmp_eq_u32 vcc, {u}, v15")
        a(f"v_cndmask_b32 v{A_M+u}, v13, v12, vcc")
    a("s_lshl_b32 s4, s3, 5")
    a("v_lshl_add_u32 v13, v4, 1, v1")
    a("v_lshl_add_u32 v13, v15, 3, v13")
    a(f"v_add_u32 v{A_OL}, s4, v13")
    a("v_lshlrev_b32 v13, 4, v5")
    a(f"v_lshl_add_u32 v{A_SP}, v4, {6+sw}, v13")
    a("v_and_b32 v12, 1, v0")
    a("v_cmp_eq_u32 vcc, 1, v12")
    a("v_mov_b32 v12, 0x06020400")
    a("v_mov_b32 v13, 0x03070105")
    a(f"v_cndmask_b32 v{SEL1}, v12, v13, vcc")
    a("v_and_b32 v12, 2, v0")
    a("v_cmp_eq_u32 vcc, 2, v12")
    a("v_mov_b32 v12, 0x05040100")
    a("v_mov_b32 v13, 0x03020706")
    a(f"v_cndmask_b32 v{SEL2}, v12, v13, vcc")
    a("s_mov_b32 s20, 0x0c0c0400")
    a("s_mov_b32 s21, 0x05040100")
    L = a.label("L_q"); D = a.label("L_qd")
    a(f"s_mov_b32 s60, {spin_limit}")
    a("s_branch L_q_wait")
    a(f"{L}:")
    q_loads()
    a("L_q_wait:")
    a("s_waitcnt vmcnt(0)")
    tag_check([64] if "q" in abl else [64, 68, 72, 76], 12)
    retry_masked(L, D, qsleep)
    stamp(5)
    for k in range(4): a(f"v_add_f32 v{64+k}, v{64+k}, v{68+k}")
    for k in range(4): a(f"v_add_f32 v{72+k}, v{72+k}, v{76+k}")
    for k in range(4): a(f"v_add_f32 v{64+k}, v{64+k}, v{72+k}")
    a("v_cvt_pk_bf16_f32 v64, v64, v65")
    a("v_cvt_pk_bf16_f32 v65, v66, v67")
    a("v_lshrrev_b32 v12, 5, v0")
    a("s_lshl_b32 s4, s3, 1")
    a("v_add_u32 v12, s4, v12")
    a(f"v_mul_u32_u24 v12, {QROW}, v12")
    a("v_and_b32 v13, 31, v0")
    a("v_lshl_add_u32 v12, v13, 3, v12")
    a("v_add_u32 v12, v12, v1")
    a(f"ds_write_b64 v12, v[64:65] offset:{QL}")
    a(f"ds_add_u32 v{A1}, v{ONE} offset:{QCNT}")
    lds_spin(QCNT, 4 if eearly else 5, 12, 0)
    for m in range(4):
        a(f"ds_read_b128 v[{QF+4*m}:{QF+4*m+3}], v{A_QR} offset:{QL+64*m}")
    stamp(6)
    def k_reads():
        for m in range(4): a(f"v_add_u32 v{KC+m}, s4, v{KA+m}")
        for t in range(2):
            for m in range(4):
                d = KF + 16 * t + 4 * m
                a(f"ds_read_b128 v[{d}:{d+3}], v{KC+m} offset:{4096*t}")
    def v_addr():
        for n in range(2): a(f"v_add_u32 v{VC+n}, s5, v{VA+n}")
    def v_reads(VF=VF, off=0):
        for n in range(2):
            for t in range(2):
                d = VF + 4 * n + 2 * t
                a(f"ds_read_b64_tr_b16 v[{d}:{d+1}], v{VC+n} offset:{off+4096*t}")
    def qk_list(KF=KF, SC=SC):
        out = []
        for t in range(2):
            for m in range(4):
                d = KF + 16 * t + 4 * m
                c = "0" if m == 0 else f"v[{SC+4*t}:{SC+4*t+3}]"
                out.append(f"v_mfma_f32_16x16x32_bf16 v[{SC+4*t}:{SC+4*t+3}], v[{d}:{d+3}], v[{QF+4*m}:{QF+4*m+3}], {c}")
        return out
    def softmax_list():
        o = []
        for k in range(4): o.append(f"v_cndmask_b32 v{S+k}, v{SC+k}, v{SC+4+k}, s[100:101]")
        for k in range(4): o.append(f"v_cvt_pk_bf16_f32 v{S+k}, 0, v{S+k}")
        for k in range(4): o.append(f"v_mul_f32 v{S+k}, {SCALE}, v{S+k}")
        for k in range(4): o.append(f"v_cvt_pk_bf16_f32 v{S+k}, 0, v{S+k}")
        o.append(f"v_max3_f32 v14, v{S}, v{S+1}, v{S+2}")
        o.append(f"v_max_f32 v14, v14, v{S+3}")
        o.append("MARK")
        o += row_list("v_max_f32", 14, (8,)) + cross_list("v_max_f32", 14, 15)
        o.append("v_mul_f32 v14, s12, v14")
        o.append(f"v_max_f32 v14, v14, v{M2}")
        o.append(f"v_sub_f32 v{AL}, v{M2}, v14")
        o.append(f"v_mov_b32 v{M2}, v14")
        o.append(f"v_exp_f32 v{AL}, v{AL}")
        for k in range(4): o.append(f"v_fma_f32 v{S+k}, v{S+k}, s12, -v14")
        for k in range(4): o.append(f"v_exp_f32 v{S+k}, v{S+k}")
        for i in range(4): o.append(f"v_mul_f32 v{AO+i}, v{AL}, v{AO+i}")
        o.append(f"v_cvt_pk_bf16_f32 v{P}, v{S}, v{S+1}")
        o.append(f"v_cvt_pk_bf16_f32 v{P+1}, v{S+2}, v{S+3}")
        for i in range(4, 8): o.append(f"v_mul_f32 v{AO+i}, v{AL}, v{AO+i}")
        o.append(f"v_mov_b32_dpp v{P+2}, v{P} row_ror:8 {DPP}")
        o.append(f"v_mov_b32_dpp v{P+3}, v{P+1} row_ror:8 {DPP}")
        o.append(f"v_add_f32 v14, v{S}, v{S+1}")
        o.append(f"v_add_f32 v15, v{S+2}, v{S+3}")
        o.append("v_add_f32 v14, v14, v15")
        o.append(f"v_fma_f32 v{LS}, v{LS}, v{AL}, v14")
        return o
    def pv(VF=VF, P=P):
        for n in range(2):
            a(f"v_mfma_f32_16x16x32_bf16 v[{AO+4*n}:{AO+4*n+3}], v[{VF+4*n}:{VF+4*n+3}], v[{P}:{P+3}], v[{AO+4*n}:{AO+4*n+3}]")
    def arrive():
        Ln = a.label("L_noarr")
        a("s_cmp_lg_u32 s3, 0")
        a(f"s_cbranch_scc1 {Ln}")
        a("s_mov_b64 exec, 0xffff")
        a(f"buffer_atomic_add v{ONE}, v142, s[48:51], s46 offen sc1")
        a("s_mov_b64 exec, -1")
        a(f"{Ln}:")
    def stats():
        a(f"v_mov_b32 v{RL}, v{LS}")
        emit(row_list("v_add_f32", RL, (8,)) + cross_list("v_add_f32", RL, 15))
        a(f"v_log_f32 v{LB}, v{RL}")
        a(f"v_rcp_f32 v{RL}, v{RL}")
        a("s_sub_u32 s6, s10, 2")
        a(f"v_add_f32 v{LB}, v{LB}, v{M2}")
        a(f"v_lshrrev_b32 v{LB}, v{A_SH}, v{LB}")
    cnt = not (stamps or probe or leak)
    if two:
        KF2, SC2, S2, PK, A_SB, VF2, P2 = 152, 72, 88, 92, 146, 152, 160
        light_test()
        a(f"s_cselect_b32 s25, {(dyn + lex) // 2}, {dyn // 2}")
        a("s_mov_b32 s11, 0")
        a("s_mov_b32 s26, 0x07060302")
        a(f"v_add_u32 v{A_SB}, v6, v1")
        a("L_c_kk:")
        a("s_add_u32 s10, s10, 4")
        need("s10")
        slot_base(4, "s99")
        k_reads()
        for t in range(2):
            for m in range(4):
                d = KF2 + 16 * t + 4 * m
                a(f"ds_read_b128 v[{d}:{d+3}], v{KC+m} offset:{8192+4096*t}")
        a("s_add_u32 s99, s99, 1")
        a("s_add_u32 s11, s11, 1")
        qa = qk_list(); qb = qk_list(KF2, SC2)
        a("s_waitcnt lgkmcnt(8)" if cnt else "s_waitcnt lgkmcnt(0)")
        emit(qa)
        a("s_waitcnt lgkmcnt(0)")
        progress("s99")
        def pre(sc, sv, pk):
            o = [f"v_cndmask_b32 v{sv+k}, v{sc+k}, v{sc+4+k}, s[100:101]" for k in range(4)]
            o += [f"v_cvt_pk_bf16_f32 v{sv+k}, 0, v{sv+k}" for k in range(4)]
            o += [f"v_mul_f32 v{sv+k}, {SCALE}, v{sv+k}" for k in range(4)]
            o += [f"v_cvt_pk_bf16_f32 v{sv+k}, 0, v{sv+k}" for k in range(4)]
            o += [f"v_max3_f32 v{M2}, v{M2}, v{sv}, v{sv+1}", f"v_perm_b32 v{pk}, v{sv+1}, v{sv}, s26",
                  f"v_max3_f32 v{M2}, v{M2}, v{sv+2}, v{sv+3}", f"v_perm_b32 v{pk+1}, v{sv+3}, v{sv+2}, s26"]
            return o
        emit(interleave(qb, pre(SC, S, PK), {3: 1, 4: 3, 5: 3, 6: 3}))
        emit(pre(SC2, S2, PK + 2))
        a(f"ds_write_b128 v{A_SB}, v[{PK}:{PK+3}] offset:{SB}")
        a(f"v_add_u32 v{A_SB}, 1024, v{A_SB}")
        a("s_cmp_lt_u32 s11, s25")
        a("s_cbranch_scc1 L_c_kk")
        if kdyn:
            a("s_lshl_b32 s4, s11, 2")
            a("v_add_u32 v14, s4, v1")
            a(f"s_mov_b32 s60, {spin_limit}")
            a("L_c_ent:")
            a(f"ds_read_b32 v12, v14 offset:{TQ}")
            a("s_sub_u32 s60, s60, 1")
            a("s_waitcnt lgkmcnt(0)")
            a("v_readfirstlane_b32 s61, v12")
            a("s_cselect_b32 s61, 1, s61")
            a("s_cmp_eq_u32 s61, 0")
            a("s_cbranch_scc1 L_c_ent")
            a("s_bitcmp1_b32 s61, 3")
            a("s_cbranch_scc1 L_c_kk")
            a("s_mov_b32 s25, s11")
        stamp(7)
        emit(row_list("v_max_f32", M2, (8,)) + cross_list("v_max_f32", M2, 15))
        a(f"v_mul_f32 v{M2}, s12, v{M2}")
        a(f"v_add_u32 v{A_SB}, v6, v1")
        a("s_lshl_b32 s25, s25, 1")
        a("L_c_vv:")
        a(f"ds_read_b128 v[{PK}:{PK+3}], v{A_SB} offset:{SB}")
        a(f"v_add_u32 v{A_SB}, 1024, v{A_SB}")
        slot_base(5, "s99")
        a("s_sub_u32 s5, s5, 8192")
        v_addr()
        a("s_add_u32 s10, s10, 4")
        a("s_add_u32 s99, s99, 1")
        a("s_add_u32 s11, s11, 1")
        a("s_waitcnt lgkmcnt(0)")
        for h, sv in enumerate((S, S2)):
            for k in range(2):
                a(f"v_lshlrev_b32 v{sv+2*k}, 16, v{PK+2*h+k}")
                a(f"v_and_b32 v{sv+2*k+1}, 0xffff0000, v{PK+2*h+k}")
        for sv in (S, S2):
            for k in range(4): a(f"v_fma_f32 v{sv+k}, v{sv+k}, s12, -v{M2}")
        need("s10")
        v_reads()
        v_reads(VF2, 8192)
        for sv in (S, S2):
            for k in range(4): a(f"v_exp_f32 v{sv+k}, v{sv+k}")
        for sv, pp in ((S, P), (S2, P2)):
            a(f"v_cvt_pk_bf16_f32 v{pp}, v{sv}, v{sv+1}")
            a(f"v_cvt_pk_bf16_f32 v{pp+1}, v{sv+2}, v{sv+3}")
        for k in range(4): a(f"v_add_f32 v{S+k}, v{S+k}, v{S2+k}")
        for pp in (P, P2):
            a(f"v_mov_b32_dpp v{pp+2}, v{pp} row_ror:8 {DPP}")
            a(f"v_mov_b32_dpp v{pp+3}, v{pp+1} row_ror:8 {DPP}")
        a(f"v_add_f32 v{S}, v{S}, v{S+1}")
        a(f"v_add_f32 v{S+2}, v{S+2}, v{S+3}")
        a("s_waitcnt lgkmcnt(0)")
        progress("s99")
        pv()
        pv(VF2, P2)
        a(f"v_add_f32 v{S}, v{S}, v{S+2}")
        a(f"v_add_f32 v{LS}, v{LS}, v{S}")
        a("s_cmp_lt_u32 s11, s25")
        a("s_cbranch_scc1 L_c_vv")
        a("s_add_u32 s10, s10, 2")
        a("s_cmp_lt_u32 s11, s97")
        a("s_cbranch_scc1 L_c_k")
        stats()
        a("s_branch L_c_pub")
    else:
        a("s_add_u32 s10, s10, 2")
        a("s_mov_b32 s11, 0")
        a("s_branch L_c_k")
    a("L_c_fast:")
    slot_base(5, "s99")
    a("s_add_u32 s99, s99, 1")
    slot_base(4, "s99")
    v_addr()
    v_reads()
    k_reads()
    sm = softmax_list(); i = sm.index("MARK")
    emit(sm[:i])
    a("s_waitcnt lgkmcnt(0)")
    progress("s99")
    rest = sm[i + 1:]; q = qk_list()
    pos = {0: 1, 1: 0, 2: 1, 4: 0, 5: 2, 9: 1, 12: 1, 16: 1, 20: 1}
    for j, x in enumerate(rest):
        for _ in range(pos.get(j, 0)): a(q.pop(0))
        a(x)
    assert not q
    pv()
    a("L_c_top:")
    a("s_add_u32 s11, s11, 1")
    a("s_add_u32 s10, s10, 4")
    a("s_cmp_ge_u32 s11, s97")
    a("s_cbranch_scc1 L_c_slow")
    a("s_cmp_ge_u32 s96, s10")
    a("s_cbranch_scc1 L_c_fast")
    refresh()
    a("s_cmp_ge_u32 s96, s10")
    a("s_cbranch_scc1 L_c_fast")
    a("L_c_slow:")
    if stamps or probe or leak: stamp(8)
    slot_base(5, "s99")
    v_addr()
    emit([x for x in softmax_list() if x != "MARK"])
    stats()
    if stamps or probe or leak: stamp(9)
    need("s6")
    v_reads()
    a("s_add_u32 s99, s99, 1")
    a("s_cmp_ge_u32 s11, s97")
    a("s_cbranch_scc1 L_c_last")
    a("s_waitcnt lgkmcnt(0)")
    pv()
    progress("s99")
    a("L_c_k:")
    need("s10")
    slot_base(4, "s99")
    k_reads()
    q = qk_list()
    for j in range(8):
        if not (stamps or probe or leak): a(f"s_waitcnt lgkmcnt({7-j})")
        elif j == 0: a("s_waitcnt lgkmcnt(0)")
        a(q[j])
    a("s_branch L_c_top")
    a("L_c_last:")
    if sig1 is not None and s1pos == "last": a(f"ds_add_u32 v{A1}, v{ONE} offset:{PCNT}")
    a("s_waitcnt lgkmcnt(0)")
    pv()
    progress("s99")
    a("L_c_pub:")
    for k in range(4): a(f"v_mov_b32_dpp v{AO+k}, v{AO+4+k} row_ror:8 row_mask:0xf bank_mask:0xc")
    for k in range(4):
        a(f"v_mul_f32 v{AO+k}, v{RL}, v{AO+k}")
    apply_tag(AO, [TO, TO + 1, TO + 2, LB])
    for k in range(4): a(f"ds_bpermute_b32 v{AO+k}, v{A_PERM}, v{AO+k}")
    a("s_waitcnt lgkmcnt(0)")
    if "o" not in abl: a(f"buffer_store_dwordx4 v[{AO}:{AO+3}], v{A_OP}, s[48:51], s44 offen {ost}")
    if sig1 is not None and s1pos == "store": a(f"ds_add_u32 v{A1}, v{ONE} offset:{PCNT}")
    stamp(10)
    PD, WF, BF, WA = 64, 32, 96, 88
    a("s_lshl_b32 s99, s99, 2")
    a("s_add_u32 s22, s99, s3")
    a("s_add_u32 s22, s22, 8")
    a("s_add_u32 s23, s22, 4")
    for st in range(2):
        a(f"s_sub_u32 s4, s{22+st}, 1")
        a("s_and_b32 s4, s4, 31")
        a("s_lshl_b32 s4, s4, 12")
        for u in range(4):
            a(f"v_xor_b32 v14, {32*u}, v{TA}")
            a(f"v_add_u32 v{WA+4*st+u}, s4, v14")
    def wo_reads(st):
        for u in range(4):
            for t in range(2):
                d = WF + 8 * u + 4 * st + 2 * t
                a(f"ds_read_b64_tr_b16 v[{d}:{d+1}], v{WA+4*st+u} offset:{t*2048}")
    stamp(11)
    assert gate >= 15 - (win // 4 - 1)
    a(f"s_add_u32 s10, s99, {gate}")
    need("s10", count=False)
    stamp(14)
    def o_loads():
        for i in range(0 if "g" in abl else 4):
            a(f"buffer_load_dwordx4 v[{PD+4*i}:{PD+4*i+3}], v{A_G}, s[48:51], s{16+i} offen {old_}")
    if sig1 is not None:
        a(f"ds_read_b32 v14, v1 offset:{GO}")
        a("s_waitcnt lgkmcnt(0)")
        a("v_readfirstlane_b32 s4, v14")
        a("s_cmp_eq_u32 s4, 0")
        a("s_cbranch_scc1 L_o_notyet")
    o_loads()
    need("s22", count=False)
    wo_reads(0)
    need("s23", count=False)
    wo_reads(1)
    a(f"s_mov_b32 s60, {spin_limit}")
    if sigpos in ("arr", "arr0"):
        a(f"s_waitcnt vmcnt({0 if sigpos == 'arr' else 3})")
        a(f"ds_add_u32 v{A1}, v{ONE} offset:{GCNT}")
    a("L_o_chk:")
    fill = tag_list(range(PD, PD + 16, 4), 12, n=3)
    chain = [f"v_perm_b32 v17, v{PD+15}, v{PD+11}, s20", "v_perm_b32 v16, v17, v16, s21",
             f"v_mov_b32_dpp v17, v16 quad_perm:[1,0,3,2] {DPP}", f"v_perm_b32 v16, v17, v16, v{SEL1}",
             f"v_mov_b32_dpp v17, v16 quad_perm:[2,3,0,1] {DPP}", f"v_perm_b32 v18, v17, v16, v{SEL2}",
             f"v_max_f32_dpp v16, v18, v18 row_ror:1 {DPP}"] + row_list("v_max_f32", 16, (2, 4, 8)) + cross_list("v_max_f32", 16, 17)
    if echk:
        for i in range(3):
            a(f"s_waitcnt vmcnt({3-i})")
            emit(fill[3*i:3*i+3])
            if i == 1: a(f"v_perm_b32 v16, v{PD+7}, v{PD+3}, s20")
        a("s_waitcnt vmcnt(0)")
        j1, j2 = join_list(12)
        emit(chain[0:2] + fill[9:11] + chain[2:4] + fill[11:13] + chain[4:6] + [j1] + chain[6:7] + [j2] + chain[7:8])
        a("v_cmp_ne_u32 vcc, 0, v12")
        a(chain[8])
        a("s_cbranch_vccnz L_o_again")
        a("L_o_done:")
        if direct: a(f"ds_add_rtn_u32 v19, v{A1}, v{ONE} offset:{GCNT}")
        else: a(f"ds_add_u32 v{A1}, v{ONE} offset:{GCNT}")
        emit(chain[9:])
        a("v_sub_f32 v18, v18, v16")
        if direct: a("s_waitcnt lgkmcnt(0)")
        if direct: a("v_readfirstlane_b32 s4, v19")
        a("v_exp_f32 v18, v18")
        if direct:
            a("s_cmp_lg_u32 s4, 3")
            a("s_cbranch_scc1 L_o_quiet")
            a("s_mov_b64 exec, 0xffff")
            a(f"buffer_atomic_add v{ONE}, v142, s[48:51], s46 offen sc1")
            a("s_mov_b64 exec, -1")
            if lite == 2: a("s_memrealtime s[66:67]")
            a("L_o_quiet:")
    else:
        a("s_waitcnt vmcnt(2)")
        a(f"v_perm_b32 v16, v{PD+7}, v{PD+3}, s20")
        a("s_waitcnt vmcnt(0)")
        fill += ["s_nop 0", f"v_or_b32_dpp v12, v12, v12 quad_perm:[1,0,3,2] {DPP}", "s_nop 0", f"v_or_b32_dpp v12, v12, v12 quad_perm:[2,3,0,1] {DPP}"]
        emit(interleave(chain, fill, {1: 2, 3: 2, 5: 2, 6: 2, 7: 2, 8: 2, 10: 2, 13: 2}))
        a("v_cmp_ne_u32 vcc, 0, v12")
        a("v_sub_f32 v18, v18, v16")
        a("v_exp_f32 v18, v18")
        if "o" not in abl and "c" not in abl: a("s_cbranch_vccnz L_o_again")
        a("L_o_done:")
        if sig2 and sigpos == "chk": a(f"ds_add_u32 v{A1}, v{ONE} offset:{GCNT}")
    stamp(12)
    fm = [f"v_mul_f32_dpp v{20+k}, v18, v{PD+k} quad_perm:[0,0,0,0] {DPP}" for k in range(4)]
    for i in range(1, 4):
        fm += [f"v_fmac_f32_dpp v{20+k}, v18, v{PD+4*i+k} quad_perm:[{i},{i},{i},{i}] {DPP}" for k in range(4)]
    wsum = [f"v_add_f32_dpp v16, v18, v18 row_ror:1 {DPP}"] + row_list("v_add_f32", 16, (2, 4, 8)) + cross_list("v_add_f32", 16, 17) + ["v_rcp_f32 v16, v16"]
    red = ["v_permlane32_swap_b32 v20, v22", "v_permlane32_swap_b32 v21, v23", "v_add_f32 v20, v20, v22", "v_add_f32 v21, v21, v23",
           "v_permlane16_swap_b32 v20, v21", "v_add_f32 v20, v20, v21"] + row_list("v_add_f32", 20, (4, 8))
    seq = interleave(fm + red, wsum, {3: 1, 7: 1, 11: 1, 15: 2, 19: 2, 21: 1, 22: 2})
    if isinstance(sigpos, int): seq.insert(sigpos, f"ds_add_u32 v{A1}, v{ONE} offset:{GCNT}")
    emit(seq)
    a("v_mul_f32 v20, v20, v16")
    a("v_cvt_pk_bf16_f32 v20, v20, v20")
    a(f"ds_write_b16 v{A_OL}, v20 offset:{OL}")
    a(f"ds_add_u32 v{A1}, v{ONE} offset:{OCNT}")
    a(f"s_mov_b32 s60, {spin_limit}")
    a("L_x:")
    a(f"ds_read_b32 v12, v1 offset:{OCNT}")
    for u in range(4):
        for st in range(2):
            d = BF + 8 * u + 4 * st
            a(f"ds_read_b128 v[{d}:{d+3}], v{A_M+u} offset:{64*st}")
    a("s_sub_u32 s60, s60, 1")
    a("s_waitcnt lgkmcnt(0)" if (stamps or probe or leak) else "s_waitcnt lgkmcnt(8)")
    a("v_readfirstlane_b32 s61, v12")
    a("s_cselect_b32 s61, -1, s61")
    a("s_cmp_lt_u32 s61, 4")
    a("s_cbranch_scc1 L_x")
    for u in range(4):
        for st in range(2):
            if not (stamps or probe or leak): a(f"s_waitcnt lgkmcnt({7-2*u-st})")
            c = "0" if u + st == 0 else f"v[{ACC}:{ACC+3}]"
            a(f"v_mfma_f32_16x16x32_bf16 v[{ACC}:{ACC+3}], v[{WF+8*u+4*st}:{WF+8*u+4*st+3}], v[{BF+8*u+4*st}:{BF+8*u+4*st+3}], {c}")
    setexec(0x000f000f, 0x000f000f)
    apply_tag(ACC)
    a(f"buffer_store_dwordx4 v[{ACC}:{ACC+3}], v{A_SP}, s[48:51], s45 offen sc1")
    stamp(13)
    dump_stamps(12, 13)
    a("s_endpgm")
    if sig1 is not None:
        a("L_o_notyet:")
        need("s22", count=False)
        wo_reads(0)
        need("s23", count=False)
        wo_reads(1)
        lds_spin(GO, 1, 12, 0)
        o_loads()
        a(f"s_mov_b32 s60, {spin_limit}")
        a("s_branch L_o_chk")
    a("L_o_again:")
    a("s_sub_u32 s60, s60, 1")
    a("s_cbranch_scc1 L_o_done")
    if osleep: a(f"s_sleep {osleep}")
    a("s_mov_b64 exec, vcc")
    o_loads()
    a("s_mov_b64 exec, -1")
    a("s_branch L_o_chk")

    role[0] = "H"
    a("L_helper:")
    srd(56, 34, 2048)
    if not eearly:
        a("v_mov_b32 v12, 1")
        a("s_waitcnt lgkmcnt(0)")
        a("s_mov_b64 exec, 1")
        a(f"ds_add_u32 v1, v12 offset:{QCNT}")
        a("s_mov_b64 exec, -1")
    make_tag()
    wd_row(4)
    a("s_mul_i32 s4, s4, 896")
    a(f"s_add_u32 s8, s4, {GP}")
    a("s_add_u32 s9, s8, 0x10000")
    a("v_add_u32 v14, -2, v5")
    a("v_cmp_gt_u32 vcc, 14, v5")
    a("v_cndmask_b32 v14, v14, v5, vcc")
    a("v_lshlrev_b32 v15, 4, v14")
    a("v_lshl_add_u32 v15, v4, 14, v15")
    a("v_lshlrev_b32 v14, 3, v14")
    a("v_lshl_add_u32 v14, v4, 1, v14")
    a("v_add_u32 v14, v14, v1")
    leak_flag()
    if leak:
        for x in leak:
            if x[0] == "H" and x[1]: a(f"s_mov_b32 s{64+2*x[1]}, 0")
    if hstart: need(hstart, sleep=8)
    else: lds_spin(QCNT, 7 if early_t else 5, 12, 8)
    stamp(1)
    L = a.label("L_h"); D = a.label("L_hd")
    a(f"s_mov_b32 s60, {spin_limit}")
    a(f"{L}:")
    for w in range(0 if "h" in abl else 4):
        a(f"buffer_load_dwordx4 v[{32+8*w}:{35+8*w}], v15, s[48:51], s8 offen offset:{224*w} sc1")
        a(f"buffer_load_dwordx4 v[{36+8*w}:{39+8*w}], v15, s[48:51], s9 offen offset:{224*w} sc1")
    a("s_waitcnt vmcnt(0)")
    tag_check(range(32, 64, 4), 12, quad=False)
    if "h" in abl: a("s_mov_b64 vcc, 0")
    retry_masked(L, D, 16)
    stamp(2)
    G8 = list(range(32, 64, 4)); G4 = G8[::2]
    for step in ("v_permlane32_swap_b32 v{r}, v{r2}", "v_permlane32_swap_b32 v{r1}, v{r3}", "v_add_f32 v{r}, v{r}, v{r2}",
                 "v_add_f32 v{r1}, v{r1}, v{r3}", "v_permlane16_swap_b32 v{r}, v{r1}", "v_add_f32 v{r}, v{r}, v{r1}",
                 "v_cvt_pk_bf16_f32 v{r}, 0, v{r}"):
        for r in G8: a(step.format(r=r, r1=r + 1, r2=r + 2, r3=r + 3))
    for step in ("v_mul_f32 v{t}, 0xbfb8aa3b, v{g}", "v_exp_f32 v{t}, v{t}", "v_add_f32 v{t}, 1.0, v{t}", "v_rcp_f32 v{t}, v{t}",
                 "v_mul_f32 v{t}, v{t}, v{g}", "v_cvt_pk_bf16_f32 v{g}, 0, v{t}", "v_mul_f32 v{g}, v{g}, v{u}",
                 "v_cvt_pk_bf16_f32 v{g}, v{g}, v{g}"):
        for g in G4: a(step.format(g=g, t=g + 1, u=g + 4))
    for w, g in enumerate(G4): a(f"ds_write_b16 v14, v{g} offset:{HL+112*w}")
    if side is None:
        a("s_and_b32 s4, s2, 7")
        a(f"s_lshr_b32 s5, s2, {7 if oneline else 6}")
        a("s_lshl_b32 s5, s5, 3")
        a("s_or_b32 s4, s4, s5")
        a(f"s_lshl_b32 s4, s4, {2 if oneline else 1}")
        a(f"s_bfe_u32 s5, s2, {0x20005 if oneline else 0x10005}")
        a("s_add_u32 s4, s4, s5")
    if side is not None:
        a("s_and_b32 s4, s2, 3")
        a("s_lshr_b32 s5, s2, 6")
        a("s_lshl2_add_u32 s4, s5, s4")
        a("s_bfe_u32 s5, s2, 0x20004")
        a("s_lshl2_add_u32 s4, s4, s5")
    if sig2:
        a("s_lshl_b32 s5, s4, 10")
        if apar is not None:
            a("s_and_b32 s6, s5, 0xe000")
            a("s_add_u32 s5, s5, s6")
        a(f"s_add_u32 s5, s5, {AC2}")
        a("s_add_u32 s52, s38, s5")
        a("s_addc_u32 s53, s39, 0")
        a("s_lshl_b32 s47, s13, 2")
        a("s_add_u32 s47, s47, 64")
    a(f"s_lshl_b32 s5, s4, {6+sw}")
    for i in range(8 if fatom else 4): a(f"s_add_u32 s{20+i}, s5, {SP + i*RSS}")
    a("s_lshl_b32 s5, s4, 6")
    a(f"s_add_u32 s45, s5, {FP}")
    a("s_lshr_b32 s46, s4, 2")
    a("s_lshl_b32 s46, s46, 7")
    a("s_and_b32 s5, s4, 3")
    a("s_lshl_b32 s5, s5, 3")
    a("s_add_u32 s46, s46, s5")
    a("v_lshrrev_b32 v12, 2, v0")
    a("v_and_b32 v13, 3, v0")
    a(f"v_mul_u32_u24 v19, {RS}, v12")
    if fatom:
        a(f"v_mul_u32_u24 v18, {8*RSS}, v2")
        a("v_lshl_add_u32 v18, v3, 3, v18")
        a("v_bfe_i32 v23, v0, 1, 1")
        a(f"v_and_b32 v23, {TAGX}, v23")
        a("v_xor_b32 v23, s13, v23")
        a("v_and_b32 v16, 1, v0")
        a("v_lshlrev_b32 v16, 4, v16")
        a("v_lshrrev_b32 v16, v16, v23")
        a("v_lshrrev_b32 v17, 8, v16")
        a("v_lshrrev_b32 v23, 5, v0")
        a("v_and_b32 v100, 1, v0")
        a("v_lshl_add_u32 v23, v100, 1, v23")
        a("v_bfe_u32 v100, v0, 1, 2")
        a("v_lshlrev_b32 v101, 6, v23")
        a("v_lshl_add_u32 v101, v100, 2, v101")
        a("v_lshlrev_b32 v23, 1, v23")
        a("v_lshl_add_u32 v23, v100, 5, v23")
    else:
        a(f"v_mul_u32_u24 v18, {4*RSS}, v12")
        if spar is not None: a("v_and_b32 v18, 0xffffcfff, v18")
        a("v_lshl_add_u32 v18, v13, 4, v18")
    a("v_lshl_add_u32 v19, v13, 4, v19")
    a("v_lshlrev_b32 v20, 5, v13")
    a("v_lshl_add_u32 v20, v4, 1, v20")
    if fatom: a("v_mov_b32 v20, v23")
    a("buffer_load_ushort v22, v20, s[40:43], s46 offen")
    wd_row(4)
    a(f"s_mul_i32 s4, s4, {RS}")
    wd_col(5)
    a("s_lshl_b32 s5, s5, 8")
    a("s_add_u32 s4, s4, s5")
    a(f"s_add_u32 s15, s4, {FP}")
    a("v_lshlrev_b32 v21, 4, v5")
    a("v_lshl_add_u32 v21, v4, 6, v21")
    tr_addr(TA)
    for u in range(4): a(f"v_xor_b32 v{28+u}, {32*u}, v{TA}")
    a("v_lshl_add_u32 v14, v4, 4, v1")
    a("v_and_b32 v12, 1, v0")
    a("v_cmp_eq_u32 s[8:9], 1, v12")
    a("v_and_b32 v12, 2, v0")
    a("v_cmp_eq_u32 s[6:7], 2, v12")
    CA = 64; HF = 48
    for k in range(16): a(f"v_mov_b32 v{CA+k}, 0")
    if pre in ("full", "ld"):
        a("s_and_b32 s4, s2, 0x78")
        a("s_cbranch_scc1 L_h_nopre")
        a("v_lshlrev_b32 v12, 2, v0")
        a("v_mov_b32 v13, 0")
        a("s_mov_b32 exec_hi, 0")
        if pre == "full": a("buffer_store_dword v13, v12, s[56:59], s46 offen sc1")
        else: a("buffer_load_dword v23, v12, s[56:59], s46 offen")
        a("s_mov_b64 exec, -1")
        a("L_h_nopre:")
    if pre == "st0":
        a("s_and_b32 s4, s2, 0x18")
        a("s_cbranch_scc1 L_h_nopre")
        a("s_waitcnt vmcnt(0)")
        setexec(0x000f000f, 0x000f000f)
        a("buffer_store_short v22, v20, s[56:59], s46 offen")
        a("s_mov_b64 exec, -1")
        a("L_h_nopre:")
    stamp(3)
    L = a.label("L_nt"); D = a.label("L_ntd")
    a(f"s_mov_b32 s60, {spin_limit}")
    a(f"{L}:")
    refresh()
    a(f"s_cmp_lg_u32 s97, {BIG}")
    a(f"s_cbranch_scc1 {D}")
    a("s_sleep 4")
    a("s_sub_u32 s60, s60, 1")
    a(f"s_cbranch_scc0 {L}")
    a(f"{D}:")
    light_test()
    a("s_cselect_b32 s10, 2, 6")
    a("s_add_u32 s10, s10, s97")
    a("s_lshl_b32 s10, s10, 2")
    a("s_mov_b32 s11, 0")
    need("s10", sleep=2)
    a("s_setprio 2")
    a("L_h_step:")
    a("s_and_b32 s4, s10, 31")
    a("s_lshl_b32 s4, s4, 12")
    for u in range(4): a(f"v_add_u32 v{24+u}, s4, v{28+u}")
    a(f"ds_read_b128 v[{HF}:{HF+3}], v14 offset:{HL}")
    a("v_add_u32 v14, 64, v14")
    a("s_add_u32 s10, s10, 1")
    need("s10")
    stamp(4)
    for u in range(4):
        for t in range(2):
            d = 32 + 4 * u + 2 * t
            a(f"ds_read_b64_tr_b16 v[{d}:{d+1}], v{24+u} offset:{t*2048}")
    for u in range(4):
        if not (stamps or probe or leak): a(f"s_waitcnt lgkmcnt({6-2*u})")
        elif u == 0: a("s_waitcnt lgkmcnt(0)")
        a(f"v_mfma_f32_16x16x32_bf16 v[{CA+4*u}:{CA+4*u+3}], v[{32+4*u}:{35+4*u}], v[{HF}:{HF+3}], v[{CA+4*u}:{CA+4*u+3}]")
    a("s_add_u32 s11, s11, 1")
    a("s_cmp_lt_u32 s11, 7")
    a("s_cbranch_scc1 L_h_step")
    for k in range(4): a(f"v_cndmask_b32 v{CA+k}, v{CA+k}, v{CA+4+k}, s[8:9]")
    for k in range(4): a(f"v_cndmask_b32 v{CA+8+k}, v{CA+8+k}, v{CA+12+k}, s[8:9]")
    for k in range(4): a(f"v_cndmask_b32 v{CA+k}, v{CA+k}, v{CA+8+k}, s[6:7]")
    apply_tag(CA)
    setexec(0x000f000f, 0x000f000f)
    a(f"buffer_store_dwordx4 v[{CA}:{CA+3}], v21, s[48:51], s15 offen sc1")
    a("s_mov_b64 exec, -1")
    if not hp: a("s_setprio 0")
    stamp(5)
    if side is None: a("s_and_b32 s4, s2, 0x18")
    else:
        a(f"s_xor_b32 s4, s2, {4 * side}")
        a("s_and_b32 s4, s4, 12")
    a("s_cbranch_scc1 L_hend")
    if pre == "st":
        a("s_waitcnt vmcnt(0)")
        setexec(0x000f000f, 0x000f000f)
        a("buffer_store_short v22, v20, s[56:59], s46 offen")
        a("s_mov_b64 exec, -1")
    def f_math():
        treduce4(96)
        emit(row_list("v_add_f32", 96, (4, 8)))
        bf16r(96, 96)
        silu_bf16(96, 96, 12)
        a("v_lshlrev_b32 v22, 16, v22")
    if fat:
        a("s_add_u32 s10, s10, 8")
        need("s10", sleep=1, count=False)
        a(f"s_mov_b32 s60, {spin_limit}")
        def watch(L, lim):
            a(f"{L}:")
            for k in range(4): a(f"s_load_dword s{28+k}, s[52:53], {256*k} glc")
            a("s_sub_u32 s60, s60, 1")
            a("s_cselect_b32 s5, 0, -1")
            a("s_waitcnt lgkmcnt(0)")
            a("s_add_u32 s28, s28, s29")
            a("s_add_u32 s30, s30, s31")
            a("s_sub_u32 s28, s47, s28")
            a("s_sub_u32 s28, s28, s30")
            a("s_and_b32 s28, s28, s5")
            if lim: a(f"s_cmp_gt_u32 s28, {lim}")
            a(f"s_cbranch_scc1 {L}")
        watch("L_h_most", 64 - fat)
        a("buffer_load_dwordx4 v[96:99], v19, s[48:51], s45 offen sc1")
        a("s_cmp_eq_u32 s28, 0")
        a("s_cbranch_scc1 L_h_go")
        watch("L_h_all", 0)
        a("L_h_go:")
    elif flate:
        lds_spin(GCNT, 4, 12, 1)
        if pre == "st2":
            a("s_waitcnt vmcnt(0)")
            setexec(0x000f000f, 0x000f000f)
            a("buffer_store_short v22, v20, s[56:59], s46 offen")
            a("s_mov_b64 exec, -1")
        a("buffer_load_dwordx4 v[96:99], v19, s[48:51], s45 offen sc1")
    else:
        a("s_add_u32 s10, s10, 8")
        need("s10", sleep=1)
        L = a.label("L_f"); D = a.label("L_fd")
        a(f"s_mov_b32 s60, {spin_limit}")
        a(f"{L}:")
        a("buffer_load_dwordx4 v[96:99], v19, s[48:51], s45 offen sc1")
        a("s_waitcnt vmcnt(0)")
        tag_check([96], 12)
        retry_masked(L, D, 2)
        stamp(12)
        f_math()
    if fat: pass
    elif sig2:
        a(f"s_mov_b32 s60, {spin_limit}")
        if w2s:
            def wset(r):
                for k in range(4): a(f"s_load_dword s{r+k}, s[52:53], {256*k} glc")
            def wsum(r):
                a("s_waitcnt lgkmcnt(4)")
                a(f"s_add_u32 s4, s{r}, s{r+1}")
                a(f"s_add_u32 s5, s{r+2}, s{r+3}")
                a("s_add_u32 s4, s4, s5")
            wset(28)
            a(f"s_sleep {w2s}")
            a("L_h_watch2:")
            wset(24)
            wsum(28)
            a("s_cmp_eq_u32 s4, s47")
            a("s_cbranch_scc1 L_h_go")
            wset(28)
            a("s_sub_u32 s60, s60, 1")
            a("s_cbranch_scc1 L_h_go")
            wsum(24)
            a("s_cmp_lg_u32 s4, s47")
            a("s_cbranch_scc1 L_h_watch2")
            a("s_branch L_h_go")
        a("L_h_watch:")
        for k in range(4): a(f"s_load_dword s{28+k}, s[52:53], {256*k} glc")
        a("s_sub_u32 s60, s60, 1")
        a("s_cbranch_scc1 L_h_go")
        a("s_waitcnt lgkmcnt(0)")
        a("s_add_u32 s28, s28, s29")
        a("s_add_u32 s30, s30, s31")
        a("s_add_u32 s28, s28, s30")
        a("s_cmp_lg_u32 s28, s47")
        a("s_cbranch_scc1 L_h_watch")
        a("L_h_go:")
    else:
        lds_spin(OCNT, 4, 12, 1)
    def s_loads():
        for i in range(4):
            a(f"buffer_load_dwordx4 v[{80+4*i}:{83+4*i}], v18, s[48:51], s{20+i} offen sc1")
    s_loads()
    stamp(6)
    if flate:
        L = a.label("L_f"); D = a.label("L_fd")
        a(f"s_mov_b32 s60, {spin_limit}")
        a("s_waitcnt vmcnt(4)")
        a("s_branch L_f_chk")
        a(f"{L}:")
        a("buffer_load_dwordx4 v[96:99], v19, s[48:51], s45 offen sc1")
        a("s_waitcnt vmcnt(0)")
        a("L_f_chk:")
        tag_check([96], 12)
        retry_masked(L, D, 0)
        if lite == 2: a(f"s_sub_u32 s82, {spin_limit + 1}, s60")
        f_math()
        stamp(11)
    a(f"s_mov_b32 s60, {spin_limit}")
    a("L_s_chk:")
    tl = tag_list([80, 84, 88, 92], 12)
    a("s_waitcnt vmcnt(3)")
    emit(tl[0:4])
    a("s_waitcnt vmcnt(2)")
    emit(tl[4:8])
    for k in range(4): a(f"v_add_f32 v{100+k}, v{80+k}, v{84+k}")
    a("s_waitcnt vmcnt(1)")
    emit(tl[8:12])
    for k in range(4): a(f"v_add_f32 v{100+k}, v{100+k}, v{88+k}")
    a("s_waitcnt vmcnt(0)")
    for k in range(4): a(f"v_add_f32 v{100+k}, v{100+k}, v{92+k}")
    red = ["v_permlane32_swap_b32 v100, v102", "v_permlane32_swap_b32 v101, v103", "v_add_f32 v100, v100, v102", "v_add_f32 v101, v101, v103",
           "v_permlane16_swap_b32 v100, v101", "v_add_f32 v100, v100, v101"] + row_list("v_add_f32", 100, (4, 8))
    a(tl[12])
    emit(interleave(red, tl[13:] + join_list(12), {3: 2, 5: 2, 6: 1}))
    a("v_cmp_ne_u32 vcc, 0, v12")
    bf16r(100, 100)
    a("v_mul_f32 v100, v100, v96")
    a("s_cbranch_vccnz L_s_again")
    a("L_s_done:")
    if lite == 2: a(f"s_sub_u32 s84, {spin_limit + 1}, s60")
    if padend:
        a("L_padend:")
        a("s_memrealtime s[70:71]")
        a("s_waitcnt lgkmcnt(0)")
        a("s_sub_u32 s70, s70, s64")
        a(f"s_cmp_lt_u32 s70, {padend}")
        a("s_cbranch_scc1 L_padend")
    stamp(13)
    bf16r(100, 100)
    a("v_add_f32 v100, v100, v22")
    a("v_cvt_pk_bf16_f32 v80, v100, v100")
    setexec(0x000f000f, 0x000f000f)
    if leak:
        a("s_cmp_lg_u32 s95, 0")
        a("s_cselect_b32 s58, 0, s58")
    a(f"buffer_store_short v80, v20, s[56:59], s46 offen{outsc}")
    if ackst: a("s_waitcnt vmcnt(0)")
    stamp(14)
    if not eearly:
        a("s_cmp_eq_u32 s2, 0")
        a("s_cbranch_scc0 L_hend")
        a("s_mov_b64 exec, 1")
        a(f"s_mov_b32 s4, {EPOCH}")
        a(f"buffer_store_dword v{TG}, v0, s[48:51], s4 offen{outsc}")
    if leak:
        a("v_mov_b32 v12, 0x600df00d")
        a("buffer_store_dword v12, v0, s[48:51], s4 offen offset:4")
    a("L_hend:")
    dump_stamps(12, 13)
    if late is not None:
        a("s_mov_b64 exec, 0xff")
        a("s_lshl_b32 s4, s2, 7")
        a("s_add_u32 s4, s4, 0x800000")
        a(f"buffer_store_dwordx4 v[8:11], v6, s[48:51], s4 offen {late}")
    a("s_endpgm")

    a("L_s_again:")
    a("s_sub_u32 s60, s60, 1")
    a("s_cbranch_scc1 L_s_done")
    a("s_mov_b64 exec, vcc")
    s_loads()
    a("s_mov_b64 exec, -1")
    a("s_branch L_s_chk")

    role[0] = "T"
    a("L_ticket:")
    if tp0: a(f"s_setprio {tp0}")
    assert two
    a("s_cmp_lg_u32 s3, 6")
    a("s_cbranch_scc1 L_t_noent")
    pool_id(11)
    pool_member(6)
    if two:
        assert npool == 4 and dyn % 2 == 0 and lex % 2 == 0
        light_test()
        a(f"s_cselect_b32 s9, {lex // 2}, 0")
        a(f"s_add_u32 s8, s9, {dyn // 2}")
        a("v_subrev_u32 v15, s8, v0")
        a("v_cmp_gt_u32 s[100:101], s8, v0")
        a("v_cndmask_b32 v28, v15, v0, s[100:101]")
        a("s_lshl_b32 s4, s9, 4")
        a("s_sub_u32 s6, s6, s4")
        a("v_lshl_add_u32 v15, v28, 4, s6")
        a("s_bfe_u32 s4, s2, 0x10002")
        a(f"s_add_u32 s4, s4, {mem * dyn // 2}")
        a("v_lshl_add_u32 v31, v28, 1, s4")
        a("v_cmp_gt_u32 vcc, s9, v28")
        a("v_cndmask_b32 v15, v15, v31, vcc")
        a(f"s_mul_i32 s6, s11, {prot}")
        a("v_lshl_add_u32 v15, v15, 1, s6")
        a("v_and_b32 v15, 255, v15")
        a("s_lshl_b32 s7, s11, 21")
        a("v_lshl_add_u32 v15, v15, 13, s7")
        a("v_cndmask_b32 v28, 4, 8, s[100:101]")
        a("v_or_b32 v15, v15, v28")
        a("s_lshl_b32 s9, s9, 1")
    a("v_or_b32 v15, 1, v15")
    a("v_lshl_add_u32 v14, v0, 2, v1")
    if kdyn:
        a("s_bfm_b64 exec, s8, 0")
    elif lex:
        a(f"s_add_u32 s9, s9, {dyn}")
        a("s_bfm_b64 exec, s9, 0")
    else:
        a(f"s_mov_b64 exec, {(1 << dyn) - 1}")
    a(f"ds_write_b32 v14, v15 offset:{TQ}")
    a("s_mov_b64 exec, -1")
    if kdyn:
        assert dyn // 2 + lex // 2 + kdyn[1] <= 8 and kdyn[1] * mem >= kdyn[0]
        a(f"s_mul_i32 s10, s11, {cstride}")
        a(f"s_add_u32 s10, s10, {TCN + 128}")
        a("s_add_u32 s58, s38, s10")
        a("s_addc_u32 s59, s39, 0")
        a("s_add_u32 s20, s13, 0x01010101")
        a(f"s_xor_b32 s21, s20, {TAGX}")
        pool_member(9)
        a("s_cmp_lg_u32 s9, 0")
        a("s_cbranch_scc1 L_t_noinit")
        a("v_mov_b32 v20, 0")
        a("v_mov_b32 v21, s20")
        a("v_mov_b32 v22, s21")
        a("v_mov_b32 v23, s20")
        a("s_mov_b64 exec, 1")
        a("buffer_store_dwordx4 v[20:23], v0, s[48:51], s10 offen sc1")
        a("s_mov_b64 exec, -1")
        a("L_t_noinit:")
        a(f"s_add_u32 s9, s8, {kdyn[1]}")
        a(f"s_add_u32 s6, s6, {2 * (mem * dyn // 2 + lex)}")
        a("s_or_b32 s7, s7, 9")
        a(f"s_sub_u32 s4, s8, {kahead}")
        lds_spin(STARTED, "s4", 12, 4)
        a(f"s_mov_b32 s60, {spin_limit}")
        a("L_t_rdy:")
        a("s_load_dwordx4 s[28:31], s[58:59], 0 glc")
        a("s_sub_u32 s60, s60, 1")
        a("s_cbranch_scc1 L_t_claim")
        a("s_waitcnt lgkmcnt(0)")
        a("s_xor_b32 s29, s29, s20")
        a("s_xor_b32 s30, s30, s21")
        a("s_xor_b32 s31, s31, s20")
        a("s_or_b32 s29, s29, s30")
        a("s_or_b32 s29, s29, s31")
        a("s_cbranch_scc1 L_t_rdy")
        a("L_t_claim:")
        a(f"s_sub_u32 s4, s8, {kahead - 1}")
        lds_spin(STARTED, "s4", 12, 1)
        a("s_mov_b32 s15, 1")
        a("s_atomic_add s15, s[58:59], 0 glc")
        a("s_waitcnt lgkmcnt(0)")
        a(f"s_cmp_ge_u32 s15, {kdyn[0]}")
        a("s_cbranch_scc1 L_t_claimed")
        a("s_lshl1_add_u32 s4, s15, s6")
        a("s_and_b32 s4, s4, 255")
        a("s_lshl_b32 s4, s4, 13")
        a("s_add_u32 s4, s4, s7")
        a("s_lshl_b64 exec, 1, s8")
        a("v_mov_b32 v15, s4")
        a(f"ds_write_b32 v14, v15 offset:{TQ}")
        a("s_mov_b64 exec, -1")
        a("s_add_u32 s8, s8, 1")
        a("s_cmp_lt_u32 s8, s9")
        a("s_cbranch_scc1 L_t_claim")
        a("L_t_claimed:")
        a("v_xor_b32 v15, 12, v15")
        a("s_lshl_b32 s4, s8, 2")
        a("v_add_u32 v14, s4, v14")
        a("v_mov_b32 v13, s8")
        a("s_bfm_b64 exec, s8, 0")
        a(f"ds_write_b32 v14, v15 offset:{TQ}")
        a(f"ds_write_b32 v1, v13 offset:{GATE}")
        a("s_mov_b64 exec, -1")
    a("L_t_noent:")
    if otouch:
        a("s_cmp_lg_u32 s3, 7")
        a("s_cbranch_scc1 L_t_notouch2")
        need(otouch[0], sleep=8, count=False)
        a(f"s_mul_i32 s4, s2, {RSO}")
        a(f"s_add_u32 s4, s4, {OP}")
        if otouch[1] == "r":
            a("v_lshlrev_b32 v14, 7, v0")
            a("s_mov_b32 exec_hi, 0")
            a("buffer_load_dword v17, v14, s[48:51], s4 offen")
            a("s_mov_b64 exec, -1")
        else:
            for k in range(4): a(f"v_not_b32 v{20+k}, s13")
            for k in range(4): a(f"buffer_store_dwordx4 v[20:23], v6, s[48:51], s4 offen offset:{1024*k} sc1")
        a("L_t_notouch2:")
    pool_id(11)
    if stouch:
        a("s_cmp_lg_u32 s3, 7")
        a("s_cbranch_scc1 L_t_notouch")
        k = [64]
        def tch(p, off, imm=0):
            if imm: a(f"s_add_u32 s{off}, s{off}, {imm}")
            a(f"s_load_dword s{k[0]}, s[{p}:{p+1}], s{off}")
            k[0] += 1
        if "g" in stouch:
            a(f"s_mul_i32 s6, s14, {256*7168}")
            tch(28, 6); tch(30, 6); tch(28, 6, 255 * 7168); tch(30, 6)
        if "k" in stouch:
            a("s_lshl_b32 s6, s11, 21")
            tch(18, 6); tch(20, 6)
        if "t" in stouch:
            if "d" in stouch: need(40, sleep=8, count=False)
            wd_row(6)
            a(f"s_mul_i32 s6, s6, {224*2048}")
            tch(32, 6); tch(32, 6, 223 * 2048)
            rr_cc(6, 7)
            a("s_lshl_b32 s6, s6, 17")
            tch(24, 6)
        if "w" in stouch:
            a(f"s_mov_b32 s6, {0x280000}")
            tch(38, 6)
        a("s_waitcnt lgkmcnt(0)")
        a("L_t_notouch:")
    if kmap in "DEFGH":
        if kmap == "F":
            a("s_lshr_b32 s9, s11, 1")
            a("s_lshl_b32 s12, s9, 4")
            a("s_lshl_b32 s9, s9, 22")
            a("s_mov_b32 s8, s11")
        else:
            a(f"s_mul_i32 s12, s11, {prot}")
            a("s_lshl_b32 s9, s11, 21")
        a(f"s_add_u32 s12, s12, {reg - nshared}")
        a("s_or_b32 s9, s9, 1")
        if kmap == "H":
            a("s_and_b32 s8, s11, 3")
            a("s_and_b32 s9, s11, 12")
    elif kmap == "C":
        a(f"s_and_b32 s12, s11, {npool-1}")
        a("s_lshr_b32 s9, s2, 6")
        a(f"s_mul_i32 s4, s9, {rot}")
        a("s_add_u32 s12, s12, s4")
        a("s_lshl_b32 s12, s12, 13")
        a(f"s_add_u32 s12, s12, {64*dyn*8192 + 1}")
        a("s_lshl_b32 s9, s9, 23")
    else:
        a(f"s_mul_i32 s12, s11, {reg*8192}")
        a(f"s_add_u32 s12, s12, {mem*dyn*8192 + 1}")
    a(f"s_mul_i32 s11, s11, {cstride}")
    a(f"s_add_u32 s11, s11, {TCN}")
    a("s_add_u32 s56, s38, s11")
    a("s_addc_u32 s57, s39, 0")
    if kdyn:
        lds_spin(GATE, 1, 12, 8)
        a("s_min_u32 s61, s61, 8")
        a("s_lshl1_add_u32 s10, s61, s3")
        a("s_sub_u32 s10, s10, 6")
    else: a(f"s_add_u32 s10, s3, {dyn - 6}")
    if first3: a(f"s_mov_b32 s22, {first3}")
    if lex and not kdyn:
        light_test()
        a(f"s_cselect_b32 s4, {lex}, 0")
        a("s_add_u32 s10, s10, s4")
    if early_t:
        a("s_waitcnt lgkmcnt(0)")
        a("s_add_u32 s13, s13, 0x01010101")
        a(f"s_xor_b32 s14, s13, {TAGX}")
        a("v_mov_b32 v12, 1")
        a("s_mov_b64 exec, 1")
        a(f"ds_add_u32 v1, v12 offset:{QCNT}")
        pool_member(6)
        a("s_add_u32 s6, s6, s3")
        a("s_cmp_lg_u32 s6, 6")
        a("s_cbranch_scc1 L_t_noinit")
        a("v_mov_b32 v20, 0")
        a("v_mov_b32 v21, s13")
        a("v_mov_b32 v22, s14")
        a("v_mov_b32 v23, s13")
        a("buffer_store_dwordx4 v[20:23], v0, s[48:51], s11 offen sc1")
        a("L_t_noinit:")
        a("s_mov_b64 exec, -1")
        a(f"s_sub_u32 s11, s10, {ahead}")
        a("s_max_i32 s11, s11, 0")
        light_test()
        a("s_cselect_b32 s4, 4, 14")
        need("s4", sleep=4, count=False)
        a(f"s_mov_b32 s60, {spin_limit}")
        a("L_t_rdy:")
        a("s_load_dwordx4 s[28:31], s[56:57], 0 glc")
        a("s_sub_u32 s60, s60, 1")
        a("s_cbranch_scc1 L_t_next")
        a("s_waitcnt lgkmcnt(0)")
        a("s_xor_b32 s29, s29, s13")
        a("s_xor_b32 s30, s30, s14")
        a("s_xor_b32 s31, s31, s13")
        a("s_or_b32 s29, s29, s30")
        a("s_or_b32 s29, s29, s31")
        a("s_cbranch_scc0 L_t_next")
        a("s_sleep 8")
        a("s_branch L_t_rdy")
    else:
        lds_spin(QCNT, 4 if eearly else 5, 12, 8)
    if eearly:
        a("s_and_b32 s4, s2, 63")
        a("s_lshl_b32 s4, s4, 3")
        a("s_or_b32 s4, s4, s3")
        a("s_cmp_lg_u32 s4, 7")
        a("s_cbranch_scc1 L_t_next")
        a("s_mov_b32 s15, 1")
        a("s_atomic_add s15, s[36:37], 64 glc")
        a("s_add_u32 s13, s13, 0x01010101")
        a("v_mov_b32 v15, s13")
        a(f"s_mov_b32 s4, {EPOCH}")
        a("s_waitcnt lgkmcnt(0)")
        a("s_and_b32 s15, s15, 3")
        a("s_cmp_lg_u32 s15, 3")
        a("s_cbranch_scc1 L_t_next")
        a("s_mov_b64 exec, 1")
        a("buffer_store_dword v15, v0, s[48:51], s4 offen sc1")
        a("s_mov_b64 exec, -1")
    if touch:
        a("s_cmp_eq_u32 s3, 6")
        a("s_cselect_b64 s[40:41], s[32:33], s[24:25]")
        a("s_cselect_b32 s42, 7340032, s43")
        a("s_cselect_b32 s42, s42, 8388608")
        a("s_cselect_b64 exec, 0x7f, 3")
        rr_cc(6, 7)
        a("s_lshl_b32 s6, s6, 17")
        a("s_lshr_b32 s7, s2, 4")
        a(f"s_mul_i32 s7, s7, {224*2048}")
        a("s_cmp_eq_u32 s3, 6")
        a("s_cselect_b32 s6, s7, s6")
        a("v_lshlrev_b32 v14, 16, v0")
        a("buffer_load_dword v17, v14, s[40:43], s6 offen nt")
        a("s_mov_b64 exec, -1")
    a("L_t_next:")
    a(f"s_sub_u32 s11, s10, {ahead - 1}")
    if first3:
        a("s_sub_u32 s11, s11, s22")
        a("s_mov_b32 s22, 0")
    lds_spin(STARTED, "s11", 12, tsleep)
    a("s_mov_b32 s15, 1")
    a("s_atomic_add s15, s[56:57], 0 glc")
    a("s_lshl_b32 s4, s10, 2")
    a("v_add_u32 v14, s4, v1")
    a("s_waitcnt lgkmcnt(0)")
    if not empt: a(f"s_min_u32 s15, s15, {nshared-1}")
    if kmap in "DEFGH":
        if kmap == "H":
            a("s_add_u32 s5, s15, s8")
            a("s_and_b32 s5, s5, 3")
            a("s_or_b32 s5, s5, s9")
            a("s_and_b32 s4, s15, -4")
            a("s_add_u32 s4, s4, s8")
            a(f"s_add_u32 s4, s4, {mem*dyn}")
            a("s_lshl4_add_u32 s4, s5, s4")
        else:
            a("s_add_u32 s4, s15, s12")
        a("s_and_b32 s4, s4, 255")
        if kmap == "F":
            a("s_lshr_b32 s5, s4, 7")
            a("s_xor_b32 s5, s5, s8")
            a("s_and_b32 s5, s5, 1")
            a("s_lshl_b32 s4, s4, 1")
            a("s_add_u32 s4, s4, s5")
        if split:
            a("s_and_b32 s5, s4, 1")
            a("s_lshl_b32 s5, s5, 12")
        a("s_lshl_b32 s4, s4, 13")
        if split: a("s_sub_u32 s4, s4, s5")
        if kmap == "H":
            a("s_lshl_b32 s5, s5, 21")
            a("s_add_u32 s4, s4, s5")
            a("s_or_b32 s4, s4, 1")
        else:
            a("s_add_u32 s4, s4, s9")
    else:
        a(f"s_lshl_b32 s4, s15, {13 + (lgp if kmap == 'C' else 0)}")
        a("s_add_u32 s4, s4, s12")
    if kmap == "C":
        a("s_and_b32 s4, s4, 0x7fffff")
        a("s_add_u32 s4, s4, s9")
    if ztab:
        tab = sum(g << (4 * i) for i, g in enumerate(ztab))
        a(f"s_sub_u32 s5, s15, {zone}")
        a("s_and_b32 s5, s5, 0x1c")
        a(f"s_lshr_b32 s5, {tab}, s5")
        a("s_and_b32 s5, s5, 15")
        a("s_lshl_b32 s5, s5, 4")
        a("s_or_b32 s4, s4, s5")
    if wide:
        a(f"s_cmp_ge_u32 s15, {max(0, zone - wide[1])}")
        a("s_cselect_b32 s5, 16, 0")
        a("s_or_b32 s4, s4, s5")
    if empt:
        a(f"s_cmp_lt_u32 s15, {nshared}")
        a("s_cselect_b32 s4, s4, 0")
    a(f"s_add_u32 s10, s10, {ntw}")
    a(f"s_cmp_lt_u32 s15, {zone}")
    a("s_cselect_b32 s5, 0, 2")
    a("v_mov_b32 v15, s4")
    a("v_or_b32 v15, s5, v15")
    a(f"ds_write_b32 v14, v15 offset:{TQ}")
    a("s_cbranch_scc1 L_t_next")
    if direct: sig2 = False
    if sig1 is not None or sig2:
        L = a.label("L_nt"); D = a.label("L_ntd")
        a(f"s_mov_b32 s60, {spin_limit}")
        a(f"{L}:")
        refresh()
        a(f"s_cmp_lg_u32 s97, {BIG}")
        a(f"s_cbranch_scc1 {D}")
        a("s_sleep 2")
        a("s_sub_u32 s60, s60, 1")
        a(f"s_cbranch_scc0 {L}")
        a(f"{D}:")
        light_test()
        a("s_cselect_b32 s10, 2, 6")
        a("s_add_u32 s10, s10, s97")
        a("s_lshl_b32 s10, s10, 2")
        a("s_cmp_eq_u32 s3, 6")
        a("s_cbranch_scc1 L_t_zero")
    if rk:
        pool_id(6)
        a("s_lshr_b32 s4, s6, 2")
        a("s_lshl_b32 s7, s4, 14")
        if not rkgrp:
            a("s_and_b32 s5, s6, 3")
            a("s_lshl_b32 s8, s5, 8")
            a("s_add_u32 s7, s7, s8")
        a(f"s_add_u32 s7, s7, {AC1}")
        a("s_add_u32 s56, s38, s7")
        a("s_addc_u32 s57, s39, 0")
        a("s_mov_b32 s15, 1")
        a(f"s_add_u32 s11, s10, {rkat & 0xffffffff}")
        need("s11", sleep=1)
        a("s_atomic_add s15, s[56:57], 0 glc")
        tab = sum(g << (2 * i) for i, g in enumerate(rk))
        a(f"s_mov_b32 s6, {tab}")
        a("s_waitcnt lgkmcnt(0)")
        if rkgrp: a("s_lshr_b32 s15, s15, 2")
        a("s_lshl_b32 s15, s15, 1")
        a("s_lshr_b32 s6, s6, s15")
        a("s_and_b32 s6, s6, 3")
        a("v_mov_b32 v15, s6")
        a(f"ds_write_b32 v1, v15 offset:{GATE}")
    if sig1 is not None:
        pool_id(6)
        a("s_lshr_b32 s4, s6, 2")
        a("s_and_b32 s5, s6, 3")
        a("s_lshl_b32 s7, s4, 14")
        a("s_lshl_b32 s8, s5, 8")
        a("s_add_u32 s7, s7, s8")
        a(f"s_add_u32 s7, s7, {AC1}")
        a("s_add_u32 s56, s38, s7")
        a("s_addc_u32 s57, s39, 0")
        a("s_mov_b32 s15, 1")
        a("s_sub_u32 s11, s10, 2")
        need("s11", sleep=1)
        lds_spin(PCNT, sig1, 12, 0)
        for i in range(16): a(f"s_atomic_add s15, s[56:57], {1024*i}")
    if sig1 is not None or sig2:
        a("s_endpgm")
        a("L_t_zero:")
        rr_cc(6, 7)
    if sig1 is not None:
        a("s_lshl_b32 s5, s6, 10")
        a(f"s_add_u32 s5, s5, {AC1}")
        a("s_add_u32 s56, s38, s5")
        a("s_addc_u32 s57, s39, 0")
        a("v_mov_b32 v15, 1")
        a(f"s_add_u32 s11, s10, {s1from}")
        need("s11", sleep=1)
        L = a.label("L_w"); D = a.label("L_wd")
        a(f"s_mov_b32 s60, {spin_limit}")
        a(f"{L}:")
        for k in range(4): a(f"s_load_dword s{28+k}, s[56:57], {256*k} glc")
        a("s_waitcnt lgkmcnt(0)")
        a("s_add_u32 s28, s28, s29")
        a("s_add_u32 s30, s30, s31")
        a("s_add_u32 s28, s28, s30")
        a("s_cmp_eq_u32 s28, 64")
        a(f"s_cbranch_scc1 {D}")
        a("s_sub_u32 s60, s60, 1")
        a(f"s_cbranch_scc0 {L}")
        a(f"{D}:")
        a(f"ds_write_b32 v1, v15 offset:{GO}")
    if sig2:
        a(f"s_lshl_b32 s7, s7, {ash}")
        a("s_lshr_b32 s5, s2, 6")
        a("s_lshl_b32 s5, s5, 8")
        a("s_add_u32 s7, s7, s5")
        a(f"s_add_u32 s7, s7, {AC2}")
        a("v_mov_b32 v15, 1")
        ac_lane(14)
        if ssend:
            a("s_add_u32 s56, s38, s7")
            a("s_addc_u32 s57, s39, 0")
            a("s_mov_b32 s15, 1")
        a("s_add_u32 s10, s10, 15")
        need("s10", sleep=1)
        if tprio and not tp0: a(f"s_setprio {tprio}")
        lds_spin(OCNT if sig2late else GCNT, gneed, 12, 0)
        if ssend:
            for i in range(16): a(f"s_atomic_add s15, s[56:57], {1024*i}")
        else:
            a("s_mov_b64 exec, 0xffff")
            a("buffer_atomic_add v15, v14, s[48:51], s7 offen sc1")
        if lite == 2:
            stamp(1)
            dump_stamps(12, 13)
    a("L_end:")
    a("s_endpgm")
    a("L_codeend:")
    name = NAME + "_kernel"
    hdr = open("cdna_kernels/" + NAME + ".s.ref").read().split("; Override launch")[0]
    txt = hdr + header([f"@launch grid=(256,1,1) block=({64*(6+ntw)},1,1) lds={LDS_BYTES}"]) + (DOC if comments else "") + kernel_begin(name) + a.text() + rodata() + \
        kernel_desc(name, 184, 102, extra="  .amdhsa_float_denorm_mode_32 3\n")
    return txt

BASE = dict(gate=13, sig2=True, dyn=12, lex=2, empt=12, flate=True, qstart=32, qlight=24, hstart=64, grow=(8, 32), two=True, dmap=True, fw=(1, 1), cmap="qu",
            oneline=True, eearly=True, fat=48, tprio=3, side=0, apar=0)
if __name__ == "__main__":
    open("final.s", "w").write(gen(comments=True, **BASE))
    V = {"k49": {}, "k49b": {}, "k49p": dict(tp0=3), "k49pb": dict(tp0=3), "k49pt": dict(tp0=3, tsleep=0), "k49ph": dict(tp0=3, hp=1), "k49px4": dict(tp0=3, lex=4), "k49ps1": dict(tp0=3, spos=1)}
    for k, v in V.items():
        v = dict(BASE, **v)
        open(k + ".s", "w").write(gen(**v))
        open(k + "_lt.s", "w").write(gen(lite=True, **v))
        open(k + "_st.s", "w").write(gen(stamps=True, **v))
```

```python
import sys
from asmlib import *

QP, GP, CNT, OCN, EPOCH, SP, FP, OP, STAMP = 0, 0x10000, 0x30000, 0x34000, 0x3F000, 0x40000, 0xD0000, 0x100000, 0x400000
MISC = 0x20000
TQ, STARTED, GATE, GCNT, PCNT = 0x1100, 0x21C, 0x220, 0x224, 0x228
POST, PROG, QCNT, OCNT, GO, ZER, XN, HL, OL, QL = 0, 0x200, 0x210, 0x214, 0x218, 0x240, 0x300, 0x500, 0x700, 0x800
QROW = 272
SCR = 0x1700
SB = 0x1B00
LDS_BYTES = MISC + 0x3B00
TCN, AC1, AC2 = 0x340000, 0x390000, 0x3A0000
LOG2E = 0x3fb8aa3b
SCALE = 0x3db504f3
DPP = "row_mask:0xf bank_mask:0xf"
BIG = -1
TAGX = 0x5ac3a569

DOC = """
; out = x + (attn(LN(x)) @ wo) * silu(swiglu(LN(x))), one launch, one 8-wave workgroup per CU (all 256 are resident).
;
; Every input byte is streamed once, HBM -> LDS ring (8 slots x 16 KB), by wave 0 in this order:
;
; Hand-offs between workgroups go through d_ws with write-through stores (sc1) and sc1 loads:
;   f partials [16][1024], all fp32. Each 16-byte granule carries this launch's tag in the low byte of its words and
;   is only accepted together with the neighbours stored by the same instruction (readers clear those bytes again). The tag is the word found at
;   d_ws + 0x3f000 plus 0x01010101; it replaces that word once every workgroup has read it, so stale hand-offs never match.
;   The counters in d_ws (tickets, arrival hints) are reset inside the launch before the q hand-off that precedes their use.
"""

def interleave(chain, fill, gaps):
    out = []; fill = list(fill)
    for i, x in enumerate(chain):
        out.append(x)
        for _ in range(gaps.get(i, 0)):
            if fill: out.append(fill.pop(0))
    return out + fill

def gen(nt="nt", stamps=False, spin_limit=2000000, win=24, dyn=10, npool=4, outsc="", gate=10, skew=128, vtick=False,
        fsleep=0, osleep=1, qsleep=4, probe=None, cgate=False, early=True, ahead=2, ntw=2, cstride=256, late=None, gtab=None, ztab=None, wtab=None, spw=False, opw=False, fatom=False, leak=None, fine=False, wins=None, csleep=0, pace=0, pnop=0, cpf=True, sig1=None, sig2=False, touch=False, sig2late=False, lite=False, half=False, dup2=False, kmap='E', rot=0, early_t=False, empt=0, spos=0, abl='', win1=None, n1=9, hstart=0, qstart=0, sigpos='chk', gneed=4, flate=False, qlight=None, lex=0, gumix=False, w2=False, rk=None, rk0=4, rkgrp=False, rkat=-5, grow=None, tsleep=1, shardrd=False, s1pos='last', s1from=9, two=False, prot=16, dmap=False, fw=None, stouch=None, ofirst=True, pfn=None, comments=False, otouch=None, ost='sc1', old_='sc1', sched=None, wide=None, cmap='', ush=28, gui=False, lv=None, pre=None, ackst=False, delta=None, oneline=False, eearly=False, padend=0, w2s=0, fat=0, tprio=0, echk=False, ssend=False, direct=False, side=None, apar=None, spar=None, split=False, kdyn=None, kahead=2, first3=0, tp0=0, hp=0, egate=False, sneed=15, xlin=False, shard=False, sel3=False, fastw=0, al=None, clean=False):
    a = Asm()
    a.comments = comments
    sw = 1 if spw else 0
    ow = 1 if opw else 0
    RS = 4096 + skew
    RSS = (4096 << sw) + skew
    SP, AC2 = globals()["SP"], globals()["AC2"]
    if spar is not None: SP = 0x600000 + 8192 * spar; RSS = 16384 + 128
    if apar is not None: AC2 += 8192 * apar
    ash = 15 if apar is not None else 14
    def ac_lane(d):
        a(f"v_lshlrev_b32 v{d}, 10, v0")
        if apar is not None:
            a(f"v_and_b32 v12, 0x2000, v{d}")
            a(f"v_add_u32 v{d}, v{d}, v12")
    RSO = (4096 << ow) + skew
    NT = " " + nt if nt else ""
    role = ["-"]
    def stamp(k):
        if delta is not None and probe and (role[0], k) == (probe[0], delta): a("s_memrealtime s[74:75]")
        if lite and (k == 0 or (role[0], k) == ("H", 14) or (lite == 2 and (role[0], k) in (("C", 13), ("L", 6), ("H", 6), ("H", 13), ("T", 1), ("H", 11)))): a(f"s_memrealtime s[{64+2*k}:{65+2*k}]")
        if stamps or (leak and (k == 0 or (role[0], k) in [x[:2] for x in leak])): a(f"s_memrealtime s[{64+2*k}:{65+2*k}]")
        if probe and (k == 0 or (role[0], k) == probe[:2]): a(f"s_memrealtime s[{64+2*min(k,1)}:{65+2*min(k,1)}]")
    def leak_out():
        if not leak: return
        mine = [(i, x) for i, x in enumerate(leak) if x[0] == role[0]]
        Ln = a.label("L_noleak")
        a("s_waitcnt lgkmcnt(0)")
        srd(48, 38, 268435456)
        a("s_mov_b64 exec, 1")
        a("s_cmp_eq_u32 s93, 0")
        a(f"s_cbranch_scc1 {Ln}")
        for i, x in mine:
            if len(x) > 2:
                Ls = a.label("L_lk")
                a(f"s_cmp_lg_u32 s3, {x[2]}")
                a(f"s_cbranch_scc1 {Ls}")
            a(f"s_and_b32 s4, s{64+2*x[1]}, 0x3fff")
            a("v_mov_b32 v12, s4")
            a("s_lshl_b32 s4, s2, 3")
            a(f"s_add_u32 s4, s4, {2*i + 0x500000}")
            a("buffer_store_short v12, v0, s[48:51], s4 offen")
            if len(x) > 2: a(f"{Ls}:")
        a(f"{Ln}:")
        if role[0] == "H":
            Ln = a.label("L_noleak")
            a("s_cmp_eq_u32 s95, 0")
            a(f"s_cbranch_scc1 {Ln}")
            srd(52, 34, 2048)
            a("s_lshl_b32 s4, s2, 3")
            a("s_add_u32 s5, s4, 0x500000")
            a("buffer_load_dwordx2 v[12:13], v0, s[48:51], s5 offen")
            a("s_waitcnt vmcnt(0)")
            a("buffer_store_dwordx2 v[12:13], v0, s[52:55], s4 offen")
            a(f"{Ln}:")
    def leak_flag():
        if not leak: return
        a(f"s_load_dword s95, s[38:39], {EPOCH+4}")
        a("s_load_dword s94, s[16:17], 0")
        a("s_waitcnt lgkmcnt(0)")
        a("s_cmp_lg_u32 s95, 0x600df00d")
        a("s_cselect_b32 s93, 1, 0")
        a("s_cselect_b32 s95, 0, 1")
        a("s_cmp_lg_u32 s94, 0x3c6e3d96")
        a("s_cselect_b32 s95, s95, 0")
        a("s_cmp_lg_u32 s94, 0x3a3abc25")
        a("s_cselect_b32 s95, s95, 0")
    def probe_pad():
        if not probe or probe[0] != role[0]: return
        def until(base, lim):
            L = a.label("L_pp")
            a(f"{L}:")
            a("s_sleep 1")
            a("s_memrealtime s[70:71]")
            a("s_waitcnt lgkmcnt(0)")
            a(f"s_sub_u32 s70, s70, {base}")
            a(f"s_cmp_lt_u32 s70, {lim}")
            a(f"s_cbranch_scc1 {L}")
        a("s_waitcnt lgkmcnt(0)")
        a("s_cmp_eq_u32 s67, -1")
        a("s_cselect_b32 s66, s64, s66")
        a("s_cselect_b32 s69, 1, 0")
        until("s64", 2200)
        a("s_not_b32 s72, s64")
        a("s_atomic_umax s72, s[36:37], 0")
        until("s64", 3200)
        a("s_load_dword s72, s[36:37], 0 glc")
        a("s_waitcnt lgkmcnt(0)")
        a("s_not_b32 s72, s72")
        if delta is None: a("s_sub_u32 s66, s66, s72")
        else:
            a("s_sub_u32 s66, s66, " + ("s74" if delta else "s64"))
            a("s_cmp_eq_u32 s69, 1")
            a("s_cselect_b32 s66, 0, s66")
        if len(probe) > 3:
            a("s_atomic_add s66, s[36:37], 128")
            until("s64", 4400)
            a("s_load_dword s66, s[36:37], 128 glc")
            a("s_waitcnt lgkmcnt(0)")
            a("s_lshr_b32 s66, s66, 8")
        if probe[2] < 0 and probe[1]:
            a("s_cmp_eq_u32 s69, 1")
            a("s_cbranch_scc1 L_end")
        a(f"s_mul_i32 s66, s66, {probe[2]}")
        a(f"s_add_u32 s68, s66, {6000 if probe[2] >= 0 else 20000}")
        if lv:
            srd(48, 38, 268435456)
            kind, sc = lv[:2]
            a("s_and_b32 s4, s2, 7"); a("s_lshr_b32 s5, s2, 5")
            if kind in ("cur",):
                a("s_lshr_b32 s6, s5, 1"); a("s_lshl_b32 s6, s6, 3"); a("s_or_b32 s6, s6, s4"); a("s_lshl_b32 s6, s6, 1")
                a("s_and_b32 s5, s5, 1"); a("s_add_u32 s6, s6, s5")
            else:
                a("s_lshr_b32 s6, s5, 2"); a("s_lshl_b32 s6, s6, 3"); a("s_or_b32 s6, s6, s4"); a("s_lshl_b32 s6, s6, 2")
                a("s_and_b32 s5, s5, 3"); a("s_add_u32 s6, s6, s5")
            a("s_lshr_b32 s7, s6, 2"); a("s_lshl_b32 s7, s7, 7"); a("s_and_b32 s6, s6, 3")
            a(f"s_lshl_b32 s8, s6, {3 if kind in ('cur', 'one') else 5}")
            a("s_add_u32 s7, s7, s8"); a("s_add_u32 s7, s7, 0x800000")
            a("v_and_b32 v13, 3, v0"); a("v_lshlrev_b32 v20, 5, v13"); a("v_lshl_add_u32 v20, v4, 1, v20")
            a("v_lshlrev_b32 v21, 2, v0"); a("v_lshlrev_b32 v22, 1, v0")
        until("s72", "s68")
        if lv:
            a("s_and_b32 s4, s2, 0x18")
            a("s_cbranch_scc1 L_end")
            if kind in ("cur", "one"):
                setexec(0x000f000f, 0x000f000f)
                a(f"buffer_store_short v0, v20, s[48:51], s7 offen {sc}")
                if len(lv) > 2:
                    a("s_cmp_lg_u32 s2, 0")
                    a("s_cbranch_scc1 L_end")
                    a(f"s_mov_b32 s7, {EPOCH + 0x80}")
                    a("s_mov_b32 exec_hi, 0")
                    a(f"s_mov_b32 exec_lo, {1 if lv[2] == 'p' else -1}")
                    a(f"buffer_store_dword v0, v21, s[48:51], s7 offen {lv[3]}")
            elif kind == "c32":
                a("s_mov_b64 exec, 0xff")
                a(f"buffer_store_dword v0, v21, s[48:51], s7 offen {sc}")
            elif kind == "s32":
                a("s_mov_b64 exec, 0xffff")
                a(f"buffer_store_short v0, v22, s[48:51], s7 offen {sc}")
            elif kind == "full":
                a("s_cmp_lg_u32 s6, 0")
                a("s_cbranch_scc1 L_end")
                a("s_mov_b32 exec_hi, 0")
                a(f"buffer_store_dword v0, v21, s[48:51], s7 offen {sc}")
    def dump_stamps(vt, va):
        probe_pad()
        leak_out()
        if not (stamps or (lite and role[0] == "H") or lite == 2): return
        if lite == 2 and role[0] != "H":
            a("s_sleep 127")
            if role[0] == "L":
                a("s_mov_b32 s3, 4")
                srd(48, 38, 268435456)
        a("s_waitcnt lgkmcnt(0)")
        a("s_mov_b64 exec, -1")
        a(f"v_mov_b32 v{vt}, 0")
        for k in range(16):
            a(f"v_writelane_b32 v{vt}, s{64+2*k}, {k}")
        a("s_lshl_b32 s4, s2, 3")
        a("s_add_u32 s4, s4, s3")
        a("s_lshl_b32 s4, s4, 6")
        a(f"s_add_u32 s4, s4, {STAMP}")
        a(f"v_lshlrev_b32 v{va}, 2, v0")
        a("s_mov_b64 exec, 0xffff")
        a(f"buffer_store_dword v{vt}, v{va}, s[48:51], s4 offen")
    def srd(d, p, n):
        a(f"s_mov_b64 s[{d}:{d+1}], s[{p}:{p+1}]")
        a(f"s_mov_b32 s{d+2}, {n}")
        a(f"s_mov_b32 s{d+3}, 0x20000")
    def setexec(lo, hi):
        a(f"s_mov_b32 exec_lo, {lo:#x}")
        a(f"s_mov_b32 exec_hi, {hi:#x}")
    def row_list(op, r, steps=(1, 2, 4, 8)):
        return [f"{op}_dpp v{r}, v{r}, v{r} row_ror:{k} {DPP}" for k in steps]
    def cross_list(op, r, t):
        return [f"v_mov_b32 v{t}, v{r}", f"v_permlane16_swap_b32 v{r}, v{t}", f"{op} v{r}, v{r}, v{t}",
                f"v_mov_b32 v{t}, v{r}", f"v_permlane32_swap_b32 v{r}, v{t}", f"{op} v{r}, v{r}, v{t}"]
    def emit(l):
        for x in l: a(x)
    def bf16r(d, s):
        a(f"v_cvt_pk_bf16_f32 v{d}, 0, v{s}")
    TG = 8
    def make_tag():
        a("s_add_u32 s13, s13, 0x01010101")
        a("s_movk_i32 s63, 0xff")
        a("v_bfe_i32 v12, v0, 0, 1")
        a(f"v_and_b32 v12, {TAGX}, v12")
        if clean:
            a("v_xor_b32 v12, s13, v12")
            for k in range(4): a(f"v_bfe_u32 v{TG+k}, v12, {8*k}, 8")
            return
        a(f"v_xor_b32 v{TG}, s13, v12")
        for k in range(1, 4): a(f"v_lshrrev_b32 v{TG+k}, {8*k}, v{TG}")
    def apply_tag(r, tags=None):
        for k in range(4): a(f"v_bfi_b32 v{r+k}, s63, v{tags[k] if tags else TG+k}, v{r+k}")
    def tag_list(grans, t, n=4):
        o = []
        for g in grans:
            for k in range(n):
                if not o: o.append(f"v_xor_b32 v{t}, v{g+k}, v{TG+k}")
                else: o.append(f"v_bitop3_b32 v{t}, v{t}, v{g+k}, v{TG+k} bitop3:0xf6")
        o.append(f"v_and_b32 v{t}, 0xff, v{t}")
        return o
    def strip(g, d, n=4):
        return [f"v_xor_b32 v{d+k}, v{g+k}, v{TG+k}" for k in range(n)]
    def gather_or(regs, t, first):
        regs = list(regs); o = []
        if first:
            o.append(f"v_or3_b32 v{t}, v{regs[0]}, v{regs[1]}, v{regs[2]}"); regs = regs[3:]
        while regs:
            o.append(f"v_or3_b32 v{t}, v{t}, v{regs[0]}, v{regs[1 % len(regs)]}"); regs = regs[2:]
        return o
    def join_list(t, quad=True):
        o = [f"v_or_b32_dpp v{t}, v{t}, v{t} quad_perm:[1,0,3,2] {DPP}"]
        if quad: o.append(f"v_or_b32_dpp v{t}, v{t}, v{t} quad_perm:[2,3,0,1] {DPP}")
        return o
    def tag_check(grans, t, quad=True):
        if clean:
            for g in grans: emit(strip(g, g))
            emit(gather_or([g + k for g in grans for k in range(4)], t, True) + [f"v_and_b32 v{t}, 0xff, v{t}"] + join_list(t, quad))
        else: emit(tag_list(grans, t) + join_list(t, quad))
        a(f"v_cmp_ne_u32 vcc, 0, v{t}")
    def treduce4(r):
        a(f"v_permlane32_swap_b32 v{r}, v{r+2}")
        a(f"v_permlane32_swap_b32 v{r+1}, v{r+3}")
        a(f"v_add_f32 v{r}, v{r}, v{r+2}")
        a(f"v_add_f32 v{r+1}, v{r+1}, v{r+3}")
        a(f"v_permlane16_swap_b32 v{r}, v{r+1}")
        a(f"v_add_f32 v{r}, v{r}, v{r+1}")
    def retry_masked(L, D, sleep=1):
        a("s_and_b64 exec, exec, vcc")
        a(f"s_cbranch_execz {D}")
        if sleep: a(f"s_sleep {sleep}")
        a("s_sub_u32 s60, s60, 1")
        a(f"s_cbranch_scc0 {L}")
        a(f"{D}:")
        a("s_mov_b64 exec, -1")
    def silu_bf16(d, x, t):
        a(f"v_mul_f32 v{t}, 0xbfb8aa3b, v{x}")
        a(f"v_exp_f32 v{t}, v{t}")
        a(f"v_add_f32 v{t}, 1.0, v{t}")
        a(f"v_rcp_f32 v{t}, v{t}")
        a(f"v_mul_f32 v{t}, v{t}, v{x}")
        bf16r(d, t)
    def lds_spin(off, n, vt, sleep=1):
        L = a.label("L_spin")
        a(f"s_mov_b32 s60, {spin_limit}")
        if sleep:
            E = a.label("L_spe")
            a(f"s_branch {E}")
        a(f"{L}:")
        if sleep:
            a(f"s_sleep {sleep}")
            a(f"{E}:")
        a(f"ds_read_b32 v{vt}, v1 offset:{off}")
        a("s_sub_u32 s60, s60, 1")
        a("s_waitcnt lgkmcnt(0)")
        a(f"v_readfirstlane_b32 s61, v{vt}")
        a("s_cselect_b32 s61, -1, s61")
        a(f"s_cmp_lt_u32 s61, {n}")
        a(f"s_cbranch_scc1 {L}")
    def refresh():
        a(f"ds_read_b64 v[12:13], v1 offset:{POST}")
        a("s_waitcnt lgkmcnt(0)")
        a("v_readfirstlane_b32 s96, v12")
        a("v_readfirstlane_b32 s97, v13")
    def need(x, sleep=0, count=True):
        if role[0] == "C": sleep = csleep
        L = a.label("L_need"); D = a.label("L_got")
        a(f"s_cmp_ge_u32 s96, {x}")
        a(f"s_cbranch_scc1 {D}")
        a(f"s_mov_b32 s60, {spin_limit}")
        a(f"{L}:")
        if sleep: a(f"s_sleep {sleep}")
        a(f"ds_read_b64 v[12:13], v1 offset:{POST}")
        a("s_sub_u32 s60, s60, 1")
        a("s_waitcnt lgkmcnt(0)")
        a("v_readfirstlane_b32 s96, v12")
        if count: a("v_readfirstlane_b32 s97, v13")
        a("s_cselect_b32 s96, -1, s96")
        if count: a("s_cselect_b32 s97, 0, s97")
        a(f"s_cmp_lt_u32 s96, {x}")
        a(f"s_cbranch_scc1 {L}")
        a(f"{D}:")
    def light_test():
        a("s_and_b32 s4, s2, 63")
        a("s_cmp_ge_u32 s4, 56")
    def wq_col(d):
        if "q" in cmap:
            a(f"s_lshr_b32 s{d}, s2, 3")
            a("s_lshl_b32 s4, s2, 1")
            a("s_and_b32 s4, s4, 8")
            a(f"s_xor_b32 s{d}, s{d}, s4")
            a(f"s_xor_b32 s{d}, s{d}, 4")
            a(f"s_and_b32 s{d}, s{d}, 15")
            a("s_lshr_b32 s4, s2, 6")
            a(f"s_lshl4_add_u32 s{d}, s4, s{d}")
        else: a(f"s_lshr_b32 s{d}, s2, 2")
    def up_shift(d, c, unit):
        if "u" in cmap:
            a(f"s_mov_b32 s{d}, {ush * unit}")
            a(f"s_cmp_ge_u32 s{c}, {56 - ush}")
            a(f"s_cselect_b32 s{d}, {((ush - 56) * unit) & 0xffffffff}, s{d}")
        else: a(f"s_mov_b32 s{d}, 0")
    def gu_col(d):
        if "g" in cmap:
            a("s_lshr_b32 s4, s2, 6")
            a("s_bfe_u32 s5, s2, 0x10002")
            a("s_lshl1_add_u32 s4, s4, s5")
            a("s_mul_i32 s4, s4, 7")
            a("s_bfe_u32 s5, s2, 0x30003")
            a(f"s_add_u32 s{d}, s4, s5")
            return
        if gumix:
            a("s_lshr_b32 s4, s2, 6")
            a("s_and_b32 s5, s2, 60")
            a(f"s_add_u32 s{d}, s4, s5")
            return
        a("s_lshr_b32 s4, s2, 6")
        a("s_mul_i32 s4, s4, 56")
        a("s_and_b32 s5, s2, 63")
        a("s_add_u32 s4, s4, s5")
        a(f"s_lshr_b32 s{d}, s4, 2")
    def wd_row(d):
        if dmap:
            a("s_lshr_b32 s62, s2, 7")
            a("s_lshl_b32 s62, s62, 3")
            a(f"s_and_b32 s{d}, s2, 7")
            a(f"s_or_b32 s{d}, s{d}, s62")
        else: a(f"s_lshr_b32 s{d}, s2, 4")
    def wd_col(d):
        if dmap: a(f"s_bfe_u32 s{d}, s2, 0x40003")
        else: a(f"s_and_b32 s{d}, s2, 15")
    def rr_cc(srr, scc):
        a(f"s_and_b32 s{srr}, s2, 7")
        a("s_lshr_b32 s62, s2, 5")
        a("s_lshl_b32 s62, s62, 3")
        a(f"s_or_b32 s{srr}, s{srr}, s62")
        a(f"s_bfe_u32 s{scc}, s2, 0x20003")
    lgp = npool.bit_length() - 1
    def pool_id(d):
        a("s_lshr_b32 s5, s2, 3")
        a("s_add_u32 s5, s5, s2")
        a(f"s_and_b32 s5, s5, {npool-1}")
        a("s_lshr_b32 s4, s2, 6")
        a(f"s_lshl_b32 s4, s4, {lgp}")
        a(f"s_add_u32 s{d}, s4, s5")
    def pool_member(d):
        a("s_bfe_u32 s5, s2, 0x30003")
        a(f"s_lshr_b32 s5, s5, {lgp}")
        a("s_lshl_b32 s5, s5, 3")
        a("s_and_b32 s4, s2, 7")
        a(f"s_add_u32 s{d}, s5, s4")
    def tr_addr(d):
        a("v_lshrrev_b32 v12, 2, v5")
        a("v_lshl_add_u32 v13, v4, 2, v12")
        a("v_bfe_u32 v12, v13, 1, 2")
        a("v_lshlrev_b32 v12, 5, v12")
        a("v_lshl_add_u32 v12, v13, 7, v12")
        a("v_and_b32 v13, 3, v0")
        a(f"v_lshl_add_u32 v{d}, v13, 3, v12")
    def slot_base(d, slot):
        a(f"s_and_b32 s{d}, {slot}, 7")
        a(f"s_lshl_b32 s{d}, s{d}, 14")

    a("s_cmp_ge_u32 s2, 256")
    a("s_cbranch_scc1 L_end")
    a("s_load_dwordx16 s[16:31], s[0:1], 0")
    a("s_load_dwordx8 s[32:39], s[0:1], 64")
    stamp(0)
    if probe: a("s_mov_b32 s67, -1")
    if padend: a("s_memrealtime s[64:65]")
    if cpf:
        a("s_getpc_b64 s[4:5]")
        a("L_pc:")
        a("v_subrev_u32 v12, 64, v0")
        a("v_mov_b32 v13, 0")
        a("v_cmp_gt_u32 vcc, (L_codeend-L_pc)/128, v12")
        a("v_lshlrev_b32 v12, 7, v12")
        a("s_and_saveexec_b64 s[6:7], vcc")
        a("s_cbranch_execz L_nopf")
        a("v_lshl_add_u64 v[12:13], v[12:13], 0, s[4:5]")
        a("global_load_dword v16, v[12:13], off offset:64")
        a("L_nopf:")
        a("s_mov_b64 exec, -1")
    a("v_cmp_gt_u32 vcc, 64, v0")
    a("v_lshrrev_b32 v1, 6, v0")
    a("v_and_b32 v0, 63, v0")
    a("v_lshrrev_b32 v2, 3, v0")
    a("v_and_b32 v3, 7, v0")
    a("v_lshrrev_b32 v4, 4, v0")
    a("s_and_b32 s14, s2, 3")
    a("s_mov_b32 s43, 0x20000")
    a("s_cbranch_vccz L_others")
    OTHERS_FIRST = ofirst
    def emit_others():
        a("L_others:")
        a("v_readfirstlane_b32 s3, v1")
        a(f"v_lshlrev_b32 v14, {4 if xlin else 5}, v0")
        a("v_lshlrev_b32 v15, 3, v0")
        a("s_lshl_b32 s10, s14, 9")
        a("s_movk_i32 s42, 2048")
        a("s_xor_b32 s3, s3, 4")
        a("s_cmp_gt_u32 s3, 3")
        a(f"v_mov_b32 v1, {MISC}")
        for k in range(4): a(f"v_mov_b32 v{28+k}, 0")
        a("v_lshl_add_u32 v12, v0, 4, v1")
        a(f"ds_write_b128 v12, v[28:31] offset:{TQ}")
        a("v_lshl_add_u32 v13, v0, 2, v1")
        a(f"v_mov_b32 v27, {BIG}")
        a(f"ds_write_b32 v13, v30 offset:{PROG}")
        a(f"ds_write2_b32 v1, v30, v27 offset0:{POST//4} offset1:{POST//4+1}")
        a("s_waitcnt lgkmcnt(0)")
        a("s_mov_b64 s[40:41], s[16:17]")
        a(f"s_load_dword s13, s[38:39], {EPOCH}")
        a("s_cbranch_scc1 L_nox")
        a("buffer_load_dwordx4 v[56:59], v14, s[40:43], 0 offen")
        a(f"buffer_load_dwordx4 v[60:63], v14, s[40:43], 0 offen offset:{1024 if xlin else 16}")
        a("buffer_load_dwordx2 v[64:65], v15, s[40:43], s10 offen")
        a("L_nox:")
        if eearly: a("s_waitcnt lgkmcnt(0)")
        a("s_barrier")
        a("s_branch L_notloader")

    role[0] = "L"
    a("s_setprio 3")
    a("v_lshrrev_b32 v12, 5, v0")
    a("v_and_b32 v13, 3, v2")
    a("v_lshl_add_u32 v12, v12, 3, v13")
    a("v_lshlrev_b32 v13, 1, v4")
    a("v_xor_b32 v13, v13, v3")
    a("v_lshlrev_b32 v13, 4, v13")
    a("v_lshl_add_u32 v16, v12, 13, v13")
    a("s_lshl_b32 s8, s14, 21")
    wq_col(5)
    a("s_lshl_b32 s5, s5, 7")
    a("s_add_u32 s8, s8, s5")
    a("s_mov_b32 m0, 0")
    a("s_mov_b32 s42, 8388608")
    a("s_waitcnt lgkmcnt(0)")
    if fine: stamp(7)
    a("s_mov_b64 s[40:41], s[22:23]")
    def wloads(vo, stride):
        for i in range(4):
            ro = (16 * (i & 1) + 4 * (i >> 1)) * stride - 1024 * i
            if i: a(f"s_add_u32 s9, s8, {ro}")
            a(f"buffer_load_dwordx4 v{vo}, s[40:43], s{9 if i else 8} offen offset:{1024*i}{NT} lds")
        a(f"s_add_u32 s8, s8, {32*stride}")
        a("s_add_u32 m0, m0, 4096")
    a("L_ld_q:")
    wloads(16, 8192)
    a("s_cmp_lt_u32 m0, 0x8000")
    a("s_cbranch_scc1 L_ld_q")
    if fine: stamp(8)
    if ofirst:
        a("s_branch L_loader")
        emit_others()
    a("L_loader:")
    mem = 64 // npool; reg = 1024 // npool
    nshared = reg - mem * dyn - 2 * lex - (2 * kdyn[0] if kdyn else 0)
    zone = nshared - ntw * mem + empt
    assert ntw == 2 and 16 + 2 * (nshared + empt) + 4 <= (256 if not stamps else 999)
    a(f"v_mov_b32 v1, {MISC}")
    a("v_mov_b32 v30, 0")
    a(f"v_mov_b32 v31, {BIG}")
    a("s_barrier")
    if stamps:
        for k in range(1, 16):
            if not (fine and k in (7, 8)): a(f"s_mov_b32 s{64+2*k}, 0")
    stamp(1)
    pend = [None]; viamax = [False]
    def wait_post(w, defer=False):
        if defer and fw:
            pend[0] = w
            return
        if viamax[0]:
            a("v_add_u32 v39, 1, v39")
            a("v_max_i32 v30, v30, v39")
        else: a("v_add_u32 v30, 1, v30")
        a(f"s_waitcnt vmcnt({w})")
        a(f"ds_write_b64 v29, v[30:31] offset:{POST}")
    def unit(vo, srdn, so, step=4096):
        w = pend[0]; pend[0] = None
        for i in range(4):
            if w is not None and i % fw[1] == 0:
                if i == fw[0]: wait_post(w + fw[0])
                else: a(f"s_waitcnt vmcnt({w + fw[0]})")
            a(f"buffer_load_dwordx4 v{vo[i]}, s[{srdn}:{srdn+3}], s{so} offen offset:{1024*i}{NT} lds")
        a(f"s_add_u32 m0, m0, {step}" if step > 0 else f"s_sub_u32 m0, m0, {-step}")
        if pace: a(f"s_sleep {pace}")
    a("v_lshl_add_u32 v29, v0, 3, v1")
    VG, VD, VK, VV = [40, 41, 42, 43], [44, 45, 46, 47], [24, 25, 24, 25], [24, 25, 24, 25]
    a("s_movk_i32 s7, 7168")
    a(f"v_mad_u32_u24 v{VG[0]}, v12, s7, v13")
    for i in range(1, 4):
        a(f"v_add_u32 v{VG[i]}, {(16 * (i & 1) + 4 * (i >> 1)) * 7168 - 1024 * i}, v{VG[0]}")
    gu_col(6)
    if cmap: up_shift(12, 6, 128)
    a("s_lshl_b32 s6, s6, 7")
    a(f"s_mul_i32 s7, s14, {256*7168}")
    a("s_add_u32 s8, s7, s6")
    a("s_mov_b32 s42, 7340032")
    a("s_mov_b64 s[40:41], s[28:29]")
    a("s_mov_b32 s98, 2")
    a(f"s_cmp_ge_u32 s5, {7 if 'g' in cmap else 56}")
    w1 = win
    if fine: stamp(9)
    for w in range(28, w1 - 4, -4):
        wait_post(w)
        if fine: stamp(10 if w == 28 else 11)
    a("s_cbranch_scc1 L_ld_kv")
    a("s_add_u32 s12, s12, s8" if cmap else "s_mov_b32 s12, s8")
    if gui:
        srd(52, 30, 7340032)
        a("s_mov_b32 s98, 6")
        a("L_ld_gu2:")
        wait_post(w1 - 4, True)
        unit(VG, 40, 8, 0x8000)
        a(f"s_add_u32 s8, s8, {32*7168}")
        wait_post(w1 - 4, True)
        unit(VG, 52, 12, -0x7000)
        a(f"s_add_u32 s12, s12, {32*7168}")
        a("s_cmp_lt_u32 m0, 0x10000")
        a("s_cbranch_scc1 L_ld_gu2")
        a("s_mov_b32 m0, 0x18000")
    if not gui:
     a("s_mov_b32 s6, 0x10000")
     a("s_mov_b32 s98, 6")
     a("L_ld_gu:")
     wait_post(w1 - 4, True)
     unit(VG, 40, 8)
     a(f"s_add_u32 s8, s8, {32*7168}")
     a("s_cmp_lt_u32 m0, s6")
     a("s_cbranch_scc1 L_ld_gu")
     a("s_mov_b32 s8, s12")
     a("s_mov_b64 s[40:41], s[30:31]")
     a("s_mov_b32 s6, 0x18000")
     a("s_cmp_lt_u32 m0, s6")
     a("s_cbranch_scc1 L_ld_gu")
    a("L_ld_kv:")
    stamp(2)
    a(f"ds_read_b128 v[32:35], v1 offset:{PROG}")
    a(f"ds_read_b32 v37, v1 offset:{TQ}")
    a("v_mov_b32 v36, v1")
    a("v_and_b32 v5, 15, v0")
    for j in range(2):
        a(f"v_add_u32 v14, {4*j}, v4")
        a("v_lshlrev_b32 v14, 1, v14")
        a("v_xor_b32 v14, v14, v5")
        a("v_lshlrev_b32 v14, 4, v14")
        a(f"v_lshl_add_u32 v{VV[j]}, v4, 8, v14")
    srd(44, 18, 33554432)
    srd(48, 20, 33554432)
    a("s_mov_b32 s10, 0")
    a("s_mov_b32 s11, 0")
    a("s_mov_b32 s15, 0")
    if wide: a("s_mov_b32 s99, 0")
    a(f"s_mov_b32 s60, {spin_limit}")
    if stamps: a("s_memrealtime s[100:101]")
    a("s_branch L_ld_chk")
    if win1:
        assert n1 <= dyn - ahead
        a("L_ld_tile1:")
        a("s_and_b32 s8, s7, 0xffffe000")
        wait_post(w1 - 4, True)
        unit(VK, 44, 8)
        a("s_add_u32 s9, s8, 4096")
        a("s_add_u32 s11, s11, 1")
        a("v_mov_b32 v38, s11")
        wait_post(w1 - 4, True)
        unit(VK, 44, 9)
        a("v_lshl_add_u32 v36, v38, 2, v1")
        a("s_add_u32 s10, s10, 1")
        a("s_add_u32 s98, s98, 1")
        wait_post(w1 - 4, True)
        unit(VV, 48, 8)
        a(f"ds_read_b128 v[32:35], v1 offset:{PROG}")
        a(f"ds_read_b32 v37, v36 offset:{TQ}")
        wait_post(w1 - 4, True)
        unit(VV, 48, 9)
        a("s_and_b32 m0, m0, 0x1ffff")
        a(f"s_mov_b32 s60, {spin_limit}")
        a("L_ld_chk1:")
        a("s_waitcnt lgkmcnt(0)")
        a("v_min3_u32 v32, v32, v33, v34")
        a("v_readfirstlane_b32 s7, v37")
        a("v_min_u32 v32, v32, v35")
        a("s_sub_u32 s60, s60, 1")
        a("v_readfirstlane_b32 s4, v32")
        a("s_cselect_b32 s4, s98, s4")
        a("s_add_u32 s4, s4, 8")
        a("s_cmp_gt_u32 s4, s98")
        a("s_cbranch_scc1 L_ld_free1")
        a(f"ds_read_b128 v[32:35], v1 offset:{PROG}")
        a("s_branch L_ld_chk1")
        a("L_ld_free1:")
        a(f"s_cmp_lt_u32 s10, {n1}")
        a("s_cbranch_scc1 L_ld_tile1")
        for w in range(w1 - 4, win - 4, -4): wait_post(w)
    def peek():
        a(f"ds_read_b128 v[32:35], v1 offset:{PROG}")
        a(f"ds_read_b32 v37, v36 offset:{TQ}")
    def slot_body(wn):
        a(f"s_and_b32 s8, s7, {0xfffff000 if split else 0xffffe000:#x}")
        if two:
            a("s_bitcmp1_b32 s7, 2")
            a("s_cselect_b64 s[44:45], s[20:21], s[18:19]")
        wait_post(wn - 4, True)
        unit(VK, 44, 8)
        a(f"s_add_u32 s9, s8, {8192 if split else 4096}")
        a("s_bfe_u32 s4, s7, 0x10001")
        a("s_and_b32 s5, s11, 1")
        a("s_lshl_b32 s4, s4, s5")
        a("s_or_b32 s15, s15, s4")
        a("s_add_u32 s11, s11, 1")
        a("s_xor_b32 s5, s5, 1")
        a("s_bitcmp1_b32 s15, s5")
        a("s_addc_u32 s11, s11, 0")
        a("v_mov_b32 v38, s11")
        if spos == 0: a(f"ds_write_b32 v1, v38 offset:{STARTED}")
        wait_post(wn - 4, True)
        unit(VK, 44, 9)
        if spos == 1: a(f"ds_write_b32 v1, v38 offset:{STARTED}")
        a("v_lshl_add_u32 v36, v38, 2, v1")
        a("s_add_u32 s10, s10, 1")
        a("s_cmp_eq_u32 s15, 3")
        a(f"s_cselect_b32 s4, s10, {BIG}")
        a("v_mov_b32 v31, s4")
        a("s_cselect_b32 s4, 4, 1")
        a("s_add_u32 s98, s98, s4")
        if two:
            a("s_bitcmp1_b32 s7, 3")
            a("s_cselect_b64 s[48:49], s[18:19], s[20:21]")
            a("s_and_b32 s4, s7, 12")
            a(f"s_cselect_b32 s4, {0x1000 if split else 0x2000}, 0")
            a("s_add_u32 s8, s8, s4")
            a("s_add_u32 s9, s9, s4")
        wait_post(wn - 4, True)
        unit(VV, 48, 8)
        if spos == 2: a(f"ds_write_b32 v1, v38 offset:{STARTED}")
        peek()
        wait_post(wn - 4, True)
        unit(VV, 48, 9)
        if spos == 3: a(f"ds_write_b32 v1, v38 offset:{STARTED}")
        a("s_and_b32 m0, m0, 0x1ffff")
        if stamps: a("s_memrealtime s[100:101]")
        a(f"s_mov_b32 s60, {spin_limit}")
    if wide:
        a("L_ld_wide0:")
        a(f"v_subrev_u32 v39, {wide[0] // 4}, v30")
        a("s_mov_b32 s99, 16")
        a("L_ld_wide:")
        viamax[0] = True
        slot_body(win + wide[0])
        viamax[0] = False
        a("s_branch L_ld_chk")
    a("L_ld_tile:")
    if wide:
        a("s_cmp_lg_u32 s99, 0")
        a("s_cbranch_scc1 L_ld_wide")
        a("s_bitcmp1_b32 s7, 4")
        a("s_cbranch_scc1 L_ld_wide0")
    slot_body(win)
    a("L_ld_chk:")
    a("s_waitcnt lgkmcnt(0)")
    a("v_min3_u32 v32, v32, v33, v34")
    a("v_readfirstlane_b32 s5, v37")
    a("v_min_u32 v32, v32, v35")
    a("s_cmp_eq_u32 s15, 3")
    a("v_readfirstlane_b32 s4, v32")
    a("s_cbranch_scc1 L_ld_end")
    a("s_add_u32 s4, s4, 8")
    a("s_cmp_gt_u32 s4, s98")
    a("s_cselect_b32 s7, s5, 0")
    a("s_bitcmp1_b32 s7, 0")
    if stamps:
        a("s_cbranch_scc0 L_ld_again")
        a("s_memrealtime s[62:63]")
        a("s_waitcnt lgkmcnt(0)")
        a("s_sub_u32 s62, s62, s100")
        a("s_add_u32 s88, s88, s62")
        a("s_max_u32 s90, s90, s62")
        a(f"s_cmp_eq_u32 s10, {dyn // 2}")
        a("s_cselect_b32 s78, s100, s78")
        a(f"s_cmp_eq_u32 s10, {dyn}")
        a("s_cselect_b32 s80, s100, s80")
        a("s_branch L_ld_tile")
    else:
        a("s_cbranch_scc1 L_ld_tile")
    a("L_ld_again:")
    if empt:
        a("s_cmp_eq_u32 s15, 3")
        a("s_cselect_b32 s5, 0, s5")
        a("s_cmp_lg_u32 s5, 2")
        a("s_cbranch_scc1 L_ld_peek")
        a("s_and_b32 s5, s11, 1")
        a("s_bitset1_b32 s15, s5")
        a("s_add_u32 s11, s11, 1")
        a("v_mov_b32 v32, s11")
        a("v_lshl_add_u32 v36, v32, 2, v1")
        a(f"ds_write_b32 v1, v32 offset:{STARTED}")
        a("s_cmp_eq_u32 s15, 3")
        a("s_cbranch_scc0 L_ld_peek")
        a("v_mov_b32 v31, s10")
        a("s_add_u32 s98, s98, 3")
        a("s_cmp_gt_u32 s4, s98")
        a("s_cbranch_scc1 L_ld_go")
        a("L_ld_peek:")
    peek()
    a("s_sub_u32 s60, s60, 1")
    a("s_cbranch_scc0 L_ld_chk")
    a("v_mov_b32 v30, 0x7fffffff")
    a("v_mov_b32 v31, s10")
    a(f"ds_write_b64 v29, v[30:31] offset:{POST}")
    a("s_endpgm")
    a("L_ld_end:")
    a("s_add_u32 s4, s4, 8")
    a("s_cmp_gt_u32 s4, s98")
    a("s_cbranch_scc0 L_ld_again")
    a("L_ld_go:")
    stamp(3)
    a(f"v_lshl_add_u32 v{VD[0]}, v12, 11, v13")
    for i in range(1, 4):
        a(f"v_add_u32 v{VD[i]}, {(16 * (i & 1) + 4 * (i >> 1)) * 2048 - 1024 * i}, v{VD[0]}")
    srd(52, 32, 7340032)
    wd_row(6)
    a(f"s_mul_i32 s96, s6, {224*2048}")
    wd_col(6)
    a("s_lshl_b32 s6, s6, 7")
    a("s_add_u32 s96, s96, s6")
    if stamps:
        a("s_add_u32 s92, s10, s64")
        a("s_add_u32 s88, s88, s64")
        a("s_add_u32 s90, s90, s64")
    if wide:
        a("s_cmp_eq_u32 s99, 0")
        a("s_cbranch_scc1 L_ld_narrow")
        for w in range(win + wide[0] - 4, win - 4, -4): wait_post(w)
        a("L_ld_narrow:")
    sch = dict(sched or ([(0, win), grow] if grow else [(0, win)]))
    infl = win // 4
    wn = win
    for k in range(15):
        wn = sch.get(k, wn)
        while infl > wn // 4:
            infl -= 1; wait_post(4 * infl)
        if infl == wn // 4: wait_post(wn - 4, True)
        else: infl += 1
        if k < 7:
            unit(VD, 52, 96)
            if k < 6: a("s_add_u32 s96, s96, 0x10000")
        else:
            unit(VD, 56, 97)
            if k < 14: a(f"s_add_u32 s97, s97, {0x10000 - 384 if k == 10 else 128}")
        if k % 4 == 3: a("s_and_b32 m0, m0, 0x1ffff")
        if k == 1: srd(56, 24, 8388608)
        if k == 2: rr_cc(6, 7)
        if k == 4:
            a("s_lshl_b32 s6, s6, 17")
            a("s_lshl_b32 s7, s7, 9")
            a("s_add_u32 s97, s6, s7")
        if k == 6: stamp(4)
    stamp(5)
    while infl > 0:
        infl -= 1; wait_post(4 * infl)
    stamp(6)
    a("L_ld_done:")
    if stamps:
        a("s_mov_b32 s3, 4")
        srd(48, 38, 268435456)
        a("s_getreg_b32 s94, hwreg(HW_REG_XCC_ID)")
        a("s_getreg_b32 s95, hwreg(HW_REG_HW_ID)")
        a("s_and_b32 s94, s94, 15")
        a("s_lshl_b32 s94, s94, 16")
        a("s_and_b32 s95, s95, 0xffff")
        a("s_or_b32 s94, s94, s95")
        a("s_or_b32 s94, s94, 0x1000000")
    dump_stamps(12, 13)
    a("s_endpgm")

    if not ofirst: emit_others()
    a("L_notloader:")
    if stamps or lite:
        for k in range(1, 16): a(f"s_mov_b32 s{64+2*k}, 0")
    a("v_and_b32 v5, 15, v0")
    a("v_lshlrev_b32 v6, 4, v0")
    srd(48, 38, 268435456)
    a("s_mov_b32 s96, 0")
    a(f"s_mov_b32 s97, {BIG}")
    a("s_cmp_eq_u32 s3, 5")
    a("s_cbranch_scc1 L_helper")
    a("s_cmp_gt_u32 s3, 5")
    a("s_cbranch_scc1 L_ticket")

    role[0] = "C"
    XF = 32
    AF = 64
    ACC = 80
    TA = 7
    a("s_setprio 1")
    tr_addr(TA)
    a("s_waitcnt lgkmcnt(0)")
    make_tag()
    a("s_waitcnt vmcnt(0)")
    stamp(1)
    pool_member(6)
    a("s_cmp_lg_u32 s6, 0")
    a("s_cbranch_scc1 L_nozero")
    pool_id(6)
    ac_lane(13)
    a("v_mov_b32 v12, 0")
    a(f"s_mul_i32 s7, s6, {cstride}")
    a(f"s_add_u32 s7, s7, {TCN}")
    a("s_mov_b64 exec, 1")
    if sig1 is not None or sig2:
        assert npool == 4
        a("s_cmp_eq_u32 s3, 0")
        a("s_cbranch_scc1 " + ("L_zeroed" if early_t else "L_dozero"))
        a("s_mov_b64 exec, 0xffff")
        a("s_lshr_b32 s4, s6, 2")
        a("s_and_b32 s5, s6, 3")
        if sig1 is not None or rk:
            a("s_lshl_b32 s7, s4, 14")
            a("s_lshl_b32 s8, s5, 8")
            a("s_add_u32 s7, s7, s8")
            a(f"s_add_u32 s7, s7, {AC1}")
            a("s_cmp_eq_u32 s3, 1")
            a("s_cbranch_scc1 L_dozero")
        a(f"s_lshl_b32 s7, s5, {ash}")
        a("s_lshl_b32 s8, s4, 8")
        a("s_add_u32 s7, s7, s8")
        a(f"s_add_u32 s7, s7, {AC2}")
        a("v_mov_b32 v12, s13")
        if fastw: a("v_lshlrev_b32 v12, 5, v12")
        a("s_cmp_eq_u32 s3, 2")
    else:
        a("s_cmp_eq_u32 s3, 0")
    a("s_cbranch_scc0 L_zeroed")
    a("L_dozero:")
    a("buffer_store_dword v12, v13, s[48:51], s7 offen sc1")
    a("L_zeroed:")
    a("s_mov_b64 exec, -1")
    a("L_nozero:")
    for i in range(8):
        a(f"v_lshlrev_b32 v{32+2*i}, 16, v{56+i}")
        a(f"v_and_b32 v{33+2*i}, 0xffff0000, v{56+i}")
    a("v_add_f32 v16, v32, v33")
    a("v_add_f32 v17, v34, v35")
    for i in range(2, 8):
        a(f"v_add_f32 v16, v16, v{32+2*i}")
        a(f"v_add_f32 v17, v17, v{33+2*i}")
    a("v_add_f32 v16, v16, v17")
    emit(row_list("v_add_f32", 16) + cross_list("v_add_f32", 16, 17))
    a("v_mul_f32 v16, 0x3a800000, v16")
    for i in range(16):
        a(f"v_sub_f32 v{32+i}, v{32+i}, v16")
    a("v_mul_f32 v17, v32, v32")
    a("v_mul_f32 v18, v33, v33")
    for i in range(1, 8):
        a(f"v_fmac_f32 v17, v{32+2*i}, v{32+2*i}")
        a(f"v_fmac_f32 v18, v{33+2*i}, v{33+2*i}")
    a("v_add_f32 v17, v17, v18")
    emit(row_list("v_add_f32", 17) + cross_list("v_add_f32", 17, 18))
    a("v_mul_f32 v17, 0x3a800000, v17")
    bf16r(16, 16)
    bf16r(17, 17)
    a("v_add_f32 v17, 0x3727c5ac, v17")
    bf16r(17, 17)
    a("v_sqrt_f32 v17, v17")
    for i in range(2):
        a(f"v_lshlrev_b32 v{18+2*i}, 16, v{64+i}")
        a(f"v_and_b32 v{19+2*i}, 0xffff0000, v{64+i}")
    bf16r(17, 17)
    a("v_rcp_f32 v17, v17")
    for i in range(4): a(f"v_sub_f32 v{18+i}, v{18+i}, v16")
    for i in range(4): bf16r(18 + i, 18 + i)
    for i in range(4): a(f"v_mul_f32 v{18+i}, v{18+i}, v17")
    a("v_cvt_pk_bf16_f32 v18, v18, v19")
    a("v_cvt_pk_bf16_f32 v19, v20, v21")
    a("v_add_u32 v15, v15, v1")
    a(f"ds_write_b64 v15, v[18:19] offset:{XN}")
    a("v_lshl_add_u32 v14, v4, 4, v1")
    for s in range(8):
        a(f"ds_read_b128 v[{XF+4*s}:{XF+4*s+3}], v14 offset:{XN+64*s}")
    stamp(2)
    A1 = 27
    a(f"v_lshl_add_u32 v12, v0, 2, v1")
    a(f"v_add_u32 v12, {SCR}, v12")
    a("v_cmp_eq_u32 vcc, 0, v0")
    a(f"v_cndmask_b32 v{A1}, v12, v1, vcc")
    a("s_lshl_b32 s4, s3, 2")
    a(f"v_add_u32 v28, s4, v{A1}")
    def progress(x):
        a(f"v_mov_b32 v29, {x}")
        a(f"ds_write_b32 v28, v29 offset:{PROG}")
    a("s_lshl_b32 s4, s3, 5")
    a(f"v_xor_b32 v14, s4, v{TA}")
    a("s_lshl_b32 s8, s14, 14")
    a("s_lshl_b32 s9, s3, 6")
    a("s_add_u32 s8, s8, s9")
    gu_col(11)
    if cmap:
        up_shift(27, 11, 256)
        a("s_add_u32 s27, s27, 0x10000")
    a("s_lshl_b32 s11, s11, 8")
    a("s_add_u32 s11, s11, s8")
    if cmap: a(f"s_add_u32 s11, s11, {GP}")
    wq_col(9)
    a("s_lshl_b32 s9, s9, 8")
    a("s_add_u32 s9, s9, s8")
    light_test()
    a("s_cselect_b32 s15, 2, 6")
    a("s_mov_b32 s99, 0")
    a("s_mov_b32 s10, 0")
    a("v_lshlrev_b32 v15, 6, v4")
    a("v_and_b32 v15, 3, v0")
    a("v_lshlrev_b32 v15, 6, v15")
    if gui: a("s_mov_b32 s24, 1")
    a("L_c_blk:")
    for (s0, s1) in [(0, 4), (4, 6), (6, 8)]:
        if gui: a(f"s_lshl{(s1-s0)//2}_add_u32 s10, s24, s10")
        else: a(f"s_add_u32 s10, s10, {s1-s0}")
        need("s10")
        for s in range(s0, s1):
            for t in range(2):
                d = AF + 4 * (s & 3) + 2 * t
                a(f"ds_read_b64_tr_b16 v[{d}:{d+1}], v14 offset:{s*4096+t*2048}")
        a("s_waitcnt lgkmcnt(0)")
        for s in range(s0, s1):
            c = "0" if s == 0 else f"v[{ACC}:{ACC+3}]"
            a(f"v_mfma_f32_16x16x32_bf16 v[{ACC}:{ACC+3}], v[{AF+4*(s&3)}:{AF+4*(s&3)+3}], v[{XF+4*s}:{XF+4*s+3}], {c}")
        if s1 % 4 == 0:
            a("s_add_u32 s99, s99, 1")
            progress("s99")
    a("v_add_u32 v14, 0x8000, v14")
    for k in range(4): a(f"ds_bpermute_b32 v{ACC+k}, v15, v{ACC+k}")
    a("s_waitcnt vmcnt(0) lgkmcnt(0)")
    apply_tag(ACC)
    a("s_mov_b64 exec, 0xf")
    a(f"buffer_store_dwordx4 v[{ACC}:{ACC+3}], v6, s[48:51], s9 offen sc1")
    a("s_mov_b64 exec, -1")
    if stamps or probe or leak:
        a("s_cmp_lg_u32 s99, 2")
        a("s_cbranch_scc1 L_c_ns3")
        stamp(3)
        a("L_c_ns3:")
    if cmap:
        a("s_mov_b32 s9, s11")
        a("s_add_u32 s11, s11, s27")
    else:
        a("s_add_u32 s11, s11, 0x10000")
        a("s_mov_b32 s9, s11")
    if gui:
        a("s_lshl_b32 s24, s24, 1")
        a("s_and_b32 s24, s24, 3")
    a("s_cmp_lt_u32 s99, s15")
    a("s_cbranch_scc1 L_c_blk")
    stamp(4)
    leak_flag()
    if qlight:
        light_test()
        a(f"s_cselect_b32 s4, {qlight}, {qstart}")
        need("s4")
    elif qstart: need(qstart)
    a("s_lshr_b32 s4, s2, 6")
    a("s_lshl_b32 s4, s4, 12")
    a("s_lshl_b32 s5, s3, 10")
    a("s_add_u32 s52, s4, s5")
    a("s_add_u32 s53, s52, 16384")
    a("s_add_u32 s54, s52, 32768")
    a("s_add_u32 s55, s52, 49152")
    def q_loads():
        for r in range(1 if "q" in abl else 4):
            a(f"buffer_load_dwordx4 v[{64+4*r}:{67+4*r}], v6, s[48:51], s{52+r} offen sc1")
    q_loads()
    KF = 32; QF = 96; SC = 64; VF = 72; AO = 80
    KA = 112; VA = 116; KC = 120; VC = 118
    S = 16; P = 20; M2, LS, AL = 24, 25, 26
    RL, LB = 30, 31
    A_OP, A_PERM, A_SH, A_G, A_OL, A_SP, A_M, SEL1, SEL2, A_QR, ONE = 128, 129, 130, 131, 132, 133, 134, 138, 139, 140, 141
    a("v_lshlrev_b32 v13, 1, v3")
    for m in range(4):
        a(f"v_add_u32 v12, {4*m}, v4")
        a("v_xor_b32 v12, v12, v13")
        a("v_lshlrev_b32 v12, 4, v12")
        a(f"v_lshl_add_u32 v{KA+m}, v5, 8, v12")
    a("v_lshrrev_b32 v12, 2, v5")
    a("v_lshl_add_u32 v12, v4, 2, v12")
    a("v_and_b32 v15, 3, v0")
    a("v_lshlrev_b32 v13, 3, v15")
    a("v_lshl_add_u32 v13, v12, 8, v13")
    a("v_add_u32 v13, 8192, v13")
    a("v_and_b32 v12, 7, v12")
    a("s_lshl_b32 s4, s3, 1")
    for n in range(2):
        a(f"s_add_u32 s5, s4, {n}")
        a("v_xor_b32 v14, s5, v12")
        a(f"v_lshl_add_u32 v{VA+n}, v14, 5, v13")
    a(f"v_mov_b32 v{M2}, 0xff7fffff")
    a(f"v_mov_b32 v{LS}, 0")
    for i in range(8): a(f"v_mov_b32 v{AO+i}, 0")
    a("v_cmp_lt_u32 s[100:101], 7, v5")
    a(f"s_mov_b32 s12, {LOG2E}")
    a(f"v_mul_u32_u24 v14, {QROW}, v3")
    a("v_lshl_add_u32 v14, v4, 4, v14")
    a(f"v_add_u32 v{A_QR}, v14, v1")
    a(f"v_mov_b32 v{ONE}, 1")
    a(f"v_lshlrev_b32 v14, {9+ow}, v2")
    if opw:
        a("v_and_b32 v13, 4, v0")
        a("v_lshl_add_u32 v14, v13, 4, v14")
    a(f"v_lshl_add_u32 v{A_OP}, v3, 4, v14")
    a("v_lshlrev_b32 v13, 4, v15")
    a("v_and_b32 v14, 4, v0")
    a("v_lshl_add_u32 v13, v14, 1, v13")
    a("v_add_u32 v13, v13, v2")
    a(f"v_lshlrev_b32 v{A_PERM}, 2, v13")
    a(f"v_lshlrev_b32 v{A_SH}, 3, v4")
    TO = 143
    a("v_bfe_i32 v12, v0, 4, 1")
    a(f"v_and_b32 v12, {TAGX}, v12")
    a(f"v_xor_b32 v{TO}, s13, v12")
    for k in range(1, 3): a(f"v_lshrrev_b32 v{TO+k}, {8*k}, v{TO}")
    a(f"s_mul_i32 s4, s2, {RSO}")
    a(f"s_lshl_b32 s5, s3, {7+ow}")
    a("s_add_u32 s4, s4, s5")
    a(f"s_add_u32 s44, s4, {OP}")
    rr_cc(4, 5)
    a(f"s_mul_i32 s8, s4, {RSS}")
    if spar is not None: a("s_and_b32 s8, s8, 0xffffcfff")
    a(f"s_lshl_b32 s9, s5, {10+sw}")
    a("s_add_u32 s8, s8, s9")
    a(f"s_lshl_b32 s9, s3, {8+sw}")
    a("s_add_u32 s8, s8, s9")
    a(f"s_add_u32 s45, s8, {SP}")
    if direct:
        a("s_lshl_b32 s8, s5, 14")
        a("s_lshr_b32 s9, s2, 6")
        a("s_lshl_b32 s9, s9, 8")
        a("s_add_u32 s8, s8, s9")
        a(f"s_add_u32 s46, s8, {AC2}")
        a("v_lshlrev_b32 v142, 10, v0")
    if cgate:
        a("s_lshl_b32 s8, s4, 8")
        a(f"s_add_u32 s8, s8, {OCN}")
        a("s_add_u32 s58, s38, s8")
        a("s_addc_u32 s59, s39, 0")
        a("s_lshr_b32 s8, s2, 6")
        a("s_lshl_b32 s8, s8, 12")
        a(f"s_add_u32 s46, s8, {OCN}")
        a("v_lshlrev_b32 v142, 8, v0")
    a("s_lshr_b32 s8, s4, 4")
    a(f"s_mul_i32 s8, s8, {64*RSO}")
    a("s_and_b32 s9, s4, 15")
    a(f"s_lshl_b32 s9, s9, {8+ow}")
    a("s_add_u32 s8, s8, s9")
    a(f"s_lshl_b32 s9, s3, {6+ow}")
    a("s_add_u32 s8, s8, s9")
    a(f"s_add_u32 s16, s8, {OP}")
    a(f"s_add_u32 s17, s16, {RSO}")
    a(f"s_add_u32 s18, s16, {2*RSO}")
    a(f"s_add_u32 s19, s16, {3*RSO}")
    a("v_lshrrev_b32 v13, 2, v0")
    a(f"v_mul_u32_u24 v13, {4*RSO}, v13")
    a(f"v_lshl_add_u32 v{A_G}, v15, 4, v13")
    a("v_lshl_add_u32 v12, v4, 4, v1")
    a(f"v_add_u32 v12, {OL}, v12")
    a(f"v_add_u32 v13, {ZER}, v1")
    if sel3:
        A_M = 147
        a(f"v_mov_b32 v{A_M}, v12")
        a("v_mov_b32 v12, 0xffffff00")
        a("v_mov_b32 v13, 0")
    for u in range(4):
        a(f"v_cmp_eq_u32 vcc, {u}, v15")
        a(f"v_cndmask_b32 v{A_M+u+(1 if sel3 else 0)}, v13, v12, vcc")
    a("s_lshl_b32 s4, s3, 5")
    a("v_lshl_add_u32 v13, v4, 1, v1")
    a("v_lshl_add_u32 v13, v15, 3, v13")
    a(f"v_add_u32 v{A_OL}, s4, v13")
    a("v_lshlrev_b32 v13, 4, v5")
    a(f"v_lshl_add_u32 v{A_SP}, v4, {6+sw}, v13")
    a("v_and_b32 v12, 1, v0")
    a("v_cmp_eq_u32 vcc, 1, v12")
    a("v_mov_b32 v12, 0x06020400")
    a("v_mov_b32 v13, 0x03070105")
    a(f"v_cndmask_b32 v{SEL1}, v12, v13, vcc")
    a("v_and_b32 v12, 2, v0")
    a("v_cmp_eq_u32 vcc, 2, v12")
    a("v_mov_b32 v12, 0x05040100")
    a("v_mov_b32 v13, 0x03020706")
    a(f"v_cndmask_b32 v{SEL2}, v12, v13, vcc")
    a("s_mov_b32 s20, 0x0c0c0400")
    a("s_mov_b32 s21, 0x05040100")
    L = a.label("L_q"); D = a.label("L_qd")
    a(f"s_mov_b32 s60, {spin_limit}")
    a("s_branch L_q_wait")
    a(f"{L}:")
    q_loads()
    a("L_q_wait:")
    a("s_waitcnt vmcnt(0)")
    tag_check([64] if "q" in abl else [64, 68, 72, 76], 12)
    retry_masked(L, D, qsleep)
    stamp(5)
    for k in range(4): a(f"v_add_f32 v{64+k}, v{64+k}, v{68+k}")
    for k in range(4): a(f"v_add_f32 v{72+k}, v{72+k}, v{76+k}")
    for k in range(4): a(f"v_add_f32 v{64+k}, v{64+k}, v{72+k}")
    a("v_cvt_pk_bf16_f32 v64, v64, v65")
    a("v_cvt_pk_bf16_f32 v65, v66, v67")
    a("v_lshrrev_b32 v12, 5, v0")
    a("s_lshl_b32 s4, s3, 1")
    a("v_add_u32 v12, s4, v12")
    a(f"v_mul_u32_u24 v12, {QROW}, v12")
    a("v_and_b32 v13, 31, v0")
    a("v_lshl_add_u32 v12, v13, 3, v12")
    a("v_add_u32 v12, v12, v1")
    a(f"ds_write_b64 v12, v[64:65] offset:{QL}")
    a(f"ds_add_u32 v{A1}, v{ONE} offset:{QCNT}")
    lds_spin(QCNT, 4 if eearly else 5, 12, 0)
    for m in range(4):
        a(f"ds_read_b128 v[{QF+4*m}:{QF+4*m+3}], v{A_QR} offset:{QL+64*m}")
    stamp(6)
    def k_reads():
        for m in range(4): a(f"v_add_u32 v{KC+m}, s4, v{KA+m}")
        for t in range(2):
            for m in range(4):
                d = KF + 16 * t + 4 * m
                a(f"ds_read_b128 v[{d}:{d+3}], v{KC+m} offset:{4096*t}")
    def v_addr():
        for n in range(2): a(f"v_add_u32 v{VC+n}, s5, v{VA+n}")
    def v_reads(VF=VF, off=0):
        for n in range(2):
            for t in range(2):
                d = VF + 4 * n + 2 * t
                a(f"ds_read_b64_tr_b16 v[{d}:{d+1}], v{VC+n} offset:{off+4096*t}")
    def qk_list(KF=KF, SC=SC):
        out = []
        for t in range(2):
            for m in range(4):
                d = KF + 16 * t + 4 * m
                c = "0" if m == 0 else f"v[{SC+4*t}:{SC+4*t+3}]"
                out.append(f"v_mfma_f32_16x16x32_bf16 v[{SC+4*t}:{SC+4*t+3}], v[{d}:{d+3}], v[{QF+4*m}:{QF+4*m+3}], {c}")
        return out
    def softmax_list():
        o = []
        for k in range(4): o.append(f"v_cndmask_b32 v{S+k}, v{SC+k}, v{SC+4+k}, s[100:101]")
        for k in range(4): o.append(f"v_cvt_pk_bf16_f32 v{S+k}, 0, v{S+k}")
        for k in range(4): o.append(f"v_mul_f32 v{S+k}, {SCALE}, v{S+k}")
        for k in range(4): o.append(f"v_cvt_pk_bf16_f32 v{S+k}, 0, v{S+k}")
        o.append(f"v_max3_f32 v14, v{S}, v{S+1}, v{S+2}")
        o.append(f"v_max_f32 v14, v14, v{S+3}")
        o.append("MARK")
        o += row_list("v_max_f32", 14, (8,)) + cross_list("v_max_f32", 14, 15)
        o.append("v_mul_f32 v14, s12, v14")
        o.append(f"v_max_f32 v14, v14, v{M2}")
        o.append(f"v_sub_f32 v{AL}, v{M2}, v14")
        o.append(f"v_mov_b32 v{M2}, v14")
        o.append(f"v_exp_f32 v{AL}, v{AL}")
        for k in range(4): o.append(f"v_fma_f32 v{S+k}, v{S+k}, s12, -v14")
        for k in range(4): o.append(f"v_exp_f32 v{S+k}, v{S+k}")
        for i in range(4): o.append(f"v_mul_f32 v{AO+i}, v{AL}, v{AO+i}")
        o.append(f"v_cvt_pk_bf16_f32 v{P}, v{S}, v{S+1}")
        o.append(f"v_cvt_pk_bf16_f32 v{P+1}, v{S+2}, v{S+3}")
        for i in range(4, 8): o.append(f"v_mul_f32 v{AO+i}, v{AL}, v{AO+i}")
        o.append(f"v_mov_b32_dpp v{P+2}, v{P} row_ror:8 {DPP}")
        o.append(f"v_mov_b32_dpp v{P+3}, v{P+1} row_ror:8 {DPP}")
        o.append(f"v_add_f32 v14, v{S}, v{S+1}")
        o.append(f"v_add_f32 v15, v{S+2}, v{S+3}")
        o.append("v_add_f32 v14, v14, v15")
        o.append(f"v_fma_f32 v{LS}, v{LS}, v{AL}, v14")
        return o
    def pv(VF=VF, P=P):
        for n in range(2):
            a(f"v_mfma_f32_16x16x32_bf16 v[{AO+4*n}:{AO+4*n+3}], v[{VF+4*n}:{VF+4*n+3}], v[{P}:{P+3}], v[{AO+4*n}:{AO+4*n+3}]")
    def arrive():
        Ln = a.label("L_noarr")
        a("s_cmp_lg_u32 s3, 0")
        a(f"s_cbranch_scc1 {Ln}")
        a("s_mov_b64 exec, 0xffff")
        a(f"buffer_atomic_add v{ONE}, v142, s[48:51], s46 offen sc1")
        a("s_mov_b64 exec, -1")
        a(f"{Ln}:")
    def stats():
        a(f"v_mov_b32 v{RL}, v{LS}")
        emit(row_list("v_add_f32", RL, (8,)) + cross_list("v_add_f32", RL, 15))
        a(f"v_log_f32 v{LB}, v{RL}")
        a(f"v_rcp_f32 v{RL}, v{RL}")
        a("s_sub_u32 s6, s10, 2")
        a(f"v_add_f32 v{LB}, v{LB}, v{M2}")
        a(f"v_lshrrev_b32 v{LB}, v{A_SH}, v{LB}")
    cnt = not (stamps or probe or leak)
    if two:
        KF2, SC2, S2, PK, A_SB, VF2, P2 = 152, 72, 88, 92, 146, 152, 160
        light_test()
        a(f"s_cselect_b32 s25, {(dyn + lex) // 2}, {dyn // 2}")
        a("s_mov_b32 s11, 0")
        a("s_mov_b32 s26, 0x07060302")
        a(f"v_add_u32 v{A_SB}, v6, v1")
        a("L_c_kk:")
        a("s_add_u32 s10, s10, 4")
        need("s10")
        slot_base(4, "s99")
        k_reads()
        for t in range(2):
            for m in range(4):
                d = KF2 + 16 * t + 4 * m
                a(f"ds_read_b128 v[{d}:{d+3}], v{KC+m} offset:{8192+4096*t}")
        a("s_add_u32 s99, s99, 1")
        a("s_add_u32 s11, s11, 1")
        qa = qk_list(); qb = qk_list(KF2, SC2)
        a("s_waitcnt lgkmcnt(8)" if cnt else "s_waitcnt lgkmcnt(0)")
        emit(qa)
        a("s_waitcnt lgkmcnt(0)")
        progress("s99")
        def pre(sc, sv, pk):
            o = [f"v_cndmask_b32 v{sv+k}, v{sc+k}, v{sc+4+k}, s[100:101]" for k in range(4)]
            o += [f"v_cvt_pk_bf16_f32 v{sv+k}, 0, v{sv+k}" for k in range(4)]
            o += [f"v_mul_f32 v{sv+k}, {SCALE}, v{sv+k}" for k in range(4)]
            o += [f"v_cvt_pk_bf16_f32 v{sv+k}, 0, v{sv+k}" for k in range(4)]
            o += [f"v_max3_f32 v{M2}, v{M2}, v{sv}, v{sv+1}", f"v_perm_b32 v{pk}, v{sv+1}, v{sv}, s26",
                  f"v_max3_f32 v{M2}, v{M2}, v{sv+2}, v{sv+3}", f"v_perm_b32 v{pk+1}, v{sv+3}, v{sv+2}, s26"]
            return o
        emit(interleave(qb, pre(SC, S, PK), {3: 1, 4: 3, 5: 3, 6: 3}))
        emit(pre(SC2, S2, PK + 2))
        a(f"ds_write_b128 v{A_SB}, v[{PK}:{PK+3}] offset:{SB}")
        a(f"v_add_u32 v{A_SB}, 1024, v{A_SB}")
        a("s_cmp_lt_u32 s11, s25")
        a("s_cbranch_scc1 L_c_kk")
        if kdyn:
            a("s_lshl_b32 s4, s11, 2")
            a("v_add_u32 v14, s4, v1")
            a(f"s_mov_b32 s60, {spin_limit}")
            a("L_c_ent:")
            a(f"ds_read_b32 v12, v14 offset:{TQ}")
            a("s_sub_u32 s60, s60, 1")
            a("s_waitcnt lgkmcnt(0)")
            a("v_readfirstlane_b32 s61, v12")
            a("s_cselect_b32 s61, 1, s61")
            a("s_cmp_eq_u32 s61, 0")
            a("s_cbranch_scc1 L_c_ent")
            a("s_bitcmp1_b32 s61, 3")
            a("s_cbranch_scc1 L_c_kk")
            a("s_mov_b32 s25, s11")
        stamp(7)
        emit(row_list("v_max_f32", M2, (8,)) + cross_list("v_max_f32", M2, 15))
        a(f"v_mul_f32 v{M2}, s12, v{M2}")
        a(f"v_add_u32 v{A_SB}, v6, v1")
        a("s_lshl_b32 s25, s25, 1")
        a("L_c_vv:")
        a(f"ds_read_b128 v[{PK}:{PK+3}], v{A_SB} offset:{SB}")
        a(f"v_add_u32 v{A_SB}, 1024, v{A_SB}")
        slot_base(5, "s99")
        a("s_sub_u32 s5, s5, 8192")
        v_addr()
        a("s_add_u32 s10, s10, 4")
        a("s_add_u32 s99, s99, 1")
        a("s_add_u32 s11, s11, 1")
        a("s_waitcnt lgkmcnt(0)")
        for h, sv in enumerate((S, S2)):
            for k in range(2):
                a(f"v_lshlrev_b32 v{sv+2*k}, 16, v{PK+2*h+k}")
                a(f"v_and_b32 v{sv+2*k+1}, 0xffff0000, v{PK+2*h+k}")
        for sv in (S, S2):
            for k in range(4): a(f"v_fma_f32 v{sv+k}, v{sv+k}, s12, -v{M2}")
        need("s10")
        v_reads()
        v_reads(VF2, 8192)
        for sv in (S, S2):
            for k in range(4): a(f"v_exp_f32 v{sv+k}, v{sv+k}")
        for sv, pp in ((S, P), (S2, P2)):
            a(f"v_cvt_pk_bf16_f32 v{pp}, v{sv}, v{sv+1}")
            a(f"v_cvt_pk_bf16_f32 v{pp+1}, v{sv+2}, v{sv+3}")
        for k in range(4): a(f"v_add_f32 v{S+k}, v{S+k}, v{S2+k}")
        for pp in (P, P2):
            a(f"v_mov_b32_dpp v{pp+2}, v{pp} row_ror:8 {DPP}")
            a(f"v_mov_b32_dpp v{pp+3}, v{pp+1} row_ror:8 {DPP}")
        a(f"v_add_f32 v{S}, v{S}, v{S+1}")
        a(f"v_add_f32 v{S+2}, v{S+2}, v{S+3}")
        a("s_waitcnt lgkmcnt(0)")
        progress("s99")
        pv()
        pv(VF2, P2)
        a(f"v_add_f32 v{S}, v{S}, v{S+2}")
        a(f"v_add_f32 v{LS}, v{LS}, v{S}")
        a("s_cmp_lt_u32 s11, s25")
        a("s_cbranch_scc1 L_c_vv")
        a("s_add_u32 s10, s10, 2")
        a("s_cmp_lt_u32 s11, s97")
        a("s_cbranch_scc1 L_c_k")
        stats()
        a("s_branch L_c_pub")
    else:
        a("s_add_u32 s10, s10, 2")
        a("s_mov_b32 s11, 0")
        a("s_branch L_c_k")
    a("L_c_fast:")
    slot_base(5, "s99")
    a("s_add_u32 s99, s99, 1")
    slot_base(4, "s99")
    v_addr()
    v_reads()
    k_reads()
    sm = softmax_list(); i = sm.index("MARK")
    emit(sm[:i])
    a("s_waitcnt lgkmcnt(0)")
    progress("s99")
    rest = sm[i + 1:]; q = qk_list()
    pos = {0: 1, 1: 0, 2: 1, 4: 0, 5: 2, 9: 1, 12: 1, 16: 1, 20: 1}
    for j, x in enumerate(rest):
        for _ in range(pos.get(j, 0)): a(q.pop(0))
        a(x)
    assert not q
    pv()
    a("L_c_top:")
    a("s_add_u32 s11, s11, 1")
    a("s_add_u32 s10, s10, 4")
    a("s_cmp_ge_u32 s11, s97")
    a("s_cbranch_scc1 L_c_slow")
    a("s_cmp_ge_u32 s96, s10")
    a("s_cbranch_scc1 L_c_fast")
    refresh()
    a("s_cmp_ge_u32 s96, s10")
    a("s_cbranch_scc1 L_c_fast")
    a("L_c_slow:")
    if stamps or probe or leak: stamp(8)
    slot_base(5, "s99")
    v_addr()
    emit([x for x in softmax_list() if x != "MARK"])
    stats()
    if stamps or probe or leak: stamp(9)
    need("s6")
    v_reads()
    a("s_add_u32 s99, s99, 1")
    a("s_cmp_ge_u32 s11, s97")
    a("s_cbranch_scc1 L_c_last")
    a("s_waitcnt lgkmcnt(0)")
    pv()
    progress("s99")
    a("L_c_k:")
    need("s10")
    slot_base(4, "s99")
    k_reads()
    q = qk_list()
    for j in range(8):
        if not (stamps or probe or leak): a(f"s_waitcnt lgkmcnt({7-j})")
        elif j == 0: a("s_waitcnt lgkmcnt(0)")
        a(q[j])
    a("s_branch L_c_top")
    if al is not None:
        a(".p2align 6")
        for _ in range(al): a(".long 0xbf800000")
    a("L_c_last:")
    if sig1 is not None and s1pos == "last": a(f"ds_add_u32 v{A1}, v{ONE} offset:{PCNT}")
    a("s_waitcnt lgkmcnt(0)")
    pv()
    progress("s99")
    a("L_c_pub:")
    for k in range(4): a(f"v_mov_b32_dpp v{AO+k}, v{AO+4+k} row_ror:8 row_mask:0xf bank_mask:0xc")
    for k in range(4):
        a(f"v_mul_f32 v{AO+k}, v{RL}, v{AO+k}")
    apply_tag(AO, [TO, TO + 1, TO + 2, LB])
    for k in range(4): a(f"ds_bpermute_b32 v{AO+k}, v{A_PERM}, v{AO+k}")
    a("s_waitcnt lgkmcnt(0)")
    if "o" not in abl: a(f"buffer_store_dwordx4 v[{AO}:{AO+3}], v{A_OP}, s[48:51], s44 offen {ost}")
    if sig1 is not None and s1pos == "store": a(f"ds_add_u32 v{A1}, v{ONE} offset:{PCNT}")
    stamp(10)
    PD, WF, BF, WA = 64, 32, 96, 88
    a("s_lshl_b32 s99, s99, 2")
    a("s_add_u32 s22, s99, s3")
    a("s_add_u32 s22, s22, 8")
    a("s_add_u32 s23, s22, 4")
    for st in range(2):
        a(f"s_sub_u32 s4, s{22+st}, 1")
        a("s_and_b32 s4, s4, 31")
        a("s_lshl_b32 s4, s4, 12")
        for u in range(4):
            a(f"v_xor_b32 v14, {32*u}, v{TA}")
            a(f"v_add_u32 v{WA+4*st+u}, s4, v14")
    def wo_reads(st):
        for u in range(4):
            for t in range(2):
                d = WF + 8 * u + 4 * st + 2 * t
                a(f"ds_read_b64_tr_b16 v[{d}:{d+1}], v{WA+4*st+u} offset:{t*2048}")
    stamp(11)
    assert egate or gate >= 15 - (win // 4 - 1)
    a(f"s_add_u32 s10, s99, {gate}")
    need("s10", count=False)
    stamp(14)
    def o_loads():
        for i in range(0 if "g" in abl else 4):
            a(f"buffer_load_dwordx4 v[{PD+4*i}:{PD+4*i+3}], v{A_G}, s[48:51], s{16+i} offen {old_}")
    if sig1 is not None:
        a(f"ds_read_b32 v14, v1 offset:{GO}")
        a("s_waitcnt lgkmcnt(0)")
        a("v_readfirstlane_b32 s4, v14")
        a("s_cmp_eq_u32 s4, 0")
        a("s_cbranch_scc1 L_o_notyet")
    o_loads()
    if not egate:
        need("s22", count=False)
        wo_reads(0)
        need("s23", count=False)
        wo_reads(1)
    a(f"s_mov_b32 s60, {spin_limit}")
    if sigpos in ("arr", "arr0"):
        a(f"s_waitcnt vmcnt({0 if sigpos == 'arr' else 3})")
        a(f"ds_add_u32 v{A1}, v{ONE} offset:{GCNT}")
    a("L_o_chk:")
    fill = tag_list(range(PD, PD + 16, 4), 12, n=3)
    chain = [f"v_perm_b32 v17, v{PD+15}, v{PD+11}, s20", "v_perm_b32 v16, v17, v16, s21",
             f"v_mov_b32_dpp v17, v16 quad_perm:[1,0,3,2] {DPP}", f"v_perm_b32 v16, v17, v16, v{SEL1}",
             f"v_mov_b32_dpp v17, v16 quad_perm:[2,3,0,1] {DPP}", f"v_perm_b32 v18, v17, v16, v{SEL2}",
             f"v_max_f32_dpp v16, v18, v18 row_ror:1 {DPP}"] + row_list("v_max_f32", 16, (2, 4, 8)) + cross_list("v_max_f32", 16, 17)
    PC = 152
    src = lambda i, k: PC + 4 * i + k if (clean and k < 3) else PD + 4 * i + k
    if echk and clean:
        for i in range(3):
            a(f"s_waitcnt vmcnt({3-i})")
            emit(strip(PD + 4 * i, PC + 4 * i, 3) + gather_or([[PC, PC+1, PC+2], [PC+4, PC+5], [PC+6, PC+8, PC+9, PC+10]][i], 12, i == 0))
            if i == 1: a(f"v_perm_b32 v16, v{PD+7}, v{PD+3}, s20")
        a("s_waitcnt vmcnt(0)")
        j1, j2 = join_list(12)
        st_ = strip(PD + 12, PC + 12, 3); go_ = gather_or(range(PC + 12, PC + 15), 12, False)
        last = f"v_bitop3_b32 v12, v12, v{PC+14}, s63 bitop3:0xa8"
        emit(chain[0:2] + st_[0:2] + chain[2:4] + [st_[2], go_[0]] + chain[4:5] + [last] + chain[5:6] + [j1] + chain[6:7] + [j2] + chain[7:8])
        a("v_cmp_ne_u32 vcc, 0, v12")
        a(chain[8])
        a("s_cbranch_vccnz L_o_again")
        a("L_o_done:")
        a(f"ds_add_u32 v{A1}, v{ONE} offset:{GCNT}")
        emit(chain[9:])
        a("v_sub_f32 v18, v18, v16")
        a("v_exp_f32 v18, v18")
    elif echk:
        for i in range(3):
            a(f"s_waitcnt vmcnt({3-i})")
            emit(fill[3*i:3*i+3])
            if i == 1: a(f"v_perm_b32 v16, v{PD+7}, v{PD+3}, s20")
        a("s_waitcnt vmcnt(0)")
        j1, j2 = join_list(12)
        emit(chain[0:2] + fill[9:11] + chain[2:4] + fill[11:13] + chain[4:6] + [j1] + chain[6:7] + [j2] + chain[7:8])
        a("v_cmp_ne_u32 vcc, 0, v12")
        a(chain[8])
        a("s_cbranch_vccnz L_o_again")
        a("L_o_done:")
        if direct: a(f"ds_add_rtn_u32 v19, v{A1}, v{ONE} offset:{GCNT}")
        else: a(f"ds_add_u32 v{A1}, v{ONE} offset:{GCNT}")
        emit(chain[9:])
        a("v_sub_f32 v18, v18, v16")
        if direct: a("s_waitcnt lgkmcnt(0)")
        if direct: a("v_readfirstlane_b32 s4, v19")
        a("v_exp_f32 v18, v18")
        if direct:
            a("s_cmp_lg_u32 s4, 3")
            a("s_cbranch_scc1 L_o_quiet")
            a("s_mov_b64 exec, 0xffff")
            a(f"buffer_atomic_add v{ONE}, v142, s[48:51], s46 offen sc1")
            a("s_mov_b64 exec, -1")
            if lite == 2: a("s_memrealtime s[66:67]")
            a("L_o_quiet:")
    else:
        a("s_waitcnt vmcnt(2)")
        a(f"v_perm_b32 v16, v{PD+7}, v{PD+3}, s20")
        a("s_waitcnt vmcnt(0)")
        fill += ["s_nop 0", f"v_or_b32_dpp v12, v12, v12 quad_perm:[1,0,3,2] {DPP}", "s_nop 0", f"v_or_b32_dpp v12, v12, v12 quad_perm:[2,3,0,1] {DPP}"]
        emit(interleave(chain, fill, {1: 2, 3: 2, 5: 2, 6: 2, 7: 2, 8: 2, 10: 2, 13: 2}))
        a("v_cmp_ne_u32 vcc, 0, v12")
        a("v_sub_f32 v18, v18, v16")
        a("v_exp_f32 v18, v18")
        if "o" not in abl and "c" not in abl: a("s_cbranch_vccnz L_o_again")
        a("L_o_done:")
        if sig2 and sigpos == "chk": a(f"ds_add_u32 v{A1}, v{ONE} offset:{GCNT}")
    stamp(12)
    fm = [f"v_mul_f32_dpp v{20+k}, v18, v{src(0, k)} quad_perm:[0,0,0,0] {DPP}" for k in range(4)]
    for i in range(1, 4):
        fm += [f"v_fmac_f32_dpp v{20+k}, v18, v{src(i, k)} quad_perm:[{i},{i},{i},{i}] {DPP}" for k in range(4)]
    wsum = [f"v_add_f32_dpp v16, v18, v18 row_ror:1 {DPP}"] + row_list("v_add_f32", 16, (2, 4, 8)) + cross_list("v_add_f32", 16, 17) + ["v_rcp_f32 v16, v16"]
    red = ["v_permlane32_swap_b32 v20, v22", "v_permlane32_swap_b32 v21, v23", "v_add_f32 v20, v20, v22", "v_add_f32 v21, v21, v23",
           "v_permlane16_swap_b32 v20, v21", "v_add_f32 v20, v20, v21"] + row_list("v_add_f32", 20, (4, 8))
    seq = interleave(fm + red, wsum, {3: 1, 7: 1, 11: 1, 15: 2, 19: 2, 21: 1, 22: 2})
    if isinstance(sigpos, int): seq.insert(sigpos, f"ds_add_u32 v{A1}, v{ONE} offset:{GCNT}")
    emit(seq)
    a("v_mul_f32 v20, v20, v16")
    a("v_cvt_pk_bf16_f32 v20, v20, v20")
    a(f"ds_write_b16 v{A_OL}, v20 offset:{OL}")
    a(f"ds_add_u32 v{A1}, v{ONE} offset:{OCNT}")
    a(f"s_mov_b32 s60, {spin_limit}")
    a("L_x:")
    a(f"ds_read_b32 v12, v1 offset:{OCNT}")
    for u in range(1 if sel3 else 4):
        for st in range(2):
            d = BF + 8 * u + 4 * st
            a(f"ds_read_b128 v[{d}:{d+3}], v{A_M+u} offset:{64*st}")
    a("s_sub_u32 s60, s60, 1")
    a("s_waitcnt lgkmcnt(0)" if (stamps or probe or leak) else f"s_waitcnt lgkmcnt({2 if sel3 else 8})")
    a("v_readfirstlane_b32 s61, v12")
    a("s_cselect_b32 s61, -1, s61")
    a("s_cmp_lt_u32 s61, 4")
    a("s_cbranch_scc1 L_x")
    if egate:
        for st in range(2):
            need(f"s{22+st}", count=False)
            wo_reads(st)
            for u in range(4):
                a(f"s_waitcnt lgkmcnt({6-2*u})")
                c = "0" if u + st == 0 else f"v[{ACC}:{ACC+3}]"
                a(f"v_mfma_f32_16x16x32_bf16 v[{ACC}:{ACC+3}], v[{WF+8*u+4*st}:{WF+8*u+4*st+3}], v[{BF+8*u+4*st}:{BF+8*u+4*st+3}], {c}")
    if sel3:
        CU_ = [104, 108, 112, 116]
        def mm(u, st):
            c = "0" if st == 0 else f"v[{CU_[u]}:{CU_[u]+3}]"
            return f"v_mfma_f32_16x16x32_bf16 v[{CU_[u]}:{CU_[u]+3}], v[{WF+8*u+4*st}:{WF+8*u+4*st+3}], v[{BF+4*st}:{BF+4*st+3}], {c}"
        pick = lambda u, src: [f"v_bfi_b32 v{ACC+k}, v{A_M+1+u}, v{CU_[u]+k}, v{src+k}" for k in range(4)]
        a("s_waitcnt lgkmcnt(0)")
        p0, p1 = pick(0, TG), pick(1, ACC)
        emit([mm(0, 0), mm(0, 1), "s_nop 1", mm(1, 0), "s_nop 1", mm(1, 1), "s_nop 0", mm(2, 0)] + p0[:2] + [mm(2, 1)] + p0[2:] + [mm(3, 0)] + p1[:2] + [mm(3, 1)] + p1[2:])
        emit(pick(2, ACC))
        setexec(0x000f000f, 0x000f000f)
        emit(pick(3, ACC))
    for u in range(0 if (egate or sel3) else 4):
        for st in range(2):
            if not (stamps or probe or leak): a(f"s_waitcnt lgkmcnt({7-2*u-st})")
            c = "0" if u + st == 0 else f"v[{ACC}:{ACC+3}]"
            a(f"v_mfma_f32_16x16x32_bf16 v[{ACC}:{ACC+3}], v[{WF+8*u+4*st}:{WF+8*u+4*st+3}], v[{BF+8*u+4*st}:{BF+8*u+4*st+3}], {c}")
    if not sel3:
        setexec(0x000f000f, 0x000f000f)
        apply_tag(ACC)
    a(f"buffer_store_dwordx4 v[{ACC}:{ACC+3}], v{A_SP}, s[48:51], s45 offen sc1")
    stamp(13)
    dump_stamps(12, 13)
    a("s_endpgm")
    if sig1 is not None:
        a("L_o_notyet:")
        need("s22", count=False)
        wo_reads(0)
        need("s23", count=False)
        wo_reads(1)
        lds_spin(GO, 1, 12, 0)
        o_loads()
        a(f"s_mov_b32 s60, {spin_limit}")
        a("s_branch L_o_chk")
    a("L_o_again:")
    a("s_sub_u32 s60, s60, 1")
    a("s_cbranch_scc1 L_o_done")
    if osleep: a(f"s_sleep {osleep}")
    a("s_mov_b64 exec, vcc")
    o_loads()
    a("s_mov_b64 exec, -1")
    a("s_branch L_o_chk")

    role[0] = "H"
    a("L_helper:")
    srd(56, 34, 2048)
    if not eearly:
        a("v_mov_b32 v12, 1")
        a("s_waitcnt lgkmcnt(0)")
        a("s_mov_b64 exec, 1")
        a(f"ds_add_u32 v1, v12 offset:{QCNT}")
        a("s_mov_b64 exec, -1")
    make_tag()
    wd_row(4)
    a("s_mul_i32 s4, s4, 896")
    a(f"s_add_u32 s8, s4, {GP}")
    a("s_add_u32 s9, s8, 0x10000")
    a("v_add_u32 v14, -2, v5")
    a("v_cmp_gt_u32 vcc, 14, v5")
    a("v_cndmask_b32 v14, v14, v5, vcc")
    a("v_lshlrev_b32 v15, 4, v14")
    a("v_lshl_add_u32 v15, v4, 14, v15")
    a("v_lshlrev_b32 v14, 3, v14")
    a("v_lshl_add_u32 v14, v4, 1, v14")
    a("v_add_u32 v14, v14, v1")
    leak_flag()
    if leak:
        for x in leak:
            if x[0] == "H" and x[1]: a(f"s_mov_b32 s{64+2*x[1]}, 0")
    if hstart: need(hstart, sleep=8)
    else: lds_spin(QCNT, 7 if early_t else 5, 12, 8)
    stamp(1)
    L = a.label("L_h"); D = a.label("L_hd")
    a(f"s_mov_b32 s60, {spin_limit}")
    a(f"{L}:")
    for w in range(0 if "h" in abl else 4):
        a(f"buffer_load_dwordx4 v[{32+8*w}:{35+8*w}], v15, s[48:51], s8 offen offset:{224*w} sc1")
        a(f"buffer_load_dwordx4 v[{36+8*w}:{39+8*w}], v15, s[48:51], s9 offen offset:{224*w} sc1")
    a("s_waitcnt vmcnt(0)")
    tag_check(range(32, 64, 4), 12, quad=False)
    if "h" in abl: a("s_mov_b64 vcc, 0")
    retry_masked(L, D, 16)
    stamp(2)
    G8 = list(range(32, 64, 4)); G4 = G8[::2]
    for step in ("v_permlane32_swap_b32 v{r}, v{r2}", "v_permlane32_swap_b32 v{r1}, v{r3}", "v_add_f32 v{r}, v{r}, v{r2}",
                 "v_add_f32 v{r1}, v{r1}, v{r3}", "v_permlane16_swap_b32 v{r}, v{r1}", "v_add_f32 v{r}, v{r}, v{r1}",
                 "v_cvt_pk_bf16_f32 v{r}, 0, v{r}"):
        for r in G8: a(step.format(r=r, r1=r + 1, r2=r + 2, r3=r + 3))
    for step in ("v_mul_f32 v{t}, 0xbfb8aa3b, v{g}", "v_exp_f32 v{t}, v{t}", "v_add_f32 v{t}, 1.0, v{t}", "v_rcp_f32 v{t}, v{t}",
                 "v_mul_f32 v{t}, v{t}, v{g}", "v_cvt_pk_bf16_f32 v{g}, 0, v{t}", "v_mul_f32 v{g}, v{g}, v{u}",
                 "v_cvt_pk_bf16_f32 v{g}, v{g}, v{g}"):
        for g in G4: a(step.format(g=g, t=g + 1, u=g + 4))
    for w, g in enumerate(G4): a(f"ds_write_b16 v14, v{g} offset:{HL+112*w}")
    if side is None:
        a("s_and_b32 s4, s2, 7")
        a(f"s_lshr_b32 s5, s2, {7 if oneline else 6}")
        a("s_lshl_b32 s5, s5, 3")
        a("s_or_b32 s4, s4, s5")
        a(f"s_lshl_b32 s4, s4, {2 if oneline else 1}")
        a(f"s_bfe_u32 s5, s2, {0x20005 if oneline else 0x10005}")
        a("s_add_u32 s4, s4, s5")
    if side is not None:
        a("s_and_b32 s4, s2, 3")
        a("s_lshr_b32 s5, s2, 6")
        a("s_lshl2_add_u32 s4, s5, s4")
        a("s_bfe_u32 s5, s2, 0x20004")
        a("s_lshl2_add_u32 s4, s4, s5")
    if sig2:
        a("s_lshl_b32 s5, s4, 10")
        if apar is not None:
            a("s_and_b32 s6, s5, 0xe000")
            a("s_add_u32 s5, s5, s6")
        a(f"s_add_u32 s5, s5, {AC2}")
        a("s_add_u32 s52, s38, s5")
        a("s_addc_u32 s53, s39, 0")
        a(f"s_lshl_b32 s47, s13, {7 if fastw else 2}")
        a("s_add_u32 s47, s47, 64")
    a(f"s_lshl_b32 s5, s4, {6+sw}")
    for i in range(8 if fatom else 4): a(f"s_add_u32 s{20+i}, s5, {SP + i*RSS}")
    a("s_lshl_b32 s5, s4, 6")
    a(f"s_add_u32 s45, s5, {FP}")
    a("s_lshr_b32 s46, s4, 2")
    a("s_lshl_b32 s46, s46, 7")
    a("s_and_b32 s5, s4, 3")
    a("s_lshl_b32 s5, s5, 3")
    a("s_add_u32 s46, s46, s5")
    a("v_lshrrev_b32 v12, 2, v0")
    a("v_and_b32 v13, 3, v0")
    a(f"v_mul_u32_u24 v19, {RS}, v12")
    if fatom:
        a(f"v_mul_u32_u24 v18, {8*RSS}, v2")
        a("v_lshl_add_u32 v18, v3, 3, v18")
        a("v_bfe_i32 v23, v0, 1, 1")
        a(f"v_and_b32 v23, {TAGX}, v23")
        a("v_xor_b32 v23, s13, v23")
        a("v_and_b32 v16, 1, v0")
        a("v_lshlrev_b32 v16, 4, v16")
        a("v_lshrrev_b32 v16, v16, v23")
        a("v_lshrrev_b32 v17, 8, v16")
        a("v_lshrrev_b32 v23, 5, v0")
        a("v_and_b32 v100, 1, v0")
        a("v_lshl_add_u32 v23, v100, 1, v23")
        a("v_bfe_u32 v100, v0, 1, 2")
        a("v_lshlrev_b32 v101, 6, v23")
        a("v_lshl_add_u32 v101, v100, 2, v101")
        a("v_lshlrev_b32 v23, 1, v23")
        a("v_lshl_add_u32 v23, v100, 5, v23")
    else:
        a(f"v_mul_u32_u24 v18, {4*RSS}, v12")
        if spar is not None: a("v_and_b32 v18, 0xffffcfff, v18")
        a("v_lshl_add_u32 v18, v13, 4, v18")
    a("v_lshl_add_u32 v19, v13, 4, v19")
    a("v_lshlrev_b32 v20, 5, v13")
    a("v_lshl_add_u32 v20, v4, 1, v20")
    if fatom: a("v_mov_b32 v20, v23")
    a("buffer_load_ushort v22, v20, s[40:43], s46 offen")
    wd_row(4)
    a(f"s_mul_i32 s4, s4, {RS}")
    wd_col(5)
    a("s_lshl_b32 s5, s5, 8")
    a("s_add_u32 s4, s4, s5")
    a(f"s_add_u32 s15, s4, {FP}")
    a("v_lshlrev_b32 v21, 4, v5")
    a("v_lshl_add_u32 v21, v4, 6, v21")
    tr_addr(TA)
    for u in range(4): a(f"v_xor_b32 v{28+u}, {32*u}, v{TA}")
    a("v_lshl_add_u32 v14, v4, 4, v1")
    a("v_and_b32 v12, 1, v0")
    a("v_cmp_eq_u32 s[8:9], 1, v12")
    a("v_and_b32 v12, 2, v0")
    a("v_cmp_eq_u32 s[6:7], 2, v12")
    CA = 64; HF = 48
    for k in range(16): a(f"v_mov_b32 v{CA+k}, 0")
    if pre in ("full", "ld"):
        a("s_and_b32 s4, s2, 0x78")
        a("s_cbranch_scc1 L_h_nopre")
        a("v_lshlrev_b32 v12, 2, v0")
        a("v_mov_b32 v13, 0")
        a("s_mov_b32 exec_hi, 0")
        if pre == "full": a("buffer_store_dword v13, v12, s[56:59], s46 offen sc1")
        else: a("buffer_load_dword v23, v12, s[56:59], s46 offen")
        a("s_mov_b64 exec, -1")
        a("L_h_nopre:")
    if pre == "st0":
        a("s_and_b32 s4, s2, 0x18")
        a("s_cbranch_scc1 L_h_nopre")
        a("s_waitcnt vmcnt(0)")
        setexec(0x000f000f, 0x000f000f)
        a("buffer_store_short v22, v20, s[56:59], s46 offen")
        a("s_mov_b64 exec, -1")
        a("L_h_nopre:")
    stamp(3)
    L = a.label("L_nt"); D = a.label("L_ntd")
    a(f"s_mov_b32 s60, {spin_limit}")
    a(f"{L}:")
    refresh()
    a(f"s_cmp_lg_u32 s97, {BIG}")
    a(f"s_cbranch_scc1 {D}")
    a("s_sleep 4")
    a("s_sub_u32 s60, s60, 1")
    a(f"s_cbranch_scc0 {L}")
    a(f"{D}:")
    light_test()
    a("s_cselect_b32 s10, 2, 6")
    a("s_add_u32 s10, s10, s97")
    a("s_lshl_b32 s10, s10, 2")
    a("s_mov_b32 s11, 0")
    need("s10", sleep=2)
    a("s_setprio 2")
    a("L_h_step:")
    a("s_and_b32 s4, s10, 31")
    a("s_lshl_b32 s4, s4, 12")
    for u in range(4): a(f"v_add_u32 v{24+u}, s4, v{28+u}")
    a(f"ds_read_b128 v[{HF}:{HF+3}], v14 offset:{HL}")
    a("v_add_u32 v14, 64, v14")
    a("s_add_u32 s10, s10, 1")
    need("s10")
    stamp(4)
    for u in range(4):
        for t in range(2):
            d = 32 + 4 * u + 2 * t
            a(f"ds_read_b64_tr_b16 v[{d}:{d+1}], v{24+u} offset:{t*2048}")
    for u in range(4):
        if not (stamps or probe or leak): a(f"s_waitcnt lgkmcnt({6-2*u})")
        elif u == 0: a("s_waitcnt lgkmcnt(0)")
        a(f"v_mfma_f32_16x16x32_bf16 v[{CA+4*u}:{CA+4*u+3}], v[{32+4*u}:{35+4*u}], v[{HF}:{HF+3}], v[{CA+4*u}:{CA+4*u+3}]")
    a("s_add_u32 s11, s11, 1")
    a("s_cmp_lt_u32 s11, 7")
    a("s_cbranch_scc1 L_h_step")
    for k in range(4): a(f"v_cndmask_b32 v{CA+k}, v{CA+k}, v{CA+4+k}, s[8:9]")
    for k in range(4): a(f"v_cndmask_b32 v{CA+8+k}, v{CA+8+k}, v{CA+12+k}, s[8:9]")
    for k in range(4): a(f"v_cndmask_b32 v{CA+k}, v{CA+k}, v{CA+8+k}, s[6:7]")
    apply_tag(CA)
    setexec(0x000f000f, 0x000f000f)
    a(f"buffer_store_dwordx4 v[{CA}:{CA+3}], v21, s[48:51], s15 offen sc1")
    a("s_mov_b64 exec, -1")
    if not hp: a("s_setprio 0")
    stamp(5)
    if side is None: a("s_and_b32 s4, s2, 0x18")
    else:
        a(f"s_xor_b32 s4, s2, {4 * side}")
        a("s_and_b32 s4, s4, 12")
    a("s_cbranch_scc1 L_hend")
    if pre == "st":
        a("s_waitcnt vmcnt(0)")
        setexec(0x000f000f, 0x000f000f)
        a("buffer_store_short v22, v20, s[56:59], s46 offen")
        a("s_mov_b64 exec, -1")
    def f_math():
        treduce4(96)
        emit(row_list("v_add_f32", 96, (4, 8)))
        bf16r(96, 96)
        silu_bf16(96, 96, 12)
        a("v_lshlrev_b32 v22, 16, v22")
    if fat:
        a("s_add_u32 s10, s10, 8")
        need("s10", sleep=1, count=False)
        a(f"s_mov_b32 s60, {spin_limit}")
        def watch(L, lim):
            a(f"{L}:")
            for k in range(4): a(f"s_load_dword s{28+k}, s[52:53], {256*k} glc")
            a("s_sub_u32 s60, s60, 1")
            a("s_cselect_b32 s5, 0, -1")
            a("s_waitcnt lgkmcnt(0)")
            a("s_add_u32 s28, s28, s29")
            a("s_add_u32 s30, s30, s31")
            a("s_sub_u32 s28, s47, s28")
            a("s_sub_u32 s28, s28, s30")
            a("s_and_b32 s28, s28, s5")
            if lim: a(f"s_cmp_gt_u32 s28, {lim}")
            a(f"s_cbranch_scc1 {L}")
        watch("L_h_most", 64 - fat)
        a("buffer_load_dwordx4 v[96:99], v19, s[48:51], s45 offen sc1")
        if shard:
            a("s_add_u32 s54, s13, 16")
            a("s_mov_b64 s[16:17], -1")
            a("s_cmp_eq_u32 s28, 0")
            a("s_cbranch_scc1 L_h_go")
            a("L_h_all:")
            for k in range(4): a(f"s_load_dword s{28+k}, s[52:53], {256*k} glc")
            a("s_sub_u32 s60, s60, 1")
            a("s_cbranch_scc1 L_h_go")
            a("s_waitcnt lgkmcnt(0)")
            for k in range(4):
                a(f"s_cmp_eq_u32 s{28+k}, s54")
                a(f"s_cselect_b32 s{28+k}, -1, 0")
            a("s_pack_ll_b32_b16 s28, s28, s29")
            a("s_pack_ll_b32_b16 s29, s30, s31")
            a("s_andn2_b64 s[30:31], s[16:17], s[28:29]")
            a("s_cbranch_scc1 L_h_part")
            a("L_h_go:")
            a("s_mov_b64 exec, s[16:17]")
        elif fastw:
            a("s_cmp_eq_u32 s28, 0")
            a("s_cbranch_scc1 L_h_go")
            def wset(r):
                for k in range(4): a(f"s_load_dword s{r+k}, s[52:53], {256*k} glc")
            def wtest(r, n):
                a(f"s_waitcnt lgkmcnt({n})")
                a(f"s_and_b64 s[4:5], s[{r}:{r+1}], s[{r+2}:{r+3}]")
                a("s_and_b32 s4, s4, s5")
                a("s_bitcmp1_b32 s4, 4")
            if fastw == 1:
                a("L_h_all:")
                wset(28)
                a("s_sub_u32 s60, s60, 1")
                a("s_cbranch_scc1 L_h_go")
                wtest(28, 0)
                a("s_cbranch_scc0 L_h_all")
            else:
                for k in range(8): a(f"s_mov_b32 s{24+k}, 0")
                wset(28)
                a(f"s_sleep {fastw}")
                a("L_h_all:")
                wset(24)
                wtest(28, 4)
                a("s_cbranch_scc1 L_h_go")
                wset(28)
                a("s_sub_u32 s60, s60, 1")
                a("s_cbranch_scc1 L_h_go")
                wtest(24, 4)
                a("s_cbranch_scc0 L_h_all")
            a("L_h_go:")
        else:
            a("s_cmp_eq_u32 s28, 0")
            a("s_cbranch_scc1 L_h_go")
            watch("L_h_all", 0)
            a("L_h_go:")
    elif flate:
        lds_spin(GCNT, 4, 12, 1)
        if pre == "st2":
            a("s_waitcnt vmcnt(0)")
            setexec(0x000f000f, 0x000f000f)
            a("buffer_store_short v22, v20, s[56:59], s46 offen")
            a("s_mov_b64 exec, -1")
        a("buffer_load_dwordx4 v[96:99], v19, s[48:51], s45 offen sc1")
    else:
        a("s_add_u32 s10, s10, 8")
        need("s10", sleep=1)
        L = a.label("L_f"); D = a.label("L_fd")
        a(f"s_mov_b32 s60, {spin_limit}")
        a(f"{L}:")
        a("buffer_load_dwordx4 v[96:99], v19, s[48:51], s45 offen sc1")
        a("s_waitcnt vmcnt(0)")
        tag_check([96], 12)
        retry_masked(L, D, 2)
        stamp(12)
        f_math()
    if fat: pass
    elif sig2:
        a(f"s_mov_b32 s60, {spin_limit}")
        if w2s:
            def wset(r):
                for k in range(4): a(f"s_load_dword s{r+k}, s[52:53], {256*k} glc")
            def wsum(r):
                a("s_waitcnt lgkmcnt(4)")
                a(f"s_add_u32 s4, s{r}, s{r+1}")
                a(f"s_add_u32 s5, s{r+2}, s{r+3}")
                a("s_add_u32 s4, s4, s5")
            wset(28)
            a(f"s_sleep {w2s}")
            a("L_h_watch2:")
            wset(24)
            wsum(28)
            a("s_cmp_eq_u32 s4, s47")
            a("s_cbranch_scc1 L_h_go")
            wset(28)
            a("s_sub_u32 s60, s60, 1")
            a("s_cbranch_scc1 L_h_go")
            wsum(24)
            a("s_cmp_lg_u32 s4, s47")
            a("s_cbranch_scc1 L_h_watch2")
            a("s_branch L_h_go")
        a("L_h_watch:")
        for k in range(4): a(f"s_load_dword s{28+k}, s[52:53], {256*k} glc")
        a("s_sub_u32 s60, s60, 1")
        a("s_cbranch_scc1 L_h_go")
        a("s_waitcnt lgkmcnt(0)")
        a("s_add_u32 s28, s28, s29")
        a("s_add_u32 s30, s30, s31")
        a("s_add_u32 s28, s28, s30")
        a("s_cmp_lg_u32 s28, s47")
        a("s_cbranch_scc1 L_h_watch")
        a("L_h_go:")
    else:
        lds_spin(OCNT, 4, 12, 1)
    def s_loads():
        for i in range(4):
            a(f"buffer_load_dwordx4 v[{80+4*i}:{83+4*i}], v18, s[48:51], s{20+i} offen sc1")
    s_loads()
    if shard: a("s_mov_b64 exec, -1")
    stamp(6)
    if flate:
        L = a.label("L_f"); D = a.label("L_fd")
        a(f"s_mov_b32 s60, {spin_limit}")
        a("s_waitcnt vmcnt(4)")
        a("s_branch L_f_chk")
        a(f"{L}:")
        a("buffer_load_dwordx4 v[96:99], v19, s[48:51], s45 offen sc1")
        a("s_waitcnt vmcnt(0)")
        a("L_f_chk:")
        tag_check([96], 12)
        retry_masked(L, D, 0)
        if lite == 2: a(f"s_sub_u32 s82, {spin_limit + 1}, s60")
        f_math()
        stamp(11)
    a(f"s_mov_b32 s60, {spin_limit}")
    a("L_s_chk:")
    if clean:
        red = ["v_permlane32_swap_b32 v100, v102", "v_permlane32_swap_b32 v101, v103", "v_add_f32 v100, v100, v102", "v_add_f32 v101, v101, v103",
               "v_permlane16_swap_b32 v100, v101", "v_add_f32 v100, v100, v101"] + row_list("v_add_f32", 100, (4, 8))
        a("s_waitcnt vmcnt(3)")
        emit(strip(80, 100) + gather_or(range(100, 104), 12, True))
        for i in range(1, 4):
            a(f"s_waitcnt vmcnt({3-i})")
            emit(strip(80 + 4 * i, 104))
            for k in (0, 2): a(f"v_pk_add_f32 v[{100+k}:{101+k}], v[{100+k}:{101+k}], v[{104+k}:{105+k}]")
            if i < 3: emit(gather_or(range(104, 108), 12, False))
        go_ = gather_or(range(104, 108), 12, False); j1, j2 = join_list(12)
        emit(go_ + red[0:2] + ["v_pk_add_f32 v[100:101], v[100:101], v[102:103]", "v_and_b32 v12, 0xff, v12"] + red[4:6] + [j1] + red[6:7] + [j2] + red[7:8])
    else:
        tl = tag_list([80, 84, 88, 92], 12)
        a("s_waitcnt vmcnt(3)")
        emit(tl[0:4])
        a("s_waitcnt vmcnt(2)")
        emit(tl[4:8])
        for k in range(4): a(f"v_add_f32 v{100+k}, v{80+k}, v{84+k}")
        a("s_waitcnt vmcnt(1)")
        emit(tl[8:12])
        for k in range(4): a(f"v_add_f32 v{100+k}, v{100+k}, v{88+k}")
        a("s_waitcnt vmcnt(0)")
        for k in range(4): a(f"v_add_f32 v{100+k}, v{100+k}, v{92+k}")
        red = ["v_permlane32_swap_b32 v100, v102", "v_permlane32_swap_b32 v101, v103", "v_add_f32 v100, v100, v102", "v_add_f32 v101, v101, v103",
               "v_permlane16_swap_b32 v100, v101", "v_add_f32 v100, v100, v101"] + row_list("v_add_f32", 100, (4, 8))
        a(tl[12])
        emit(interleave(red, tl[13:] + join_list(12), {3: 2, 5: 2, 6: 1}))
    a("v_cmp_ne_u32 vcc, 0, v12")
    bf16r(100, 100)
    a("v_mul_f32 v100, v100, v96")
    a("s_cbranch_vccnz L_s_again")
    a("L_s_done:")
    if lite == 2: a(f"s_sub_u32 s84, {spin_limit + 1}, s60")
    if padend:
        a("L_padend:")
        a("s_memrealtime s[70:71]")
        a("s_waitcnt lgkmcnt(0)")
        a("s_sub_u32 s70, s70, s64")
        a(f"s_cmp_lt_u32 s70, {padend}")
        a("s_cbranch_scc1 L_padend")
    stamp(13)
    bf16r(100, 100)
    a("v_add_f32 v100, v100, v22")
    a("v_cvt_pk_bf16_f32 v80, v100, v100")
    setexec(0x000f000f, 0x000f000f)
    if leak:
        a("s_cmp_lg_u32 s95, 0")
        a("s_cselect_b32 s58, 0, s58")
    a(f"buffer_store_short v80, v20, s[56:59], s46 offen{outsc}")
    if ackst: a("s_waitcnt vmcnt(0)")
    stamp(14)
    if not eearly:
        a("s_cmp_eq_u32 s2, 0")
        a("s_cbranch_scc0 L_hend")
        a("s_mov_b64 exec, 1")
        a(f"s_mov_b32 s4, {EPOCH}")
        a(f"buffer_store_dword v{TG}, v0, s[48:51], s4 offen{outsc}")
    if leak:
        a("v_mov_b32 v12, 0x600df00d")
        a("buffer_store_dword v12, v0, s[48:51], s4 offen offset:4")
    a("L_hend:")
    dump_stamps(12, 13)
    if late is not None:
        a("s_mov_b64 exec, 0xff")
        a("s_lshl_b32 s4, s2, 7")
        a("s_add_u32 s4, s4, 0x800000")
        a(f"buffer_store_dwordx4 v[8:11], v6, s[48:51], s4 offen {late}")
    a("s_endpgm")

    if shard:
        a("L_h_part:")
        a("s_and_b64 exec, s[16:17], s[28:29]")
        a("s_cbranch_execz L_h_none")
        s_loads()
        a("s_mov_b64 s[16:17], s[30:31]")
        a("L_h_none:")
        a("s_mov_b64 exec, -1")
        a("s_branch L_h_all")
    a("L_s_again:")
    a("s_sub_u32 s60, s60, 1")
    a("s_cbranch_scc1 L_s_done")
    a("s_mov_b64 exec, vcc")
    s_loads()
    a("s_mov_b64 exec, -1")
    a("s_branch L_s_chk")

    role[0] = "T"
    a("L_ticket:")
    if tp0: a(f"s_setprio {tp0}")
    assert two
    a("s_cmp_lg_u32 s3, 6")
    a("s_cbranch_scc1 L_t_noent")
    pool_id(11)
    pool_member(6)
    if two:
        assert npool == 4 and dyn % 2 == 0 and lex % 2 == 0
        light_test()
        a(f"s_cselect_b32 s9, {lex // 2}, 0")
        a(f"s_add_u32 s8, s9, {dyn // 2}")
        a("v_subrev_u32 v15, s8, v0")
        a("v_cmp_gt_u32 s[100:101], s8, v0")
        a("v_cndmask_b32 v28, v15, v0, s[100:101]")
        a("s_lshl_b32 s4, s9, 4")
        a("s_sub_u32 s6, s6, s4")
        a("v_lshl_add_u32 v15, v28, 4, s6")
        a("s_bfe_u32 s4, s2, 0x10002")
        a(f"s_add_u32 s4, s4, {mem * dyn // 2}")
        a("v_lshl_add_u32 v31, v28, 1, s4")
        a("v_cmp_gt_u32 vcc, s9, v28")
        a("v_cndmask_b32 v15, v15, v31, vcc")
        a(f"s_mul_i32 s6, s11, {prot}")
        a("v_lshl_add_u32 v15, v15, 1, s6")
        a("v_and_b32 v15, 255, v15")
        a("s_lshl_b32 s7, s11, 21")
        a("v_lshl_add_u32 v15, v15, 13, s7")
        a("v_cndmask_b32 v28, 4, 8, s[100:101]")
        a("v_or_b32 v15, v15, v28")
        a("s_lshl_b32 s9, s9, 1")
    a("v_or_b32 v15, 1, v15")
    a("v_lshl_add_u32 v14, v0, 2, v1")
    if kdyn:
        a("s_bfm_b64 exec, s8, 0")
    elif lex:
        a(f"s_add_u32 s9, s9, {dyn}")
        a("s_bfm_b64 exec, s9, 0")
    else:
        a(f"s_mov_b64 exec, {(1 << dyn) - 1}")
    a(f"ds_write_b32 v14, v15 offset:{TQ}")
    a("s_mov_b64 exec, -1")
    if kdyn:
        assert dyn // 2 + lex // 2 + kdyn[1] <= 8 and kdyn[1] * mem >= kdyn[0]
        a(f"s_mul_i32 s10, s11, {cstride}")
        a(f"s_add_u32 s10, s10, {TCN + 128}")
        a("s_add_u32 s58, s38, s10")
        a("s_addc_u32 s59, s39, 0")
        a("s_add_u32 s20, s13, 0x01010101")
        a(f"s_xor_b32 s21, s20, {TAGX}")
        pool_member(9)
        a("s_cmp_lg_u32 s9, 0")
        a("s_cbranch_scc1 L_t_noinit")
        a("v_mov_b32 v20, 0")
        a("v_mov_b32 v21, s20")
        a("v_mov_b32 v22, s21")
        a("v_mov_b32 v23, s20")
        a("s_mov_b64 exec, 1")
        a("buffer_store_dwordx4 v[20:23], v0, s[48:51], s10 offen sc1")
        a("s_mov_b64 exec, -1")
        a("L_t_noinit:")
        a(f"s_add_u32 s9, s8, {kdyn[1]}")
        a(f"s_add_u32 s6, s6, {2 * (mem * dyn // 2 + lex)}")
        a("s_or_b32 s7, s7, 9")
        a(f"s_sub_u32 s4, s8, {kahead}")
        lds_spin(STARTED, "s4", 12, 4)
        a(f"s_mov_b32 s60, {spin_limit}")
        a("L_t_rdy:")
        a("s_load_dwordx4 s[28:31], s[58:59], 0 glc")
        a("s_sub_u32 s60, s60, 1")
        a("s_cbranch_scc1 L_t_claim")
        a("s_waitcnt lgkmcnt(0)")
        a("s_xor_b32 s29, s29, s20")
        a("s_xor_b32 s30, s30, s21")
        a("s_xor_b32 s31, s31, s20")
        a("s_or_b32 s29, s29, s30")
        a("s_or_b32 s29, s29, s31")
        a("s_cbranch_scc1 L_t_rdy")
        a("L_t_claim:")
        a(f"s_sub_u32 s4, s8, {kahead - 1}")
        lds_spin(STARTED, "s4", 12, 1)
        a("s_mov_b32 s15, 1")
        a("s_atomic_add s15, s[58:59], 0 glc")
        a("s_waitcnt lgkmcnt(0)")
        a(f"s_cmp_ge_u32 s15, {kdyn[0]}")
        a("s_cbranch_scc1 L_t_claimed")
        a("s_lshl1_add_u32 s4, s15, s6")
        a("s_and_b32 s4, s4, 255")
        a("s_lshl_b32 s4, s4, 13")
        a("s_add_u32 s4, s4, s7")
        a("s_lshl_b64 exec, 1, s8")
        a("v_mov_b32 v15, s4")
        a(f"ds_write_b32 v14, v15 offset:{TQ}")
        a("s_mov_b64 exec, -1")
        a("s_add_u32 s8, s8, 1")
        a("s_cmp_lt_u32 s8, s9")
        a("s_cbranch_scc1 L_t_claim")
        a("L_t_claimed:")
        a("v_xor_b32 v15, 12, v15")
        a("s_lshl_b32 s4, s8, 2")
        a("v_add_u32 v14, s4, v14")
        a("v_mov_b32 v13, s8")
        a("s_bfm_b64 exec, s8, 0")
        a(f"ds_write_b32 v14, v15 offset:{TQ}")
        a(f"ds_write_b32 v1, v13 offset:{GATE}")
        a("s_mov_b64 exec, -1")
    a("L_t_noent:")
    if otouch:
        a("s_cmp_lg_u32 s3, 7")
        a("s_cbranch_scc1 L_t_notouch2")
        need(otouch[0], sleep=8, count=False)
        a(f"s_mul_i32 s4, s2, {RSO}")
        a(f"s_add_u32 s4, s4, {OP}")
        if otouch[1] == "r":
            a("v_lshlrev_b32 v14, 7, v0")
            a("s_mov_b32 exec_hi, 0")
            a("buffer_load_dword v17, v14, s[48:51], s4 offen")
            a("s_mov_b64 exec, -1")
        else:
            for k in range(4): a(f"v_not_b32 v{20+k}, s13")
            for k in range(4): a(f"buffer_store_dwordx4 v[20:23], v6, s[48:51], s4 offen offset:{1024*k} sc1")
        a("L_t_notouch2:")
    pool_id(11)
    if stouch:
        a("s_cmp_lg_u32 s3, 7")
        a("s_cbranch_scc1 L_t_notouch")
        k = [64]
        def tch(p, off, imm=0):
            if imm: a(f"s_add_u32 s{off}, s{off}, {imm}")
            a(f"s_load_dword s{k[0]}, s[{p}:{p+1}], s{off}")
            k[0] += 1
        if "g" in stouch:
            a(f"s_mul_i32 s6, s14, {256*7168}")
            tch(28, 6); tch(30, 6); tch(28, 6, 255 * 7168); tch(30, 6)
        if "k" in stouch:
            a("s_lshl_b32 s6, s11, 21")
            tch(18, 6); tch(20, 6)
        if "t" in stouch:
            if "d" in stouch: need(40, sleep=8, count=False)
            wd_row(6)
            a(f"s_mul_i32 s6, s6, {224*2048}")
            tch(32, 6); tch(32, 6, 223 * 2048)
            rr_cc(6, 7)
            a("s_lshl_b32 s6, s6, 17")
            tch(24, 6)
        if "w" in stouch:
            a(f"s_mov_b32 s6, {0x280000}")
            tch(38, 6)
        a("s_waitcnt lgkmcnt(0)")
        a("L_t_notouch:")
    if kmap in "DEFGH":
        if kmap == "F":
            a("s_lshr_b32 s9, s11, 1")
            a("s_lshl_b32 s12, s9, 4")
            a("s_lshl_b32 s9, s9, 22")
            a("s_mov_b32 s8, s11")
        else:
            a(f"s_mul_i32 s12, s11, {prot}")
            a("s_lshl_b32 s9, s11, 21")
        a(f"s_add_u32 s12, s12, {reg - nshared}")
        a("s_or_b32 s9, s9, 1")
        if kmap == "H":
            a("s_and_b32 s8, s11, 3")
            a("s_and_b32 s9, s11, 12")
    elif kmap == "C":
        a(f"s_and_b32 s12, s11, {npool-1}")
        a("s_lshr_b32 s9, s2, 6")
        a(f"s_mul_i32 s4, s9, {rot}")
        a("s_add_u32 s12, s12, s4")
        a("s_lshl_b32 s12, s12, 13")
        a(f"s_add_u32 s12, s12, {64*dyn*8192 + 1}")
        a("s_lshl_b32 s9, s9, 23")
    else:
        a(f"s_mul_i32 s12, s11, {reg*8192}")
        a(f"s_add_u32 s12, s12, {mem*dyn*8192 + 1}")
    a(f"s_mul_i32 s11, s11, {cstride}")
    a(f"s_add_u32 s11, s11, {TCN}")
    a("s_add_u32 s56, s38, s11")
    a("s_addc_u32 s57, s39, 0")
    if kdyn:
        lds_spin(GATE, 1, 12, 8)
        a("s_min_u32 s61, s61, 8")
        a("s_lshl1_add_u32 s10, s61, s3")
        a("s_sub_u32 s10, s10, 6")
    else: a(f"s_add_u32 s10, s3, {dyn - 6}")
    if first3: a(f"s_mov_b32 s22, {first3}")
    if lex and not kdyn:
        light_test()
        a(f"s_cselect_b32 s4, {lex}, 0")
        a("s_add_u32 s10, s10, s4")
    if early_t:
        a("s_waitcnt lgkmcnt(0)")
        a("s_add_u32 s13, s13, 0x01010101")
        a(f"s_xor_b32 s14, s13, {TAGX}")
        a("v_mov_b32 v12, 1")
        a("s_mov_b64 exec, 1")
        a(f"ds_add_u32 v1, v12 offset:{QCNT}")
        pool_member(6)
        a("s_add_u32 s6, s6, s3")
        a("s_cmp_lg_u32 s6, 6")
        a("s_cbranch_scc1 L_t_noinit")
        a("v_mov_b32 v20, 0")
        a("v_mov_b32 v21, s13")
        a("v_mov_b32 v22, s14")
        a("v_mov_b32 v23, s13")
        a("buffer_store_dwordx4 v[20:23], v0, s[48:51], s11 offen sc1")
        a("L_t_noinit:")
        a("s_mov_b64 exec, -1")
        a(f"s_sub_u32 s11, s10, {ahead}")
        a("s_max_i32 s11, s11, 0")
        light_test()
        a("s_cselect_b32 s4, 4, 14")
        need("s4", sleep=4, count=False)
        a(f"s_mov_b32 s60, {spin_limit}")
        a("L_t_rdy:")
        a("s_load_dwordx4 s[28:31], s[56:57], 0 glc")
        a("s_sub_u32 s60, s60, 1")
        a("s_cbranch_scc1 L_t_next")
        a("s_waitcnt lgkmcnt(0)")
        a("s_xor_b32 s29, s29, s13")
        a("s_xor_b32 s30, s30, s14")
        a("s_xor_b32 s31, s31, s13")
        a("s_or_b32 s29, s29, s30")
        a("s_or_b32 s29, s29, s31")
        a("s_cbranch_scc0 L_t_next")
        a("s_sleep 8")
        a("s_branch L_t_rdy")
    else:
        lds_spin(QCNT, 4 if eearly else 5, 12, 8)
    if eearly:
        a("s_and_b32 s4, s2, 63")
        a("s_lshl_b32 s4, s4, 3")
        a("s_or_b32 s4, s4, s3")
        a("s_cmp_lg_u32 s4, 7")
        a("s_cbranch_scc1 L_t_next")
        a("s_mov_b32 s15, 1")
        a("s_atomic_add s15, s[36:37], 64 glc")
        a("s_add_u32 s13, s13, 0x01010101")
        a("v_mov_b32 v15, s13")
        a(f"s_mov_b32 s4, {EPOCH}")
        a("s_waitcnt lgkmcnt(0)")
        a("s_and_b32 s15, s15, 3")
        a("s_cmp_lg_u32 s15, 3")
        a("s_cbranch_scc1 L_t_next")
        a("s_mov_b64 exec, 1")
        a("buffer_store_dword v15, v0, s[48:51], s4 offen sc1")
        a("s_mov_b64 exec, -1")
    if touch:
        a("s_cmp_eq_u32 s3, 6")
        a("s_cselect_b64 s[40:41], s[32:33], s[24:25]")
        a("s_cselect_b32 s42, 7340032, s43")
        a("s_cselect_b32 s42, s42, 8388608")
        a("s_cselect_b64 exec, 0x7f, 3")
        rr_cc(6, 7)
        a("s_lshl_b32 s6, s6, 17")
        a("s_lshr_b32 s7, s2, 4")
        a(f"s_mul_i32 s7, s7, {224*2048}")
        a("s_cmp_eq_u32 s3, 6")
        a("s_cselect_b32 s6, s7, s6")
        a("v_lshlrev_b32 v14, 16, v0")
        a("buffer_load_dword v17, v14, s[40:43], s6 offen nt")
        a("s_mov_b64 exec, -1")
    a("L_t_next:")
    a(f"s_sub_u32 s11, s10, {ahead - 1}")
    if first3:
        a("s_sub_u32 s11, s11, s22")
        a("s_mov_b32 s22, 0")
    lds_spin(STARTED, "s11", 12, tsleep)
    a("s_mov_b32 s15, 1")
    a("s_atomic_add s15, s[56:57], 0 glc")
    a("s_lshl_b32 s4, s10, 2")
    a("v_add_u32 v14, s4, v1")
    a("s_waitcnt lgkmcnt(0)")
    if not empt: a(f"s_min_u32 s15, s15, {nshared-1}")
    if kmap in "DEFGH":
        if kmap == "H":
            a("s_add_u32 s5, s15, s8")
            a("s_and_b32 s5, s5, 3")
            a("s_or_b32 s5, s5, s9")
            a("s_and_b32 s4, s15, -4")
            a("s_add_u32 s4, s4, s8")
            a(f"s_add_u32 s4, s4, {mem*dyn}")
            a("s_lshl4_add_u32 s4, s5, s4")
        else:
            a("s_add_u32 s4, s15, s12")
        a("s_and_b32 s4, s4, 255")
        if kmap == "F":
            a("s_lshr_b32 s5, s4, 7")
            a("s_xor_b32 s5, s5, s8")
            a("s_and_b32 s5, s5, 1")
            a("s_lshl_b32 s4, s4, 1")
            a("s_add_u32 s4, s4, s5")
        if split:
            a("s_and_b32 s5, s4, 1")
            a("s_lshl_b32 s5, s5, 12")
        a("s_lshl_b32 s4, s4, 13")
        if split: a("s_sub_u32 s4, s4, s5")
        if kmap == "H":
            a("s_lshl_b32 s5, s5, 21")
            a("s_add_u32 s4, s4, s5")
            a("s_or_b32 s4, s4, 1")
        else:
            a("s_add_u32 s4, s4, s9")
    else:
        a(f"s_lshl_b32 s4, s15, {13 + (lgp if kmap == 'C' else 0)}")
        a("s_add_u32 s4, s4, s12")
    if kmap == "C":
        a("s_and_b32 s4, s4, 0x7fffff")
        a("s_add_u32 s4, s4, s9")
    if ztab:
        tab = sum(g << (4 * i) for i, g in enumerate(ztab))
        a(f"s_sub_u32 s5, s15, {zone}")
        a("s_and_b32 s5, s5, 0x1c")
        a(f"s_lshr_b32 s5, {tab}, s5")
        a("s_and_b32 s5, s5, 15")
        a("s_lshl_b32 s5, s5, 4")
        a("s_or_b32 s4, s4, s5")
    if wide:
        a(f"s_cmp_ge_u32 s15, {max(0, zone - wide[1])}")
        a("s_cselect_b32 s5, 16, 0")
        a("s_or_b32 s4, s4, s5")
    if empt:
        a(f"s_cmp_lt_u32 s15, {nshared}")
        a("s_cselect_b32 s4, s4, 0")
    a(f"s_add_u32 s10, s10, {ntw}")
    a(f"s_cmp_lt_u32 s15, {zone}")
    a("s_cselect_b32 s5, 0, 2")
    a("v_mov_b32 v15, s4")
    a("v_or_b32 v15, s5, v15")
    a(f"ds_write_b32 v14, v15 offset:{TQ}")
    a("s_cbranch_scc1 L_t_next")
    if direct: sig2 = False
    if sig1 is not None or sig2:
        L = a.label("L_nt"); D = a.label("L_ntd")
        a(f"s_mov_b32 s60, {spin_limit}")
        a(f"{L}:")
        refresh()
        a(f"s_cmp_lg_u32 s97, {BIG}")
        a(f"s_cbranch_scc1 {D}")
        a("s_sleep 2")
        a("s_sub_u32 s60, s60, 1")
        a(f"s_cbranch_scc0 {L}")
        a(f"{D}:")
        light_test()
        a("s_cselect_b32 s10, 2, 6")
        a("s_add_u32 s10, s10, s97")
        a("s_lshl_b32 s10, s10, 2")
        a("s_cmp_eq_u32 s3, 6")
        a("s_cbranch_scc1 L_t_zero")
    if rk:
        pool_id(6)
        a("s_lshr_b32 s4, s6, 2")
        a("s_lshl_b32 s7, s4, 14")
        if not rkgrp:
            a("s_and_b32 s5, s6, 3")
            a("s_lshl_b32 s8, s5, 8")
            a("s_add_u32 s7, s7, s8")
        a(f"s_add_u32 s7, s7, {AC1}")
        a("s_add_u32 s56, s38, s7")
        a("s_addc_u32 s57, s39, 0")
        a("s_mov_b32 s15, 1")
        a(f"s_add_u32 s11, s10, {rkat & 0xffffffff}")
        need("s11", sleep=1)
        a("s_atomic_add s15, s[56:57], 0 glc")
        tab = sum(g << (2 * i) for i, g in enumerate(rk))
        a(f"s_mov_b32 s6, {tab}")
        a("s_waitcnt lgkmcnt(0)")
        if rkgrp: a("s_lshr_b32 s15, s15, 2")
        a("s_lshl_b32 s15, s15, 1")
        a("s_lshr_b32 s6, s6, s15")
        a("s_and_b32 s6, s6, 3")
        a("v_mov_b32 v15, s6")
        a(f"ds_write_b32 v1, v15 offset:{GATE}")
    if sig1 is not None:
        pool_id(6)
        a("s_lshr_b32 s4, s6, 2")
        a("s_and_b32 s5, s6, 3")
        a("s_lshl_b32 s7, s4, 14")
        a("s_lshl_b32 s8, s5, 8")
        a("s_add_u32 s7, s7, s8")
        a(f"s_add_u32 s7, s7, {AC1}")
        a("s_add_u32 s56, s38, s7")
        a("s_addc_u32 s57, s39, 0")
        a("s_mov_b32 s15, 1")
        a("s_sub_u32 s11, s10, 2")
        need("s11", sleep=1)
        lds_spin(PCNT, sig1, 12, 0)
        for i in range(16): a(f"s_atomic_add s15, s[56:57], {1024*i}")
    if sig1 is not None or sig2:
        a("s_endpgm")
        a("L_t_zero:")
        rr_cc(6, 7)
    if sig1 is not None:
        a("s_lshl_b32 s5, s6, 10")
        a(f"s_add_u32 s5, s5, {AC1}")
        a("s_add_u32 s56, s38, s5")
        a("s_addc_u32 s57, s39, 0")
        a("v_mov_b32 v15, 1")
        a(f"s_add_u32 s11, s10, {s1from}")
        need("s11", sleep=1)
        L = a.label("L_w"); D = a.label("L_wd")
        a(f"s_mov_b32 s60, {spin_limit}")
        a(f"{L}:")
        for k in range(4): a(f"s_load_dword s{28+k}, s[56:57], {256*k} glc")
        a("s_waitcnt lgkmcnt(0)")
        a("s_add_u32 s28, s28, s29")
        a("s_add_u32 s30, s30, s31")
        a("s_add_u32 s28, s28, s30")
        a("s_cmp_eq_u32 s28, 64")
        a(f"s_cbranch_scc1 {D}")
        a("s_sub_u32 s60, s60, 1")
        a(f"s_cbranch_scc0 {L}")
        a(f"{D}:")
        a(f"ds_write_b32 v1, v15 offset:{GO}")
    if sig2:
        a(f"s_lshl_b32 s7, s7, {ash}")
        a("s_lshr_b32 s5, s2, 6")
        a("s_lshl_b32 s5, s5, 8")
        a("s_add_u32 s7, s7, s5")
        a(f"s_add_u32 s7, s7, {AC2}")
        a("v_mov_b32 v15, 1")
        ac_lane(14)
        if ssend:
            a("s_add_u32 s56, s38, s7")
            a("s_addc_u32 s57, s39, 0")
            a("s_mov_b32 s15, 1")
        a(f"s_add_u32 s10, s10, {sneed}")
        if egate: a("s_setprio 3")
        need("s10", sleep=0 if egate else 1)
        if tprio and not tp0: a(f"s_setprio {tprio}")
        lds_spin(OCNT if sig2late else GCNT, gneed, 12, 0)
        if ssend:
            for i in range(16): a(f"s_atomic_add s15, s[56:57], {1024*i}")
        else:
            a("s_mov_b64 exec, 0xffff")
            a("buffer_atomic_add v15, v14, s[48:51], s7 offen sc1")
        if lite == 2:
            stamp(1)
            dump_stamps(12, 13)
    a("L_end:")
    a("s_endpgm")
    a("L_codeend:")
    name = NAME + "_kernel"
    hdr = open("cdna_kernels/" + NAME + ".s.ref").read().split("; Override launch")[0]
    txt = hdr + header([f"@launch grid=(256,1,1) block=({64*(6+ntw)},1,1) lds={LDS_BYTES}"]) + (DOC if comments else "") + kernel_begin(name) + a.text() + rodata() + \
        kernel_desc(name, 184, 102, extra="  .amdhsa_float_denorm_mode_32 3\n")
    return txt

BASE = dict(gate=13, sig2=True, dyn=12, lex=2, empt=12, flate=True, qstart=32, qlight=24, hstart=64, grow=(8, 32), two=True, dmap=True, fw=(1, 1), cmap="qu",
            oneline=True, eearly=True, fat=48, tprio=3, side=0, apar=0, fastw=4, echk=True, sel3=True, xlin=True, clean=True)
if __name__ == "__main__":
    open("final.s", "w").write(gen(comments=True, **BASE))
    V = {"k56": {}, "k56b": {}, "k56o": dict(clean=False), "k56ob": dict(clean=False)}
    for k, v in V.items():
        v = dict(BASE, **v)
        open(k + ".s", "w").write(gen(**v))
        open(k + "_l2.s", "w").write(gen(lite=2, **v))
    open("x_d14.s", "w").write(gen(**dict(BASE, dyn=14, empt=28)))
```
